```python
import torch

def _softmax(x, axis=-1):
    return torch.softmax(x, dim=axis)

def _gelu(x):
    return torch.nn.functional.gelu(x, approximate='tanh')

def _silu(x):
    return torch.nn.functional.silu(x)

def _sigmoid(x):
    return torch.sigmoid(x)

def _layernorm(x, axis=-1, eps=1e-05):
    m = x.mean(dim=axis, keepdim=True)
    v = x.var(dim=axis, keepdim=True, unbiased=False)
    return (x - m) / torch.sqrt(v + eps)

def _scatter_add(tgt, idx, src, axis=0):
    return tgt.clone().index_add_(axis, idx, src)

def _segment_sum(src, seg, n):
    out = torch.zeros((n,) + src.shape[1:], dtype=src.dtype)
    return out.index_add_(0, seg, src)

def _pad(x, pw):
    flat = tuple((v for pair in reversed(pw) for v in pair))
    return torch.nn.functional.pad(x, flat)
kernel_name = 'adaLN_cond__gqa_block_cached__glu_gated_geglu__decode'

def setup_inputs():

    _w = lambda a: (lambda t: t.to(torch.bfloat16) if t.is_floating_point() else t)(torch.as_tensor(a))

    def _A_setup():
        B, Sq, D = (1, 1, 1024)
        Hq, Hkv, Sk, Dh = (32, 4, 65536, 128)
        assert Hq % Hkv == 0, (Hq, Hkv)
        return {'x': _w((lambda *s: torch.randn(*s, dtype=torch.bfloat16) * 0.05)(B, Sq, D)), 'k_cache': _w((lambda *s: torch.randn(*s, dtype=torch.bfloat16) * 3.2)(B, Hkv, Sk, Dh)), 'v_cache': _w((lambda *s: torch.randn(*s, dtype=torch.bfloat16) * 3.2)(B, Hkv, Sk, Dh)), 'wq': _w((lambda *s: torch.randn(*s, dtype=torch.bfloat16) * 3.2)(D, Hq * Dh) * D ** (-0.5)), 'wo': _w((lambda *s: torch.randn(*s, dtype=torch.bfloat16) * 3.2)(Hq * Dh, D) * (Hq * Dh) ** (-0.5))}
    _A_in = _A_setup()

    def _B_setup():
        B, S, Dm, Df = (1, 1, 1024, 3584)
        return {'x': _w((lambda *s: torch.randn(*s, dtype=torch.bfloat16) * 0.05)(B, S, Dm)), 'w_gate': _w((lambda *s: torch.randn(*s, dtype=torch.bfloat16) * 3.2)(Dm, Df) * Dm ** (-0.5)), 'w_up': _w((lambda *s: torch.randn(*s, dtype=torch.bfloat16) * 3.2)(Dm, Df) * Dm ** (-0.5)), 'w_down': _w((lambda *s: torch.randn(*s, dtype=torch.bfloat16) * 3.2)(Df, Dm) * Df ** (-0.5))}
    _B_in = _B_setup()
    return {'A_x': _A_in['x'], 'A_k_cache': _A_in['k_cache'], 'A_v_cache': _A_in['v_cache'], 'A_wq': _A_in['wq'], 'A_wo': _A_in['wo'], 'B_x': _B_in['x'], 'B_w_gate': _B_in['w_gate'], 'B_w_up': _B_in['w_up'], 'B_w_down': _B_in['w_down'], 'c': _w((lambda *s: torch.randn(*s, dtype=torch.bfloat16) * 0.4)(1, 1024) * 8.0), 'w_mod': _w((lambda *s: torch.randn(*s, dtype=torch.bfloat16) * 0.4)(1024, 6 * 1024) * 1024 ** (-0.5) * 8.0)}

def reference(A_x, A_k_cache, A_v_cache, A_wq, A_wo, B_x, B_w_gate, B_w_up, B_w_down, c, w_mod):

    def _A_ref(x, k_cache, v_cache, wq, wo):
        B, Sq, D = x.shape
        Hq, Dh = (32, 128)
        Hkv = k_cache.shape[1]
        rep = Hq // Hkv
        q = (lambda x, *d: x.permute(*d))((x @ wq).reshape(B, Sq, Hq, Dh), 0, 2, 1, 3)
        k = (lambda x, n, axis: torch.repeat_interleave(x, n, dim=axis))(k_cache, rep, axis=1)
        v = (lambda x, n, axis: torch.repeat_interleave(x, n, dim=axis))(v_cache, rep, axis=1)
        scores = torch.einsum('bhqd,bhkd->bhqk', q, k) * Dh ** (-0.5)
        p = _softmax(scores, axis=-1)
        o = torch.einsum('bhqk,bhkd->bhqd', p, v)
        return (lambda x, *d: x.permute(*d))(o, 0, 2, 1, 3).reshape(B, Sq, Hq * Dh) @ wo

    def _B_ref(x, w_gate, w_up, w_down):
        g = torch.einsum('bsd,df->bsf', x, w_gate)
        u = torch.einsum('bsd,df->bsf', x, w_up)
        h = _gelu(g) * u
        return torch.einsum('bsf,fd->bsd', h, w_down)
    x = A_x
    mod = (_silu(c) @ w_mod).reshape(c.shape[0], 6, 1, -1)
    sa, ca, ga, sb, cb, gb = (mod[:, 0].clone(), mod[:, 1].clone(), mod[:, 2].clone(), mod[:, 3].clone(), mod[:, 4].clone(), mod[:, 5].clone())
    h = _layernorm(x, axis=-1) * (1 + ca) + sa
    x = x + ga * _A_ref(h, A_k_cache, A_v_cache, A_wq, A_wo)
    h = _layernorm(x, axis=-1) * (1 + cb) + sb
    x = x + gb * _B_ref(h, B_w_gate, B_w_up, B_w_down)
    return x
```

```python
NAME = "adaLN_cond__gqa_block_cached__glu_gated_geglu__decode"
HEADER = """; Kernarg layout for this problem (112 bytes, ptrs only, base s[0:1]):
"""
class Asm:
    def __init__(self):
        self.l = []
        self.nlab = 0
    def __call__(self, s=""):
        for line in s.split("\n"):
            self.l.append("    " + line.strip() if line.strip() and not line.strip().endswith(":") else line.strip())
    def c(self, s): self.l.append("    ; " + s)
    def label(self, name): self.l.append(name + ":")
    def newlabel(self, p="L"):
        self.nlab += 1
        return f"{p}_{self.nlab}"
    def text(self): return "\n".join(self.l) + "\n"

def wrap(body, grid, block, lds, vgpr, sgpr=102, accum=None, name=None, extra_desc=""):
    k = NAME + "_kernel" if name is None else name
    if accum is None: accum = min(256, (vgpr + 3) // 4 * 4)
    return (HEADER + f"; @launch grid=({grid},1,1) block=({block},1,1) lds={lds}\n"
        '.amdgcn_target "amdgcn-amd-amdhsa--gfx950"\n.text\n'
        f".globl {k}\n.p2align 8\n.type {k},@function\n{k}:\n" + body +
        "    s_endpgm\n"
        '.section .rodata,"a"\n.p2align 6\n'
        f".amdhsa_kernel {k}\n  .amdhsa_next_free_vgpr {vgpr}\n  .amdhsa_next_free_sgpr {sgpr}\n  .amdhsa_accum_offset {accum}\n"
        "  .amdhsa_group_segment_fixed_size 0\n  .amdhsa_kernarg_size 112\n  .amdhsa_user_sgpr_count 2\n"
        "  .amdhsa_user_sgpr_kernarg_segment_ptr 1\n  .amdhsa_system_sgpr_workgroup_id_x 1\n" + extra_desc +
        ".end_amdhsa_kernel\n")
```

```python
import re
TRANS = ("v_exp_f32", "v_log_f32", "v_rcp_f32", "v_rsq_f32", "v_sqrt_f32", "v_sin_f32", "v_cos_f32")
def regs(tok):
    tok = tok.strip()
    m = re.fullmatch(r"-?\|?([vsa])(\d+)\|?", tok)
    if m: return {(m.group(1), int(m.group(2)))}
    m = re.fullmatch(r"-?([vsa])\[(\d+):(\d+)\]", tok)
    if m: return {(m.group(1), i) for i in range(int(m.group(2)), int(m.group(3)) + 1)}
    if tok in ("vcc", "vcc_lo", "vcc_hi"): return {("s", "vcc")}
    if tok == "exec": return {("s", "exec")}
    if tok == "m0": return {("s", "m0")}
    return set()
def split_ops(s):
    out = []; depth = 0; cur = ""
    for ch in s:
        if ch == "[": depth += 1
        if ch == "]": depth -= 1
        if ch == "," and depth == 0: out.append(cur); cur = ""
        else: cur += ch
    out.append(cur)
    return [o.strip() for o in out]
class I:
    def __init__(self, text):
        self.text = text
        t = text.split(";")[0].strip()
        p = t.split(None, 1)
        self.op = p[0]
        rest = p[1] if len(p) > 1 else ""
        ops = split_ops(rest) if rest else []
        mods = ""
        if ops:
            q = ops[-1].split(None, 1)
            ops[-1] = q[0]
            mods = q[1] if len(q) > 1 else ""
        self.ops = ops; self.mods = mods
        op = self.op
        self.kind = None; self.w = set(); self.r = set(); self.srcC = set(); self.srcAB = set()
        R = [regs(o) for o in ops]
        if op.startswith("v_mfma"):
            self.kind = "mfma"; self.w = R[0]; self.srcAB = R[1] | R[2]; self.srcC = R[3]; self.r = self.srcAB | self.srcC
            self.sgemm = op.endswith("_f32") and "x4_f32" in op or op.endswith("x2_f32")
            self.passes = 8 if ("32x32x16" in op or "16x16x4_f32" in op) else 4
        elif op.startswith("v_"):
            self.kind = "valu"
            if op.startswith("v_cmp"):
                self.w = R[0]; self.r = set().union(*R[1:])
            elif op.startswith("v_permlane"):
                self.w = R[0] | R[1]; self.r = R[0] | R[1]
            elif op.startswith("v_readfirstlane") or op.startswith("v_readlane"):
                self.w = R[0]; self.r = set().union(*R[1:])
            elif "_co_" in op:
                self.w = R[0] | R[1]; self.r = set().union(*R[2:])
            else:
                self.w = R[0]; self.r = set().union(*R[1:]) if len(R) > 1 else set()
                if op.startswith("v_fmac") or op.startswith("v_writelane") or "_dpp" in op or op.startswith("v_dot2c"): self.r |= R[0]
                if op.startswith("v_cndmask") and len(ops) == 3: self.r |= {("s", "vcc")}
            self.dpp = "_dpp" in op
            self.trans = any(op.startswith(x) for x in TRANS)
        elif op.startswith("buffer_") or op.startswith("global_"):
            self.kind = "vmem"
            lds = " lds" in (" " + mods)
            if "load" in op and not lds:
                self.w = R[0]; self.r = set().union(*R[1:])
                if "d16" in op: self.r |= R[0]
            else:
                self.r = set().union(*R)
                if lds: self.r |= {("s", "m0")}
                if "atomic" in op and "sc0" in mods: self.w = R[0]
            self.lds = lds
            self.wide_store = ("store_dwordx3" in op or "store_dwordx4" in op)
            self.data = R[0] if self.wide_store else set()
        elif op.startswith("ds_"):
            self.kind = "ds"
            if op.startswith("ds_read") or "rtn" in op or op.startswith("ds_bpermute") or op.startswith("ds_swizzle"):
                self.w = R[0]; self.r = set().union(*R[1:])
            else: self.r = set().union(*R)
        elif op.startswith("s_"):
            self.kind = "salu"
            if op.startswith(("s_cmp", "s_bitcmp", "s_cbranch", "s_branch", "s_waitcnt", "s_nop", "s_barrier", "s_sleep", "s_setprio", "s_endpgm")):
                self.r = set().union(*R) if R else set()
            else:
                self.w = R[0] if R else set(); self.r = set().union(*R[1:]) if len(R) > 1 else set()
                if "saveexec" in op: self.w |= {("s", "exec")}
        else:
            raise ValueError("unknown instr " + text)
        self.states = 1
        if op == "s_nop": self.states = int(ops[0], 0) + 1
def V(s): return {x for x in s if x[0] in "va"}
def S(s): return {x for x in s if x[0] == "s"}
def need(p, c):
    n = 0
    if p.kind == "valu":
        vw = V(p.w); sw = S(p.w)
        if c.kind == "mfma" and vw & c.r: n = max(n, 2)
        if c.kind == "valu":
            if c.dpp and vw & c.r: n = max(n, 2)
            if c.op.startswith("v_permlane") and vw & c.r: n = max(n, 2)
            if c.op.startswith(("v_readlane", "v_readfirstlane")) and vw & c.r: n = max(n, 1)
            if p.trans and not c.trans and vw & c.r: n = max(n, 1)
            if p.trans and c.trans and vw & c.r: n = max(n, 1)
            if sw & c.r: n = max(n, 4 if c.op.startswith(("v_readlane", "v_writelane")) else 2)
            if "sdwa" in p.op and vw & (c.r | c.w): n = max(n, 1)
        if c.kind == "vmem" and sw & c.r: n = max(n, 5)
        if c.kind == "salu" and sw & c.r: n = max(n, 1)
    if p.kind == "mfma":
        if p.sgemm: rd = {4: 6, 8: 10}[p.passes]; ov = {4: 4, 8: 8}[p.passes]
        else: rd = {4: 8, 8: 12}[p.passes]; ov = {4: 6, 8: 10}[p.passes]
        if c.kind == "mfma":
            if p.w & c.srcAB: n = max(n, rd)
            if p.w & c.srcC and not (p.w == c.srcC and p.op == c.op): n = max(n, ov)
            if p.w & c.w and not (p.w == c.srcC and p.op == c.op): n = max(n, rd)
        elif c.kind in ("valu", "vmem", "ds"):
            if p.w & (c.r | c.w): n = max(n, rd)
        if c.kind == "valu" and not p.sgemm and V(p.srcC) & c.w: n = max(n, {4: 3, 8: 7}[p.passes])
    if p.kind == "salu" and ("s", "m0") in p.w:
        if (c.kind == "vmem" and c.lds): n = max(n, 1)
        if c.kind == "valu" and ("s", "m0") in c.r: n = max(n, 1)
    if p.kind == "vmem" and p.wide_store and c.kind in ("valu", "mfma") and p.data & c.w: n = max(n, 2)
    if p.kind == "vmem" and p.wide_store and c.kind in ("vmem", "ds") and p.data & c.w: n = max(n, 1)
    return n
def run(lines):
    out = []; hist = []
    ins = 0
    for ln in lines:
        t = ln.strip()
        if not t or t.startswith(";") or t.startswith("."):
            out.append(ln); continue
        if t.endswith(":"):
            out.append(ln); continue
        c = I(t)
        dist = 0; pad = 0
        for p in reversed(hist):
            if dist >= 20: break
            k = need(p, c)
            if k > dist: pad = max(pad, k - dist)
            dist += p.states
        if c.op.startswith(("s_cbranch", "s_branch")):
            dist = 0
            for p in reversed(hist):
                if dist >= 13: break
                if p.kind == "mfma": pad = max(pad, (12 if p.passes == 8 else 8) - dist - 1)
                dist += p.states
        while pad > 0:
            k = min(pad, 16)
            nop = I(f"s_nop {k-1}")
            out.append(f"    s_nop {k-1}"); hist.append(nop); pad -= k; ins += 1
        out.append(ln); hist.append(c)
        if len(hist) > 40: hist = hist[-30:]
    return out
```

```python
import sys, os, struct
from asmgen import *
import hazard

def f2u(x): return struct.unpack("<I", struct.pack("<f", x))[0]
LOG2E = 1.4426950408889634

class Cfg:
    D1 = 4
    D2 = 6
    stamps = False
    ws_stride = 9344
    spin_budget = 1 << 18
    def __init__(self, **kw):
        for k, v in kw.items(): setattr(self, k, v)

OP, MODP, QP, YP, GUP, ZP, MLP, X2P = 0, 4096, 5632, 6144, 7168, 8192, 8704, 8832
CLEAR_BYTES = 9216
L_MOD, L_WQ, L_UP, L_DN, L_WO, L_GATE, L_MISC = 0, 0xC000, 0, 0x8000, 0x14000, 0x1C000, 0x24000
L_OS = L_WO
L_CNT = L_MISC
C_CRIT, C_WQ, C_MOD1, C_MOD2, C_WO, C_GATE, C_UP, C_DN, C_Q, C_H, C_ML, C_MLD, C_CLR = range(13)
L_QV = L_MISC + 0x100
L_HV = L_MISC + 0x900
L_H2V = L_MISC + 0xA00
L_HHV = L_MISC + 0xB00
L_SIL = L_MISC + 0xC00
L_MLW = L_MISC + 0xE00
L_MLF = L_MISC + 0x1000
L_AX = L_MISC + 0x1400
LDS_BYTES = 160 * 1024

def vr(a, n=1): return f"v{a}" if n == 1 else f"v[{a}:{a+n-1}]"
def sr(a, n=1): return f"s{a}" if n == 1 else f"s[{a}:{a+n-1}]"

def gen(cfg):
    a = Asm()
    WS = cfg.ws_stride
    W, WAVE, BUD = 2, 3, 4
    def srd_load(r, karg_off): a(f"s_load_dwordx2 {sr(r,2)}, s[0:1], {karg_off}")
    def srd_fin(r, nbytes): a(f"s_mov_b32 s{r+2}, {nbytes}\ns_mov_b32 s{r+3}, 0x20000")
    def rnd(d, s): a(f"v_cvt_pk_bf16_f32 v{d}, 0, v{s}")
    nst = [0]
    def stamp(idx, vreg):
        if not cfg.stamps: return
        a(f"s_memrealtime s[98:99]\ns_waitcnt lgkmcnt(0)\nv_writelane_b32 v{vreg}, s98, {idx}")
    def budget_check():
        a(f"s_sub_u32 s{BUD}, s{BUD}, 1\ns_cbranch_scc1 L_end")
    def lds_wait(cnt, target, vtmp, vaddr, sleep=1):
        L = a.newlabel("L_lw"); Ld = a.newlabel("L_lwd")
        a.label(L)
        a(f"ds_read_b32 v{vtmp}, v{vaddr} offset:{cnt*4}\ns_waitcnt lgkmcnt(0)\nv_readfirstlane_b32 s5, v{vtmp}")
        a(f"s_cmp_ge_u32 s5, {target}\ns_cbranch_scc1 {Ld}")
        if sleep: a(f"s_sleep {sleep}")
        budget_check()
        a(f"s_branch {L}")
        a.label(Ld)
    def lds_signal(cnt, vaddr, vone):
        a(f"s_mov_b64 exec, 1\nds_add_u32 v{vaddr}, v{vone} offset:{cnt*4}\ns_mov_b64 exec, -1")
    def xreduce(op, v, t, steps):
        for s in steps:
            if s in (1, 2, 4, 8): a(f"{op}_dpp v{v}, v{v}, v{v} row_ror:{s} row_mask:0xf bank_mask:0xf")
            elif s == 16: a(f"v_mov_b32 v{t}, v{v}\nv_permlane16_swap_b32 v{v}, v{t}\n{op} v{v}, v{v}, v{t}")
            elif s == 32: a(f"v_mov_b32 v{t}, v{v}\nv_permlane32_swap_b32 v{v}, v{t}\n{op} v{v}, v{v}, v{t}")

    a("s_cmp_ge_u32 s2, 256\ns_cbranch_scc1 L_end")
    a("v_lshrrev_b32 v2, 6, v0\nv_and_b32 v1, 63, v0")
    a(f"v_readfirstlane_b32 s{WAVE}, v2")
    a(f"s_mov_b32 s{BUD}, {cfg.spin_budget}")
    a(f"s_cmp_ge_u32 s{WAVE}, 8\ns_cbranch_scc1 L_cwave")

    R_MOD, R_WQ, R_WO, R_G, R_U, R_DN, R_K, R_V = 8, 12, 16, 20, 24, 28, 32, 36
    R_WSS = 40
    srd_load(R_MOD, 80); srd_load(R_DN, 64)
    a("s_load_dwordx16 s[68:83], s[0:1], 0")
    if cfg.stamps: srd_load(R_WSS, 104)
    VK, VV, VGU, VDN, VCN, VONE = 2, 3, 4, 5, 6, 7
    Q0, T0, DT, KV = 8, 16, 32, 40
    VMOD, VWQ, VWO, VST = 16, 17, 18, 0
    if cfg.stamps:
        a("s_memrealtime s[96:97]")
    a("v_and_b32 v32, 15, v1\nv_lshrrev_b32 v33, 4, v1\nv_lshlrev_b32 v34, 4, v32")
    a(f"v_mul_u32_u24 v{VMOD}, 12288, v33\nv_add_u32 v{VMOD}, v{VMOD}, v34")
    a(f"v_lshl_add_u32 v{VWQ}, v33, 13, v34")
    a(f"v_mul_u32_u24 v{VGU}, 7168, v33\nv_add_u32 v{VGU}, v{VGU}, v34")
    a(f"v_lshl_add_u32 v{VDN}, v33, 11, v34")
    a(f"v_lshrrev_b32 v35, 5, v1\nv_and_b32 v36, 31, v1\nv_lshlrev_b32 v36, 4, v36\nv_lshl_add_u32 v{VWO}, v35, 11, v36")
    a(f"v_lshlrev_b32 v{VV}, 4, v1")
    a(f"v_and_b32 v35, 2, v32\nv_lshlrev_b32 v35, 12, v35\nv_lshrrev_b32 v36, 2, v32\nv_lshl_add_u32 v35, v36, 8, v35")
    a(f"v_and_b32 v36, 1, v32\nv_lshl_add_u32 v35, v36, 6, v35\nv_lshl_add_u32 v{VK}, v33, 4, v35")
    a(f"v_mov_b32 v{VCN}, {L_CNT}\nv_mov_b32 v{VONE}, 1")
    SB_MOD, SB_WQ, SB_WO, SB_GU, SB_DN, SB_KV, SO, SL = 44, 45, 46, 47, 48, 49, 50, 51
    a(f"s_lshr_b32 s5, s2, 4\ns_lshl_b32 s5, s5, 6\ns_lshl_b32 s6, s3, 3\ns_add_u32 s5, s5, s6\ns_mul_i32 s5, s5, 12288")
    a(f"s_and_b32 s6, s2, 15\ns_lshl_b32 s6, s6, 8\ns_add_u32 s{SB_MOD}, s5, s6")
    a(f"s_lshl_b32 s{SL}, s3, 11")
    a("s_and_b32 s52, s2, 7\ns_lshr_b32 s53, s2, 3")
    a(f"s_lshl_b32 s5, s52, 7\ns_lshl_b32 s6, s3, 4\ns_add_u32 s54, s5, s6")
    a(f"s_lshl_b32 s5, s54, 13\ns_lshl_b32 s55, s53, 8\ns_add_u32 s{SB_WQ}, s5, s55")
    a(f"s_mul_i32 s5, s54, 7168\ns_add_u32 s{SB_GU}, s5, s55")
    a(f"s_lshl_b32 s5, s53, 7\ns_add_u32 s5, s5, s6\ns_lshl_b32 s5, s5, 11\ns_lshl_b32 s7, s52, 8\ns_add_u32 s{SB_DN}, s5, s7")
    a(f"s_lshr_b32 s5, s2, 5\ns_lshl_b32 s5, s5, 3\ns_add_u32 s5, s5, s52\ns_lshl_b32 s5, s5, 6\ns_lshl_b32 s6, s3, 3\ns_add_u32 s5, s5, s6\ns_lshl_b32 s5, s5, 11")
    a(f"s_and_b32 s6, s53, 3\ns_lshl_b32 s6, s6, 9\ns_add_u32 s{SB_WO}, s5, s6")
    a(f"s_and_b32 s5, s2, 3\ns_lshl_b32 s5, s5, 24\ns_lshr_b32 s6, s2, 2\ns_lshl_b32 s6, s6, 18\ns_add_u32 s5, s5, s6\ns_lshl_b32 s6, s3, 15\ns_add_u32 s{SB_KV}, s5, s6")
    a(f"s_lshl_b32 s56, s3, 12")
    srd_fin(R_MOD, 12582912); srd_fin(R_WQ, 8388608); srd_fin(R_WO, 8388608)
    srd_fin(R_K, 67108864); srd_fin(R_V, 67108864)
    a("s_mov_b32 s57, 7340032\ns_cmp_lt_u32 s2, 224\ns_cselect_b32 s57, s57, 0")
    for r in (R_G, R_U, R_DN): a(f"s_mov_b32 s{r+2}, s57\ns_mov_b32 s{r+3}, 0x20000")
    if cfg.stamps: srd_fin(R_WSS, 0x10000000)
    a("s_mov_b32 s58, 0x05040100\ns_mov_b32 s59, 0x07060302")
    a("s_waitcnt lgkmcnt(0)")
    for r, off in ((R_WQ, 24), (R_WO, 32), (R_G, 48), (R_U, 56), (R_K, 8), (R_V, 16)):
        a(f"s_mov_b64 {sr(r,2)}, {sr(68 + off//4, 2)}")
    if cfg.stamps: a(f"v_mov_b32 v{VST}, 0\nv_writelane_b32 v{VST}, s96, 0")

    issued = []; done = [0]; tiles = {}; signalled = set(); barrier_done = [False]
    def after_wait():
        for name, (cnt, ids) in tiles.items():
            if name not in signalled and len(ids) == TN[name] and max(ids) < done[0]:
                if not barrier_done[0]: a("s_barrier"); barrier_done[0] = True
                lds_signal(cnt, VCN, VONE); signalled.add(name)
    def wait_n(n):
        if len(issued) - done[0] > n:
            if not barrier_done[0]: a("s_barrier"); barrier_done[0] = True
            a(f"s_waitcnt vmcnt({n})"); done[0] = len(issued) - n; after_wait()
    def wait_id(i): wait_n(len(issued) - 1 - i)
    TN = dict(crit=2, wq=4, mod1=2, mod2=2, wo=4, gate=4, up=4, dn=4)
    TC = dict(crit=C_CRIT, wq=C_WQ, mod1=C_MOD1, mod2=C_MOD2, wo=C_WO, gate=C_GATE, up=C_UP, dn=C_DN)
    def dma(name, i, D):
        srd, voff, sb, step, lbase, lsreg = {
            "crit": (R_MOD, VMOD, SB_MOD, 4 * 12288, L_MOD, SL), "mod1": (R_MOD, VMOD, SB_MOD, 4 * 12288, L_MOD + 16384, SL),
            "mod2": (R_MOD, VMOD, SB_MOD, 4 * 12288, L_MOD + 32768, SL), "wq": (R_WQ, VWQ, SB_WQ, 4 * 8192, L_WQ, 56),
            "wo": (R_WO, VWO, SB_WO, 2 * 2048, L_WO, 56), "gate": (R_G, VGU, SB_GU, 4 * 7168, L_GATE, 56),
            "up": (R_U, VGU, SB_GU, 4 * 7168, L_UP, 56), "dn": (R_DN, VDN, SB_DN, 4 * 2048, L_DN, 56)}[name]
        extra = {"mod1": 4096, "mod2": 8192}.get(name, 0)
        a(f"s_add_u32 s{SO}, s{sb}, {i*step + extra}\ns_add_u32 m0, s{lsreg}, {lbase + i*1024}")
        wait_n(D - 1)
        a(f"buffer_load_dwordx4 v{voff}, {sr(srd,4)}, s{SO} offen nt lds")
        tiles.setdefault(name, (TC[name], []))[1].append(len(issued)); issued.append(name)
    kid = {}; vid = {}
    cur_so = [None]
    def kvload(srd, voff, off, dst, D):
        so = off & ~0xfff
        if cur_so[0] != so:
            a(f"s_add_u32 s60, s{SB_KV}, {so}"); cur_so[0] = so
        if D: wait_n(D - 1)
        a(f"buffer_load_dwordx4 {vr(dst,4)}, v{voff}, {sr(srd,4)}, s60 offen offset:{off & 0xfff} nt")
        issued.append("kv"); return len(issued) - 1
    def kload(n, u, D): kid[(n, u)] = kvload(R_K, VK, (n >> 3) * 16384 + (n & 7) * 1024 + u * 128, KV + 8 * n + 4 * u, D)
    def vslot(i): return KV + 4 * (i % 24)
    def vload(i, D): vid[i] = kvload(R_V, VV, i * 1024, vslot(i), D)

    D1, D2 = cfg.D1, cfg.D2
    for name in ("crit", "wq", "mod1", "mod2", "wo", "gate"):
        for i in range(TN[name]): dma(name, i, D1)
    for n in range(16):
        for u in range(2): kload(n, u, D1)
    stamp(1, VST)
    lds_wait(C_Q, 4, DT, VCN)
    stamp(2, VST)
    a(f"v_and_b32 v{DT}, 7, v1\nv_lshlrev_b32 v{DT}, 8, v{DT}\nv_and_b32 v{DT+1}, 8, v1\nv_lshl_add_u32 v{DT}, v{DT+1}, 3, v{DT}")
    a(f"v_lshrrev_b32 v{DT+1}, 4, v1\nv_lshl_add_u32 v{DT}, v{DT+1}, 4, v{DT}\nv_add_u32 v{DT}, {L_QV}, v{DT}")
    a(f"ds_read_b128 {vr(Q0,4)}, v{DT}\nds_read_b128 {vr(Q0+4,4)}, v{DT} offset:128\ns_waitcnt lgkmcnt(0)")
    a(f"s_mov_b32 s61, {f2u(128 ** -0.5):#x}\ns_mov_b32 s62, {f2u(LOG2E):#x}")
    nv = 0
    def fold(n):
        d = DT + 4 * (n & 1)
        a(f"v_add_f32_dpp v{T0+n}, v{d+1}, v{d} row_ror:8 row_mask:0xf bank_mask:0x3")
        a(f"v_add_f32_dpp v{T0+n}, v{d+2}, v{d+3} row_ror:8 row_mask:0xf bank_mask:0xc")
    def post(n):
        rnd(T0 + n, T0 + n); a(f"v_mul_f32 v{T0+n}, s61, v{T0+n}"); rnd(T0 + n, T0 + n)
    for n in range(16):
        wait_id(kid[(n, 1)])
        d = DT + 4 * (n & 1)
        a(f"v_mfma_f32_16x16x32_bf16 {vr(d,4)}, {vr(KV+8*n,4)}, {vr(Q0,4)}, 0")
        a(f"v_mfma_f32_16x16x32_bf16 {vr(d,4)}, {vr(KV+8*n+4,4)}, {vr(Q0+4,4)}, {vr(d,4)}")
        if n >= 1 and nv < D2 and n % 2 == 1:
            vload(nv, 0); nv += 1
        if n >= 2: post(n - 2)
        if n >= 1: fold(n - 1)
    fold(15); post(14); post(15)
    M_, L_, X_ = DT, DT + 1, DT + 2
    a(f"v_max3_f32 v{M_}, v{T0}, v{T0+1}, v{T0+2}")
    for i in range(3, 15, 2): a(f"v_max3_f32 v{M_}, v{M_}, v{T0+i}, v{T0+i+1}")
    a(f"v_max_f32 v{M_}, v{M_}, v{T0+15}")
    xreduce("v_max_f32", M_, X_, (8, 16, 32))
    for i in range(16):
        e = DT + 4 + (i & 3)
        a(f"v_sub_f32 v{e}, v{T0+i}, v{M_}\nv_mul_f32 v{e}, s62, v{e}\nv_exp_f32 v{e}, v{e}")
        if i >= 1:
            p = DT + 4 + ((i - 1) & 3)
            a(f"v_mov_b32 v{L_}, v{p}" if i == 1 else f"v_add_f32 v{L_}, v{L_}, v{p}")
    a(f"v_add_f32 v{L_}, v{L_}, v{DT+7}")
    xreduce("v_add_f32", L_, X_, (8, 16, 32))
    a(f"s_lshl_b32 s5, s3, 6\ns_add_u32 s5, s5, {L_MLW}\nv_lshlrev_b32 v{X_}, 3, v1\nv_add_u32 v{X_}, s5, v{X_}")
    a(f"s_mov_b64 exec, 0xff\nds_write_b64 v{X_}, {vr(M_,2)}\ns_waitcnt lgkmcnt(0)")
    lds_signal(C_ML, VCN, VONE)
    stamp(3, VST)
    while nv < 24: vload(nv, D2); nv += 1
    for name in ("up", "dn"):
        for i in range(4): dma(name, i, D2)
    stamp(4, VST)
    lds_wait(C_MLD, 1, DT, VCN)
    stamp(5, VST)
    a(f"v_and_b32 v{X_}, 7, v1\nv_lshlrev_b32 v{X_}, 3, v{X_}\nv_add_u32 v{X_}, {L_MLF}, v{X_}\nds_read_b64 {vr(M_,2)}, v{X_}\ns_waitcnt lgkmcnt(0)")
    for i in range(16):
        a(f"v_sub_f32 v{T0+i}, v{T0+i}, v{M_}\nv_mul_f32 v{T0+i}, s62, v{T0+i}\nv_exp_f32 v{T0+i}, v{T0+i}")
    for i in range(16): a(f"v_mul_f32 v{T0+i}, v{T0+i}, v{L_}")
    for i in range(8): a(f"v_cvt_pk_bf16_f32 v{Q0+i}, v{T0+2*i}, v{T0+2*i+1}")
    a("s_mov_b32 s64, 0x00ff00ff\ns_mov_b32 s65, 0x00ff00ff\ns_mov_b32 s66, 0xff00ff00\ns_mov_b32 s67, 0xff00ff00")
    for b in range(2):
        for pi in range(2):
            for i in range(4):
                a(f"v_cndmask_b32 v{T0+4*(2*b+pi)+i}, 0, v{Q0+4*b+i}, s[{64+2*pi}:{65+2*pi}]")
    ACC = KV + 96
    stage = [DT, DT + 4, Q0, Q0 + 4]
    sidx = 0
    for G in range(4):
        wait_id(vid[8 * G + 7])
        for j in range(8):
            st = stage[sidx & 3]; sidx += 1
            for p in range(4):
                lo = vslot(8 * G + 2 * p) + (j >> 1); hi = vslot(8 * G + 2 * p + 1) + (j >> 1)
                a(f"v_perm_b32 v{st+p}, v{hi}, v{lo}, s{58 + (j & 1)}")
            c = "0" if G == 0 else vr(ACC + 4 * j, 4)
            a(f"v_mfma_f32_16x16x32_bf16 {vr(ACC+4*j,4)}, {vr(st,4)}, {vr(T0+4*G,4)}, {c}")
            if G in (1, 2) and j % 2 == 0 and nv < 32:
                vload(nv, D2); nv += 1
    wait_n(0)
    stamp(6, VST)
    for rho in range(4):
        for e in range(4):
            x = ACC + 4 * e + rho; y = ACC + 4 * (4 + e) + rho
            a(f"v_add_f32_dpp v{KV+4*rho+e}, v{x}, v{x} row_ror:8 row_mask:0xf bank_mask:0x3")
            a(f"v_add_f32_dpp v{KV+4*rho+e}, v{y}, v{y} row_ror:8 row_mask:0xf bank_mask:0xc")
        if rho == 0: a(f"s_add_u32 s5, s56, {L_OS}\nv_add_u32 v{VV}, s5, v{VV}")
        a(f"ds_write_b128 v{VV}, {vr(KV+4*rho,4)} offset:{rho*1024}")
    a("s_waitcnt lgkmcnt(0)")
    if cfg.stamps:
        stamp(7, VST)
        a(f"s_lshl_b32 s5, s2, 11\ns_lshl_b32 s6, s3, 7\ns_add_u32 s5, s5, s6\ns_add_u32 s5, s5, 0x8000000\nv_lshlrev_b32 v2, 2, v1")
        a(f"s_mov_b32 exec_lo, -1\ns_mov_b32 exec_hi, 0\nbuffer_store_dword v{VST}, v2, {sr(R_WSS,4)}, s5 offen")
    a("s_endpgm")

    a.label("L_cwave")
    a("s_setprio 3")
    R_WS, R_DBG, R_X, R_C, R_OUT = 8, 12, 16, 20, 24
    srd_load(R_WS, 104); srd_load(R_DBG, 96); srd_load(R_X, 0); srd_load(R_C, 72); srd_load(R_OUT, 88)
    if cfg.stamps: a("s_memrealtime s[96:97]")
    WV = 28
    a(f"s_sub_u32 s{WV}, s3, 8")
    TID = 0
    a("v_subrev_u32 v0, 512, v0")
    VCN, VONE, VTR, VPUB, VACT, VA, VB, KEEP0, KEEP1, KEEP2, VST = 2, 3, 4, 5, 6, 7, 8, 9, 10, 11, 12
    WK = 16
    FWO, FG, FU, FD = 40, 72, 104, 136
    a(f"v_mov_b32 v{VCN}, {L_CNT}\nv_mov_b32 v{VONE}, 1\nv_mov_b32 v{WK}, 0")
    a(f"v_lshlrev_b32 v{WK+1}, 2, v1\nv_add_u32 v{WK+1}, {L_CNT}, v{WK+1}\nds_write_b32 v{WK+1}, v{WK}")
    srd_fin(R_WS, 0x10000000); srd_fin(R_DBG, 256); srd_fin(R_X, 2048); srd_fin(R_C, 2048); srd_fin(R_OUT, 2048)
    SMY = 29
    a(f"s_mul_i32 s{SMY}, s2, {WS}")
    a("s_and_b32 s30, s2, 7\ns_lshr_b32 s31, s2, 3")
    for i in range(4): a(f"v_mov_b32 v{WK+4+i}, -1")
    a(f"v_lshlrev_b32 v{VA}, 4, v0")
    a("s_waitcnt lgkmcnt(0)\ns_barrier")
    if cfg.stamps: a(f"v_mov_b32 v{VST}, 0\nv_writelane_b32 v{VST}, s96, 0")
    a(f"buffer_store_dwordx4 {vr(WK+4,4)}, v{VA}, {sr(R_WS,4)}, s{SMY} offen sc1")
    a(f"s_add_u32 s5, s{SMY}, 4096\nbuffer_store_dwordx4 {vr(WK+4,4)}, v{VA}, {sr(R_WS,4)}, s5 offen sc1")
    a(f"s_cmp_lg_u32 s{WV}, 0\ns_cbranch_scc1 L_clr_done")
    a(f"s_add_u32 s5, s{SMY}, 8192\nbuffer_store_dwordx4 {vr(WK+4,4)}, v{VA}, {sr(R_WS,4)}, s5 offen sc1")
    a.label("L_clr_done")
    XR = FU
    a(f"s_lshr_b32 s5, s2, 4\ns_lshl_b32 s5, s5, 7\nv_lshlrev_b32 v{VB}, 1, v1")
    a(f"buffer_load_ushort v{WK}, v{VB}, {sr(R_C,4)}, s5 offen")
    a(f"v_lshlrev_b32 v{WK+1}, 5, v1")
    a(f"buffer_load_dwordx4 {vr(XR,4)}, v{WK+1}, {sr(R_X,4)}, 0 offen\nbuffer_load_dwordx4 {vr(XR+4,4)}, v{WK+1}, {sr(R_X,4)}, 0 offen offset:16")
    a(f"s_lshl_b32 s32, s30, 7\ns_lshl_b32 s6, s{WV}, 5\ns_add_u32 s32, s32, s6")
    a(f"v_and_b32 v{WK+2}, 31, v1\nv_lshlrev_b32 v{WK+3}, 1, v{WK+2}\ns_lshl_b32 s5, s32, 1")
    a(f"buffer_load_ushort v{KEEP0}, v{WK+3}, {sr(R_X,4)}, s5 offen")
    a(f"v_lshrrev_b32 v{WK+8}, 4, v1\nv_and_b32 v{WK+9}, 15, v1")
    a(f"v_lshlrev_b32 v{VPUB}, 6, v{WK+9}\nv_lshl_add_u32 v{VPUB}, v{WK+8}, 4, v{VPUB}")
    a(f"v_lshlrev_b32 v{VACT}, 4, v{WK+8}")
    a(f"v_bfe_u32 v{WK+10}, v1, 2, 2\nv_lshl_add_u32 v{WK+11}, v{WK+8}, 3, v{WK+10}\nv_lshlrev_b32 v{VTR}, 8, v{WK+11}")
    a(f"v_and_b32 v{WK+12}, 3, v1\nv_lshl_add_u32 v{VTR}, v{WK+12}, 3, v{VTR}\ns_lshl_b32 s5, s{WV}, 6\nv_add_u32 v{VTR}, s5, v{VTR}")
    a(f"s_mov_b32 s33, {f2u(LOG2E):#x}")
    a("s_waitcnt vmcnt(0)")
    lds_signal(C_CLR, VCN, VONE)
    lds_wait(C_CLR, 4, WK + 1, VCN, sleep=0)
    a(f"s_cmp_lg_u32 s{WV}, 0\ns_cbranch_scc1 L_flag_done")
    a(f"s_and_b32 s5, s2, 63\ns_lshl_b32 s5, s5, 2\ns_mov_b64 exec, 1\nbuffer_atomic_add v{VONE}, off, {sr(R_DBG,4)}, s5 sc1\ns_mov_b64 exec, -1")
    a.label("L_flag_done")
    stamp(1, VST)
    c_ = WK
    lo2 = LOG2E - struct.unpack("<f", struct.pack("<f", LOG2E))[0]
    a(f"v_lshlrev_b32 v{c_}, 16, v{c_}")
    a(f"v_max_f32 v{WK+13}, {f2u(-87.0):#x}, v{c_}\nv_min_f32 v{WK+13}, {f2u(100.0):#x}, v{WK+13}")
    a(f"v_mul_f32 v{WK+1}, s33, v{WK+13}\nv_fma_f32 v{WK+2}, v{WK+13}, s33, -v{WK+1}\nv_mov_b32 v{WK+3}, {f2u(lo2):#x}\nv_fmac_f32 v{WK+2}, v{WK+13}, v{WK+3}")
    a(f"v_exp_f32 v{WK+1}, -v{WK+1}\nv_mul_f32 v{WK+2}, {f2u(-0.6931471805599453):#x}, v{WK+2}")
    a(f"v_fma_f32 v{WK+1}, v{WK+1}, v{WK+2}, v{WK+1}\nv_add_f32 v{WK+1}, 1.0, v{WK+1}")
    a(f"v_rcp_f32 v{WK+2}, v{WK+1}\nv_mul_f32 v{WK+3}, v{c_}, v{WK+2}\nv_fma_f32 v{WK+13}, -v{WK+3}, v{WK+1}, v{c_}\nv_fmac_f32 v{WK+3}, v{WK+13}, v{WK+2}")
    rnd(WK + 3, WK + 3)
    a(f"s_lshl_b32 s5, s{WV}, 7\ns_add_u32 s5, s5, {L_SIL}\nv_add_u32 v{WK+1}, s5, v{VB}\nds_write_b16_d16_hi v{WK+1}, v{WK+3}")
    ACT = WK + 8
    a(f"v_add_u32 v{WK+1}, s5, v{VACT}\ns_waitcnt lgkmcnt(0)\nds_read_b128 {vr(ACT,4)}, v{WK+1}\nds_read_b128 {vr(ACT+4,4)}, v{WK+1} offset:64")

    def ln_stats(X, mean_b, rden, t0):
        s_, t_ = t0, t0 + 1
        a(f"v_add_f32 v{s_}, v{X}, v{X+1}\nv_add_f32 v{t_}, v{X+2}, v{X+3}")
        for i in range(4, 16, 2): a(f"v_add_f32 v{s_}, v{s_}, v{X+i}\nv_add_f32 v{t_}, v{t_}, v{X+i+1}")
        a(f"v_add_f32 v{s_}, v{s_}, v{t_}")
        xreduce("v_add_f32", s_, t_, (1, 2, 4, 8, 16, 32))
        a(f"v_mul_f32 v{s_}, {f2u(1.0/1024):#x}, v{s_}")
        for i in range(16): a(f"v_sub_f32 v{X+i}, v{X+i}, v{s_}")
        rnd(mean_b, s_)
        a(f"v_mul_f32 v{s_}, v{X}, v{X}\nv_mul_f32 v{t_}, v{X+1}, v{X+1}")
        for i in range(2, 16, 2): a(f"v_fmac_f32 v{s_}, v{X+i}, v{X+i}\nv_fmac_f32 v{t_}, v{X+i+1}, v{X+i+1}")
        a(f"v_add_f32 v{s_}, v{s_}, v{t_}")
        xreduce("v_add_f32", s_, t_, (1, 2, 4, 8, 16, 32))
        a(f"v_mul_f32 v{s_}, {f2u(1.0/1024):#x}, v{s_}"); rnd(s_, s_)
        a(f"v_add_f32 v{s_}, {f2u(1e-5):#x}, v{s_}"); rnd(s_, s_)
        a(f"v_sqrt_f32 v{s_}, v{s_}"); rnd(s_, s_)
        a(f"v_rcp_f32 v{rden}, v{s_}")
    def ln_apply(x, mean_b, rden):
        a(f"v_sub_f32 v{x}, v{x}, v{mean_b}"); rnd(x, x)
        a(f"v_mul_f32 v{x}, v{x}, v{rden}"); rnd(x, x)
    XU = XR + 8
    for i in range(8):
        a(f"v_lshlrev_b32 v{XU+2*i}, 16, v{XR+i}\nv_and_b32 v{XU+2*i+1}, 0xffff0000, v{XR+i}")
    ln_stats(XU, WK, WK + 1, WK + 2)
    a(f"v_lshlrev_b32 v{KEEP0}, 16, v{KEEP0}")
    ln_apply(KEEP0, WK, WK + 1)

    def tr_read(dst, vaddr, base, ncg, nkk, rs, kstep=32, cgstep=32):
        for cg in range(ncg):
            for kk in range(nkk):
                for q in range(2):
                    off = base + cg * cgstep + (kstep * kk + 4 * q) * rs
                    assert off < 65536
                    a(f"ds_read_b64_tr_b16 {vr(dst + (cg*nkk+kk)*4 + 2*q, 2)}, v{vaddr} offset:{off}")
    MASKC = [0x0001000100010001 << i for i in range(4)]
    def gemv(frs, nkk, act, dacc):
        for kk in range(nkk):
            for cg, f in enumerate(frs):
                c = "0" if kk == 0 else vr(dacc + 4 * cg, 4)
                a(f"v_mfma_f32_16x16x32_bf16 {vr(dacc+4*cg,4)}, {vr(f+4*kk,4)}, {vr(act+4*kk,4)}, {c}")
        for cg in range(1, len(frs)):
            m = MASKC[cg]
            a(f"s_mov_b32 exec_lo, {m & 0xffffffff:#x}\ns_mov_b32 exec_hi, {m >> 32:#x}")
            for i in range(4): a(f"v_mov_b32 v{dacc+i}, v{dacc+4*cg+i}")
    def publish(dacc, ncg, off):
        m = sum(MASKC[:ncg])
        a(f"s_mov_b32 exec_lo, {m & 0xffffffff:#x}\ns_mov_b32 exec_hi, {m >> 32:#x}")
        a(f"s_mul_i32 s5, s{WV}, {ncg*64}\ns_add_u32 s5, s5, s{SMY}\ns_add_u32 s5, s5, {off}")
        a(f"buffer_store_dwordx4 {vr(dacc,4)}, v{VPUB}, {sr(R_WS,4)}, s5 offen sc1\ns_mov_b64 exec, -1")
    def gather(loads, t0, pre=None, sleep=0):
        L = a.newlabel("L_g"); Ld = a.newlabel("L_gd")
        a.label(L)
        regs_ = []
        for (dst, wd, va, so, em) in loads:
            if em is not None: a(f"s_mov_b32 exec_lo, {em & 0xffffffff:#x}\ns_mov_b32 exec_hi, {em >> 32:#x}")
            if so: a(f"s_mov_b32 s5, {so}")
            a(f"buffer_load_dword{'' if wd == 1 else 'x'+str(wd)} {vr(dst,wd)}, v{va}, {sr(R_WS,4)}, {'s5' if so else '0'} offen sc1")
            if em is not None: a("s_mov_b64 exec, -1")
            regs_ += list(range(dst, dst + wd))
        a("s_waitcnt vmcnt(0)")
        if len(regs_) == 1: a(f"v_mov_b32 v{t0}, v{regs_[0]}")
        elif len(regs_) == 2: a(f"v_max_u32 v{t0}, v{regs_[0]}, v{regs_[1]}")
        else:
            a(f"v_max3_u32 v{t0}, v{regs_[0]}, v{regs_[1]}, v{regs_[2]}")
            rest = regs_[3:]
            while rest:
                if len(rest) >= 2: a(f"v_max3_u32 v{t0}, v{t0}, v{rest[0]}, v{rest[1]}"); rest = rest[2:]
                else: a(f"v_max_u32 v{t0}, v{t0}, v{rest[0]}"); rest = []
        a(f"v_cmp_eq_u32 vcc, -1, v{t0}\ns_cbranch_vccz {Ld}")
        if sleep: a(f"s_sleep {sleep}")
        budget_check()
        a(f"s_branch {L}")
        a.label(Ld)
    def tree_sum(base, n, stride=1):
        idx = [base + i * stride for i in range(n)]
        while len(idx) > 1:
            nx = []
            for i in range(0, len(idx) - 1, 2):
                a(f"v_add_f32 v{idx[i]}, v{idx[i]}, v{idx[i+1]}"); nx.append(idx[i])
            if len(idx) & 1: nx.append(idx[-1])
            idx = nx
    DACC = WK
    def mod_tile(t, cnt):
        lds_wait(cnt, 8, WK, VCN)
        tr_read(FU, VTR, L_MOD + t * 16384, 2, 2, 256)
        a("s_waitcnt lgkmcnt(0)")
        gemv([FU, FU + 8], 2, ACT, DACC)
        publish(DACC, 2, MODP + t * 512)
    mod_tile(0, C_CRIT)
    stamp(2, VST)
    lds_wait(C_WQ, 8, WK + 4, VCN)
    a(f"v_add_u32 v{VA}, {L_WQ}, v{VTR}")
    tr_read(FD, VA, 0, 2, 4, 256)
    mod_tile(1, C_MOD1)
    mod_tile(2, C_MOD2)
    stamp(3, VST)
    L = a.newlabel("L_fl"); Ld = a.newlabel("L_fld")
    a(f"v_lshlrev_b32 v{VA}, 2, v1")
    a.label(L)
    a(f"buffer_load_dword v{WK+4}, v{VA}, {sr(R_DBG,4)}, 0 offen sc1\ns_waitcnt vmcnt(0)\nv_cmp_ne_u32 vcc, 4, v{WK+4}\ns_cbranch_vccz {Ld}")
    a("s_sleep 2"); budget_check(); a(f"s_branch {L}")
    a.label(Ld)
    stamp(4, VST)
    def pair_addr(dst, cb_lo_s, cb_hi_s, off_lo, off_hi, colbase_s):
        a(f"s_mul_i32 s5, {cb_lo_s}, {WS}\ns_add_u32 s5, s5, {off_lo}\ns_mul_i32 s6, {cb_hi_s}, {WS}\ns_add_u32 s6, s6, {off_hi}")
        a(f"s_lshl_b32 s7, {colbase_s}, 2\ns_add_u32 s5, s5, s7\ns_add_u32 s6, s6, s7")
        a(f"v_mov_b32 v{dst}, s5\ns_mov_b32 exec_lo, 0\nv_mov_b32 v{dst}, s6\ns_mov_b32 exec_lo, -1")
        a(f"v_and_b32 v{WK}, 31, v1\nv_lshl_add_u32 v{dst}, v{WK}, 2, v{dst}")
    a(f"s_add_u32 s34, s30, 8\ns_lshl_b32 s35, s{WV}, 5")
    pair_addr(VA, "s30", "s34", MODP, MODP, "s35")
    def gather16(dst, va): gather([(dst + i, 1, va, i * 16 * WS, None) for i in range(16)], WK)
    def split_pair(v, t):
        a(f"v_mov_b32 v{t}, v{v}\nv_permlane32_swap_b32 v{v}, v{t}")
    def modulate(x, shift, scale):
        a(f"v_mul_f32 v{x}, v{x}, v{scale}"); rnd(x, x)
        a(f"v_add_f32 v{x}, v{x}, v{shift}"); rnd(x, x)
    gather16(FU, VA)
    stamp(5, VST)
    tree_sum(FU, 16); rnd(FU, FU); split_pair(FU, FU + 1)
    a(f"v_add_f32 v{FU+1}, 1.0, v{FU+1}"); rnd(FU + 1, FU + 1)
    modulate(KEEP0, FU, FU + 1)
    def vec_write(x, lbase):
        a(f"s_lshl_b32 s5, s{WV}, 6\ns_add_u32 s5, s5, {lbase}\nv_add_u32 v{WK}, s5, v{VB}")
        a(f"s_mov_b32 exec_hi, 0\nds_write_b16_d16_hi v{WK}, v{x}\ns_mov_b32 exec_hi, -1\ns_waitcnt lgkmcnt(0)")
    def act_read(lbase):
        a(f"v_add_u32 v{WK}, {lbase}, v{VACT}")
        for kk in range(4): a(f"ds_read_b128 {vr(ACT+4*kk,4)}, v{WK} offset:{kk*64}")
        a("s_waitcnt lgkmcnt(0)")
    vec_write(KEEP0, L_HV)
    lds_signal(C_H, VCN, VONE)
    lds_wait(C_H, 4, WK, VCN, sleep=0)
    act_read(L_HV)
    gemv([FD, FD + 16], 4, ACT, DACC)
    publish(DACC, 2, QP)
    stamp(6, VST)
    lds_wait(C_WO, 8, WK + 4, VCN)
    a(f"v_lshrrev_b32 v{WK+4}, 4, v1\nv_bfe_u32 v{WK+5}, v1, 2, 2\nv_lshl_add_u32 v{WK+4}, v{WK+4}, 4, v{WK+5}\nv_lshlrev_b32 v{WK+4}, 9, v{WK+4}")
    a(f"v_and_b32 v{WK+5}, 3, v1\nv_lshl_add_u32 v{WK+4}, v{WK+5}, 3, v{WK+4}\ns_lshl_b32 s5, s{WV}, 7\ns_add_u32 s5, s5, {L_WO}\nv_add_u32 v{WK+4}, s5, v{WK+4}")
    tr_read(FWO, WK + 4, 0, 4, 2, 512, kstep=8)
    lds_wait(C_GATE, 8, WK + 5, VCN)
    a(f"v_add_u32 v{VA}, {L_GATE}, v{VTR}")
    tr_read(FG, VA, 0, 2, 4, 256)
    a(f"s_and_b32 s5, s2, 3\ns_lshl_b32 s5, s5, 3\nv_lshrrev_b32 v{WK+4}, 5, v0\nv_add_u32 v{WK+4}, s5, v{WK+4}\ns_mov_b32 s6, {8*WS}\nv_mul_lo_u32 v{VA}, v{WK+4}, s6")
    a(f"v_and_b32 v{WK+4}, 31, v0\nv_lshl_add_u32 v{VA}, v{WK+4}, 4, v{VA}\nv_add_u32 v{VA}, {QP}, v{VA}")
    gather([(FU + 4 * i, 4, VA, i * WS, None) for i in range(8)], WK)
    stamp(7, VST)
    for e in range(4): tree_sum(FU + e, 8, 4)
    a(f"v_cvt_pk_bf16_f32 v{WK}, v{FU}, v{FU+1}\nv_cvt_pk_bf16_f32 v{WK+1}, v{FU+2}, v{FU+3}")
    a(f"v_lshlrev_b32 v{WK+2}, 3, v0\nv_add_u32 v{WK+2}, {L_QV}, v{WK+2}\nds_write_b64 v{WK+2}, {vr(WK,2)}\ns_waitcnt lgkmcnt(0)")
    lds_signal(C_Q, VCN, VONE)
    a("s_cmp_ge_u32 s2, 224\ns_cbranch_scc1 L_red_mod")
    pair_addr(VA, "s34", "s30", MODP + 512, MODP + 1024, "s35")
    gather16(FU, VA)
    tree_sum(FU, 16); rnd(KEEP0, FU); split_pair(KEEP0, KEEP1)
    a(f"v_add_f32 v{KEEP1}, 1.0, v{KEEP1}"); rnd(KEEP1, KEEP1)
    a("s_branch L_mod_done")
    a.label("L_red_mod")
    COL = 13
    a(f"s_sub_u32 s36, s2, 224")
    a(f"v_and_b32 v{COL}, 7, v1\nv_lshlrev_b32 v{COL}, 2, v{COL}\nv_bfe_u32 v{WK}, v1, 4, 1\nv_lshl_add_u32 v{COL}, v{WK}, 1, v{COL}\nv_lshrrev_b32 v{WK}, 5, v1\nv_add_u32 v{COL}, v{COL}, v{WK}")
    a(f"s_lshr_b32 s5, s36, 2\ns_mul_i32 s5, s5, {WS}\ns_and_b32 s6, s36, 3\ns_lshl_b32 s6, s6, 7\ns_add_u32 s5, s5, s6\ns_add_u32 s5, s5, {MODP+512}")
    a(f"v_lshlrev_b32 v{VA}, 2, v{COL}\nv_add_u32 v{VA}, s5, v{VA}")
    gather16(FU, VA)
    tree_sum(FU, 16); rnd(KEEP0, FU)
    a(f"v_add_u32 v{VA}, {8*WS + 512}, v{VA}")
    gather16(FU, VA)
    tree_sum(FU, 16); rnd(KEEP1, FU)
    a(f"v_lshlrev_b32 v{WK}, 1, v{COL}\ns_lshl_b32 s5, s36, 6\nbuffer_load_ushort v{KEEP2}, v{WK}, {sr(R_X,4)}, s5 offen\ns_waitcnt vmcnt(0)\nv_lshlrev_b32 v{KEEP2}, 16, v{KEEP2}")
    a.label("L_mod_done")
    stamp(8, VST)
    a(f"s_cmp_lg_u32 s{WV}, 0\ns_cbranch_scc1 L_ml_done")
    lds_wait(C_ML, 8, WK, VCN, sleep=2)
    stamp(9, VST)
    a(f"v_lshlrev_b32 v{WK+2}, 3, v1\nv_add_u32 v{WK+3}, {L_MLW}, v{WK+2}\nds_read_b64 {vr(WK,2)}, v{WK+3}\ns_waitcnt lgkmcnt(0)")
    a(f"v_mov_b32 v{WK+4}, v{WK}")
    xreduce("v_max_f32", WK + 4, WK + 6, (8, 16, 32))
    a(f"v_sub_f32 v{WK}, v{WK}, v{WK+4}\nv_mul_f32 v{WK}, s33, v{WK}\nv_exp_f32 v{WK}, v{WK}\nv_mul_f32 v{WK+5}, v{WK}, v{WK+1}")
    xreduce("v_add_f32", WK + 5, WK + 6, (8, 16, 32))
    a(f"s_add_u32 s5, s{SMY}, {MLP}\ns_mov_b64 exec, 0xff\nbuffer_store_dwordx2 {vr(WK+4,2)}, v{WK+2}, {sr(R_WS,4)}, s5 offen sc1\ns_mov_b64 exec, -1")
    a(f"v_lshrrev_b32 v{WK}, 3, v1\nv_lshlrev_b32 v{WK}, 2, v{WK}\ns_and_b32 s5, s2, 3\nv_add_u32 v{WK}, s5, v{WK}\ns_mov_b32 s6, {WS}\nv_mul_lo_u32 v{VA}, v{WK}, s6")
    a(f"v_and_b32 v{WK}, 7, v1\nv_lshl_add_u32 v{VA}, v{WK}, 3, v{VA}\nv_add_u32 v{VA}, {MLP}, v{VA}")
    a("s_waitcnt vmcnt(0)")
    gather([(FU + 2 * i, 2, VA, i * 32 * WS, None) for i in range(8)], WK)
    a(f"v_max3_f32 v{WK+4}, v{FU}, v{FU+2}, v{FU+4}\nv_max3_f32 v{WK+4}, v{WK+4}, v{FU+6}, v{FU+8}\nv_max3_f32 v{WK+4}, v{WK+4}, v{FU+10}, v{FU+12}\nv_max_f32 v{WK+4}, v{WK+4}, v{FU+14}")
    xreduce("v_max_f32", WK + 4, WK + 6, (8, 16, 32))
    for i in range(8):
        a(f"v_sub_f32 v{FU+2*i}, v{FU+2*i}, v{WK+4}\nv_mul_f32 v{FU+2*i}, s33, v{FU+2*i}\nv_exp_f32 v{FU+2*i}, v{FU+2*i}")
    for i in range(8): a(f"v_mul_f32 v{FU+2*i}, v{FU+2*i}, v{FU+2*i+1}")
    tree_sum(FU, 8, 2)
    xreduce("v_add_f32", FU, WK + 6, (8, 16, 32))
    a(f"v_rcp_f32 v{WK+5}, v{FU}")
    a(f"v_add_u32 v{WK+3}, {L_MLF}, v{WK+2}\ns_mov_b64 exec, 0xff\nds_write_b64 v{WK+3}, {vr(WK+4,2)}\ns_waitcnt lgkmcnt(0)")
    lds_signal(C_MLD, VCN, VONE)
    stamp(10, VST)
    a.label("L_ml_done")
    lds_wait(C_UP, 8, WK, VCN, sleep=4)
    tr_read(FU, VTR, L_UP, 2, 4, 256)
    TA, TB, TC_, TD = 14, 15, WK + 4, WK + 5
    a(f"v_lshrrev_b32 v{WK}, 4, v1\nv_and_b32 v{WK+1}, 15, v1\nv_lshlrev_b32 v{VA}, 10, v{WK}\nv_lshl_add_u32 v{VA}, v{WK+1}, 4, v{VA}")
    a(f"s_lshl_b32 s5, s{WV}, 8\ns_add_u32 s5, s5, {L_OS}\nv_add_u32 v{VA}, s5, v{VA}")
    a(f"v_and_b32 v{TA}, 7, v1\nv_lshlrev_b32 v{TA}, 9, v{TA}\nv_lshl_add_u32 v{TA}, v{WK}, 5, v{TA}\nv_and_b32 v{WK+2}, 8, v1\nv_lshl_add_u32 v{TA}, v{WK+2}, 1, v{TA}")
    a(f"s_lshl_b32 s37, s{WV}, 7\ns_add_u32 s37, s37, s{SMY}")
    a(f"s_lshr_b32 s5, s2, 6\nv_lshrrev_b32 v{WK+2}, 4, v0\nv_lshlrev_b32 v{WK+2}, 2, v{WK+2}\nv_add_u32 v{WK+2}, s5, v{WK+2}\ns_mov_b32 s6, {WS}\nv_mul_lo_u32 v{TB}, v{WK+2}, s6")
    a(f"s_lshr_b32 s5, s2, 5\ns_and_b32 s5, s5, 1\ns_lshl_b32 s5, s5, 3\ns_add_u32 s5, s5, s30\ns_lshl_b32 s5, s5, 8\nv_lshl_add_u32 v{TB}, v{WK+1}, 4, v{TB}\nv_add_u32 v{TB}, s5, v{TB}")
    a(f"v_mov_b32 v{WK+6}, 1.0\nv_lshlrev_b32 v{WK+7}, 4, v1\nv_add_u32 v{WK+7}, {L_AX}, v{WK+7}\ns_lshl_b32 s5, s{WV}, 10\nv_add_u32 v{WK+3}, s5, v{WK+7}")
    a("s_waitcnt lgkmcnt(0)")
    stamp(11, VST)
    a("s_barrier")
    stamp(12, VST)
    for s in range(8): a(f"ds_read_b128 {vr(FD+4*s,4)}, v{VA} offset:{s*4096}")
    a("s_waitcnt lgkmcnt(0)")
    for e in range(4): tree_sum(FD + e, 8, 4)
    a(f"buffer_store_dwordx4 {vr(FD,4)}, v{TA}, {sr(R_WS,4)}, s37 offen sc1\ns_waitcnt vmcnt(0)")
    stamp(13, VST)
    gather([(FD + 4 * i, 4, TB, i * 64 * WS, None) for i in range(4)], WK)
    stamp(14, VST)
    for e in range(4): tree_sum(FD + e, 4, 4)
    a(f"ds_write_b128 v{WK+3}, {vr(FD,4)}\ns_waitcnt lgkmcnt(0)\ns_barrier")
    for s in range(4): a(f"ds_read_b128 {vr(FD+4*s,4)}, v{WK+7} offset:{s*1024}")
    a("s_waitcnt lgkmcnt(0)")
    for e in range(4): tree_sum(FD + e, 4, 4)
    for e in range(4): a(f"v_mfma_f32_16x16x4_f32 {vr(FD+16+4*e,4)}, v{FD+e}, v{WK+6}, 0")
    for kk in range(2):
        for i in range(4):
            rho = 2 * kk + (i >> 1); e = 2 * (i & 1)
            a(f"v_cvt_pk_bf16_f32 v{ACT+4*kk+i}, v{FD+16+4*e+rho}, v{FD+16+4*(e+1)+rho}")
    gemv([FWO, FWO + 8, FWO + 16, FWO + 24], 2, ACT, FD)
    publish(FD, 4, YP)
    stamp(15, VST)
    a("s_cmp_ge_u32 s2, 224\ns_cbranch_scc1 L_reducer")
    a(f"v_lshrrev_b32 v{WK}, 3, v1\ns_mov_b32 s6, {WS}\nv_mul_lo_u32 v{TA}, v{WK}, s6\nv_and_b32 v{WK}, 7, v1\nv_lshl_add_u32 v{TA}, v{WK}, 4, v{TA}\nv_add_u32 v{TA}, {224*WS + X2P}, v{TA}")
    a(f"s_lshl_b32 s5, s30, 2\ns_add_u32 s5, s5, s{WV}\ns_mul_i32 s5, s5, {WS}\ns_add_u32 s5, s5, {224*WS + X2P}\nv_and_b32 v{WK}, 31, v1\nv_lshlrev_b32 v{TB}, 2, v{WK}\nv_add_u32 v{TB}, s5, v{TB}")
    a(f"v_add_u32 v{VA}, {L_DN}, v{VTR}")
    a("s_waitcnt vmcnt(0)")
    tr_read(FD, VA, 0, 2, 4, 256)
    a(f"s_and_b32 s5, s2, 0xf8\ns_mul_i32 s5, s5, {WS}\ns_lshl_b32 s6, s{WV}, 8\ns_add_u32 s5, s5, s6\ns_add_u32 s5, s5, {GUP}\nv_lshlrev_b32 v{VA}, 2, v1\nv_add_u32 v{VA}, s5, v{VA}")
    gather([(FWO + 4 * i, 4, TA, i * 8 * WS, None) for i in range(4)] + [(FWO + 16, 1, TB, 0, None)], WK)
    stamp(16, VST)
    ln_stats(FWO, WK + 1, WK + 2, WK + 3)
    ln_apply(FWO + 16, WK + 1, WK + 2)
    modulate(FWO + 16, KEEP0, KEEP1)
    vec_write(FWO + 16, L_H2V)
    a("s_barrier")
    act_read(L_H2V)
    gemv([FG, FG + 16, FU, FU + 16], 4, ACT, FWO)
    publish(FWO, 4, GUP)
    a("s_waitcnt vmcnt(0)")
    stamp(17, VST)
    gather([(FG + i, 1, VA, i * WS, None) for i in range(8)], WK)
    stamp(18, VST)
    tree_sum(FG, 8); rnd(FG, FG); split_pair(FG, FG + 1)
    k2 = -2.0 * 0.7978845608028654 * LOG2E
    a(f"v_mul_f32 v{FG+2}, v{FG}, v{FG}\nv_mul_f32 v{FG+2}, {f2u(0.044715):#x}, v{FG+2}\nv_fma_f32 v{FG+2}, v{FG+2}, v{FG}, v{FG}")
    a(f"v_mul_f32 v{FG+2}, {f2u(k2):#x}, v{FG+2}\nv_exp_f32 v{FG+2}, v{FG+2}\nv_add_f32 v{FG+2}, 1.0, v{FG+2}\nv_rcp_f32 v{FG+2}, v{FG+2}\nv_mul_f32 v{FG}, v{FG}, v{FG+2}")
    rnd(FG, FG); a(f"v_mul_f32 v{FG}, v{FG}, v{FG+1}"); rnd(FG, FG)
    vec_write(FG, L_HHV)
    a("s_barrier")
    act_read(L_HHV)
    gemv([FD, FD + 16], 4, ACT, DACC)
    publish(DACC, 2, ZP)
    stamp(19, VST)
    a("s_branch L_fin")
    a.label("L_reducer")
    a(f"s_cmp_lg_u32 s{WV}, 0\ns_cbranch_scc1 L_fin")
    a(f"v_lshrrev_b32 v{WK}, 3, v1\ns_mov_b32 s6, {WS}\nv_mul_lo_u32 v{TA}, v{WK}, s6\nv_lshlrev_b32 v{TB}, 3, v{TA}\nv_and_b32 v{WK}, 7, v1\nv_lshlrev_b32 v{WK}, 4, v{WK}")
    a(f"s_lshr_b32 s5, s36, 3\ns_mul_i32 s5, s5, {8*WS}\ns_and_b32 s6, s36, 7\ns_lshl_b32 s6, s6, 7\ns_add_u32 s5, s5, s6\ns_add_u32 s5, s5, {YP}\nv_add3_u32 v{TA}, v{TA}, v{WK}, s5")
    a(f"s_lshr_b32 s5, s36, 2\ns_mul_i32 s5, s5, {WS}\ns_and_b32 s6, s36, 3\ns_lshl_b32 s6, s6, 7\ns_add_u32 s5, s5, s6\ns_add_u32 s5, s5, {ZP}\nv_add3_u32 v{TB}, v{TB}, v{WK}, s5")
    a(f"v_lshlrev_b32 v{VA}, 2, v{COL}\nv_lshlrev_b32 v{VB}, 1, v{COL}")
    for i in range(4): a(f"v_mov_b32 v{FU+12+i}, 0")
    a("s_waitcnt vmcnt(0)")
    def col_reduce(b):
        a(f"v_permlane32_swap_b32 v{b}, v{b+1}\nv_permlane32_swap_b32 v{b+2}, v{b+3}\nv_add_f32 v{b}, v{b}, v{b+1}\nv_add_f32 v{b+2}, v{b+2}, v{b+3}")
        a(f"v_permlane16_swap_b32 v{b}, v{b+2}\nv_add_f32 v{b}, v{b}, v{b+2}\nv_add_f32_dpp v{b}, v{b}, v{b} row_ror:8 row_mask:0xf bank_mask:0xf")
    gather([(FG + 4 * i, 4, TA, i * 32 * WS, None) for i in range(8)], WK)
    stamp(16, VST)
    for e in range(4): tree_sum(FG + e, 8, 4)
    col_reduce(FG)
    rnd(FG, FG); a(f"v_mul_f32 v{FG}, v{FG}, v{KEEP0}"); rnd(FG, FG); a(f"v_add_f32 v{KEEP2}, v{KEEP2}, v{FG}"); rnd(KEEP2, KEEP2)
    a(f"s_add_u32 s5, s{SMY}, {X2P}\ns_mov_b32 exec_lo, 0x00ff00ff\ns_mov_b32 exec_hi, 0x00ff00ff\nbuffer_store_dword v{KEEP2}, v{VA}, {sr(R_WS,4)}, s5 offen sc1\ns_mov_b64 exec, -1")
    stamp(17, VST)
    gather([(FU + 4 * i, 4, TB, i * 64 * WS, None if i < 3 else 0xffffffff) for i in range(4)], WK, sleep=1)
    stamp(18, VST)
    for e in range(4): tree_sum(FU + e, 4, 4)
    col_reduce(FU)
    rnd(FU, FU); a(f"v_mul_f32 v{FU}, v{FU}, v{KEEP1}"); rnd(FU, FU); a(f"v_add_f32 v{FU}, v{KEEP2}, v{FU}"); rnd(FU, FU)
    a(f"s_lshl_b32 s5, s36, 6\ns_mov_b32 exec_lo, 0x00ff00ff\ns_mov_b32 exec_hi, 0x00ff00ff\nbuffer_store_short_d16_hi v{FU}, v{VB}, {sr(R_OUT,4)}, s5 offen\ns_mov_b64 exec, -1")
    stamp(19, VST)
    a.label("L_fin")
    if cfg.stamps:
        a(f"s_lshl_b32 s5, s2, 11\ns_lshl_b32 s6, s3, 7\ns_add_u32 s5, s5, s6\ns_add_u32 s5, s5, 0x8000000\nv_lshlrev_b32 v2, 2, v1")
        a(f"s_mov_b32 exec_lo, -1\ns_mov_b32 exec_hi, 0\nbuffer_store_dword v{VST}, v2, {sr(R_WS,4)}, s5 offen")
    a.label("L_end")
    body = "\n".join(hazard.run(a.l)) + "\n"
    return wrap(body, 256, 768, LDS_BYTES, 168, extra_desc="  .amdhsa_float_denorm_mode_32 3\n")

if __name__ == "__main__":
    out = sys.argv[1]
    kw = {}
    for x in sys.argv[2:]:
        k, v = x.split("="); kw[k] = int(v)
    open(out, "w").write(gen(Cfg(**kw)))
```

```python
import sys, os, struct
from asmgen import *
import hazard

def f2u(x): return struct.unpack("<I", struct.pack("<f", x))[0]
LOG2E = 1.4426950408889634

class Cfg:
    D1 = 3
    D2 = 3
    stamps = False
    ws_stride = 10368
    spin_budget = 1 << 18
    pre1 = "crit,wq,mod1,mod2"
    pre2 = "wo"
    mid = ""
    late = "gate,up,dn"
    D3 = 2
    DV = 4
    kvl = "X"
    sprio = 0
    dbg_skip = ""
    p1 = 11
    p2 = 27
    p3 = 16
    nl2 = 6
    ackA = 0
    DL = 0
    nDL = 0
    nl0 = 2
    D4 = 63
    sel = 1
    ackE = 1
    mred = 0
    rank = ""
    rk0 = 4
    rkw = 0
    DVL = 8
    rkl = 3
    nl3 = 4
    b2n = 4
    dnlate = 0
    psleep = 0
    def __init__(self, **kw):
        for k, v in kw.items(): setattr(self, k, v)

OP, MODP, QP, YP, GUP, ZP, MLP, X2P = 0, 4096, 5632, 6144, 7168, 8192, 8704, 8832
CLEAR_BYTES = 9216
HP = 9216
TKT = 8960
EPOCH = 4 << 20
L_MOD, L_WQ, L_UP, L_DN, L_WO, L_GATE, L_MISC = 0, 0xC000, 0, 0x8000, 0x14000, 0x1C000, 0x24000
L_OS = L_WO
L_CNT = L_MISC
C_CRIT, C_WQ, C_MOD1, C_MOD2, C_WO, C_GATE, C_UP, C_DN, C_Q, C_H, C_ML, C_MLD, C_CLR, C_AX, C_P1, C_P2, C_P3, C_Y, C_RK, C_GU, C_B2 = range(21)
L_QV = L_MISC + 0x100
L_HV = L_MISC + 0x900
L_H2V = L_MISC + 0xA00
L_HHV = L_MISC + 0xB00
L_SIL = L_MISC + 0xC00
L_MLW = L_MISC + 0xE00
L_MLF = L_MISC + 0x1000
L_OV = L_MISC + 0x1400
LDS_BYTES = 160 * 1024

def is_reducer(w): return w >= 224
def vr(a, n=1): return f"v{a}" if n == 1 else f"v[{a}:{a+n-1}]"
def sr(a, n=1): return f"s{a}" if n == 1 else f"s[{a}:{a+n-1}]"

def gen(cfg):
    a = Asm()
    WS = cfg.ws_stride
    W, WAVE, BUD = 2, 3, 4
    def srd_load(r, karg_off): a(f"s_load_dwordx2 {sr(r,2)}, s[0:1], {karg_off}")
    def srd_fin(r, nbytes): a(f"s_mov_b32 s{r+2}, {nbytes}\ns_mov_b32 s{r+3}, 0x20000")
    def rnd(d, s): a(f"v_cvt_pk_bf16_f32 v{d}, 0, v{s}")
    nst = [0]
    def stamp(idx, vreg):
        if not cfg.stamps: return
        a(f"s_memrealtime s[98:99]\ns_waitcnt lgkmcnt(0)\nv_writelane_b32 v{vreg}, s98, {idx}")
    def budget_check():
        a(f"s_sub_u32 s{BUD}, s{BUD}, 1\ns_cbranch_scc1 L_end")
    def lds_wait(cnt, target, vtmp, vaddr, sleep=1):
        L = a.newlabel("L_lw"); Ld = a.newlabel("L_lwd")
        a.label(L)
        a(f"ds_read_b32 v{vtmp}, v{vaddr} offset:{cnt*4}\ns_waitcnt lgkmcnt(0)\nv_readfirstlane_b32 s5, v{vtmp}")
        a(f"s_cmp_ge_u32 s5, {target}\ns_cbranch_scc1 {Ld}")
        if sleep: a(f"s_sleep {sleep}")
        budget_check()
        a(f"s_branch {L}")
        a.label(Ld)
    def lds_signal(cnt, vaddr, vone):
        a(f"s_mov_b64 exec, 1\nds_add_u32 v{vaddr}, v{vone} offset:{cnt*4}\ns_mov_b64 exec, -1")
    def xreduce(op, v, t, steps):
        for s in steps:
            if s in (1, 2, 4, 8): a(f"{op}_dpp v{v}, v{v}, v{v} row_ror:{s} row_mask:0xf bank_mask:0xf")
            elif s == 16: a(f"v_mov_b32 v{t}, v{v}\nv_permlane16_swap_b32 v{v}, v{t}\n{op} v{v}, v{v}, v{t}")
            elif s == 32: a(f"v_mov_b32 v{t}, v{v}\nv_permlane32_swap_b32 v{v}, v{t}\n{op} v{v}, v{v}, v{t}")

    a("s_cmp_ge_u32 s2, 256\ns_cbranch_scc1 L_end")
    a("v_lshrrev_b32 v2, 6, v0\nv_and_b32 v1, 63, v0")
    a(f"v_readfirstlane_b32 s{WAVE}, v2")
    a(f"s_mov_b32 s{BUD}, {cfg.spin_budget}")
    a(f"s_cmp_ge_u32 s{WAVE}, 8\ns_cbranch_scc1 L_cwave")

    R_MOD, R_WQ, R_WO, R_G, R_U, R_DN, R_K, R_V = 8, 12, 16, 20, 24, 28, 32, 36
    R_WSS = 40
    srd_load(R_MOD, 80); srd_load(R_DN, 64)
    a("s_load_dwordx16 s[68:83], s[0:1], 0")
    if cfg.stamps: srd_load(R_WSS, 104)
    VK, VV, VGU, VDN, VCN, VONE = 2, 3, 4, 5, 6, 7
    Q0, T0, DT, KV = 8, 16, 32, 40
    VMOD, VWQ, VWO, VST = 16, 17, 18, 0
    if cfg.stamps:
        a("s_memrealtime s[96:97]")
    a("v_and_b32 v32, 15, v1\nv_lshrrev_b32 v33, 4, v1\nv_lshlrev_b32 v34, 1, v33\nv_xor_b32 v34, v34, v32\nv_lshlrev_b32 v34, 4, v34")
    a(f"v_mul_u32_u24 v{VMOD}, 12288, v33\nv_add_u32 v{VMOD}, v{VMOD}, v34\ns_and_b32 s5, s3, 1\ns_lshl_b32 s5, s5, 7\nv_xor_b32 v{VMOD}, s5, v{VMOD}")
    a(f"v_lshl_add_u32 v{VWQ}, v33, 13, v34")
    a(f"v_mul_u32_u24 v{VGU}, 7168, v33\nv_add_u32 v{VGU}, v{VGU}, v34")
    a(f"v_lshl_add_u32 v{VDN}, v33, 11, v34")
    a(f"v_lshrrev_b32 v35, 5, v1\nv_and_b32 v36, 31, v1\nv_lshlrev_b32 v36, 4, v36\nv_lshl_add_u32 v{VWO}, v35, 11, v36")
    a(f"v_lshlrev_b32 v{VV}, 4, v1")
    pi_sh, wave_sh, chunk = {"B": (13, 15, lambda b, n: b * 16384 + n * 1024), "X": (16, 10, lambda b, n: (16 * b + n) * 8192),
                             "Y": (13, 10, lambda b, n: (8 * b + n) * 16384), "Z": (10, 11, lambda b, n: (8 * b + n) * 16384)}[cfg.kvl]
    a(f"v_and_b32 v35, 2, v32\nv_lshlrev_b32 v35, {pi_sh - 1}, v35\nv_lshrrev_b32 v36, 2, v32\nv_lshl_add_u32 v35, v36, 8, v35")
    a(f"v_and_b32 v36, 1, v32\nv_lshl_add_u32 v35, v36, 6, v35\nv_lshl_add_u32 v{VK}, v33, 4, v35")
    a(f"v_mov_b32 v{VCN}, {L_CNT}\nv_mov_b32 v{VONE}, 1")
    SB_MOD, SB_WQ, SB_WO, SB_GU, SB_DN, SB_KV, SO, SL = 44, 45, 46, 47, 48, 49, 50, 51
    a(f"s_lshr_b32 s5, s2, 4\ns_lshl_b32 s5, s5, 6\ns_lshl_b32 s6, s3, 3\ns_add_u32 s5, s5, s6\ns_mul_i32 s5, s5, 12288")
    a(f"s_and_b32 s6, s2, 15\ns_lshl_b32 s6, s6, 8\ns_add_u32 s{SB_MOD}, s5, s6")
    a(f"s_lshl_b32 s{SL}, s3, 11")
    a("s_and_b32 s52, s2, 7\ns_lshr_b32 s53, s2, 3")
    a(f"s_lshl_b32 s5, s52, 7\ns_lshl_b32 s6, s3, 4\ns_add_u32 s54, s5, s6")
    a(f"s_lshl_b32 s5, s54, 13\ns_lshl_b32 s55, s53, 8\ns_add_u32 s{SB_WQ}, s5, s55")
    a(f"s_mul_i32 s5, s54, 7168\ns_add_u32 s{SB_GU}, s5, s55")
    a(f"s_lshl_b32 s5, s53, 7\ns_add_u32 s5, s5, s6\ns_lshl_b32 s5, s5, 11\ns_lshl_b32 s7, s52, 8\ns_add_u32 s{SB_DN}, s5, s7")
    a(f"s_lshr_b32 s5, s2, 5\ns_lshl_b32 s5, s5, 3\ns_add_u32 s5, s5, s52\ns_lshl_b32 s5, s5, 6\ns_lshl_b32 s6, s3, 3\ns_add_u32 s5, s5, s6\ns_lshl_b32 s5, s5, 11")
    a(f"s_and_b32 s6, s53, 3\ns_lshl_b32 s6, s6, 9\ns_add_u32 s{SB_WO}, s5, s6")
    a(f"s_and_b32 s5, s2, 3\ns_lshl_b32 s5, s5, 24\ns_lshr_b32 s6, s2, 2\ns_lshl_b32 s6, s6, 18\ns_add_u32 s5, s5, s6\ns_lshl_b32 s6, s3, {wave_sh}\ns_add_u32 s{SB_KV}, s5, s6")
    a(f"s_lshl_b32 s56, s3, 12")
    srd_fin(R_MOD, 12582912); srd_fin(R_WQ, 8388608); srd_fin(R_WO, 8388608)
    srd_fin(R_K, 67108864); srd_fin(R_V, 67108864)
    a("s_mov_b32 s57, 7340032\ns_cmp_lt_u32 s2, 224\ns_cselect_b32 s57, s57, 0")
    for r in (R_G, R_U, R_DN): a(f"s_mov_b32 s{r+2}, s57\ns_mov_b32 s{r+3}, 0x20000")
    if cfg.stamps: srd_fin(R_WSS, 0x10000000)
    a("s_mov_b32 s58, 0x05040100\ns_mov_b32 s59, 0x07060302")
    a("s_waitcnt lgkmcnt(0)")
    for r, off in ((R_WQ, 24), (R_WO, 32), (R_G, 48), (R_U, 56), (R_K, 8), (R_V, 16)):
        a(f"s_mov_b64 {sr(r,2)}, {sr(68 + off//4, 2)}")
    if cfg.stamps: a(f"v_mov_b32 v{VST}, 0\nv_writelane_b32 v{VST}, s96, 0")

    if cfg.sprio:
        a(f"s_cmp_lt_u32 s3, 4\ns_cbranch_scc1 L_noprio\ns_setprio {cfg.sprio}")
        a.label("L_noprio")
    issued = []; done = [0]; tiles = {}; signalled = set(); barrier_done = [False]
    def after_wait():
        for name, (cnt, ids) in tiles.items():
            if name not in signalled and len(ids) == TN[name] and max(ids) < done[0]:
                if not barrier_done[0]: a("s_barrier"); barrier_done[0] = True
                lds_signal(cnt, VCN, VONE); signalled.add(name)
    def wait_n(n):
        if len(issued) - done[0] > n:
            if not barrier_done[0]: a("s_barrier"); barrier_done[0] = True
            a(f"s_waitcnt vmcnt({n})"); done[0] = len(issued) - n; after_wait()
    def wait_id(i): wait_n(len(issued) - 1 - i)
    TN = dict(crit=2, wq=4, mod1=2, mod2=2, wo=4, gate=4, up=4, dn=4)
    TC = dict(crit=C_CRIT, wq=C_WQ, mod1=C_MOD1, mod2=C_MOD2, wo=C_WO, gate=C_GATE, up=C_UP, dn=C_DN)
    def dma(name, i, D):
        srd, voff, sb, step, lbase, lsreg = {
            "crit": (R_MOD, VMOD, SB_MOD, 4 * 12288, L_MOD, SL), "mod1": (R_MOD, VMOD, SB_MOD, 4 * 12288, L_MOD + 16384, SL),
            "mod2": (R_MOD, VMOD, SB_MOD, 4 * 12288, L_MOD + 32768, SL), "wq": (R_WQ, VWQ, SB_WQ, 4 * 8192, L_WQ, 56),
            "wo": (R_WO, VWO, SB_WO, 2 * 2048, L_WO, 56), "gate": (R_G, VGU, SB_GU, 4 * 7168, L_GATE, 56),
            "up": (R_U, VGU, SB_GU, 4 * 7168, L_UP, 56), "dn": (R_DN, VDN, SB_DN, 4 * 2048, L_DN, 56)}[name]
        extra = {"mod1": 4096, "mod2": 8192}.get(name, 0)
        a(f"s_add_u32 s{SO}, s{sb}, {i*step + extra}\ns_add_u32 m0, s{lsreg}, {lbase + i*1024}")
        wait_n(D - 1)
        a(f"buffer_load_dwordx4 v{voff}, {sr(srd,4)}, s{SO} offen nt lds")
        if name in ("wq", "gate", "up", "dn") and i in (1, 3): a(f"v_xor_b32 v{voff}, 0x80, v{voff}")
        tiles.setdefault(name, (TC[name], []))[1].append(len(issued)); issued.append(name)
    kid = {}; vid = {}
    cur_so = [None]
    def kvload(srd, voff, off, dst, D):
        so = off & ~0xfff
        if cur_so[0] != so:
            a(f"s_add_u32 s60, s{SB_KV}, {so}"); cur_so[0] = so
        if D: wait_n(D - 1)
        a(f"buffer_load_dwordx4 {vr(dst,4)}, v{voff}, {sr(srd,4)}, s60 offen offset:{off & 0xfff} nt")
        issued.append("kv"); return len(issued) - 1
    def kload(n, u, D): kid[(n, u)] = kvload(R_K, VK, chunk(n >> 3, n & 7) + u * 128, KV + 8 * n + 4 * u, D)
    def vslot(i): return KV + 4 * (i % 24)
    def vload(i, D): vid[i] = kvload(R_V, VV, chunk(i >> 4, i & 7) + (((i >> 3) & 1) << pi_sh), vslot(i), D)

    D1, D2 = cfg.D1, cfg.D2
    lst = lambda x: [t for t in x.split(",") if t]
    def pre_q(Df):
        first = True
        for name in lst(cfg.pre1):
            for i in range(TN[name]):
                dma(name, i, Df(len(issued)))
                if len(issued) == 1: stamp(9, VST)
                if done[0] == 1 and first: stamp(10, VST); first = False
        stamp(11, VST)
        for n in range(16):
            for u in range(2):
                kload(n, u, Df(len(issued)))
                if 2 * n + u == cfg.p1: lds_signal(C_P1, VCN, VONE)
                if 2 * n + u == cfg.p2: lds_signal(C_P2, VCN, VONE)
            if n % 4 == 3: stamp(12 + n // 4, VST)
        for name in lst(cfg.pre2):
            for i in range(TN[name]): dma(name, i, Df(len(issued)))
    if cfg.nDL:
        a("s_bitcmp1_b32 s2, 2\ns_cbranch_scc0 L_early")
        pre_q(lambda i: cfg.DL if i < cfg.nDL else D1)
        st1 = (len(issued), done[0], set(signalled))
        a("s_branch L_prejoin")
        a.label("L_early")
        issued.clear(); done[0] = 0; tiles.clear(); signalled.clear(); barrier_done[0] = False; cur_so[0] = None
        pre_q(lambda i: D1)
        assert st1[0] == len(issued) and st1[2] == signalled
        done[0] = min(done[0], st1[1])
        a.label("L_prejoin")
    else:
        pre_q(lambda i: D1)
    stamp(1, VST)
    lds_wait(C_Q, 4, DT, VCN)
    stamp(2, VST)
    a(f"v_and_b32 v{DT}, 7, v1\nv_lshlrev_b32 v{DT}, 8, v{DT}\nv_and_b32 v{DT+1}, 8, v1\nv_lshl_add_u32 v{DT}, v{DT+1}, 3, v{DT}")
    a(f"v_lshrrev_b32 v{DT+1}, 4, v1\nv_lshl_add_u32 v{DT}, v{DT+1}, 4, v{DT}\nv_add_u32 v{DT}, {L_QV}, v{DT}")
    a(f"ds_read_b128 {vr(Q0,4)}, v{DT}\nds_read_b128 {vr(Q0+4,4)}, v{DT} offset:128\ns_waitcnt lgkmcnt(0)")
    a(f"s_mov_b32 s61, {f2u(128 ** -0.5):#x}\ns_mov_b32 s62, {f2u(LOG2E):#x}")
    nv = 0
    def fold(n):
        d = DT + 4 * (n & 1)
        a(f"v_add_f32_dpp v{T0+n}, v{d+1}, v{d} row_ror:8 row_mask:0xf bank_mask:0x3")
        a(f"v_add_f32_dpp v{T0+n}, v{d+2}, v{d+3} row_ror:8 row_mask:0xf bank_mask:0xc")
    def post(n):
        rnd(T0 + n, T0 + n); a(f"v_mul_f32 v{T0+n}, s61, v{T0+n}"); rnd(T0 + n, T0 + n)
    for n in range(16):
        wait_id(kid[(n, 1)])
        d = DT + 4 * (n & 1)
        a(f"v_mfma_f32_16x16x32_bf16 {vr(d,4)}, {vr(KV+8*n,4)}, {vr(Q0,4)}, 0")
        a(f"v_mfma_f32_16x16x32_bf16 {vr(d,4)}, {vr(KV+8*n+4,4)}, {vr(Q0+4,4)}, {vr(d,4)}")
        if n >= 1 and nv < D2 and n % 2 == 1:
            vload(nv, 0); nv += 1
        if n >= 2: post(n - 2)
        if n >= 1: fold(n - 1)
    fold(15); post(14); post(15)
    M_, L_, X_ = DT, DT + 1, DT + 2
    a(f"v_max3_f32 v{M_}, v{T0}, v{T0+1}, v{T0+2}")
    for i in range(3, 15, 2): a(f"v_max3_f32 v{M_}, v{M_}, v{T0+i}, v{T0+i+1}")
    a(f"v_max_f32 v{M_}, v{M_}, v{T0+15}")
    xreduce("v_max_f32", M_, X_, (8, 16, 32))
    for i in range(16):
        e = DT + 4 + (i & 3)
        a(f"v_sub_f32 v{e}, v{T0+i}, v{M_}\nv_mul_f32 v{e}, s62, v{e}\nv_exp_f32 v{e}, v{e}")
        if i >= 1:
            p = DT + 4 + ((i - 1) & 3)
            a(f"v_mov_b32 v{L_}, v{p}" if i == 1 else f"v_add_f32 v{L_}, v{L_}, v{p}")
    a(f"v_add_f32 v{L_}, v{L_}, v{DT+7}")
    xreduce("v_add_f32", L_, X_, (8, 16, 32))
    a(f"s_lshl_b32 s5, s3, 6\ns_add_u32 s5, s5, {L_MLW}\nv_lshlrev_b32 v{X_}, 3, v1\nv_add_u32 v{X_}, s5, v{X_}")
    a(f"s_mov_b64 exec, 0xff\nds_write_b64 v{X_}, {vr(M_,2)}\ns_waitcnt lgkmcnt(0)")
    if cfg.rank:
        a(f"s_mov_b64 exec, 1\nds_add_rtn_u32 v{X_}, v{VCN}, v{VONE} offset:{C_ML*4}\ns_mov_b64 exec, -1\ns_waitcnt lgkmcnt(0)\nv_readfirstlane_b32 s63, v{X_}")
    else:
        lds_signal(C_ML, VCN, VONE)
    stamp(3, VST)
    def vrun(lo, hi, D):
        for i in range(lo, hi):
            vload(i, D)
            if i == cfg.p3: lds_signal(C_P3, VCN, VONE)
    if not cfg.rank:
        vrun(nv, 24, D2)
    else:
        depths = [int(x) for x in cfg.rank.split(",")]
        vrun(nv, cfg.rk0, D2)
        for name in lst(cfg.pre1) + lst(cfg.pre2): wait_id(max(tiles[name][1]))
        a(f"ds_read_b32 v{X_}, v{VCN} offset:{C_RK*4}\ns_waitcnt lgkmcnt(0)\nv_readfirstlane_b32 s5, v{X_}")
        a(f"s_cmp_eq_u32 s5, 0\ns_cselect_b32 s5, 2, s5\ns_sub_u32 s5, s5, 1")
        if cfg.rkw: a(f"s_lshr_b32 s6, s63, 2\ns_mul_i32 s6, s6, {cfg.rkw}\ns_add_u32 s5, s5, s6")
        a(f"s_min_u32 s5, s5, {len(depths)-1}")
        a(f"s_cmp_ge_u32 s5, {cfg.rkl}\ns_cselect_b64 vcc, -1, 0")
        if cfg.stamps: a(f"s_add_u32 s6, s5, 1\nv_writelane_b32 v{VST}, s6, 20")
        base = (list(issued), done[0], cur_so[0])
        mind = None
        for k, D in enumerate(depths):
            if k < len(depths) - 1: a(f"s_cmp_lg_u32 s5, {k}\ns_cbranch_scc1 L_rk{k+1}")
            issued[:] = base[0]; done[0] = base[1]; cur_so[0] = None
            vrun(cfg.rk0, 24, D)
            mind = done[0] if mind is None else min(mind, done[0])
            if k < len(depths) - 1:
                a("s_branch L_rkj"); a.label(f"L_rk{k+1}")
        a.label("L_rkj")
        done[0] = mind
    nv = 24
    for name in lst(cfg.mid):
        for i in range(TN[name]): dma(name, i, D2)
    for name in lst(cfg.pre1) + lst(cfg.pre2):
        wait_id(max(tiles[name][1]))
    stamp(4, VST)
    lds_wait(C_MLD, 4, DT, VCN)
    stamp(5, VST)
    a(f"v_and_b32 v{X_}, 7, v1\nv_lshlrev_b32 v{X_}, 3, v{X_}\nv_add_u32 v{X_}, {L_MLF}, v{X_}\nds_read_b64 {vr(M_,2)}, v{X_}\ns_waitcnt lgkmcnt(0)")
    for i in range(16):
        a(f"v_sub_f32 v{T0+i}, v{T0+i}, v{M_}\nv_mul_f32 v{T0+i}, s62, v{T0+i}\nv_exp_f32 v{T0+i}, v{T0+i}")
    for i in range(16): a(f"v_mul_f32 v{T0+i}, v{T0+i}, v{L_}")
    for i in range(8): a(f"v_cvt_pk_bf16_f32 v{Q0+i}, v{T0+2*i}, v{T0+2*i+1}")
    a("s_mov_b32 s64, 0x00ff00ff\ns_mov_b32 s65, 0x00ff00ff\ns_mov_b32 s66, 0xff00ff00\ns_mov_b32 s67, 0xff00ff00")
    ACC = KV + 96
    PL = lambda G: T0 + 4 * G
    PH = lambda G: KV + 112 + 4 * G
    for G in range(4):
        b, pi = G >> 1, G & 1
        for i in range(4):
            a(f"v_cndmask_b32 v{(PH if pi else PL)(G)+i}, 0, v{Q0+4*b+i}, s[{64+2*pi}:{65+2*pi}]")
        for i in range(4):
            a(f"v_mov_b32_dpp v{(PL if pi else PH)(G)+i}, v{(PH if pi else PL)(G)+i} row_ror:8 row_mask:0xf bank_mask:0xf")
    stage = [DT, DT + 4, Q0, Q0 + 4]
    sidx = 0
    def perm(dst, G, p, j):
        lo = vslot(8 * G + 2 * p) + (j >> 1); hi = vslot(8 * G + 2 * p + 1) + (j >> 1)
        a(f"v_perm_b32 v{dst}, v{hi}, v{lo}, s{58 + (j & 1)}")
    def pv(G, j, st):
        c = "0" if (G == 0 and j < 4) else vr(ACC + 4 * (j & 3), 4)
        a(f"v_mfma_f32_16x16x32_bf16 {vr(ACC+4*(j&3),4)}, {vr(st,4)}, {vr((PH if j >= 4 else PL)(G),4)}, {c}")
    for G in range(3):
        wait_id(vid[8 * G + 7])
        for j in range(8):
            st = stage[sidx & 3]; sidx += 1
            for p in range(4): perm(st + p, G, p, j)
            pv(G, j, st)
            if G in (1, 2) and j % 2 == 0 and nv < 32:
                if cfg.rank:
                    sk = a.newlabel("L_dv")
                    a(f"s_cbranch_vccnz {sk}\ns_waitcnt vmcnt({cfg.DV - 1})")
                    a.label(sk)
                    vload(nv, cfg.DVL)
                else: vload(nv, cfg.DV or D2)
                nv += 1
                if nv == 32:
                    lateq = [(name, i) for name in lst(cfg.late) for i in range(TN[name])]
                    for name in lst(cfg.late): signalled.add(name)
                    for _ in range(min(cfg.nl0, max(0, len(lateq) - cfg.nl2))):
                        name, i = lateq.pop(0); dma(name, i, cfg.DV or D2)
    a(f"s_add_u32 s5, s56, {L_OS}\nv_add_u32 v{VV}, s5, v{VV}")
    SG = KV + 32
    for p in range(3):
        wait_id(vid[24 + 2 * p + 1])
        for j in range(8): perm(SG + 4 * j + p, 3, p, j)
    wait_id(vid[31])
    order = [0, 4, 1, 5, 2, 6, 3, 7]
    for k in range(10):
        if k < 8: perm(SG + 4 * order[k] + 3, 3, 3, order[k])
        if k >= 2: pv(3, order[k - 2], SG + 4 * order[k - 2])
    assert all(n in signalled for n in tiles)
    stamp(6, VST)
    for e in range(4): a(f"ds_write_b128 v{VV}, {vr(ACC+4*e,4)} offset:{e*1024}")
    a("s_waitcnt lgkmcnt(0)")
    stamp(7, VST)
    a("s_barrier")
    n1 = max(0, len(lateq) - cfg.nl2)
    for name, i in lateq[:n1]: dma(name, i, cfg.D3)
    n2 = len(lateq) - cfg.nl3
    assert n2 >= n1 and all(nm == "dn" for nm, _ in lateq[n2:])
    if lateq[n1:n2]:
        lds_wait(C_Y, 4, DT, VCN)
        for name, i in lateq[n1:n2]: dma(name, i, cfg.D4)
    gu = [k for k, nm in enumerate(issued) if nm in ("gate", "up")]
    wait_id(max(gu))
    lds_signal(C_GU, VCN, VONE)
    stamp(21, VST)
    if lateq[n2:]:
        lds_wait(C_B2, cfg.b2n, DT, VCN, sleep=0)
        for name, i in lateq[n2:]: dma(name, i, 63)
    a("s_waitcnt vmcnt(0)")
    if cfg.stamps:
        stamp(8, VST)
        a(f"s_lshl_b32 s5, s2, 11\ns_lshl_b32 s6, s3, 7\ns_add_u32 s5, s5, s6\ns_add_u32 s5, s5, 0x8000000\nv_lshlrev_b32 v2, 2, v1")
        a(f"s_mov_b32 exec_lo, -1\ns_mov_b32 exec_hi, 0\nbuffer_store_dword v{VST}, v2, {sr(R_WSS,4)}, s5 offen")
    a("s_endpgm")

    a.label("L_cwave")
    a("s_setprio 3")
    R_WS, R_DBG, R_X, R_C, R_OUT = 8, 12, 16, 20, 24
    srd_load(R_WS, 104); srd_load(R_X, 0); srd_load(R_C, 72); srd_load(R_OUT, 88)
    if cfg.stamps: a("s_memrealtime s[96:97]")
    WV = 28
    a(f"s_sub_u32 s{WV}, s3, 8")
    TID = 0
    a("v_subrev_u32 v0, 512, v0")
    VCN, VONE, VTR, VPUB, VACT, VA, VB, KEEP0, KEEP1, KEEP2, VST = 2, 3, 4, 5, 6, 7, 8, 9, 10, 11, 12
    TAG = 14
    VCHK, VACTL = 0, VACT
    WK = 16
    FWO, FG, FU, FD = 40, 72, 104, 136
    a(f"v_mov_b32 v{VCN}, {L_CNT}\nv_mov_b32 v{VONE}, 1\nv_mov_b32 v{WK}, 0")
    a(f"v_lshlrev_b32 v{WK+1}, 2, v1\nv_add_u32 v{WK+1}, {L_CNT}, v{WK+1}\nds_write_b32 v{WK+1}, v{WK}")
    srd_fin(R_WS, 0x10000000); srd_fin(R_X, 2048); srd_fin(R_C, 2048); srd_fin(R_OUT, 2048)
    SMY = 29
    a(f"s_mul_i32 s{SMY}, s2, {WS}")
    a("s_and_b32 s30, s2, 7\ns_lshr_b32 s31, s2, 3")
    for i in range(4): a(f"v_mov_b32 v{WK+4+i}, -1")
    for base in (L_H2V, L_HHV, L_OV): a(f"ds_write_b32 v{WK+1}, v{WK+4} offset:{base - L_CNT}")
    a(f"v_lshlrev_b32 v{VA}, 4, v0")
    a("s_waitcnt lgkmcnt(0)\ns_barrier")
    if cfg.stamps: a(f"v_mov_b32 v{VST}, 0\nv_writelane_b32 v{VST}, s96, 0")
    a(f"s_mov_b32 s5, {EPOCH}\nbuffer_load_dword v{TAG}, off, {sr(R_WS,4)}, s5 sc1")
    if "clear" in cfg.dbg_skip: a("s_branch L_clr_done")
    a(f"buffer_store_dwordx4 {vr(WK+4,4)}, v{VA}, {sr(R_WS,4)}, s{SMY} offen sc1")
    a(f"s_add_u32 s5, s{SMY}, 4096\nbuffer_store_dwordx4 {vr(WK+4,4)}, v{VA}, {sr(R_WS,4)}, s5 offen sc1")
    a(f"s_cmp_lg_u32 s{WV}, 0\ns_cbranch_scc1 L_clr_done")
    a(f"s_add_u32 s5, s{SMY}, 8192\nbuffer_store_dwordx4 {vr(WK+4,4)}, v{VA}, {sr(R_WS,4)}, s5 offen sc1")
    a.label("L_clr_done")
    XR = FU
    a(f"s_lshr_b32 s5, s2, 4\ns_lshl_b32 s5, s5, 7\nv_lshlrev_b32 v{VB}, 1, v1")
    a(f"buffer_load_ushort v{WK}, v{VB}, {sr(R_C,4)}, s5 offen")
    a(f"v_lshlrev_b32 v{WK+1}, 5, v1")
    a(f"buffer_load_dwordx4 {vr(XR,4)}, v{WK+1}, {sr(R_X,4)}, 0 offen\nbuffer_load_dwordx4 {vr(XR+4,4)}, v{WK+1}, {sr(R_X,4)}, 0 offen offset:16")
    a(f"s_lshl_b32 s32, s30, 7\ns_lshl_b32 s6, s{WV}, 5\ns_add_u32 s32, s32, s6")
    a(f"v_and_b32 v{WK+2}, 31, v1\nv_lshlrev_b32 v{WK+3}, 1, v{WK+2}\ns_lshl_b32 s5, s32, 1")
    a(f"buffer_load_ushort v{KEEP0}, v{WK+3}, {sr(R_X,4)}, s5 offen")
    a(f"v_lshrrev_b32 v{WK+8}, 4, v1\nv_and_b32 v{WK+9}, 15, v1")
    a(f"v_lshlrev_b32 v{VPUB}, 6, v{WK+9}\nv_lshl_add_u32 v{VPUB}, v{WK+8}, 4, v{VPUB}")
    a(f"v_lshlrev_b32 v{VACT}, 4, v{WK+8}")
    a(f"v_bfe_u32 v{WK+10}, v1, 2, 2\nv_lshl_add_u32 v{WK+11}, v{WK+8}, 3, v{WK+10}\nv_lshlrev_b32 v{VTR}, 8, v{WK+11}")
    a(f"v_and_b32 v{WK+12}, 3, v1\nv_lshl_add_u32 v{VTR}, v{WK+12}, 3, v{VTR}")
    a(f"v_and_b32 v{WK+12}, 1, v{WK+8}\nv_lshl_add_u32 v{WK+12}, v{WK+12}, 2, v{WK+10}\ns_lshl_b32 s5, s{WV}, 1\nv_xor_b32 v{WK+12}, s5, v{WK+12}\nv_lshl_add_u32 v{VTR}, v{WK+12}, 5, v{VTR}")
    a(f"s_mov_b32 s33, {f2u(LOG2E):#x}")
    a("s_waitcnt vmcnt(0)")
    lds_signal(C_CLR, VCN, VONE)
    lds_wait(C_CLR, 4, WK + 1, VCN, sleep=0)
    a(f"v_add_u32 v{TAG}, 1, v{TAG}")
    stamp(1, VST)
    c_ = WK
    lo2 = LOG2E - struct.unpack("<f", struct.pack("<f", LOG2E))[0]
    a(f"v_lshlrev_b32 v{c_}, 16, v{c_}")
    a(f"v_max_f32 v{WK+13}, {f2u(-87.0):#x}, v{c_}\nv_min_f32 v{WK+13}, {f2u(100.0):#x}, v{WK+13}")
    a(f"v_mul_f32 v{WK+1}, s33, v{WK+13}\nv_fma_f32 v{WK+2}, v{WK+13}, s33, -v{WK+1}\nv_mov_b32 v{WK+3}, {f2u(lo2):#x}\nv_fmac_f32 v{WK+2}, v{WK+13}, v{WK+3}")
    a(f"v_exp_f32 v{WK+1}, -v{WK+1}\nv_mul_f32 v{WK+2}, {f2u(-0.6931471805599453):#x}, v{WK+2}")
    a(f"v_fma_f32 v{WK+1}, v{WK+1}, v{WK+2}, v{WK+1}\nv_add_f32 v{WK+1}, 1.0, v{WK+1}")
    a(f"v_rcp_f32 v{WK+2}, v{WK+1}\nv_mul_f32 v{WK+3}, v{c_}, v{WK+2}\nv_fma_f32 v{WK+13}, -v{WK+3}, v{WK+1}, v{c_}\nv_fmac_f32 v{WK+3}, v{WK+13}, v{WK+2}")
    rnd(WK + 3, WK + 3)
    a(f"s_lshl_b32 s5, s{WV}, 7\ns_add_u32 s5, s5, {L_SIL}\nv_add_u32 v{WK+1}, s5, v{VB}\nds_write_b16_d16_hi v{WK+1}, v{WK+3}")
    ACT = WK + 8
    a(f"v_add_u32 v{WK+1}, s5, v{VACT}\ns_waitcnt lgkmcnt(0)\nds_read_b128 {vr(ACT,4)}, v{WK+1}\nds_read_b128 {vr(ACT+4,4)}, v{WK+1} offset:64")

    def ln_stats(X, mean_b, rden, t0):
        assert t0 % 2 == 0 and X % 2 == 0
        p1, p2, u1, u2 = t0, t0 + 2, t0 + 4, t0 + 5
        a(f"v_readfirstlane_b32 s90, v{X}\ns_mov_b32 s91, s90")
        for i in range(0, 16, 2): a(f"v_pk_add_f32 {vr(X+i,2)}, {vr(X+i,2)}, s[90:91] neg_lo:[0,1] neg_hi:[0,1]")
        a(f"v_pk_mul_f32 {vr(p2,2)}, {vr(X,2)}, {vr(X,2)}\nv_pk_add_f32 {vr(p1,2)}, {vr(X,2)}, {vr(X+2,2)}")
        a(f"v_pk_fma_f32 {vr(p2,2)}, {vr(X+2,2)}, {vr(X+2,2)}, {vr(p2,2)}")
        for i in range(4, 16, 2):
            a(f"v_pk_add_f32 {vr(p1,2)}, {vr(p1,2)}, {vr(X+i,2)}\nv_pk_fma_f32 {vr(p2,2)}, {vr(X+i,2)}, {vr(X+i,2)}, {vr(p2,2)}")
        a(f"v_add_f32 v{p1}, v{p1}, v{p1+1}\nv_add_f32 v{p2}, v{p2}, v{p2+1}")
        a(f"v_permlane32_swap_b32 v{p1}, v{p2}\nv_add_f32 v{p1}, v{p1}, v{p2}")
        xreduce("v_add_f32", p1, u1, (16, 8, 4, 2, 1))
        a(f"v_mul_f32 v{p1}, {f2u(1.0/1024):#x}, v{p1}\nv_mov_b32 v{p2}, v{p1}\nv_permlane32_swap_b32 v{p1}, v{p2}")
        a(f"v_fma_f32 v{p2}, -v{p1}, v{p1}, v{p2}\nv_add_f32 v{p1}, s90, v{p1}\nv_max_f32 v{p2}, 0, v{p2}")
        rnd(p2, p2); rnd(mean_b, p1)
        a(f"v_add_f32 v{p2}, {f2u(1e-5):#x}, v{p2}"); rnd(p2, p2)
        a(f"v_sqrt_f32 v{p2}, v{p2}"); rnd(p2, p2)
        a(f"v_rcp_f32 v{rden}, v{p2}")
    def ln_apply(x, mean_b, rden):
        a(f"v_sub_f32 v{x}, v{x}, v{mean_b}"); rnd(x, x)
        a(f"v_mul_f32 v{x}, v{x}, v{rden}"); rnd(x, x)
    XU = XR + 8
    for i in range(8):
        a(f"v_lshlrev_b32 v{XU+2*i}, 16, v{XR+i}\nv_and_b32 v{XU+2*i+1}, 0xffff0000, v{XR+i}")
    ln_stats(XU, WK, WK + 1, WK + 2)
    a(f"v_lshlrev_b32 v{KEEP0}, 16, v{KEEP0}")
    ln_apply(KEEP0, WK, WK + 1)

    def tr_read(dst, vaddr, base, ncg, nkk, rs, kstep=32, cgstep=32):
        for cg in range(ncg):
            for kk in range(nkk):
                for q in range(2):
                    off = base + cg * cgstep + (kstep * kk + 4 * q) * rs
                    assert off < 65536
                    a(f"ds_read_b64_tr_b16 {vr(dst + (cg*nkk+kk)*4 + 2*q, 2)}, v{vaddr} offset:{off}")
    def tr_tile(dst, base, nkk, t0):
        a(f"v_add_u32 v{t0}, {base}, v{VTR}\nv_xor_b32 v{t0+1}, 32, v{t0}")
        tr_read(dst, t0, 0, 1, nkk, 256); tr_read(dst + 4 * nkk, t0 + 1, 0, 1, nkk, 256)
    MASKC = [0x0001000100010001 << i for i in range(4)]
    def gemv(frs, nkk, act, dacc, select=True):
        for kk in range(nkk):
            for cg, f in enumerate(frs):
                c = "0" if kk == 0 else vr(dacc + 4 * cg, 4)
                a(f"v_mfma_f32_16x16x32_bf16 {vr(dacc+4*cg,4)}, {vr(f+4*kk,4)}, {vr(act+4*kk,4)}, {c}")
        for cg in range(1, len(frs) if select else 0):
            m = MASKC[cg]
            a(f"s_mov_b32 exec_lo, {m & 0xffffffff:#x}\ns_mov_b32 exec_hi, {m >> 32:#x}")
            for i in range(4): a(f"v_mov_b32 v{dacc+i}, v{dacc+4*cg+i}")
    def publish(dacc, ncg, off):
        m = sum(MASKC[:ncg])
        a(f"s_mov_b32 exec_lo, {m & 0xffffffff:#x}\ns_mov_b32 exec_hi, {m >> 32:#x}")
        a(f"s_mul_i32 s5, s{WV}, {ncg*64}\ns_add_u32 s5, s5, s{SMY}\ns_add_u32 s5, s5, {off}")
        a(f"buffer_store_dwordx4 {vr(dacc,4)}, v{VPUB}, {sr(R_WS,4)}, s5 offen sc1\ns_mov_b64 exec, -1")
    def gather(loads, t0, tags=None, sleep=0, name="", masked=True, between=None):
        if name and name in cfg.dbg_skip.split(","): return
        L = a.newlabel("L_g"); Ld = a.newlabel("L_gd"); Lc = a.newlabel("L_gc")
        PM = 40
        def ld(dst, wd, va, so):
            if so: a(f"s_mov_b32 s5, {so}")
            a(f"buffer_load_dword{'' if wd == 1 else 'x'+str(wd)} {vr(dst,wd)}, v{va}, {sr(R_WS,4)}, {'s5' if so else '0'} offen sc1")
        def maxtree(regs_):
            if len(regs_) == 1: return regs_[0]
            if len(regs_) == 2: a(f"v_max_u32 v{t0}, v{regs_[0]}, v{regs_[1]}"); return t0
            a(f"v_max3_u32 v{t0}, v{regs_[0]}, v{regs_[1]}, v{regs_[2]}")
            rest = regs_[3:]
            while rest:
                if len(rest) >= 2: a(f"v_max3_u32 v{t0}, v{t0}, v{rest[0]}, v{rest[1]}"); rest = rest[2:]
                else: a(f"v_max_u32 v{t0}, v{t0}, v{rest[0]}"); rest = []
            return t0
        if not masked: a.label(L)
        for (dst, wd, va, so, em) in loads:
            if em is not None: a(f"s_mov_b32 exec_lo, {em & 0xffffffff:#x}\ns_mov_b32 exec_hi, {em >> 32:#x}")
            ld(dst, wd, va, so)
            if em is not None: a("s_mov_b64 exec, -1")
        if between: between()
        if not masked: budget_check()
        a("s_waitcnt vmcnt(0)")
        if tags is None:
            r_ = maxtree([x for (dst, wd, _, _, _) in loads for x in range(dst, dst + wd)])
            if not masked:
                a(f"v_cmp_eq_u32 vcc, -1, v{r_}\ns_cbranch_vccnz {L}")
                return
            a(f"v_cmp_eq_u32 vcc, -1, v{r_}\ns_cbranch_vccz {Ld}")
        a(f"s_branch {Lc}")
        a.label(L)
        if sleep: a(f"s_sleep {sleep}")
        budget_check()
        for i, (dst, wd, va, so, em) in enumerate(loads):
            sk = a.newlabel("L_gs")
            a(f"s_mov_b64 exec, {sr(PM+2*i,2)}\ns_cbranch_execz {sk}")
            ld(dst, wd, va, so)
            a.label(sk)
        a("s_mov_b64 exec, -1\ns_waitcnt vmcnt(0)")
        a.label(Lc)
        for i, (dst, wd, va, so, em) in enumerate(loads):
            if tags is None:
                r_ = maxtree(list(range(dst, dst + wd)))
                a(f"v_cmp_eq_u32 {sr(PM+2*i,2)}, -1, v{r_}")
            else:
                a(f"v_cmp_ne_u32 {sr(PM+2*i,2)}, v{tags[i]}, v{TAG}")
        a(f"s_mov_b64 s[6:7], {sr(PM,2)}")
        for i in range(1, len(loads)): a(f"s_or_b64 s[6:7], s[6:7], {sr(PM+2*i,2)}")
        a(f"s_cmp_lg_u64 s[6:7], 0\ns_cbranch_scc1 {L}")
        a.label(Ld)
    def tree_sum(base, n, stride=1):
        idx = [base + i * stride for i in range(n)]
        while len(idx) > 1:
            nx = []
            for i in range(0, len(idx) - 1, 2):
                a(f"v_add_f32 v{idx[i]}, v{idx[i]}, v{idx[i+1]}"); nx.append(idx[i])
            if len(idx) & 1: nx.append(idx[-1])
            idx = nx
    def pk_sum4(base, n):
        idx = [base + 4 * i for i in range(n)]
        while len(idx) > 1:
            nx = []
            for i in range(0, len(idx) - 1, 2):
                for h in (0, 2): a(f"v_pk_add_f32 {vr(idx[i]+h,2)}, {vr(idx[i]+h,2)}, {vr(idx[i+1]+h,2)}")
                nx.append(idx[i])
            if len(idx) & 1: nx.append(idx[-1])
            idx = nx
    def col_reduce(b):
        a(f"v_permlane32_swap_b32 v{b}, v{b+1}\nv_permlane32_swap_b32 v{b+2}, v{b+3}\nv_add_f32 v{b}, v{b}, v{b+1}\nv_add_f32 v{b+2}, v{b+2}, v{b+3}")
        a(f"v_permlane16_swap_b32 v{b}, v{b+2}\nv_add_f32 v{b}, v{b}, v{b+2}\nv_add_f32_dpp v{b}, v{b}, v{b} row_ror:8 row_mask:0xf bank_mask:0xf")
    def xch_read(lbase, nkk, t0):
        L = a.newlabel("L_x"); Ld = a.newlabel("L_xd")
        a.label(L)
        a(f"ds_read_b32 v{t0}, v{VCHK} offset:{lbase - L_MISC}")
        for kk in range(nkk): a(f"ds_read_b128 {vr(ACT+4*kk,4)}, v{VACTL} offset:{lbase - L_MISC + kk*64}")
        a(f"s_waitcnt lgkmcnt({nkk})")
        a(f"v_cmp_eq_u16 vcc, -1, v{t0}\nv_cmp_le_u32 s[6:7], s38, v{t0}\ns_or_b64 s[6:7], s[6:7], vcc")
        if nkk == 2: a("s_cmp_lg_u32 s6, 0")
        a(f"s_cbranch_scc0 {Ld}")
        budget_check()
        a(f"s_branch {L}")
        a.label(Ld)
        a("s_waitcnt lgkmcnt(0)")
    def gemv_pub(frs, nkk, act, dacc, off):
        n = len(frs)
        a(f"s_mul_i32 s5, s{WV}, {n*64}\ns_add_u32 s5, s5, s{SMY}\ns_add_u32 s5, s5, {off}")
        for cg, f in enumerate(frs):
            for kk in range(nkk):
                c = "0" if kk == 0 else vr(dacc + 4 * cg, 4)
                a(f"v_mfma_f32_16x16x32_bf16 {vr(dacc+4*cg,4)}, {vr(f+4*kk,4)}, {vr(act+4*kk,4)}, {c}")
        if cfg.sel:
            for cg in range(1, n):
                m = MASKC[cg]
                a(f"s_mov_b32 exec_lo, {m & 0xffffffff:#x}\ns_mov_b32 exec_hi, {m >> 32:#x}")
                for i in (0, 2): a(f"v_pk_mov_b32 {vr(dacc+i,2)}, {vr(dacc+4*cg+i,2)}, {vr(dacc+4*cg+i,2)} op_sel:[0,1]")
            m = sum(MASKC[:n])
            a(f"s_mov_b32 exec_lo, {m & 0xffffffff:#x}\ns_mov_b32 exec_hi, {m >> 32:#x}")
            a(f"buffer_store_dwordx4 {vr(dacc,4)}, v{VPUB}, {sr(R_WS,4)}, s5 offen sc1")
        else:
            m = MASKC[0]
            a(f"s_mov_b32 exec_lo, {m & 0xffffffff:#x}\ns_mov_b32 exec_hi, {m >> 32:#x}")
            for cg in range(n): a(f"buffer_store_dwordx4 {vr(dacc+4*cg,4)}, v{VPUB}, {sr(R_WS,4)}, s5 offen offset:{cg*64} sc1")
        a("s_mov_b64 exec, -1")
    DACC = WK
    def mod_tile(t, cnt):
        lds_wait(cnt, 8, WK, VCN)
        tr_tile(FU, L_MOD + t * 16384, 2, WK + 4)
        a("s_waitcnt lgkmcnt(0)")
        if t:
            gemv([FU, FU + 8], 2, ACT, DACC)
            publish(DACC, 2, MODP + t * 512)
            return
        gemv([FU, FU + 8], 2, ACT, DACC, select=False)
        o = FU + 16
        a(f"v_mov_b32 v{o+1}, v{TAG}\nv_mov_b32 v{o+3}, v{TAG}")
        a(f"v_and_b32 v{o+4}, 2, v1\nv_lshlrev_b32 v{o+4}, 6, v{o+4}\nv_lshl_add_u32 v{o+4}, v{VACT}, 1, v{o+4}\nv_and_b32 v{o+5}, 1, v1\nv_lshl_add_u32 v{o+4}, v{o+5}, 4, v{o+4}")
        for c in range(4):
            m = MASKC[c]
            a(f"s_mov_b32 exec_lo, {m & 0xffffffff:#x}\ns_mov_b32 exec_hi, {m >> 32:#x}")
            a(f"v_mov_b32 v{o}, v{DACC+2*c}\nv_mov_b32 v{o+2}, v{DACC+2*c+1}")
        m = sum(MASKC)
        a(f"s_mov_b32 exec_lo, {m & 0xffffffff:#x}\ns_mov_b32 exec_hi, {m >> 32:#x}")
        a(f"s_lshl_b32 s5, s{WV}, 8\ns_add_u32 s5, s5, s{SMY}\ns_add_u32 s5, s5, {HP}")
        a(f"buffer_store_dwordx4 {vr(o,4)}, v{o+4}, {sr(R_WS,4)}, s5 offen sc1\ns_mov_b64 exec, -1")
    mod_tile(0, C_CRIT)
    stamp(2, VST)
    def pair_addr(dst, cb_lo_s, cb_hi_s, off_lo, off_hi, colbase_s, sh=2):
        a(f"s_mul_i32 s5, {cb_lo_s}, {WS}\ns_add_u32 s5, s5, {off_lo}\ns_mul_i32 s6, {cb_hi_s}, {WS}\ns_add_u32 s6, s6, {off_hi}")
        a(f"s_lshl_b32 s7, {colbase_s}, {sh}\ns_add_u32 s5, s5, s7\ns_add_u32 s6, s6, s7")
        a(f"v_mov_b32 v{dst}, s5\ns_mov_b32 exec_lo, 0\nv_mov_b32 v{dst}, s6\ns_mov_b32 exec_lo, -1")
        a(f"v_and_b32 v{WK}, 31, v1\nv_lshl_add_u32 v{dst}, v{WK}, {sh}, v{dst}")
    a(f"s_add_u32 s34, s30, 8\ns_lshl_b32 s35, s{WV}, 5")
    pair_addr(VA, "s30", "s34", HP, HP, "s35", sh=3)
    a(f"s_and_b32 s5, s2, 3\ns_lshl_b32 s5, s5, 6\ns_lshl_b32 s6, s{WV}, 4\ns_add_u32 s5, s5, s6\nv_and_b32 v{WK}, 15, v1\nv_add_u32 v{WK}, s5, v{WK}")
    a(f"s_mov_b32 s6, {WS}\nv_mul_lo_u32 v15, v{WK}, s6\nv_add_u32 v15, {HP + 4}, v15")
    def gather16(dst, va): gather([(dst + i, 1, va, i * 16 * WS, None) for i in range(16)], WK, name='rest')
    def split_pair(v, t):
        a(f"v_mov_b32 v{t}, v{v}\nv_permlane32_swap_b32 v{v}, v{t}")
    def modulate(x, shift, scale):
        a(f"v_mul_f32 v{x}, v{x}, v{scale}"); rnd(x, x)
        a(f"v_add_f32 v{x}, v{x}, v{shift}"); rnd(x, x)
    lds_wait(C_WQ, 8, WK + 4, VCN)
    tr_tile(FD, L_WQ, 4, WK + 4)
    mod_tile(1, C_MOD1)
    mod_tile(2, C_MOD2)
    stamp(3, VST)
    if cfg.p1 >= 0: lds_wait(C_P1, 8, WK + 4, VCN)
    stamp(4, VST)
    gather([(FU + 2 * i, 2, VA, i * 16 * WS, None) for i in range(16)] + [(WK + 1, 1, 15, 0, None)], WK,
           tags=[FU + 2 * i + 1 for i in range(16)] + [WK + 1], sleep=cfg.psleep, name='h1')
    stamp(5, VST)
    tree_sum(FU, 16, 2); rnd(FU, FU); split_pair(FU, FU + 1)
    a(f"v_add_f32 v{FU+1}, 1.0, v{FU+1}"); rnd(FU + 1, FU + 1)
    modulate(KEEP0, FU, FU + 1)
    def vec_write(x, lbase):
        a(f"s_lshl_b32 s5, s{WV}, 6\ns_add_u32 s5, s5, {lbase}\nv_add_u32 v{WK}, s5, v{VB}")
        a(f"s_mov_b32 exec_hi, 0\nds_write_b16_d16_hi v{WK}, v{x}\ns_mov_b32 exec_hi, -1\ns_waitcnt lgkmcnt(0)")
    def act_read(lbase):
        a(f"v_add_u32 v{WK}, {lbase}, v{VACT}")
        for kk in range(4): a(f"ds_read_b128 {vr(ACT+4*kk,4)}, v{WK} offset:{kk*64}")
        a("s_waitcnt lgkmcnt(0)")
    vec_write(KEEP0, L_HV)
    lds_signal(C_H, VCN, VONE)
    lds_wait(C_H, 4, WK, VCN, sleep=0)
    act_read(L_HV)
    gemv([FD, FD + 16], 4, ACT, DACC)
    publish(DACC, 2, QP)
    stamp(6, VST)
    a(f"s_and_b32 s5, s2, 3\ns_lshl_b32 s5, s5, 3\nv_lshrrev_b32 v{WK+4}, 5, v0\nv_add_u32 v{WK+4}, s5, v{WK+4}\ns_mov_b32 s6, {8*WS}\nv_mul_lo_u32 v{VA}, v{WK+4}, s6")
    a(f"v_and_b32 v{WK+4}, 31, v0\nv_lshl_add_u32 v{VA}, v{WK+4}, 4, v{VA}\nv_add_u32 v{VA}, {QP}, v{VA}")
    if cfg.p2 >= 0: lds_wait(C_P2, 8, WK + 4, VCN)
    stamp(20, VST)
    gather([(FU + 4 * i, 4, VA, i * WS, None) for i in range(8)], WK, sleep=cfg.psleep, name='h2')
    stamp(7, VST)
    for e in range(4): tree_sum(FU + e, 8, 4)
    a(f"v_cvt_pk_bf16_f32 v{WK}, v{FU}, v{FU+1}\nv_cvt_pk_bf16_f32 v{WK+1}, v{FU+2}, v{FU+3}")
    a(f"v_lshlrev_b32 v{WK+2}, 3, v0\nv_add_u32 v{WK+2}, {L_QV}, v{WK+2}\nds_write_b64 v{WK+2}, {vr(WK,2)}\ns_waitcnt lgkmcnt(0)")
    lds_signal(C_Q, VCN, VONE)
    a(f"s_add_u32 s5, s2, s{WV}\ns_cmp_lg_u32 s5, 0\ns_cbranch_scc1 L_ep_done")
    a(f"s_mov_b32 s5, {EPOCH}\ns_mov_b64 exec, 1\nbuffer_store_dword v{TAG}, off, {sr(R_WS,4)}, s5 sc1\ns_mov_b64 exec, -1")
    a.label("L_ep_done")
    a(f"s_cmp_lg_u32 s{WV}, 0\ns_cbranch_scc1 L_ml_pub")
    if cfg.rank:
        a(f"s_and_b32 s5, s31, 7\ns_mul_i32 s5, s5, {WS}\ns_add_u32 s5, s5, {TKT}\nv_mov_b32 v{WK+7}, 1\ns_mov_b64 exec, 1")
        a(f"buffer_atomic_add v{WK+7}, off, {sr(R_WS,4)}, s5 sc0 sc1")
        a(f"s_waitcnt vmcnt(0)\nv_add_u32 v{WK+7}, 1, v{WK+7}\nv_lshrrev_b32 v{WK+7}, 3, v{WK+7}\nv_add_u32 v{WK+7}, 1, v{WK+7}")
        a(f"ds_write_b32 v{VCN}, v{WK+7} offset:{C_RK*4}\ns_mov_b64 exec, -1")
    lds_wait(C_ML, 8, WK, VCN, sleep=2)
    stamp(9, VST)
    a(f"v_lshlrev_b32 v{WK+2}, 3, v1\nv_add_u32 v{WK+3}, {L_MLW}, v{WK+2}\nds_read_b64 {vr(WK,2)}, v{WK+3}\ns_waitcnt lgkmcnt(0)")
    a(f"v_mov_b32 v{WK+4}, v{WK}")
    xreduce("v_max_f32", WK + 4, WK + 6, (8, 16, 32))
    a(f"v_sub_f32 v{WK}, v{WK}, v{WK+4}\nv_mul_f32 v{WK}, s33, v{WK}\nv_exp_f32 v{WK}, v{WK}\nv_mul_f32 v{WK+5}, v{WK}, v{WK+1}")
    xreduce("v_add_f32", WK + 5, WK + 6, (8, 16, 32))
    a(f"s_add_u32 s5, s{SMY}, {MLP}\ns_mov_b64 exec, 0xff\nbuffer_store_dwordx2 {vr(WK+4,2)}, v{WK+2}, {sr(R_WS,4)}, s5 offen sc1\ns_mov_b64 exec, -1")
    a.label("L_ml_pub")
    lds_wait(C_WO, 8, WK + 6, VCN)
    a(f"v_lshrrev_b32 v{WK+6}, 4, v1\nv_bfe_u32 v{WK+7}, v1, 2, 2\nv_lshl_add_u32 v{WK+6}, v{WK+6}, 3, v{WK+7}\nv_lshlrev_b32 v{WK+6}, 9, v{WK+6}")
    a(f"v_and_b32 v{WK+7}, 3, v1\nv_lshl_add_u32 v{WK+6}, v{WK+7}, 3, v{WK+6}\ns_lshl_b32 s5, s{WV}, 7\ns_add_u32 s5, s5, {L_WO}\nv_add_u32 v{WK+6}, s5, v{WK+6}")
    tr_read(FWO, WK + 6, 0, 4, 2, 512)
    a("s_waitcnt lgkmcnt(0)")
    a("s_cmp_ge_u32 s2, 224\ns_cbranch_scc1 L_red_mod")
    pair_addr(VA, "s34", "s30", MODP + 512, MODP + 1024, "s35")
    gather16(FU, VA)
    tree_sum(FU, 16); rnd(KEEP0, FU); split_pair(KEEP0, KEEP1)
    a(f"v_add_f32 v{KEEP1}, 1.0, v{KEEP1}"); rnd(KEEP1, KEEP1)
    a("s_branch L_mod_done")
    a.label("L_red_mod")
    COL = 13
    a(f"s_sub_u32 s36, s2, 224")
    a(f"v_and_b32 v{COL}, 7, v1\nv_lshlrev_b32 v{COL}, 2, v{COL}\nv_bfe_u32 v{WK}, v1, 4, 1\nv_lshl_add_u32 v{COL}, v{WK}, 1, v{COL}\nv_lshrrev_b32 v{WK}, 5, v1\nv_add_u32 v{COL}, v{COL}, v{WK}")
    a(f"s_lshr_b32 s5, s36, 2\ns_mul_i32 s5, s5, {WS}\ns_and_b32 s6, s36, 3\ns_lshl_b32 s6, s6, 7\ns_add_u32 s5, s5, s6\ns_add_u32 s5, s5, {MODP+512}")
    a(f"v_lshlrev_b32 v{VA}, 2, v{COL}\nv_add_u32 v{VA}, s5, v{VA}")
    a(f"s_cmp_lg_u32 s{WV}, 0\ns_cbranch_scc1 L_mod_done")
    a(f"v_add_u32 v{WK+1}, {8*WS + 512}, v{VA}")
    a(f"v_lshlrev_b32 v{WK}, 1, v{COL}\ns_lshl_b32 s5, s36, 6\nbuffer_load_ushort v{KEEP2}, v{WK}, {sr(R_X,4)}, s5 offen")
    for i in range(16):
        a(f"s_mov_b32 s5, {i*16*WS}\nbuffer_load_dword v{FU+16+i}, v{WK+1}, {sr(R_WS,4)}, s5 offen sc1")
    gather16(FU, VA)
    tree_sum(FU, 16); rnd(KEEP0, FU)
    a(f"v_max3_u32 v{WK}, v{FU+16}, v{FU+17}, v{FU+18}")
    for i in range(19, 31, 2): a(f"v_max3_u32 v{WK}, v{WK}, v{FU+i}, v{FU+i+1}")
    a(f"v_max_u32 v{WK}, v{WK}, v{FU+31}\nv_cmp_eq_u32 vcc, -1, v{WK}\ns_cbranch_vccz L_gb_ok")
    gather16(FU + 16, WK + 1)
    a.label("L_gb_ok")
    tree_sum(FU + 16, 16); rnd(KEEP1, FU + 16)
    a(f"v_lshlrev_b32 v{KEEP2}, 16, v{KEEP2}")
    a.label("L_mod_done")
    stamp(8, VST)
    a(f"s_cmp_lg_u32 s{WV}, 0\ns_cbranch_scc1 L_ml_done")
    a(f"v_lshlrev_b32 v{WK+2}, 3, v1")
    a(f"v_lshrrev_b32 v{WK}, 3, v1\nv_lshlrev_b32 v{WK}, 2, v{WK}\ns_and_b32 s5, s2, 3\nv_add_u32 v{WK}, s5, v{WK}\ns_mov_b32 s6, {WS}\nv_mul_lo_u32 v{VA}, v{WK}, s6")
    a(f"v_and_b32 v{WK}, 7, v1\nv_lshl_add_u32 v{VA}, v{WK}, 3, v{VA}\nv_add_u32 v{VA}, {MLP}, v{VA}")
    if cfg.p3 >= 0: lds_wait(C_P3, 8, WK, VCN)
    stamp(21, VST)
    gather([(FU + 2 * i, 2, VA, i * 32 * WS, None) for i in range(8)], WK, sleep=cfg.psleep, name='ml')
    a(f"v_max3_f32 v{WK+4}, v{FU}, v{FU+2}, v{FU+4}\nv_max3_f32 v{WK+4}, v{WK+4}, v{FU+6}, v{FU+8}\nv_max3_f32 v{WK+4}, v{WK+4}, v{FU+10}, v{FU+12}\nv_max_f32 v{WK+4}, v{WK+4}, v{FU+14}")
    xreduce("v_max_f32", WK + 4, WK + 6, (8, 16, 32))
    for i in range(8):
        a(f"v_sub_f32 v{FU+2*i}, v{FU+2*i}, v{WK+4}\nv_mul_f32 v{FU+2*i}, s33, v{FU+2*i}\nv_exp_f32 v{FU+2*i}, v{FU+2*i}")
    for i in range(8): a(f"v_mul_f32 v{FU+2*i}, v{FU+2*i}, v{FU+2*i+1}")
    tree_sum(FU, 8, 2)
    xreduce("v_add_f32", FU, WK + 6, (8, 16, 32))
    a(f"v_rcp_f32 v{WK+5}, v{FU}")
    a(f"v_add_u32 v{WK+3}, {L_MLF}, v{WK+2}\ns_mov_b64 exec, 0xff\nds_write_b64 v{WK+3}, {vr(WK+4,2)}\ns_waitcnt lgkmcnt(0)")
    stamp(10, VST)
    a.label("L_ml_done")
    lds_signal(C_MLD, VCN, VONE)
    late = lst(cfg.late)
    def ffn_frags(name):
        base, dst = {"gate": (L_GATE, FG), "up": (L_UP, FU), "dn": (L_DN, FD)}[name]
        tr_tile(dst, base, 4, WK)
    for name, cnt in (("gate", C_GATE), ("up", C_UP)):
        if name not in late:
            lds_wait(cnt, 8, WK, VCN, sleep=4)
            ffn_frags(name)
    TA, TB, VXW = 14, 15, WK + 7
    a(f"v_lshrrev_b32 v{WK}, 4, v1\nv_and_b32 v{WK+1}, 15, v1\nv_lshlrev_b32 v{VA}, 10, v{WK}\nv_lshl_add_u32 v{VA}, v{WK+1}, 4, v{VA}")
    a(f"s_lshl_b32 s5, s{WV}, 8\ns_add_u32 s5, s5, {L_OS}\nv_add_u32 v{VA}, s5, v{VA}")
    a(f"v_and_b32 v{TA}, 7, v1\nv_lshlrev_b32 v{TA}, 9, v{TA}\nv_lshl_add_u32 v{TA}, v{WK}, 4, v{TA}\nv_and_b32 v{WK+2}, 8, v1\nv_lshl_add_u32 v{TA}, v{WK+2}, 3, v{TA}")
    a(f"s_lshl_b32 s37, s{WV}, 7\ns_add_u32 s37, s37, s{SMY}")
    a(f"s_lshr_b32 s5, s2, 6\nv_and_b32 v{WK+2}, 60, v1\nv_add_u32 v{WK+2}, s5, v{WK+2}\ns_mov_b32 s6, {WS}\nv_mul_lo_u32 v{TB}, v{WK+2}, s6")
    a(f"s_lshr_b32 s5, s2, 5\ns_and_b32 s5, s5, 1\ns_lshl_b32 s5, s5, 3\ns_add_u32 s5, s5, s30\ns_lshl_b32 s5, s5, 8\ns_lshl_b32 s6, s{WV}, 6\ns_add_u32 s5, s5, s6")
    a(f"v_and_b32 v{WK+2}, 3, v1\nv_lshl_add_u32 v{TB}, v{WK+2}, 4, v{TB}\nv_add_u32 v{TB}, s5, v{TB}")
    a(f"v_bfe_u32 v{WK+3}, v1, 4, 1\nv_lshl_add_u32 v{WK+2}, v{WK+3}, 4, v{WK+2}\nv_lshrrev_b32 v{WK+3}, 5, v1\nv_lshl_add_u32 v{WK+2}, v{WK+3}, 3, v{WK+2}")
    a(f"s_lshr_b32 s5, s{WV}, 1\ns_lshl_b32 s5, s5, 6\ns_and_b32 s6, s{WV}, 1\ns_lshl_b32 s6, s6, 3\ns_add_u32 s5, s5, s6\ns_add_u32 s5, s5, {L_OV}")
    a(f"v_lshlrev_b32 v{VXW}, 1, v{WK+2}\nv_add_u32 v{VXW}, s5, v{VXW}")
    a(f"v_lshlrev_b32 v{VCHK}, 2, v1\nv_add_u32 v{VCHK}, {L_MISC}, v{VCHK}\nv_add_u32 v{VACTL}, {L_MISC}, v{VACT}\ns_mov_b32 s38, 0xffff0000")
    a(f"v_and_b32 v{VB}, 31, v1\nv_lshlrev_b32 v{VB}, 1, v{VB}\ns_lshl_b32 s5, s{WV}, 6\ns_add_u32 s5, s5, {L_MISC}\nv_add_u32 v{VB}, s5, v{VB}")
    a("s_waitcnt lgkmcnt(0)")
    stamp(11, VST)
    a("s_barrier")
    stamp(12, VST)
    for s in range(8): a(f"ds_read_b128 {vr(FD+4*s,4)}, v{VA} offset:{s*4096}")
    a("s_waitcnt lgkmcnt(4)"); pk_sum4(FD, 4)
    a("s_waitcnt lgkmcnt(0)"); pk_sum4(FD + 16, 4)
    a(f"v_pk_add_f32 {vr(FD,2)}, {vr(FD,2)}, {vr(FD+16,2)}\nv_pk_add_f32 {vr(FD+2,2)}, {vr(FD+2,2)}, {vr(FD+18,2)}")
    a(f"buffer_store_dwordx4 {vr(FD,4)}, v{TA}, {sr(R_WS,4)}, s37 offen sc1")
    if cfg.ackA: a("s_waitcnt vmcnt(0)")
    stamp(13, VST)
    gather([(FD + 16 + 4 * i, 4, TB, i * 64 * WS, None) for i in range(4)], WK)
    stamp(14, VST)
    pk_sum4(FD + 16, 4)
    col_reduce(FD + 16)
    a(f"v_add_f32_dpp v{FD+16}, v{FD+16}, v{FD+16} row_ror:4 row_mask:0xf bank_mask:0xf")
    rnd(FD + 16, FD + 16)
    a(f"ds_write_b16_d16_hi v{VXW}, v{FD+16}")
    xch_read(L_OV, 2, WK)
    gemv_pub([FWO, FWO + 8, FWO + 16, FWO + 24], 2, ACT, FD, YP)
    lds_signal(C_Y, VCN, VONE)
    stamp(15, VST)
    a("s_cmp_ge_u32 s2, 224\ns_cbranch_scc1 L_reducer")
    a(f"v_lshrrev_b32 v{WK}, 3, v1\ns_mov_b32 s6, {WS}\nv_mul_lo_u32 v{TA}, v{WK}, s6\nv_and_b32 v{WK}, 7, v1\nv_lshl_add_u32 v{TA}, v{WK}, 4, v{TA}\nv_add_u32 v{TA}, {224*WS + X2P}, v{TA}")
    a(f"s_lshl_b32 s5, s30, 2\ns_add_u32 s5, s5, s{WV}\ns_mul_i32 s5, s5, {WS}\ns_add_u32 s5, s5, {224*WS + X2P}\nv_and_b32 v{WK}, 31, v1\nv_lshlrev_b32 v{TB}, 2, v{WK}\nv_add_u32 v{TB}, s5, v{TB}")
    a(f"s_and_b32 s5, s2, 0xf8\ns_mul_i32 s5, s5, {WS}\ns_lshl_b32 s6, s{WV}, 8\ns_add_u32 s5, s5, s6\ns_add_u32 s5, s5, {GUP}\nv_lshlrev_b32 v{VA}, 2, v1\nv_add_u32 v{VA}, s5, v{VA}")
    lds_wait(C_GU, 8, WK, VCN, sleep=0)
    stamp(22, VST)
    def frags():
        for name in ("gate", "up"):
            if name in late: ffn_frags(name)
    gather([(FWO + 4 * i, 4, TA, i * 8 * WS, None) for i in range(4)] + [(FWO + 16, 1, TB, 0, None)], WK + 2, between=frags)
    lds_signal(C_B2, VCN, VONE)
    stamp(16, VST)
    ln_stats(FWO, WK, WK + 1, WK + 2)
    ln_apply(FWO + 16, WK, WK + 1)
    modulate(FWO + 16, KEEP0, KEEP1)
    a(f"ds_write_b16_d16_hi v{VB}, v{FWO+16} offset:{L_H2V - L_MISC}")
    xch_read(L_H2V, 4, WK)
    gemv_pub([FG, FG + 16, FU, FU + 16], 4, ACT, FWO, GUP)
    stamp(23, VST)
    def dnf():
        a("s_barrier")
        ffn_frags("dn")
    if not cfg.dnlate: dnf()
    if cfg.ackE: a("s_waitcnt vmcnt(0)")
    stamp(17, VST)
    gather([(FWO + 16 + i, 1, VA, i * WS, None) for i in range(8)], WK + 2, masked=False)
    stamp(18, VST)
    if cfg.dnlate: dnf()
    g_ = FWO + 16
    a(f"v_pk_add_f32 {vr(g_,2)}, {vr(g_,2)}, {vr(g_+2,2)}\nv_pk_add_f32 {vr(g_+4,2)}, {vr(g_+4,2)}, {vr(g_+6,2)}\nv_pk_add_f32 {vr(g_,2)}, {vr(g_,2)}, {vr(g_+4,2)}\nv_add_f32 v{g_}, v{g_}, v{g_+1}")
    rnd(g_ + 1, g_); rnd(g_, g_)
    a(f"v_permlane32_swap_b32 v{g_}, v{g_+1}")
    k2 = -2.0 * 0.7978845608028654 * LOG2E
    a(f"v_mul_f32 v{g_+2}, v{g_}, v{g_}\nv_mul_f32 v{g_+3}, {f2u(k2):#x}, v{g_}\nv_mul_f32 v{g_+2}, {f2u(0.044715):#x}, v{g_+2}\nv_fma_f32 v{g_+2}, v{g_+2}, v{g_+3}, v{g_+3}")
    a(f"v_exp_f32 v{g_+2}, v{g_+2}\nv_add_f32 v{g_+2}, 1.0, v{g_+2}\nv_rcp_f32 v{g_+2}, v{g_+2}\nv_mul_f32 v{g_}, v{g_}, v{g_+2}")
    rnd(g_, g_); a(f"v_mul_f32 v{g_}, v{g_}, v{g_+1}"); rnd(g_, g_)
    a(f"ds_write_b16_d16_hi v{VB}, v{g_} offset:{L_HHV - L_MISC}")
    xch_read(L_HHV, 4, WK)
    gemv_pub([FD, FD + 16], 4, ACT, FG, ZP)
    stamp(19, VST)
    a("s_branch L_fin")
    a.label("L_reducer")
    lds_signal(C_B2, VCN, VONE)
    a(f"s_cmp_lg_u32 s{WV}, 0\ns_cbranch_scc1 L_fin")
    a(f"v_lshrrev_b32 v{WK}, 3, v1\ns_mov_b32 s6, {WS}\nv_mul_lo_u32 v{TA}, v{WK}, s6\nv_lshlrev_b32 v{TB}, 3, v{TA}\nv_and_b32 v{WK}, 7, v1\nv_lshlrev_b32 v{WK}, 4, v{WK}")
    a(f"s_lshr_b32 s5, s36, 3\ns_mul_i32 s5, s5, {8*WS}\ns_and_b32 s6, s36, 7\ns_lshl_b32 s6, s6, 7\ns_add_u32 s5, s5, s6\ns_add_u32 s5, s5, {YP}\nv_add3_u32 v{TA}, v{TA}, v{WK}, s5")
    a(f"s_lshr_b32 s5, s36, 2\ns_mul_i32 s5, s5, {WS}\ns_and_b32 s6, s36, 3\ns_lshl_b32 s6, s6, 7\ns_add_u32 s5, s5, s6\ns_add_u32 s5, s5, {ZP}\nv_add3_u32 v{TB}, v{TB}, v{WK}, s5")
    a(f"v_lshlrev_b32 v{VA}, 2, v{COL}\nv_lshlrev_b32 v{VB}, 1, v{COL}")
    for i in range(4): a(f"v_mov_b32 v{FU+12+i}, 0")
    a(f"s_add_u32 s37, s{SMY}, {X2P}\ns_lshl_b32 s39, s36, 6")
    a("s_waitcnt vmcnt(0)")
    gather([(FG + 4 * i, 4, TA, i * 32 * WS, None) for i in range(8)], WK, masked=cfg.mred)
    stamp(16, VST)
    pk_sum4(FG, 8)
    col_reduce(FG)
    rnd(FG, FG); a(f"v_mul_f32 v{FG}, v{FG}, v{KEEP0}"); rnd(FG, FG); a(f"v_add_f32 v{KEEP2}, v{KEEP2}, v{FG}")
    a(f"s_mov_b32 exec_lo, 0x00ff00ff\ns_mov_b32 exec_hi, 0x00ff00ff")
    rnd(KEEP2, KEEP2)
    a(f"buffer_store_dword v{KEEP2}, v{VA}, {sr(R_WS,4)}, s37 offen sc1\ns_mov_b64 exec, -1")
    stamp(17, VST)
    gather([(FU + 4 * i, 4, TB, i * 64 * WS, None if i < 3 else 0xffffffff) for i in range(4)], WK, masked=cfg.mred)
    stamp(18, VST)
    pk_sum4(FU, 4)
    col_reduce(FU)
    rnd(FU, FU); a(f"v_mul_f32 v{FU}, v{FU}, v{KEEP1}"); rnd(FU, FU); a(f"v_add_f32 v{FU}, v{KEEP2}, v{FU}")
    a(f"s_mov_b32 exec_lo, 0x00ff00ff\ns_mov_b32 exec_hi, 0x00ff00ff")
    rnd(FU, FU)
    a(f"buffer_store_short_d16_hi v{FU}, v{VB}, {sr(R_OUT,4)}, s39 offen\ns_mov_b64 exec, -1")
    stamp(19, VST)
    a.label("L_fin")
    if cfg.stamps:
        a(f"s_lshl_b32 s5, s2, 11\ns_lshl_b32 s6, s3, 7\ns_add_u32 s5, s5, s6\ns_add_u32 s5, s5, 0x8000000\nv_lshlrev_b32 v2, 2, v1")
        a(f"s_mov_b32 exec_lo, -1\ns_mov_b32 exec_hi, 0\nbuffer_store_dword v{VST}, v2, {sr(R_WS,4)}, s5 offen")
    a.label("L_end")
    body = "\n".join(hazard.run(a.l)) + "\n"
    return wrap(body, 256, 768, LDS_BYTES, 168, extra_desc="  .amdhsa_float_denorm_mode_32 3\n")

if __name__ == "__main__":
    out = sys.argv[1]
    kw = {}
    for x in sys.argv[2:]:
        k, v = x.split("="); kw[k] = int(v) if v.lstrip("-").isdigit() else v
    open(out, "w").write(gen(Cfg(**kw)))
```

```python
import sys, os, struct
from asmgen import *
import hazard

def f2u(x): return struct.unpack("<I", struct.pack("<f", x))[0]
LOG2E = 1.4426950408889634

class Cfg:
    D1 = 3
    D2 = 3
    stamps = False
    ws_stride = 10368
    spin_budget = 1 << 18
    pre1 = "crit,wq,mod1,mod2"
    pre2 = "wo"
    mid = ""
    late = "gate,up,dn"
    D3 = 2
    DV = 4
    kvl = "X"
    sprio = 0
    dbg_skip = ""
    p1 = 11
    p2 = 27
    p3 = 16
    nl2 = 6
    ackA = 0
    DL = 0
    nDL = 0
    nl0 = 2
    D4 = 63
    sel = 1
    ackE = 1
    mred = 0
    rank = ""
    rk0 = 4
    rkw = 0
    DVL = 8
    rkl = 3
    nl3 = 0
    b2n = 4
    dnlate = 0
    b2mode = 0
    b2sleep = 0
    gufirst = 0
    thr = -1
    dbg_eps = 0
    psleep = 0
    def __init__(self, **kw):
        for k, v in kw.items(): setattr(self, k, v)

OP, MODP, QP, YP, GUP, ZP, MLP, X2P = 0, 4096, 5632, 6144, 7168, 8192, 8704, 8832
CLEAR_BYTES = 9216
HP = 9216
TKT = 8960
EPOCH = 4 << 20
L_MOD, L_WQ, L_UP, L_DN, L_WO, L_GATE, L_MISC = 0, 0xC000, 0, 0x8000, 0x14000, 0x1C000, 0x24000
L_OS = L_WO
L_CNT = L_MISC
C_CRIT, C_WQ, C_MOD1, C_MOD2, C_WO, C_GATE, C_UP, C_DN, C_Q, C_H, C_ML, C_MLD, C_CLR, C_AX, C_P1, C_P2, C_P3, C_Y, C_RK, C_GU, C_B2, C_PAD, C_GO, C_Y2 = range(24)
L_QV = L_MISC + 0x100
L_HV = L_MISC + 0x900
L_H2V = L_MISC + 0xA00
L_HHV = L_MISC + 0xB00
L_SIL = L_MISC + 0xC00
L_MLW = L_MISC + 0xE00
L_MLF = L_MISC + 0x1000
L_OV = L_MISC + 0x1400
LDS_BYTES = 160 * 1024

def is_reducer(w): return w >= 224
def vr(a, n=1): return f"v{a}" if n == 1 else f"v[{a}:{a+n-1}]"
def sr(a, n=1): return f"s{a}" if n == 1 else f"s[{a}:{a+n-1}]"

def gen(cfg):
    a = Asm()
    WS = cfg.ws_stride
    W, WAVE, BUD = 2, 3, 4
    def srd_load(r, karg_off): a(f"s_load_dwordx2 {sr(r,2)}, s[0:1], {karg_off}")
    def srd_fin(r, nbytes): a(f"s_mov_b32 s{r+2}, {nbytes}\ns_mov_b32 s{r+3}, 0x20000")
    def rnd(d, s): a(f"v_cvt_pk_bf16_f32 v{d}, 0, v{s}")
    nst = [0]
    def stamp(idx, vreg):
        if not cfg.stamps: return
        a(f"s_memrealtime s[98:99]\ns_waitcnt lgkmcnt(0)\nv_writelane_b32 v{vreg}, s98, {idx}")
    def budget_check():
        a(f"s_sub_u32 s{BUD}, s{BUD}, 1\ns_cbranch_scc1 L_end")
    def lds_wait(cnt, target, vtmp, vaddr, sleep=1):
        L = a.newlabel("L_lw"); Ld = a.newlabel("L_lwd")
        a.label(L)
        a(f"ds_read_b32 v{vtmp}, v{vaddr} offset:{cnt*4}\ns_waitcnt lgkmcnt(0)\nv_readfirstlane_b32 s5, v{vtmp}")
        a(f"s_cmp_ge_u32 s5, {target}\ns_cbranch_scc1 {Ld}")
        if sleep: a(f"s_sleep {sleep}")
        budget_check()
        a(f"s_branch {L}")
        a.label(Ld)
    def lds_signal(cnt, vaddr, vone):
        a(f"s_mov_b64 exec, 1\nds_add_u32 v{vaddr}, v{vone} offset:{cnt*4}\ns_mov_b64 exec, -1")
    def xreduce(op, v, t, steps):
        for s in steps:
            if s in (1, 2, 4, 8): a(f"{op}_dpp v{v}, v{v}, v{v} row_ror:{s} row_mask:0xf bank_mask:0xf")
            elif s == 16: a(f"v_mov_b32 v{t}, v{v}\nv_permlane16_swap_b32 v{v}, v{t}\n{op} v{v}, v{v}, v{t}")
            elif s == 32: a(f"v_mov_b32 v{t}, v{v}\nv_permlane32_swap_b32 v{v}, v{t}\n{op} v{v}, v{v}, v{t}")

    a("s_cmp_ge_u32 s2, 256\ns_cbranch_scc1 L_end")
    a("v_lshrrev_b32 v2, 6, v0\nv_and_b32 v1, 63, v0")
    a(f"v_readfirstlane_b32 s{WAVE}, v2")
    a(f"s_mov_b32 s{BUD}, {cfg.spin_budget}")
    a(f"s_cmp_ge_u32 s{WAVE}, 8\ns_cbranch_scc1 L_cwave")

    R_MOD, R_WQ, R_WO, R_G, R_U, R_DN, R_K, R_V = 8, 12, 16, 20, 24, 28, 32, 36
    R_WSS = 40
    srd_load(R_MOD, 80); srd_load(R_DN, 64)
    a("s_load_dwordx16 s[68:83], s[0:1], 0")
    if cfg.stamps: srd_load(R_WSS, 104)
    VK, VV, VGU, VDN, VCN, VONE = 2, 3, 4, 5, 6, 7
    Q0, T0, DT, KV = 8, 16, 32, 40
    VMOD, VWQ, VWO, VST = 16, 17, 18, 0
    if cfg.stamps:
        a("s_memrealtime s[96:97]")
    a("v_and_b32 v32, 15, v1\nv_lshrrev_b32 v33, 4, v1\nv_lshlrev_b32 v34, 1, v33\nv_xor_b32 v34, v34, v32\nv_lshlrev_b32 v34, 4, v34")
    a(f"v_mul_u32_u24 v{VMOD}, 12288, v33\nv_add_u32 v{VMOD}, v{VMOD}, v34\ns_and_b32 s5, s3, 1\ns_lshl_b32 s5, s5, 7\nv_xor_b32 v{VMOD}, s5, v{VMOD}")
    a(f"v_lshl_add_u32 v{VWQ}, v33, 13, v34")
    a(f"v_mul_u32_u24 v{VGU}, 7168, v33\nv_add_u32 v{VGU}, v{VGU}, v34")
    a(f"v_lshl_add_u32 v{VDN}, v33, 11, v34")
    a(f"v_lshrrev_b32 v35, 5, v1\nv_and_b32 v36, 31, v1\nv_lshlrev_b32 v36, 4, v36\nv_lshl_add_u32 v{VWO}, v35, 11, v36")
    a(f"v_lshlrev_b32 v{VV}, 4, v1")
    pi_sh, wave_sh, chunk = {"B": (13, 15, lambda b, n: b * 16384 + n * 1024), "X": (16, 10, lambda b, n: (16 * b + n) * 8192),
                             "Y": (13, 10, lambda b, n: (8 * b + n) * 16384), "Z": (10, 11, lambda b, n: (8 * b + n) * 16384)}[cfg.kvl]
    a(f"v_and_b32 v35, 2, v32\nv_lshlrev_b32 v35, {pi_sh - 1}, v35\nv_lshrrev_b32 v36, 2, v32\nv_lshl_add_u32 v35, v36, 8, v35")
    a(f"v_and_b32 v36, 1, v32\nv_lshl_add_u32 v35, v36, 6, v35\nv_lshl_add_u32 v{VK}, v33, 4, v35")
    a(f"v_mov_b32 v{VCN}, {L_CNT}\nv_mov_b32 v{VONE}, 1")
    SB_MOD, SB_WQ, SB_WO, SB_GU, SB_DN, SB_KV, SO, SL = 44, 45, 46, 47, 48, 49, 50, 51
    a(f"s_lshr_b32 s5, s2, 4\ns_lshl_b32 s5, s5, 6\ns_lshl_b32 s6, s3, 3\ns_add_u32 s5, s5, s6\ns_mul_i32 s5, s5, 12288")
    a(f"s_and_b32 s6, s2, 15\ns_lshl_b32 s6, s6, 8\ns_add_u32 s{SB_MOD}, s5, s6")
    a(f"s_lshl_b32 s{SL}, s3, 11")
    a("s_and_b32 s52, s2, 7\ns_lshr_b32 s53, s2, 3")
    a(f"s_lshl_b32 s5, s52, 7\ns_lshl_b32 s6, s3, 4\ns_add_u32 s54, s5, s6")
    a(f"s_lshl_b32 s5, s54, 13\ns_lshl_b32 s55, s53, 8\ns_add_u32 s{SB_WQ}, s5, s55")
    a(f"s_mul_i32 s5, s54, 7168\ns_add_u32 s{SB_GU}, s5, s55")
    a(f"s_lshl_b32 s5, s53, 7\ns_add_u32 s5, s5, s6\ns_lshl_b32 s5, s5, 11\ns_lshl_b32 s7, s52, 8\ns_add_u32 s{SB_DN}, s5, s7")
    a(f"s_lshr_b32 s5, s2, 5\ns_lshl_b32 s5, s5, 3\ns_add_u32 s5, s5, s52\ns_lshl_b32 s5, s5, 6\ns_lshl_b32 s6, s3, 3\ns_add_u32 s5, s5, s6\ns_lshl_b32 s5, s5, 11")
    a(f"s_and_b32 s6, s53, 3\ns_lshl_b32 s6, s6, 9\ns_add_u32 s{SB_WO}, s5, s6")
    a(f"s_and_b32 s5, s2, 3\ns_lshl_b32 s5, s5, 24\ns_lshr_b32 s6, s2, 2\ns_lshl_b32 s6, s6, 18\ns_add_u32 s5, s5, s6\ns_lshl_b32 s6, s3, {wave_sh}\ns_add_u32 s{SB_KV}, s5, s6")
    a(f"s_lshl_b32 s56, s3, 12")
    srd_fin(R_MOD, 12582912); srd_fin(R_WQ, 8388608); srd_fin(R_WO, 8388608)
    srd_fin(R_K, 67108864); srd_fin(R_V, 67108864)
    a("s_mov_b32 s57, 7340032\ns_cmp_lt_u32 s2, 224\ns_cselect_b32 s57, s57, 0")
    for r in (R_G, R_U, R_DN): a(f"s_mov_b32 s{r+2}, s57\ns_mov_b32 s{r+3}, 0x20000")
    if cfg.stamps: srd_fin(R_WSS, 0x10000000)
    a("s_mov_b32 s58, 0x05040100\ns_mov_b32 s59, 0x07060302")
    a("s_waitcnt lgkmcnt(0)")
    for r, off in ((R_WQ, 24), (R_WO, 32), (R_G, 48), (R_U, 56), (R_K, 8), (R_V, 16)):
        a(f"s_mov_b64 {sr(r,2)}, {sr(68 + off//4, 2)}")
    if cfg.stamps: a(f"v_mov_b32 v{VST}, 0\nv_writelane_b32 v{VST}, s96, 0")

    if cfg.sprio:
        a(f"s_cmp_lt_u32 s3, 4\ns_cbranch_scc1 L_noprio\ns_setprio {cfg.sprio}")
        a.label("L_noprio")
    issued = []; done = [0]; tiles = {}; signalled = set(); barrier_done = [False]
    def after_wait():
        for name, (cnt, ids) in tiles.items():
            if name not in signalled and len(ids) == TN[name] and max(ids) < done[0]:
                if not barrier_done[0]: a("s_barrier"); barrier_done[0] = True
                lds_signal(cnt, VCN, VONE); signalled.add(name)
    def wait_n(n):
        if len(issued) - done[0] > n:
            if not barrier_done[0]: a("s_barrier"); barrier_done[0] = True
            a(f"s_waitcnt vmcnt({n})"); done[0] = len(issued) - n; after_wait()
    def wait_id(i): wait_n(len(issued) - 1 - i)
    TN = dict(crit=2, wq=4, mod1=2, mod2=2, wo=4, gate=4, up=4, dn=4)
    TC = dict(crit=C_CRIT, wq=C_WQ, mod1=C_MOD1, mod2=C_MOD2, wo=C_WO, gate=C_GATE, up=C_UP, dn=C_DN)
    def dma(name, i, D):
        srd, voff, sb, step, lbase, lsreg = {
            "crit": (R_MOD, VMOD, SB_MOD, 4 * 12288, L_MOD, SL), "mod1": (R_MOD, VMOD, SB_MOD, 4 * 12288, L_MOD + 16384, SL),
            "mod2": (R_MOD, VMOD, SB_MOD, 4 * 12288, L_MOD + 32768, SL), "wq": (R_WQ, VWQ, SB_WQ, 4 * 8192, L_WQ, 56),
            "wo": (R_WO, VWO, SB_WO, 2 * 2048, L_WO, 56), "gate": (R_G, VGU, SB_GU, 4 * 7168, L_GATE, 56),
            "up": (R_U, VGU, SB_GU, 4 * 7168, L_UP, 56), "dn": (R_DN, VDN, SB_DN, 4 * 2048, L_DN, 56)}[name]
        extra = {"mod1": 4096, "mod2": 8192}.get(name, 0)
        a(f"s_add_u32 s{SO}, s{sb}, {i*step + extra}\ns_add_u32 m0, s{lsreg}, {lbase + i*1024}")
        wait_n(D - 1)
        a(f"buffer_load_dwordx4 v{voff}, {sr(srd,4)}, s{SO} offen nt lds")
        if name in ("wq", "gate", "up", "dn") and i in (1, 3): a(f"v_xor_b32 v{voff}, 0x80, v{voff}")
        tiles.setdefault(name, (TC[name], []))[1].append(len(issued)); issued.append(name)
    kid = {}; vid = {}
    cur_so = [None]
    def kvload(srd, voff, off, dst, D):
        so = off & ~0xfff
        if cur_so[0] != so:
            a(f"s_add_u32 s60, s{SB_KV}, {so}"); cur_so[0] = so
        if D: wait_n(D - 1)
        a(f"buffer_load_dwordx4 {vr(dst,4)}, v{voff}, {sr(srd,4)}, s60 offen offset:{off & 0xfff} nt")
        issued.append("kv"); return len(issued) - 1
    def kload(n, u, D): kid[(n, u)] = kvload(R_K, VK, chunk(n >> 3, n & 7) + u * 128, KV + 8 * n + 4 * u, D)
    def vslot(i): return KV + 4 * (i % 24)
    def vload(i, D): vid[i] = kvload(R_V, VV, chunk(i >> 4, i & 7) + (((i >> 3) & 1) << pi_sh), vslot(i), D)

    D1, D2 = cfg.D1, cfg.D2
    lst = lambda x: [t for t in x.split(",") if t]
    def pre_q(Df):
        first = True
        for name in lst(cfg.pre1):
            for i in range(TN[name]):
                dma(name, i, Df(len(issued)))
                if len(issued) == 1: stamp(9, VST)
                if done[0] == 1 and first: stamp(10, VST); first = False
        stamp(11, VST)
        for n in range(16):
            for u in range(2):
                kload(n, u, Df(len(issued)))
                if 2 * n + u == cfg.p1: lds_signal(C_P1, VCN, VONE)
                if 2 * n + u == cfg.p2: lds_signal(C_P2, VCN, VONE)
            if n % 4 == 3: stamp(12 + n // 4, VST)
        for name in lst(cfg.pre2):
            for i in range(TN[name]): dma(name, i, Df(len(issued)))
    if cfg.nDL:
        a("s_bitcmp1_b32 s2, 2\ns_cbranch_scc0 L_early")
        pre_q(lambda i: cfg.DL if i < cfg.nDL else D1)
        st1 = (len(issued), done[0], set(signalled))
        a("s_branch L_prejoin")
        a.label("L_early")
        issued.clear(); done[0] = 0; tiles.clear(); signalled.clear(); barrier_done[0] = False; cur_so[0] = None
        pre_q(lambda i: D1)
        assert st1[0] == len(issued) and st1[2] == signalled
        done[0] = min(done[0], st1[1])
        a.label("L_prejoin")
    else:
        pre_q(lambda i: D1)
    stamp(1, VST)
    lds_wait(C_Q, 4, DT, VCN)
    stamp(2, VST)
    a(f"v_and_b32 v{DT}, 7, v1\nv_lshlrev_b32 v{DT}, 8, v{DT}\nv_and_b32 v{DT+1}, 8, v1\nv_lshl_add_u32 v{DT}, v{DT+1}, 3, v{DT}")
    a(f"v_lshrrev_b32 v{DT+1}, 4, v1\nv_lshl_add_u32 v{DT}, v{DT+1}, 4, v{DT}\nv_add_u32 v{DT}, {L_QV}, v{DT}")
    a(f"ds_read_b128 {vr(Q0,4)}, v{DT}\nds_read_b128 {vr(Q0+4,4)}, v{DT} offset:128\ns_waitcnt lgkmcnt(0)")
    a(f"s_mov_b32 s61, {f2u(128 ** -0.5):#x}\ns_mov_b32 s62, {f2u(LOG2E):#x}")
    nv = 0
    def fold(n):
        d = DT + 4 * (n & 1)
        a(f"v_add_f32_dpp v{T0+n}, v{d+1}, v{d} row_ror:8 row_mask:0xf bank_mask:0x3")
        a(f"v_add_f32_dpp v{T0+n}, v{d+2}, v{d+3} row_ror:8 row_mask:0xf bank_mask:0xc")
    def post(n):
        rnd(T0 + n, T0 + n); a(f"v_mul_f32 v{T0+n}, s61, v{T0+n}"); rnd(T0 + n, T0 + n)
    for n in range(16):
        wait_id(kid[(n, 1)])
        d = DT + 4 * (n & 1)
        a(f"v_mfma_f32_16x16x32_bf16 {vr(d,4)}, {vr(KV+8*n,4)}, {vr(Q0,4)}, 0")
        a(f"v_mfma_f32_16x16x32_bf16 {vr(d,4)}, {vr(KV+8*n+4,4)}, {vr(Q0+4,4)}, {vr(d,4)}")
        if n >= 1 and nv < D2 and n % 2 == 1:
            vload(nv, 0); nv += 1
        if n >= 2: post(n - 2)
        if n >= 1: fold(n - 1)
    fold(15); post(14); post(15)
    M_, L_, X_ = DT, DT + 1, DT + 2
    a(f"v_max3_f32 v{M_}, v{T0}, v{T0+1}, v{T0+2}")
    for i in range(3, 15, 2): a(f"v_max3_f32 v{M_}, v{M_}, v{T0+i}, v{T0+i+1}")
    a(f"v_max_f32 v{M_}, v{M_}, v{T0+15}")
    xreduce("v_max_f32", M_, X_, (8, 16, 32))
    for i in range(16):
        e = DT + 4 + (i & 3)
        a(f"v_sub_f32 v{e}, v{T0+i}, v{M_}\nv_mul_f32 v{e}, s62, v{e}\nv_exp_f32 v{e}, v{e}")
        if i >= 1:
            p = DT + 4 + ((i - 1) & 3)
            a(f"v_mov_b32 v{L_}, v{p}" if i == 1 else f"v_add_f32 v{L_}, v{L_}, v{p}")
    a(f"v_add_f32 v{L_}, v{L_}, v{DT+7}")
    xreduce("v_add_f32", L_, X_, (8, 16, 32))
    a(f"s_lshl_b32 s5, s3, 6\ns_add_u32 s5, s5, {L_MLW}\nv_lshlrev_b32 v{X_}, 3, v1\nv_add_u32 v{X_}, s5, v{X_}")
    a(f"s_mov_b64 exec, 0xff\nds_write_b64 v{X_}, {vr(M_,2)}\ns_waitcnt lgkmcnt(0)")
    if cfg.rank:
        a(f"s_mov_b64 exec, 1\nds_add_rtn_u32 v{X_}, v{VCN}, v{VONE} offset:{C_ML*4}\ns_mov_b64 exec, -1\ns_waitcnt lgkmcnt(0)\nv_readfirstlane_b32 s63, v{X_}")
    else:
        lds_signal(C_ML, VCN, VONE)
    stamp(3, VST)
    def vrun(lo, hi, D):
        for i in range(lo, hi):
            vload(i, D)
            if i == cfg.p3: lds_signal(C_P3, VCN, VONE)
    if not cfg.rank:
        vrun(nv, 24, D2)
    else:
        depths = [int(x) for x in cfg.rank.split(",")]
        vrun(nv, cfg.rk0, D2)
        for name in lst(cfg.pre1) + lst(cfg.pre2): wait_id(max(tiles[name][1]))
        a(f"ds_read_b32 v{X_}, v{VCN} offset:{C_RK*4}\ns_waitcnt lgkmcnt(0)\nv_readfirstlane_b32 s5, v{X_}")
        a(f"s_cmp_eq_u32 s5, 0\ns_cselect_b32 s5, 2, s5\ns_sub_u32 s5, s5, 1")
        if cfg.rkw: a(f"s_lshr_b32 s6, s63, 2\ns_mul_i32 s6, s6, {cfg.rkw}\ns_add_u32 s5, s5, s6")
        a(f"s_min_u32 s5, s5, {len(depths)-1}")
        a(f"s_cmp_ge_u32 s5, {cfg.rkl}\ns_cselect_b64 vcc, -1, 0")
        if cfg.stamps: a(f"s_add_u32 s6, s5, 1\nv_writelane_b32 v{VST}, s6, 20")
        base = (list(issued), done[0], cur_so[0])
        mind = None
        for k, D in enumerate(depths):
            if k < len(depths) - 1: a(f"s_cmp_lg_u32 s5, {k}\ns_cbranch_scc1 L_rk{k+1}")
            issued[:] = base[0]; done[0] = base[1]; cur_so[0] = None
            vrun(cfg.rk0, 24, D)
            mind = done[0] if mind is None else min(mind, done[0])
            if k < len(depths) - 1:
                a("s_branch L_rkj"); a.label(f"L_rk{k+1}")
        a.label("L_rkj")
        done[0] = mind
    nv = 24
    for name in lst(cfg.mid):
        for i in range(TN[name]): dma(name, i, D2)
    for name in lst(cfg.pre1) + lst(cfg.pre2):
        wait_id(max(tiles[name][1]))
    stamp(4, VST)
    lds_wait(C_MLD, 4, DT, VCN)
    stamp(5, VST)
    a(f"v_and_b32 v{X_}, 7, v1\nv_lshlrev_b32 v{X_}, 3, v{X_}\nv_add_u32 v{X_}, {L_MLF}, v{X_}\nds_read_b64 {vr(M_,2)}, v{X_}\ns_waitcnt lgkmcnt(0)")
    for i in range(16):
        a(f"v_sub_f32 v{T0+i}, v{T0+i}, v{M_}\nv_mul_f32 v{T0+i}, s62, v{T0+i}\nv_exp_f32 v{T0+i}, v{T0+i}")
    for i in range(16): a(f"v_mul_f32 v{T0+i}, v{T0+i}, v{L_}")
    for i in range(8): a(f"v_cvt_pk_bf16_f32 v{Q0+i}, v{T0+2*i}, v{T0+2*i+1}")
    a("s_mov_b32 s64, 0x00ff00ff\ns_mov_b32 s65, 0x00ff00ff\ns_mov_b32 s66, 0xff00ff00\ns_mov_b32 s67, 0xff00ff00")
    ACC = KV + 96
    PL = lambda G: T0 + 4 * G
    PH = lambda G: KV + 112 + 4 * G
    for G in range(4):
        b, pi = G >> 1, G & 1
        for i in range(4):
            a(f"v_cndmask_b32 v{(PH if pi else PL)(G)+i}, 0, v{Q0+4*b+i}, s[{64+2*pi}:{65+2*pi}]")
        for i in range(4):
            a(f"v_mov_b32_dpp v{(PL if pi else PH)(G)+i}, v{(PH if pi else PL)(G)+i} row_ror:8 row_mask:0xf bank_mask:0xf")
    stage = [DT, DT + 4, Q0, Q0 + 4]
    sidx = 0
    def perm(dst, G, p, j):
        lo = vslot(8 * G + 2 * p) + (j >> 1); hi = vslot(8 * G + 2 * p + 1) + (j >> 1)
        a(f"v_perm_b32 v{dst}, v{hi}, v{lo}, s{58 + (j & 1)}")
    def pv(G, j, st):
        c = "0" if (G == 0 and j < 4) else vr(ACC + 4 * (j & 3), 4)
        a(f"v_mfma_f32_16x16x32_bf16 {vr(ACC+4*(j&3),4)}, {vr(st,4)}, {vr((PH if j >= 4 else PL)(G),4)}, {c}")
    for G in range(3):
        wait_id(vid[8 * G + 7])
        for j in range(8):
            st = stage[sidx & 3]; sidx += 1
            for p in range(4): perm(st + p, G, p, j)
            pv(G, j, st)
            if G in (1, 2) and j % 2 == 0 and nv < 32:
                if cfg.rank:
                    sk = a.newlabel("L_dv")
                    a(f"s_cbranch_vccnz {sk}\ns_waitcnt vmcnt({cfg.DV - 1})")
                    a.label(sk)
                    vload(nv, cfg.DVL)
                else: vload(nv, cfg.DV or D2)
                nv += 1
                if nv == 32:
                    lateq = [(name, i) for name in lst(cfg.late) for i in range(TN[name])]
                    for name in lst(cfg.late): signalled.add(name)
                    for _ in range(min(cfg.nl0, max(0, len(lateq) - cfg.nl2))):
                        name, i = lateq.pop(0); dma(name, i, cfg.DV or D2)
    a(f"s_add_u32 s5, s56, {L_OS}\nv_add_u32 v{VV}, s5, v{VV}")
    SG = KV + 32
    for p in range(3):
        wait_id(vid[24 + 2 * p + 1])
        for j in range(8): perm(SG + 4 * j + p, 3, p, j)
    wait_id(vid[31])
    order = [0, 4, 1, 5, 2, 6, 3, 7]
    for k in range(10):
        if k < 8: perm(SG + 4 * order[k] + 3, 3, 3, order[k])
        if k >= 2: pv(3, order[k - 2], SG + 4 * order[k - 2])
    assert all(n in signalled for n in tiles)
    stamp(6, VST)
    for e in range(4): a(f"ds_write_b128 v{VV}, {vr(ACC+4*e,4)} offset:{e*1024}")
    a("s_waitcnt lgkmcnt(0)")
    stamp(7, VST)
    a("s_barrier")
    n1 = max(0, len(lateq) - cfg.nl2)
    if cfg.thr >= 0:
        base = (list(issued), done[0], {k: (v[0], list(v[1])) for k, v in tiles.items()})
        for k, (name, i) in enumerate(lateq):
            wait_n(cfg.D3 - 1)
            L = a.newlabel("L_gw")
            a.label(L)
            a("s_sleep 1")
            a(f"ds_read_b64 {vr(DT,2)}, v{VCN} offset:{C_GO*4}\ns_waitcnt lgkmcnt(0)\nv_readfirstlane_b32 s5, v{DT}\nv_readfirstlane_b32 s6, v{DT+1}")
            a(f"s_cmp_ge_u32 s6, 4\ns_cbranch_scc1 L_fast{k}")
            budget_check()
            a(f"s_cmp_eq_u32 s5, 0\ns_cbranch_scc1 {L}")
            dma(name, i, 63)
        a("s_branch L_fastj")
        issued[:] = base[0]; done[0] = base[1]; tiles.clear(); tiles.update(base[2])
        for k, (name, i) in enumerate(lateq):
            a.label(f"L_fast{k}")
            dma(name, i, 63)
        a.label("L_fastj")
        lateq = []; n1 = 0
    for name, i in lateq[:n1]: dma(name, i, cfg.D3)
    gud = [False]
    def gu_done():
        if gud[0]: return
        gud[0] = True
        wait_id(max(k for k, nm in enumerate(issued) if nm in ("gate", "up")))
        lds_signal(C_GU, VCN, VONE)
        stamp(21, VST)
    n2 = len(lateq) - cfg.nl3
    assert n2 >= n1 and all(nm == "dn" for nm, _ in lateq[n2:])
    if lateq[n1:n2]:
        lds_wait(C_Y, 4, DT, VCN)
        for name, i in lateq[n1:n2]:
            if name == "dn" and i == cfg.gufirst - 1: gu_done()
            dma(name, i, cfg.D4)
    gu_done()
    if lateq[n2:]:
        lds_wait(C_B2, cfg.b2n, DT, VCN, sleep=0)
        for name, i in lateq[n2:]: dma(name, i, 63)
    a("s_waitcnt vmcnt(0)")
    if cfg.stamps:
        stamp(8, VST)
        a(f"s_lshl_b32 s5, s2, 11\ns_lshl_b32 s6, s3, 7\ns_add_u32 s5, s5, s6\ns_add_u32 s5, s5, 0x8000000\nv_lshlrev_b32 v2, 2, v1")
        a(f"s_mov_b32 exec_lo, -1\ns_mov_b32 exec_hi, 0\nbuffer_store_dword v{VST}, v2, {sr(R_WSS,4)}, s5 offen")
    a("s_endpgm")

    a.label("L_cwave")
    a("s_setprio 3")
    R_WS, R_DBG, R_X, R_C, R_OUT = 8, 12, 16, 20, 24
    srd_load(R_WS, 104); srd_load(R_X, 0); srd_load(R_C, 72); srd_load(R_OUT, 88)
    if cfg.stamps: a("s_memrealtime s[96:97]")
    WV = 28
    a(f"s_sub_u32 s{WV}, s3, 8")
    TID = 0
    a("v_subrev_u32 v0, 512, v0")
    VCN, VONE, VTR, VPUB, VACT, VA, VB, KEEP0, KEEP1, KEEP2, VST = 2, 3, 4, 5, 6, 7, 8, 9, 10, 11, 12
    TAG = 14
    VCHK, VACTL = 0, VACT
    WK = 16
    FWO, FG, FU, FD = 40, 72, 104, 136
    a(f"v_mov_b32 v{VCN}, {L_CNT}\nv_mov_b32 v{VONE}, 1\nv_mov_b32 v{WK}, 0")
    a(f"v_lshlrev_b32 v{WK+1}, 2, v1\nv_add_u32 v{WK+1}, {L_CNT}, v{WK+1}\nds_write_b32 v{WK+1}, v{WK}")
    srd_fin(R_WS, 0x10000000); srd_fin(R_X, 2048); srd_fin(R_C, 2048); srd_fin(R_OUT, 2048)
    SMY = 29
    a(f"s_mul_i32 s{SMY}, s2, {WS}")
    a("s_and_b32 s30, s2, 7\ns_lshr_b32 s31, s2, 3")
    for i in range(4): a(f"v_mov_b32 v{WK+4+i}, -1")
    for base in (L_H2V, L_HHV, L_OV): a(f"ds_write_b32 v{WK+1}, v{WK+4} offset:{base - L_CNT}")
    a(f"v_lshlrev_b32 v{VA}, 4, v0")
    a("s_waitcnt lgkmcnt(0)\ns_barrier")
    if cfg.stamps: a(f"v_mov_b32 v{VST}, 0\nv_writelane_b32 v{VST}, s96, 0")
    a(f"s_mov_b32 s5, {EPOCH}\nbuffer_load_dword v{TAG}, off, {sr(R_WS,4)}, s5 sc1")
    if "clear" in cfg.dbg_skip: a("s_branch L_clr_done")
    a(f"buffer_store_dwordx4 {vr(WK+4,4)}, v{VA}, {sr(R_WS,4)}, s{SMY} offen sc1")
    a(f"s_add_u32 s5, s{SMY}, 4096\nbuffer_store_dwordx4 {vr(WK+4,4)}, v{VA}, {sr(R_WS,4)}, s5 offen sc1")
    a(f"s_cmp_lg_u32 s{WV}, 0\ns_cbranch_scc1 L_clr_done")
    a(f"s_add_u32 s5, s{SMY}, 8192\nbuffer_store_dwordx4 {vr(WK+4,4)}, v{VA}, {sr(R_WS,4)}, s5 offen sc1")
    a.label("L_clr_done")
    XR = FU
    a(f"s_lshr_b32 s5, s2, 4\ns_lshl_b32 s5, s5, 7\nv_lshlrev_b32 v{VB}, 1, v1")
    a(f"buffer_load_ushort v{WK}, v{VB}, {sr(R_C,4)}, s5 offen")
    a(f"v_lshlrev_b32 v{WK+1}, 5, v1")
    a(f"buffer_load_dwordx4 {vr(XR,4)}, v{WK+1}, {sr(R_X,4)}, 0 offen\nbuffer_load_dwordx4 {vr(XR+4,4)}, v{WK+1}, {sr(R_X,4)}, 0 offen offset:16")
    a(f"s_lshl_b32 s32, s30, 7\ns_lshl_b32 s6, s{WV}, 5\ns_add_u32 s32, s32, s6")
    a(f"v_and_b32 v{WK+2}, 31, v1\nv_lshlrev_b32 v{WK+3}, 1, v{WK+2}\ns_lshl_b32 s5, s32, 1")
    a(f"buffer_load_ushort v{KEEP0}, v{WK+3}, {sr(R_X,4)}, s5 offen")
    a(f"v_lshrrev_b32 v{WK+8}, 4, v1\nv_and_b32 v{WK+9}, 15, v1")
    a(f"v_lshlrev_b32 v{VPUB}, 6, v{WK+9}\nv_lshl_add_u32 v{VPUB}, v{WK+8}, 4, v{VPUB}")
    a(f"v_lshlrev_b32 v{VACT}, 4, v{WK+8}")
    a(f"v_bfe_u32 v{WK+10}, v1, 2, 2\nv_lshl_add_u32 v{WK+11}, v{WK+8}, 3, v{WK+10}\nv_lshlrev_b32 v{VTR}, 8, v{WK+11}")
    a(f"v_and_b32 v{WK+12}, 3, v1\nv_lshl_add_u32 v{VTR}, v{WK+12}, 3, v{VTR}")
    a(f"v_and_b32 v{WK+12}, 1, v{WK+8}\nv_lshl_add_u32 v{WK+12}, v{WK+12}, 2, v{WK+10}\ns_lshl_b32 s5, s{WV}, 1\nv_xor_b32 v{WK+12}, s5, v{WK+12}\nv_lshl_add_u32 v{VTR}, v{WK+12}, 5, v{VTR}")
    a(f"s_mov_b32 s33, {f2u(LOG2E):#x}")
    a("s_waitcnt vmcnt(0)")
    lds_signal(C_CLR, VCN, VONE)
    lds_wait(C_CLR, 4, WK + 1, VCN, sleep=0)
    a(f"v_add_u32 v{TAG}, 1, v{TAG}")
    stamp(1, VST)
    c_ = WK
    lo2 = LOG2E - struct.unpack("<f", struct.pack("<f", LOG2E))[0]
    a(f"v_lshlrev_b32 v{c_}, 16, v{c_}")
    a(f"v_max_f32 v{WK+13}, {f2u(-87.0):#x}, v{c_}\nv_min_f32 v{WK+13}, {f2u(100.0):#x}, v{WK+13}")
    a(f"v_mul_f32 v{WK+1}, s33, v{WK+13}\nv_fma_f32 v{WK+2}, v{WK+13}, s33, -v{WK+1}\nv_mov_b32 v{WK+3}, {f2u(lo2):#x}\nv_fmac_f32 v{WK+2}, v{WK+13}, v{WK+3}")
    a(f"v_exp_f32 v{WK+1}, -v{WK+1}\nv_mul_f32 v{WK+2}, {f2u(-0.6931471805599453):#x}, v{WK+2}")
    a(f"v_fma_f32 v{WK+1}, v{WK+1}, v{WK+2}, v{WK+1}\nv_add_f32 v{WK+1}, 1.0, v{WK+1}")
    a(f"v_rcp_f32 v{WK+2}, v{WK+1}\nv_mul_f32 v{WK+3}, v{c_}, v{WK+2}\nv_fma_f32 v{WK+13}, -v{WK+3}, v{WK+1}, v{c_}\nv_fmac_f32 v{WK+3}, v{WK+13}, v{WK+2}")
    rnd(WK + 3, WK + 3)
    a(f"s_lshl_b32 s5, s{WV}, 7\ns_add_u32 s5, s5, {L_SIL}\nv_add_u32 v{WK+1}, s5, v{VB}\nds_write_b16_d16_hi v{WK+1}, v{WK+3}")
    ACT = WK + 8
    a(f"v_add_u32 v{WK+1}, s5, v{VACT}\ns_waitcnt lgkmcnt(0)\nds_read_b128 {vr(ACT,4)}, v{WK+1}\nds_read_b128 {vr(ACT+4,4)}, v{WK+1} offset:64")

    def ln_stats(X, mean_b, rden, t0):
        assert t0 % 2 == 0 and X % 2 == 0
        p1, p2, u1, u2 = t0, t0 + 2, t0 + 4, t0 + 5
        a(f"v_readfirstlane_b32 s90, v{X}\ns_mov_b32 s91, s90")
        for i in range(0, 16, 2): a(f"v_pk_add_f32 {vr(X+i,2)}, {vr(X+i,2)}, s[90:91] neg_lo:[0,1] neg_hi:[0,1]")
        a(f"v_pk_mul_f32 {vr(p2,2)}, {vr(X,2)}, {vr(X,2)}\nv_pk_add_f32 {vr(p1,2)}, {vr(X,2)}, {vr(X+2,2)}")
        a(f"v_pk_fma_f32 {vr(p2,2)}, {vr(X+2,2)}, {vr(X+2,2)}, {vr(p2,2)}")
        for i in range(4, 16, 2):
            a(f"v_pk_add_f32 {vr(p1,2)}, {vr(p1,2)}, {vr(X+i,2)}\nv_pk_fma_f32 {vr(p2,2)}, {vr(X+i,2)}, {vr(X+i,2)}, {vr(p2,2)}")
        a(f"v_add_f32 v{p1}, v{p1}, v{p1+1}\nv_add_f32 v{p2}, v{p2}, v{p2+1}")
        a(f"v_permlane32_swap_b32 v{p1}, v{p2}\nv_add_f32 v{p1}, v{p1}, v{p2}")
        xreduce("v_add_f32", p1, u1, (16, 8, 4, 2, 1))
        a(f"v_mul_f32 v{p1}, {f2u(1.0/1024):#x}, v{p1}\nv_mov_b32 v{p2}, v{p1}\nv_permlane32_swap_b32 v{p1}, v{p2}")
        a(f"v_fma_f32 v{p2}, -v{p1}, v{p1}, v{p2}\nv_add_f32 v{p1}, s90, v{p1}\nv_max_f32 v{p2}, 0, v{p2}")
        rnd(p2, p2); rnd(mean_b, p1)
        a(f"v_add_f32 v{p2}, {f2u(1e-5):#x}, v{p2}"); rnd(p2, p2)
        a(f"v_sqrt_f32 v{p2}, v{p2}"); rnd(p2, p2)
        a(f"v_rcp_f32 v{rden}, v{p2}")
    def ln_apply(x, mean_b, rden):
        a(f"v_sub_f32 v{x}, v{x}, v{mean_b}"); rnd(x, x)
        a(f"v_mul_f32 v{x}, v{x}, v{rden}"); rnd(x, x)
    XU = XR + 8
    for i in range(8):
        a(f"v_lshlrev_b32 v{XU+2*i}, 16, v{XR+i}\nv_and_b32 v{XU+2*i+1}, 0xffff0000, v{XR+i}")
    ln_stats(XU, WK, WK + 1, WK + 2)
    a(f"v_lshlrev_b32 v{KEEP0}, 16, v{KEEP0}")
    ln_apply(KEEP0, WK, WK + 1)

    def tr_read(dst, vaddr, base, ncg, nkk, rs, kstep=32, cgstep=32):
        for cg in range(ncg):
            for kk in range(nkk):
                for q in range(2):
                    off = base + cg * cgstep + (kstep * kk + 4 * q) * rs
                    assert off < 65536
                    a(f"ds_read_b64_tr_b16 {vr(dst + (cg*nkk+kk)*4 + 2*q, 2)}, v{vaddr} offset:{off}")
    def tr_tile(dst, base, nkk, t0):
        a(f"v_add_u32 v{t0}, {base}, v{VTR}\nv_xor_b32 v{t0+1}, 32, v{t0}")
        tr_read(dst, t0, 0, 1, nkk, 256); tr_read(dst + 4 * nkk, t0 + 1, 0, 1, nkk, 256)
    MASKC = [0x0001000100010001 << i for i in range(4)]
    def gemv(frs, nkk, act, dacc, select=True):
        for kk in range(nkk):
            for cg, f in enumerate(frs):
                c = "0" if kk == 0 else vr(dacc + 4 * cg, 4)
                a(f"v_mfma_f32_16x16x32_bf16 {vr(dacc+4*cg,4)}, {vr(f+4*kk,4)}, {vr(act+4*kk,4)}, {c}")
        for cg in range(1, len(frs) if select else 0):
            m = MASKC[cg]
            a(f"s_mov_b32 exec_lo, {m & 0xffffffff:#x}\ns_mov_b32 exec_hi, {m >> 32:#x}")
            for i in range(4): a(f"v_mov_b32 v{dacc+i}, v{dacc+4*cg+i}")
    def publish(dacc, ncg, off):
        m = sum(MASKC[:ncg])
        a(f"s_mov_b32 exec_lo, {m & 0xffffffff:#x}\ns_mov_b32 exec_hi, {m >> 32:#x}")
        a(f"s_mul_i32 s5, s{WV}, {ncg*64}\ns_add_u32 s5, s5, s{SMY}\ns_add_u32 s5, s5, {off}")
        a(f"buffer_store_dwordx4 {vr(dacc,4)}, v{VPUB}, {sr(R_WS,4)}, s5 offen sc1\ns_mov_b64 exec, -1")
    def gather(loads, t0, tags=None, sleep=0, name="", masked=True, between=None, on_fail=None):
        if name and name in cfg.dbg_skip.split(","): return
        L = a.newlabel("L_g"); Ld = a.newlabel("L_gd"); Lc = a.newlabel("L_gc")
        PM = 40
        def ld(dst, wd, va, so):
            if so: a(f"s_mov_b32 s5, {so}")
            a(f"buffer_load_dword{'' if wd == 1 else 'x'+str(wd)} {vr(dst,wd)}, v{va}, {sr(R_WS,4)}, {'s5' if so else '0'} offen sc1")
        def maxtree(regs_):
            if len(regs_) == 1: return regs_[0]
            if len(regs_) == 2: a(f"v_max_u32 v{t0}, v{regs_[0]}, v{regs_[1]}"); return t0
            a(f"v_max3_u32 v{t0}, v{regs_[0]}, v{regs_[1]}, v{regs_[2]}")
            rest = regs_[3:]
            while rest:
                if len(rest) >= 2: a(f"v_max3_u32 v{t0}, v{t0}, v{rest[0]}, v{rest[1]}"); rest = rest[2:]
                else: a(f"v_max_u32 v{t0}, v{t0}, v{rest[0]}"); rest = []
            return t0
        if not masked: a.label(L)
        for (dst, wd, va, so, em) in loads:
            if em is not None: a(f"s_mov_b32 exec_lo, {em & 0xffffffff:#x}\ns_mov_b32 exec_hi, {em >> 32:#x}")
            ld(dst, wd, va, so)
            if em is not None: a("s_mov_b64 exec, -1")
        if between: between()
        if not masked: budget_check()
        a("s_waitcnt vmcnt(0)")
        if tags is None:
            r_ = maxtree([x for (dst, wd, _, _, _) in loads for x in range(dst, dst + wd)])
            if not masked:
                a(f"v_cmp_eq_u32 vcc, -1, v{r_}\ns_cbranch_vccnz {L}")
                return
            a(f"v_cmp_eq_u32 vcc, -1, v{r_}\ns_cbranch_vccz {Ld}")
        a(f"s_branch {Lc}")
        a.label(L)
        if on_fail: on_fail()
        if sleep: a(f"s_sleep {sleep}")
        budget_check()
        for i, (dst, wd, va, so, em) in enumerate(loads):
            sk = a.newlabel("L_gs")
            a(f"s_mov_b64 exec, {sr(PM+2*i,2)}\ns_cbranch_execz {sk}")
            ld(dst, wd, va, so)
            a.label(sk)
        a("s_mov_b64 exec, -1\ns_waitcnt vmcnt(0)")
        a.label(Lc)
        for i, (dst, wd, va, so, em) in enumerate(loads):
            if tags is None:
                r_ = maxtree(list(range(dst, dst + wd)))
                a(f"v_cmp_eq_u32 {sr(PM+2*i,2)}, -1, v{r_}")
            else:
                a(f"v_cmp_ne_u32 {sr(PM+2*i,2)}, v{tags[i]}, v{TAG}")
        a(f"s_mov_b64 s[6:7], {sr(PM,2)}")
        for i in range(1, len(loads)): a(f"s_or_b64 s[6:7], s[6:7], {sr(PM+2*i,2)}")
        a(f"s_cmp_lg_u64 s[6:7], 0\ns_cbranch_scc1 {L}")
        a.label(Ld)
    def tree_sum(base, n, stride=1):
        idx = [base + i * stride for i in range(n)]
        while len(idx) > 1:
            nx = []
            for i in range(0, len(idx) - 1, 2):
                a(f"v_add_f32 v{idx[i]}, v{idx[i]}, v{idx[i+1]}"); nx.append(idx[i])
            if len(idx) & 1: nx.append(idx[-1])
            idx = nx
    def pk_sum4(base, n):
        idx = [base + 4 * i for i in range(n)]
        while len(idx) > 1:
            nx = []
            for i in range(0, len(idx) - 1, 2):
                for h in (0, 2): a(f"v_pk_add_f32 {vr(idx[i]+h,2)}, {vr(idx[i]+h,2)}, {vr(idx[i+1]+h,2)}")
                nx.append(idx[i])
            if len(idx) & 1: nx.append(idx[-1])
            idx = nx
    def col_reduce(b):
        a(f"v_permlane32_swap_b32 v{b}, v{b+1}\nv_permlane32_swap_b32 v{b+2}, v{b+3}\nv_add_f32 v{b}, v{b}, v{b+1}\nv_add_f32 v{b+2}, v{b+2}, v{b+3}")
        a(f"v_permlane16_swap_b32 v{b}, v{b+2}\nv_add_f32 v{b}, v{b}, v{b+2}\nv_add_f32_dpp v{b}, v{b}, v{b} row_ror:8 row_mask:0xf bank_mask:0xf")
    def xch_read(lbase, nkk, t0):
        L = a.newlabel("L_x"); Ld = a.newlabel("L_xd")
        a.label(L)
        a(f"ds_read_b32 v{t0}, v{VCHK} offset:{lbase - L_MISC}")
        for kk in range(nkk): a(f"ds_read_b128 {vr(ACT+4*kk,4)}, v{VACTL} offset:{lbase - L_MISC + kk*64}")
        a(f"s_waitcnt lgkmcnt({nkk})")
        a(f"v_cmp_eq_u16 vcc, -1, v{t0}\nv_cmp_le_u32 s[6:7], s38, v{t0}\ns_or_b64 s[6:7], s[6:7], vcc")
        if nkk == 2: a("s_cmp_lg_u32 s6, 0")
        a(f"s_cbranch_scc0 {Ld}")
        budget_check()
        a(f"s_branch {L}")
        a.label(Ld)
        a("s_waitcnt lgkmcnt(0)")
    def gemv_pub(frs, nkk, act, dacc, off):
        n = len(frs)
        a(f"s_mul_i32 s5, s{WV}, {n*64}\ns_add_u32 s5, s5, s{SMY}\ns_add_u32 s5, s5, {off}")
        for cg, f in enumerate(frs):
            for kk in range(nkk):
                c = "0" if kk == 0 else vr(dacc + 4 * cg, 4)
                a(f"v_mfma_f32_16x16x32_bf16 {vr(dacc+4*cg,4)}, {vr(f+4*kk,4)}, {vr(act+4*kk,4)}, {c}")
        if cfg.sel:
            for cg in range(1, n):
                m = MASKC[cg]
                a(f"s_mov_b32 exec_lo, {m & 0xffffffff:#x}\ns_mov_b32 exec_hi, {m >> 32:#x}")
                for i in (0, 2): a(f"v_pk_mov_b32 {vr(dacc+i,2)}, {vr(dacc+4*cg+i,2)}, {vr(dacc+4*cg+i,2)} op_sel:[0,1]")
            m = sum(MASKC[:n])
            a(f"s_mov_b32 exec_lo, {m & 0xffffffff:#x}\ns_mov_b32 exec_hi, {m >> 32:#x}")
            a(f"buffer_store_dwordx4 {vr(dacc,4)}, v{VPUB}, {sr(R_WS,4)}, s5 offen sc1")
        else:
            m = MASKC[0]
            a(f"s_mov_b32 exec_lo, {m & 0xffffffff:#x}\ns_mov_b32 exec_hi, {m >> 32:#x}")
            for cg in range(n): a(f"buffer_store_dwordx4 {vr(dacc+4*cg,4)}, v{VPUB}, {sr(R_WS,4)}, s5 offen offset:{cg*64} sc1")
        a("s_mov_b64 exec, -1")
    DACC = WK
    def mod_tile(t, cnt):
        lds_wait(cnt, 8, WK, VCN)
        tr_tile(FU, L_MOD + t * 16384, 2, WK + 4)
        a("s_waitcnt lgkmcnt(0)")
        if t:
            gemv([FU, FU + 8], 2, ACT, DACC)
            publish(DACC, 2, MODP + t * 512)
            return
        gemv([FU, FU + 8], 2, ACT, DACC, select=False)
        o = FU + 16
        a(f"v_mov_b32 v{o+1}, v{TAG}\nv_mov_b32 v{o+3}, v{TAG}")
        a(f"v_and_b32 v{o+4}, 2, v1\nv_lshlrev_b32 v{o+4}, 6, v{o+4}\nv_lshl_add_u32 v{o+4}, v{VACT}, 1, v{o+4}\nv_and_b32 v{o+5}, 1, v1\nv_lshl_add_u32 v{o+4}, v{o+5}, 4, v{o+4}")
        for c in range(4):
            m = MASKC[c]
            a(f"s_mov_b32 exec_lo, {m & 0xffffffff:#x}\ns_mov_b32 exec_hi, {m >> 32:#x}")
            a(f"v_mov_b32 v{o}, v{DACC+2*c}\nv_mov_b32 v{o+2}, v{DACC+2*c+1}")
        m = sum(MASKC)
        a(f"s_mov_b32 exec_lo, {m & 0xffffffff:#x}\ns_mov_b32 exec_hi, {m >> 32:#x}")
        a(f"s_lshl_b32 s5, s{WV}, 8\ns_add_u32 s5, s5, s{SMY}\ns_add_u32 s5, s5, {HP}")
        a(f"buffer_store_dwordx4 {vr(o,4)}, v{o+4}, {sr(R_WS,4)}, s5 offen sc1\ns_mov_b64 exec, -1")
    mod_tile(0, C_CRIT)
    stamp(2, VST)
    def pair_addr(dst, cb_lo_s, cb_hi_s, off_lo, off_hi, colbase_s, sh=2):
        a(f"s_mul_i32 s5, {cb_lo_s}, {WS}\ns_add_u32 s5, s5, {off_lo}\ns_mul_i32 s6, {cb_hi_s}, {WS}\ns_add_u32 s6, s6, {off_hi}")
        a(f"s_lshl_b32 s7, {colbase_s}, {sh}\ns_add_u32 s5, s5, s7\ns_add_u32 s6, s6, s7")
        a(f"v_mov_b32 v{dst}, s5\ns_mov_b32 exec_lo, 0\nv_mov_b32 v{dst}, s6\ns_mov_b32 exec_lo, -1")
        a(f"v_and_b32 v{WK}, 31, v1\nv_lshl_add_u32 v{dst}, v{WK}, {sh}, v{dst}")
    a(f"s_add_u32 s34, s30, 8\ns_lshl_b32 s35, s{WV}, 5")
    pair_addr(VA, "s30", "s34", HP, HP, "s35", sh=3)
    a(f"s_and_b32 s5, s2, 3\ns_lshl_b32 s5, s5, 6\ns_lshl_b32 s6, s{WV}, 4\ns_add_u32 s5, s5, s6\nv_and_b32 v{WK}, 15, v1\nv_add_u32 v{WK}, s5, v{WK}")
    a(f"s_mov_b32 s6, {WS}\nv_mul_lo_u32 v15, v{WK}, s6\nv_add_u32 v15, {HP + 4}, v15")
    def gather16(dst, va): gather([(dst + i, 1, va, i * 16 * WS, None) for i in range(16)], WK, name='rest')
    def split_pair(v, t):
        a(f"v_mov_b32 v{t}, v{v}\nv_permlane32_swap_b32 v{v}, v{t}")
    def modulate(x, shift, scale):
        a(f"v_mul_f32 v{x}, v{x}, v{scale}"); rnd(x, x)
        a(f"v_add_f32 v{x}, v{x}, v{shift}"); rnd(x, x)
    lds_wait(C_WQ, 8, WK + 4, VCN)
    tr_tile(FD, L_WQ, 4, WK + 4)
    mod_tile(1, C_MOD1)
    mod_tile(2, C_MOD2)
    stamp(3, VST)
    if cfg.p1 >= 0: lds_wait(C_P1, 8, WK + 4, VCN)
    stamp(4, VST)
    gather([(FU + 2 * i, 2, VA, i * 16 * WS, None) for i in range(16)] + [(WK + 1, 1, 15, 0, None)], WK,
           tags=[FU + 2 * i + 1 for i in range(16)] + [WK + 1], sleep=cfg.psleep, name='h1')
    stamp(5, VST)
    tree_sum(FU, 16, 2); rnd(FU, FU); split_pair(FU, FU + 1)
    a(f"v_add_f32 v{FU+1}, 1.0, v{FU+1}"); rnd(FU + 1, FU + 1)
    modulate(KEEP0, FU, FU + 1)
    def vec_write(x, lbase):
        a(f"s_lshl_b32 s5, s{WV}, 6\ns_add_u32 s5, s5, {lbase}\nv_add_u32 v{WK}, s5, v{VB}")
        a(f"s_mov_b32 exec_hi, 0\nds_write_b16_d16_hi v{WK}, v{x}\ns_mov_b32 exec_hi, -1\ns_waitcnt lgkmcnt(0)")
    def act_read(lbase):
        a(f"v_add_u32 v{WK}, {lbase}, v{VACT}")
        for kk in range(4): a(f"ds_read_b128 {vr(ACT+4*kk,4)}, v{WK} offset:{kk*64}")
        a("s_waitcnt lgkmcnt(0)")
    vec_write(KEEP0, L_HV)
    lds_signal(C_H, VCN, VONE)
    lds_wait(C_H, 4, WK, VCN, sleep=0)
    act_read(L_HV)
    gemv([FD, FD + 16], 4, ACT, DACC)
    publish(DACC, 2, QP)
    stamp(6, VST)
    a(f"s_and_b32 s5, s2, 3\ns_lshl_b32 s5, s5, 3\nv_lshrrev_b32 v{WK+4}, 5, v0\nv_add_u32 v{WK+4}, s5, v{WK+4}\ns_mov_b32 s6, {8*WS}\nv_mul_lo_u32 v{VA}, v{WK+4}, s6")
    a(f"v_and_b32 v{WK+4}, 31, v0\nv_lshl_add_u32 v{VA}, v{WK+4}, 4, v{VA}\nv_add_u32 v{VA}, {QP}, v{VA}")
    if cfg.p2 >= 0: lds_wait(C_P2, 8, WK + 4, VCN)
    stamp(20, VST)
    gather([(FU + 4 * i, 4, VA, i * WS, None) for i in range(8)], WK, sleep=cfg.psleep, name='h2')
    stamp(7, VST)
    for e in range(4): tree_sum(FU + e, 8, 4)
    a(f"v_cvt_pk_bf16_f32 v{WK}, v{FU}, v{FU+1}\nv_cvt_pk_bf16_f32 v{WK+1}, v{FU+2}, v{FU+3}")
    a(f"v_lshlrev_b32 v{WK+2}, 3, v0\nv_add_u32 v{WK+2}, {L_QV}, v{WK+2}\nds_write_b64 v{WK+2}, {vr(WK,2)}\ns_waitcnt lgkmcnt(0)")
    lds_signal(C_Q, VCN, VONE)
    a(f"s_add_u32 s5, s2, s{WV}\ns_cmp_lg_u32 s5, 0\ns_cbranch_scc1 L_ep_done")
    a(f"s_mov_b32 s5, {EPOCH}\ns_mov_b64 exec, 1\nbuffer_store_dword v{TAG}, off, {sr(R_WS,4)}, s5 sc1\ns_mov_b64 exec, -1")
    a.label("L_ep_done")
    a(f"s_cmp_lg_u32 s{WV}, 0\ns_cbranch_scc1 L_ml_pub")
    if cfg.rank:
        a(f"s_and_b32 s5, s31, 7\ns_mul_i32 s5, s5, {WS}\ns_add_u32 s5, s5, {TKT}\nv_mov_b32 v{WK+7}, 1\ns_mov_b64 exec, 1")
        a(f"buffer_atomic_add v{WK+7}, off, {sr(R_WS,4)}, s5 sc0 sc1")
        a(f"s_waitcnt vmcnt(0)\nv_add_u32 v{WK+7}, 1, v{WK+7}\nv_lshrrev_b32 v{WK+7}, 3, v{WK+7}\nv_add_u32 v{WK+7}, 1, v{WK+7}")
        a(f"ds_write_b32 v{VCN}, v{WK+7} offset:{C_RK*4}\ns_mov_b64 exec, -1")
    lds_wait(C_ML, 8, WK, VCN, sleep=2)
    stamp(9, VST)
    a(f"v_lshlrev_b32 v{WK+2}, 3, v1\nv_add_u32 v{WK+3}, {L_MLW}, v{WK+2}\nds_read_b64 {vr(WK,2)}, v{WK+3}\ns_waitcnt lgkmcnt(0)")
    a(f"v_mov_b32 v{WK+4}, v{WK}")
    xreduce("v_max_f32", WK + 4, WK + 6, (8, 16, 32))
    a(f"v_sub_f32 v{WK}, v{WK}, v{WK+4}\nv_mul_f32 v{WK}, s33, v{WK}\nv_exp_f32 v{WK}, v{WK}\nv_mul_f32 v{WK+5}, v{WK}, v{WK+1}")
    xreduce("v_add_f32", WK + 5, WK + 6, (8, 16, 32))
    a(f"s_add_u32 s5, s{SMY}, {MLP}\ns_mov_b64 exec, 0xff\nbuffer_store_dwordx2 {vr(WK+4,2)}, v{WK+2}, {sr(R_WS,4)}, s5 offen sc1\ns_mov_b64 exec, -1")
    a.label("L_ml_pub")
    lds_wait(C_WO, 8, WK + 6, VCN)
    a(f"v_lshrrev_b32 v{WK+6}, 4, v1\nv_bfe_u32 v{WK+7}, v1, 2, 2\nv_lshl_add_u32 v{WK+6}, v{WK+6}, 3, v{WK+7}\nv_lshlrev_b32 v{WK+6}, 9, v{WK+6}")
    a(f"v_and_b32 v{WK+7}, 3, v1\nv_lshl_add_u32 v{WK+6}, v{WK+7}, 3, v{WK+6}\ns_lshl_b32 s5, s{WV}, 7\ns_add_u32 s5, s5, {L_WO}\nv_add_u32 v{WK+6}, s5, v{WK+6}")
    tr_read(FWO, WK + 6, 0, 4, 2, 512)
    a("s_waitcnt lgkmcnt(0)")
    a("s_cmp_ge_u32 s2, 224\ns_cbranch_scc1 L_red_mod")
    pair_addr(VA, "s34", "s30", MODP + 512, MODP + 1024, "s35")
    gather16(FU, VA)
    tree_sum(FU, 16); rnd(KEEP0, FU); split_pair(KEEP0, KEEP1)
    a(f"v_add_f32 v{KEEP1}, 1.0, v{KEEP1}"); rnd(KEEP1, KEEP1)
    a("s_branch L_mod_done")
    a.label("L_red_mod")
    COL = 13
    a(f"s_sub_u32 s36, s2, 224")
    a(f"v_and_b32 v{COL}, 7, v1\nv_lshlrev_b32 v{COL}, 2, v{COL}\nv_bfe_u32 v{WK}, v1, 4, 1\nv_lshl_add_u32 v{COL}, v{WK}, 1, v{COL}\nv_lshrrev_b32 v{WK}, 5, v1\nv_add_u32 v{COL}, v{COL}, v{WK}")
    a(f"s_lshr_b32 s5, s36, 2\ns_mul_i32 s5, s5, {WS}\ns_and_b32 s6, s36, 3\ns_lshl_b32 s6, s6, 7\ns_add_u32 s5, s5, s6\ns_add_u32 s5, s5, {MODP+512}")
    a(f"v_lshlrev_b32 v{VA}, 2, v{COL}\nv_add_u32 v{VA}, s5, v{VA}")
    a(f"s_cmp_lg_u32 s{WV}, 0\ns_cbranch_scc1 L_mod_done")
    a(f"v_add_u32 v{WK+1}, {8*WS + 512}, v{VA}")
    a(f"v_lshlrev_b32 v{WK}, 1, v{COL}\ns_lshl_b32 s5, s36, 6\nbuffer_load_ushort v{KEEP2}, v{WK}, {sr(R_X,4)}, s5 offen")
    for i in range(16):
        a(f"s_mov_b32 s5, {i*16*WS}\nbuffer_load_dword v{FU+16+i}, v{WK+1}, {sr(R_WS,4)}, s5 offen sc1")
    gather16(FU, VA)
    tree_sum(FU, 16); rnd(KEEP0, FU)
    a(f"v_max3_u32 v{WK}, v{FU+16}, v{FU+17}, v{FU+18}")
    for i in range(19, 31, 2): a(f"v_max3_u32 v{WK}, v{WK}, v{FU+i}, v{FU+i+1}")
    a(f"v_max_u32 v{WK}, v{WK}, v{FU+31}\nv_cmp_eq_u32 vcc, -1, v{WK}\ns_cbranch_vccz L_gb_ok")
    gather16(FU + 16, WK + 1)
    a.label("L_gb_ok")
    tree_sum(FU + 16, 16); rnd(KEEP1, FU + 16)
    a(f"v_lshlrev_b32 v{KEEP2}, 16, v{KEEP2}")
    a.label("L_mod_done")
    stamp(8, VST)
    a(f"s_cmp_lg_u32 s{WV}, 0\ns_cbranch_scc1 L_ml_done")
    a(f"v_lshlrev_b32 v{WK+2}, 3, v1")
    a(f"v_lshrrev_b32 v{WK}, 3, v1\nv_lshlrev_b32 v{WK}, 2, v{WK}\ns_and_b32 s5, s2, 3\nv_add_u32 v{WK}, s5, v{WK}\ns_mov_b32 s6, {WS}\nv_mul_lo_u32 v{VA}, v{WK}, s6")
    a(f"v_and_b32 v{WK}, 7, v1\nv_lshl_add_u32 v{VA}, v{WK}, 3, v{VA}\nv_add_u32 v{VA}, {MLP}, v{VA}")
    if cfg.p3 >= 0: lds_wait(C_P3, 8, WK, VCN)
    stamp(21, VST)
    gather([(FU + 2 * i, 2, VA, i * 32 * WS, None) for i in range(8)], WK, sleep=cfg.psleep, name='ml')
    a(f"v_max3_f32 v{WK+4}, v{FU}, v{FU+2}, v{FU+4}\nv_max3_f32 v{WK+4}, v{WK+4}, v{FU+6}, v{FU+8}\nv_max3_f32 v{WK+4}, v{WK+4}, v{FU+10}, v{FU+12}\nv_max_f32 v{WK+4}, v{WK+4}, v{FU+14}")
    xreduce("v_max_f32", WK + 4, WK + 6, (8, 16, 32))
    for i in range(8):
        a(f"v_sub_f32 v{FU+2*i}, v{FU+2*i}, v{WK+4}\nv_mul_f32 v{FU+2*i}, s33, v{FU+2*i}\nv_exp_f32 v{FU+2*i}, v{FU+2*i}")
    for i in range(8): a(f"v_mul_f32 v{FU+2*i}, v{FU+2*i}, v{FU+2*i+1}")
    tree_sum(FU, 8, 2)
    xreduce("v_add_f32", FU, WK + 6, (8, 16, 32))
    a(f"v_rcp_f32 v{WK+5}, v{FU}")
    a(f"v_add_u32 v{WK+3}, {L_MLF}, v{WK+2}\ns_mov_b64 exec, 0xff\nds_write_b64 v{WK+3}, {vr(WK+4,2)}\ns_waitcnt lgkmcnt(0)")
    stamp(10, VST)
    a.label("L_ml_done")
    lds_signal(C_MLD, VCN, VONE)
    late = lst(cfg.late)
    def ffn_frags(name):
        base, dst = {"gate": (L_GATE, FG), "up": (L_UP, FU), "dn": (L_DN, FD)}[name]
        tr_tile(dst, base, 4, WK)
    for name, cnt in (("gate", C_GATE), ("up", C_UP)):
        if name not in late:
            lds_wait(cnt, 8, WK, VCN, sleep=4)
            ffn_frags(name)
    TA, TB, VXW = 14, 15, WK + 7
    a(f"v_lshrrev_b32 v{WK}, 4, v1\nv_and_b32 v{WK+1}, 15, v1\nv_lshlrev_b32 v{VA}, 10, v{WK}\nv_lshl_add_u32 v{VA}, v{WK+1}, 4, v{VA}")
    a(f"s_lshl_b32 s5, s{WV}, 8\ns_add_u32 s5, s5, {L_OS}\nv_add_u32 v{VA}, s5, v{VA}")
    a(f"v_and_b32 v{TA}, 7, v1\nv_lshlrev_b32 v{TA}, 9, v{TA}\nv_lshl_add_u32 v{TA}, v{WK}, 4, v{TA}\nv_and_b32 v{WK+2}, 8, v1\nv_lshl_add_u32 v{TA}, v{WK+2}, 3, v{TA}")
    a(f"s_lshl_b32 s37, s{WV}, 7\ns_add_u32 s37, s37, s{SMY}")
    a(f"s_lshr_b32 s5, s2, 6\nv_and_b32 v{WK+2}, 60, v1\nv_add_u32 v{WK+2}, s5, v{WK+2}\ns_mov_b32 s6, {WS}\nv_mul_lo_u32 v{TB}, v{WK+2}, s6")
    a(f"s_lshr_b32 s5, s2, 5\ns_and_b32 s5, s5, 1\ns_lshl_b32 s5, s5, 3\ns_add_u32 s5, s5, s30\ns_lshl_b32 s5, s5, 8\ns_lshl_b32 s6, s{WV}, 6\ns_add_u32 s5, s5, s6")
    a(f"v_and_b32 v{WK+2}, 3, v1\nv_lshl_add_u32 v{TB}, v{WK+2}, 4, v{TB}\nv_add_u32 v{TB}, s5, v{TB}")
    a(f"v_bfe_u32 v{WK+3}, v1, 4, 1\nv_lshl_add_u32 v{WK+2}, v{WK+3}, 4, v{WK+2}\nv_lshrrev_b32 v{WK+3}, 5, v1\nv_lshl_add_u32 v{WK+2}, v{WK+3}, 3, v{WK+2}")
    a(f"s_lshr_b32 s5, s{WV}, 1\ns_lshl_b32 s5, s5, 6\ns_and_b32 s6, s{WV}, 1\ns_lshl_b32 s6, s6, 3\ns_add_u32 s5, s5, s6\ns_add_u32 s5, s5, {L_OV}")
    a(f"v_lshlrev_b32 v{VXW}, 1, v{WK+2}\nv_add_u32 v{VXW}, s5, v{VXW}")
    a(f"v_lshlrev_b32 v{VCHK}, 2, v1\nv_add_u32 v{VCHK}, {L_MISC}, v{VCHK}\nv_add_u32 v{VACTL}, {L_MISC}, v{VACT}\ns_mov_b32 s38, 0xffff0000")
    a(f"v_and_b32 v{VB}, 31, v1\nv_lshlrev_b32 v{VB}, 1, v{VB}\ns_lshl_b32 s5, s{WV}, 6\ns_add_u32 s5, s5, {L_MISC}\nv_add_u32 v{VB}, s5, v{VB}")
    a("s_waitcnt lgkmcnt(0)")
    stamp(11, VST)
    a("s_barrier")
    stamp(12, VST)
    for s in range(8): a(f"ds_read_b128 {vr(FD+4*s,4)}, v{VA} offset:{s*4096}")
    a("s_waitcnt lgkmcnt(4)"); pk_sum4(FD, 4)
    a("s_waitcnt lgkmcnt(0)"); pk_sum4(FD + 16, 4)
    a(f"v_pk_add_f32 {vr(FD,2)}, {vr(FD,2)}, {vr(FD+16,2)}\nv_pk_add_f32 {vr(FD+2,2)}, {vr(FD+2,2)}, {vr(FD+18,2)}")
    a(f"buffer_store_dwordx4 {vr(FD,4)}, v{TA}, {sr(R_WS,4)}, s37 offen sc1")
    if cfg.ackA: a("s_waitcnt vmcnt(0)")
    stamp(13, VST)
    def go_flag():
        sk = a.newlabel("L_go")
        a(f"s_cmp_lg_u32 s{WV}, 0\ns_cbranch_scc1 {sk}")
        a("s_bcnt1_i32_b64 s5, s[40:41]\ns_bcnt1_i32_b64 s6, s[42:43]\ns_add_u32 s5, s5, s6\ns_bcnt1_i32_b64 s6, s[44:45]\ns_add_u32 s5, s5, s6\ns_bcnt1_i32_b64 s6, s[46:47]\ns_add_u32 s5, s5, s6")
        a(f"s_cmp_gt_u32 s5, {4*cfg.thr}\ns_cselect_b32 s5, 4, 0\nv_mov_b32 v{WK+1}, s5\ns_mov_b64 exec, 1\nds_write_b32 v{VCN}, v{WK+1} offset:{C_GO*4}")
        a.label(sk)
    gather([(FD + 16 + 4 * i, 4, TB, i * 64 * WS, None) for i in range(4)], WK, on_fail=go_flag if cfg.thr >= 0 else None)
    stamp(14, VST)
    pk_sum4(FD + 16, 4)
    col_reduce(FD + 16)
    a(f"v_add_f32_dpp v{FD+16}, v{FD+16}, v{FD+16} row_ror:4 row_mask:0xf bank_mask:0xf")
    rnd(FD + 16, FD + 16)
    a(f"ds_write_b16_d16_hi v{VXW}, v{FD+16}")
    xch_read(L_OV, 2, WK)
    gemv_pub([FWO, FWO + 8, FWO + 16, FWO + 24], 2, ACT, FD, YP)
    lds_signal(C_Y2 if cfg.thr >= 0 else C_Y, VCN, VONE)
    stamp(15, VST)
    a("s_cmp_ge_u32 s2, 224\ns_cbranch_scc1 L_reducer")
    a(f"v_lshrrev_b32 v{WK}, 3, v1\ns_mov_b32 s6, {WS}\nv_mul_lo_u32 v{TA}, v{WK}, s6\nv_and_b32 v{WK}, 7, v1\nv_lshl_add_u32 v{TA}, v{WK}, 4, v{TA}\nv_add_u32 v{TA}, {224*WS + X2P}, v{TA}")
    a(f"s_lshl_b32 s5, s30, 2\ns_add_u32 s5, s5, s{WV}\ns_mul_i32 s5, s5, {WS}\ns_add_u32 s5, s5, {224*WS + X2P}\nv_and_b32 v{WK}, 31, v1\nv_lshlrev_b32 v{TB}, 2, v{WK}\nv_add_u32 v{TB}, s5, v{TB}")
    a(f"s_and_b32 s5, s2, 0xf8\ns_mul_i32 s5, s5, {WS}\ns_lshl_b32 s6, s{WV}, 8\ns_add_u32 s5, s5, s6\ns_add_u32 s5, s5, {GUP}\nv_lshlrev_b32 v{VA}, 2, v1\nv_add_u32 v{VA}, s5, v{VA}")
    def frags():
        for name in ("gate", "up"):
            if name in late: ffn_frags(name)
    b2 = [(FWO + 4 * i, 4, TA, i * 8 * WS, None) for i in range(4)] + [(FWO + 16, 1, TB, 0, None)]
    if cfg.b2mode == 0:
        lds_wait(C_GU, 8, WK, VCN, sleep=0)
        stamp(22, VST)
        gather(b2, WK + 2, between=frags)
    else:
        a("s_waitcnt vmcnt(0)")
        if cfg.b2mode == 2: gather(b2[4:], WK + 2, masked=False)
        gather(b2 if cfg.b2mode == 1 else b2[:4], WK + 2, sleep=cfg.b2sleep)
    lds_signal(C_B2, VCN, VONE)
    stamp(16, VST)
    ln_stats(FWO, WK, WK + 1, WK + 2)
    ln_apply(FWO + 16, WK, WK + 1)
    modulate(FWO + 16, KEEP0, KEEP1)
    a(f"ds_write_b16_d16_hi v{VB}, v{FWO+16} offset:{L_H2V - L_MISC}")
    if cfg.b2mode:
        lds_wait(C_GU, 8, WK, VCN, sleep=0)
        stamp(22, VST)
        frags()
    xch_read(L_H2V, 4, WK)
    gemv_pub([FG, FG + 16, FU, FU + 16], 4, ACT, FWO, GUP)
    stamp(23, VST)
    def dnf():
        a("s_barrier")
        ffn_frags("dn")
    if not cfg.dnlate: dnf()
    if cfg.ackE: a("s_waitcnt vmcnt(0)")
    stamp(17, VST)
    gather([(FWO + 16 + i, 1, VA, i * WS, None) for i in range(8)], WK + 2, masked=False)
    stamp(18, VST)
    if cfg.dnlate: dnf()
    g_ = FWO + 16
    a(f"v_pk_add_f32 {vr(g_,2)}, {vr(g_,2)}, {vr(g_+2,2)}\nv_pk_add_f32 {vr(g_+4,2)}, {vr(g_+4,2)}, {vr(g_+6,2)}\nv_pk_add_f32 {vr(g_,2)}, {vr(g_,2)}, {vr(g_+4,2)}\nv_add_f32 v{g_}, v{g_}, v{g_+1}")
    rnd(g_ + 1, g_); rnd(g_, g_)
    a(f"v_permlane32_swap_b32 v{g_}, v{g_+1}")
    k2 = -2.0 * 0.7978845608028654 * LOG2E
    a(f"v_mul_f32 v{g_+2}, v{g_}, v{g_}\nv_mul_f32 v{g_+3}, {f2u(k2):#x}, v{g_}\nv_mul_f32 v{g_+2}, {f2u(0.044715):#x}, v{g_+2}\nv_fma_f32 v{g_+2}, v{g_+2}, v{g_+3}, v{g_+3}")
    a(f"v_exp_f32 v{g_+2}, v{g_+2}\nv_add_f32 v{g_+2}, 1.0, v{g_+2}\nv_rcp_f32 v{g_+2}, v{g_+2}\nv_mul_f32 v{g_}, v{g_}, v{g_+2}")
    rnd(g_, g_); a(f"v_mul_f32 v{g_}, v{g_}, v{g_+1}"); rnd(g_, g_)
    a(f"ds_write_b16_d16_hi v{VB}, v{g_} offset:{L_HHV - L_MISC}")
    xch_read(L_HHV, 4, WK)
    gemv_pub([FD, FD + 16], 4, ACT, FG, ZP)
    stamp(19, VST)
    a("s_branch L_fin")
    a.label("L_reducer")
    lds_signal(C_B2, VCN, VONE)
    a(f"s_cmp_lg_u32 s{WV}, 0\ns_cbranch_scc1 L_fin")
    a(f"v_lshrrev_b32 v{WK}, 3, v1\ns_mov_b32 s6, {WS}\nv_mul_lo_u32 v{TA}, v{WK}, s6\nv_lshlrev_b32 v{TB}, 3, v{TA}\nv_and_b32 v{WK}, 7, v1\nv_lshlrev_b32 v{WK}, 4, v{WK}")
    a(f"s_lshr_b32 s5, s36, 3\ns_mul_i32 s5, s5, {8*WS}\ns_and_b32 s6, s36, 7\ns_lshl_b32 s6, s6, 7\ns_add_u32 s5, s5, s6\ns_add_u32 s5, s5, {YP}\nv_add3_u32 v{TA}, v{TA}, v{WK}, s5")
    a(f"s_lshr_b32 s5, s36, 2\ns_mul_i32 s5, s5, {WS}\ns_and_b32 s6, s36, 3\ns_lshl_b32 s6, s6, 7\ns_add_u32 s5, s5, s6\ns_add_u32 s5, s5, {ZP}\nv_add3_u32 v{TB}, v{TB}, v{WK}, s5")
    a(f"v_lshlrev_b32 v{VA}, 2, v{COL}\nv_lshlrev_b32 v{VB}, 1, v{COL}")
    for i in range(4): a(f"v_mov_b32 v{FU+12+i}, 0")
    a(f"s_add_u32 s37, s{SMY}, {X2P}\ns_lshl_b32 s39, s36, 6")
    a("s_waitcnt vmcnt(0)")
    gather([(FG + 4 * i, 4, TA, i * 32 * WS, None) for i in range(8)], WK, masked=cfg.mred)
    stamp(16, VST)
    pk_sum4(FG, 8)
    col_reduce(FG)
    rnd(FG, FG); a(f"v_mul_f32 v{FG}, v{FG}, v{KEEP0}"); rnd(FG, FG); a(f"v_add_f32 v{KEEP2}, v{KEEP2}, v{FG}")
    a(f"s_mov_b32 exec_lo, 0x00ff00ff\ns_mov_b32 exec_hi, 0x00ff00ff")
    rnd(KEEP2, KEEP2)
    a(f"buffer_store_dword v{KEEP2}, v{VA}, {sr(R_WS,4)}, s37 offen sc1\ns_mov_b64 exec, -1")
    stamp(17, VST)
    gather([(FU + 4 * i, 4, TB, i * 64 * WS, None if i < 3 else 0xffffffff) for i in range(4)], WK, masked=cfg.mred)
    stamp(18, VST)
    pk_sum4(FU, 4)
    col_reduce(FU)
    rnd(FU, FU); a(f"v_mul_f32 v{FU}, v{FU}, v{KEEP1}"); rnd(FU, FU); a(f"v_add_f32 v{FU}, v{KEEP2}, v{FU}")
    a(f"s_mov_b32 exec_lo, 0x00ff00ff\ns_mov_b32 exec_hi, 0x00ff00ff")
    if cfg.dbg_eps: a(f"v_mul_f32 v{FU}, {f2u(1 + cfg.dbg_eps / 1000):#x}, v{FU}")
    rnd(FU, FU)
    a(f"buffer_store_short_d16_hi v{FU}, v{VB}, {sr(R_OUT,4)}, s39 offen\ns_mov_b64 exec, -1")
    stamp(19, VST)
    a.label("L_fin")
    if cfg.stamps:
        a(f"s_lshl_b32 s5, s2, 11\ns_lshl_b32 s6, s3, 7\ns_add_u32 s5, s5, s6\ns_add_u32 s5, s5, 0x8000000\nv_lshlrev_b32 v2, 2, v1")
        a(f"s_mov_b32 exec_lo, -1\ns_mov_b32 exec_hi, 0\nbuffer_store_dword v{VST}, v2, {sr(R_WS,4)}, s5 offen")
    a.label("L_end")
    body = "\n".join(hazard.run(a.l)) + "\n"
    return wrap(body, 256, 768, LDS_BYTES, 168, extra_desc="  .amdhsa_float_denorm_mode_32 3\n")

if __name__ == "__main__":
    out = sys.argv[1]
    kw = {}
    for x in sys.argv[2:]:
        k, v = x.split("="); kw[k] = int(v) if v.lstrip("-").isdigit() else v
    open(out, "w").write(gen(Cfg(**kw)))
```

```python
import sys, os, struct
from asmgen import *
import hazard

def f2u(x): return struct.unpack("<I", struct.pack("<f", x))[0]
LOG2E = 1.4426950408889634

class Cfg:
    D1 = 3; D2 = 3; DV = 4; D3 = 2
    stamps = False
    spin_budget = 1 << 18
    pre1 = "crit,wq,mod1,mod2"
    pre2 = "wo"
    mid = ""
    late = "gate,up,dn"
    nl0 = 2
    nl2 = 6
    p1 = 11; p2 = 27; p3 = 16
    ackB = 1; ackE = 0; ackD = 1
    bgate = 1
    outsc = 1
    yrel = 0
    zt = 2
    elocal = 1
    epre = 2
    role = 1
    p4 = 18
    touch = 0
    def __init__(self, **kw):
        for k, v in kw.items():
            assert hasattr(self, k), k
            setattr(self, k, v)

QP, MLP = 0, 512
TKT = 640
XCP = 896
HP = 1024
MODP = 2048
YP, ZP, OP, GUP = 3072, 4096, 4608, 8704
EPOCH = 8 << 20
L_MOD, L_WQ, L_UP, L_DN, L_WO, L_GATE, L_MISC = 0, 0xC000, 0, 0x8000, 0x14000, 0x1C000, 0x24000
L_OS = L_DN
L_CNT = L_MISC
(C_CRIT, C_WQ, C_MOD1, C_MOD2, C_WO, C_GATE, C_UP, C_DN, C_Q, C_H, C_ML, C_MLD, C_CLR, C_P1, C_P2, C_P3, C_Y, C_OR, C_ROLE, C_P4) = range(20)
L_QV = L_MISC + 0x100
L_HV = L_MISC + 0x900
L_HHV = L_MISC + 0xA00
L_OV = L_MISC + 0xB00
L_ST = L_MISC + 0xB80
L_SIL = L_MISC + 0xC00
L_MLW = L_MISC + 0xE00
L_MLF = L_MISC + 0x1000
L_AT = L_MISC + 0x1100
LDS_BYTES = 160 * 1024

def is_reducer(w): return w < 8
def vr(a, n=1): return f"v{a}" if n == 1 else f"v[{a}:{a+n-1}]"
def sr(a, n=1): return f"s{a}" if n == 1 else f"s[{a}:{a+n-1}]"

def gen(cfg):
    a = Asm()
    WS = 12928
    BUD = 4
    lst = lambda x: [t for t in x.split(",") if t]
    def srd_load(r, karg_off): a(f"s_load_dwordx2 {sr(r,2)}, s[0:1], {karg_off}")
    def srd_fin(r, nbytes): a(f"s_mov_b32 s{r+2}, {nbytes}\ns_mov_b32 s{r+3}, 0x20000")
    def rnd(d, s): a(f"v_cvt_pk_bf16_f32 v{d}, 0, v{s}")
    def setexec(m): a(f"s_mov_b32 exec_lo, {m & 0xffffffff:#x}\ns_mov_b32 exec_hi, {m >> 32:#x}")
    def stamp(idx, vreg):
        if cfg.stamps: a(f"s_memrealtime s[98:99]\ns_waitcnt lgkmcnt(0)\nv_writelane_b32 v{vreg}, s98, {idx}")
    def budget_check(): a(f"s_sub_u32 s{BUD}, s{BUD}, 1\ns_cbranch_scc1 L_end")
    def lds_wait(cnt, target, vtmp, vaddr, sleep=1):
        L = a.newlabel("L_lw"); Ld = a.newlabel("L_lwd")
        a.label(L)
        a(f"ds_read_b32 v{vtmp}, v{vaddr} offset:{cnt*4}\ns_waitcnt lgkmcnt(0)\nv_readfirstlane_b32 s5, v{vtmp}")
        a(f"s_cmp_ge_u32 s5, {target}\ns_cbranch_scc1 {Ld}")
        if sleep: a(f"s_sleep {sleep}")
        budget_check()
        a(f"s_branch {L}")
        a.label(Ld)
    def lds_signal(cnt, vaddr, vone):
        a(f"s_mov_b64 exec, 1\nds_add_u32 v{vaddr}, v{vone} offset:{cnt*4}\ns_mov_b64 exec, -1")
    DPPF = "row_mask:0xf bank_mask:0xf"
    def xreduce(op, v, t, steps):
        for s in steps:
            if s in (1, 2, 4, 8): a(f"{op}_dpp v{v}, v{v}, v{v} row_ror:{s} {DPPF}")
            elif s == 16: a(f"v_mov_b32 v{t}, v{v}\nv_permlane16_swap_b32 v{v}, v{t}\n{op} v{v}, v{v}, v{t}")
            elif s == 32: a(f"v_mov_b32 v{t}, v{v}\nv_permlane32_swap_b32 v{v}, v{t}\n{op} v{v}, v{v}, v{t}")
            else: a(f"{op}_dpp v{v}, v{v}, v{v} {s} {DPPF}")

    a("s_load_dwordx16 s[68:83], s[0:1], 0\ns_load_dwordx8 s[84:91], s[0:1], 64\ns_load_dwordx4 s[92:95], s[0:1], 96")
    KA = lambda off: 68 + off // 4
    a("s_cmp_ge_u32 s2, 256\ns_cbranch_scc1 L_end")
    a("v_lshrrev_b32 v2, 6, v0\nv_and_b32 v1, 63, v0")
    a("v_readfirstlane_b32 s3, v2")
    a(f"s_mov_b32 s{BUD}, {cfg.spin_budget}")
    if cfg.stamps: a("s_memrealtime s[96:97]")
    a("s_cmp_ge_u32 s3, 8\ns_cbranch_scc1 L_cwave")

    R_MOD, R_WQ, R_WO, R_G, R_U, R_DN, R_K, R_V, R_WSS = 8, 12, 16, 20, 24, 28, 32, 36, 40
    VK, VV, VGU, VDN, VCN, VONE = 2, 3, 4, 5, 6, 7
    Q0, T0, DT, KV = 8, 16, 32, 40
    VMOD, VWQ, VWO, VST = 16, 17, 2, 0
    SB_MOD, SB_WQ, SB_WO, SB_GU, SB_DN, SB_KV, SO, SL, SL4 = 44, 45, 46, 47, 48, 49, 50, 51, 56
    def srd(r, off, nbytes): a(f"s_mov_b64 {sr(r,2)}, {sr(KA(off),2)}\ns_mov_b32 s{r+2}, {nbytes}\ns_mov_b32 s{r+3}, 0x20000")
    a("v_and_b32 v32, 15, v1\nv_lshrrev_b32 v33, 4, v1\nv_lshlrev_b32 v34, 1, v33\nv_xor_b32 v34, v34, v32\nv_lshlrev_b32 v34, 4, v34")
    a(f"v_mul_u32_u24 v{VMOD}, 12288, v33\nv_add_u32 v{VMOD}, v{VMOD}, v34\ns_and_b32 s63, s3, 1\ns_lshl_b32 s63, s63, 7\nv_xor_b32 v{VMOD}, s63, v{VMOD}")
    a(f"v_lshl_add_u32 v{VWQ}, v33, 13, v34")
    a(f"s_lshr_b32 s5, s2, 4\ns_lshl_b32 s5, s5, 6\ns_lshl_b32 s6, s3, 3\ns_add_u32 s5, s5, s6\ns_mul_i32 s5, s5, 12288")
    a(f"s_and_b32 s6, s2, 15\ns_lshl_b32 s6, s6, 8\ns_add_u32 s{SB_MOD}, s5, s6\ns_lshl_b32 s{SL}, s3, 11\ns_lshl_b32 s{SL4}, s3, 12")
    a("s_and_b32 s52, s2, 7\ns_lshr_b32 s53, s2, 3")
    a(f"s_lshl_b32 s5, s52, 7\ns_lshl_b32 s57, s3, 4\ns_add_u32 s54, s5, s57")
    a(f"s_lshl_b32 s5, s54, 13\ns_lshl_b32 s55, s53, 8\ns_add_u32 s{SB_WQ}, s5, s55")
    a("s_waitcnt lgkmcnt(0)")
    srd(R_MOD, 80, 12582912); srd(R_WQ, 24, 8388608)
    def rest_of_setup():
        a(f"v_mul_u32_u24 v{VGU}, 7168, v33\nv_add_u32 v{VGU}, v{VGU}, v34\nv_lshl_add_u32 v{VDN}, v33, 11, v34\nv_lshlrev_b32 v{VV}, 4, v1")
        a(f"v_and_b32 v35, 2, v32\nv_lshlrev_b32 v35, 15, v35\nv_lshrrev_b32 v36, 2, v32\nv_lshl_add_u32 v35, v36, 8, v35")
        a(f"v_and_b32 v36, 1, v32\nv_lshl_add_u32 v35, v36, 6, v35\nv_lshl_add_u32 v{VK}, v33, 4, v35")
        a(f"v_mov_b32 v{VCN}, {L_CNT}\nv_mov_b32 v{VONE}, 1")
        a(f"s_lshr_b32 s5, s2, 5\ns_lshl_b32 s5, s5, 3\ns_add_u32 s5, s5, s52\ns_lshl_b32 s5, s5, 6\ns_lshl_b32 s6, s3, 3\ns_add_u32 s5, s5, s6\ns_lshl_b32 s5, s5, 11")
        a(f"s_and_b32 s6, s53, 3\ns_lshl_b32 s6, s6, 9\ns_add_u32 s{SB_WO}, s5, s6")
        a(f"s_and_b32 s5, s2, 3\ns_lshl_b32 s5, s5, 24\ns_lshr_b32 s6, s2, 2\ns_lshl_b32 s6, s6, 18\ns_add_u32 s5, s5, s6\ns_lshl_b32 s6, s3, 10\ns_add_u32 s{SB_KV}, s5, s6")
        srd(R_WO, 32, 8388608); srd(R_K, 8, 67108864); srd(R_V, 16, 67108864)
        for r, off in ((R_G, 48), (R_U, 56), (R_DN, 64)): srd(r, off, 0)
        if cfg.stamps:
            srd(R_WSS, 104, 0x10000000); a(f"v_mov_b32 v{VST}, 0\nv_writelane_b32 v{VST}, s96, 0")
        a("s_mov_b32 s58, 0x05040100\ns_mov_b32 s59, 0x07060302")
        a("s_barrier")
    issued = []; done = [0]; tiles = {}; signalled = set(); setup = [False]
    TN = dict(crit=2, wq=4, mod1=2, mod2=2, wo=4, gate=4, up=4, dn=4)
    TC = dict(crit=C_CRIT, wq=C_WQ, mod1=C_MOD1, mod2=C_MOD2, wo=C_WO, gate=C_GATE, up=C_UP, dn=C_DN)
    def wait_n(n):
        if len(issued) - done[0] > n:
            a(f"s_waitcnt vmcnt({n})"); done[0] = len(issued) - n
            for name, ids in tiles.items():
                if name not in signalled and len(ids) == TN[name] and max(ids) < done[0]:
                    lds_signal(TC[name], VCN, VONE); signalled.add(name)
                    if name in ("wo", "up"): stamp({"wo": 20, "up": 21}[name], VST)
    def wait_id(i): wait_n(len(issued) - 1 - i)
    def dma(name, i, D):
        srd_, voff, sb, step, lbase, lsreg = {
            "crit": (R_MOD, VMOD, SB_MOD, 4 * 12288, L_MOD, SL), "mod1": (R_MOD, VMOD, SB_MOD, 4 * 12288, L_MOD + 16384, SL),
            "mod2": (R_MOD, VMOD, SB_MOD, 4 * 12288, L_MOD + 32768, SL), "wq": (R_WQ, VWQ, SB_WQ, 4 * 8192, L_WQ, SL4),
            "wo": (R_WO, VWO, SB_WO, 2 * 2048, L_WO, SL4), "gate": (R_G, VGU, SB_GU, 4 * 7168, L_GATE, SL4),
            "up": (R_U, VGU, SB_GU, 4 * 7168, L_UP, SL4), "dn": (R_DN, VDN, SB_DN, 4 * 2048, L_DN, SL4)}[name]
        extra = {"mod1": 4096, "mod2": 8192}.get(name, 0)
        if len(issued) == D and not setup[0]: setup[0] = True; rest_of_setup()
        a(f"s_add_u32 m0, s{lsreg}, {lbase + i*1024}\ns_add_u32 s{SO}, s{sb}, {i*step + extra}")
        wait_n(D - 1)
        a(f"buffer_load_dwordx4 v{voff}, {sr(srd_,4)}, s{SO} offen nt lds")
        if name in ("wq", "gate", "up", "dn") and i in (1, 3): a(f"v_xor_b32 v{voff}, 0x80, v{voff}")
        if name == "wo": a(f"v_xor_b32 v{voff}, 0x40, v{voff}")
        tiles.setdefault(name, []).append(len(issued)); issued.append(name)
    kid = {}; vid = {}; cur_so = [None]
    def kvload(srd_, voff, off, dst, D):
        so = off & ~0xfff
        if cur_so[0] != so:
            a(f"s_add_u32 s60, s{SB_KV}, {so}"); cur_so[0] = so
        if D: wait_n(D - 1)
        a(f"buffer_load_dwordx4 {vr(dst,4)}, v{voff}, {sr(srd_,4)}, s60 offen offset:{off & 0xfff} nt")
        issued.append("kv"); return len(issued) - 1
    def kload(n, u, D): kid[(n, u)] = kvload(R_K, VK, (16 * (n >> 3) + (n & 7)) * 8192 + u * 128, KV + 8 * n + 4 * u, D)
    def vslot(i): return KV + 4 * (i % 24)
    def vload(i, D): vid[i] = kvload(R_V, VV, i * 8192, vslot(i), D)
    D1, D2 = cfg.D1, cfg.D2
    for name in lst(cfg.pre1):
        for i in range(TN[name]): dma(name, i, D1)
    stamp(11, VST)
    for n in range(16):
        for u in range(2):
            kload(n, u, D1)
            if 2 * n + u == cfg.p1: lds_signal(C_P1, VCN, VONE)
            if 2 * n + u == cfg.p2: lds_signal(C_P2, VCN, VONE)
    a(f"v_lshrrev_b32 v{DT}, 5, v1\nv_and_b32 v{DT+1}, 31, v1\nv_lshlrev_b32 v{DT+2}, 1, v{DT}\nv_xor_b32 v{DT+1}, v{DT+1}, v{DT+2}\nv_lshlrev_b32 v{DT+1}, 4, v{DT+1}")
    a(f"v_lshl_add_u32 v{VWO}, v{DT}, 11, v{DT+1}\nv_xor_b32 v{VWO}, s63, v{VWO}")
    for name in lst(cfg.pre2):
        for i in range(TN[name]): dma(name, i, D1)
    stamp(1, VST)
    a(f"v_and_b32 v{DT+1}, 7, v1\nv_lshlrev_b32 v{DT+1}, 8, v{DT+1}\nv_and_b32 v{DT+2}, 8, v1\nv_lshl_add_u32 v{DT+1}, v{DT+2}, 3, v{DT+1}")
    a(f"v_lshrrev_b32 v{DT+2}, 4, v1\nv_lshl_add_u32 v{DT+1}, v{DT+2}, 4, v{DT+1}\nv_add_u32 v{DT+1}, {L_QV}, v{DT+1}")
    a(f"s_mov_b32 s61, {f2u(128 ** -0.5):#x}\ns_mov_b32 s62, {f2u(LOG2E):#x}")
    lds_wait(C_Q, 4, DT, VCN)
    stamp(2, VST)
    a(f"ds_read_b128 {vr(Q0,4)}, v{DT+1}\nds_read_b128 {vr(Q0+4,4)}, v{DT+1} offset:128\ns_waitcnt lgkmcnt(0)")
    nv = 0
    def fold(n):
        d = DT + 4 * (n & 1)
        a(f"v_add_f32_dpp v{T0+n}, v{d+1}, v{d} row_ror:8 row_mask:0xf bank_mask:0x3")
        a(f"v_add_f32_dpp v{T0+n}, v{d+2}, v{d+3} row_ror:8 row_mask:0xf bank_mask:0xc")
    def post(n):
        rnd(T0 + n, T0 + n); a(f"v_mul_f32 v{T0+n}, s61, v{T0+n}"); rnd(T0 + n, T0 + n)
    for n in range(16):
        wait_id(kid[(n, 1)])
        d = DT + 4 * (n & 1)
        a(f"v_mfma_f32_16x16x32_bf16 {vr(d,4)}, {vr(KV+8*n,4)}, {vr(Q0,4)}, 0")
        a(f"v_mfma_f32_16x16x32_bf16 {vr(d,4)}, {vr(KV+8*n+4,4)}, {vr(Q0+4,4)}, {vr(d,4)}")
        if n >= 1 and nv < D2 and n % 2 == 1:
            vload(nv, 0); nv += 1
        if n >= 2: post(n - 2)
        if n >= 1: fold(n - 1)
    fold(15); post(14); post(15)
    M_, L_, X_ = DT, DT + 1, DT + 2
    a(f"v_max3_f32 v{M_}, v{T0}, v{T0+1}, v{T0+2}")
    for i in range(3, 15, 2): a(f"v_max3_f32 v{M_}, v{M_}, v{T0+i}, v{T0+i+1}")
    a(f"v_max_f32 v{M_}, v{M_}, v{T0+15}")
    xreduce("v_max_f32", M_, X_, (8, 16, 32))
    for i in range(16):
        e = DT + 4 + (i & 3)
        a(f"v_sub_f32 v{e}, v{T0+i}, v{M_}\nv_mul_f32 v{e}, s62, v{e}\nv_exp_f32 v{e}, v{e}")
        if i >= 1:
            p = DT + 4 + ((i - 1) & 3)
            a(f"v_mov_b32 v{L_}, v{p}" if i == 1 else f"v_add_f32 v{L_}, v{L_}, v{p}")
    a(f"v_add_f32 v{L_}, v{L_}, v{DT+7}")
    xreduce("v_add_f32", L_, X_, (8, 16, 32))
    a(f"s_lshl_b32 s5, s3, 6\ns_add_u32 s5, s5, {L_MLW}\nv_lshlrev_b32 v{X_}, 3, v1\nv_add_u32 v{X_}, s5, v{X_}")
    a(f"s_mov_b64 exec, 0xff\nds_write_b64 v{X_}, {vr(M_,2)}\ns_waitcnt lgkmcnt(0)")
    lds_signal(C_ML, VCN, VONE)
    stamp(3, VST)
    while nv < 24:
        vload(nv, D2)
        if nv == cfg.p3: lds_signal(C_P3, VCN, VONE)
        if nv == cfg.p4 and cfg.role == 2: lds_signal(C_P4, VCN, VONE)
        nv += 1
    for name in lst(cfg.mid):
        for i in range(TN[name]): dma(name, i, D2)
    stamp(4, VST)
    a(f"v_and_b32 v{X_}, 7, v1\nv_lshlrev_b32 v{X_}, 3, v{X_}\nv_add_u32 v{X_}, {L_MLF}, v{X_}")
    lds_wait(C_MLD, 1, DT, VCN)
    stamp(5, VST)
    assert not any(t in cfg.pre1 + cfg.pre2 + cfg.mid for t in ("gate", "up", "dn"))
    a(f"ds_read_b64 {vr(M_,2)}, v{X_}\ns_waitcnt lgkmcnt(0)")
    for i in range(16):
        a(f"v_sub_f32 v{T0+i}, v{T0+i}, v{M_}\nv_mul_f32 v{T0+i}, s62, v{T0+i}\nv_exp_f32 v{T0+i}, v{T0+i}")
    for i in range(16): a(f"v_mul_f32 v{T0+i}, v{T0+i}, v{L_}")
    for i in range(8): a(f"v_cvt_pk_bf16_f32 v{Q0+i}, v{T0+2*i}, v{T0+2*i+1}")
    a("s_mov_b32 s64, 0x00ff00ff\ns_mov_b32 s65, 0x00ff00ff\ns_mov_b32 s66, 0xff00ff00\ns_mov_b32 s67, 0xff00ff00")
    ACC = KV + 96
    PL = lambda G: T0 + 4 * G
    PH = lambda G: KV + 112 + 4 * G
    for G in range(4):
        b, pi = G >> 1, G & 1
        for i in range(4): a(f"v_cndmask_b32 v{(PH if pi else PL)(G)+i}, 0, v{Q0+4*b+i}, s[{64+2*pi}:{65+2*pi}]")
        for i in range(4): a(f"v_mov_b32_dpp v{(PL if pi else PH)(G)+i}, v{(PH if pi else PL)(G)+i} row_ror:8 {DPPF}")
    stage = [DT, DT + 4, Q0, Q0 + 4]
    sidx = 0
    def perm(dst, G, p, j):
        lo = vslot(8 * G + 2 * p) + (j >> 1); hi = vslot(8 * G + 2 * p + 1) + (j >> 1)
        a(f"v_perm_b32 v{dst}, v{hi}, v{lo}, s{58 + (j & 1)}")
    def pv(G, j, st):
        c = "0" if (G == 0 and j < 4) else vr(ACC + 4 * (j & 3), 4)
        a(f"v_mfma_f32_16x16x32_bf16 {vr(ACC+4*(j&3),4)}, {vr(st,4)}, {vr((PH if j >= 4 else PL)(G),4)}, {c}")
    lateq = [(name, i) for name in lst(cfg.late) for i in range(TN[name])]
    assert lateq[-4:] == [("dn", i) for i in range(4)]
    for G in range(3):
        wait_id(vid[8 * G + 7])
        for j in range(8):
            st = stage[sidx & 3]; sidx += 1
            for p in range(4): perm(st + p, G, p, j)
            pv(G, j, st)
            if G in (1, 2) and j % 2 == 0 and nv < 32:
                vload(nv, cfg.DV); nv += 1
    lds_wait(C_ROLE, 1, DT, VCN, sleep=0)
    a("s_sub_u32 s7, s5, 1")
    a("s_mov_b32 s5, 7340032\ns_cmp_lt_u32 s7, 224\ns_cselect_b32 s5, s5, 0")
    for r in (R_G, R_U, R_DN): a(f"s_mov_b32 s{r+2}, s5")
    a("s_and_b32 s52, s7, 7\ns_lshr_b32 s53, s7, 3")
    a(f"s_lshl_b32 s5, s52, 7\ns_add_u32 s5, s5, s57\ns_mul_i32 s5, s5, 7168\ns_lshl_b32 s6, s53, 8\ns_add_u32 s{SB_GU}, s5, s6")
    a(f"s_lshl_b32 s5, s53, 7\ns_add_u32 s5, s5, s57\ns_lshl_b32 s5, s5, 11\ns_lshl_b32 s6, s52, 8\ns_add_u32 s{SB_DN}, s5, s6")
    a(f"s_add_u32 s5, s{SL4}, {L_OS}\nv_add_u32 v{VV}, s5, v{VV}")
    SG = KV + 32
    n0 = min(cfg.nl0, len(lateq) - max(4, cfg.nl2))
    for p in range(3):
        wait_id(vid[24 + 2 * p + 1])
        if p >= 1:
            for _ in range((n0 + 2 - p) // 2):
                name, i = lateq.pop(0); dma(name, i, 63)
        for j in range(8): perm(SG + 4 * j + p, 3, p, j)
    wait_id(vid[31])
    order = [0, 4, 1, 5, 2, 6, 3, 7]
    for k in range(10):
        if k < 8: perm(SG + 4 * order[k] + 3, 3, 3, order[k])
        if k >= 2: pv(3, order[k - 2], SG + 4 * order[k - 2])
    stamp(6, VST)
    for e in range(4): a(f"ds_write_b128 v{VV}, {vr(ACC+4*e,4)} offset:{e*1024}")
    a("s_waitcnt lgkmcnt(0)")
    stamp(7, VST)
    a("s_barrier")
    signalled.add("dn")
    n1 = len(lateq) - cfg.nl2
    for k, (name, i) in enumerate(lateq):
        if k == n1:
            wait_n(0); lds_wait(C_Y, 4, DT, VCN)
        if (name, i) == ("dn", 0) and k < n1: lds_wait(C_OR, 4, DT, VCN)
        dma(name, i, cfg.D3 if k < n1 else 63)
    for name in ("wo", "gate", "up"):
        if name not in signalled: wait_id(max(tiles[name]))
    a("s_waitcnt vmcnt(0)")
    if cfg.stamps:
        stamp(8, VST)
        a(f"s_lshl_b32 s5, s2, 11\ns_lshl_b32 s6, s3, 7\ns_add_u32 s5, s5, s6\ns_add_u32 s5, s5, 0x8000000\nv_lshlrev_b32 v2, 2, v1")
        a(f"s_mov_b32 exec_hi, 0\nbuffer_store_dword v{VST}, v2, {sr(R_WSS,4)}, s5 offen")
    a("s_endpgm")

    a.label("L_cwave")
    a("s_setprio 3")
    R_WS, R_X, R_C, R_OUT = 8, 16, 20, 24
    WV, SMY = 28, 29
    a(f"s_sub_u32 s{WV}, s3, 8\nv_subrev_u32 v0, 512, v0")
    VCN, VONE, VTR, VPUB, VACT, VA, VB, K_X, K_GA, K_GB, VST, K_C1, TAG, TB = 2, 3, 4, 5, 6, 7, 8, 9, 10, 11, 12, 13, 14, 15
    WK = 16
    ACT = WK + 8
    FWO, FG, FU, FD = 40, 72, 104, 136
    a(f"v_mov_b32 v{VCN}, {L_CNT}\nv_mov_b32 v{VONE}, 1\nv_mov_b32 v{WK}, 0")
    a(f"v_lshlrev_b32 v{WK+1}, 2, v1\nv_add_u32 v{WK+1}, {L_CNT}, v{WK+1}\nds_write_b32 v{WK+1}, v{WK}")
    for i in range(4): a(f"v_mov_b32 v{WK+4+i}, -1")
    for base in (L_HHV, L_OV, L_AT, L_AT + 320): a(f"ds_write_b32 v{WK+1}, v{WK+4} offset:{base - L_CNT}")
    a(f"s_mul_i32 s{SMY}, s2, {WS}\ns_and_b32 s30, s2, 7\ns_lshr_b32 s31, s2, 3")
    a(f"v_lshlrev_b32 v{VA}, 4, v1\nv_lshlrev_b32 v{VB}, 1, v1\nv_lshlrev_b32 v{WK+1}, 5, v1")
    a(f"s_lshl_b32 s32, s30, 7\ns_lshl_b32 s35, s{WV}, 5\ns_add_u32 s32, s32, s35")
    a(f"v_and_b32 v{WK+2}, 31, v1\nv_lshlrev_b32 v{WK+3}, 1, v{WK+2}")
    a("s_waitcnt lgkmcnt(0)")
    srd(R_WS, 104, 0x10000000); srd(R_X, 0, 2048); srd(R_C, 72, 2048); srd(R_OUT, 88, 2048)
    XR = FU
    a(f"s_mov_b32 s5, {EPOCH}\nbuffer_load_dword v{TAG}, off, {sr(R_WS,4)}, s5 sc1")
    a(f"s_lshr_b32 s5, s2, 4\ns_lshl_b32 s5, s5, 7\nbuffer_load_ushort v{WK}, v{VB}, {sr(R_C,4)}, s5 offen")
    a(f"buffer_load_dwordx4 {vr(XR,4)}, v{WK+1}, {sr(R_X,4)}, 0 offen\nbuffer_load_dwordx4 {vr(XR+4,4)}, v{WK+1}, {sr(R_X,4)}, 0 offen offset:16")
    a(f"s_lshl_b32 s5, s32, 1\nbuffer_load_ushort v{K_GA}, v{WK+3}, {sr(R_X,4)}, s5 offen")
    a(f"v_and_b32 v{K_C1}, 7, v1\nv_lshlrev_b32 v{K_C1}, 2, v{K_C1}\nv_bfe_u32 v{WK+2}, v1, 4, 1\nv_lshl_add_u32 v{K_C1}, v{WK+2}, 1, v{K_C1}\nv_lshrrev_b32 v{WK+2}, 5, v1\nv_add_lshl_u32 v{K_C1}, v{K_C1}, v{WK+2}, 1")
    a(f"s_cmp_lg_u32 s{WV}, 0\ns_cbranch_scc1 L_clr_done")
    a(f"s_mov_b32 exec_hi, 0xffff\nbuffer_store_dwordx4 {vr(WK+4,4)}, v{VA}, {sr(R_WS,4)}, s{SMY} offen sc1\ns_mov_b32 exec_hi, -1")
    a.label("L_clr_done")
    def touch_rd(t):
        a(f"v_lshlrev_b32 v{t}, 7, v1\ns_mul_i32 s5, s{WV}, {19*128}\ns_add_u32 s5, s5, s{SMY}\ns_add_u32 s5, s5, {YP}")
        setexec((1 << 19) - 1)
        a(f"buffer_load_dword v{t+1}, v{t}, {sr(R_WS,4)}, s5 offen sc1\ns_mov_b64 exec, -1")
    if cfg.touch == 1: touch_rd(WK + 14)
    if cfg.touch == 2:
        a(f"v_lshlrev_b32 v{WK+14}, 4, v0\ns_add_u32 s5, s{SMY}, {YP}\nbuffer_store_dwordx4 {vr(WK+4,4)}, v{WK+14}, {sr(R_WS,4)}, s5 offen sc1")
        a(f"s_add_u32 s5, s{SMY}, {YP+4096}\nbuffer_store_dwordx4 {vr(WK+4,4)}, v{WK+14}, {sr(R_WS,4)}, s5 offen sc1")
        a(f"s_add_u32 s5, s{SMY}, {YP+8192}\nv_cmp_gt_u32 vcc, 96, v0\ns_and_saveexec_b64 s[6:7], vcc\ns_cbranch_execz L_t2\nbuffer_store_dwordx4 {vr(WK+4,4)}, v{WK+14}, {sr(R_WS,4)}, s5 offen sc1")
        a.label("L_t2")
        a("s_mov_b64 exec, -1")
    a("s_barrier")
    if cfg.stamps: a(f"v_mov_b32 v{VST}, 0\nv_writelane_b32 v{VST}, s96, 0")
    a(f"v_lshrrev_b32 v{WK+8}, 4, v1\nv_and_b32 v{WK+9}, 15, v1")
    a(f"v_lshlrev_b32 v{VPUB}, 6, v{WK+9}\nv_lshl_add_u32 v{VPUB}, v{WK+8}, 4, v{VPUB}")
    a(f"v_lshlrev_b32 v{VACT}, 4, v{WK+8}\nv_add_u32 v{VACT}, {L_MISC}, v{VACT}")
    a(f"v_bfe_u32 v{WK+10}, v1, 2, 2\nv_lshl_add_u32 v{WK+11}, v{WK+8}, 3, v{WK+10}\nv_lshlrev_b32 v{VTR}, 8, v{WK+11}")
    a(f"v_and_b32 v{WK+12}, 3, v1\nv_lshl_add_u32 v{VTR}, v{WK+12}, 3, v{VTR}")
    a(f"v_and_b32 v{WK+12}, 1, v{WK+8}\nv_lshl_add_u32 v{WK+12}, v{WK+12}, 2, v{WK+10}\ns_lshl_b32 s5, s{WV}, 1\nv_xor_b32 v{WK+12}, s5, v{WK+12}\nv_lshl_add_u32 v{VTR}, v{WK+12}, 5, v{VTR}")
    a(f"s_mov_b32 s33, {f2u(LOG2E):#x}\ns_mov_b32 s38, 0xffff0000\ns_mov_b32 s39, 0xff")
    a("s_waitcnt vmcnt(0)")
    lds_signal(C_CLR, VCN, VONE)
    a(f"v_add_u32 v{TAG}, 1, v{TAG}")
    stamp(1, VST)
    c_ = WK
    lo2 = LOG2E - struct.unpack("<f", struct.pack("<f", LOG2E))[0]
    a(f"v_lshlrev_b32 v{c_}, 16, v{c_}")
    a(f"v_max_f32 v{WK+13}, {f2u(-87.0):#x}, v{c_}\nv_min_f32 v{WK+13}, {f2u(100.0):#x}, v{WK+13}")
    a(f"v_mul_f32 v{WK+1}, s33, v{WK+13}\nv_fma_f32 v{WK+2}, v{WK+13}, s33, -v{WK+1}\nv_mov_b32 v{WK+3}, {f2u(lo2):#x}\nv_fmac_f32 v{WK+2}, v{WK+13}, v{WK+3}")
    a(f"v_exp_f32 v{WK+1}, -v{WK+1}\nv_mul_f32 v{WK+2}, {f2u(-0.6931471805599453):#x}, v{WK+2}")
    a(f"v_fma_f32 v{WK+1}, v{WK+1}, v{WK+2}, v{WK+1}\nv_add_f32 v{WK+1}, 1.0, v{WK+1}")
    a(f"v_rcp_f32 v{WK+2}, v{WK+1}\nv_mul_f32 v{WK+3}, v{c_}, v{WK+2}\nv_fma_f32 v{WK+13}, -v{WK+3}, v{WK+1}, v{c_}\nv_fmac_f32 v{WK+3}, v{WK+13}, v{WK+2}")
    rnd(WK + 3, WK + 3)
    a(f"s_lshl_b32 s5, s{WV}, 7\ns_add_u32 s6, s5, {L_SIL}\nv_add_u32 v{WK+1}, s6, v{VB}\nds_write_b16_d16_hi v{WK+1}, v{WK+3}")
    a(f"v_add_u32 v{WK+1}, s5, v{VACT}\ns_waitcnt lgkmcnt(0)\nds_read_b128 {vr(ACT,4)}, v{WK+1} offset:{L_SIL-L_MISC}\nds_read_b128 {vr(ACT+4,4)}, v{WK+1} offset:{L_SIL-L_MISC+64}")

    def den_from_var(v, rden):
        rnd(v, v); a(f"v_add_f32 v{v}, {f2u(1e-5):#x}, v{v}"); rnd(v, v)
        a(f"v_sqrt_f32 v{v}, v{v}"); rnd(v, v)
        a(f"v_rcp_f32 v{rden}, v{v}")
    def ln_stats(X, mean_b, rden, t0):
        p1, p2, u1 = t0, t0 + 2, t0 + 4
        a(f"v_readfirstlane_b32 s36, v{X}\ns_mov_b32 s37, s36")
        for i in range(0, 16, 2): a(f"v_pk_add_f32 {vr(X+i,2)}, {vr(X+i,2)}, s[36:37] neg_lo:[0,1] neg_hi:[0,1]")
        a(f"v_pk_mul_f32 {vr(p2,2)}, {vr(X,2)}, {vr(X,2)}\nv_pk_add_f32 {vr(p1,2)}, {vr(X,2)}, {vr(X+2,2)}")
        a(f"v_pk_fma_f32 {vr(p2,2)}, {vr(X+2,2)}, {vr(X+2,2)}, {vr(p2,2)}")
        for i in range(4, 16, 2):
            a(f"v_pk_add_f32 {vr(p1,2)}, {vr(p1,2)}, {vr(X+i,2)}\nv_pk_fma_f32 {vr(p2,2)}, {vr(X+i,2)}, {vr(X+i,2)}, {vr(p2,2)}")
        a(f"v_add_f32 v{p1}, v{p1}, v{p1+1}\nv_add_f32 v{p2}, v{p2}, v{p2+1}")
        a(f"v_permlane32_swap_b32 v{p1}, v{p2}\nv_add_f32 v{p1}, v{p1}, v{p2}")
        xreduce("v_add_f32", p1, u1, (16, 8, 4, 2, 1))
        a(f"v_mul_f32 v{p1}, {f2u(1.0/1024):#x}, v{p1}\nv_mov_b32 v{p2}, v{p1}\nv_permlane32_swap_b32 v{p1}, v{p2}")
        a(f"v_fma_f32 v{p2}, -v{p1}, v{p1}, v{p2}\nv_add_f32 v{p1}, s36, v{p1}\nv_max_f32 v{p2}, 0, v{p2}")
        rnd(mean_b, p1); den_from_var(p2, rden)
    XU = XR + 8
    for i in range(8):
        a(f"v_lshlrev_b32 v{XU+2*i}, 16, v{XR+i}\nv_and_b32 v{XU+2*i+1}, 0xffff0000, v{XR+i}")
    ln_stats(XU, WK, WK + 1, WK + 2)
    LN1 = K_GA
    a(f"v_lshlrev_b32 v{LN1}, 16, v{LN1}")
    a(f"v_sub_f32 v{LN1}, v{LN1}, v{WK}"); rnd(LN1, LN1); a(f"v_mul_f32 v{LN1}, v{LN1}, v{WK+1}"); rnd(LN1, LN1)
    lds_wait(C_CLR, 4, WK + 1, VCN, sleep=0)

    if cfg.elocal:
        a(f"s_getreg_b32 s14, hwreg(HW_REG_XCC_ID)\ns_cmp_lg_u32 s{WV}, 1\ns_cbranch_scc1 L_xc_done")
        a(f"v_mov_b32 v{WK}, s14\nv_mov_b32 v{WK+1}, v{TAG}\ns_add_u32 s5, s{SMY}, {XCP}\ns_mov_b64 exec, 1\nbuffer_store_dwordx2 {vr(WK,2)}, off, {sr(R_WS,4)}, s5 sc1\ns_mov_b64 exec, -1")
        a.label("L_xc_done")
    def tr_read(dst, vaddr, nkk, rs, base=0):
        for kk in range(nkk):
            for q in range(2):
                a(f"ds_read_b64_tr_b16 {vr(dst + kk*4 + 2*q, 2)}, v{vaddr} offset:{base + (32 * kk + 4 * q) * rs}")
    def tr_tile(dst, base, nkk, t0):
        a(f"v_add_u32 v{t0}, {base}, v{VTR}\nv_xor_b32 v{t0+1}, 32, v{t0}")
        tr_read(dst, t0, nkk, 256); tr_read(dst + 4 * nkk, t0 + 1, nkk, 256)
    MASKC = [0x0001000100010001 << i for i in range(4)]
    def mfma(d, x, y, first): a(f"v_mfma_f32_16x16x32_bf16 {vr(d,4)}, {vr(x,4)}, {vr(y,4)}, {'0' if first else vr(d,4)}")
    def tagit(d, s): a(f"v_bfi_b32 v{d}, s39, v{TAG}, v{s}")
    def gemv_pub(frs, nkk, dacc, out, off, tagged=True):
        n = len(frs)
        a(f"s_mul_i32 s5, s{WV}, {n*64}\ns_add_u32 s5, s5, s{SMY}\ns_add_u32 s5, s5, {off}")
        def fin(cg):
            setexec(MASKC[cg])
            for i in range(4):
                if tagged: tagit(out + i, dacc + 4 * cg + i)
                else: a(f"v_mov_b32 v{out+i}, v{dacc+4*cg+i}")
        lag = 2 if nkk == 2 else 1
        for cg in range(n + lag):
            if cg < n:
                if cg > lag: a("s_mov_b64 exec, -1")
                for kk in range(nkk): mfma(dacc + 4 * cg, frs[cg] + 4 * kk, ACT + 4 * kk, kk == 0)
            if cg >= lag: fin(cg - lag)
        setexec(sum(MASKC[:n]))
        a(f"buffer_store_dwordx4 {vr(out,4)}, v{VPUB}, {sr(R_WS,4)}, s5 offen sc1\ns_mov_b64 exec, -1")
    BT = WK + 7
    def gather(loads, t0, kind="sent", tags=None, masked=True, between=None):
        L = a.newlabel("L_g"); Ld = a.newlabel("L_gd"); Lc = a.newlabel("L_gc")
        PM = 40
        def ld(dst, wd, va, so):
            if so: a(f"s_mov_b32 s5, {so}")
            a(f"buffer_load_dword{'' if wd == 1 else 'x'+str(wd)} {vr(dst,wd)}, v{va}, {sr(R_WS,4)}, {'s5' if so else '0'} offen sc1")
        op3, op2 = ("v_max3_u32", "v_max_u32") if kind == "sent" else ("v_or3_b32", "v_or_b32")
        def tree(regs_):
            if len(regs_) == 1: return regs_[0]
            if len(regs_) == 2: a(f"{op2} v{t0}, v{regs_[0]}, v{regs_[1]}"); return t0
            a(f"{op3} v{t0}, v{regs_[0]}, v{regs_[1]}, v{regs_[2]}")
            rest = regs_[3:]
            while rest:
                if len(rest) >= 2: a(f"{op3} v{t0}, v{t0}, v{rest[0]}, v{rest[1]}"); rest = rest[2:]
                else: a(f"{op2} v{t0}, v{t0}, v{rest[0]}"); rest = []
            return t0
        def test(dst_s, r_):
            if kind == "sent": a(f"v_cmp_eq_u32 {dst_s}, -1, v{r_}")
            else: a(f"v_and_b32 v{t0}, 0xff, v{r_}\nv_cmp_ne_u32 {dst_s}, 0, v{t0}")
        def untag(dst, wd):
            for x in range(dst, dst + wd): a(f"v_xor_b32 v{x}, v{x}, v{BT}")
        if not masked: a.label(L)
        for (dst, wd, va, so, em) in loads:
            if em is not None: setexec(em)
            ld(dst, wd, va, so)
            if em is not None: a("s_mov_b64 exec, -1")
        if between: between()
        if not masked: budget_check()
        if kind == "byte":
            for i, (dst, wd, va, so, em) in enumerate(loads):
                a(f"s_waitcnt vmcnt({len(loads)-1-i})")
                if em is not None: setexec(em)
                untag(dst, wd)
                if em is not None: a("s_mov_b64 exec, -1")
        else: a("s_waitcnt vmcnt(0)")
        if kind != "tag":
            test("vcc", tree([x for (dst, wd, _, _, _) in loads for x in range(dst, dst + wd)]))
            if not masked:
                a(f"s_cbranch_vccnz {L}"); return
            a(f"s_cbranch_vccz {Ld}")
        a(f"s_branch {Lc}")
        a.label(L)
        budget_check()
        for i, (dst, wd, va, so, em) in enumerate(loads):
            sk = a.newlabel("L_gs")
            a(f"s_mov_b64 exec, {sr(PM+2*i,2)}\ns_cbranch_execz {sk}")
            ld(dst, wd, va, so)
            a.label(sk)
        a("s_waitcnt vmcnt(0)")
        if kind == "byte":
            for i, (dst, wd, va, so, em) in enumerate(loads):
                a(f"s_mov_b64 exec, {sr(PM+2*i,2)}"); untag(dst, wd)
        a("s_mov_b64 exec, -1")
        a.label(Lc)
        for i, (dst, wd, va, so, em) in enumerate(loads):
            if kind == "tag": a(f"v_cmp_ne_u32 {sr(PM+2*i,2)}, v{tags[i]}, v{TAG}")
            else: test(sr(PM + 2 * i, 2), tree(list(range(dst, dst + wd))))
        a(f"s_mov_b64 s[6:7], {sr(PM,2)}")
        for i in range(1, len(loads)): a(f"s_or_b64 s[6:7], s[6:7], {sr(PM+2*i,2)}")
        a(f"s_cmp_lg_u64 s[6:7], 0\ns_cbranch_scc1 {L}")
        a.label(Ld)
    def tree_sum(base, n, stride=1):
        idx = [base + i * stride for i in range(n)]
        while len(idx) > 1:
            nx = []
            for i in range(0, len(idx) - 1, 2):
                a(f"v_add_f32 v{idx[i]}, v{idx[i]}, v{idx[i+1]}"); nx.append(idx[i])
            if len(idx) & 1: nx.append(idx[-1])
            idx = nx
    def pk_sum4(base, n):
        idx = [base + 4 * i for i in range(n)]
        while len(idx) > 1:
            nx = []
            for i in range(0, len(idx) - 1, 2):
                for h in (0, 2): a(f"v_pk_add_f32 {vr(idx[i]+h,2)}, {vr(idx[i]+h,2)}, {vr(idx[i+1]+h,2)}")
                nx.append(idx[i])
            if len(idx) & 1: nx.append(idx[-1])
            idx = nx
    def col_reduce(b):
        a(f"v_permlane32_swap_b32 v{b}, v{b+1}\nv_permlane32_swap_b32 v{b+2}, v{b+3}\nv_add_f32 v{b}, v{b}, v{b+1}\nv_add_f32 v{b+2}, v{b+2}, v{b+3}")
        a(f"v_permlane16_swap_b32 v{b}, v{b+2}\nv_add_f32 v{b}, v{b}, v{b+2}\nv_add_f32_dpp v{b}, v{b}, v{b} row_ror:8 {DPPF}")
    VCHK = 0
    def xch_read(lbase, nkk, t0, vact, two=False):
        L = a.newlabel("L_x"); Ld = a.newlabel("L_xd")
        a.label(L)
        a(f"ds_read_b32 v{t0}, v{VCHK} offset:{lbase - L_MISC}")
        if two: a(f"ds_read_b32 v{t0+1}, v{VCHK} offset:{lbase - L_MISC + 320}")
        for kk in range(nkk): a(f"ds_read_b128 {vr(ACT+4*kk,4)}, v{vact} offset:{lbase - L_MISC + kk*64}")
        a(f"s_waitcnt lgkmcnt({nkk})")
        if two: a(f"v_pk_max_u16 v{t0}, v{t0}, v{t0+1}")
        a(f"v_cmp_eq_u16 vcc, -1, v{t0}\nv_cmp_le_u32 s[6:7], s38, v{t0}\ns_or_b64 s[6:7], s[6:7], vcc")
        if nkk == 2: a("s_cmp_lg_u32 s6, 0")
        a(f"s_cbranch_scc0 {Ld}")
        budget_check()
        a(f"s_branch {L}")
        a.label(Ld)
        a("s_waitcnt lgkmcnt(0)")

    def mod_tile(t, cnt):
        lds_wait(cnt, 8, WK, VCN)
        tr_tile(FU, L_MOD + t * 16384, 2, WK + 4)
        a("s_waitcnt lgkmcnt(0)")
        if t:
            gemv_pub([FU, FU + 8], 2, FU + 16, FU + 24, MODP + (t - 1) * 512)
            return
        for cg in range(2):
            for kk in range(2): mfma(WK + 4 * cg, FU + 8 * cg + 4 * kk, ACT + 4 * kk, kk == 0)
        o = FU + 16
        a(f"v_mov_b32 v{o+1}, v{TAG}\nv_mov_b32 v{o+3}, v{TAG}")
        a(f"v_and_b32 v{o+4}, 2, v1\nv_lshlrev_b32 v{o+4}, 6, v{o+4}\nv_and_b32 v{o+5}, 48, v1\nv_lshl_add_u32 v{o+4}, v{o+5}, 1, v{o+4}\nv_and_b32 v{o+5}, 1, v1\nv_lshl_add_u32 v{o+4}, v{o+5}, 4, v{o+4}")
        for c in range(4):
            setexec(MASKC[c]); a(f"v_mov_b32 v{o}, v{WK+2*c}\nv_mov_b32 v{o+2}, v{WK+2*c+1}")
        setexec(sum(MASKC))
        a(f"s_lshl_b32 s5, s{WV}, 8\ns_add_u32 s5, s5, s{SMY}\ns_add_u32 s5, s5, {HP}")
        a(f"buffer_store_dwordx4 {vr(o,4)}, v{o+4}, {sr(R_WS,4)}, s5 offen sc1\ns_mov_b64 exec, -1")
    mod_tile(0, C_CRIT)
    stamp(2, VST)
    a(f"s_mul_i32 s5, s30, {WS}\ns_lshl_b32 s7, s{WV}, 8\ns_add_u32 s5, s5, s7\ns_add_u32 s5, s5, {HP}")
    a(f"v_lshrrev_b32 v{WK}, 5, v1\nv_mul_u32_u24 v{VA}, {8*WS}, v{WK}\nv_and_b32 v{WK}, 31, v1\nv_lshl_add_u32 v{VA}, v{WK}, 3, v{VA}\nv_add_u32 v{VA}, s5, v{VA}")
    a(f"s_and_b32 s5, s2, 3\ns_lshl_b32 s5, s5, 6\ns_lshl_b32 s6, s{WV}, 4\ns_add_u32 s5, s5, s6\nv_and_b32 v{WK}, 15, v1\nv_add_u32 v{WK}, s5, v{WK}")
    a(f"v_mul_u32_u24 v{TB}, {WS}, v{WK}\nv_add_u32 v{TB}, {HP + 4}, v{TB}")
    lds_wait(C_WQ, 8, WK + 4, VCN)
    tr_tile(FD, L_WQ, 4, WK + 4)
    mod_tile(1, C_MOD1)
    mod_tile(2, C_MOD2)
    stamp(3, VST)
    lds_wait(C_P1, 8, WK + 4, VCN)
    stamp(4, VST)
    gather([(FU + 2 * i, 2, VA, i * 16 * WS, None) for i in range(16)] + [(WK + 1, 1, TB, 0, None)], WK, kind="tag",
           tags=[FU + 2 * i + 1 for i in range(16)] + [WK + 1])
    stamp(5, VST)
    tree_sum(FU, 16, 2); rnd(FU + 1, FU); rnd(FU, FU)
    a(f"v_permlane32_swap_b32 v{FU}, v{FU+1}\nv_add_f32 v{FU+1}, 1.0, v{FU+1}"); rnd(FU + 1, FU + 1)
    a(f"v_mul_f32 v{LN1}, v{LN1}, v{FU+1}"); rnd(LN1, LN1); a(f"v_add_f32 v{LN1}, v{LN1}, v{FU}"); rnd(LN1, LN1)
    a(f"v_and_b32 v{VB}, 31, v1\nv_lshlrev_b32 v{VB}, 1, v{VB}\ns_lshl_b32 s5, s{WV}, 6\ns_add_u32 s5, s5, {L_MISC}\nv_add_u32 v{VB}, s5, v{VB}")
    a(f"ds_write_b16_d16_hi v{VB}, v{LN1} offset:{L_HV - L_MISC}\ns_waitcnt lgkmcnt(0)")
    lds_signal(C_H, VCN, VONE)
    lds_wait(C_H, 4, WK, VCN, sleep=0)
    for kk in range(4): a(f"ds_read_b128 {vr(ACT+4*kk,4)}, v{VACT} offset:{L_HV - L_MISC + kk*64}")
    a("s_waitcnt lgkmcnt(0)")
    gemv_pub([FD, FD + 16], 4, FU, FU + 8, QP, tagged=False)
    stamp(6, VST)
    a(f"s_and_b32 s5, s2, 3\ns_lshl_b32 s5, s5, 3\nv_lshrrev_b32 v{WK+4}, 5, v0\nv_add_u32 v{WK+4}, s5, v{WK+4}\nv_mul_u32_u24 v{VA}, {8*WS}, v{WK+4}")
    a(f"v_and_b32 v{WK+4}, 31, v0\nv_lshl_add_u32 v{VA}, v{WK+4}, 4, v{VA}")
    a(f"v_lshlrev_b32 v{WK+2}, 3, v0\nv_add_u32 v{WK+2}, {L_QV}, v{WK+2}\nv_and_b32 v{BT}, 0xff, v{TAG}")
    lds_wait(C_P2, 8, WK + 4, VCN)
    stamp(20, VST)
    gather([(FG + 4 * i, 4, VA, QP + i * WS, None) for i in range(8)], WK)
    stamp(7, VST)
    pk_sum4(FG, 8)
    a(f"v_cvt_pk_bf16_f32 v{WK}, v{FG}, v{FG+1}\nv_cvt_pk_bf16_f32 v{WK+1}, v{FG+2}, v{FG+3}")
    a(f"ds_write_b64 v{WK+2}, {vr(WK,2)}\ns_waitcnt lgkmcnt(0)")
    lds_signal(C_Q, VCN, VONE)
    a(f"s_add_u32 s5, s2, s{WV}\ns_cmp_lg_u32 s5, 0\ns_cbranch_scc1 L_ep_done")
    a(f"s_mov_b32 s5, {EPOCH}\ns_mov_b64 exec, 1\nbuffer_store_dword v{TAG}, off, {sr(R_WS,4)}, s5 sc1\ns_mov_b64 exec, -1")
    a.label("L_ep_done")
    ROLE, RBF, SFY, VAW = 31, 12, 13, WK + 6
    def role_make():
        a(f"s_cmp_lg_u32 s{WV}, 1\ns_cbranch_scc1 L_role_done")
        if cfg.role == 2:
            lds_wait(C_P4, 8, WK, VCN, sleep=2)
            a(f"s_mul_i32 s5, s30, {WS}\ns_add_u32 s5, s5, {TKT}\nv_mov_b32 v{WK}, 1\ns_mov_b64 exec, 1")
            a(f"buffer_atomic_add v{WK}, off, {sr(R_WS,4)}, s5 sc0 sc1\ns_waitcnt vmcnt(0)\nv_readfirstlane_b32 s36, v{WK}\ns_add_u32 s36, s36, 1")
        if cfg.role == 0: a("s_mov_b32 s5, s2")
        else:
            if cfg.role == 1: a("s_lshr_b32 s36, s2, 3")
            a("s_lshr_b32 s6, s36, 3\ns_mul_i32 s5, s30, 3\ns_add_u32 s5, s5, s6\ns_add_u32 s7, s30, 24\ns_cmp_lt_u32 s6, 3\ns_cselect_b32 s5, s5, s7")
            a("s_cmp_lt_u32 s6, 4\ns_cselect_b32 s5, s5, 28\ns_lshl_b32 s5, s5, 3\ns_and_b32 s6, s36, 7\ns_add_u32 s5, s5, s6")
        a(f"s_add_u32 s5, s5, 1\nv_mov_b32 v{WK}, s5\ns_mov_b64 exec, 1\nds_write_b32 v{VCN}, v{WK} offset:{C_ROLE*4}\ns_mov_b64 exec, -1")
        a.label("L_role_done")
    def rest_mod():
        lds_wait(C_ROLE, 1, WK, VCN, sleep=2)
        a(f"s_sub_u32 s{ROLE}, s5, 1")
        a(f"s_and_b32 s{RBF}, s{ROLE}, 7\ns_mul_i32 s{SFY}, s{ROLE}, {WS}\ns_lshl_b32 s32, s{RBF}, 7\ns_lshl_b32 s5, s{WV}, 5\ns_add_u32 s32, s32, s5")
        a(f"s_lshl_b32 s5, s32, 1\nbuffer_load_ushort v{K_X}, v{K_C1}, {sr(R_X,4)}, s5 offen")
        a(f"v_lshrrev_b32 v{WK}, 3, v1\nv_mul_u32_u24 v{WK+1}, {WS}, v{WK}\nv_and_b32 v{WK+2}, 7, v1\nv_lshlrev_b32 v{WK+2}, 4, v{WK+2}")
        a(f"s_mul_i32 s34, s{RBF}, {WS}\ns_lshl_b32 s6, s{WV}, 7\ns_add_u32 s34, s34, s6")
        a(f"v_lshl_add_u32 v{VA}, v{WK+1}, 4, v{WK+2}\nv_add_u32 v{VA}, s34, v{VA}")
        mv = [MODP, MODP + 8 * WS, MODP + 512, MODP + 512 + 8 * WS]
        gather([(FG + 8 * v + 4 * i, 4, VA, mv[v] + i * 128 * WS, None) for v in range(4) for i in range(2)], WK, kind="byte")
        for v in range(4):
            pk_sum4(FG + 8 * v, 2); col_reduce(FG + 8 * v)
        a(f"v_and_b32 v{WK+3}, 8, v1\nv_mul_u32_u24 v{WK+3}, 40, v{WK+3}\ns_lshl_b32 s5, s{WV}, 6\ns_add_u32 s5, s5, {L_AT}\nv_add3_u32 v{VAW}, v{WK+3}, v{K_C1}, s5")
        a(f"v_mov_b32 v{TB}, v{K_C1}")
        rnd(K_GA, FG); rnd(FG + 8, FG + 8); rnd(K_C1, FG + 16); rnd(K_GB, FG + 24)
        a(f"v_add_f32 v{K_C1}, 1.0, v{K_C1}"); rnd(K_C1, K_C1)
        a(f"v_mov_b32_dpp v{FG+8}, v{K_C1} quad_perm:[0,1,2,3] row_mask:0xf bank_mask:0x3")
        a(f"ds_write_b16_d16_hi v{VAW}, v{FG+8} offset:640")
        if cfg.elocal:
            assert cfg.role in (1, 2)
            a(f"v_and_b32 v{WK+3}, 31, v1\nv_lshl_add_u32 v{WK+3}, v{WK+3}, 3, s30\nv_mul_u32_u24 v{WK+3}, {WS}, v{WK+3}")
            gather([(FG, 2, WK + 3, XCP, None)], WK, kind="tag", tags=[FG + 1])
            a(f"v_cmp_ne_u32 vcc, s14, v{FG}\ns_cmp_eq_u64 vcc, 0\ns_cselect_b32 s15, 1, 0")
        stamp(8, VST)
        a(f"v_lshlrev_b32 v{K_X}, 16, v{K_X}")
    role_make()
    a(f"s_cmp_lg_u32 s{WV}, 0\ns_cbranch_scc1 L_ml_pub")
    lds_wait(C_ML, 8, WK, VCN, sleep=2)
    stamp(9, VST)
    a(f"v_lshlrev_b32 v{WK+2}, 3, v1\nv_add_u32 v{WK+3}, {L_MLW}, v{WK+2}\nds_read_b64 {vr(WK,2)}, v{WK+3}\ns_waitcnt lgkmcnt(0)")
    a(f"v_mov_b32 v{WK+4}, v{WK}")
    xreduce("v_max_f32", WK + 4, WK + 6, (8, 16, 32))
    a(f"v_sub_f32 v{WK}, v{WK}, v{WK+4}\nv_mul_f32 v{WK}, s33, v{WK}\nv_exp_f32 v{WK}, v{WK}\nv_mul_f32 v{WK+5}, v{WK}, v{WK+1}")
    xreduce("v_add_f32", WK + 5, WK + 6, (8, 16, 32))
    a(f"s_add_u32 s5, s{SMY}, {MLP}\ns_mov_b64 exec, 0xff\nbuffer_store_dwordx2 {vr(WK+4,2)}, v{WK+2}, {sr(R_WS,4)}, s5 offen sc1\ns_mov_b64 exec, -1")
    a.label("L_ml_pub")
    if cfg.role != 2: rest_mod()
    a(f"s_cmp_lg_u32 s{WV}, 0\ns_cbranch_scc1 L_ml_done")
    a(f"v_lshrrev_b32 v{WK}, 3, v1\nv_lshlrev_b32 v{WK}, 2, v{WK}\ns_and_b32 s5, s2, 3\nv_add_u32 v{WK}, s5, v{WK}\nv_mul_u32_u24 v{VA}, {WS}, v{WK}")
    a(f"v_and_b32 v{WK}, 7, v1\nv_lshl_add_u32 v{VA}, v{WK}, 3, v{VA}")
    lds_wait(C_P3, 8, WK, VCN)
    stamp(21, VST)
    gather([(FU + 2 * i, 2, VA, MLP + i * 32 * WS, None) for i in range(8)], WK)
    m_, r_, t_ = FU + 16, FU + 17, FU + 18
    a(f"v_max3_f32 v{m_}, v{FU}, v{FU+2}, v{FU+4}\nv_max3_f32 v{m_}, v{m_}, v{FU+6}, v{FU+8}\nv_max3_f32 v{m_}, v{m_}, v{FU+10}, v{FU+12}\nv_max_f32 v{m_}, v{m_}, v{FU+14}")
    xreduce("v_max_f32", m_, t_, (8, 16, 32))
    for i in range(8):
        a(f"v_sub_f32 v{FU+2*i}, v{FU+2*i}, v{m_}\nv_mul_f32 v{FU+2*i}, s33, v{FU+2*i}\nv_exp_f32 v{FU+2*i}, v{FU+2*i}")
    for i in range(8): a(f"v_mul_f32 v{FU+2*i}, v{FU+2*i}, v{FU+2*i+1}")
    tree_sum(FU, 8, 2)
    xreduce("v_add_f32", FU, t_, (8, 16, 32))
    a(f"v_rcp_f32 v{r_}, v{FU}")
    a(f"v_lshlrev_b32 v{t_}, 3, v1\nv_add_u32 v{t_}, {L_MLF}, v{t_}\ns_mov_b64 exec, 0xff\nds_write_b64 v{t_}, {vr(m_,2)}\ns_waitcnt lgkmcnt(0)")
    lds_signal(C_MLD, VCN, VONE)
    stamp(10, VST)
    a.label("L_ml_done")
    if cfg.role == 2: rest_mod()
    late = lst(cfg.late)
    def wo_frags(t0):
        lds_wait(C_WO, 8, t0, VCN, sleep=0 if "wo" in late else 2)
        a(f"v_and_b32 v{t0}, 0xffffff00, v{VTR}\nv_add_u32 v{t0}, v{t0}, v{VTR}\ns_lshl_b32 s5, s{WV}, 6\nv_xor_b32 v{t0}, s5, v{t0}\ns_lshl_b32 s5, s{WV}, 7\nv_xor_b32 v{t0}, s5, v{t0}\nv_add_u32 v{t0}, {L_WO}, v{t0}")
        for cg in range(4):
            if cg: a(f"v_xor_b32 v{t0+1}, {32*cg}, v{t0}")
            tr_read(FWO + 8 * cg, t0 + (1 if cg else 0), 2, 512)
    def ffn_frags(name, t0):
        base, dst, cnt = {"gate": (L_GATE, FG, C_GATE), "up": (L_UP, FU, C_UP), "dn": (L_DN, FD, None)}[name]
        if cnt is not None: lds_wait(cnt, 8, t0, VCN, sleep=0 if name in late else 2)
        tr_tile(dst, base, 4, t0)
    if "wo" not in late: wo_frags(WK + 3)
    for name in ("gate", "up"):
        if name not in late: ffn_frags(name, WK + 3)
    A_OS, A_OG, A_XW = ACT + 8, ACT + 9, ACT + 10
    A_A = WK + 5
    a(f"s_lshr_b32 s5, s{RBF}, 1\ns_mul_i32 s5, s5, {8*WS}\ns_and_b32 s6, s{RBF}, 1\ns_lshl_b32 s6, s6, 9\ns_add_u32 s5, s5, s6\ns_lshl_b32 s6, s{WV}, 7\ns_add_u32 s5, s5, s6")
    a(f"v_add3_u32 v{VA}, v{WK+1}, v{WK+2}, s5")
    a(f"v_lshl_add_u32 v{WK+1}, v{WK+1}, 3, v{WK+2}\nv_add_u32 v{WK+1}, s34, v{WK+1}")
    a(f"s_and_b32 s5, s{ROLE}, 0xf8\ns_mul_i32 s5, s5, {WS}\ns_lshl_b32 s6, s{WV}, 10\ns_add_u32 s5, s5, s6\nv_lshlrev_b32 v{WK+2}, 4, v1\nv_add_u32 v{WK+2}, s5, v{WK+2}")
    A_Y, A_Z, A_E = VA, WK + 1, WK + 2
    a(f"v_lshrrev_b32 v{WK}, 4, v1\nv_and_b32 v{WK+3}, 15, v1\nv_lshlrev_b32 v{A_OS}, 10, v{WK}\nv_lshl_add_u32 v{A_OS}, v{WK+3}, 4, v{A_OS}")
    a(f"s_lshl_b32 s5, s{WV}, 8\ns_add_u32 s5, s5, {L_OS}\nv_add_u32 v{A_OS}, s5, v{A_OS}")
    a(f"v_and_b32 v{A_OG}, 7, v1\nv_lshlrev_b32 v{A_OG}, 9, v{A_OG}\nv_lshl_add_u32 v{A_OG}, v{WK}, 4, v{A_OG}\nv_and_b32 v{WK+3}, 8, v1\nv_lshl_add_u32 v{A_OG}, v{WK+3}, 3, v{A_OG}")
    a(f"s_lshl_b32 s37, s{WV}, 7\ns_add_u32 s37, s37, s{SMY}\ns_add_u32 s37, s37, {OP}")
    a(f"s_lshr_b32 s5, s2, 6\nv_and_b32 v{WK+3}, 60, v1\nv_add_u32 v{WK+3}, s5, v{WK+3}\nv_mul_u32_u24 v{A_A}, {WS}, v{WK+3}")
    a(f"s_lshr_b32 s5, s2, 5\ns_and_b32 s5, s5, 1\ns_lshl_b32 s5, s5, 3\ns_add_u32 s5, s5, s30\ns_lshl_b32 s5, s5, 8\ns_lshl_b32 s6, s{WV}, 6\ns_add_u32 s5, s5, s6")
    a(f"v_and_b32 v{WK+3}, 3, v1\nv_lshl_add_u32 v{A_A}, v{WK+3}, 4, v{A_A}\nv_add_u32 v{A_A}, s5, v{A_A}")
    a(f"v_bfe_u32 v{WK+4}, v1, 4, 1\nv_lshl_add_u32 v{WK+3}, v{WK+4}, 4, v{WK+3}\nv_lshrrev_b32 v{WK+4}, 5, v1\nv_lshl_add_u32 v{WK+3}, v{WK+4}, 3, v{WK+3}")
    a(f"s_lshr_b32 s5, s{WV}, 1\ns_lshl_b32 s5, s5, 6\ns_and_b32 s6, s{WV}, 1\ns_lshl_b32 s6, s6, 3\ns_add_u32 s5, s5, s6\ns_add_u32 s5, s5, {L_OV}")
    a(f"v_lshlrev_b32 v{A_XW}, 1, v{WK+3}\nv_add_u32 v{A_XW}, s5, v{A_XW}")
    a(f"v_lshlrev_b32 v{VCHK}, 2, v1\nv_add_u32 v{VCHK}, {L_MISC}, v{VCHK}")
    def e_preread(t):
        a(f"v_lshlrev_b32 v{t}, 7, v1\ns_lshl_b32 s5, s{WV}, 10\ns_add_u32 s5, s5, s{SFY}\ns_add_u32 s5, s5, {GUP}\ns_mov_b64 exec, 0xff")
        a(f"buffer_load_dword v{t}, v{t}, {sr(R_WS,4)}, s5 offen sc1\ns_mov_b64 exec, -1")
    if cfg.zt:
        a(f"v_lshlrev_b32 v{WK+4}, 7, v1\ns_lshl_b32 s5, s{WV}, 8\ns_add_u32 s5, s5, s{SMY}\ns_add_u32 s5, s5, {YP}\ns_mov_b64 exec, 3\nbuffer_load_dword v{WK+3}, v{WK+4}, {sr(R_WS,4)}, s5 offen sc1")
        a(f"s_lshl_b32 s5, s{WV}, 7\ns_add_u32 s5, s5, s{SFY}\ns_add_u32 s5, s5, {ZP}\ns_mov_b64 exec, 1\nbuffer_load_dword v{WK+3}, off, {sr(R_WS,4)}, s5 sc1")
        if cfg.zt == 2: a(f"s_lshl_b32 s5, s{WV}, 10\ns_add_u32 s5, s5, s{SMY}\ns_add_u32 s5, s5, {OP}\ns_mov_b64 exec, 0xff\nbuffer_load_dword v{WK+3}, v{WK+4}, {sr(R_WS,4)}, s5 offen sc1")
        a("s_mov_b64 exec, -1\ns_waitcnt vmcnt(0)")
    if cfg.elocal and cfg.epre == 1: e_preread(WK + 3); a("s_waitcnt vmcnt(0)")
    a("s_waitcnt lgkmcnt(0)")
    stamp(11, VST)
    a("s_barrier")
    stamp(12, VST)
    for s in range(8): a(f"ds_read_b128 {vr(FD+4*s,4)}, v{A_OS} offset:{s*4096}")
    a("s_waitcnt lgkmcnt(4)"); pk_sum4(FD, 4)
    a("s_waitcnt lgkmcnt(0)"); pk_sum4(FD + 16, 4)
    a(f"v_pk_add_f32 {vr(FD,2)}, {vr(FD,2)}, {vr(FD+16,2)}\nv_pk_add_f32 {vr(FD+2,2)}, {vr(FD+2,2)}, {vr(FD+18,2)}")
    for i in range(4): tagit(FD + i, FD + i)
    a(f"buffer_store_dwordx4 {vr(FD,4)}, v{A_OG}, {sr(R_WS,4)}, s37 offen sc1")
    stamp(13, VST)
    def betweenA():
        lds_signal(C_OR, VCN, VONE)
        if "wo" in late: wo_frags(WK + 3)
    gather([(FD + 16 + 4 * i, 4, A_A, OP + i * 64 * WS, None) for i in range(4)], WK, kind="byte", between=betweenA)
    if cfg.yrel: lds_signal(C_Y, VCN, VONE)
    stamp(14, VST)
    pk_sum4(FD + 16, 4)
    col_reduce(FD + 16)
    a(f"v_add_f32_dpp v{FD+16}, v{FD+16}, v{FD+16} row_ror:4 {DPPF}")
    rnd(FD + 16, FD + 16)
    a(f"ds_write_b16_d16_hi v{A_XW}, v{FD+16}")
    xch_read(L_OV, 2, WK, VACT)
    gemv_pub([FWO, FWO + 8, FWO + 16, FWO + 24], 2, FD, FD + 16, YP)
    if not cfg.yrel: lds_signal(C_Y, VCN, VONE)
    stamp(15, VST)
    a(f"s_cmp_ge_u32 s{ROLE}, 224\ns_cbranch_scc1 L_fin\ns_mov_b32 s{SMY}, s{SFY}")
    A_AT, A_SW, A_SR = FD + 20, FD + 21, FD + 22
    a(f"v_and_b32 v{WK}, 3, v1\nv_mul_u32_u24 v{WK}, 320, v{WK}\nv_add_u32 v{A_AT}, v{WK}, v{VACT}")
    a(f"v_bfe_u32 v{WK}, v1, 3, 1\nv_and_b32 v{WK+3}, 1, v1\nv_lshl_add_u32 v{WK}, v{WK+3}, 3, v{WK}\ns_lshl_b32 s5, s{WV}, 3\ns_add_u32 s5, s5, {L_ST}\nv_lshl_add_u32 v{A_SW}, v{WK}, 2, s5")
    a(f"v_and_b32 v{WK}, 15, v1\nv_lshlrev_b32 v{A_SR}, 2, v{WK}\nv_add_u32 v{A_SR}, {L_ST}, v{A_SR}")
    a(f"s_mov_b32 s34, 0xaaaaaaaa\ns_mov_b32 s35, 0xaaaaaaaa")
    if cfg.elocal and cfg.epre == 2: e_preread(FD + 23)
    def gu_frags():
        for name in ("gate", "up"):
            if name in late: ffn_frags(name, WK + 3)
    if cfg.bgate == 1: gu_frags()
    if cfg.ackB: a("s_waitcnt vmcnt(0)")
    gather([(FWO + 4 * i, 4, A_Y, YP + i * 32 * WS, None) for i in range(8)], WK, kind="byte", between=gu_frags if cfg.bgate == 2 else None)
    stamp(16, VST)
    pk_sum4(FWO, 8)
    col_reduce(FWO)
    y_ = FWO
    rnd(y_, y_); a(f"v_mul_f32 v{y_}, v{y_}, v{K_GA}"); rnd(y_, y_); a(f"v_add_f32 v{K_X}, v{K_X}, v{y_}"); rnd(K_X, K_X)
    a(f"v_mul_f32 v{y_}, v{K_X}, v{K_C1}"); rnd(y_ + 1, y_)
    a(f"v_mov_b32 v{y_+2}, v{K_X}")
    a(f"v_subrev_f32_dpp v{y_}, v{y_+1}, v{y_} quad_perm:[0,1,2,3] row_mask:0xf bank_mask:0xc")
    rnd(y_, y_)
    a(f"ds_write_b16_d16_hi v{VAW}, v{y_}")
    st_ = y_ + 2
    a(f"v_mul_f32_dpp v{st_}, v{K_X}, v{K_X} quad_perm:[0,1,2,3] row_mask:0xf bank_mask:0xc")
    xreduce("v_add_f32", st_, st_ + 1, (32, 16, "quad_perm:[1,0,3,2]", "quad_perm:[2,3,0,1]", "row_half_mirror"))
    a(f"v_and_b32 v{st_+1}, 0xffffff00, v{st_}\nv_sub_f32 v{st_}, v{st_}, v{st_+1}\nv_cndmask_b32 v{st_}, v{st_+1}, v{st_}, s[34:35]")
    a(f"ds_write_b32 v{A_SW}, v{st_}")
    if cfg.bgate == 0: gu_frags()
    xch_read(L_AT, 4, WK + 3, A_AT, two=True)
    stamp(22, VST)
    frs = [FG, FG + 16, FU, FU + 16]; dacc = FWO; out = FWO + 16
    a(f"s_lshl_b32 s36, s{WV}, 10\ns_add_u32 s36, s36, s{SMY}\ns_add_u32 s36, s36, {GUP}\nv_lshlrev_b32 v{WK+4}, 4, v1")
    Ls = a.newlabel("L_st")
    for cg in range(5):
        if cg < 4:
            if cg > 1: a("s_mov_b64 exec, -1")
            for kk in range(4): mfma(dacc + 4 * cg, ACT + 4 * kk, frs[cg] + 4 * kk, kk == 0)
        if cg == 0: a(f"ds_read_b32 v{out+3}, v{A_SR}")
        if cg >= 1:
            d = dacc + 4 * (cg - 1)
            setexec(0xffff << (16 * (cg - 1)))
            a(f"v_add_f32 v{out}, v{d}, v{d+1}"); tagit(out + 1, d + 2); tagit(out + 2, d + 3)
    a("s_mov_b64 exec, -1")
    tagit(out, out)
    Lok = a.newlabel("L_stok")
    a.label(Ls)
    a(f"s_waitcnt lgkmcnt(0)\nv_cmp_eq_u32 vcc, -1, v{out+3}\ns_cbranch_vccz {Lok}")
    a(f"ds_read_b32 v{out+3}, v{A_SR}"); budget_check(); a(f"s_branch {Ls}")
    a.label(Lok)
    tagit(out + 3, out + 3)
    if cfg.elocal:
        a("s_cmp_eq_u32 s15, 0\ns_cbranch_scc1 L_e_far")
        a(f"buffer_store_dwordx4 {vr(out,4)}, v{WK+4}, {sr(R_WS,4)}, s36 offen\ns_branch L_e_st")
        a.label("L_e_far")
    a(f"buffer_store_dwordx4 {vr(out,4)}, v{WK+4}, {sr(R_WS,4)}, s36 offen sc1")
    if cfg.elocal: a.label("L_e_st")
    stamp(23, VST)
    a("s_barrier")
    ffn_frags("dn", WK + 3)
    if cfg.ackE: a("s_waitcnt vmcnt(0)")
    stamp(17, VST)
    gather([(FG + 4 * i, 4, A_E, GUP + i * WS, None) for i in range(8)], WK, kind="byte", masked=False)
    stamp(18, VST)
    pk_sum4(FG, 8)
    g_ = FG; s_ = FG + 3
    xreduce("v_add_f32", s_, None, (2, 4, 8))
    a(f"v_mul_f32 v{s_}, {f2u(1.0/1024):#x}, v{s_}")
    a(f"v_mov_b32_dpp v{g_+4}, v{s_} quad_perm:[0,0,2,2] {DPPF}\nv_mov_b32_dpp v{g_+5}, v{s_} quad_perm:[1,1,3,3] {DPPF}")
    a(f"v_fma_f32 v{g_+5}, -v{g_+4}, v{g_+4}, v{g_+5}"); rnd(g_ + 4, g_ + 4)
    a(f"v_max_f32 v{g_+5}, 0, v{g_+5}\nv_fma_f32 v{g_}, -v{g_+4}, v{g_+1}, v{g_}")
    den_from_var(g_ + 5, g_ + 6)
    a(f"v_fma_f32 v{g_}, v{g_}, v{g_+6}, v{g_+2}")
    rnd(g_ + 1, g_); rnd(g_, g_)
    a(f"v_permlane32_swap_b32 v{g_}, v{g_+1}")
    k2 = -2.0 * 0.7978845608028654 * LOG2E
    a(f"v_mul_f32 v{g_+2}, v{g_}, v{g_}\nv_mul_f32 v{g_+3}, {f2u(k2):#x}, v{g_}\nv_mul_f32 v{g_+2}, {f2u(0.044715):#x}, v{g_+2}\nv_fma_f32 v{g_+2}, v{g_+2}, v{g_+3}, v{g_+3}")
    a(f"v_exp_f32 v{g_+2}, v{g_+2}\nv_add_f32 v{g_+2}, 1.0, v{g_+2}\nv_rcp_f32 v{g_+2}, v{g_+2}\nv_mul_f32 v{g_}, v{g_}, v{g_+2}")
    rnd(g_, g_); a(f"v_mul_f32 v{g_}, v{g_}, v{g_+1}"); rnd(g_, g_)
    a(f"ds_write_b16_d16_hi v{VB}, v{g_} offset:{L_HHV - L_MISC}")
    xch_read(L_HHV, 4, WK, VACT)
    gemv_pub([FD, FD + 16], 4, FG, FG + 8, ZP)
    stamp(19, VST)
    a(f"s_cmp_ge_u32 s{ROLE}, 8\ns_cbranch_scc1 L_fin")
    for i in range(4): a(f"v_mov_b32 v{FU+12+i}, 0")
    a("s_lshl_b32 s36, s32, 1")
    if cfg.ackD: a("s_waitcnt vmcnt(0)")
    gather([(FU + 4 * i, 4, A_Z, ZP + i * 64 * WS, None if i < 3 else 0xffffffff) for i in range(4)], WK, kind="byte", masked=False)
    stamp(24, VST)
    pk_sum4(FU, 4)
    col_reduce(FU)
    rnd(FU, FU); a(f"v_mul_f32 v{FU}, v{FU}, v{K_GB}"); rnd(FU, FU); a(f"v_add_f32 v{FU}, v{K_X}, v{FU}")
    setexec(0x00ff00ff00ff00ff)
    rnd(FU, FU)
    a(f"buffer_store_short_d16_hi v{FU}, v{TB}, {sr(R_OUT,4)}, s36 offen" + (" sc1" if cfg.outsc else "") + "\ns_mov_b64 exec, -1")
    stamp(25, VST)
    a.label("L_fin")
    if cfg.stamps:
        a(f"s_lshl_b32 s5, s2, 11\ns_lshl_b32 s6, s3, 7\ns_add_u32 s5, s5, s6\ns_add_u32 s5, s5, 0x8000000\nv_lshlrev_b32 v2, 2, v1")
        a(f"s_mov_b32 exec_hi, 0\nbuffer_store_dword v{VST}, v2, {sr(R_WS,4)}, s5 offen")
    a.label("L_end")
    body = "\n".join(hazard.run(a.l)) + "\n"
    return wrap(body, 256, 768, LDS_BYTES, 168, extra_desc="  .amdhsa_float_denorm_mode_32 3\n")

if __name__ == "__main__":
    out = sys.argv[1]
    kw = {}
    for x in sys.argv[2:]:
        k, v = x.split("="); kw[k] = int(v) if v.lstrip("-").isdigit() else v
    open(out, "w").write(gen(Cfg(**kw)))
```

```python
import sys, os, struct
from asmgen import *
import hazard

def f2u(x): return struct.unpack("<I", struct.pack("<f", x))[0]
LOG2E = 1.4426950408889634

class Cfg:
    D1 = 3; D2 = 3; DV = 3; D3 = 3
    stamps = False
    spin_budget = 1 << 18
    pre1 = "crit,wq,mod1,mod2"
    pre2 = ""
    mid = ""
    late = "wo,gate,up,dn"
    nl0 = 3
    nl2 = 6
    p1 = 10; p2 = 25; p3 = 16
    ackB = 1; ackE = 0; ackD = 1
    bgate = 2
    outsc = 1
    nb = 4
    p5 = 5
    p6 = -1
    ysl = 1
    efirst = 0
    bal = 2
    Dmin = 2; Dmax = 5; th = -12; balk = 0; DVmax = 6; xg = 2
    yrel = 0
    zt = 2
    elocal = 1
    epre = 2
    role = 1
    p4 = 18
    touch = 0
    def __init__(self, **kw):
        for k, v in kw.items():
            assert hasattr(self, k), k
            setattr(self, k, v)

QP, MLP = 0, 512
TKT = 640
BRD = 768
XCP = 896
HP = 1024
MODP = 2048
YP, ZP, OP, GUP = 3072, 4096, 4608, 8704
EPOCH = 8 << 20
L_MOD, L_WQ, L_UP, L_DN, L_WO, L_GATE, L_MISC = 0, 0xC000, 0, 0x8000, 0x14000, 0x1C000, 0x24000
L_OS = L_DN
L_CNT = L_MISC
(C_CRIT, C_WQ, C_MOD1, C_MOD2, C_WO, C_GATE, C_UP, C_DN, C_Q, C_H, C_ML, C_MLD, C_CLR, C_P1, C_P2, C_P3, C_Y, C_OR, C_ROLE, C_P4, C_T, C_TK, C_P5, C_P6) = range(24)
L_QV = L_MISC + 0x100
L_HV = L_MISC + 0x900
L_HHV = L_MISC + 0xA00
L_OV = L_MISC + 0xB00
L_ST = L_MISC + 0xB80
L_SIL = L_MISC + 0xC00
L_MLW = L_MISC + 0xE00
L_MLF = L_MISC + 0x1000
L_AT = L_MISC + 0x1100
LDS_BYTES = 160 * 1024

def is_reducer(w): return w < 8
def vr(a, n=1): return f"v{a}" if n == 1 else f"v[{a}:{a+n-1}]"
def sr(a, n=1): return f"s{a}" if n == 1 else f"s[{a}:{a+n-1}]"

def gen(cfg):
    a = Asm()
    WS = 12928
    BUD = 4
    lst = lambda x: [t for t in x.split(",") if t]
    def srd_load(r, karg_off): a(f"s_load_dwordx2 {sr(r,2)}, s[0:1], {karg_off}")
    def srd_fin(r, nbytes): a(f"s_mov_b32 s{r+2}, {nbytes}\ns_mov_b32 s{r+3}, 0x20000")
    def rnd(d, s): a(f"v_cvt_pk_bf16_f32 v{d}, 0, v{s}")
    def setexec(m): a(f"s_mov_b32 exec_lo, {m & 0xffffffff:#x}\ns_mov_b32 exec_hi, {m >> 32:#x}")
    def stamp(idx, vreg):
        if cfg.stamps: a(f"s_memrealtime s[98:99]\ns_waitcnt lgkmcnt(0)\nv_writelane_b32 v{vreg}, s98, {idx}")
    def budget_check(): a(f"s_sub_u32 s{BUD}, s{BUD}, 1\ns_cbranch_scc1 L_end")
    def lds_wait(cnt, target, vtmp, vaddr, sleep=1):
        L = a.newlabel("L_lw"); Ld = a.newlabel("L_lwd")
        a.label(L)
        a(f"ds_read_b32 v{vtmp}, v{vaddr} offset:{cnt*4}\ns_waitcnt lgkmcnt(0)\nv_readfirstlane_b32 s5, v{vtmp}")
        a(f"s_cmp_ge_u32 s5, {target}\ns_cbranch_scc1 {Ld}")
        if sleep: a(f"s_sleep {sleep}")
        budget_check()
        a(f"s_branch {L}")
        a.label(Ld)
    def lds_signal(cnt, vaddr, vone):
        a(f"s_mov_b64 exec, 1\nds_add_u32 v{vaddr}, v{vone} offset:{cnt*4}\ns_mov_b64 exec, -1")
    DPPF = "row_mask:0xf bank_mask:0xf"
    def xreduce(op, v, t, steps):
        for s in steps:
            if s in (1, 2, 4, 8): a(f"{op}_dpp v{v}, v{v}, v{v} row_ror:{s} {DPPF}")
            elif s == 16: a(f"v_mov_b32 v{t}, v{v}\nv_permlane16_swap_b32 v{v}, v{t}\n{op} v{v}, v{v}, v{t}")
            elif s == 32: a(f"v_mov_b32 v{t}, v{v}\nv_permlane32_swap_b32 v{v}, v{t}\n{op} v{v}, v{v}, v{t}")
            else: a(f"{op}_dpp v{v}, v{v}, v{v} {s} {DPPF}")

    a("s_load_dwordx16 s[68:83], s[0:1], 0\ns_load_dwordx8 s[84:91], s[0:1], 64\ns_load_dwordx4 s[92:95], s[0:1], 96")
    KA = lambda off: 68 + off // 4
    a("s_cmp_ge_u32 s2, 256\ns_cbranch_scc1 L_end")
    a("v_lshrrev_b32 v2, 6, v0\nv_and_b32 v1, 63, v0")
    a("v_readfirstlane_b32 s3, v2")
    a(f"s_mov_b32 s{BUD}, {cfg.spin_budget}")
    if cfg.stamps: a("s_memrealtime s[96:97]")
    a("s_cmp_ge_u32 s3, 8\ns_cbranch_scc1 L_cwave")

    R_MOD, R_WQ, R_WO, R_G, R_U, R_DN, R_K, R_V, R_WSS = 8, 12, 16, 20, 24, 28, 32, 36, 40
    VK, VV, VGU, VDN, VCN, VONE = 2, 3, 4, 5, 6, 7
    Q0, T0, DT, KV = 8, 16, 32, 40
    VMOD, VWQ, VWO, VST = 16, 17, 2, 0
    SB_MOD, SB_WQ, SB_WO, SB_GU, SB_DN, SB_KV, SO, SL, SL4 = 44, 45, 46, 47, 48, 49, 50, 51, 56
    def srd(r, off, nbytes): a(f"s_mov_b64 {sr(r,2)}, {sr(KA(off),2)}\ns_mov_b32 s{r+2}, {nbytes}\ns_mov_b32 s{r+3}, 0x20000")
    a("v_and_b32 v32, 15, v1\nv_lshrrev_b32 v33, 4, v1\nv_lshlrev_b32 v34, 1, v33\nv_xor_b32 v34, v34, v32\nv_lshlrev_b32 v34, 4, v34")
    a(f"v_mul_u32_u24 v{VMOD}, 12288, v33\nv_add_u32 v{VMOD}, v{VMOD}, v34\ns_and_b32 s63, s3, 1\ns_lshl_b32 s63, s63, 7\nv_xor_b32 v{VMOD}, s63, v{VMOD}")
    a(f"v_lshl_add_u32 v{VWQ}, v33, 13, v34")
    a(f"s_lshr_b32 s5, s2, 4\ns_lshl_b32 s5, s5, 6\ns_lshl_b32 s6, s3, 3\ns_add_u32 s5, s5, s6\ns_mul_i32 s5, s5, 12288")
    a(f"s_and_b32 s6, s2, 15\ns_lshl_b32 s6, s6, 8\ns_add_u32 s{SB_MOD}, s5, s6\ns_lshl_b32 s{SL}, s3, 11\ns_lshl_b32 s{SL4}, s3, 12")
    a("s_and_b32 s52, s2, 7\ns_lshr_b32 s53, s2, 3")
    a(f"s_lshl_b32 s5, s52, 7\ns_lshl_b32 s57, s3, 4\ns_add_u32 s54, s5, s57")
    a(f"s_lshl_b32 s5, s54, 13\ns_lshl_b32 s55, s53, 8\ns_add_u32 s{SB_WQ}, s5, s55")
    a("s_waitcnt lgkmcnt(0)")
    srd(R_MOD, 80, 12582912); srd(R_WQ, 24, 8388608)
    def rest_of_setup():
        a(f"v_mul_u32_u24 v{VGU}, 7168, v33\nv_add_u32 v{VGU}, v{VGU}, v34\nv_lshl_add_u32 v{VDN}, v33, 11, v34\nv_lshlrev_b32 v{VV}, 4, v1")
        a(f"v_and_b32 v35, 2, v32\nv_lshlrev_b32 v35, 15, v35\nv_lshrrev_b32 v36, 2, v32\nv_lshl_add_u32 v35, v36, 8, v35")
        a(f"v_and_b32 v36, 1, v32\nv_lshl_add_u32 v35, v36, 6, v35\nv_lshl_add_u32 v{VK}, v33, 4, v35")
        a(f"v_mov_b32 v{VCN}, {L_CNT}\nv_mov_b32 v{VONE}, 1")
        a(f"s_lshr_b32 s5, s2, 5\ns_lshl_b32 s5, s5, 3\ns_add_u32 s5, s5, s52\ns_lshl_b32 s5, s5, 6\ns_lshl_b32 s6, s3, 3\ns_add_u32 s5, s5, s6\ns_lshl_b32 s5, s5, 11")
        a(f"s_and_b32 s6, s53, 3\ns_lshl_b32 s6, s6, 9\ns_add_u32 s{SB_WO}, s5, s6")
        a(f"s_and_b32 s5, s2, 3\ns_lshl_b32 s5, s5, 24\ns_lshr_b32 s6, s2, 2\ns_lshl_b32 s6, s6, 18\ns_add_u32 s5, s5, s6\ns_lshl_b32 s6, s3, 10\ns_add_u32 s{SB_KV}, s5, s6")
        srd(R_WO, 32, 8388608); srd(R_K, 8, 67108864); srd(R_V, 16, 67108864)
        for r, off in ((R_G, 48), (R_U, 56), (R_DN, 64)): srd(r, off, 0)
        if cfg.stamps:
            srd(R_WSS, 104, 0x10000000); a(f"v_mov_b32 v{VST}, 0\nv_writelane_b32 v{VST}, s96, 0")
        a("s_mov_b32 s58, 0x05040100\ns_mov_b32 s59, 0x07060302")
        a("s_barrier")
    issued = []; done = [0]; tiles = {}; signalled = set(); setup = [False]
    TN = dict(crit=2, wq=4, mod1=2, mod2=2, wo=4, gate=4, up=4, dn=4)
    TC = dict(crit=C_CRIT, wq=C_WQ, mod1=C_MOD1, mod2=C_MOD2, wo=C_WO, gate=C_GATE, up=C_UP, dn=C_DN)
    def wait_n(n):
        if len(issued) - done[0] > n:
            a(f"s_waitcnt vmcnt({n})"); done[0] = len(issued) - n
            for name, ids in tiles.items():
                if name not in signalled and len(ids) == TN[name] and max(ids) < done[0]:
                    lds_signal(TC[name], VCN, VONE); signalled.add(name)
                    if name in ("wo", "up"): stamp({"wo": 20, "up": 21}[name], VST)
    def wait_id(i): wait_n(len(issued) - 1 - i)
    def dma(name, i, D):
        srd_, voff, sb, step, lbase, lsreg = {
            "crit": (R_MOD, VMOD, SB_MOD, 4 * 12288, L_MOD, SL), "mod1": (R_MOD, VMOD, SB_MOD, 4 * 12288, L_MOD + 16384, SL),
            "mod2": (R_MOD, VMOD, SB_MOD, 4 * 12288, L_MOD + 32768, SL), "wq": (R_WQ, VWQ, SB_WQ, 4 * 8192, L_WQ, SL4),
            "wo": (R_WO, VWO, SB_WO, 2 * 2048, L_WO, SL4), "gate": (R_G, VGU, SB_GU, 4 * 7168, L_GATE, SL4),
            "up": (R_U, VGU, SB_GU, 4 * 7168, L_UP, SL4), "dn": (R_DN, VDN, SB_DN, 4 * 2048, L_DN, SL4)}[name]
        extra = {"mod1": 4096, "mod2": 8192}.get(name, 0)
        if len(issued) == D and not setup[0]: setup[0] = True; rest_of_setup()
        a(f"s_add_u32 m0, s{lsreg}, {lbase + i*1024}\ns_add_u32 s{SO}, s{sb}, {i*step + extra}")
        wait_n(D - 1)
        a(f"buffer_load_dwordx4 v{voff}, {sr(srd_,4)}, s{SO} offen nt lds")
        if name in ("wq", "gate", "up", "dn") and i in (1, 3): a(f"v_xor_b32 v{voff}, 0x80, v{voff}")
        if name == "wo": a(f"v_xor_b32 v{voff}, 0x40, v{voff}")
        tiles.setdefault(name, []).append(len(issued)); issued.append(name)
    kid = {}; vid = {}; cur_so = [None]
    def kvload(srd_, voff, off, dst, D):
        so = off & ~0xfff
        if cur_so[0] != so:
            a(f"s_add_u32 s60, s{SB_KV}, {so}"); cur_so[0] = so
        if D: wait_n(D - 1)
        a(f"buffer_load_dwordx4 {vr(dst,4)}, v{voff}, {sr(srd_,4)}, s60 offen offset:{off & 0xfff} nt")
        issued.append("kv"); return len(issued) - 1
    def kload(n, u, D): kid[(n, u)] = kvload(R_K, VK, (16 * (n >> 3) + (n & 7)) * 8192 + u * 128, KV + 8 * n + 4 * u, D)
    def vslot(i): return KV + 4 * (i % 24)
    def vload(i, D): vid[i] = kvload(R_V, VV, i * 8192, vslot(i), D)
    def paced(cnt, k, vt):
        a(f"s_mov_b64 exec, 1\nds_add_rtn_u32 v{vt}, v{VCN}, v{VONE} offset:{cnt*4}\ns_mov_b64 exec, -1")
        wait_n(cfg.Dmax - 1)
        go = a.newlabel("L_go")
        a(f"s_waitcnt lgkmcnt(0)\nv_readfirstlane_b32 s5, v{vt}\ns_cmp_gt_i32 s5, {8*k + cfg.th}\ns_cselect_b64 vcc, -1, 0\ns_cbranch_scc1 {go}\ns_waitcnt vmcnt({cfg.Dmin - 1})")
        a.label(go)
    D1, D2 = cfg.D1, cfg.D2
    for name in lst(cfg.pre1):
        for i in range(TN[name]): dma(name, i, D1)
    stamp(11, VST)
    for n in range(16):
        for u in range(2):
            if cfg.balk and 2 * n + u >= 4:
                paced(C_TK, 2 * n + u - 4, DT); kload(n, u, 0)
            else: kload(n, u, D1)
            if 2 * n + u == cfg.p1: lds_signal(C_P1, VCN, VONE)
            if 2 * n + u == cfg.p2: lds_signal(C_P2, VCN, VONE)
    a(f"v_lshrrev_b32 v{DT}, 5, v1\nv_and_b32 v{DT+1}, 31, v1\nv_lshlrev_b32 v{DT+2}, 1, v{DT}\nv_xor_b32 v{DT+1}, v{DT+1}, v{DT+2}\nv_lshlrev_b32 v{DT+1}, 4, v{DT+1}")
    a(f"v_lshl_add_u32 v{VWO}, v{DT}, 11, v{DT+1}\nv_xor_b32 v{VWO}, s63, v{VWO}")
    for name in lst(cfg.pre2):
        for i in range(TN[name]): dma(name, i, D1)
    stamp(1, VST)
    a(f"v_and_b32 v{DT+1}, 7, v1\nv_lshlrev_b32 v{DT+1}, 8, v{DT+1}\nv_and_b32 v{DT+2}, 8, v1\nv_lshl_add_u32 v{DT+1}, v{DT+2}, 3, v{DT+1}")
    a(f"v_lshrrev_b32 v{DT+2}, 4, v1\nv_lshl_add_u32 v{DT+1}, v{DT+2}, 4, v{DT+1}\nv_add_u32 v{DT+1}, {L_QV}, v{DT+1}")
    a(f"s_mov_b32 s61, {f2u(128 ** -0.5):#x}\ns_mov_b32 s62, {f2u(LOG2E):#x}")
    lds_wait(C_Q, 4, DT, VCN)
    stamp(2, VST)
    a(f"ds_read_b128 {vr(Q0,4)}, v{DT+1}\nds_read_b128 {vr(Q0+4,4)}, v{DT+1} offset:128\ns_waitcnt lgkmcnt(0)")
    nv = 0
    def fold(n):
        d = DT + 4 * (n & 1)
        a(f"v_add_f32_dpp v{T0+n}, v{d+1}, v{d} row_ror:8 row_mask:0xf bank_mask:0x3")
        a(f"v_add_f32_dpp v{T0+n}, v{d+2}, v{d+3} row_ror:8 row_mask:0xf bank_mask:0xc")
    def post(n):
        rnd(T0 + n, T0 + n); a(f"v_mul_f32 v{T0+n}, s61, v{T0+n}"); rnd(T0 + n, T0 + n)
    for n in range(16):
        wait_id(kid[(n, 1)])
        d = DT + 4 * (n & 1)
        a(f"v_mfma_f32_16x16x32_bf16 {vr(d,4)}, {vr(KV+8*n,4)}, {vr(Q0,4)}, 0")
        a(f"v_mfma_f32_16x16x32_bf16 {vr(d,4)}, {vr(KV+8*n+4,4)}, {vr(Q0+4,4)}, {vr(d,4)}")
        if n >= 1 and nv < D2 and n % 2 == 1:
            vload(nv, 0); nv += 1
        if n >= 2: post(n - 2)
        if n >= 1: fold(n - 1)
    fold(15); post(14); post(15)
    M_, L_, X_ = DT, DT + 1, DT + 2
    a(f"v_max3_f32 v{M_}, v{T0}, v{T0+1}, v{T0+2}")
    for i in range(3, 15, 2): a(f"v_max3_f32 v{M_}, v{M_}, v{T0+i}, v{T0+i+1}")
    a(f"v_max_f32 v{M_}, v{M_}, v{T0+15}")
    xreduce("v_max_f32", M_, X_, (8, 16, 32))
    for i in range(16):
        e = DT + 4 + (i & 3)
        a(f"v_sub_f32 v{e}, v{T0+i}, v{M_}\nv_mul_f32 v{e}, s62, v{e}\nv_exp_f32 v{e}, v{e}")
        if i >= 1:
            p = DT + 4 + ((i - 1) & 3)
            a(f"v_mov_b32 v{L_}, v{p}" if i == 1 else f"v_add_f32 v{L_}, v{L_}, v{p}")
    a(f"v_add_f32 v{L_}, v{L_}, v{DT+7}")
    xreduce("v_add_f32", L_, X_, (8, 16, 32))
    a(f"s_lshl_b32 s5, s3, 6\ns_add_u32 s5, s5, {L_MLW}\nv_lshlrev_b32 v{X_}, 3, v1\nv_add_u32 v{X_}, s5, v{X_}")
    a(f"s_mov_b64 exec, 0xff\nds_write_b64 v{X_}, {vr(M_,2)}\ns_waitcnt lgkmcnt(0)")
    lds_signal(C_ML, VCN, VONE)
    stamp(3, VST)
    nv0 = nv
    while nv < 24:
        if cfg.bal:
            paced(C_T, nv - nv0, DT); vload(nv, 0)
        else: vload(nv, D2)
        if nv == cfg.p3: lds_signal(C_P3, VCN, VONE)
        if nv == cfg.p4 and cfg.role == 2: lds_signal(C_P4, VCN, VONE)
        nv += 1
    for name in lst(cfg.mid):
        for i in range(TN[name]): dma(name, i, D2)
    for name in lst(cfg.pre1) + lst(cfg.pre2): wait_id(max(tiles[name]))
    stamp(4, VST)
    a(f"v_and_b32 v{X_}, 7, v1\nv_lshlrev_b32 v{X_}, 3, v{X_}\nv_add_u32 v{X_}, {L_MLF}, v{X_}")
    lds_wait(C_MLD, 1, DT, VCN)
    stamp(5, VST)
    assert not any(t in cfg.pre1 + cfg.pre2 + cfg.mid for t in ("gate", "up", "dn"))
    a(f"ds_read_b64 {vr(M_,2)}, v{X_}\ns_waitcnt lgkmcnt(0)")
    for i in range(16):
        a(f"v_sub_f32 v{T0+i}, v{T0+i}, v{M_}\nv_mul_f32 v{T0+i}, s62, v{T0+i}\nv_exp_f32 v{T0+i}, v{T0+i}")
    for i in range(16): a(f"v_mul_f32 v{T0+i}, v{T0+i}, v{L_}")
    for i in range(8): a(f"v_cvt_pk_bf16_f32 v{Q0+i}, v{T0+2*i}, v{T0+2*i+1}")
    a("s_mov_b32 s64, 0x00ff00ff\ns_mov_b32 s65, 0x00ff00ff\ns_mov_b32 s66, 0xff00ff00\ns_mov_b32 s67, 0xff00ff00")
    ACC = KV + 96
    PL = lambda G: T0 + 4 * G
    PH = lambda G: KV + 112 + 4 * G
    for G in range(4):
        b, pi = G >> 1, G & 1
        for i in range(4): a(f"v_cndmask_b32 v{(PH if pi else PL)(G)+i}, 0, v{Q0+4*b+i}, s[{64+2*pi}:{65+2*pi}]")
        for i in range(4): a(f"v_mov_b32_dpp v{(PL if pi else PH)(G)+i}, v{(PH if pi else PL)(G)+i} row_ror:8 {DPPF}")
    stage = [DT, DT + 4, Q0, Q0 + 4]
    sidx = 0
    def perm(dst, G, p, j):
        lo = vslot(8 * G + 2 * p) + (j >> 1); hi = vslot(8 * G + 2 * p + 1) + (j >> 1)
        a(f"v_perm_b32 v{dst}, v{hi}, v{lo}, s{58 + (j & 1)}")
    def pv(G, j, st):
        c = "0" if (G == 0 and j < 4) else vr(ACC + 4 * (j & 3), 4)
        a(f"v_mfma_f32_16x16x32_bf16 {vr(ACC+4*(j&3),4)}, {vr(st,4)}, {vr((PH if j >= 4 else PL)(G),4)}, {c}")
    lateq = [(name, i) for name in lst(cfg.late) for i in range(TN[name])]
    assert lateq[-4:] == [("dn", i) for i in range(4)]
    for G in range(3):
        wait_id(vid[8 * G + 7])
        for j in range(8):
            st = stage[sidx & 3]; sidx += 1
            for p in range(4): perm(st + p, G, p, j)
            pv(G, j, st)
            if G in (1, 2) and j % 2 == 0 and nv < 32:
                if cfg.bal:
                    sk = a.newlabel("L_dv")
                    a(f"s_cbranch_vccnz {sk}\ns_waitcnt vmcnt({cfg.DV - 1})")
                    a.label(sk)
                    vload(nv, cfg.DVmax)
                else: vload(nv, cfg.DV)
                nv += 1
    lds_wait(C_ROLE, 1, DT, VCN, sleep=0)
    a("s_sub_u32 s7, s5, 1")
    a("s_mov_b32 s5, 7340032\ns_cmp_lt_u32 s7, 224\ns_cselect_b32 s5, s5, 0")
    for r in (R_G, R_U, R_DN): a(f"s_mov_b32 s{r+2}, s5")
    a("s_and_b32 s52, s7, 7\ns_lshr_b32 s53, s7, 3")
    a(f"s_lshl_b32 s5, s52, 7\ns_add_u32 s5, s5, s57\ns_mul_i32 s5, s5, 7168\ns_lshl_b32 s6, s53, 8\ns_add_u32 s{SB_GU}, s5, s6")
    a(f"s_lshl_b32 s5, s53, 7\ns_add_u32 s5, s5, s57\ns_lshl_b32 s5, s5, 11\ns_lshl_b32 s6, s52, 8\ns_add_u32 s{SB_DN}, s5, s6")
    a(f"s_add_u32 s5, s{SL4}, {L_OS}\nv_add_u32 v{VV}, s5, v{VV}")
    SG = KV + 32
    n0 = min(cfg.nl0, len(lateq) - max(4, cfg.nl2))
    for p in range(3):
        wait_id(vid[24 + 2 * p + 1])
        if p >= 1:
            for _ in range((n0 + 2 - p) // 2):
                name, i = lateq.pop(0); dma(name, i, 63)
        for j in range(8): perm(SG + 4 * j + p, 3, p, j)
    wait_id(vid[31])
    order = [0, 4, 1, 5, 2, 6, 3, 7]
    for k in range(10):
        if k < 8: perm(SG + 4 * order[k] + 3, 3, 3, order[k])
        if k >= 2: pv(3, order[k - 2], SG + 4 * order[k - 2])
    stamp(6, VST)
    for e in range(4): a(f"ds_write_b128 v{VV}, {vr(ACC+4*e,4)} offset:{e*1024}")
    a("s_waitcnt lgkmcnt(0)")
    stamp(7, VST)
    a("s_barrier")
    signalled.add("dn")
    n1 = len(lateq) - cfg.nl2
    for k, (name, i) in enumerate(lateq):
        if k == n1:
            wait_n(0); lds_wait(C_Y, 4, DT, VCN, sleep=cfg.ysl)
        if (name, i) == ("dn", 0) and k < n1: lds_wait(C_OR, 4, DT, VCN)
        dma(name, i, cfg.D3 if k < n1 else 63)
        if k == cfg.p5: assert k < n1; lds_signal(C_P5, VCN, VONE)
        if k == cfg.p6: lds_signal(C_P6, VCN, VONE)
    for name in ("wo", "gate", "up"):
        if name not in signalled: wait_id(max(tiles[name]))
    a("s_waitcnt vmcnt(0)")
    if cfg.stamps:
        stamp(8, VST)
        a(f"s_lshl_b32 s5, s2, 11\ns_lshl_b32 s6, s3, 7\ns_add_u32 s5, s5, s6\ns_add_u32 s5, s5, 0x8000000\nv_lshlrev_b32 v2, 2, v1")
        a(f"s_mov_b32 exec_hi, 0\nbuffer_store_dword v{VST}, v2, {sr(R_WSS,4)}, s5 offen")
    a("s_endpgm")

    a.label("L_cwave")
    a("s_setprio 3")
    R_WS, R_X, R_C, R_OUT = 8, 16, 20, 24
    WV, SMY = 28, 29
    a(f"s_sub_u32 s{WV}, s3, 8\nv_subrev_u32 v0, 512, v0")
    VCN, VONE, VTR, VPUB, VACT, VA, VB, K_X, K_GA, K_GB, VST, K_C1, TAG, TB = 2, 3, 4, 5, 6, 7, 8, 9, 10, 11, 12, 13, 14, 15
    WK = 16
    ACT = WK + 8
    FWO, FG, FU, FD = 40, 72, 104, 136
    a(f"v_mov_b32 v{VCN}, {L_CNT}\nv_mov_b32 v{VONE}, 1\nv_mov_b32 v{WK}, 0")
    a(f"v_lshlrev_b32 v{WK+1}, 2, v1\nv_add_u32 v{WK+1}, {L_CNT}, v{WK+1}\nds_write_b32 v{WK+1}, v{WK}")
    for i in range(4): a(f"v_mov_b32 v{WK+4+i}, -1")
    for base in (L_HHV, L_OV, L_AT, L_AT + 320): a(f"ds_write_b32 v{WK+1}, v{WK+4} offset:{base - L_CNT}")
    a(f"s_mul_i32 s{SMY}, s2, {WS}\ns_and_b32 s30, s2, 7\ns_lshr_b32 s31, s2, 3")
    a(f"v_lshlrev_b32 v{VA}, 4, v1\nv_lshlrev_b32 v{VB}, 1, v1\nv_lshlrev_b32 v{WK+1}, 5, v1")
    a(f"s_lshl_b32 s32, s30, 7\ns_lshl_b32 s35, s{WV}, 5\ns_add_u32 s32, s32, s35")
    a(f"v_and_b32 v{WK+2}, 31, v1\nv_lshlrev_b32 v{WK+3}, 1, v{WK+2}")
    a("s_waitcnt lgkmcnt(0)")
    srd(R_WS, 104, 0x10000000); srd(R_X, 0, 2048); srd(R_C, 72, 2048); srd(R_OUT, 88, 2048)
    XR = FU
    a(f"s_mov_b32 s5, {EPOCH}\nbuffer_load_dword v{TAG}, off, {sr(R_WS,4)}, s5 sc1")
    a(f"s_lshr_b32 s5, s2, 4\ns_lshl_b32 s5, s5, 7\nbuffer_load_ushort v{WK}, v{VB}, {sr(R_C,4)}, s5 offen")
    a(f"buffer_load_dwordx4 {vr(XR,4)}, v{WK+1}, {sr(R_X,4)}, 0 offen\nbuffer_load_dwordx4 {vr(XR+4,4)}, v{WK+1}, {sr(R_X,4)}, 0 offen offset:16")
    a(f"s_lshl_b32 s5, s32, 1\nbuffer_load_ushort v{K_GA}, v{WK+3}, {sr(R_X,4)}, s5 offen")
    a(f"v_and_b32 v{K_C1}, 7, v1\nv_lshlrev_b32 v{K_C1}, 2, v{K_C1}\nv_bfe_u32 v{WK+2}, v1, 4, 1\nv_lshl_add_u32 v{K_C1}, v{WK+2}, 1, v{K_C1}\nv_lshrrev_b32 v{WK+2}, 5, v1\nv_add_lshl_u32 v{K_C1}, v{K_C1}, v{WK+2}, 1")
    a(f"s_cmp_lg_u32 s{WV}, 0\ns_cbranch_scc1 L_clr_done")
    a(f"s_mov_b32 exec_hi, 0xffff\nbuffer_store_dwordx4 {vr(WK+4,4)}, v{VA}, {sr(R_WS,4)}, s{SMY} offen sc1\ns_mov_b32 exec_hi, -1")
    a.label("L_clr_done")
    def touch_rd(t):
        a(f"v_lshlrev_b32 v{t}, 7, v1\ns_mul_i32 s5, s{WV}, {19*128}\ns_add_u32 s5, s5, s{SMY}\ns_add_u32 s5, s5, {YP}")
        setexec((1 << 19) - 1)
        a(f"buffer_load_dword v{t+1}, v{t}, {sr(R_WS,4)}, s5 offen sc1\ns_mov_b64 exec, -1")
    if cfg.touch == 1: touch_rd(WK + 14)
    if cfg.touch == 2:
        a(f"v_lshlrev_b32 v{WK+14}, 4, v0\ns_add_u32 s5, s{SMY}, {YP}\nbuffer_store_dwordx4 {vr(WK+4,4)}, v{WK+14}, {sr(R_WS,4)}, s5 offen sc1")
        a(f"s_add_u32 s5, s{SMY}, {YP+4096}\nbuffer_store_dwordx4 {vr(WK+4,4)}, v{WK+14}, {sr(R_WS,4)}, s5 offen sc1")
        a(f"s_add_u32 s5, s{SMY}, {YP+8192}\nv_cmp_gt_u32 vcc, 96, v0\ns_and_saveexec_b64 s[6:7], vcc\ns_cbranch_execz L_t2\nbuffer_store_dwordx4 {vr(WK+4,4)}, v{WK+14}, {sr(R_WS,4)}, s5 offen sc1")
        a.label("L_t2")
        a("s_mov_b64 exec, -1")
    a("s_barrier")
    if cfg.stamps: a(f"v_mov_b32 v{VST}, 0\nv_writelane_b32 v{VST}, s96, 0")
    a(f"v_lshrrev_b32 v{WK+8}, 4, v1\nv_and_b32 v{WK+9}, 15, v1")
    a(f"v_lshlrev_b32 v{VPUB}, 6, v{WK+9}\nv_lshl_add_u32 v{VPUB}, v{WK+8}, 4, v{VPUB}")
    a(f"v_lshlrev_b32 v{VACT}, 4, v{WK+8}\nv_add_u32 v{VACT}, {L_MISC}, v{VACT}")
    a(f"v_bfe_u32 v{WK+10}, v1, 2, 2\nv_lshl_add_u32 v{WK+11}, v{WK+8}, 3, v{WK+10}\nv_lshlrev_b32 v{VTR}, 8, v{WK+11}")
    a(f"v_and_b32 v{WK+12}, 3, v1\nv_lshl_add_u32 v{VTR}, v{WK+12}, 3, v{VTR}")
    a(f"v_and_b32 v{WK+12}, 1, v{WK+8}\nv_lshl_add_u32 v{WK+12}, v{WK+12}, 2, v{WK+10}\ns_lshl_b32 s5, s{WV}, 1\nv_xor_b32 v{WK+12}, s5, v{WK+12}\nv_lshl_add_u32 v{VTR}, v{WK+12}, 5, v{VTR}")
    a(f"s_mov_b32 s33, {f2u(LOG2E):#x}\ns_mov_b32 s38, 0xffff0000\ns_mov_b32 s39, 0xff")
    a("s_waitcnt vmcnt(0)")
    lds_signal(C_CLR, VCN, VONE)
    a(f"v_add_u32 v{TAG}, 1, v{TAG}")
    stamp(1, VST)
    c_ = WK
    lo2 = LOG2E - struct.unpack("<f", struct.pack("<f", LOG2E))[0]
    a(f"v_lshlrev_b32 v{c_}, 16, v{c_}")
    a(f"v_max_f32 v{WK+13}, {f2u(-87.0):#x}, v{c_}\nv_min_f32 v{WK+13}, {f2u(100.0):#x}, v{WK+13}")
    a(f"v_mul_f32 v{WK+1}, s33, v{WK+13}\nv_fma_f32 v{WK+2}, v{WK+13}, s33, -v{WK+1}\nv_mov_b32 v{WK+3}, {f2u(lo2):#x}\nv_fmac_f32 v{WK+2}, v{WK+13}, v{WK+3}")
    a(f"v_exp_f32 v{WK+1}, -v{WK+1}\nv_mul_f32 v{WK+2}, {f2u(-0.6931471805599453):#x}, v{WK+2}")
    a(f"v_fma_f32 v{WK+1}, v{WK+1}, v{WK+2}, v{WK+1}\nv_add_f32 v{WK+1}, 1.0, v{WK+1}")
    a(f"v_rcp_f32 v{WK+2}, v{WK+1}\nv_mul_f32 v{WK+3}, v{c_}, v{WK+2}\nv_fma_f32 v{WK+13}, -v{WK+3}, v{WK+1}, v{c_}\nv_fmac_f32 v{WK+3}, v{WK+13}, v{WK+2}")
    rnd(WK + 3, WK + 3)
    a(f"s_lshl_b32 s5, s{WV}, 7\ns_add_u32 s6, s5, {L_SIL}\nv_add_u32 v{WK+1}, s6, v{VB}\nds_write_b16_d16_hi v{WK+1}, v{WK+3}")
    a(f"v_add_u32 v{WK+1}, s5, v{VACT}\ns_waitcnt lgkmcnt(0)\nds_read_b128 {vr(ACT,4)}, v{WK+1} offset:{L_SIL-L_MISC}\nds_read_b128 {vr(ACT+4,4)}, v{WK+1} offset:{L_SIL-L_MISC+64}")

    def den_from_var(v, rden):
        rnd(v, v); a(f"v_add_f32 v{v}, {f2u(1e-5):#x}, v{v}"); rnd(v, v)
        a(f"v_sqrt_f32 v{v}, v{v}"); rnd(v, v)
        a(f"v_rcp_f32 v{rden}, v{v}")
    def ln_stats(X, mean_b, rden, t0):
        p1, p2, u1 = t0, t0 + 2, t0 + 4
        a(f"v_readfirstlane_b32 s36, v{X}\ns_mov_b32 s37, s36")
        for i in range(0, 16, 2): a(f"v_pk_add_f32 {vr(X+i,2)}, {vr(X+i,2)}, s[36:37] neg_lo:[0,1] neg_hi:[0,1]")
        a(f"v_pk_mul_f32 {vr(p2,2)}, {vr(X,2)}, {vr(X,2)}\nv_pk_add_f32 {vr(p1,2)}, {vr(X,2)}, {vr(X+2,2)}")
        a(f"v_pk_fma_f32 {vr(p2,2)}, {vr(X+2,2)}, {vr(X+2,2)}, {vr(p2,2)}")
        for i in range(4, 16, 2):
            a(f"v_pk_add_f32 {vr(p1,2)}, {vr(p1,2)}, {vr(X+i,2)}\nv_pk_fma_f32 {vr(p2,2)}, {vr(X+i,2)}, {vr(X+i,2)}, {vr(p2,2)}")
        a(f"v_add_f32 v{p1}, v{p1}, v{p1+1}\nv_add_f32 v{p2}, v{p2}, v{p2+1}")
        a(f"v_permlane32_swap_b32 v{p1}, v{p2}\nv_add_f32 v{p1}, v{p1}, v{p2}")
        xreduce("v_add_f32", p1, u1, (16, 8, 4, 2, 1))
        a(f"v_mul_f32 v{p1}, {f2u(1.0/1024):#x}, v{p1}\nv_mov_b32 v{p2}, v{p1}\nv_permlane32_swap_b32 v{p1}, v{p2}")
        a(f"v_fma_f32 v{p2}, -v{p1}, v{p1}, v{p2}\nv_add_f32 v{p1}, s36, v{p1}\nv_max_f32 v{p2}, 0, v{p2}")
        rnd(mean_b, p1); den_from_var(p2, rden)
    XU = XR + 8
    for i in range(8):
        a(f"v_lshlrev_b32 v{XU+2*i}, 16, v{XR+i}\nv_and_b32 v{XU+2*i+1}, 0xffff0000, v{XR+i}")
    ln_stats(XU, WK, WK + 1, WK + 2)
    LN1 = K_GA
    a(f"v_lshlrev_b32 v{LN1}, 16, v{LN1}")
    a(f"v_sub_f32 v{LN1}, v{LN1}, v{WK}"); rnd(LN1, LN1); a(f"v_mul_f32 v{LN1}, v{LN1}, v{WK+1}"); rnd(LN1, LN1)
    lds_wait(C_CLR, 4, WK + 1, VCN, sleep=0)

    if cfg.elocal:
        a(f"s_getreg_b32 s14, hwreg(HW_REG_XCC_ID)\ns_cmp_lg_u32 s{WV}, 1\ns_cbranch_scc1 L_xc_done")
        a(f"v_mov_b32 v{WK}, s14\nv_mov_b32 v{WK+1}, v{TAG}\ns_add_u32 s5, s{SMY}, {XCP}\ns_mov_b64 exec, 1\nbuffer_store_dwordx2 {vr(WK,2)}, off, {sr(R_WS,4)}, s5 sc1\ns_mov_b64 exec, -1")
        a.label("L_xc_done")
    def tr_read(dst, vaddr, nkk, rs, base=0):
        for kk in range(nkk):
            for q in range(2):
                a(f"ds_read_b64_tr_b16 {vr(dst + kk*4 + 2*q, 2)}, v{vaddr} offset:{base + (32 * kk + 4 * q) * rs}")
    def tr_tile(dst, base, nkk, t0):
        a(f"v_add_u32 v{t0}, {base}, v{VTR}\nv_xor_b32 v{t0+1}, 32, v{t0}")
        tr_read(dst, t0, nkk, 256); tr_read(dst + 4 * nkk, t0 + 1, nkk, 256)
    MASKC = [0x0001000100010001 << i for i in range(4)]
    def mfma(d, x, y, first): a(f"v_mfma_f32_16x16x32_bf16 {vr(d,4)}, {vr(x,4)}, {vr(y,4)}, {'0' if first else vr(d,4)}")
    def tagit(d, s): a(f"v_bfi_b32 v{d}, s39, v{TAG}, v{s}")
    def gemv_pub(frs, nkk, dacc, out, off, tagged=True):
        n = len(frs)
        a(f"s_mul_i32 s5, s{WV}, {n*64}\ns_add_u32 s5, s5, s{SMY}\ns_add_u32 s5, s5, {off}")
        def fin(cg):
            setexec(MASKC[cg])
            for i in range(4):
                if tagged: tagit(out + i, dacc + 4 * cg + i)
                else: a(f"v_mov_b32 v{out+i}, v{dacc+4*cg+i}")
        lag = 2 if nkk == 2 else 1
        for cg in range(n + lag):
            if cg < n:
                if cg > lag: a("s_mov_b64 exec, -1")
                for kk in range(nkk): mfma(dacc + 4 * cg, frs[cg] + 4 * kk, ACT + 4 * kk, kk == 0)
            if cg >= lag: fin(cg - lag)
        setexec(sum(MASKC[:n]))
        a(f"buffer_store_dwordx4 {vr(out,4)}, v{VPUB}, {sr(R_WS,4)}, s5 offen sc1\ns_mov_b64 exec, -1")
    BT = WK + 7
    def gather(loads, t0, kind="sent", tags=None, masked=True, between=None):
        L = a.newlabel("L_g"); Ld = a.newlabel("L_gd"); Lc = a.newlabel("L_gc")
        PM = 40
        def ld(dst, wd, va, so):
            if so: a(f"s_mov_b32 s5, {so}")
            a(f"buffer_load_dword{'' if wd == 1 else 'x'+str(wd)} {vr(dst,wd)}, v{va}, {sr(R_WS,4)}, {'s5' if so else '0'} offen sc1")
        op3, op2 = ("v_max3_u32", "v_max_u32") if kind == "sent" else ("v_or3_b32", "v_or_b32")
        def tree(regs_):
            if len(regs_) == 1: return regs_[0]
            if len(regs_) == 2: a(f"{op2} v{t0}, v{regs_[0]}, v{regs_[1]}"); return t0
            a(f"{op3} v{t0}, v{regs_[0]}, v{regs_[1]}, v{regs_[2]}")
            rest = regs_[3:]
            while rest:
                if len(rest) >= 2: a(f"{op3} v{t0}, v{t0}, v{rest[0]}, v{rest[1]}"); rest = rest[2:]
                else: a(f"{op2} v{t0}, v{t0}, v{rest[0]}"); rest = []
            return t0
        def test(dst_s, r_):
            if kind == "sent": a(f"v_cmp_eq_u32 {dst_s}, -1, v{r_}")
            else: a(f"v_and_b32 v{t0}, 0xff, v{r_}\nv_cmp_ne_u32 {dst_s}, 0, v{t0}")
        def untag(dst, wd):
            for x in range(dst, dst + wd): a(f"v_xor_b32 v{x}, v{x}, v{BT}")
        if not masked: a.label(L)
        for (dst, wd, va, so, em) in loads:
            if em is not None: setexec(em)
            ld(dst, wd, va, so)
            if em is not None: a("s_mov_b64 exec, -1")
        if between: between()
        if not masked: budget_check()
        if kind == "byte":
            for i, (dst, wd, va, so, em) in enumerate(loads):
                a(f"s_waitcnt vmcnt({len(loads)-1-i})")
                if em is not None: setexec(em)
                untag(dst, wd)
                if em is not None: a("s_mov_b64 exec, -1")
        else: a("s_waitcnt vmcnt(0)")
        if kind != "tag":
            test("vcc", tree([x for (dst, wd, _, _, _) in loads for x in range(dst, dst + wd)]))
            if not masked:
                a(f"s_cbranch_vccnz {L}"); return
            a(f"s_cbranch_vccz {Ld}")
        a(f"s_branch {Lc}")
        a.label(L)
        budget_check()
        for i, (dst, wd, va, so, em) in enumerate(loads):
            sk = a.newlabel("L_gs")
            a(f"s_mov_b64 exec, {sr(PM+2*i,2)}\ns_cbranch_execz {sk}")
            ld(dst, wd, va, so)
            a.label(sk)
        a("s_waitcnt vmcnt(0)")
        if kind == "byte":
            for i, (dst, wd, va, so, em) in enumerate(loads):
                a(f"s_mov_b64 exec, {sr(PM+2*i,2)}"); untag(dst, wd)
        a("s_mov_b64 exec, -1")
        a.label(Lc)
        for i, (dst, wd, va, so, em) in enumerate(loads):
            if kind == "tag": a(f"v_cmp_ne_u32 {sr(PM+2*i,2)}, v{tags[i]}, v{TAG}")
            else: test(sr(PM + 2 * i, 2), tree(list(range(dst, dst + wd))))
        a(f"s_mov_b64 s[6:7], {sr(PM,2)}")
        for i in range(1, len(loads)): a(f"s_or_b64 s[6:7], s[6:7], {sr(PM+2*i,2)}")
        a(f"s_cmp_lg_u64 s[6:7], 0\ns_cbranch_scc1 {L}")
        a.label(Ld)
    def tree_sum(base, n, stride=1):
        idx = [base + i * stride for i in range(n)]
        while len(idx) > 1:
            nx = []
            for i in range(0, len(idx) - 1, 2):
                a(f"v_add_f32 v{idx[i]}, v{idx[i]}, v{idx[i+1]}"); nx.append(idx[i])
            if len(idx) & 1: nx.append(idx[-1])
            idx = nx
    def pk_sum4(base, n):
        idx = [base + 4 * i for i in range(n)]
        while len(idx) > 1:
            nx = []
            for i in range(0, len(idx) - 1, 2):
                for h in (0, 2): a(f"v_pk_add_f32 {vr(idx[i]+h,2)}, {vr(idx[i]+h,2)}, {vr(idx[i+1]+h,2)}")
                nx.append(idx[i])
            if len(idx) & 1: nx.append(idx[-1])
            idx = nx
    def col_reduce(b):
        a(f"v_permlane32_swap_b32 v{b}, v{b+1}\nv_permlane32_swap_b32 v{b+2}, v{b+3}\nv_add_f32 v{b}, v{b}, v{b+1}\nv_add_f32 v{b+2}, v{b+2}, v{b+3}")
        a(f"v_permlane16_swap_b32 v{b}, v{b+2}\nv_add_f32 v{b}, v{b}, v{b+2}\nv_add_f32_dpp v{b}, v{b}, v{b} row_ror:8 {DPPF}")
    VCHK = 0
    def xch_read(lbase, nkk, t0, vact, two=False):
        L = a.newlabel("L_x"); Ld = a.newlabel("L_xd")
        a.label(L)
        a(f"ds_read_b32 v{t0}, v{VCHK} offset:{lbase - L_MISC}")
        if two: a(f"ds_read_b32 v{t0+1}, v{VCHK} offset:{lbase - L_MISC + 320}")
        for kk in range(nkk): a(f"ds_read_b128 {vr(ACT+4*kk,4)}, v{vact} offset:{lbase - L_MISC + kk*64}")
        a(f"s_waitcnt lgkmcnt({nkk})")
        if two: a(f"v_pk_max_u16 v{t0}, v{t0}, v{t0+1}")
        a(f"v_cmp_eq_u16 vcc, -1, v{t0}\nv_cmp_le_u32 s[6:7], s38, v{t0}\ns_or_b64 s[6:7], s[6:7], vcc")
        if nkk == 2: a("s_cmp_lg_u32 s6, 0")
        a(f"s_cbranch_scc0 {Ld}")
        budget_check()
        a(f"s_branch {L}")
        a.label(Ld)
        a("s_waitcnt lgkmcnt(0)")

    def mod_tile(t, cnt):
        lds_wait(cnt, 8, WK, VCN)
        tr_tile(FU, L_MOD + t * 16384, 2, WK + 4)
        a("s_waitcnt lgkmcnt(0)")
        if t:
            gemv_pub([FU, FU + 8], 2, FU + 16, FU + 24, MODP + (t - 1) * 512)
            return
        for cg in range(2):
            for kk in range(2): mfma(WK + 4 * cg, FU + 8 * cg + 4 * kk, ACT + 4 * kk, kk == 0)
        o = FU + 16
        a(f"v_mov_b32 v{o+1}, v{TAG}\nv_mov_b32 v{o+3}, v{TAG}")
        a(f"v_and_b32 v{o+4}, 2, v1\nv_lshlrev_b32 v{o+4}, 6, v{o+4}\nv_and_b32 v{o+5}, 48, v1\nv_lshl_add_u32 v{o+4}, v{o+5}, 1, v{o+4}\nv_and_b32 v{o+5}, 1, v1\nv_lshl_add_u32 v{o+4}, v{o+5}, 4, v{o+4}")
        for c in range(4):
            setexec(MASKC[c]); a(f"v_mov_b32 v{o}, v{WK+2*c}\nv_mov_b32 v{o+2}, v{WK+2*c+1}")
        setexec(sum(MASKC))
        a(f"s_lshl_b32 s5, s{WV}, 8\ns_add_u32 s5, s5, s{SMY}\ns_add_u32 s5, s5, {HP}")
        a(f"buffer_store_dwordx4 {vr(o,4)}, v{o+4}, {sr(R_WS,4)}, s5 offen sc1\ns_mov_b64 exec, -1")
    mod_tile(0, C_CRIT)
    stamp(2, VST)
    a(f"s_mul_i32 s5, s30, {WS}\ns_lshl_b32 s7, s{WV}, 8\ns_add_u32 s5, s5, s7\ns_add_u32 s5, s5, {HP}")
    a(f"v_lshrrev_b32 v{WK}, 5, v1\nv_mul_u32_u24 v{VA}, {8*WS}, v{WK}\nv_and_b32 v{WK}, 31, v1\nv_lshl_add_u32 v{VA}, v{WK}, 3, v{VA}\nv_add_u32 v{VA}, s5, v{VA}")
    a(f"s_and_b32 s5, s2, 3\ns_lshl_b32 s5, s5, 6\ns_lshl_b32 s6, s{WV}, 4\ns_add_u32 s5, s5, s6\nv_and_b32 v{WK}, 15, v1\nv_add_u32 v{WK}, s5, v{WK}")
    a(f"v_mul_u32_u24 v{TB}, {WS}, v{WK}\nv_add_u32 v{TB}, {HP + 4}, v{TB}")
    lds_wait(C_WQ, 8, WK + 4, VCN)
    tr_tile(FD, L_WQ, 4, WK + 4)
    mod_tile(1, C_MOD1)
    mod_tile(2, C_MOD2)
    stamp(3, VST)
    lds_wait(C_P1, 8, WK + 4, VCN)
    stamp(4, VST)
    gather([(FU + 2 * i, 2, VA, i * 16 * WS, None) for i in range(16)] + [(WK + 1, 1, TB, 0, None)], WK, kind="tag",
           tags=[FU + 2 * i + 1 for i in range(16)] + [WK + 1])
    stamp(5, VST)
    tree_sum(FU, 16, 2); rnd(FU + 1, FU); rnd(FU, FU)
    a(f"v_permlane32_swap_b32 v{FU}, v{FU+1}\nv_add_f32 v{FU+1}, 1.0, v{FU+1}"); rnd(FU + 1, FU + 1)
    a(f"v_mul_f32 v{LN1}, v{LN1}, v{FU+1}"); rnd(LN1, LN1); a(f"v_add_f32 v{LN1}, v{LN1}, v{FU}"); rnd(LN1, LN1)
    a(f"v_and_b32 v{VB}, 31, v1\nv_lshlrev_b32 v{VB}, 1, v{VB}\ns_lshl_b32 s5, s{WV}, 6\ns_add_u32 s5, s5, {L_MISC}\nv_add_u32 v{VB}, s5, v{VB}")
    a(f"ds_write_b16_d16_hi v{VB}, v{LN1} offset:{L_HV - L_MISC}\ns_waitcnt lgkmcnt(0)")
    lds_signal(C_H, VCN, VONE)
    lds_wait(C_H, 4, WK, VCN, sleep=0)
    for kk in range(4): a(f"ds_read_b128 {vr(ACT+4*kk,4)}, v{VACT} offset:{L_HV - L_MISC + kk*64}")
    a("s_waitcnt lgkmcnt(0)")
    gemv_pub([FD, FD + 16], 4, FU, FU + 8, QP, tagged=False)
    stamp(6, VST)
    a(f"s_and_b32 s5, s2, 3\ns_lshl_b32 s5, s5, 3\nv_lshrrev_b32 v{WK+4}, 5, v0\nv_add_u32 v{WK+4}, s5, v{WK+4}\nv_mul_u32_u24 v{VA}, {8*WS}, v{WK+4}")
    a(f"v_and_b32 v{WK+4}, 31, v0\nv_lshl_add_u32 v{VA}, v{WK+4}, 4, v{VA}")
    a(f"v_lshlrev_b32 v{WK+2}, 3, v0\nv_add_u32 v{WK+2}, {L_QV}, v{WK+2}\nv_and_b32 v{BT}, 0xff, v{TAG}")
    lds_wait(C_P2, 8, WK + 4, VCN)
    stamp(20, VST)
    gather([(FG + 4 * i, 4, VA, QP + i * WS, None) for i in range(8)], WK)
    stamp(7, VST)
    pk_sum4(FG, 8)
    a(f"v_cvt_pk_bf16_f32 v{WK}, v{FG}, v{FG+1}\nv_cvt_pk_bf16_f32 v{WK+1}, v{FG+2}, v{FG+3}")
    a(f"ds_write_b64 v{WK+2}, {vr(WK,2)}\ns_waitcnt lgkmcnt(0)")
    lds_signal(C_Q, VCN, VONE)
    a(f"s_add_u32 s5, s2, s{WV}\ns_cmp_lg_u32 s5, 0\ns_cbranch_scc1 L_ep_done")
    a(f"s_mov_b32 s5, {EPOCH}\ns_mov_b64 exec, 1\nbuffer_store_dword v{TAG}, off, {sr(R_WS,4)}, s5 sc1\ns_mov_b64 exec, -1")
    a.label("L_ep_done")
    ROLE, RBF, SFY, VAW = 31, 12, 13, WK + 6
    def role_make():
        a(f"s_cmp_lg_u32 s{WV}, 1\ns_cbranch_scc1 L_role_done")
        if cfg.role == 2:
            lds_wait(C_P4, 8, WK, VCN, sleep=2)
            a(f"s_mul_i32 s5, s30, {WS}\ns_add_u32 s5, s5, {TKT}\nv_mov_b32 v{WK}, 1\ns_mov_b64 exec, 1")
            a(f"buffer_atomic_add v{WK}, off, {sr(R_WS,4)}, s5 sc0 sc1\ns_waitcnt vmcnt(0)\nv_readfirstlane_b32 s36, v{WK}\ns_add_u32 s36, s36, 1")
        if cfg.role == 0: a("s_mov_b32 s5, s2")
        else:
            if cfg.role == 1: a("s_lshr_b32 s36, s2, 3")
            a("s_lshr_b32 s6, s36, 3\ns_mul_i32 s5, s30, 3\ns_add_u32 s5, s5, s6\ns_add_u32 s7, s30, 24\ns_cmp_lt_u32 s6, 3\ns_cselect_b32 s5, s5, s7")
            a("s_cmp_lt_u32 s6, 4\ns_cselect_b32 s5, s5, 28\ns_lshl_b32 s5, s5, 3\ns_and_b32 s6, s36, 7\ns_add_u32 s5, s5, s6")
        a(f"s_add_u32 s5, s5, 1\nv_mov_b32 v{WK}, s5\ns_mov_b64 exec, 1\nds_write_b32 v{VCN}, v{WK} offset:{C_ROLE*4}\ns_mov_b64 exec, -1")
        a.label("L_role_done")
    def rest_mod():
        lds_wait(C_ROLE, 1, WK, VCN, sleep=2)
        a(f"s_sub_u32 s{ROLE}, s5, 1")
        a(f"s_and_b32 s{RBF}, s{ROLE}, 7\ns_mul_i32 s{SFY}, s{ROLE}, {WS}\ns_lshl_b32 s32, s{RBF}, 7\ns_lshl_b32 s5, s{WV}, 5\ns_add_u32 s32, s32, s5")
        a(f"s_lshl_b32 s5, s32, 1\nbuffer_load_ushort v{K_X}, v{K_C1}, {sr(R_X,4)}, s5 offen")
        a(f"v_lshrrev_b32 v{WK}, 3, v1\nv_mul_u32_u24 v{WK+1}, {WS}, v{WK}\nv_and_b32 v{WK+2}, 7, v1\nv_lshlrev_b32 v{WK+2}, 4, v{WK+2}")
        a(f"s_mul_i32 s34, s{RBF}, {WS}\ns_lshl_b32 s6, s{WV}, 7\ns_add_u32 s34, s34, s6")
        a(f"v_lshl_add_u32 v{VA}, v{WK+1}, 4, v{WK+2}\nv_add_u32 v{VA}, s34, v{VA}")
        mv = [MODP, MODP + 8 * WS, MODP + 512, MODP + 512 + 8 * WS]
        gather([(FG + 8 * v + 4 * i, 4, VA, mv[v] + i * 128 * WS, None) for v in range(4) for i in range(2)], WK, kind="byte")
        for v in range(4):
            pk_sum4(FG + 8 * v, 2); col_reduce(FG + 8 * v)
        a(f"v_and_b32 v{WK+3}, 8, v1\nv_mul_u32_u24 v{WK+3}, 40, v{WK+3}\ns_lshl_b32 s5, s{WV}, 6\ns_add_u32 s5, s5, {L_AT}\nv_add3_u32 v{VAW}, v{WK+3}, v{K_C1}, s5")
        a(f"v_mov_b32 v{TB}, v{K_C1}")
        rnd(K_GA, FG); rnd(FG + 8, FG + 8); rnd(K_C1, FG + 16); rnd(K_GB, FG + 24)
        a(f"v_add_f32 v{K_C1}, 1.0, v{K_C1}"); rnd(K_C1, K_C1)
        a(f"v_mov_b32_dpp v{FG+8}, v{K_C1} quad_perm:[0,1,2,3] row_mask:0xf bank_mask:0x3")
        a(f"ds_write_b16_d16_hi v{VAW}, v{FG+8} offset:640")
        if cfg.elocal:
            assert cfg.role in (1, 2)
            a(f"v_and_b32 v{WK+3}, 31, v1\nv_lshl_add_u32 v{WK+3}, v{WK+3}, 3, s30\nv_mul_u32_u24 v{WK+3}, {WS}, v{WK+3}")
            gather([(FG, 2, WK + 3, XCP, None)], WK, kind="tag", tags=[FG + 1])
            a(f"v_cmp_ne_u32 vcc, s14, v{FG}\ns_cmp_eq_u64 vcc, 0\ns_cselect_b32 s15, 1, 0")
        stamp(8, VST)
        a(f"v_lshlrev_b32 v{K_X}, 16, v{K_X}")
    role_make()
    a(f"s_cmp_lg_u32 s{WV}, 0\ns_cbranch_scc1 L_ml_pub")
    lds_wait(C_ML, 8, WK, VCN, sleep=2)
    stamp(9, VST)
    a(f"v_lshlrev_b32 v{WK+2}, 3, v1\nv_add_u32 v{WK+3}, {L_MLW}, v{WK+2}\nds_read_b64 {vr(WK,2)}, v{WK+3}\ns_waitcnt lgkmcnt(0)")
    a(f"v_mov_b32 v{WK+4}, v{WK}")
    xreduce("v_max_f32", WK + 4, WK + 6, (8, 16, 32))
    a(f"v_sub_f32 v{WK}, v{WK}, v{WK+4}\nv_mul_f32 v{WK}, s33, v{WK}\nv_exp_f32 v{WK}, v{WK}\nv_mul_f32 v{WK+5}, v{WK}, v{WK+1}")
    xreduce("v_add_f32", WK + 5, WK + 6, (8, 16, 32))
    a(f"s_add_u32 s5, s{SMY}, {MLP}\ns_mov_b64 exec, 0xff\nbuffer_store_dwordx2 {vr(WK+4,2)}, v{WK+2}, {sr(R_WS,4)}, s5 offen sc1\ns_mov_b64 exec, -1")
    a.label("L_ml_pub")
    if cfg.role != 2: rest_mod()
    a(f"s_cmp_lg_u32 s{WV}, 0\ns_cbranch_scc1 L_ml_done")
    a(f"v_lshrrev_b32 v{WK}, 3, v1\nv_lshlrev_b32 v{WK}, 2, v{WK}\ns_and_b32 s5, s2, 3\nv_add_u32 v{WK}, s5, v{WK}\nv_mul_u32_u24 v{VA}, {WS}, v{WK}")
    a(f"v_and_b32 v{WK}, 7, v1\nv_lshl_add_u32 v{VA}, v{WK}, 3, v{VA}")
    lds_wait(C_P3, 8, WK, VCN)
    stamp(21, VST)
    gather([(FU + 2 * i, 2, VA, MLP + i * 32 * WS, None) for i in range(8)], WK)
    m_, r_, t_ = FU + 16, FU + 17, FU + 18
    a(f"v_max3_f32 v{m_}, v{FU}, v{FU+2}, v{FU+4}\nv_max3_f32 v{m_}, v{m_}, v{FU+6}, v{FU+8}\nv_max3_f32 v{m_}, v{m_}, v{FU+10}, v{FU+12}\nv_max_f32 v{m_}, v{m_}, v{FU+14}")
    xreduce("v_max_f32", m_, t_, (8, 16, 32))
    for i in range(8):
        a(f"v_sub_f32 v{FU+2*i}, v{FU+2*i}, v{m_}\nv_mul_f32 v{FU+2*i}, s33, v{FU+2*i}\nv_exp_f32 v{FU+2*i}, v{FU+2*i}")
    for i in range(8): a(f"v_mul_f32 v{FU+2*i}, v{FU+2*i}, v{FU+2*i+1}")
    tree_sum(FU, 8, 2)
    xreduce("v_add_f32", FU, t_, (8, 16, 32))
    a(f"v_rcp_f32 v{r_}, v{FU}")
    a(f"v_lshlrev_b32 v{t_}, 3, v1\nv_add_u32 v{t_}, {L_MLF}, v{t_}\ns_mov_b64 exec, 0xff\nds_write_b64 v{t_}, {vr(m_,2)}\ns_waitcnt lgkmcnt(0)")
    lds_signal(C_MLD, VCN, VONE)
    stamp(10, VST)
    a.label("L_ml_done")
    if cfg.bal >= 2:
        NP = 8 * (24 - cfg.D2)
        a(f"s_cmp_lg_u32 s{WV}, 3\ns_cbranch_scc1 L_bal_done")
        h = FU
        a(f"s_mul_i32 s36, s30, {WS}\ns_add_u32 s36, s36, {BRD}\ns_lshr_b32 s37, s2, 3\ns_lshl_b32 s37, s37, 2\ns_add_u32 s37, s37, s36\ns_mov_b32 s40, 0")
        a(f"v_lshlrev_b32 v{h}, 2, v1\nv_lshlrev_b32 v{h+1}, 8, v{TAG}")
        if cfg.bal == 3:
            a(f"s_mov_b32 s5, {8*WS}\nv_writelane_b32 v{h}, s5, 32\nv_mul_u32_u24 v{h+5}, {WS}, v1\ns_lshl_b32 s44, s30, 2\ns_add_u32 s44, s44, {16*WS + BRD}")
            a(f"s_add_u32 s5, s36, {16*WS}\ns_add_u32 s46, s{KA(104)}, s5\ns_addc_u32 s47, s{KA(104)+1}, 0\ns_add_u32 s45, s36, {8*WS}\nv_readfirstlane_b32 s58, v{h+1}")
        a.label("L_bal")
        a(f"ds_read_b32 v{h+2}, v{VCN} offset:{C_T*4}\ns_waitcnt lgkmcnt(0)\nv_readfirstlane_b32 s41, v{h+2}\ns_sub_u32 s41, s41, s40")
        a(f"v_or_b32 v{h+2}, s41, v{h+1}\ns_mov_b64 exec, 1\nbuffer_store_dword v{h+2}, off, {sr(R_WS,4)}, s37")
        a(f"s_mov_b64 exec, -1\ns_cmp_ge_u32 s41, {NP}\ns_cbranch_scc1 L_bal_done")
        a(f"s_mov_b32 exec_hi, {1 if cfg.bal == 3 else 0}\nbuffer_load_dword v{h+3}, v{h}, {sr(R_WS,4)}, s36 offen sc1\ns_mov_b64 exec, -1")
        budget_check()
        a(f"s_waitcnt vmcnt(0)\nv_xor_b32 v{h+3}, v{h+3}, v{h+1}\nv_cmp_gt_u32 vcc, 256, v{h+3}\nv_cndmask_b32 v{h+3}, 0, v{h+3}, vcc")
        if cfg.bal == 3: a(f"v_readlane_b32 s59, v{h+3}, 32")
        xreduce("v_add_u32", h + 3, h + 4, (1, 2, 4, 8, 16))
        a(f"v_readfirstlane_b32 s42, v{h+3}\ns_lshr_b32 s42, s42, 5")
        if cfg.bal == 3:
            a("s_cmp_ge_u32 s2, 8\ns_cbranch_scc1 L_bal_nl")
            a(f"v_or_b32 v{h+2}, s42, v{h+1}\ns_mov_b64 exec, 0xff\nbuffer_store_dword v{h+2}, v{h+5}, {sr(R_WS,4)}, s44 offen sc1")
            a("s_load_dwordx8 s[48:55], s[46:47], 0 glc\ns_mov_b32 s56, 0\ns_mov_b32 s57, 0\ns_waitcnt lgkmcnt(0)")
            for i in range(8):
                a(f"s_xor_b32 s{48+i}, s{48+i}, s58\ns_cmp_lt_u32 s{48+i}, 256\ns_cselect_b32 s{48+i}, s{48+i}, 0\ns_add_u32 s56, s56, s{48+i}\ns_cmp_eq_u32 s30, {i}\ns_cselect_b32 s57, s{48+i}, s57")
            a(f"s_lshr_b32 s56, s56, 3\ns_sub_u32 s56, s56, s57\ns_add_u32 s56, s56, 128\ns_max_i32 s56, s56, 1\ns_min_i32 s56, s56, 255")
            a(f"v_or_b32 v{h+2}, s56, v{h+1}\ns_mov_b64 exec, 1\nbuffer_store_dword v{h+2}, off, {sr(R_WS,4)}, s45\ns_mov_b64 exec, -1")
            a.label("L_bal_nl")
            a(f"s_cmp_eq_u32 s59, 0\ns_cselect_b32 s59, 128, s59\ns_sub_u32 s59, s59, 128\ns_mul_i32 s59, s59, {cfg.xg}\ns_ashr_i32 s59, s59, 1\ns_add_u32 s42, s42, s59")
        a(f"s_sub_u32 s42, s42, s41\ns_sub_u32 s43, s42, s40\ns_mov_b32 s40, s42")
        a(f"v_mov_b32 v{h+2}, s43\ns_mov_b64 exec, 1\nds_add_u32 v{VCN}, v{h+2} offset:{C_T*4}\ns_mov_b64 exec, -1\ns_branch L_bal")
        a.label("L_bal_done")
    if cfg.role == 2: rest_mod()
    late = lst(cfg.late)
    def wo_frags(t0):
        lds_wait(C_WO, 8, t0, VCN, sleep=0 if "wo" in late else 2)
        a(f"v_and_b32 v{t0}, 0xffffff00, v{VTR}\nv_add_u32 v{t0}, v{t0}, v{VTR}\ns_lshl_b32 s5, s{WV}, 6\nv_xor_b32 v{t0}, s5, v{t0}\ns_lshl_b32 s5, s{WV}, 7\nv_xor_b32 v{t0}, s5, v{t0}\nv_add_u32 v{t0}, {L_WO}, v{t0}")
        for cg in range(4):
            if cg: a(f"v_xor_b32 v{t0+1}, {32*cg}, v{t0}")
            tr_read(FWO + 8 * cg, t0 + (1 if cg else 0), 2, 512)
    def ffn_frags(name, t0):
        base, dst, cnt = {"gate": (L_GATE, FG, C_GATE), "up": (L_UP, FU, C_UP), "dn": (L_DN, FD, None)}[name]
        if cnt is not None: lds_wait(cnt, 8, t0, VCN, sleep=0 if name in late else 2)
        tr_tile(dst, base, 4, t0)
    if "wo" not in late: wo_frags(WK + 3)
    for name in ("gate", "up"):
        if name not in late: ffn_frags(name, WK + 3)
    A_OS, A_OG, A_XW = ACT + 8, ACT + 9, ACT + 10
    A_A = WK + 5
    a(f"s_lshr_b32 s5, s{RBF}, 1\ns_mul_i32 s5, s5, {8*WS}\ns_and_b32 s6, s{RBF}, 1\ns_lshl_b32 s6, s6, 9\ns_add_u32 s5, s5, s6\ns_lshl_b32 s6, s{WV}, 7\ns_add_u32 s5, s5, s6")
    a(f"v_add3_u32 v{VA}, v{WK+1}, v{WK+2}, s5")
    a(f"v_lshl_add_u32 v{WK+1}, v{WK+1}, 3, v{WK+2}\nv_add_u32 v{WK+1}, s34, v{WK+1}")
    a(f"s_and_b32 s5, s{ROLE}, 0xf8\ns_mul_i32 s5, s5, {WS}\ns_lshl_b32 s6, s{WV}, 10\ns_add_u32 s5, s5, s6\nv_lshlrev_b32 v{WK+2}, 4, v1\nv_add_u32 v{WK+2}, s5, v{WK+2}")
    A_Y, A_Z, A_E = VA, WK + 1, WK + 2
    a(f"v_lshrrev_b32 v{WK}, 4, v1\nv_and_b32 v{WK+3}, 15, v1\nv_lshlrev_b32 v{A_OS}, 10, v{WK}\nv_lshl_add_u32 v{A_OS}, v{WK+3}, 4, v{A_OS}")
    a(f"s_lshl_b32 s5, s{WV}, 8\ns_add_u32 s5, s5, {L_OS}\nv_add_u32 v{A_OS}, s5, v{A_OS}")
    a(f"v_and_b32 v{A_OG}, 7, v1\nv_lshlrev_b32 v{A_OG}, 9, v{A_OG}\nv_lshl_add_u32 v{A_OG}, v{WK}, 4, v{A_OG}\nv_and_b32 v{WK+3}, 8, v1\nv_lshl_add_u32 v{A_OG}, v{WK+3}, 3, v{A_OG}")
    a(f"s_lshl_b32 s37, s{WV}, 7\ns_add_u32 s37, s37, s{SMY}\ns_add_u32 s37, s37, {OP}")
    a(f"s_lshr_b32 s5, s2, 6\nv_and_b32 v{WK+3}, 60, v1\nv_add_u32 v{WK+3}, s5, v{WK+3}\nv_mul_u32_u24 v{A_A}, {WS}, v{WK+3}")
    a(f"s_lshr_b32 s5, s2, 5\ns_and_b32 s5, s5, 1\ns_lshl_b32 s5, s5, 3\ns_add_u32 s5, s5, s30\ns_lshl_b32 s5, s5, 8\ns_lshl_b32 s6, s{WV}, 6\ns_add_u32 s5, s5, s6")
    a(f"v_and_b32 v{WK+3}, 3, v1\nv_lshl_add_u32 v{A_A}, v{WK+3}, 4, v{A_A}\nv_add_u32 v{A_A}, s5, v{A_A}")
    a(f"v_bfe_u32 v{WK+4}, v1, 4, 1\nv_lshl_add_u32 v{WK+3}, v{WK+4}, 4, v{WK+3}\nv_lshrrev_b32 v{WK+4}, 5, v1\nv_lshl_add_u32 v{WK+3}, v{WK+4}, 3, v{WK+3}")
    a(f"s_lshr_b32 s5, s{WV}, 1\ns_lshl_b32 s5, s5, 6\ns_and_b32 s6, s{WV}, 1\ns_lshl_b32 s6, s6, 3\ns_add_u32 s5, s5, s6\ns_add_u32 s5, s5, {L_OV}")
    a(f"v_lshlrev_b32 v{A_XW}, 1, v{WK+3}\nv_add_u32 v{A_XW}, s5, v{A_XW}")
    a(f"v_lshlrev_b32 v{VCHK}, 2, v1\nv_add_u32 v{VCHK}, {L_MISC}, v{VCHK}")
    def e_preread(t):
        a(f"v_lshlrev_b32 v{t}, 7, v1\ns_lshl_b32 s5, s{WV}, 10\ns_add_u32 s5, s5, s{SFY}\ns_add_u32 s5, s5, {GUP}\ns_mov_b64 exec, 0xff")
        a(f"buffer_load_dword v{t}, v{t}, {sr(R_WS,4)}, s5 offen sc1\ns_mov_b64 exec, -1")
    if cfg.zt:
        a(f"v_lshlrev_b32 v{WK+4}, 7, v1\ns_lshl_b32 s5, s{WV}, 8\ns_add_u32 s5, s5, s{SMY}\ns_add_u32 s5, s5, {YP}\ns_mov_b64 exec, 3\nbuffer_load_dword v{WK+3}, v{WK+4}, {sr(R_WS,4)}, s5 offen sc1")
        a(f"s_lshl_b32 s5, s{WV}, 7\ns_add_u32 s5, s5, s{SFY}\ns_add_u32 s5, s5, {ZP}\ns_mov_b64 exec, 1\nbuffer_load_dword v{WK+3}, off, {sr(R_WS,4)}, s5 sc1")
        if cfg.zt == 2: a(f"s_lshl_b32 s5, s{WV}, 10\ns_add_u32 s5, s5, s{SMY}\ns_add_u32 s5, s5, {OP}\ns_mov_b64 exec, 0xff\nbuffer_load_dword v{WK+3}, v{WK+4}, {sr(R_WS,4)}, s5 offen sc1")
        a("s_mov_b64 exec, -1\ns_waitcnt vmcnt(0)")
    if cfg.elocal and cfg.epre == 1: e_preread(WK + 3); a("s_waitcnt vmcnt(0)")
    a("s_waitcnt lgkmcnt(0)")
    stamp(11, VST)
    a("s_barrier")
    stamp(12, VST)
    for s in range(8): a(f"ds_read_b128 {vr(FD+4*s,4)}, v{A_OS} offset:{s*4096}")
    a("s_waitcnt lgkmcnt(4)"); pk_sum4(FD, 4)
    a("s_waitcnt lgkmcnt(0)"); pk_sum4(FD + 16, 4)
    a(f"v_pk_add_f32 {vr(FD,2)}, {vr(FD,2)}, {vr(FD+16,2)}\nv_pk_add_f32 {vr(FD+2,2)}, {vr(FD+2,2)}, {vr(FD+18,2)}")
    for i in range(4): tagit(FD + i, FD + i)
    a(f"buffer_store_dwordx4 {vr(FD,4)}, v{A_OG}, {sr(R_WS,4)}, s37 offen sc1")
    stamp(13, VST)
    def betweenA():
        if cfg.p5 < 0: lds_signal(C_OR, VCN, VONE)
        if "wo" in late: wo_frags(WK + 3)
    if cfg.p5 >= 0:
        lds_signal(C_OR, VCN, VONE)
        lds_wait(C_P5, 8, WK, VCN)
    gather([(FD + 16 + 4 * i, 4, A_A, OP + i * 64 * WS, None) for i in range(4)], WK, kind="byte", between=betweenA)
    if cfg.yrel == 1: lds_signal(C_Y, VCN, VONE)
    stamp(14, VST)
    pk_sum4(FD + 16, 4)
    col_reduce(FD + 16)
    a(f"v_add_f32_dpp v{FD+16}, v{FD+16}, v{FD+16} row_ror:4 {DPPF}")
    rnd(FD + 16, FD + 16)
    a(f"ds_write_b16_d16_hi v{A_XW}, v{FD+16}")
    xch_read(L_OV, 2, WK, VACT)
    gemv_pub([FWO, FWO + 8, FWO + 16, FWO + 24], 2, FD, FD + 16, YP)
    if not cfg.yrel: lds_signal(C_Y, VCN, VONE)
    stamp(15, VST)
    a(f"s_cmp_lt_u32 s{ROLE}, 224\ns_cbranch_scc1 L_ffn")
    if cfg.yrel == 2: lds_signal(C_Y, VCN, VONE)
    a("s_branch L_fin")
    a.label("L_ffn")
    a(f"s_mov_b32 s{SMY}, s{SFY}")
    A_AT, A_SW, A_SR = FD + 20, FD + 21, FD + 22
    a(f"v_and_b32 v{WK}, 3, v1\nv_mul_u32_u24 v{WK}, 320, v{WK}\nv_add_u32 v{A_AT}, v{WK}, v{VACT}")
    a(f"v_bfe_u32 v{WK}, v1, 3, 1\nv_and_b32 v{WK+3}, 1, v1\nv_lshl_add_u32 v{WK}, v{WK+3}, 3, v{WK}\ns_lshl_b32 s5, s{WV}, 3\ns_add_u32 s5, s5, {L_ST}\nv_lshl_add_u32 v{A_SW}, v{WK}, 2, s5")
    a(f"v_and_b32 v{WK}, 15, v1\nv_lshlrev_b32 v{A_SR}, 2, v{WK}\nv_add_u32 v{A_SR}, {L_ST}, v{A_SR}")
    a(f"s_mov_b32 s34, 0xaaaaaaaa\ns_mov_b32 s35, 0xaaaaaaaa")
    if cfg.elocal and cfg.epre == 2: e_preread(FD + 23)
    def gu_frags():
        for name in ("gate", "up"):
            if name in late: ffn_frags(name, WK + 3)
    if cfg.bgate == 1: gu_frags()
    if cfg.nb: lds_wait(C_UP, cfg.nb, WK, VCN, sleep=0)
    if cfg.p6 >= 0: lds_wait(C_P6, 8, WK, VCN)
    if cfg.ackB: a("s_waitcnt vmcnt(0)")
    gather([(FWO + 4 * i, 4, A_Y, YP + i * 32 * WS, None) for i in range(8)], WK, kind="byte", between=gu_frags if cfg.bgate == 2 else None)
    if cfg.yrel == 2: lds_signal(C_Y, VCN, VONE)
    stamp(16, VST)
    pk_sum4(FWO, 8)
    col_reduce(FWO)
    y_ = FWO
    rnd(y_, y_); a(f"v_mul_f32 v{y_}, v{y_}, v{K_GA}"); rnd(y_, y_); a(f"v_add_f32 v{K_X}, v{K_X}, v{y_}"); rnd(K_X, K_X)
    a(f"v_mul_f32 v{y_}, v{K_X}, v{K_C1}"); rnd(y_ + 1, y_)
    a(f"v_mov_b32 v{y_+2}, v{K_X}")
    a(f"v_subrev_f32_dpp v{y_}, v{y_+1}, v{y_} quad_perm:[0,1,2,3] row_mask:0xf bank_mask:0xc")
    rnd(y_, y_)
    a(f"ds_write_b16_d16_hi v{VAW}, v{y_}")
    st_ = y_ + 2
    a(f"v_mul_f32_dpp v{st_}, v{K_X}, v{K_X} quad_perm:[0,1,2,3] row_mask:0xf bank_mask:0xc")
    xreduce("v_add_f32", st_, st_ + 1, (32, 16, "quad_perm:[1,0,3,2]", "quad_perm:[2,3,0,1]", "row_half_mirror"))
    a(f"v_and_b32 v{st_+1}, 0xffffff00, v{st_}\nv_sub_f32 v{st_}, v{st_}, v{st_+1}\nv_cndmask_b32 v{st_}, v{st_+1}, v{st_}, s[34:35]")
    a(f"ds_write_b32 v{A_SW}, v{st_}")
    if cfg.bgate == 0: gu_frags()
    xch_read(L_AT, 4, WK + 3, A_AT, two=True)
    stamp(22, VST)
    frs = [FG, FG + 16, FU, FU + 16]; dacc = FWO; out = FWO + 16
    a(f"s_lshl_b32 s36, s{WV}, 10\ns_add_u32 s36, s36, s{SMY}\ns_add_u32 s36, s36, {GUP}\nv_lshlrev_b32 v{WK+4}, 4, v1")
    Ls = a.newlabel("L_st")
    for cg in range(5):
        if cg < 4:
            if cg > 1: a("s_mov_b64 exec, -1")
            for kk in range(4): mfma(dacc + 4 * cg, ACT + 4 * kk, frs[cg] + 4 * kk, kk == 0)
        if cg == 0: a(f"ds_read_b32 v{out+3}, v{A_SR}")
        if cg >= 1:
            d = dacc + 4 * (cg - 1)
            setexec(0xffff << (16 * (cg - 1)))
            a(f"v_add_f32 v{out}, v{d}, v{d+1}"); tagit(out + 1, d + 2); tagit(out + 2, d + 3)
    a("s_mov_b64 exec, -1")
    tagit(out, out)
    Lok = a.newlabel("L_stok")
    a.label(Ls)
    a(f"s_waitcnt lgkmcnt(0)\nv_cmp_eq_u32 vcc, -1, v{out+3}\ns_cbranch_vccz {Lok}")
    a(f"ds_read_b32 v{out+3}, v{A_SR}"); budget_check(); a(f"s_branch {Ls}")
    a.label(Lok)
    tagit(out + 3, out + 3)
    if cfg.elocal:
        a("s_cmp_eq_u32 s15, 0\ns_cbranch_scc1 L_e_far")
        a(f"buffer_store_dwordx4 {vr(out,4)}, v{WK+4}, {sr(R_WS,4)}, s36 offen\ns_branch L_e_st")
        a.label("L_e_far")
    a(f"buffer_store_dwordx4 {vr(out,4)}, v{WK+4}, {sr(R_WS,4)}, s36 offen sc1")
    if cfg.elocal: a.label("L_e_st")
    stamp(23, VST)
    def dnf():
        a("s_barrier")
        ffn_frags("dn", WK + 3)
    eg = [(FG + 4 * i, 4, A_E, GUP + i * WS, None) for i in range(8)]
    if not cfg.efirst: dnf()
    if cfg.ackE: a("s_waitcnt vmcnt(0)")
    stamp(17, VST)
    gather(eg, WK, kind="byte", masked=cfg.efirst == 1, between=dnf if cfg.efirst == 1 else None)
    if cfg.efirst == 2: dnf()
    stamp(18, VST)
    pk_sum4(FG, 8)
    g_ = FG; s_ = FG + 3
    xreduce("v_add_f32", s_, None, (2, 4, 8))
    a(f"v_mul_f32 v{s_}, {f2u(1.0/1024):#x}, v{s_}")
    a(f"v_mov_b32_dpp v{g_+4}, v{s_} quad_perm:[0,0,2,2] {DPPF}\nv_mov_b32_dpp v{g_+5}, v{s_} quad_perm:[1,1,3,3] {DPPF}")
    a(f"v_fma_f32 v{g_+5}, -v{g_+4}, v{g_+4}, v{g_+5}"); rnd(g_ + 4, g_ + 4)
    a(f"v_max_f32 v{g_+5}, 0, v{g_+5}\nv_fma_f32 v{g_}, -v{g_+4}, v{g_+1}, v{g_}")
    den_from_var(g_ + 5, g_ + 6)
    a(f"v_fma_f32 v{g_}, v{g_}, v{g_+6}, v{g_+2}")
    rnd(g_ + 1, g_); rnd(g_, g_)
    a(f"v_permlane32_swap_b32 v{g_}, v{g_+1}")
    k2 = -2.0 * 0.7978845608028654 * LOG2E
    a(f"v_mul_f32 v{g_+2}, v{g_}, v{g_}\nv_mul_f32 v{g_+3}, {f2u(k2):#x}, v{g_}\nv_mul_f32 v{g_+2}, {f2u(0.044715):#x}, v{g_+2}\nv_fma_f32 v{g_+2}, v{g_+2}, v{g_+3}, v{g_+3}")
    a(f"v_exp_f32 v{g_+2}, v{g_+2}\nv_add_f32 v{g_+2}, 1.0, v{g_+2}\nv_rcp_f32 v{g_+2}, v{g_+2}\nv_mul_f32 v{g_}, v{g_}, v{g_+2}")
    rnd(g_, g_); a(f"v_mul_f32 v{g_}, v{g_}, v{g_+1}"); rnd(g_, g_)
    a(f"ds_write_b16_d16_hi v{VB}, v{g_} offset:{L_HHV - L_MISC}")
    xch_read(L_HHV, 4, WK, VACT)
    gemv_pub([FD, FD + 16], 4, FG, FG + 8, ZP)
    stamp(19, VST)
    a(f"s_cmp_ge_u32 s{ROLE}, 8\ns_cbranch_scc1 L_fin")
    for i in range(4): a(f"v_mov_b32 v{FU+12+i}, 0")
    a("s_lshl_b32 s36, s32, 1")
    if cfg.ackD: a("s_waitcnt vmcnt(0)")
    gather([(FU + 4 * i, 4, A_Z, ZP + i * 64 * WS, None if i < 3 else 0xffffffff) for i in range(4)], WK, kind="byte", masked=False)
    stamp(24, VST)
    pk_sum4(FU, 4)
    col_reduce(FU)
    rnd(FU, FU); a(f"v_mul_f32 v{FU}, v{FU}, v{K_GB}"); rnd(FU, FU); a(f"v_add_f32 v{FU}, v{K_X}, v{FU}")
    setexec(0x00ff00ff00ff00ff)
    rnd(FU, FU)
    a(f"buffer_store_short_d16_hi v{FU}, v{TB}, {sr(R_OUT,4)}, s36 offen" + (" sc1" if cfg.outsc else "") + "\ns_mov_b64 exec, -1")
    stamp(25, VST)
    a.label("L_fin")
    if cfg.stamps:
        a(f"s_lshl_b32 s5, s2, 11\ns_lshl_b32 s6, s3, 7\ns_add_u32 s5, s5, s6\ns_add_u32 s5, s5, 0x8000000\nv_lshlrev_b32 v2, 2, v1")
        a(f"s_mov_b32 exec_hi, 0\nbuffer_store_dword v{VST}, v2, {sr(R_WS,4)}, s5 offen")
    a.label("L_end")
    body = "\n".join(hazard.run(a.l)) + "\n"
    return wrap(body, 256, 768, LDS_BYTES, 168, extra_desc="  .amdhsa_float_denorm_mode_32 3\n")

if __name__ == "__main__":
    out = sys.argv[1]
    kw = {}
    for x in sys.argv[2:]:
        k, v = x.split("="); kw[k] = int(v) if v.lstrip("-").isdigit() else v
    open(out, "w").write(gen(Cfg(**kw)))
```

```python
import sys, os, struct
from asmgen import *
import hazard

def f2u(x): return struct.unpack("<I", struct.pack("<f", x))[0]
LOG2E = 1.4426950408889634

class Cfg:
    D1 = 3; D2 = 3; DV = 3; D3 = 3
    stamps = False
    spin_budget = 1 << 18
    pre1 = "crit,wq,mod1,mod2"
    pre2 = ""
    mid = ""
    late = "wo,gate,up,dn"
    nl0 = 3
    nl2 = 0
    p1 = 8; p2 = 23; p3 = 16
    ackB = 1; ackE = 0; ackD = 1
    bgate = 1
    outsc = 1
    nq2 = 0
    nmid = 0
    D0 = 3; n0 = 0
    ktouch = 0
    dsl = 0
    dgrp = 0
    warm = 0
    nb = 0
    p5 = 5
    p6 = 12
    ysl = 1
    efirst = 2
    bal = 2
    Dmin = 2; Dmax = 5; th = -12; balk = 0; DVmax = 6; Kmin = 2; Kmax = 4; hl = 2
    yrel = 0
    zt = 3
    elocal = 1
    epre = 2
    role = 1
    p4 = 18
    touch = 0
    def __init__(self, **kw):
        for k, v in kw.items():
            assert hasattr(self, k), k
            setattr(self, k, v)

QP, MLP = 0, 512
TKT = 640
BRD = 768
XCP = 896
HP = 1024
MODP = 2048
YP, ZP, OP, GUP = 3072, 4096, 4608, 8704
MODF = 6 << 20
EPOCH = 8 << 20
L_MOD, L_WQ, L_UP, L_DN, L_WO, L_GATE, L_MISC = 0, 0xC000, 0, 0x8000, 0x14000, 0x1C000, 0x24000
L_OS = L_DN
L_CNT = L_MISC
(C_CRIT, C_WQ, C_MOD1, C_MOD2, C_WO, C_GATE, C_UP, C_DN, C_Q, C_H, C_ML, C_MLD, C_CLR, C_P1, C_P2, C_P3, C_Y, C_OR, C_ROLE, C_P4, C_T, C_TK, C_P5, C_P6) = range(24)
L_QV = L_MISC + 0x100
L_HV = L_MISC + 0x900
L_HHV = L_MISC + 0xA00
L_OV = L_MISC + 0xB00
L_ST = L_MISC + 0x1700
L_SIL = L_MISC + 0xC00
L_MLW = L_MISC + 0xE00
L_MLF = L_MISC + 0x1000
L_AT = L_MISC + 0x1100
LDS_BYTES = 160 * 1024

def is_reducer(w): return w < 8
def vr(a, n=1): return f"v{a}" if n == 1 else f"v[{a}:{a+n-1}]"
def sr(a, n=1): return f"s{a}" if n == 1 else f"s[{a}:{a+n-1}]"

def gen(cfg):
    a = Asm()
    WS = 12928
    BUD = 4
    lst = lambda x: [t for t in x.split(",") if t]
    def srd_load(r, karg_off): a(f"s_load_dwordx2 {sr(r,2)}, s[0:1], {karg_off}")
    def srd_fin(r, nbytes): a(f"s_mov_b32 s{r+2}, {nbytes}\ns_mov_b32 s{r+3}, 0x20000")
    def rnd(d, s): a(f"v_cvt_pk_bf16_f32 v{d}, 0, v{s}")
    def setexec(m): a(f"s_mov_b32 exec_lo, {m & 0xffffffff:#x}\ns_mov_b32 exec_hi, {m >> 32:#x}")
    def stamp(idx, vreg):
        if cfg.stamps: a(f"s_memrealtime s[98:99]\ns_waitcnt lgkmcnt(0)\nv_writelane_b32 v{vreg}, s98, {idx}")
    def budget_check(): a(f"s_sub_u32 s{BUD}, s{BUD}, 1\ns_cbranch_scc1 L_end")
    def lds_wait(cnt, target, vtmp, vaddr, sleep=1):
        L = a.newlabel("L_lw"); Ld = a.newlabel("L_lwd")
        a.label(L)
        a(f"ds_read_b32 v{vtmp}, v{vaddr} offset:{cnt*4}\ns_waitcnt lgkmcnt(0)\nv_readfirstlane_b32 s5, v{vtmp}")
        a(f"s_cmp_ge_u32 s5, {target}\ns_cbranch_scc1 {Ld}")
        if sleep: a(f"s_sleep {sleep}")
        budget_check()
        a(f"s_branch {L}")
        a.label(Ld)
    def lds_signal(cnt, vaddr, vone):
        a(f"s_mov_b64 exec, 1\nds_add_u32 v{vaddr}, v{vone} offset:{cnt*4}\ns_mov_b64 exec, -1")
    DPPF = "row_mask:0xf bank_mask:0xf"
    def xreduce(op, v, t, steps):
        for s in steps:
            if s in (1, 2, 4, 8): a(f"{op}_dpp v{v}, v{v}, v{v} row_ror:{s} {DPPF}")
            elif s == 16: a(f"v_mov_b32 v{t}, v{v}\nv_permlane16_swap_b32 v{v}, v{t}\n{op} v{v}, v{v}, v{t}")
            elif s == 32: a(f"v_mov_b32 v{t}, v{v}\nv_permlane32_swap_b32 v{v}, v{t}\n{op} v{v}, v{v}, v{t}")
            else: a(f"{op}_dpp v{v}, v{v}, v{v} {s} {DPPF}")

    a("s_load_dwordx16 s[68:83], s[0:1], 0\ns_load_dwordx8 s[84:91], s[0:1], 64\ns_load_dwordx4 s[92:95], s[0:1], 96")
    KA = lambda off: 68 + off // 4
    a("s_cmp_ge_u32 s2, 256\ns_cbranch_scc1 L_end")
    a("v_lshrrev_b32 v2, 6, v0\nv_and_b32 v1, 63, v0")
    a("v_readfirstlane_b32 s3, v2")
    a(f"s_mov_b32 s{BUD}, {cfg.spin_budget}")
    if cfg.stamps: a("s_memrealtime s[96:97]")
    a("s_cmp_ge_u32 s3, 8\ns_cbranch_scc1 L_cwave")

    R_MOD, R_WQ, R_WO, R_G, R_U, R_DN, R_K, R_V, R_WSS = 8, 12, 16, 20, 24, 28, 32, 36, 40
    VK, VV, VGU, VDN, VCN, VONE = 2, 3, 4, 5, 6, 7
    Q0, T0, DT, KV = 8, 16, 32, 40
    VMOD, VWQ, VST = 16, 17, 0
    SB_MOD, SB_WQ, SB_WO, SB_GU, SB_DN, SB_KV, SO, SL, SL4 = 44, 45, 46, 47, 48, 49, 50, 51, 56
    def srd(r, off, nbytes): a(f"s_mov_b64 {sr(r,2)}, {sr(KA(off),2)}\ns_mov_b32 s{r+2}, {nbytes}\ns_mov_b32 s{r+3}, 0x20000")
    a("v_and_b32 v32, 15, v1\nv_lshrrev_b32 v33, 4, v1\nv_lshlrev_b32 v34, 1, v33\nv_xor_b32 v34, v34, v32\nv_lshlrev_b32 v34, 4, v34")
    a(f"v_mul_u32_u24 v{VMOD}, 12288, v33\nv_add_u32 v{VMOD}, v{VMOD}, v34\ns_and_b32 s63, s3, 1\ns_lshl_b32 s63, s63, 7\nv_xor_b32 v{VMOD}, s63, v{VMOD}")
    a(f"v_lshl_add_u32 v{VWQ}, v33, 13, v34")
    a(f"s_lshr_b32 s5, s2, 4\ns_lshl_b32 s5, s5, 6\ns_lshl_b32 s6, s3, 3\ns_add_u32 s5, s5, s6\ns_mul_i32 s5, s5, 12288")
    a(f"s_and_b32 s6, s2, 15\ns_lshl_b32 s6, s6, 8\ns_add_u32 s{SB_MOD}, s5, s6\ns_lshl_b32 s{SL}, s3, 11\ns_lshl_b32 s{SL4}, s3, 12")
    a("s_and_b32 s52, s2, 7\ns_lshr_b32 s53, s2, 3")
    a(f"s_lshl_b32 s5, s52, 7\ns_lshl_b32 s57, s3, 4\ns_add_u32 s54, s5, s57")
    a(f"s_lshl_b32 s5, s54, 13\ns_lshl_b32 s55, s53, 8\ns_add_u32 s{SB_WQ}, s5, s55")
    a("s_waitcnt lgkmcnt(0)")
    srd(R_MOD, 80, 12582912); srd(R_WQ, 24, 8388608)
    def rest_of_setup():
        a(f"v_mul_u32_u24 v{VGU}, 7168, v33\nv_add_u32 v{VGU}, v{VGU}, v34\nv_lshl_add_u32 v{VDN}, v33, 11, v34\nv_lshlrev_b32 v{VV}, 4, v1")
        a(f"v_and_b32 v35, 2, v32\nv_lshlrev_b32 v35, 15, v35\nv_lshrrev_b32 v36, 2, v32\nv_lshl_add_u32 v35, v36, 8, v35")
        a(f"v_and_b32 v36, 1, v32\nv_lshl_add_u32 v35, v36, 6, v35\nv_lshl_add_u32 v{VK}, v33, 4, v35")
        a(f"v_mov_b32 v{VCN}, {L_CNT}\nv_mov_b32 v{VONE}, 1")
        a(f"s_lshr_b32 s5, s2, 6\ns_lshl_b32 s5, s5, 3\ns_add_u32 s5, s5, s52\ns_lshl_b32 s5, s5, 7\ns_add_u32 s5, s5, s57\ns_lshl_b32 s5, s5, 11")
        a(f"s_and_b32 s6, s53, 7\ns_lshl_b32 s6, s6, 8\ns_add_u32 s{SB_WO}, s5, s6")
        a(f"s_and_b32 s5, s2, 3\ns_lshl_b32 s5, s5, 24\ns_lshr_b32 s6, s2, 2\ns_lshl_b32 s6, s6, 18\ns_add_u32 s5, s5, s6\ns_lshl_b32 s6, s3, 10\ns_add_u32 s{SB_KV}, s5, s6")
        srd(R_WO, 32, 8388608); srd(R_K, 8, 67108864); srd(R_V, 16, 67108864)
        for r, off in ((R_G, 48), (R_U, 56), (R_DN, 64)): srd(r, off, 0)
        if cfg.stamps:
            srd(R_WSS, 104, 0x10000000); a(f"v_mov_b32 v{VST}, 0\nv_writelane_b32 v{VST}, s96, 0")
        a("s_mov_b32 s58, 0x05040100\ns_mov_b32 s59, 0x07060302")
        a("s_barrier")
    issued = []; done = [0]; tiles = {}; signalled = set(); setup = [False]
    TN = dict(crit=2, wq=4, mod1=2, mod2=2, wo=4, gate=4, up=4, dn=4)
    TC = dict(crit=C_CRIT, wq=C_WQ, mod1=C_MOD1, mod2=C_MOD2, wo=C_WO, gate=C_GATE, up=C_UP, dn=C_DN)
    def wait_n(n):
        if len(issued) - done[0] > n:
            a(f"s_waitcnt vmcnt({n})"); done[0] = len(issued) - n
            for name, ids in tiles.items():
                if name not in signalled and len(ids) == TN[name] and max(ids) < done[0]:
                    lds_signal(TC[name], VCN, VONE); signalled.add(name)
                    if name in ("wo", "up"): stamp({"wo": 20, "up": 21}[name], VST)
    def wait_id(i): wait_n(len(issued) - 1 - i)
    def dma(name, i, D):
        srd_, voff, sb, step, lbase, lsreg = {
            "crit": (R_MOD, VMOD, SB_MOD, 4 * 12288, L_MOD, SL), "mod1": (R_MOD, VMOD, SB_MOD, 4 * 12288, L_MOD + 16384, SL),
            "mod2": (R_MOD, VMOD, SB_MOD, 4 * 12288, L_MOD + 32768, SL), "wq": (R_WQ, VWQ, SB_WQ, 4 * 8192, L_WQ, SL4),
            "wo": (R_WO, VDN, SB_WO, 4 * 2048, L_WO, SL4), "gate": (R_G, VGU, SB_GU, 4 * 7168, L_GATE, SL4),
            "up": (R_U, VGU, SB_GU, 4 * 7168, L_UP, SL4), "dn": (R_DN, VDN, SB_DN, 4 * 2048, L_DN, SL4)}[name]
        extra = {"mod1": 4096, "mod2": 8192}.get(name, 0)
        if len(issued) >= min(D, 6) and not setup[0]:
            setup[0] = True; rest_of_setup()
            if cfg.ktouch:
                a(f"s_mov_b64 exec, 1\ns_mov_b32 m0, {L_MISC + 0x2000}")
                for r in (R_K, R_V): a(f"buffer_load_dword off, {sr(r,4)}, s{SB_KV} nt lds"); issued.append("t")
                a("s_mov_b64 exec, -1")
        a(f"s_add_u32 m0, s{lsreg}, {lbase + i*1024}\ns_add_u32 s{SO}, s{sb}, {i*step + extra}")
        wait_n(D - 1)
        a(f"buffer_load_dwordx4 v{voff}, {sr(srd_,4)}, s{SO} offen nt lds")
        if name in ("wq", "wo", "gate", "up", "dn") and i in (1, 3): a(f"v_xor_b32 v{voff}, 0x80, v{voff}")
        tiles.setdefault(name, []).append(len(issued)); issued.append(name)
    kid = {}; vid = {}; cur_so = [None]
    def kvload(srd_, voff, off, dst, D):
        so = off & ~0xfff
        if cur_so[0] != so:
            a(f"s_add_u32 s60, s{SB_KV}, {so}"); cur_so[0] = so
        if D: wait_n(D - 1)
        a(f"buffer_load_dwordx4 {vr(dst,4)}, v{voff}, {sr(srd_,4)}, s60 offen offset:{off & 0xfff} nt")
        issued.append("kv"); return len(issued) - 1
    def kload(n, u, D): kid[(n, u)] = kvload(R_K, VK, (16 * (n >> 3) + (n & 7)) * 8192 + u * 128, KV + 8 * n + 4 * u, D)
    def vslot(i): return KV + 4 * (i % 24)
    def vload(i, D): vid[i] = kvload(R_V, VV, i * 8192, vslot(i), D)
    def paced(cnt, k, vt, Dmin, Dmax):
        a(f"s_mov_b64 exec, 1\nds_add_rtn_u32 v{vt}, v{VCN}, v{VONE} offset:{cnt*4}\ns_mov_b64 exec, -1")
        wait_n(Dmax - 1)
        go = a.newlabel("L_go")
        a(f"s_waitcnt lgkmcnt(0)\nv_readfirstlane_b32 s5, v{vt}\ns_cmp_gt_i32 s5, {8*k + cfg.th}\ns_cselect_b64 vcc, -1, 0\ns_cbranch_scc1 {go}\ns_waitcnt vmcnt({Dmin - 1})")
        a.label(go)
    D1, D2 = cfg.D1, cfg.D2
    for name in lst(cfg.pre1):
        for i in range(TN[name]): dma(name, i, cfg.D0 if len(issued) < cfg.n0 else D1)
    stamp(11, VST)
    for n in range(16):
        for u in range(2):
            if cfg.balk:
                paced(C_T, 2 * n + u, DT, cfg.Kmin, cfg.Kmax); kload(n, u, 0)
            else: kload(n, u, cfg.D0 if len(issued) < cfg.n0 else D1)
            if 2 * n + u == cfg.p1: lds_signal(C_P1, VCN, VONE)
            if 2 * n + u == cfg.p2: lds_signal(C_P2, VCN, VONE)
    for name in lst(cfg.pre2):
        for i in range(TN[name]): dma(name, i, D1)
    stamp(1, VST)
    a(f"v_and_b32 v{DT+1}, 7, v1\nv_lshlrev_b32 v{DT+1}, 8, v{DT+1}\nv_and_b32 v{DT+2}, 8, v1\nv_lshl_add_u32 v{DT+1}, v{DT+2}, 3, v{DT+1}")
    a(f"v_lshrrev_b32 v{DT+2}, 4, v1\nv_lshl_add_u32 v{DT+1}, v{DT+2}, 4, v{DT+1}\nv_add_u32 v{DT+1}, {L_QV}, v{DT+1}")
    a(f"s_mov_b32 s61, {f2u(128 ** -0.5):#x}\ns_mov_b32 s62, {f2u(LOG2E):#x}")
    lds_wait(C_Q, 4, DT, VCN)
    stamp(2, VST)
    a(f"ds_read_b128 {vr(Q0,4)}, v{DT+1}\nds_read_b128 {vr(Q0+4,4)}, v{DT+1} offset:128\ns_waitcnt lgkmcnt(0)")
    nv = 0
    def fold(n):
        d = DT + 4 * (n & 1)
        a(f"v_add_f32_dpp v{T0+n}, v{d+1}, v{d} row_ror:8 row_mask:0xf bank_mask:0x3")
        a(f"v_add_f32_dpp v{T0+n}, v{d+2}, v{d+3} row_ror:8 row_mask:0xf bank_mask:0xc")
    def post(n):
        rnd(T0 + n, T0 + n); a(f"v_mul_f32 v{T0+n}, s61, v{T0+n}"); rnd(T0 + n, T0 + n)
    for n in range(16):
        wait_id(kid[(n, 1)])
        d = DT + 4 * (n & 1)
        a(f"v_mfma_f32_16x16x32_bf16 {vr(d,4)}, {vr(KV+8*n,4)}, {vr(Q0,4)}, 0")
        a(f"v_mfma_f32_16x16x32_bf16 {vr(d,4)}, {vr(KV+8*n+4,4)}, {vr(Q0+4,4)}, {vr(d,4)}")
        if n >= 1 and nv < D2 and n % 2 == 1:
            vload(nv, 0); nv += 1
        if n >= 2: post(n - 2)
        if n >= 1: fold(n - 1)
    for _ in range(cfg.nq2): vload(nv, 0); nv += 1
    fold(15); post(14); post(15)
    M_, L_, X_ = DT, DT + 1, DT + 2
    a(f"v_max3_f32 v{M_}, v{T0}, v{T0+1}, v{T0+2}")
    for i in range(3, 15, 2): a(f"v_max3_f32 v{M_}, v{M_}, v{T0+i}, v{T0+i+1}")
    a(f"v_max_f32 v{M_}, v{M_}, v{T0+15}")
    xreduce("v_max_f32", M_, X_, (8, 16, 32))
    for i in range(16):
        e = DT + 4 + (i & 3)
        a(f"v_sub_f32 v{e}, v{T0+i}, v{M_}\nv_mul_f32 v{e}, s62, v{e}\nv_exp_f32 v{e}, v{e}")
        if i >= 1:
            p = DT + 4 + ((i - 1) & 3)
            a(f"v_mov_b32 v{L_}, v{p}" if i == 1 else f"v_add_f32 v{L_}, v{L_}, v{p}")
    a(f"v_add_f32 v{L_}, v{L_}, v{DT+7}")
    xreduce("v_add_f32", L_, X_, (8, 16, 32))
    a(f"s_lshl_b32 s5, s3, 6\ns_add_u32 s5, s5, {L_MLW}\nv_lshlrev_b32 v{X_}, 3, v1\nv_add_u32 v{X_}, s5, v{X_}")
    a(f"s_mov_b64 exec, 0xff\nds_write_b64 v{X_}, {vr(M_,2)}\ns_waitcnt lgkmcnt(0)")
    lds_signal(C_ML, VCN, VONE)
    stamp(3, VST)
    nv0 = nv
    while nv < 24:
        if cfg.bal:
            paced(C_T, nv - nv0 + (32 if cfg.balk else 0), DT, cfg.Dmin, cfg.Dmax); vload(nv, 0)
        else: vload(nv, D2)
        if nv == cfg.p3: lds_signal(C_P3, VCN, VONE)
        if nv == cfg.p4 and cfg.role == 2: lds_signal(C_P4, VCN, VONE)
        nv += 1
    for name in lst(cfg.mid):
        for i in range(TN[name]): dma(name, i, D2)
    for name in lst(cfg.pre1) + lst(cfg.pre2): wait_id(max(tiles[name]))
    stamp(4, VST)
    a(f"v_and_b32 v{X_}, 7, v1\nv_lshlrev_b32 v{X_}, 3, v{X_}\nv_add_u32 v{X_}, {L_MLF}, v{X_}")
    lateq = [(name, i) for name in lst(cfg.late) for i in range(TN[name])]
    assert lateq[-4:] == [("dn", i) for i in range(4)]
    for _ in range(cfg.nmid):
        name, i = lateq.pop(0); assert name == "wo"; dma(name, i, 63)
    lds_wait(C_MLD, 1, DT, VCN)
    stamp(5, VST)
    assert not any(t in cfg.pre1 + cfg.pre2 + cfg.mid for t in ("gate", "up", "dn"))
    a(f"ds_read_b64 {vr(M_,2)}, v{X_}\ns_waitcnt lgkmcnt(0)")
    for i in range(16):
        a(f"v_sub_f32 v{T0+i}, v{T0+i}, v{M_}\nv_mul_f32 v{T0+i}, s62, v{T0+i}\nv_exp_f32 v{T0+i}, v{T0+i}")
    for i in range(16): a(f"v_mul_f32 v{T0+i}, v{T0+i}, v{L_}")
    for i in range(8): a(f"v_cvt_pk_bf16_f32 v{Q0+i}, v{T0+2*i}, v{T0+2*i+1}")
    a("s_mov_b32 s64, 0x00ff00ff\ns_mov_b32 s65, 0x00ff00ff\ns_mov_b32 s66, 0xff00ff00\ns_mov_b32 s67, 0xff00ff00")
    ACC = KV + 96
    PL = lambda G: T0 + 4 * G
    PH = lambda G: KV + 112 + 4 * G
    for G in range(4):
        b, pi = G >> 1, G & 1
        for i in range(4): a(f"v_cndmask_b32 v{(PH if pi else PL)(G)+i}, 0, v{Q0+4*b+i}, s[{64+2*pi}:{65+2*pi}]")
        for i in range(4): a(f"v_mov_b32_dpp v{(PL if pi else PH)(G)+i}, v{(PH if pi else PL)(G)+i} row_ror:8 {DPPF}")
    stage = [DT, DT + 4, Q0, Q0 + 4]
    sidx = 0
    def perm(dst, G, p, j):
        lo = vslot(8 * G + 2 * p) + (j >> 1); hi = vslot(8 * G + 2 * p + 1) + (j >> 1)
        a(f"v_perm_b32 v{dst}, v{hi}, v{lo}, s{58 + (j & 1)}")
    def pv(G, j, st):
        c = "0" if (G == 0 and j < 4) else vr(ACC + 4 * (j & 3), 4)
        a(f"v_mfma_f32_16x16x32_bf16 {vr(ACC+4*(j&3),4)}, {vr(st,4)}, {vr((PH if j >= 4 else PL)(G),4)}, {c}")
    for G in range(3):
        wait_id(vid[8 * G + 7])
        for j in range(8):
            st = stage[sidx & 3]; sidx += 1
            for p in range(4): perm(st + p, G, p, j)
            pv(G, j, st)
            if G in (1, 2) and j % 2 == 0 and nv < 32:
                if cfg.bal:
                    sk = a.newlabel("L_dv")
                    a(f"s_cbranch_vccnz {sk}\ns_waitcnt vmcnt({cfg.DV - 1})")
                    a.label(sk)
                    vload(nv, cfg.DVmax)
                else: vload(nv, cfg.DV)
                nv += 1
    lds_wait(C_ROLE, 1, DT, VCN, sleep=0)
    a("s_sub_u32 s7, s5, 1")
    a("s_mov_b32 s5, 7340032\ns_cmp_lt_u32 s7, 224\ns_cselect_b32 s5, s5, 0")
    for r in (R_G, R_U, R_DN): a(f"s_mov_b32 s{r+2}, s5")
    a("s_and_b32 s52, s7, 7\ns_lshr_b32 s53, s7, 3")
    a(f"s_lshl_b32 s5, s52, 7\ns_add_u32 s5, s5, s57\ns_mul_i32 s5, s5, 7168\ns_lshl_b32 s6, s53, 8\ns_add_u32 s{SB_GU}, s5, s6")
    a(f"s_lshl_b32 s5, s53, 7\ns_add_u32 s5, s5, s57\ns_lshl_b32 s5, s5, 11\ns_lshl_b32 s6, s52, 8\ns_add_u32 s{SB_DN}, s5, s6")
    a(f"s_add_u32 s5, s{SL4}, {L_OS}\nv_add_u32 v{VV}, s5, v{VV}")
    SG = KV + 32
    n0 = min(cfg.nl0, len(lateq) - max(4, cfg.nl2))
    for p in range(3):
        wait_id(vid[24 + 2 * p + 1])
        if p >= 1:
            for _ in range((n0 + 2 - p) // 2):
                name, i = lateq.pop(0); dma(name, i, 63)
        for j in range(8): perm(SG + 4 * j + p, 3, p, j)
    wait_id(vid[31])
    order = [0, 4, 1, 5, 2, 6, 3, 7]
    for k in range(10):
        if k < 8: perm(SG + 4 * order[k] + 3, 3, 3, order[k])
        if k >= 2: pv(3, order[k - 2], SG + 4 * order[k - 2])
    stamp(6, VST)
    for e in range(4): a(f"ds_write_b128 v{VV}, {vr(ACC+4*e,4)} offset:{e*1024}")
    a("s_waitcnt lgkmcnt(0)")
    stamp(7, VST)
    a("s_barrier")
    signalled.add("dn")
    n1 = len(lateq) - cfg.nl2
    for k, (name, i) in enumerate(lateq):
        if k == n1:
            wait_n(0); lds_wait(C_Y, 4, DT, VCN, sleep=cfg.ysl)
        if (name, i) == ("dn", 0) and k < n1: lds_wait(C_OR, 4, DT, VCN)
        dma(name, i, cfg.D3 if k < n1 else 63)
        if k == cfg.p5: assert k < n1; lds_signal(C_P5, VCN, VONE)
        if k == cfg.p6: lds_signal(C_P6, VCN, VONE)
    for name in ("wo", "gate", "up"):
        if name not in signalled: wait_id(max(tiles[name]))
    a("s_waitcnt vmcnt(0)")
    if cfg.stamps:
        stamp(8, VST)
        a(f"s_lshl_b32 s5, s2, 11\ns_lshl_b32 s6, s3, 7\ns_add_u32 s5, s5, s6\ns_add_u32 s5, s5, 0x8000000\nv_lshlrev_b32 v2, 2, v1")
        a(f"s_mov_b32 exec_hi, 0\nbuffer_store_dword v{VST}, v2, {sr(R_WSS,4)}, s5 offen")
    a("s_endpgm")

    a.label("L_cwave")
    a("s_setprio 3")
    R_WS, R_X, R_C, R_OUT = 8, 16, 20, 24
    WV, SMY = 28, 29
    a(f"s_sub_u32 s{WV}, s3, 8\nv_subrev_u32 v0, 512, v0")
    VCN, VONE, VTR, VPUB, VACT, VA, VB, K_X, K_GA, K_GB, VST, K_C1, TAG, TB = 2, 3, 4, 5, 6, 7, 8, 9, 10, 11, 12, 13, 14, 15
    WK = 16
    ACT = WK + 8
    FWO, FG, FU, FD = 40, 72, 104, 136
    a(f"v_mov_b32 v{VCN}, {L_CNT}\nv_mov_b32 v{VONE}, 1\nv_mov_b32 v{WK}, 0")
    a(f"v_lshlrev_b32 v{WK+1}, 2, v1\nv_add_u32 v{WK+1}, {L_CNT}, v{WK+1}\nds_write_b32 v{WK+1}, v{WK}")
    for i in range(4): a(f"v_mov_b32 v{WK+4+i}, -1")
    for base in (L_HHV, L_OV, L_AT, L_AT + 320, L_ST): a(f"ds_write_b32 v{WK+1}, v{WK+4} offset:{base - L_CNT}")
    a(f"s_mul_i32 s{SMY}, s2, {WS}\ns_and_b32 s30, s2, 7\ns_lshr_b32 s31, s2, 3")
    a(f"v_lshlrev_b32 v{VA}, 4, v1\nv_lshlrev_b32 v{VB}, 1, v1\nv_lshlrev_b32 v{WK+1}, 5, v1")
    a(f"s_lshl_b32 s32, s30, 7\ns_lshl_b32 s35, s{WV}, 5\ns_add_u32 s32, s32, s35")
    a(f"v_and_b32 v{WK+2}, 31, v1\nv_lshlrev_b32 v{WK+3}, 1, v{WK+2}")
    a("s_waitcnt lgkmcnt(0)")
    srd(R_WS, 104, 0x10000000); srd(R_X, 0, 2048); srd(R_C, 72, 2048); srd(R_OUT, 88, 2048)
    XR = FU
    a(f"s_mov_b32 s5, {EPOCH}\nbuffer_load_dword v{TAG}, off, {sr(R_WS,4)}, s5 sc1")
    a(f"s_lshr_b32 s5, s2, 4\ns_lshl_b32 s5, s5, 7\nbuffer_load_ushort v{WK}, v{VB}, {sr(R_C,4)}, s5 offen")
    a(f"buffer_load_dwordx4 {vr(XR,4)}, v{WK+1}, {sr(R_X,4)}, 0 offen\nbuffer_load_dwordx4 {vr(XR+4,4)}, v{WK+1}, {sr(R_X,4)}, 0 offen offset:16")
    a(f"s_lshl_b32 s5, s32, 1\nbuffer_load_ushort v{K_GA}, v{WK+3}, {sr(R_X,4)}, s5 offen")
    a(f"v_and_b32 v{K_C1}, 7, v1\nv_lshlrev_b32 v{K_C1}, 2, v{K_C1}\nv_bfe_u32 v{WK+2}, v1, 4, 1\nv_lshl_add_u32 v{K_C1}, v{WK+2}, 1, v{K_C1}\nv_lshrrev_b32 v{WK+2}, 5, v1\nv_add_lshl_u32 v{K_C1}, v{K_C1}, v{WK+2}, 1")
    a(f"s_cmp_lg_u32 s{WV}, 0\ns_cbranch_scc1 L_clr_done")
    a(f"s_mov_b32 exec_hi, 0xffff\nbuffer_store_dwordx4 {vr(WK+4,4)}, v{VA}, {sr(R_WS,4)}, s{SMY} offen sc1\ns_mov_b32 exec_hi, -1")
    a.label("L_clr_done")
    def touch_rd(t):
        a(f"v_lshlrev_b32 v{t}, 7, v1\ns_mul_i32 s5, s{WV}, {19*128}\ns_add_u32 s5, s5, s{SMY}\ns_add_u32 s5, s5, {YP}")
        setexec((1 << 19) - 1)
        a(f"buffer_load_dword v{t+1}, v{t}, {sr(R_WS,4)}, s5 offen sc1\ns_mov_b64 exec, -1")
    if cfg.touch == 1: touch_rd(WK + 14)
    if cfg.touch == 2:
        a(f"v_lshlrev_b32 v{WK+14}, 4, v0\ns_add_u32 s5, s{SMY}, {YP}\nbuffer_store_dwordx4 {vr(WK+4,4)}, v{WK+14}, {sr(R_WS,4)}, s5 offen sc1")
        a(f"s_add_u32 s5, s{SMY}, {YP+4096}\nbuffer_store_dwordx4 {vr(WK+4,4)}, v{WK+14}, {sr(R_WS,4)}, s5 offen sc1")
        a(f"s_add_u32 s5, s{SMY}, {YP+8192}\nv_cmp_gt_u32 vcc, 96, v0\ns_and_saveexec_b64 s[6:7], vcc\ns_cbranch_execz L_t2\nbuffer_store_dwordx4 {vr(WK+4,4)}, v{WK+14}, {sr(R_WS,4)}, s5 offen sc1")
        a.label("L_t2")
        a("s_mov_b64 exec, -1")
    a("s_barrier")
    if cfg.stamps: a(f"v_mov_b32 v{VST}, 0\nv_writelane_b32 v{VST}, s96, 0")
    a(f"v_lshrrev_b32 v{WK+8}, 4, v1\nv_and_b32 v{WK+9}, 15, v1")
    a(f"v_lshlrev_b32 v{VPUB}, 6, v{WK+9}\nv_lshl_add_u32 v{VPUB}, v{WK+8}, 4, v{VPUB}")
    a(f"v_lshlrev_b32 v{VACT}, 4, v{WK+8}\nv_add_u32 v{VACT}, {L_MISC}, v{VACT}")
    a(f"v_bfe_u32 v{WK+10}, v1, 2, 2\nv_lshl_add_u32 v{WK+11}, v{WK+8}, 3, v{WK+10}\nv_lshlrev_b32 v{VTR}, 8, v{WK+11}")
    a(f"v_and_b32 v{WK+12}, 3, v1\nv_lshl_add_u32 v{VTR}, v{WK+12}, 3, v{VTR}")
    a(f"v_and_b32 v{WK+12}, 1, v{WK+8}\nv_lshl_add_u32 v{WK+12}, v{WK+12}, 2, v{WK+10}\ns_lshl_b32 s5, s{WV}, 1\nv_xor_b32 v{WK+12}, s5, v{WK+12}\nv_lshl_add_u32 v{VTR}, v{WK+12}, 5, v{VTR}")
    a(f"s_mov_b32 s33, {f2u(LOG2E):#x}\ns_mov_b32 s38, 0xffff0000")
    a("s_waitcnt vmcnt(0)")
    lds_signal(C_CLR, VCN, VONE)
    TB0 = 76
    a(f"v_readfirstlane_b32 s5, v{TAG}\ns_add_u32 s6, s5, 0x7f4a7c15\ns_mul_i32 s6, s6, 0x9e3779b1\ns_lshr_b32 s7, s6, 15\ns_xor_b32 s6, s6, s7")
    a("s_mul_i32 s6, s6, 0x85ebca6b\ns_lshr_b32 s7, s6, 13\ns_xor_b32 s6, s6, s7\ns_mul_i32 s6, s6, 0xc2b2ae35\ns_lshr_b32 s7, s6, 16\ns_xor_b32 s6, s6, s7")
    for k in range(4):
        a(f"s_and_b32 s7, s6, {0xff << (8*k):#x}\ns_cselect_b32 s7, 0, {0x5b << (8*k):#x}\ns_or_b32 s6, s6, s7")
    a("s_xor_b32 s5, s5, s6")
    for k in range(4): a(f"s_bfe_u32 s{TB0+k}, s5, {(8 << 16) | (8*k):#x}")
    a(f"v_mov_b32 v{TAG}, s5")
    stamp(1, VST)
    c_ = WK
    lo2 = LOG2E - struct.unpack("<f", struct.pack("<f", LOG2E))[0]
    a(f"v_lshlrev_b32 v{c_}, 16, v{c_}")
    a(f"v_max_f32 v{WK+13}, {f2u(-87.0):#x}, v{c_}\nv_min_f32 v{WK+13}, {f2u(100.0):#x}, v{WK+13}")
    a(f"v_mul_f32 v{WK+1}, s33, v{WK+13}\nv_fma_f32 v{WK+2}, v{WK+13}, s33, -v{WK+1}\nv_mov_b32 v{WK+3}, {f2u(lo2):#x}\nv_fmac_f32 v{WK+2}, v{WK+13}, v{WK+3}")
    a(f"v_exp_f32 v{WK+1}, -v{WK+1}\nv_mul_f32 v{WK+2}, {f2u(-0.6931471805599453):#x}, v{WK+2}")
    a(f"v_fma_f32 v{WK+1}, v{WK+1}, v{WK+2}, v{WK+1}\nv_add_f32 v{WK+1}, 1.0, v{WK+1}")
    a(f"v_rcp_f32 v{WK+2}, v{WK+1}\nv_mul_f32 v{WK+3}, v{c_}, v{WK+2}\nv_fma_f32 v{WK+13}, -v{WK+3}, v{WK+1}, v{c_}\nv_fmac_f32 v{WK+3}, v{WK+13}, v{WK+2}")
    rnd(WK + 3, WK + 3)
    a(f"s_lshl_b32 s5, s{WV}, 7\ns_add_u32 s6, s5, {L_SIL}\nv_add_u32 v{WK+1}, s6, v{VB}\nds_write_b16_d16_hi v{WK+1}, v{WK+3}")
    a(f"v_add_u32 v{WK+1}, s5, v{VACT}\ns_waitcnt lgkmcnt(0)\nds_read_b128 {vr(ACT,4)}, v{WK+1} offset:{L_SIL-L_MISC}\nds_read_b128 {vr(ACT+4,4)}, v{WK+1} offset:{L_SIL-L_MISC+64}")

    def den_from_var(v, rden):
        rnd(v, v); a(f"v_add_f32 v{v}, {f2u(1e-5):#x}, v{v}"); rnd(v, v)
        a(f"v_sqrt_f32 v{v}, v{v}"); rnd(v, v)
        a(f"v_rcp_f32 v{rden}, v{v}")
    def ln_stats(X, mean_b, rden, t0):
        p1, p2, u1 = t0, t0 + 2, t0 + 4
        a(f"v_readfirstlane_b32 s36, v{X}\ns_mov_b32 s37, s36")
        for i in range(0, 16, 2): a(f"v_pk_add_f32 {vr(X+i,2)}, {vr(X+i,2)}, s[36:37] neg_lo:[0,1] neg_hi:[0,1]")
        a(f"v_pk_mul_f32 {vr(p2,2)}, {vr(X,2)}, {vr(X,2)}\nv_pk_add_f32 {vr(p1,2)}, {vr(X,2)}, {vr(X+2,2)}")
        a(f"v_pk_fma_f32 {vr(p2,2)}, {vr(X+2,2)}, {vr(X+2,2)}, {vr(p2,2)}")
        for i in range(4, 16, 2):
            a(f"v_pk_add_f32 {vr(p1,2)}, {vr(p1,2)}, {vr(X+i,2)}\nv_pk_fma_f32 {vr(p2,2)}, {vr(X+i,2)}, {vr(X+i,2)}, {vr(p2,2)}")
        a(f"v_add_f32 v{p1}, v{p1}, v{p1+1}\nv_add_f32 v{p2}, v{p2}, v{p2+1}")
        a(f"v_permlane32_swap_b32 v{p1}, v{p2}\nv_add_f32 v{p1}, v{p1}, v{p2}")
        xreduce("v_add_f32", p1, u1, (16, 8, 4, 2, 1))
        a(f"v_mul_f32 v{p1}, {f2u(1.0/1024):#x}, v{p1}\nv_mov_b32 v{p2}, v{p1}\nv_permlane32_swap_b32 v{p1}, v{p2}")
        a(f"v_fma_f32 v{p2}, -v{p1}, v{p1}, v{p2}\nv_add_f32 v{p1}, s36, v{p1}\nv_max_f32 v{p2}, 0, v{p2}")
        rnd(mean_b, p1); den_from_var(p2, rden)
    XU = XR + 8
    for i in range(8):
        a(f"v_lshlrev_b32 v{XU+2*i}, 16, v{XR+i}\nv_and_b32 v{XU+2*i+1}, 0xffff0000, v{XR+i}")
    ln_stats(XU, WK, WK + 1, WK + 2)
    LN1 = K_GA
    a(f"v_lshlrev_b32 v{LN1}, 16, v{LN1}")
    a(f"v_sub_f32 v{LN1}, v{LN1}, v{WK}"); rnd(LN1, LN1); a(f"v_mul_f32 v{LN1}, v{LN1}, v{WK+1}"); rnd(LN1, LN1)
    lds_wait(C_CLR, 4, WK + 1, VCN, sleep=0)

    if cfg.elocal:
        a(f"s_getreg_b32 s14, hwreg(HW_REG_XCC_ID)\ns_cmp_lg_u32 s{WV}, 1\ns_cbranch_scc1 L_xc_done")
        a(f"v_mov_b32 v{WK}, s14\nv_mov_b32 v{WK+1}, v{TAG}\ns_add_u32 s5, s{SMY}, {XCP}\ns_mov_b64 exec, 1\nbuffer_store_dwordx2 {vr(WK,2)}, off, {sr(R_WS,4)}, s5 sc1\ns_mov_b64 exec, -1")
        a.label("L_xc_done")
    def tr_read(dst, vaddr, nkk, rs, base=0):
        for kk in range(nkk):
            for q in range(2):
                a(f"ds_read_b64_tr_b16 {vr(dst + kk*4 + 2*q, 2)}, v{vaddr} offset:{base + (32 * kk + 4 * q) * rs}")
    def tr_tile(dst, base, nkk, t0):
        a(f"v_add_u32 v{t0}, {base}, v{VTR}\nv_xor_b32 v{t0+1}, 32, v{t0}")
        tr_read(dst, t0, nkk, 256); tr_read(dst + 4 * nkk, t0 + 1, nkk, 256)
    MASKC = [0x0001000100010001 << i for i in range(4)]
    def mfma(d, x, y, first): a(f"v_mfma_f32_16x16x32_bf16 {vr(d,4)}, {vr(x,4)}, {vr(y,4)}, {'0' if first else vr(d,4)}")
    BT = WK + 7
    def tagit(d, s, k): a(f"v_and_or_b32 v{d}, v{s}, v{BT}, s{TB0+k}")
    def gemv_pub(frs, nkk, dacc, out, off, tagged=True):
        n = len(frs)
        a(f"s_mul_i32 s5, s{WV}, {n*64}\ns_add_u32 s5, s5, s{SMY}\ns_add_u32 s5, s5, {off}")
        def fin(cg):
            setexec(MASKC[cg])
            for i in range(4):
                if tagged: tagit(out + i, dacc + 4 * cg + i, i)
                else: a(f"v_mov_b32 v{out+i}, v{dacc+4*cg+i}")
        lag = 2 if nkk == 2 else 1
        for cg in range(n + lag):
            if cg < n:
                if cg > lag: a("s_mov_b64 exec, -1")
                for kk in range(nkk): mfma(dacc + 4 * cg, frs[cg] + 4 * kk, ACT + 4 * kk, kk == 0)
            if cg >= lag: fin(cg - lag)
        setexec(sum(MASKC[:n]))
        a(f"buffer_store_dwordx4 {vr(out,4)}, v{VPUB}, {sr(R_WS,4)}, s5 offen sc1\ns_mov_b64 exec, -1")
    deferred = []
    def gather(loads, t0, kind="sent", tags=None, masked=True, between=None, acc=None):
        L = a.newlabel("L_g"); Ld = a.newlabel("L_gd"); Lc = a.newlabel("L_gc")
        PM = 40
        def ld(dst, wd, va, so):
            if so: a(f"s_mov_b32 s5, {so}")
            a(f"buffer_load_dword{'' if wd == 1 else 'x'+str(wd)} {vr(dst,wd)}, v{va}, {sr(R_WS,4)}, {'s5' if so else '0'} offen sc1")
        op3, op2 = ("v_max3_u32", "v_max_u32") if kind == "sent" else ("v_or3_b32", "v_or_b32")
        def tree(regs_):
            if len(regs_) == 1: return regs_[0]
            if len(regs_) == 2: a(f"{op2} v{t0}, v{regs_[0]}, v{regs_[1]}"); return t0
            a(f"{op3} v{t0}, v{regs_[0]}, v{regs_[1]}, v{regs_[2]}")
            rest = regs_[3:]
            while rest:
                if len(rest) >= 2: a(f"{op3} v{t0}, v{t0}, v{rest[0]}, v{rest[1]}"); rest = rest[2:]
                else: a(f"{op2} v{t0}, v{t0}, v{rest[0]}"); rest = []
            return t0
        def test(dst_s, r_):
            if kind == "sent": a(f"v_cmp_eq_u32 {dst_s}, -1, v{r_}")
            else: a(f"v_and_b32 v{t0}, 0xff, v{r_}\nv_cmp_ne_u32 {dst_s}, 0, v{t0}")
        def untag(dst, wd):
            for x in range(dst, dst + wd): a(f"v_xor_b32 v{x}, s{TB0 + x - dst}, v{x}")
        def accum(i):
            if acc is None or i == 0: return
            x = loads[0][0] if i == 1 else acc
            for h in (2, 0): a(f"v_pk_add_f32 {vr(acc+h,2)}, {vr(x+h,2)}, {vr(loads[i][0]+h,2)}")
        if not masked: a.label(L)
        for (dst, wd, va, so, em) in loads:
            if em is not None: setexec(em)
            ld(dst, wd, va, so)
            if em is not None: a("s_mov_b64 exec, -1")
        if between: between()
        if not masked: budget_check()
        if kind == "tag":
            a(f"s_waitcnt vmcnt(0)\ns_branch {Lc}")
        else:
            for i, (dst, wd, va, so, em) in enumerate(loads):
                a(f"s_waitcnt vmcnt({len(loads)-1-i})")
                if kind == "byte":
                    if em is not None: setexec(em)
                    untag(dst, wd)
                    if em is not None: a("s_mov_b64 exec, -1")
                r_ = tree(([t0] if i else []) + list(range(dst, dst + wd)))
                assert r_ == t0
                if i < len(loads) - 1: accum(i)
            test("vcc", t0)
            accum(len(loads) - 1)
            a(f"s_cbranch_vccnz {Lc if masked else L}")
            if not masked: return
        a.label(Ld)
        def retry():
            a.label(L)
            budget_check()
            for i, (dst, wd, va, so, em) in enumerate(loads):
                sk = a.newlabel("L_gs")
                a(f"s_mov_b64 exec, {sr(PM+2*i,2)}\ns_cbranch_execz {sk}")
                ld(dst, wd, va, so)
                a.label(sk)
            a("s_waitcnt vmcnt(0)")
            if kind == "byte":
                for i, (dst, wd, va, so, em) in enumerate(loads):
                    a(f"s_mov_b64 exec, {sr(PM+2*i,2)}"); untag(dst, wd)
            a("s_mov_b64 exec, -1")
            a.label(Lc)
            for i, (dst, wd, va, so, em) in enumerate(loads):
                if kind == "tag": a(f"v_cmp_ne_u32 {sr(PM+2*i,2)}, v{tags[i]}, v{TAG}")
                else: test(sr(PM + 2 * i, 2), tree(list(range(dst, dst + wd))))
            a(f"s_mov_b64 s[6:7], {sr(PM,2)}")
            for i in range(1, len(loads)): a(f"s_or_b64 s[6:7], s[6:7], {sr(PM+2*i,2)}")
            a(f"s_cmp_lg_u64 s[6:7], 0\ns_cbranch_scc1 {L}")
            for i in range(len(loads)): accum(i)
            a(f"s_nop 1\ns_branch {Ld}")
        deferred.append(retry)
    def tree_sum(base, n, stride=1):
        idx = [base + i * stride for i in range(n)]
        while len(idx) > 1:
            nx = []
            for i in range(0, len(idx) - 1, 2):
                a(f"v_add_f32 v{idx[i]}, v{idx[i]}, v{idx[i+1]}"); nx.append(idx[i])
            if len(idx) & 1: nx.append(idx[-1])
            idx = nx
    def pk_sum4(base, n):
        idx = [base + 4 * i for i in range(n)]
        while len(idx) > 1:
            nx = []
            for i in range(0, len(idx) - 1, 2):
                for h in (0, 2): a(f"v_pk_add_f32 {vr(idx[i]+h,2)}, {vr(idx[i]+h,2)}, {vr(idx[i+1]+h,2)}")
                nx.append(idx[i])
            if len(idx) & 1: nx.append(idx[-1])
            idx = nx
    def col_reduce(b):
        a(f"v_permlane32_swap_b32 v{b}, v{b+1}\nv_permlane32_swap_b32 v{b+2}, v{b+3}\nv_add_f32 v{b}, v{b}, v{b+1}\nv_add_f32 v{b+2}, v{b+2}, v{b+3}")
        a(f"v_permlane16_swap_b32 v{b}, v{b+2}\nv_add_f32 v{b}, v{b}, v{b+2}\nv_add_f32_dpp v{b}, v{b}, v{b} row_ror:8 {DPPF}")
    VCHK = 0
    def xch_read(lbase, nkk, t0, vact, two=False):
        L = a.newlabel("L_x"); Ld = a.newlabel("L_xd")
        a.label(L)
        a(f"ds_read_b32 v{t0}, v{VCHK} offset:{lbase - L_MISC}")
        if two: a(f"ds_read_b32 v{t0+1}, v{VCHK} offset:{lbase - L_MISC + 320}")
        for kk in range(nkk): a(f"ds_read_b128 {vr(ACT+4*kk,4)}, v{vact} offset:{lbase - L_MISC + kk*64}")
        a(f"s_waitcnt lgkmcnt({nkk})")
        if two: a(f"v_pk_max_u16 v{t0}, v{t0}, v{t0+1}")
        a(f"v_cmp_eq_u16 vcc, -1, v{t0}\nv_cmp_le_u32 s[6:7], s38, v{t0}\ns_or_b64 s[6:7], s[6:7], vcc")
        if nkk == 2: a("s_cmp_lg_u32 s6, 0")
        a(f"s_cbranch_scc0 {Ld}")
        budget_check()
        a(f"s_branch {L}")
        a.label(Ld)
        a("s_waitcnt lgkmcnt(0)")

    def bal_run(limit):
        Lb = a.newlabel("L_bal"); Le = a.newlabel("L_bale")
        a(f"s_cmp_lg_u32 s{WV}, 3\ns_cbranch_scc1 {Le}")
        h = FWO
        a(f"s_mul_i32 s36, s30, {WS}\ns_add_u32 s36, s36, {BRD}\ns_lshr_b32 s37, s2, 3\ns_lshl_b32 s37, s37, 2\ns_add_u32 s37, s37, s36")
        a(f"v_lshlrev_b32 v{h}, 2, v1\nv_lshlrev_b32 v{h+1}, 10, v{TAG}")
        a.label(Lb)
        a(f"ds_read_b32 v{h+2}, v{VCN} offset:{C_T*4}\ns_waitcnt lgkmcnt(0)\nv_readfirstlane_b32 s41, v{h+2}\ns_sub_u32 s41, s41, s39")
        a(f"v_or_b32 v{h+2}, s41, v{h+1}\ns_mov_b64 exec, 1\nbuffer_store_dword v{h+2}, off, {sr(R_WS,4)}, s37")
        a(f"s_mov_b64 exec, -1\ns_cmp_ge_u32 s41, {limit}\ns_cbranch_scc1 {Le}")
        a(f"s_mov_b32 exec_hi, 0\nbuffer_load_dword v{h+3}, v{h}, {sr(R_WS,4)}, s36 offen sc1\ns_mov_b64 exec, -1")
        budget_check()
        a(f"s_waitcnt vmcnt(0)\nv_xor_b32 v{h+3}, v{h+3}, v{h+1}\nv_cmp_gt_u32 vcc, 1024, v{h+3}\nv_cndmask_b32 v{h+3}, 0, v{h+3}, vcc")
        xreduce("v_add_u32", h + 3, h + 4, (1, 2, 4, 8, 16))
        a(f"v_readfirstlane_b32 s42, v{h+3}\ns_lshr_b32 s42, s42, 5\ns_sub_u32 s42, s42, s41\ns_sub_u32 s43, s42, s39\ns_mov_b32 s39, s42")
        a(f"v_mov_b32 v{h+2}, s43\ns_mov_b64 exec, 1\nds_add_u32 v{VCN}, v{h+2} offset:{C_T*4}\ns_mov_b64 exec, -1\ns_branch {Lb}")
        a.label(Le)
    a("s_mov_b32 s39, 0")
    def mod_tile(t, cnt):
        lds_wait(cnt, 8, WK, VCN)
        tr_tile(FU, L_MOD + t * 16384, 2, WK + 4)
        a("s_waitcnt lgkmcnt(0)")
        if t:
            gemv_pub([FU, FU + 8], 2, FU + 16, FU + 24, MODP + (t - 1) * 512)
            return
        for cg in range(2):
            for kk in range(2): mfma(WK + 4 * cg, FU + 8 * cg + 4 * kk, ACT + 4 * kk, kk == 0)
        o = FU + 16
        a(f"v_mov_b32 v{o+1}, v{TAG}\nv_mov_b32 v{o+3}, v{TAG}")
        a(f"v_and_b32 v{o+4}, 2, v1\nv_lshlrev_b32 v{o+4}, 6, v{o+4}\nv_and_b32 v{o+5}, 48, v1\nv_lshl_add_u32 v{o+4}, v{o+5}, 1, v{o+4}\nv_and_b32 v{o+5}, 1, v1\nv_lshl_add_u32 v{o+4}, v{o+5}, 4, v{o+4}")
        for c in range(4):
            setexec(MASKC[c]); a(f"v_mov_b32 v{o}, v{WK+2*c}\nv_mov_b32 v{o+2}, v{WK+2*c+1}")
        setexec(sum(MASKC))
        a(f"s_lshl_b32 s5, s{WV}, 8\ns_add_u32 s5, s5, s{SMY}\ns_add_u32 s5, s5, {HP}")
        a(f"buffer_store_dwordx4 {vr(o,4)}, v{o+4}, {sr(R_WS,4)}, s5 offen sc1\ns_mov_b64 exec, -1")
    mod_tile(0, C_CRIT)
    a(f"v_mov_b32 v{BT}, 0xffffff00")
    stamp(2, VST)
    a(f"s_mul_i32 s5, s30, {WS}\ns_lshl_b32 s7, s{WV}, 8\ns_add_u32 s5, s5, s7\ns_add_u32 s5, s5, {HP}")
    a(f"v_lshrrev_b32 v{WK}, 5, v1\nv_mul_u32_u24 v{VA}, {8*WS}, v{WK}\nv_and_b32 v{WK}, 31, v1\nv_lshl_add_u32 v{VA}, v{WK}, 3, v{VA}\nv_add_u32 v{VA}, s5, v{VA}")
    a(f"s_and_b32 s5, s2, 3\ns_lshl_b32 s5, s5, 6\ns_lshl_b32 s6, s{WV}, 4\ns_add_u32 s5, s5, s6\nv_and_b32 v{WK}, 15, v1\nv_add_u32 v{WK}, s5, v{WK}")
    a(f"v_mul_u32_u24 v{TB}, {WS}, v{WK}\nv_add_u32 v{TB}, {HP + 4}, v{TB}")
    lds_wait(C_WQ, 8, WK + 4, VCN)
    tr_tile(FD, L_WQ, 4, WK + 4)
    mod_tile(1, C_MOD1)
    mod_tile(2, C_MOD2)
    stamp(3, VST)
    if cfg.balk: bal_run(8 * (cfg.p1 - cfg.hl))
    lds_wait(C_P1, 8, WK + 4, VCN)
    stamp(4, VST)
    gather([(FU + 2 * i, 2, VA, i * 16 * WS, None) for i in range(16)] + [(WK + 1, 1, TB, 0, None)], WK, kind="tag",
           tags=[FU + 2 * i + 1 for i in range(16)] + [WK + 1])
    stamp(5, VST)
    tree_sum(FU, 16, 2); rnd(FU + 1, FU); rnd(FU, FU)
    a(f"v_permlane32_swap_b32 v{FU}, v{FU+1}\nv_add_f32 v{FU+1}, 1.0, v{FU+1}"); rnd(FU + 1, FU + 1)
    a(f"v_mul_f32 v{LN1}, v{LN1}, v{FU+1}"); rnd(LN1, LN1); a(f"v_add_f32 v{LN1}, v{LN1}, v{FU}"); rnd(LN1, LN1)
    a(f"v_and_b32 v{VB}, 31, v1\nv_lshlrev_b32 v{VB}, 1, v{VB}\ns_lshl_b32 s5, s{WV}, 6\ns_add_u32 s5, s5, {L_MISC}\nv_add_u32 v{VB}, s5, v{VB}")
    a(f"ds_write_b16_d16_hi v{VB}, v{LN1} offset:{L_HV - L_MISC}\ns_waitcnt lgkmcnt(0)")
    lds_signal(C_H, VCN, VONE)
    lds_wait(C_H, 4, WK, VCN, sleep=0)
    for kk in range(4): a(f"ds_read_b128 {vr(ACT+4*kk,4)}, v{VACT} offset:{L_HV - L_MISC + kk*64}")
    a("s_waitcnt lgkmcnt(0)")
    gemv_pub([FD, FD + 16], 4, FU, FU + 8, QP, tagged=False)
    stamp(6, VST)
    a(f"s_and_b32 s5, s2, 3\ns_lshl_b32 s5, s5, 3\nv_lshrrev_b32 v{WK+4}, 5, v0\nv_add_u32 v{WK+4}, s5, v{WK+4}\nv_mul_u32_u24 v{VA}, {8*WS}, v{WK+4}")
    a(f"v_and_b32 v{WK+4}, 31, v0\nv_lshl_add_u32 v{VA}, v{WK+4}, 4, v{VA}")
    a(f"v_lshlrev_b32 v{WK+2}, 3, v0\nv_add_u32 v{WK+2}, {L_QV}, v{WK+2}")
    if cfg.balk: bal_run(8 * (cfg.p2 - cfg.hl))
    lds_wait(C_P2, 8, WK + 4, VCN)
    stamp(20, VST)
    gather([(FG + 4 * i, 4, VA, QP + i * WS, None) for i in range(8)], WK)
    stamp(7, VST)
    pk_sum4(FG, 8)
    a(f"v_cvt_pk_bf16_f32 v{WK}, v{FG}, v{FG+1}\nv_cvt_pk_bf16_f32 v{WK+1}, v{FG+2}, v{FG+3}")
    a(f"ds_write_b64 v{WK+2}, {vr(WK,2)}\ns_waitcnt lgkmcnt(0)")
    lds_signal(C_Q, VCN, VONE)
    a(f"s_add_u32 s5, s2, s{WV}\ns_cmp_lg_u32 s5, 0\ns_cbranch_scc1 L_ep_done")
    a(f"s_mov_b32 s5, {EPOCH}\ns_mov_b64 exec, 1\nbuffer_store_dword v{TAG}, off, {sr(R_WS,4)}, s5 sc1\ns_mov_b64 exec, -1")
    a.label("L_ep_done")
    ROLE, RBF, SFY, VAW = 31, 12, 13, WK + 6
    def role_make():
        a(f"s_cmp_lg_u32 s{WV}, 1\ns_cbranch_scc1 L_role_done")
        if cfg.role == 2:
            lds_wait(C_P4, 8, WK, VCN, sleep=2)
            a(f"s_mul_i32 s5, s30, {WS}\ns_add_u32 s5, s5, {TKT}\nv_mov_b32 v{WK}, 1\ns_mov_b64 exec, 1")
            a(f"buffer_atomic_add v{WK}, off, {sr(R_WS,4)}, s5 sc0 sc1\ns_waitcnt vmcnt(0)\nv_readfirstlane_b32 s36, v{WK}\ns_add_u32 s36, s36, 1")
        if cfg.role == 0: a("s_mov_b32 s5, s2")
        else:
            if cfg.role == 1: a("s_lshr_b32 s36, s2, 3")
            a("s_lshr_b32 s6, s36, 3\ns_mul_i32 s5, s30, 3\ns_add_u32 s5, s5, s6\ns_add_u32 s7, s30, 24\ns_cmp_lt_u32 s6, 3\ns_cselect_b32 s5, s5, s7")
            a("s_cmp_lt_u32 s6, 4\ns_cselect_b32 s5, s5, 28\ns_lshl_b32 s5, s5, 3\ns_and_b32 s6, s36, 7\ns_add_u32 s5, s5, s6")
        a(f"s_add_u32 s5, s5, 1\nv_mov_b32 v{WK}, s5\ns_mov_b64 exec, 1\nds_write_b32 v{VCN}, v{WK} offset:{C_ROLE*4}\ns_mov_b64 exec, -1")
        a.label("L_role_done")
    def rest_mod():
        lds_wait(C_ROLE, 1, WK, VCN, sleep=2)
        a(f"s_sub_u32 s{ROLE}, s5, 1")
        a(f"s_and_b32 s{RBF}, s{ROLE}, 7\ns_mul_i32 s{SFY}, s{ROLE}, {WS}\ns_lshl_b32 s32, s{RBF}, 7\ns_lshl_b32 s5, s{WV}, 5\ns_add_u32 s32, s32, s5")
        a(f"s_lshl_b32 s5, s32, 1\nbuffer_load_ushort v{K_X}, v{K_C1}, {sr(R_X,4)}, s5 offen")
        a(f"v_lshrrev_b32 v{WK}, 3, v1\nv_mul_u32_u24 v{WK+1}, {WS}, v{WK}\nv_and_b32 v{WK+2}, 7, v1\nv_lshlrev_b32 v{WK+2}, 4, v{WK+2}")
        a(f"s_mul_i32 s34, s{RBF}, {WS}\ns_lshl_b32 s6, s{WV}, 7\ns_add_u32 s34, s34, s6")
        a(f"s_lshl_b32 s5, s32, 4\nv_lshl_add_u32 v{VA}, v{K_C1}, 3, s5")
        gather([(FG, 4, VA, MODF, None)], WK, kind="byte")
        a(f"v_and_b32 v{WK+3}, 8, v1\nv_mul_u32_u24 v{WK+3}, 40, v{WK+3}\ns_lshl_b32 s5, s{WV}, 6\ns_add_u32 s5, s5, {L_AT}\nv_add3_u32 v{VAW}, v{WK+3}, v{K_C1}, s5")
        a(f"v_mov_b32 v{TB}, v{K_C1}")
        a(f"v_mov_b32 v{K_GA}, v{FG}\nv_mov_b32 v{K_GB}, v{FG+3}\nv_add_f32 v{K_C1}, 1.0, v{FG+2}"); rnd(K_C1, K_C1)
        a(f"v_mov_b32_dpp v{FG+1}, v{K_C1} quad_perm:[0,1,2,3] row_mask:0xf bank_mask:0x3")
        a(f"ds_write_b16_d16_hi v{VAW}, v{FG+1} offset:640")
        stamp(8, VST)
        a(f"v_lshlrev_b32 v{K_X}, 16, v{K_X}")
    if cfg.elocal:
        assert cfg.role in (1, 2)
        a(f"v_and_b32 v{WK+3}, 31, v1\nv_lshl_add_u32 v{WK+3}, v{WK+3}, 3, s30\nv_mul_u32_u24 v{WK+3}, {WS}, v{WK+3}")
        gather([(FG, 2, WK + 3, XCP, None)], WK, kind="tag", tags=[FG + 1])
        a(f"v_cmp_ne_u32 vcc, s14, v{FG}\ns_cmp_eq_u64 vcc, 0\ns_cselect_b32 s15, 1, 0")
    role_make()
    a(f"s_cmp_lg_u32 s{WV}, 2\ns_cbranch_scc1 L_modf_done")
    a(f"v_lshrrev_b32 v{WK}, 2, v1\nv_lshlrev_b32 v{WK}, 4, v{WK}\nv_and_b32 v{WK+1}, 1, v1\nv_lshl_add_u32 v{WK}, v{WK+1}, 3, v{WK}\nv_add_u32 v{WK}, s30, v{WK}\nv_mul_u32_u24 v{VA}, {WS}, v{WK}")
    a(f"v_and_b32 v{WK+1}, 2, v1\nv_lshl_add_u32 v{VA}, v{WK+1}, 8, v{VA}\ns_lshr_b32 s36, s2, 3\ns_lshl_b32 s5, s36, 4\nv_add_u32 v{VA}, s5, v{VA}")
    gather([(FG, 4, VA, MODP, None)], WK, kind="byte")
    col_reduce(FG)
    a(f"v_add_f32_dpp v{FG}, v{FG}, v{FG} row_ror:4 {DPPF}"); rnd(FG, FG)
    for k in range(4): a(f"v_mov_b32_dpp v{FG+4+k}, v{FG} quad_perm:[{k},{k},{k},{k}] {DPPF}")
    for k in range(4): tagit(FG + 4 + k, FG + 4 + k, k)
    a(f"v_lshlrev_b32 v{WK}, 3, v{K_C1}\ns_lshl_b32 s5, s30, 11\ns_lshl_b32 s6, s36, 6\ns_add_u32 s5, s5, s6\ns_add_u32 s5, s5, {MODF}")
    setexec(MASKC[0])
    a(f"buffer_store_dwordx4 {vr(FG+4,4)}, v{WK}, {sr(R_WS,4)}, s5 offen sc1\ns_mov_b64 exec, -1")
    a.label("L_modf_done")
    a(f"s_cmp_lg_u32 s{WV}, 0\ns_cbranch_scc1 L_ml_pub")
    lds_wait(C_ML, 8, WK, VCN, sleep=2)
    stamp(9, VST)
    a(f"v_lshlrev_b32 v{WK+2}, 3, v1\nv_add_u32 v{WK+3}, {L_MLW}, v{WK+2}\nds_read_b64 {vr(WK,2)}, v{WK+3}\ns_waitcnt lgkmcnt(0)")
    a(f"v_mov_b32 v{WK+4}, v{WK}")
    xreduce("v_max_f32", WK + 4, WK + 6, (8, 16, 32))
    a(f"v_sub_f32 v{WK}, v{WK}, v{WK+4}\nv_mul_f32 v{WK}, s33, v{WK}\nv_exp_f32 v{WK}, v{WK}\nv_mul_f32 v{WK+5}, v{WK}, v{WK+1}")
    xreduce("v_add_f32", WK + 5, WK + 6, (8, 16, 32))
    a(f"s_add_u32 s5, s{SMY}, {MLP}\ns_mov_b64 exec, 0xff\nbuffer_store_dwordx2 {vr(WK+4,2)}, v{WK+2}, {sr(R_WS,4)}, s5 offen sc1\ns_mov_b64 exec, -1")
    a.label("L_ml_pub")
    a(f"s_cmp_lg_u32 s{WV}, 0\ns_cbranch_scc1 L_ml_done")
    a(f"v_lshrrev_b32 v{WK}, 3, v1\nv_lshlrev_b32 v{WK}, 2, v{WK}\ns_and_b32 s5, s2, 3\nv_add_u32 v{WK}, s5, v{WK}\nv_mul_u32_u24 v{VA}, {WS}, v{WK}")
    a(f"v_and_b32 v{WK}, 7, v1\nv_lshl_add_u32 v{VA}, v{WK}, 3, v{VA}")
    lds_wait(C_P3, 8, WK, VCN)
    stamp(21, VST)
    gather([(FU + 2 * i, 2, VA, MLP + i * 32 * WS, None) for i in range(8)], WK)
    m_, r_, t_ = FU + 16, FU + 17, FU + 18
    a(f"v_max3_f32 v{m_}, v{FU}, v{FU+2}, v{FU+4}\nv_max3_f32 v{m_}, v{m_}, v{FU+6}, v{FU+8}\nv_max3_f32 v{m_}, v{m_}, v{FU+10}, v{FU+12}\nv_max_f32 v{m_}, v{m_}, v{FU+14}")
    xreduce("v_max_f32", m_, t_, (8, 16, 32))
    for i in range(8):
        a(f"v_sub_f32 v{FU+2*i}, v{FU+2*i}, v{m_}\nv_mul_f32 v{FU+2*i}, s33, v{FU+2*i}\nv_exp_f32 v{FU+2*i}, v{FU+2*i}")
    for i in range(8): a(f"v_mul_f32 v{FU+2*i}, v{FU+2*i}, v{FU+2*i+1}")
    tree_sum(FU, 8, 2)
    xreduce("v_add_f32", FU, t_, (8, 16, 32))
    a(f"v_rcp_f32 v{r_}, v{FU}")
    a(f"v_lshlrev_b32 v{t_}, 3, v1\nv_add_u32 v{t_}, {L_MLF}, v{t_}\ns_mov_b64 exec, 0xff\nds_write_b64 v{t_}, {vr(m_,2)}\ns_waitcnt lgkmcnt(0)")
    lds_signal(C_MLD, VCN, VONE)
    stamp(10, VST)
    a.label("L_ml_done")
    if cfg.bal >= 2: bal_run(8 * (24 - cfg.D2 - cfg.nq2 + (32 if cfg.balk else 0)))
    lds_wait(C_P3, 8, WK, VCN, sleep=4)
    rest_mod()
    late = lst(cfg.late)
    def ffn_frags(name, t0):
        base, dst, cnt = {"wo": (L_WO, FWO, C_WO), "gate": (L_GATE, FG, C_GATE), "up": (L_UP, FU, C_UP), "dn": (L_DN, FD, None)}[name]
        if cnt is not None: lds_wait(cnt, 8, t0, VCN, sleep=0 if name in late else 2)
        tr_tile(dst, base, 4, t0)
    if "wo" not in late: ffn_frags("wo", WK + 3)
    for name in ("gate", "up"):
        if name not in late: ffn_frags(name, WK + 3)
    A_OS, A_OG, A_XW = ACT + 8, ACT + 9, ACT + 10
    A_A = WK + 5
    assert all(t in late for t in ("gate", "up"))
    a(f"s_lshr_b32 s5, s2, 6\ns_mul_i32 s5, s5, {WS}\ns_lshl_b32 s6, s30, 9\ns_add_u32 s5, s5, s6\ns_lshl_b32 s7, s{WV}, 7\ns_add_u32 s5, s5, s7")
    a(f"v_lshl_add_u32 v{A_A}, v{WK+1}, 2, v{WK+2}\nv_add_u32 v{A_A}, s5, v{A_A}")
    a(f"s_mul_i32 s5, s{RBF}, {8*WS}\ns_add_u32 s5, s5, s7\nv_add3_u32 v{VA}, v{WK+1}, v{WK+2}, s5")
    a(f"v_lshl_add_u32 v{WK+1}, v{WK+1}, 3, v{WK+2}\nv_add_u32 v{WK+1}, s34, v{WK+1}")
    a(f"s_and_b32 s5, s{ROLE}, 0xf8\ns_mul_i32 s5, s5, {WS}\ns_lshl_b32 s6, s{WV}, 10\ns_add_u32 s5, s5, s6\nv_lshlrev_b32 v{WK+2}, 4, v1\nv_add_u32 v{WK+2}, s5, v{WK+2}")
    A_Y, A_Z, A_E = VA, WK + 1, WK + 2
    a(f"v_lshrrev_b32 v{WK}, 4, v1\nv_and_b32 v{WK+3}, 15, v1\nv_lshlrev_b32 v{A_OS}, 10, v{WK}\nv_lshl_add_u32 v{A_OS}, v{WK+3}, 4, v{A_OS}")
    a(f"s_lshl_b32 s5, s{WV}, 8\ns_add_u32 s5, s5, {L_OS}\nv_add_u32 v{A_OS}, s5, v{A_OS}")
    a(f"v_and_b32 v{A_OG}, 7, v1\nv_lshlrev_b32 v{A_OG}, 9, v{A_OG}\nv_lshl_add_u32 v{A_OG}, v{WK}, 4, v{A_OG}\nv_and_b32 v{WK+3}, 8, v1\nv_lshl_add_u32 v{A_OG}, v{WK+3}, 3, v{A_OG}")
    a(f"s_lshl_b32 s37, s{WV}, 7\ns_add_u32 s37, s37, s{SMY}\ns_add_u32 s37, s37, {OP}")
    a(f"v_and_b32 v{WK+3}, 7, v1\nv_bfe_u32 v{WK+4}, v1, 4, 1\nv_lshl_add_u32 v{WK+3}, v{WK+4}, 4, v{WK+3}\nv_lshrrev_b32 v{WK+4}, 5, v1\nv_lshl_add_u32 v{WK+3}, v{WK+4}, 3, v{WK+3}")
    a(f"s_lshl_b32 s5, s{WV}, 6\ns_add_u32 s5, s5, {L_OV}\nv_lshl_add_u32 v{A_XW}, v{WK+3}, 1, s5")
    a(f"v_lshlrev_b32 v{VCHK}, 2, v1\nv_add_u32 v{VCHK}, {L_MISC}, v{VCHK}")
    def e_preread(t):
        a(f"v_lshlrev_b32 v{t}, 7, v1\ns_lshl_b32 s5, s{WV}, 10\ns_add_u32 s5, s5, s{SFY}\ns_add_u32 s5, s5, {GUP}\ns_mov_b64 exec, 0xff")
        a(f"buffer_load_dword v{t}, v{t}, {sr(R_WS,4)}, s5 offen sc1\ns_mov_b64 exec, -1")
    if cfg.warm:
        a(f"s_getpc_b64 s[6:7]\ns_lshl_b32 s5, s{WV}, 11\nv_lshlrev_b32 v{WK+4}, 7, v1\nv_add_u32 v{WK+4}, s5, v{WK+4}\ns_mov_b64 exec, 0xffff")
        a(f"global_load_dword v{WK+3}, v{WK+4}, s[6:7]\ns_mov_b64 exec, -1")
    if cfg.zt:
        a(f"s_lshl_b32 s5, s{WV}, 7\ns_add_u32 s5, s5, s{SFY}\ns_add_u32 s5, s5, {ZP}\ns_mov_b64 exec, 1\nbuffer_load_dword v{TAG}, off, {sr(R_WS,4)}, s5 sc1\ns_mov_b64 exec, -1")
    if cfg.elocal and cfg.epre == 1: e_preread(WK + 3); a("s_waitcnt vmcnt(0)")
    a("s_waitcnt lgkmcnt(0)")
    stamp(11, VST)
    a("s_barrier")
    stamp(12, VST)
    for s in range(8): a(f"ds_read_b128 {vr(FD+4*s,4)}, v{A_OS} offset:{s*4096}")
    a("s_waitcnt lgkmcnt(4)"); pk_sum4(FD, 4)
    a("s_waitcnt lgkmcnt(0)"); pk_sum4(FD + 16, 4)
    a(f"v_pk_add_f32 {vr(FD,2)}, {vr(FD,2)}, {vr(FD+16,2)}\nv_pk_add_f32 {vr(FD+2,2)}, {vr(FD+2,2)}, {vr(FD+18,2)}")
    for i in range(4): tagit(FD + i, FD + i, i)
    a(f"buffer_store_dwordx4 {vr(FD,4)}, v{A_OG}, {sr(R_WS,4)}, s37 offen sc1")
    stamp(13, VST)
    def betweenA():
        if cfg.p5 < 0: lds_signal(C_OR, VCN, VONE)
        if "wo" in late: ffn_frags("wo", WK + 3)
    if cfg.p5 >= 0:
        lds_signal(C_OR, VCN, VONE)
        lds_wait(C_P5, 8, WK, VCN)
    gather([(FU + 4 * i, 4, A_A, OP + i * 32 * WS, None) for i in range(8)], WK, kind="byte", between=betweenA, acc=FD + 4)
    if cfg.yrel == 1: lds_signal(C_Y, VCN, VONE)
    stamp(14, VST)
    col_reduce(FD + 4)
    rnd(FD + 4, FD + 4)
    a(f"ds_write_b16_d16_hi v{A_XW}, v{FD+4}")
    xch_read(L_OV, 4, WK, VACT)
    gemv_pub([FWO, FWO + 16], 4, FD, FD + 16, YP)
    if not cfg.yrel: lds_signal(C_Y, VCN, VONE)
    stamp(15, VST)
    a(f"s_cmp_lt_u32 s{ROLE}, 224\ns_cbranch_scc1 L_ffn")
    if cfg.yrel == 2: lds_signal(C_Y, VCN, VONE)
    a("s_branch L_fin")
    a.label("L_ffn")
    a(f"s_mov_b32 s{SMY}, s{SFY}")
    A_AT, A_SW, A_SR = FD + 20, FD + 21, FD + 22
    a(f"v_and_b32 v{WK}, 3, v1\nv_mul_u32_u24 v{WK}, 320, v{WK}\nv_add_u32 v{A_AT}, v{WK}, v{VACT}")
    a(f"v_bfe_u32 v{WK}, v1, 3, 1\nv_and_b32 v{WK+3}, 1, v1\nv_lshl_add_u32 v{WK}, v{WK+3}, 3, v{WK}\ns_lshl_b32 s5, s{WV}, 3\ns_add_u32 s5, s5, {L_ST}\nv_lshl_add_u32 v{A_SW}, v{WK}, 2, s5")
    a(f"v_and_b32 v{WK}, 15, v1\nv_lshlrev_b32 v{A_SR}, 2, v{WK}\nv_add_u32 v{A_SR}, {L_ST}, v{A_SR}")
    a(f"s_mov_b32 s34, 0xaaaaaaaa\ns_mov_b32 s35, 0xaaaaaaaa")
    a(f"s_lshl_b32 s36, s{WV}, 10\ns_add_u32 s36, s36, s{SMY}\ns_add_u32 s36, s36, {GUP}\nv_lshlrev_b32 v{FD+24}, 4, v1")
    if cfg.elocal and cfg.epre == 2: e_preread(FD + 23)
    def gu_frags():
        for name in ("gate", "up"):
            if name in late: ffn_frags(name, WK + 3)
    if cfg.bgate == 1: gu_frags()
    if cfg.nb: lds_wait(C_UP, cfg.nb, WK, VCN, sleep=0)
    if cfg.p6 >= 0: lds_wait(C_P6, 8, WK, VCN)
    if cfg.ackB: a("s_waitcnt vmcnt(0)")
    gather([(FWO + 4 * i, 4, A_Y, YP + i * 64 * WS, None) for i in range(4)], WK, kind="byte", between=gu_frags if cfg.bgate == 2 else None, acc=FD)
    if cfg.yrel == 2: lds_signal(C_Y, VCN, VONE)
    stamp(16, VST)
    col_reduce(FD)
    y_ = FD
    rnd(y_, y_); a(f"v_mul_f32 v{y_}, v{y_}, v{K_GA}"); rnd(y_, y_); a(f"v_add_f32 v{K_X}, v{K_X}, v{y_}"); rnd(K_X, K_X)
    a(f"v_mul_f32 v{y_}, v{K_X}, v{K_C1}"); rnd(y_ + 1, y_)
    a(f"v_mov_b32 v{y_+2}, v{K_X}")
    a(f"v_subrev_f32_dpp v{y_}, v{y_+1}, v{y_} quad_perm:[0,1,2,3] row_mask:0xf bank_mask:0xc")
    rnd(y_, y_)
    a(f"ds_write_b16_d16_hi v{VAW}, v{y_}")
    if cfg.bgate == 0: gu_frags()
    xch_read(L_AT, 4, WK + 3, A_AT, two=True)
    stamp(22, VST)
    frs = [FG, FG + 16, FU, FU + 16]; dacc = FWO; out = FWO + 16
    Ls = a.newlabel("L_st")
    st_ = y_ + 2
    sq = [f"v_mul_f32_dpp v{st_}, v{K_X}, v{K_X} quad_perm:[0,1,2,3] row_mask:0xf bank_mask:0xc\nv_mov_b32 v{st_+1}, v{st_}\ns_nop 0",
          f"v_permlane32_swap_b32 v{st_}, v{st_+1}\nv_add_f32 v{st_}, v{st_}, v{st_+1}\nv_mov_b32 v{st_+1}, v{st_}\ns_nop 0",
          f"v_permlane16_swap_b32 v{st_}, v{st_+1}\nv_add_f32 v{st_}, v{st_}, v{st_+1}\ns_nop 0",
          f"v_add_f32_dpp v{st_}, v{st_}, v{st_} quad_perm:[1,0,3,2] {DPPF}\ns_nop 0",
          f"v_add_f32_dpp v{st_}, v{st_}, v{st_} quad_perm:[2,3,0,1] {DPPF}\ns_nop 0",
          f"v_add_f32_dpp v{st_}, v{st_}, v{st_} row_half_mirror {DPPF}\nv_and_b32 v{st_+1}, 0xffffff00, v{st_}",
          f"v_sub_f32 v{st_}, v{st_}, v{st_+1}\nv_cndmask_b32 v{st_}, v{st_+1}, v{st_}, s[34:35]\nds_write_b32 v{A_SW}, v{st_}"]
    for cg in range(5):
        if cg < 4:
            if cg > 1: a("s_mov_b64 exec, -1")
            if cg == 3: a(f"ds_read_b32 v{out+3}, v{A_SR}")
            for kk in range(4):
                mfma(dacc + 4 * cg, ACT + 4 * kk, frs[cg] + 4 * kk, kk == 0)
                if sq: a(sq.pop(0))
        if cg >= 1:
            d = dacc + 4 * (cg - 1)
            setexec(0xffff << (16 * (cg - 1)))
            a(f"v_add_f32 v{out}, v{d}, v{d+1}"); tagit(out + 1, d + 2, 1); tagit(out + 2, d + 3, 2)
    a("s_mov_b64 exec, -1")
    tagit(out, out, 0)
    Lok = a.newlabel("L_stok")
    a.label(Ls)
    a(f"s_waitcnt lgkmcnt(0)\nv_cmp_eq_u32 vcc, -1, v{out+3}\ns_cbranch_vccz {Lok}")
    a(f"ds_read_b32 v{out+3}, v{A_SR}"); budget_check(); a(f"s_branch {Ls}")
    a.label(Lok)
    tagit(out + 3, out + 3, 3)
    if cfg.elocal:
        a("s_cmp_eq_u32 s15, 0\ns_cbranch_scc1 L_e_far")
        a(f"buffer_store_dwordx4 {vr(out,4)}, v{FD+24}, {sr(R_WS,4)}, s36 offen\ns_branch L_e_st")
        a.label("L_e_far")
    a(f"buffer_store_dwordx4 {vr(out,4)}, v{FD+24}, {sr(R_WS,4)}, s36 offen sc1")
    if cfg.elocal: a.label("L_e_st")
    stamp(23, VST)
    def dnf():
        a("s_barrier")
        ffn_frags("dn", WK + 3)
    eg = [(FG + 4 * i, 4, A_E, GUP + i * WS, None) for i in range(8)]
    if not cfg.efirst: dnf()
    if cfg.ackE: a("s_waitcnt vmcnt(0)")
    stamp(17, VST)
    gather(eg, WK, kind="byte", masked=cfg.efirst == 1, between=dnf if cfg.efirst == 1 else None, acc=FU)
    if cfg.efirst == 2: dnf()
    stamp(18, VST)
    g_ = FU; s_ = FU + 3
    xreduce("v_add_f32", s_, None, (2, 4, 8))
    a(f"v_mul_f32 v{s_}, {f2u(1.0/1024):#x}, v{s_}")
    a(f"v_mov_b32_dpp v{g_+4}, v{s_} quad_perm:[0,0,2,2] {DPPF}\nv_mov_b32_dpp v{g_+5}, v{s_} quad_perm:[1,1,3,3] {DPPF}")
    a(f"v_fma_f32 v{g_+5}, -v{g_+4}, v{g_+4}, v{g_+5}"); rnd(g_ + 4, g_ + 4)
    a(f"v_max_f32 v{g_+5}, 0, v{g_+5}\nv_fma_f32 v{g_}, -v{g_+4}, v{g_+1}, v{g_}")
    den_from_var(g_ + 5, g_ + 6)
    a(f"v_fma_f32 v{g_}, v{g_}, v{g_+6}, v{g_+2}")
    rnd(g_ + 1, g_); rnd(g_, g_)
    a(f"v_permlane32_swap_b32 v{g_}, v{g_+1}")
    k2 = -2.0 * 0.7978845608028654 * LOG2E
    a(f"v_mul_f32 v{g_+2}, v{g_}, v{g_}\nv_mul_f32 v{g_+3}, {f2u(k2):#x}, v{g_}\nv_mul_f32 v{g_+2}, {f2u(0.044715):#x}, v{g_+2}\nv_fma_f32 v{g_+2}, v{g_+2}, v{g_+3}, v{g_+3}")
    a(f"v_exp_f32 v{g_+2}, v{g_+2}\nv_add_f32 v{g_+2}, 1.0, v{g_+2}\nv_rcp_f32 v{g_+2}, v{g_+2}\nv_mul_f32 v{g_}, v{g_}, v{g_+2}")
    rnd(g_, g_); a(f"v_mul_f32 v{g_}, v{g_}, v{g_+1}"); rnd(g_, g_)
    a(f"ds_write_b16_d16_hi v{VB}, v{g_} offset:{L_HHV - L_MISC}")
    xch_read(L_HHV, 4, WK, VACT)
    gemv_pub([FD, FD + 16], 4, FG, FG + 8, ZP)
    stamp(19, VST)
    a(f"s_lshr_b32 s5, s{ROLE}, 3\ns_cmp_lg_u32 s5, {cfg.dgrp}\ns_cbranch_scc1 L_fin")
    for i in range(4): a(f"v_mov_b32 v{FU+12+i}, 0")
    a("s_lshl_b32 s36, s32, 1")
    stamp(26, VST)
    if cfg.ackD: a("s_waitcnt vmcnt(0)")
    if cfg.dsl: a(f"s_sleep {cfg.dsl}")
    gather([(FU + 4 * i, 4, A_Z, ZP + i * 64 * WS, None if i < 3 else 0xffffffff) for i in range(4)], WK, kind="byte", masked=False, acc=FU + 16)
    stamp(24, VST)
    z_ = FU + 16
    col_reduce(z_)
    rnd(z_, z_); a(f"v_mul_f32 v{z_}, v{z_}, v{K_GB}"); rnd(z_, z_); a(f"v_add_f32 v{z_}, v{K_X}, v{z_}")
    setexec(0x00ff00ff00ff00ff)
    rnd(z_, z_)
    a(f"buffer_store_short_d16_hi v{z_}, v{TB}, {sr(R_OUT,4)}, s36 offen" + (" sc1" if cfg.outsc else "") + "\ns_mov_b64 exec, -1")
    stamp(25, VST)
    a.label("L_fin")
    if cfg.stamps:
        a(f"s_lshl_b32 s5, s2, 11\ns_lshl_b32 s6, s3, 7\ns_add_u32 s5, s5, s6\ns_add_u32 s5, s5, 0x8000000\nv_lshlrev_b32 v2, 2, v1")
        a(f"s_mov_b32 exec_hi, 0\nbuffer_store_dword v{VST}, v2, {sr(R_WS,4)}, s5 offen")
    a("s_endpgm")
    for f in deferred: f()
    a.label("L_end")
    body = "\n".join(hazard.run(a.l)) + "\n"
    return wrap(body, 256, 768, LDS_BYTES, 168, extra_desc="  .amdhsa_float_denorm_mode_32 3\n")

if __name__ == "__main__":
    out = sys.argv[1]
    kw = {}
    for x in sys.argv[2:]:
        k, v = x.split("="); kw[k] = int(v) if v.lstrip("-").isdigit() else v
    open(out, "w").write(gen(Cfg(**kw)))
```

```python
import sys, os, struct
from asmgen import *
import hazard

def f2u(x): return struct.unpack("<I", struct.pack("<f", x))[0]
LOG2E = 1.4426950408889634

class Cfg:
    D1 = 3; D2 = 3; DV = 3; D3 = 3
    stamps = False
    spin_budget = 1 << 18
    pre1 = "crit,wq,mod1,mod2"
    pre2 = ""
    mid = ""
    late = "wo,gate,up,dn"
    nl0 = 3
    nl2 = 0
    p1 = 8; p2 = 23; p3 = 16
    ackB = 1; ackE = 0; ackD = 1
    bgate = 1
    outsc = 1
    ot = 2
    hd = 0
    hint = 0
    yd = -1
    pv = 31
    cdone = 32
    pmin = 3
    mfirst = 2
    nq2 = 0
    nmid = 0
    D0 = 3; n0 = 0
    ktouch = 0
    dsl = 0
    dgrp = 0
    warm = 0
    nb = 0
    p5 = 8
    p6 = 12
    ysl = 1
    efirst = 0
    bal = 2
    Dmin = 2; Dmax = 5; th = -12; balk = 0; DVmax = 6; Kmin = 2; Kmax = 4; hl = 2
    yrel = 0
    zt = 3
    elocal = 1
    epre = 2
    role = 1
    p4 = 18
    touch = 0
    def __init__(self, **kw):
        for k, v in kw.items():
            assert hasattr(self, k), k
            setattr(self, k, v)

QP, MLP = 0, 512
TKT = 640
INB = 9344
BRD = 768
XCP = 896
HP = 1024
MODP = 2048
YP, ZP, OP, GUP, MOM = 3072, 3584, 4096, 8192, 9216
MODF = 6 << 20
EPOCH = 8 << 20
L_MOD, L_WQ, L_UP, L_DN, L_WO, L_GATE, L_MISC = 0, 0xC000, 0, 0x8000, 0x14000, 0x1C000, 0x24000
L_OS = L_DN
L_CNT = L_MISC
(C_CRIT, C_WQ, C_MOD1, C_MOD2, C_WO, C_GATE, C_UP, C_DN, C_Q, C_H, C_ML, C_MLD, C_CLR, C_P1, C_P2, C_P3, C_Y, C_OR, C_ROLE, C_P4, C_T, C_TK, C_P5, C_P6, C_P7, C_P8, C_LC) = range(27)
L_QV = L_MISC + 0x100
L_HV = L_MISC + 0x900
L_HHV = L_MISC + 0xA00
L_OV = L_MISC + 0xB00
L_ST = L_MISC + 0x1700
L_SIL = L_MISC + 0xC00
L_MLW = L_MISC + 0xE00
L_MLF = L_MISC + 0x1000
L_AT = L_MISC + 0x1100
LDS_BYTES = 160 * 1024

def is_reducer(w): return w < 8
def vr(a, n=1): return f"v{a}" if n == 1 else f"v[{a}:{a+n-1}]"
def sr(a, n=1): return f"s{a}" if n == 1 else f"s[{a}:{a+n-1}]"

def gen(cfg):
    a = Asm()
    WS = 9600
    BUD = 4
    lst = lambda x: [t for t in x.split(",") if t]
    def srd_load(r, karg_off): a(f"s_load_dwordx2 {sr(r,2)}, s[0:1], {karg_off}")
    def srd_fin(r, nbytes): a(f"s_mov_b32 s{r+2}, {nbytes}\ns_mov_b32 s{r+3}, 0x20000")
    def rnd(d, s): a(f"v_cvt_pk_bf16_f32 v{d}, 0, v{s}")
    def setexec(m): a(f"s_mov_b32 exec_lo, {m & 0xffffffff:#x}\ns_mov_b32 exec_hi, {m >> 32:#x}")
    def stamp(idx, vreg):
        if cfg.stamps == 1 or (cfg.stamps == 2 and idx == 25): a(f"s_memrealtime s[98:99]\ns_waitcnt lgkmcnt(0)\nv_writelane_b32 v{vreg}, s98, {idx}")
    def budget_check(): a(f"s_sub_u32 s{BUD}, s{BUD}, 1\ns_cbranch_scc1 L_end")
    def lds_wait(cnt, target, vtmp, vaddr, sleep=1):
        L = a.newlabel("L_lw"); Ld = a.newlabel("L_lwd")
        a.label(L)
        a(f"ds_read_b32 v{vtmp}, v{vaddr} offset:{cnt*4}\ns_waitcnt lgkmcnt(0)\nv_readfirstlane_b32 s5, v{vtmp}")
        a(f"s_cmp_ge_u32 s5, {target}\ns_cbranch_scc1 {Ld}")
        if sleep: a(f"s_sleep {sleep}")
        budget_check()
        a(f"s_branch {L}")
        a.label(Ld)
    def lds_signal(cnt, vaddr, vone):
        a(f"s_mov_b64 exec, 1\nds_add_u32 v{vaddr}, v{vone} offset:{cnt*4}\ns_mov_b64 exec, -1")
    DPPF = "row_mask:0xf bank_mask:0xf"
    def xreduce(op, v, t, steps):
        for s in steps:
            if s in (1, 2, 4, 8): a(f"{op}_dpp v{v}, v{v}, v{v} row_ror:{s} {DPPF}")
            elif s == 16: a(f"v_mov_b32 v{t}, v{v}\nv_permlane16_swap_b32 v{v}, v{t}\n{op} v{v}, v{v}, v{t}")
            elif s == 32: a(f"v_mov_b32 v{t}, v{v}\nv_permlane32_swap_b32 v{v}, v{t}\n{op} v{v}, v{v}, v{t}")
            else: a(f"{op}_dpp v{v}, v{v}, v{v} {s} {DPPF}")

    a("s_load_dwordx16 s[68:83], s[0:1], 0\ns_load_dwordx8 s[84:91], s[0:1], 64\ns_load_dwordx4 s[92:95], s[0:1], 96")
    KA = lambda off: 68 + off // 4
    a("s_cmp_ge_u32 s2, 256\ns_cbranch_scc1 L_end")
    a("v_lshrrev_b32 v2, 6, v0\nv_and_b32 v1, 63, v0")
    a("v_readfirstlane_b32 s3, v2")
    a(f"s_mov_b32 s{BUD}, {cfg.spin_budget}")
    if cfg.stamps: a("s_memrealtime s[96:97]")
    a("s_cmp_ge_u32 s3, 8\ns_cbranch_scc1 L_cwave")

    R_MOD, R_WQ, R_WO, R_G, R_U, R_DN, R_K, R_V, R_WSS = 8, 12, 16, 20, 24, 28, 32, 36, 40
    VK, VV, VGU, VDN, VCN, VONE = 2, 3, 4, 5, 6, 7
    Q0, T0, DT, KV = 8, 16, 32, 40
    VMOD, VWQ, VST = 16, 17, 0
    SB_MOD, SB_WQ, SB_WO, SB_GU, SB_DN, SB_KV, SO, SL, SL4 = 44, 45, 46, 47, 48, 49, 50, 51, 56
    def srd(r, off, nbytes): a(f"s_mov_b64 {sr(r,2)}, {sr(KA(off),2)}\ns_mov_b32 s{r+2}, {nbytes}\ns_mov_b32 s{r+3}, 0x20000")
    a("v_and_b32 v32, 15, v1\nv_lshrrev_b32 v33, 4, v1\nv_lshlrev_b32 v34, 1, v33\nv_xor_b32 v34, v34, v32\nv_lshlrev_b32 v34, 4, v34")
    a(f"v_mul_u32_u24 v{VMOD}, 12288, v33\nv_add_u32 v{VMOD}, v{VMOD}, v34\ns_and_b32 s63, s3, 1\ns_lshl_b32 s63, s63, 7\nv_xor_b32 v{VMOD}, s63, v{VMOD}")
    a(f"v_lshl_add_u32 v{VWQ}, v33, 13, v34")
    a(f"s_lshr_b32 s5, s2, 4\ns_lshl_b32 s5, s5, 6\ns_lshl_b32 s6, s3, 3\ns_add_u32 s5, s5, s6\ns_mul_i32 s5, s5, 12288")
    a(f"s_and_b32 s6, s2, 15\ns_lshl_b32 s6, s6, 8\ns_add_u32 s{SB_MOD}, s5, s6\ns_lshl_b32 s{SL}, s3, 11\ns_lshl_b32 s{SL4}, s3, 12")
    a("s_and_b32 s52, s2, 7\ns_lshr_b32 s53, s2, 3")
    a(f"s_lshl_b32 s5, s52, 7\ns_lshl_b32 s57, s3, 4\ns_add_u32 s54, s5, s57")
    a(f"s_lshl_b32 s5, s54, 13\ns_lshl_b32 s55, s53, 8\ns_add_u32 s{SB_WQ}, s5, s55")
    a("s_waitcnt lgkmcnt(0)")
    srd(R_MOD, 80, 12582912); srd(R_WQ, 24, 8388608)
    def rest_of_setup():
        a(f"v_mul_u32_u24 v{VGU}, 7168, v33\nv_add_u32 v{VGU}, v{VGU}, v34\nv_lshl_add_u32 v{VDN}, v33, 11, v34\nv_lshlrev_b32 v{VV}, 4, v1")
        a(f"v_and_b32 v35, 2, v32\nv_lshlrev_b32 v35, 15, v35\nv_lshrrev_b32 v36, 2, v32\nv_lshl_add_u32 v35, v36, 8, v35")
        a(f"v_and_b32 v36, 1, v32\nv_lshl_add_u32 v35, v36, 6, v35\nv_lshl_add_u32 v{VK}, v33, 4, v35")
        a(f"v_mov_b32 v{VCN}, {L_CNT}\nv_mov_b32 v{VONE}, 1")
        a(f"s_lshr_b32 s5, s2, 6\ns_lshl_b32 s5, s5, 3\ns_add_u32 s5, s5, s52\ns_lshl_b32 s5, s5, 7\ns_add_u32 s5, s5, s57\ns_lshl_b32 s5, s5, 11")
        a(f"s_and_b32 s6, s53, 7\ns_lshl_b32 s6, s6, 8\ns_add_u32 s{SB_WO}, s5, s6")
        a(f"s_and_b32 s5, s2, 3\ns_lshl_b32 s5, s5, 24\ns_lshr_b32 s6, s2, 2\ns_lshl_b32 s6, s6, 18\ns_add_u32 s5, s5, s6\ns_lshl_b32 s6, s3, 10\ns_add_u32 s{SB_KV}, s5, s6")
        srd(R_WO, 32, 8388608); srd(R_K, 8, 67108864); srd(R_V, 16, 67108864)
        for r, off in ((R_G, 48), (R_U, 56), (R_DN, 64)): srd(r, off, 0)
        if cfg.stamps:
            srd(R_WSS, 104, 0x10000000); a(f"v_mov_b32 v{VST}, 0\nv_writelane_b32 v{VST}, s96, 0")
        a("s_mov_b32 s58, 0x05040100\ns_mov_b32 s59, 0x07060302")
        a("s_barrier")
    issued = []; done = [0]; tiles = {}; signalled = set(); setup = [False]
    TN = dict(crit=2, wq=4, mod1=2, mod2=2, wo=4, gate=4, up=4, dn=4)
    TC = dict(crit=C_CRIT, wq=C_WQ, mod1=C_MOD1, mod2=C_MOD2, wo=C_WO, gate=C_GATE, up=C_UP, dn=C_DN)
    def wait_n(n):
        if len(issued) - done[0] > n:
            a(f"s_waitcnt vmcnt({n})"); done[0] = len(issued) - n
            for name, ids in tiles.items():
                if name not in signalled and len(ids) == TN[name] and max(ids) < done[0]:
                    lds_signal(TC[name], VCN, VONE); signalled.add(name)
                    if name in ("wo", "up"): stamp({"wo": 20, "up": 21}[name], VST)
    def wait_id(i): wait_n(len(issued) - 1 - i)
    def dma(name, i, D):
        srd_, voff, sb, step, lbase, lsreg = {
            "crit": (R_MOD, VMOD, SB_MOD, 4 * 12288, L_MOD, SL), "mod1": (R_MOD, VMOD, SB_MOD, 4 * 12288, L_MOD + 16384, SL),
            "mod2": (R_MOD, VMOD, SB_MOD, 4 * 12288, L_MOD + 32768, SL), "wq": (R_WQ, VWQ, SB_WQ, 4 * 8192, L_WQ, SL4),
            "wo": (R_WO, VDN, SB_WO, 4 * 2048, L_WO, SL4), "gate": (R_G, VGU, SB_GU, 4 * 7168, L_GATE, SL4),
            "up": (R_U, VGU, SB_GU, 4 * 7168, L_UP, SL4), "dn": (R_DN, VDN, SB_DN, 4 * 2048, L_DN, SL4)}[name]
        extra = {"mod1": 4096, "mod2": 8192}.get(name, 0)
        if len(issued) >= min(D, 6) and not setup[0]:
            setup[0] = True; rest_of_setup()
            if cfg.ktouch:
                a(f"s_mov_b64 exec, 1\ns_mov_b32 m0, {L_MISC + 0x2000}")
                for r in (R_K, R_V): a(f"buffer_load_dword off, {sr(r,4)}, s{SB_KV} nt lds"); issued.append("t")
                a("s_mov_b64 exec, -1")
        a(f"s_add_u32 m0, s{lsreg}, {lbase + i*1024}\ns_add_u32 s{SO}, s{sb}, {i*step + extra}")
        wait_n(D - 1)
        a(f"buffer_load_dwordx4 v{voff}, {sr(srd_,4)}, s{SO} offen nt lds")
        if name in ("wq", "wo", "gate", "up", "dn") and i in (1, 3): a(f"v_xor_b32 v{voff}, 0x80, v{voff}")
        tiles.setdefault(name, []).append(len(issued)); issued.append(name)
    kid = {}; vid = {}; cur_so = [None]
    def kvload(srd_, voff, off, dst, D):
        so = off & ~0xfff
        if cur_so[0] != so:
            a(f"s_add_u32 s60, s{SB_KV}, {so}"); cur_so[0] = so
        if D: wait_n(D - 1)
        a(f"buffer_load_dwordx4 {vr(dst,4)}, v{voff}, {sr(srd_,4)}, s60 offen offset:{off & 0xfff} nt")
        issued.append("kv"); return len(issued) - 1
    def kload(n, u, D): kid[(n, u)] = kvload(R_K, VK, (16 * (n >> 3) + (n & 7)) * 8192 + u * 128, KV + 8 * n + 4 * u, D)
    def vslot(i): return KV + 4 * (i % 24)
    def vload(i, D): vid[i] = kvload(R_V, VV, i * 8192, vslot(i), D)
    def paced(cnt, k, vt, Dmin, Dmax):
        a(f"s_mov_b64 exec, 1\nds_add_rtn_u32 v{vt}, v{VCN}, v{VONE} offset:{cnt*4}\ns_mov_b64 exec, -1")
        wait_n(Dmax - 1)
        go = a.newlabel("L_go")
        a(f"s_waitcnt lgkmcnt(0)\nv_readfirstlane_b32 s5, v{vt}\ns_cmp_gt_i32 s5, {8*k + cfg.th}\ns_cselect_b64 vcc, -1, 0\ns_cbranch_scc1 {go}\ns_waitcnt vmcnt({Dmin - 1})")
        a.label(go)
    D1, D2 = cfg.D1, cfg.D2
    for name in lst(cfg.pre1):
        for i in range(TN[name]): dma(name, i, cfg.D0 if len(issued) < cfg.n0 else D1)
    stamp(11, VST)
    for n in range(16):
        for u in range(2):
            if cfg.balk:
                paced(C_T, 2 * n + u, DT, cfg.Kmin, cfg.Kmax); kload(n, u, 0)
            else: kload(n, u, cfg.D0 if len(issued) < cfg.n0 else D1)
            if 2 * n + u == cfg.p1: lds_signal(C_P1, VCN, VONE)
            if 2 * n + u == cfg.p2: lds_signal(C_P2, VCN, VONE)
    for name in lst(cfg.pre2):
        for i in range(TN[name]): dma(name, i, D1)
    stamp(1, VST)
    a(f"v_and_b32 v{DT+1}, 7, v1\nv_lshlrev_b32 v{DT+1}, 8, v{DT+1}\nv_and_b32 v{DT+2}, 8, v1\nv_lshl_add_u32 v{DT+1}, v{DT+2}, 3, v{DT+1}")
    a(f"v_lshrrev_b32 v{DT+2}, 4, v1\nv_lshl_add_u32 v{DT+1}, v{DT+2}, 4, v{DT+1}\nv_add_u32 v{DT+1}, {L_QV}, v{DT+1}")
    a(f"s_mov_b32 s61, {f2u(128 ** -0.5):#x}\ns_mov_b32 s62, {f2u(LOG2E):#x}")
    lds_wait(C_Q, 4, DT, VCN)
    stamp(2, VST)
    a(f"ds_read_b128 {vr(Q0,4)}, v{DT+1}\nds_read_b128 {vr(Q0+4,4)}, v{DT+1} offset:128\ns_waitcnt lgkmcnt(0)")
    nv = 0
    def fold(n):
        d = DT + 4 * (n & 1)
        a(f"v_add_f32_dpp v{T0+n}, v{d+1}, v{d} row_ror:8 row_mask:0xf bank_mask:0x3")
        a(f"v_add_f32_dpp v{T0+n}, v{d+2}, v{d+3} row_ror:8 row_mask:0xf bank_mask:0xc")
    def post(n):
        rnd(T0 + n, T0 + n); a(f"v_mul_f32 v{T0+n}, s61, v{T0+n}"); rnd(T0 + n, T0 + n)
    for n in range(16):
        wait_id(kid[(n, 1)])
        d = DT + 4 * (n & 1)
        a(f"v_mfma_f32_16x16x32_bf16 {vr(d,4)}, {vr(KV+8*n,4)}, {vr(Q0,4)}, 0")
        a(f"v_mfma_f32_16x16x32_bf16 {vr(d,4)}, {vr(KV+8*n+4,4)}, {vr(Q0+4,4)}, {vr(d,4)}")
        if n >= 1 and nv < D2 and n % 2 == 1:
            vload(nv, 0); nv += 1
        if n >= 2: post(n - 2)
        if n >= 1: fold(n - 1)
    for _ in range(cfg.nq2): vload(nv, 0); nv += 1
    fold(15); post(14); post(15)
    M_, L_, X_ = DT, DT + 1, DT + 2
    a(f"v_max3_f32 v{M_}, v{T0}, v{T0+1}, v{T0+2}")
    for i in range(3, 15, 2): a(f"v_max3_f32 v{M_}, v{M_}, v{T0+i}, v{T0+i+1}")
    a(f"v_max_f32 v{M_}, v{M_}, v{T0+15}")
    xreduce("v_max_f32", M_, X_, (8, 16, 32))
    for i in range(16):
        e = DT + 4 + (i & 3)
        a(f"v_sub_f32 v{e}, v{T0+i}, v{M_}\nv_mul_f32 v{e}, s62, v{e}\nv_exp_f32 v{e}, v{e}")
        if i >= 1:
            p = DT + 4 + ((i - 1) & 3)
            a(f"v_mov_b32 v{L_}, v{p}" if i == 1 else f"v_add_f32 v{L_}, v{L_}, v{p}")
    a(f"v_add_f32 v{L_}, v{L_}, v{DT+7}")
    xreduce("v_add_f32", L_, X_, (8, 16, 32))
    a(f"s_lshl_b32 s5, s3, 6\ns_add_u32 s5, s5, {L_MLW}\nv_lshlrev_b32 v{X_}, 3, v1\nv_add_u32 v{X_}, s5, v{X_}")
    a(f"s_mov_b64 exec, 0xff\nds_write_b64 v{X_}, {vr(M_,2)}\ns_waitcnt lgkmcnt(0)")
    lds_signal(C_ML, VCN, VONE)
    stamp(3, VST)
    nv0 = nv
    while nv < 24:
        if cfg.bal:
            paced(C_T, nv - nv0 + (32 if cfg.balk else 0), DT, cfg.Dmin, cfg.Dmax); vload(nv, 0)
        else: vload(nv, D2)
        if nv == cfg.p3: lds_signal(C_P3, VCN, VONE)
        if nv == cfg.p4 and cfg.role == 2: lds_signal(C_P4, VCN, VONE)
        nv += 1
    for name in lst(cfg.mid):
        for i in range(TN[name]): dma(name, i, D2)
    for name in lst(cfg.pre1) + lst(cfg.pre2): wait_id(max(tiles[name]))
    stamp(4, VST)
    a(f"v_and_b32 v{X_}, 7, v1\nv_lshlrev_b32 v{X_}, 3, v{X_}\nv_add_u32 v{X_}, {L_MLF}, v{X_}")
    lateq = [(name, i) for name in lst(cfg.late) for i in range(TN[name])]
    assert lateq[-4:] == [("dn", i) for i in range(4)]
    for _ in range(cfg.nmid):
        name, i = lateq.pop(0); assert name == "wo"; dma(name, i, 63)
    lds_wait(C_MLD, 1, DT, VCN)
    stamp(5, VST)
    assert not any(t in cfg.pre1 + cfg.pre2 + cfg.mid for t in ("gate", "up", "dn"))
    a(f"ds_read_b64 {vr(M_,2)}, v{X_}\ns_waitcnt lgkmcnt(0)")
    for i in range(16):
        a(f"v_sub_f32 v{T0+i}, v{T0+i}, v{M_}\nv_mul_f32 v{T0+i}, s62, v{T0+i}\nv_exp_f32 v{T0+i}, v{T0+i}")
    for i in range(16): a(f"v_mul_f32 v{T0+i}, v{T0+i}, v{L_}")
    for i in range(8): a(f"v_cvt_pk_bf16_f32 v{Q0+i}, v{T0+2*i}, v{T0+2*i+1}")
    a("s_mov_b32 s64, 0x00ff00ff\ns_mov_b32 s65, 0x00ff00ff\ns_mov_b32 s66, 0xff00ff00\ns_mov_b32 s67, 0xff00ff00")
    ACC = KV + 96
    PL = lambda G: T0 + 4 * G
    PH = lambda G: KV + 112 + 4 * G
    for G in range(4):
        b, pi = G >> 1, G & 1
        for i in range(4): a(f"v_cndmask_b32 v{(PH if pi else PL)(G)+i}, 0, v{Q0+4*b+i}, s[{64+2*pi}:{65+2*pi}]")
        for i in range(4): a(f"v_mov_b32_dpp v{(PL if pi else PH)(G)+i}, v{(PH if pi else PL)(G)+i} row_ror:8 {DPPF}")
    stage = [DT, DT + 4, Q0, Q0 + 4]
    sidx = 0
    def perm(dst, G, p, j):
        lo = vslot(8 * G + 2 * p) + (j >> 1); hi = vslot(8 * G + 2 * p + 1) + (j >> 1)
        a(f"v_perm_b32 v{dst}, v{hi}, v{lo}, s{58 + (j & 1)}")
    def pv(G, j, st):
        c = "0" if (G == 0 and j < 4) else vr(ACC + 4 * (j & 3), 4)
        a(f"v_mfma_f32_16x16x32_bf16 {vr(ACC+4*(j&3),4)}, {vr(st,4)}, {vr((PH if j >= 4 else PL)(G),4)}, {c}")
    for G in range(3):
        wait_id(vid[8 * G + 7])
        for j in range(8):
            st = stage[sidx & 3]; sidx += 1
            for p in range(4): perm(st + p, G, p, j)
            pv(G, j, st)
            if G in (1, 2) and j % 2 == 0 and nv < 32:
                if cfg.bal:
                    sk = a.newlabel("L_dv")
                    a(f"s_cbranch_vccnz {sk}\ns_waitcnt vmcnt({cfg.DV - 1})")
                    a.label(sk)
                    vload(nv, cfg.DVmax)
                else: vload(nv, cfg.DV)
                if nv == cfg.pv: lds_signal(C_P8, VCN, VONE)
                nv += 1
    lds_wait(C_ROLE, 1, DT, VCN, sleep=0)
    a("s_sub_u32 s7, s5, 1")
    a("s_mov_b32 s5, 7340032\ns_cmp_lt_u32 s7, 224\ns_cselect_b32 s5, s5, 0")
    for r in (R_G, R_U, R_DN): a(f"s_mov_b32 s{r+2}, s5")
    a("s_and_b32 s52, s7, 7\ns_lshr_b32 s53, s7, 3")
    a(f"s_lshl_b32 s5, s52, 7\ns_add_u32 s5, s5, s57\ns_mul_i32 s5, s5, 7168\ns_lshl_b32 s6, s53, 8\ns_add_u32 s{SB_GU}, s5, s6")
    a(f"s_lshl_b32 s5, s53, 7\ns_add_u32 s5, s5, s57\ns_lshl_b32 s5, s5, 11\ns_lshl_b32 s6, s52, 8\ns_add_u32 s{SB_DN}, s5, s6")
    a(f"s_add_u32 s5, s{SL4}, {L_OS}\nv_add_u32 v{VV}, s5, v{VV}")
    SG = KV + 32
    n0 = min(cfg.nl0, len(lateq) - max(4, cfg.nl2))
    for p in range(3):
        wait_id(vid[24 + 2 * p + 1])
        if cfg.pv == 32 and p == 2: lds_signal(C_P8, VCN, VONE)
        if p >= 1:
            for _ in range((n0 + 2 - p) // 2):
                name, i = lateq.pop(0); dma(name, i, 63)
        for j in range(8): perm(SG + 4 * j + p, 3, p, j)
    wait_id(vid[31])
    if cfg.pv == 33: lds_signal(C_P8, VCN, VONE)
    order = [0, 4, 1, 5, 2, 6, 3, 7]
    for k in range(10):
        if k < 8: perm(SG + 4 * order[k] + 3, 3, 3, order[k])
        if k >= 2: pv(3, order[k - 2], SG + 4 * order[k - 2])
    stamp(6, VST)
    for e in range(4): a(f"ds_write_b128 v{VV}, {vr(ACC+4*e,4)} offset:{e*1024}")
    a("s_waitcnt lgkmcnt(0)")
    stamp(7, VST)
    a("s_barrier")
    signalled.add("dn")
    n1 = len(lateq) - cfg.nl2
    for k, (name, i) in enumerate(lateq):
        if k == n1:
            wait_n(0); lds_wait(C_Y, 4, DT, VCN, sleep=cfg.ysl)
        if (name, i) == ("dn", 0) and k < n1: lds_wait(C_OR, 4, DT, VCN)
        dma(name, i, cfg.D3 if k < n1 else 63)
        if k == cfg.p5: assert k < n1; lds_signal(C_P5, VCN, VONE)
        if k == cfg.p6: lds_signal(C_P6, VCN, VONE)
        if cfg.yd >= 0 or cfg.hd: lds_signal(C_LC, VCN, VONE)
        if k == cfg.pmin: lds_signal(C_P7, VCN, VONE)
    for name in ("wo", "gate", "up"):
        if name not in signalled: wait_id(max(tiles[name]))
    a("s_waitcnt vmcnt(0)")
    if cfg.stamps == 1:
        stamp(8, VST)
        a(f"s_lshl_b32 s5, s2, 11\ns_lshl_b32 s6, s3, 7\ns_add_u32 s5, s5, s6\ns_add_u32 s5, s5, 0x8000000\nv_lshlrev_b32 v2, 2, v1")
        a(f"s_mov_b32 exec_hi, 0\nbuffer_store_dword v{VST}, v2, {sr(R_WSS,4)}, s5 offen sc1")
    a("s_endpgm")

    a.label("L_cwave")
    a("s_setprio 3")
    R_WS, R_X, R_C, R_OUT = 8, 16, 20, 24
    WV, SMY = 28, 29
    a(f"s_sub_u32 s{WV}, s3, 8\nv_subrev_u32 v0, 512, v0")
    VCN, VONE, VTR, VPUB, VACT, VA, VB, K_X, K_GA, K_GB, VST, K_C1, TAG, TB = 2, 3, 4, 5, 6, 7, 8, 9, 10, 11, 12, 13, 14, 15
    WK = 16
    ACT = WK + 8
    FWO, FG, FU, FD = 40, 72, 104, 136
    a(f"v_mov_b32 v{VCN}, {L_CNT}\nv_mov_b32 v{VONE}, 1\nv_mov_b32 v{WK}, 0")
    a(f"v_lshlrev_b32 v{WK+1}, 2, v1\nv_add_u32 v{WK+1}, {L_CNT}, v{WK+1}\nds_write_b32 v{WK+1}, v{WK}")
    for i in range(4): a(f"v_mov_b32 v{WK+4+i}, -1")
    for base in (L_HHV, L_OV, L_AT, L_AT + 320): a(f"ds_write_b32 v{WK+1}, v{WK+4} offset:{base - L_CNT}")
    a(f"s_mul_i32 s{SMY}, s2, {WS}\ns_and_b32 s30, s2, 7\ns_lshr_b32 s31, s2, 3")
    a(f"v_lshlrev_b32 v{VA}, 4, v1\nv_lshlrev_b32 v{VB}, 1, v1\nv_lshlrev_b32 v{WK+1}, 5, v1")
    a(f"s_lshl_b32 s32, s30, 7\ns_lshl_b32 s35, s{WV}, 5\ns_add_u32 s32, s32, s35")
    a(f"v_and_b32 v{WK+2}, 31, v1\nv_lshlrev_b32 v{WK+3}, 1, v{WK+2}")
    a("s_waitcnt lgkmcnt(0)")
    srd(R_WS, 104, 0x10000000); srd(R_X, 0, 2048); srd(R_C, 72, 2048); srd(R_OUT, 88, 2048)
    XR = FU
    a(f"s_mov_b32 s5, {EPOCH}\nbuffer_load_dword v{TAG}, off, {sr(R_WS,4)}, s5 sc1")
    a(f"s_lshr_b32 s5, s2, 4\ns_lshl_b32 s5, s5, 7\nbuffer_load_ushort v{WK}, v{VB}, {sr(R_C,4)}, s5 offen")
    a(f"buffer_load_dwordx4 {vr(XR,4)}, v{WK+1}, {sr(R_X,4)}, 0 offen\nbuffer_load_dwordx4 {vr(XR+4,4)}, v{WK+1}, {sr(R_X,4)}, 0 offen offset:16")
    a(f"s_lshl_b32 s5, s32, 1\nbuffer_load_ushort v{K_GA}, v{WK+3}, {sr(R_X,4)}, s5 offen")
    a(f"v_and_b32 v{K_C1}, 7, v1\nv_lshlrev_b32 v{K_C1}, 2, v{K_C1}\nv_bfe_u32 v{WK+2}, v1, 4, 1\nv_lshl_add_u32 v{K_C1}, v{WK+2}, 1, v{K_C1}\nv_lshrrev_b32 v{WK+2}, 5, v1\nv_add_lshl_u32 v{K_C1}, v{K_C1}, v{WK+2}, 1")
    a(f"s_cmp_lg_u32 s{WV}, 0\ns_cbranch_scc1 L_clr_done")
    a(f"s_mov_b32 exec_hi, 0xffff\nbuffer_store_dwordx4 {vr(WK+4,4)}, v{VA}, {sr(R_WS,4)}, s{SMY} offen sc1\ns_mov_b32 exec_hi, -1")
    a.label("L_clr_done")
    a("s_barrier")
    if cfg.stamps: a(f"v_mov_b32 v{VST}, 0\nv_writelane_b32 v{VST}, s96, 0")
    a(f"v_lshrrev_b32 v{WK+8}, 4, v1\nv_and_b32 v{WK+9}, 15, v1")
    a(f"v_lshlrev_b32 v{VPUB}, 6, v{WK+9}\nv_lshl_add_u32 v{VPUB}, v{WK+8}, 4, v{VPUB}")
    a(f"v_lshlrev_b32 v{VACT}, 4, v{WK+8}\nv_add_u32 v{VACT}, {L_MISC}, v{VACT}")
    a(f"v_bfe_u32 v{WK+10}, v1, 2, 2\nv_lshl_add_u32 v{WK+11}, v{WK+8}, 3, v{WK+10}\nv_lshlrev_b32 v{VTR}, 8, v{WK+11}")
    a(f"v_and_b32 v{WK+12}, 3, v1\nv_lshl_add_u32 v{VTR}, v{WK+12}, 3, v{VTR}")
    a(f"v_and_b32 v{WK+12}, 1, v{WK+8}\nv_lshl_add_u32 v{WK+12}, v{WK+12}, 2, v{WK+10}\ns_lshl_b32 s5, s{WV}, 1\nv_xor_b32 v{WK+12}, s5, v{WK+12}\nv_lshl_add_u32 v{VTR}, v{WK+12}, 5, v{VTR}")
    a(f"s_mov_b32 s33, {f2u(LOG2E):#x}\ns_mov_b32 s38, 0xffff0000")
    a("s_waitcnt vmcnt(0)")
    lds_signal(C_CLR, VCN, VONE)
    TB0 = 76
    a(f"v_readfirstlane_b32 s5, v{TAG}\ns_add_u32 s6, s5, 0x7f4a7c15\ns_mul_i32 s6, s6, 0x9e3779b1\ns_lshr_b32 s7, s6, 15\ns_xor_b32 s6, s6, s7")
    a("s_mul_i32 s6, s6, 0x85ebca6b\ns_lshr_b32 s7, s6, 13\ns_xor_b32 s6, s6, s7\ns_mul_i32 s6, s6, 0xc2b2ae35\ns_lshr_b32 s7, s6, 16\ns_xor_b32 s6, s6, s7")
    for k in range(4):
        a(f"s_and_b32 s7, s6, {0xff << (8*k):#x}\ns_cselect_b32 s7, 0, {0x5b << (8*k):#x}\ns_or_b32 s6, s6, s7")
    a("s_xor_b32 s5, s5, s6")
    for k in range(4): a(f"s_bfe_u32 s{TB0+k}, s5, {(8 << 16) | (8*k):#x}")
    a(f"v_mov_b32 v{TAG}, s5")
    stamp(1, VST)
    c_ = WK
    lo2 = LOG2E - struct.unpack("<f", struct.pack("<f", LOG2E))[0]
    a(f"v_lshlrev_b32 v{c_}, 16, v{c_}")
    a(f"v_max_f32 v{WK+13}, {f2u(-87.0):#x}, v{c_}\nv_min_f32 v{WK+13}, {f2u(100.0):#x}, v{WK+13}")
    a(f"v_mul_f32 v{WK+1}, s33, v{WK+13}\nv_fma_f32 v{WK+2}, v{WK+13}, s33, -v{WK+1}\nv_mov_b32 v{WK+3}, {f2u(lo2):#x}\nv_fmac_f32 v{WK+2}, v{WK+13}, v{WK+3}")
    a(f"v_exp_f32 v{WK+1}, -v{WK+1}\nv_mul_f32 v{WK+2}, {f2u(-0.6931471805599453):#x}, v{WK+2}")
    a(f"v_fma_f32 v{WK+1}, v{WK+1}, v{WK+2}, v{WK+1}\nv_add_f32 v{WK+1}, 1.0, v{WK+1}")
    a(f"v_rcp_f32 v{WK+2}, v{WK+1}\nv_mul_f32 v{WK+3}, v{c_}, v{WK+2}\nv_fma_f32 v{WK+13}, -v{WK+3}, v{WK+1}, v{c_}\nv_fmac_f32 v{WK+3}, v{WK+13}, v{WK+2}")
    rnd(WK + 3, WK + 3)
    a(f"s_lshl_b32 s5, s{WV}, 7\ns_add_u32 s6, s5, {L_SIL}\nv_add_u32 v{WK+1}, s6, v{VB}\nds_write_b16_d16_hi v{WK+1}, v{WK+3}")
    a(f"v_add_u32 v{WK+1}, s5, v{VACT}\ns_waitcnt lgkmcnt(0)\nds_read_b128 {vr(ACT,4)}, v{WK+1} offset:{L_SIL-L_MISC}\nds_read_b128 {vr(ACT+4,4)}, v{WK+1} offset:{L_SIL-L_MISC+64}")

    def den_from_var(v, rden):
        rnd(v, v); a(f"v_add_f32 v{v}, {f2u(1e-5):#x}, v{v}"); rnd(v, v)
        a(f"v_sqrt_f32 v{v}, v{v}"); rnd(v, v)
        a(f"v_rcp_f32 v{rden}, v{v}")
    def ln_stats(X, mean_b, rden, t0):
        p1, p2, u1 = t0, t0 + 2, t0 + 4
        a(f"v_readfirstlane_b32 s36, v{X}\ns_mov_b32 s37, s36")
        for i in range(0, 16, 2): a(f"v_pk_add_f32 {vr(X+i,2)}, {vr(X+i,2)}, s[36:37] neg_lo:[0,1] neg_hi:[0,1]")
        a(f"v_pk_mul_f32 {vr(p2,2)}, {vr(X,2)}, {vr(X,2)}\nv_pk_add_f32 {vr(p1,2)}, {vr(X,2)}, {vr(X+2,2)}")
        a(f"v_pk_fma_f32 {vr(p2,2)}, {vr(X+2,2)}, {vr(X+2,2)}, {vr(p2,2)}")
        for i in range(4, 16, 2):
            a(f"v_pk_add_f32 {vr(p1,2)}, {vr(p1,2)}, {vr(X+i,2)}\nv_pk_fma_f32 {vr(p2,2)}, {vr(X+i,2)}, {vr(X+i,2)}, {vr(p2,2)}")
        a(f"v_add_f32 v{p1}, v{p1}, v{p1+1}\nv_add_f32 v{p2}, v{p2}, v{p2+1}")
        a(f"v_permlane32_swap_b32 v{p1}, v{p2}\nv_add_f32 v{p1}, v{p1}, v{p2}")
        xreduce("v_add_f32", p1, u1, (16, 8, 4, 2, 1))
        a(f"v_mul_f32 v{p1}, {f2u(1.0/1024):#x}, v{p1}\nv_mov_b32 v{p2}, v{p1}\nv_permlane32_swap_b32 v{p1}, v{p2}")
        a(f"v_fma_f32 v{p2}, -v{p1}, v{p1}, v{p2}\nv_add_f32 v{p1}, s36, v{p1}\nv_max_f32 v{p2}, 0, v{p2}")
        rnd(mean_b, p1); den_from_var(p2, rden)
    XU = XR + 8
    for i in range(8):
        a(f"v_lshlrev_b32 v{XU+2*i}, 16, v{XR+i}\nv_and_b32 v{XU+2*i+1}, 0xffff0000, v{XR+i}")
    ln_stats(XU, WK, WK + 1, WK + 2)
    LN1 = K_GA
    a(f"v_lshlrev_b32 v{LN1}, 16, v{LN1}")
    a(f"v_sub_f32 v{LN1}, v{LN1}, v{WK}"); rnd(LN1, LN1); a(f"v_mul_f32 v{LN1}, v{LN1}, v{WK+1}"); rnd(LN1, LN1)
    lds_wait(C_CLR, 4, WK + 1, VCN, sleep=0)

    if cfg.elocal:
        a(f"s_getreg_b32 s14, hwreg(HW_REG_XCC_ID)\ns_cmp_lg_u32 s{WV}, 1\ns_cbranch_scc1 L_xc_done")
        a(f"v_mov_b32 v{WK}, s14\nv_mov_b32 v{WK+1}, v{TAG}\ns_add_u32 s5, s{SMY}, {XCP}\ns_mov_b64 exec, 1\nbuffer_store_dwordx2 {vr(WK,2)}, off, {sr(R_WS,4)}, s5 sc1\ns_mov_b64 exec, -1")
        a.label("L_xc_done")
    def tr_read(dst, vaddr, nkk, rs, base=0):
        for kk in range(nkk):
            for q in range(2):
                a(f"ds_read_b64_tr_b16 {vr(dst + kk*4 + 2*q, 2)}, v{vaddr} offset:{base + (32 * kk + 4 * q) * rs}")
    def tr_tile(dst, base, nkk, t0):
        a(f"v_add_u32 v{t0}, {base}, v{VTR}\nv_xor_b32 v{t0+1}, 32, v{t0}")
        tr_read(dst, t0, nkk, 256); tr_read(dst + 4 * nkk, t0 + 1, nkk, 256)
    MASKC = [0x0001000100010001 << i for i in range(4)]
    def mfma(d, x, y, first): a(f"v_mfma_f32_16x16x32_bf16 {vr(d,4)}, {vr(x,4)}, {vr(y,4)}, {'0' if first else vr(d,4)}")
    BT = WK + 7
    def tagit(d, s, k): a(f"v_and_or_b32 v{d}, v{s}, v{BT}, s{TB0+k}")
    def gemv_pub(frs, nkk, dacc, out, off, tagged=True):
        n = len(frs)
        a(f"s_mul_i32 s5, s{WV}, {n*64}\ns_add_u32 s5, s5, s{SMY}\ns_add_u32 s5, s5, {off}")
        def fin(cg):
            setexec(MASKC[cg])
            for i in range(4):
                if tagged: tagit(out + i, dacc + 4 * cg + i, i)
                else: a(f"v_mov_b32 v{out+i}, v{dacc+4*cg+i}")
        lag = 2 if nkk == 2 else 1
        for cg in range(n + lag):
            if cg < n:
                if cg > lag: a("s_mov_b64 exec, -1")
                for kk in range(nkk): mfma(dacc + 4 * cg, frs[cg] + 4 * kk, ACT + 4 * kk, kk == 0)
            if cg >= lag: fin(cg - lag)
        setexec(sum(MASKC[:n]))
        a(f"buffer_store_dwordx4 {vr(out,4)}, v{VPUB}, {sr(R_WS,4)}, s5 offen sc1\ns_mov_b64 exec, -1")
    deferred = []
    def gather(loads, t0, kind="sent", tags=None, masked=True, between=None, acc=None):
        L = a.newlabel("L_g"); Ld = a.newlabel("L_gd"); Lc = a.newlabel("L_gc")
        PM = 40
        def ld(dst, wd, va, so):
            if so: a(f"s_mov_b32 s5, {so}")
            a(f"buffer_load_dword{'' if wd == 1 else 'x'+str(wd)} {vr(dst,wd)}, v{va}, {sr(R_WS,4)}, {'s5' if so else '0'} offen sc1")
        op3, op2 = ("v_max3_u32", "v_max_u32") if kind == "sent" else ("v_or3_b32", "v_or_b32")
        def tree(regs_):
            if len(regs_) == 1: return regs_[0]
            if len(regs_) == 2: a(f"{op2} v{t0}, v{regs_[0]}, v{regs_[1]}"); return t0
            a(f"{op3} v{t0}, v{regs_[0]}, v{regs_[1]}, v{regs_[2]}")
            rest = regs_[3:]
            while rest:
                if len(rest) >= 2: a(f"{op3} v{t0}, v{t0}, v{rest[0]}, v{rest[1]}"); rest = rest[2:]
                else: a(f"{op2} v{t0}, v{t0}, v{rest[0]}"); rest = []
            return t0
        def test(dst_s, r_):
            if kind == "sent": a(f"v_cmp_eq_u32 {dst_s}, -1, v{r_}")
            else: a(f"v_and_b32 v{t0}, 0xff, v{r_}\nv_cmp_ne_u32 {dst_s}, 0, v{t0}")
        def untag(dst, wd):
            for x in range(dst, dst + wd): a(f"v_xor_b32 v{x}, s{TB0 + x - dst}, v{x}")
        def accum(i):
            if acc is None or i == 0: return
            x = loads[0][0] if i == 1 else acc
            for h in (2, 0): a(f"v_pk_add_f32 {vr(acc+h,2)}, {vr(x+h,2)}, {vr(loads[i][0]+h,2)}")
        if not masked: a.label(L)
        for (dst, wd, va, so, em) in loads:
            if em is not None: setexec(em)
            ld(dst, wd, va, so)
            if em is not None: a("s_mov_b64 exec, -1")
        if between: between()
        if not masked: budget_check()
        if kind == "tag":
            a(f"s_waitcnt vmcnt(0)\ns_branch {Lc}")
        else:
            for i, (dst, wd, va, so, em) in enumerate(loads):
                a(f"s_waitcnt vmcnt({len(loads)-1-i})")
                if kind == "byte":
                    if em is not None: setexec(em)
                    untag(dst, wd)
                    if em is not None: a("s_mov_b64 exec, -1")
                r_ = tree(([t0] if i else []) + list(range(dst, dst + wd)))
                assert r_ == t0
                if i < len(loads) - 1: accum(i)
            test("vcc", t0)
            accum(len(loads) - 1)
            a(f"s_cbranch_vccnz {Lc if masked else L}")
            if not masked: return
        a.label(Ld)
        def retry():
            a.label(L)
            budget_check()
            for i, (dst, wd, va, so, em) in enumerate(loads):
                sk = a.newlabel("L_gs")
                a(f"s_mov_b64 exec, {sr(PM+2*i,2)}\ns_cbranch_execz {sk}")
                ld(dst, wd, va, so)
                a.label(sk)
            a("s_waitcnt vmcnt(0)")
            if kind == "byte":
                for i, (dst, wd, va, so, em) in enumerate(loads):
                    a(f"s_mov_b64 exec, {sr(PM+2*i,2)}"); untag(dst, wd)
            a("s_mov_b64 exec, -1")
            a.label(Lc)
            for i, (dst, wd, va, so, em) in enumerate(loads):
                if kind == "tag": a(f"v_cmp_ne_u32 {sr(PM+2*i,2)}, v{tags[i]}, v{TAG}")
                else: test(sr(PM + 2 * i, 2), tree(list(range(dst, dst + wd))))
            a(f"s_mov_b64 s[6:7], {sr(PM,2)}")
            for i in range(1, len(loads)): a(f"s_or_b64 s[6:7], s[6:7], {sr(PM+2*i,2)}")
            a(f"s_cmp_lg_u64 s[6:7], 0\ns_cbranch_scc1 {L}")
            for i in range(len(loads)): accum(i)
            a(f"s_nop 1\ns_branch {Ld}")
        deferred.append(retry)
    def tree_sum(base, n, stride=1):
        idx = [base + i * stride for i in range(n)]
        while len(idx) > 1:
            nx = []
            for i in range(0, len(idx) - 1, 2):
                a(f"v_add_f32 v{idx[i]}, v{idx[i]}, v{idx[i+1]}"); nx.append(idx[i])
            if len(idx) & 1: nx.append(idx[-1])
            idx = nx
    def pk_sum4(base, n):
        idx = [base + 4 * i for i in range(n)]
        while len(idx) > 1:
            nx = []
            for i in range(0, len(idx) - 1, 2):
                for h in (0, 2): a(f"v_pk_add_f32 {vr(idx[i]+h,2)}, {vr(idx[i]+h,2)}, {vr(idx[i+1]+h,2)}")
                nx.append(idx[i])
            if len(idx) & 1: nx.append(idx[-1])
            idx = nx
    def col_reduce(b):
        a(f"v_permlane32_swap_b32 v{b}, v{b+1}\nv_permlane32_swap_b32 v{b+2}, v{b+3}\nv_add_f32 v{b}, v{b}, v{b+1}\nv_add_f32 v{b+2}, v{b+2}, v{b+3}")
        a(f"v_permlane16_swap_b32 v{b}, v{b+2}\nv_add_f32 v{b}, v{b}, v{b+2}\nv_add_f32_dpp v{b}, v{b}, v{b} row_ror:8 {DPPF}")
    VCHK = 0
    def xch_read(lbase, nkk, t0, vact, two=False):
        L = a.newlabel("L_x"); Ld = a.newlabel("L_xd")
        a.label(L)
        a(f"ds_read_b32 v{t0}, v{VCHK} offset:{lbase - L_MISC}")
        if two: a(f"ds_read_b32 v{t0+1}, v{VCHK} offset:{lbase - L_MISC + 320}")
        for kk in range(nkk): a(f"ds_read_b128 {vr(ACT+4*kk,4)}, v{vact} offset:{lbase - L_MISC + kk*64}")
        a(f"s_waitcnt lgkmcnt({nkk})")
        if two: a(f"v_pk_max_u16 v{t0}, v{t0}, v{t0+1}")
        a(f"v_cmp_eq_u16 vcc, -1, v{t0}\nv_cmp_le_u32 s[6:7], s38, v{t0}\ns_or_b64 s[6:7], s[6:7], vcc")
        if nkk == 2: a("s_cmp_lg_u32 s6, 0")
        a(f"s_cbranch_scc0 {Ld}")
        budget_check()
        a(f"s_branch {L}")
        a.label(Ld)
        a("s_waitcnt lgkmcnt(0)")

    def bal_run(limit):
        Lb = a.newlabel("L_bal"); Le = a.newlabel("L_bale")
        a(f"s_cmp_lg_u32 s{WV}, 3\ns_cbranch_scc1 {Le}")
        h = FWO
        a(f"s_mul_i32 s36, s30, {WS}\ns_add_u32 s36, s36, {BRD}\ns_lshr_b32 s37, s2, 3\ns_lshl_b32 s37, s37, 2\ns_add_u32 s37, s37, s36")
        a(f"v_lshlrev_b32 v{h}, 2, v1\nv_lshlrev_b32 v{h+1}, 10, v{TAG}")
        a.label(Lb)
        a(f"ds_read_b32 v{h+2}, v{VCN} offset:{C_T*4}\ns_waitcnt lgkmcnt(0)\nv_readfirstlane_b32 s41, v{h+2}\ns_sub_u32 s41, s41, s39")
        a(f"v_or_b32 v{h+2}, s41, v{h+1}\ns_mov_b64 exec, 1\nbuffer_store_dword v{h+2}, off, {sr(R_WS,4)}, s37")
        a(f"s_mov_b64 exec, -1\ns_cmp_ge_u32 s41, {limit}\ns_cbranch_scc1 {Le}")
        a(f"s_mov_b32 exec_hi, 0\nbuffer_load_dword v{h+3}, v{h}, {sr(R_WS,4)}, s36 offen sc1\ns_mov_b64 exec, -1")
        budget_check()
        a(f"s_waitcnt vmcnt(0)\nv_xor_b32 v{h+3}, v{h+3}, v{h+1}\nv_cmp_gt_u32 vcc, 1024, v{h+3}\nv_cndmask_b32 v{h+3}, 0, v{h+3}, vcc")
        xreduce("v_add_u32", h + 3, h + 4, (1, 2, 4, 8, 16))
        a(f"v_readfirstlane_b32 s42, v{h+3}\ns_lshr_b32 s42, s42, 5\ns_sub_u32 s42, s42, s41\ns_sub_u32 s43, s42, s39\ns_mov_b32 s39, s42")
        a(f"v_mov_b32 v{h+2}, s43\ns_mov_b64 exec, 1\nds_add_u32 v{VCN}, v{h+2} offset:{C_T*4}\ns_mov_b64 exec, -1\ns_branch {Lb}")
        a.label(Le)
    a("s_mov_b32 s39, 0")
    def mod_tile(t, cnt):
        lds_wait(cnt, 8, WK, VCN)
        tr_tile(FU, L_MOD + t * 16384, 2, WK + 4)
        a("s_waitcnt lgkmcnt(0)")
        if t:
            gemv_pub([FU, FU + 8], 2, FU + 16, FU + 24, MODP + (t - 1) * 512)
            return
        for cg in range(2):
            for kk in range(2): mfma(WK + 4 * cg, FU + 8 * cg + 4 * kk, ACT + 4 * kk, kk == 0)
        o = FU + 16
        a(f"v_mov_b32 v{o+1}, v{TAG}\nv_mov_b32 v{o+3}, v{TAG}")
        a(f"v_and_b32 v{o+4}, 2, v1\nv_lshlrev_b32 v{o+4}, 6, v{o+4}\nv_and_b32 v{o+5}, 48, v1\nv_lshl_add_u32 v{o+4}, v{o+5}, 1, v{o+4}\nv_and_b32 v{o+5}, 1, v1\nv_lshl_add_u32 v{o+4}, v{o+5}, 4, v{o+4}")
        for c in range(4):
            setexec(MASKC[c]); a(f"v_mov_b32 v{o}, v{WK+2*c}\nv_mov_b32 v{o+2}, v{WK+2*c+1}")
        setexec(sum(MASKC))
        a(f"s_lshl_b32 s5, s{WV}, 8\ns_add_u32 s5, s5, s{SMY}\ns_add_u32 s5, s5, {HP}")
        a(f"buffer_store_dwordx4 {vr(o,4)}, v{o+4}, {sr(R_WS,4)}, s5 offen sc1\ns_mov_b64 exec, -1")
    mod_tile(0, C_CRIT)
    a(f"v_mov_b32 v{BT}, 0xffffff00")
    stamp(2, VST)
    a(f"s_mul_i32 s5, s30, {WS}\ns_lshl_b32 s7, s{WV}, 8\ns_add_u32 s5, s5, s7\ns_add_u32 s5, s5, {HP}")
    a(f"v_lshrrev_b32 v{WK}, 5, v1\nv_mul_u32_u24 v{VA}, {8*WS}, v{WK}\nv_and_b32 v{WK}, 31, v1\nv_lshl_add_u32 v{VA}, v{WK}, 3, v{VA}\nv_add_u32 v{VA}, s5, v{VA}")
    a(f"s_and_b32 s5, s2, 3\ns_lshl_b32 s5, s5, 6\ns_lshl_b32 s6, s{WV}, 4\ns_add_u32 s5, s5, s6\nv_and_b32 v{WK}, 15, v1\nv_add_u32 v{WK}, s5, v{WK}")
    a(f"v_mul_u32_u24 v{TB}, {WS}, v{WK}\nv_add_u32 v{TB}, {HP + 4}, v{TB}")
    lds_wait(C_WQ, 8, WK + 4, VCN)
    tr_tile(FD, L_WQ, 4, WK + 4)
    mod_tile(1, C_MOD1)
    mod_tile(2, C_MOD2)
    stamp(3, VST)
    if cfg.balk: bal_run(8 * (cfg.p1 - cfg.hl))
    lds_wait(C_P1, 8, WK + 4, VCN)
    stamp(4, VST)
    gather([(FU + 2 * i, 2, VA, i * 16 * WS, None) for i in range(16)] + [(WK + 1, 1, TB, 0, None)], WK, kind="tag",
           tags=[FU + 2 * i + 1 for i in range(16)] + [WK + 1])
    stamp(5, VST)
    tree_sum(FU, 16, 2); rnd(FU + 1, FU); rnd(FU, FU)
    a(f"v_permlane32_swap_b32 v{FU}, v{FU+1}\nv_add_f32 v{FU+1}, 1.0, v{FU+1}"); rnd(FU + 1, FU + 1)
    a(f"v_mul_f32 v{LN1}, v{LN1}, v{FU+1}"); rnd(LN1, LN1); a(f"v_add_f32 v{LN1}, v{LN1}, v{FU}"); rnd(LN1, LN1)
    a(f"v_and_b32 v{VB}, 31, v1\nv_lshlrev_b32 v{VB}, 1, v{VB}\ns_lshl_b32 s5, s{WV}, 6\ns_add_u32 s5, s5, {L_MISC}\nv_add_u32 v{VB}, s5, v{VB}")
    a(f"ds_write_b16_d16_hi v{VB}, v{LN1} offset:{L_HV - L_MISC}\ns_waitcnt lgkmcnt(0)")
    lds_signal(C_H, VCN, VONE)
    lds_wait(C_H, 4, WK, VCN, sleep=0)
    for kk in range(4): a(f"ds_read_b128 {vr(ACT+4*kk,4)}, v{VACT} offset:{L_HV - L_MISC + kk*64}")
    a("s_waitcnt lgkmcnt(0)")
    gemv_pub([FD, FD + 16], 4, FU, FU + 8, QP, tagged=False)
    stamp(6, VST)
    a(f"s_and_b32 s5, s2, 3\ns_lshl_b32 s5, s5, 3\nv_lshrrev_b32 v{WK+4}, 5, v0\nv_add_u32 v{WK+4}, s5, v{WK+4}\nv_mul_u32_u24 v{VA}, {8*WS}, v{WK+4}")
    a(f"v_and_b32 v{WK+4}, 31, v0\nv_lshl_add_u32 v{VA}, v{WK+4}, 4, v{VA}")
    a(f"v_lshlrev_b32 v{WK+2}, 3, v0\nv_add_u32 v{WK+2}, {L_QV}, v{WK+2}")
    if cfg.balk: bal_run(8 * (cfg.p2 - cfg.hl))
    lds_wait(C_P2, 8, WK + 4, VCN)
    stamp(20, VST)
    gather([(FG + 4 * i, 4, VA, QP + i * WS, None) for i in range(8)], WK)
    stamp(7, VST)
    pk_sum4(FG, 8)
    a(f"v_cvt_pk_bf16_f32 v{WK}, v{FG}, v{FG+1}\nv_cvt_pk_bf16_f32 v{WK+1}, v{FG+2}, v{FG+3}")
    a(f"ds_write_b64 v{WK+2}, {vr(WK,2)}\ns_waitcnt lgkmcnt(0)")
    lds_signal(C_Q, VCN, VONE)
    a(f"s_add_u32 s5, s2, s{WV}\ns_cmp_lg_u32 s5, 0\ns_cbranch_scc1 L_ep_done")
    a(f"s_mov_b32 s5, {EPOCH}\ns_mov_b64 exec, 1\nbuffer_store_dword v{TAG}, off, {sr(R_WS,4)}, s5 sc1\ns_mov_b64 exec, -1")
    a.label("L_ep_done")
    ROLE, RBF, SFY, VAW = 31, 12, 13, WK + 6
    def role_make():
        a(f"s_cmp_lg_u32 s{WV}, 1\ns_cbranch_scc1 L_role_done")
        if cfg.role == 2:
            lds_wait(C_P4, 8, WK, VCN, sleep=2)
            a(f"s_mul_i32 s5, s30, {WS}\ns_add_u32 s5, s5, {TKT}\nv_mov_b32 v{WK}, 1\ns_mov_b64 exec, 1")
            a(f"buffer_atomic_add v{WK}, off, {sr(R_WS,4)}, s5 sc0 sc1\ns_waitcnt vmcnt(0)\nv_readfirstlane_b32 s36, v{WK}\ns_add_u32 s36, s36, 1")
        if cfg.role == 0: a("s_mov_b32 s5, s2")
        else:
            if cfg.role == 1: a("s_lshr_b32 s36, s2, 3")
            a("s_lshr_b32 s6, s36, 3\ns_mul_i32 s5, s30, 3\ns_add_u32 s5, s5, s6\ns_add_u32 s7, s30, 24\ns_cmp_lt_u32 s6, 3\ns_cselect_b32 s5, s5, s7")
            a("s_cmp_lt_u32 s6, 4\ns_cselect_b32 s5, s5, 28\ns_lshl_b32 s5, s5, 3\ns_and_b32 s6, s36, 7\ns_add_u32 s5, s5, s6")
        a(f"s_add_u32 s5, s5, 1\nv_mov_b32 v{WK}, s5\ns_mov_b64 exec, 1\nds_write_b32 v{VCN}, v{WK} offset:{C_ROLE*4}\ns_mov_b64 exec, -1")
        a.label("L_role_done")
    def rest_mod():
        lds_wait(C_ROLE, 1, WK, VCN, sleep=2)
        a(f"s_sub_u32 s{ROLE}, s5, 1")
        a(f"s_and_b32 s{RBF}, s{ROLE}, 7\ns_mul_i32 s{SFY}, s{ROLE}, {WS}\ns_lshl_b32 s32, s{RBF}, 7\ns_lshl_b32 s5, s{WV}, 5\ns_add_u32 s32, s32, s5")
        a(f"s_lshl_b32 s5, s32, 1\nbuffer_load_ushort v{K_X}, v{K_C1}, {sr(R_X,4)}, s5 offen")
        a(f"v_lshrrev_b32 v{WK}, 3, v1\nv_mul_u32_u24 v{WK+1}, {WS}, v{WK}\nv_and_b32 v{WK+2}, 7, v1\nv_lshlrev_b32 v{WK+2}, 4, v{WK+2}")
        a(f"s_mul_i32 s34, s{RBF}, {WS}\ns_lshl_b32 s6, s{WV}, 7\ns_add_u32 s34, s34, s6")
        a(f"s_lshl_b32 s5, s32, 4\nv_lshl_add_u32 v{VA}, v{K_C1}, 3, s5")
        gather([(FG, 4, VA, MODF, None)], WK, kind="byte")
        a(f"v_and_b32 v{WK+3}, 8, v1\nv_mul_u32_u24 v{WK+3}, 40, v{WK+3}\ns_lshl_b32 s5, s{WV}, 6\ns_add_u32 s5, s5, {L_AT}\nv_add3_u32 v{VAW}, v{WK+3}, v{K_C1}, s5")
        a(f"v_mov_b32 v{TB}, v{K_C1}")
        a(f"v_mov_b32 v{K_GA}, v{FG}\nv_mov_b32 v{K_GB}, v{FG+3}\nv_add_f32 v{K_C1}, 1.0, v{FG+2}"); rnd(K_C1, K_C1)
        a(f"v_mov_b32_dpp v{FG+1}, v{K_C1} quad_perm:[0,1,2,3] row_mask:0xf bank_mask:0x3")
        a(f"ds_write_b16_d16_hi v{VAW}, v{FG+1} offset:640")
        stamp(8, VST)
        a(f"v_lshlrev_b32 v{K_X}, 16, v{K_X}")
    if cfg.elocal:
        assert cfg.role in (1, 2)
        a(f"v_and_b32 v{WK+3}, 31, v1\nv_lshl_add_u32 v{WK+3}, v{WK+3}, 3, s30\nv_mul_u32_u24 v{WK+3}, {WS}, v{WK+3}")
        gather([(FG, 2, WK + 3, XCP, None)], WK, kind="tag", tags=[FG + 1])
        a(f"v_cmp_ne_u32 vcc, s14, v{FG}\ns_cmp_eq_u64 vcc, 0\ns_cselect_b32 s15, 1, 0")
    role_make()
    a(f"s_cmp_lg_u32 s{WV}, 2\ns_cbranch_scc1 L_modf_done")
    a(f"v_lshrrev_b32 v{WK}, 2, v1\nv_lshlrev_b32 v{WK}, 4, v{WK}\nv_and_b32 v{WK+1}, 1, v1\nv_lshl_add_u32 v{WK}, v{WK+1}, 3, v{WK}\nv_add_u32 v{WK}, s30, v{WK}\nv_mul_u32_u24 v{VA}, {WS}, v{WK}")
    a(f"v_and_b32 v{WK+1}, 2, v1\nv_lshl_add_u32 v{VA}, v{WK+1}, 8, v{VA}\ns_lshr_b32 s36, s2, 3\ns_lshl_b32 s5, s36, 4\nv_add_u32 v{VA}, s5, v{VA}")
    gather([(FG, 4, VA, MODP, None)], WK, kind="byte")
    col_reduce(FG)
    a(f"v_add_f32_dpp v{FG}, v{FG}, v{FG} row_ror:4 {DPPF}"); rnd(FG, FG)
    for k in range(4): a(f"v_mov_b32_dpp v{FG+4+k}, v{FG} quad_perm:[{k},{k},{k},{k}] {DPPF}")
    for k in range(4): tagit(FG + 4 + k, FG + 4 + k, k)
    a(f"v_lshlrev_b32 v{WK}, 3, v{K_C1}\ns_lshl_b32 s5, s30, 11\ns_lshl_b32 s6, s36, 6\ns_add_u32 s5, s5, s6\ns_add_u32 s5, s5, {MODF}")
    setexec(MASKC[0])
    a(f"buffer_store_dwordx4 {vr(FG+4,4)}, v{WK}, {sr(R_WS,4)}, s5 offen sc1\ns_mov_b64 exec, -1")
    a.label("L_modf_done")
    a(f"s_cmp_lg_u32 s{WV}, 0\ns_cbranch_scc1 L_ml_pub")
    lds_wait(C_ML, 8, WK, VCN, sleep=2)
    stamp(9, VST)
    a(f"v_lshlrev_b32 v{WK+2}, 3, v1\nv_add_u32 v{WK+3}, {L_MLW}, v{WK+2}\nds_read_b64 {vr(WK,2)}, v{WK+3}\ns_waitcnt lgkmcnt(0)")
    a(f"v_mov_b32 v{WK+4}, v{WK}")
    xreduce("v_max_f32", WK + 4, WK + 6, (8, 16, 32))
    a(f"v_sub_f32 v{WK}, v{WK}, v{WK+4}\nv_mul_f32 v{WK}, s33, v{WK}\nv_exp_f32 v{WK}, v{WK}\nv_mul_f32 v{WK+5}, v{WK}, v{WK+1}")
    xreduce("v_add_f32", WK + 5, WK + 6, (8, 16, 32))
    a(f"s_add_u32 s5, s{SMY}, {MLP}\ns_mov_b64 exec, 0xff\nbuffer_store_dwordx2 {vr(WK+4,2)}, v{WK+2}, {sr(R_WS,4)}, s5 offen sc1\ns_mov_b64 exec, -1")
    a.label("L_ml_pub")
    a(f"s_cmp_lg_u32 s{WV}, 0\ns_cbranch_scc1 L_ml_done")
    a(f"v_lshrrev_b32 v{WK}, 3, v1\nv_lshlrev_b32 v{WK}, 2, v{WK}\ns_and_b32 s5, s2, 3\nv_add_u32 v{WK}, s5, v{WK}\nv_mul_u32_u24 v{VA}, {WS}, v{WK}")
    a(f"v_and_b32 v{WK}, 7, v1\nv_lshl_add_u32 v{VA}, v{WK}, 3, v{VA}")
    lds_wait(C_P3, 8, WK, VCN)
    stamp(21, VST)
    gather([(FU + 2 * i, 2, VA, MLP + i * 32 * WS, None) for i in range(8)], WK)
    m_, r_, t_ = FU + 16, FU + 17, FU + 18
    a(f"v_max3_f32 v{m_}, v{FU}, v{FU+2}, v{FU+4}\nv_max3_f32 v{m_}, v{m_}, v{FU+6}, v{FU+8}\nv_max3_f32 v{m_}, v{m_}, v{FU+10}, v{FU+12}\nv_max_f32 v{m_}, v{m_}, v{FU+14}")
    xreduce("v_max_f32", m_, t_, (8, 16, 32))
    for i in range(8):
        a(f"v_sub_f32 v{FU+2*i}, v{FU+2*i}, v{m_}\nv_mul_f32 v{FU+2*i}, s33, v{FU+2*i}\nv_exp_f32 v{FU+2*i}, v{FU+2*i}")
    for i in range(8): a(f"v_mul_f32 v{FU+2*i}, v{FU+2*i}, v{FU+2*i+1}")
    tree_sum(FU, 8, 2)
    xreduce("v_add_f32", FU, t_, (8, 16, 32))
    a(f"v_rcp_f32 v{r_}, v{FU}")
    a(f"v_lshlrev_b32 v{t_}, 3, v1\nv_add_u32 v{t_}, {L_MLF}, v{t_}\ns_mov_b64 exec, 0xff\nds_write_b64 v{t_}, {vr(m_,2)}\ns_waitcnt lgkmcnt(0)")
    lds_signal(C_MLD, VCN, VONE)
    stamp(10, VST)
    a.label("L_ml_done")
    if cfg.bal >= 2: bal_run(8 * (24 - cfg.D2 - cfg.nq2 + (32 if cfg.balk else 0)))
    lds_wait(C_P3, 8, WK, VCN, sleep=4)
    rest_mod()
    late = lst(cfg.late)
    def ffn_frags(name, t0):
        base, dst, cnt = {"wo": (L_WO, FWO, C_WO), "gate": (L_GATE, FG, C_GATE), "up": (L_UP, FU, C_UP), "dn": (L_DN, FD, None)}[name]
        if cnt is not None: lds_wait(cnt, 8, t0, VCN, sleep=0 if name in late else 2)
        tr_tile(dst, base, 4, t0)
    if "wo" not in late: ffn_frags("wo", WK + 3)
    for name in ("gate", "up"):
        if name not in late: ffn_frags(name, WK + 3)
    A_OS, A_OG, A_XW = ACT + 8, ACT + 9, ACT + 10
    A_A = WK + 5
    assert all(t in late for t in ("gate", "up"))
    a(f"s_lshr_b32 s5, s2, 6\ns_mul_i32 s5, s5, {WS}\ns_lshl_b32 s6, s30, 9\ns_add_u32 s5, s5, s6\ns_lshl_b32 s7, s{WV}, 7\ns_add_u32 s5, s5, s7")
    a(f"v_lshl_add_u32 v{A_A}, v{WK+1}, 2, v{WK+2}\nv_add_u32 v{A_A}, s5, v{A_A}")
    a(f"s_mul_i32 s5, s{RBF}, {8*WS}\ns_add_u32 s5, s5, s7\nv_add3_u32 v{VA}, v{WK+1}, v{WK+2}, s5")
    a(f"v_lshl_add_u32 v{WK+1}, v{WK+1}, 3, v{WK+2}\nv_add_u32 v{WK+1}, s34, v{WK+1}")
    a(f"s_and_b32 s5, s{ROLE}, 0xf8\ns_mul_i32 s5, s5, {WS}\ns_lshl_b32 s6, s{WV}, 8\ns_add_u32 s5, s5, s6\nv_lshrrev_b32 v{WK}, 4, v1\nv_mul_u32_u24 v{WK}, {WS}, v{WK}")
    a(f"v_and_b32 v{WK+2}, 15, v1\nv_lshlrev_b32 v{WK+2}, 4, v{WK+2}\nv_add3_u32 v{WK+2}, v{WK}, v{WK+2}, s5")
    A_Y, A_Z, A_E = VA, WK + 1, WK + 2
    a(f"v_lshrrev_b32 v{WK}, 4, v1\nv_and_b32 v{WK+3}, 15, v1\nv_lshlrev_b32 v{A_OS}, 10, v{WK}\nv_lshl_add_u32 v{A_OS}, v{WK+3}, 4, v{A_OS}")
    a(f"s_lshl_b32 s5, s{WV}, 8\ns_add_u32 s5, s5, {L_OS}\nv_add_u32 v{A_OS}, s5, v{A_OS}")
    a(f"v_and_b32 v{A_OG}, 7, v1\nv_lshlrev_b32 v{A_OG}, 9, v{A_OG}\nv_lshl_add_u32 v{A_OG}, v{WK}, 4, v{A_OG}\nv_and_b32 v{WK+3}, 8, v1\nv_lshl_add_u32 v{A_OG}, v{WK+3}, 3, v{A_OG}")
    a(f"s_lshl_b32 s37, s{WV}, 7\ns_add_u32 s37, s37, s{SMY}\ns_add_u32 s37, s37, {OP}")
    a(f"v_and_b32 v{WK+3}, 7, v1\nv_bfe_u32 v{WK+4}, v1, 4, 1\nv_lshl_add_u32 v{WK+3}, v{WK+4}, 4, v{WK+3}\nv_lshrrev_b32 v{WK+4}, 5, v1\nv_lshl_add_u32 v{WK+3}, v{WK+4}, 3, v{WK+3}")
    a(f"s_lshl_b32 s5, s{WV}, 6\ns_add_u32 s5, s5, {L_OV}\nv_lshl_add_u32 v{A_XW}, v{WK+3}, 1, s5")
    a(f"v_lshlrev_b32 v{VCHK}, 2, v1\nv_add_u32 v{VCHK}, {L_MISC}, v{VCHK}")
    def e_preread(t):
        a(f"v_lshlrev_b32 v{t}, 7, v1\ns_lshl_b32 s5, s{WV}, 8\ns_add_u32 s5, s5, s{SFY}\ns_add_u32 s5, s5, {GUP}\ns_mov_b64 exec, 7")
        a(f"buffer_load_dword v{t}, v{t}, {sr(R_WS,4)}, s5 offen sc1\ns_mov_b64 exec, -1")
    if cfg.warm:
        a(f"s_getpc_b64 s[6:7]\ns_lshl_b32 s5, s{WV}, 11\nv_lshlrev_b32 v{WK+4}, 7, v1\nv_add_u32 v{WK+4}, s5, v{WK+4}\ns_mov_b64 exec, 0xffff")
        a(f"global_load_dword v{WK+3}, v{WK+4}, s[6:7]\ns_mov_b64 exec, -1")
    a(f"v_readfirstlane_b32 s35, v{TAG}\ns_lshl_b32 s35, s35, 10\ns_or_b32 s35, s35, {8 * (24 - cfg.D2 - cfg.nq2 + (32 if cfg.balk else 0)) + 1}")
    if cfg.zt:
        a(f"s_lshl_b32 s5, s{WV}, 7\ns_add_u32 s5, s5, s{SFY}\ns_add_u32 s5, s5, {ZP}\ns_mov_b64 exec, 1\nbuffer_load_dword v{TAG}, off, {sr(R_WS,4)}, s5 sc1\ns_mov_b64 exec, -1")
    if cfg.ot & 1:
        a(f"v_lshlrev_b32 v{WK+4}, 7, v1\ns_lshl_b32 s5, s{WV}, 10\ns_add_u32 s5, s5, s{SMY}\ns_add_u32 s5, s5, {OP}\ns_mov_b64 exec, 0xff\nbuffer_load_dword v{TAG}, v{WK+4}, {sr(R_WS,4)}, s5 offen sc1\ns_mov_b64 exec, -1")
    if cfg.ot & 2:
        a(f"s_lshl_b32 s5, s{WV}, 7\ns_add_u32 s5, s5, s{SMY}\ns_add_u32 s5, s5, {YP}\ns_mov_b64 exec, 1\nbuffer_load_dword v{TAG}, off, {sr(R_WS,4)}, s5 sc1\ns_mov_b64 exec, -1")
    if cfg.elocal and cfg.epre == 1: e_preread(WK + 3); a("s_waitcnt vmcnt(0)")
    h = FG
    def cd_mark():
        a(f"s_mul_i32 s36, s30, {WS}\ns_add_u32 s36, s36, {BRD}\ns_lshr_b32 s5, s2, 3\ns_lshl_b32 s5, s5, 2\ns_add_u32 s5, s5, s36")
        a(f"v_lshlrev_b32 v{h}, 2, v1\nv_mov_b32 v{h+1}, s35\nv_mov_b32 v{h+4}, 8\ns_mov_b64 exec, 1\nbuffer_store_dword v{h+1}, off, {sr(R_WS,4)}, s5\ns_mov_b32 exec_lo, -1")
    def hint_mark(early):
        a(f"s_cmp_lg_u32 s{WV}, 3\ns_cbranch_scc1 L_hm_done")
        if early: lds_wait(C_P8, 8, WK, VCN)
        if cfg.hint == 3: a("s_waitcnt vmcnt(0)"); stamp(30, VST)
        a(f"s_mul_i32 s5, s30, {WS}\ns_add_u32 s5, s5, {TKT}\nv_mov_b32 v{h}, 1\nv_mul_u32_u24 v{h+1}, {WS}, v1\nv_mov_b32 v{h+2}, s35\ns_mov_b64 exec, 1")
        a(f"buffer_atomic_add v{h}, off, {sr(R_WS,4)}, s5 sc0 sc1\ns_mov_b64 exec, -1")
        a(f"s_and_b32 s36, s2, 3\ns_mul_i32 s36, s36, {64*WS}\ns_and_b32 s5, s2, 4\ns_add_u32 s36, s36, s5\ns_add_u32 s36, s36, {INB}")
        a(f"s_waitcnt vmcnt(0)\nv_readfirstlane_b32 s5, v{h}\ns_cmp_lg_u32 s5, 30\ns_cbranch_scc1 L_hm_done")
        a(f"buffer_store_dword v{h+2}, v{h+1}, {sr(R_WS,4)}, s36 offen sc1")
        a.label("L_hm_done")
    if cfg.hint:
        if cfg.hint == 1: hint_mark(True)
    elif cfg.cdone and cfg.pv >= 0:
        a(f"s_cmp_lg_u32 s{WV}, 3\ns_cbranch_scc1 L_cm_done")
        lds_wait(C_P8, 8, WK, VCN)
        cd_mark()
        a(f"buffer_load_dword v{h+2}, v{h}, {sr(R_WS,4)}, s36 offen sc1\ns_mov_b64 exec, -1")
        a.label("L_cm_done")
    a("s_waitcnt lgkmcnt(0)")
    stamp(11, VST)
    a("s_barrier")
    stamp(12, VST)
    for s in range(8): a(f"ds_read_b128 {vr(FD+4*s,4)}, v{A_OS} offset:{s*4096}")
    a("s_waitcnt lgkmcnt(4)"); pk_sum4(FD, 4)
    a("s_waitcnt lgkmcnt(0)"); pk_sum4(FD + 16, 4)
    a(f"v_pk_add_f32 {vr(FD,2)}, {vr(FD,2)}, {vr(FD+16,2)}\nv_pk_add_f32 {vr(FD+2,2)}, {vr(FD+2,2)}, {vr(FD+18,2)}")
    for i in range(4): tagit(FD + i, FD + i, i)
    a(f"buffer_store_dwordx4 {vr(FD,4)}, v{A_OG}, {sr(R_WS,4)}, s37 offen sc1")
    stamp(13, VST)
    def betweenA():
        if cfg.p5 < 0: lds_signal(C_OR, VCN, VONE)
        if "wo" in late: ffn_frags("wo", WK + 3)
    if cfg.p5 >= 0:
        lds_signal(C_OR, VCN, VONE)
        if cfg.hint:
            if cfg.hint >= 2: hint_mark(False)
            a(f"s_cmp_lg_u32 s{WV}, 2\ns_cbranch_scc1 L_hp_done")
            a(f"s_add_u32 s5, s{SMY}, {INB}\ns_add_u32 s40, s{KA(104)}, s5\ns_addc_u32 s41, s{KA(104)+1}, 0\nv_mov_b32 v{h+4}, 8")
            a.label("L_hp")
            a(f"s_load_dwordx2 s[42:43], s[40:41], 0 glc\nds_read_b32 v{h+3}, v{VCN} offset:{C_P5*4}")
            budget_check()
            a(f"s_waitcnt lgkmcnt(0)\nv_readfirstlane_b32 s5, v{h+3}\ns_cmp_ge_u32 s5, 8\ns_cbranch_scc1 L_hp_done")
            a(f"s_cmp_lg_u32 s42, s35\ns_cbranch_scc1 L_hp\ns_cmp_lg_u32 s43, s35\ns_cbranch_scc1 L_hp")
            if cfg.hd:
                a(f"ds_read_b32 v{WK}, v{VCN} offset:{C_LC*4}\ns_waitcnt lgkmcnt(0)\nv_readfirstlane_b32 s42, v{WK}\ns_add_u32 s42, s42, {cfg.hd}\ns_min_u32 s42, s42, {8 * (16 - cfg.nl0 - cfg.nmid)}")
                lds_wait(C_LC, "s42", WK, VCN)
            a(f"s_mov_b64 exec, 1\nds_add_u32 v{VCN}, v{h+4} offset:{C_P5*4}\ns_mov_b64 exec, -1")
            a.label("L_hp_done")
        elif cfg.cdone:
            a(f"s_cmp_lg_u32 s{WV}, 3\ns_cbranch_scc1 L_cd_done")
            if cfg.pv < 0: cd_mark()
            else: a(f"s_mov_b32 exec_hi, 0\ns_waitcnt vmcnt(1)\ns_branch L_cd_chk")
            a.label("L_cd")
            a(f"buffer_load_dword v{h+2}, v{h}, {sr(R_WS,4)}, s36 offen sc1\nds_read_b32 v{h+3}, v{VCN} offset:{C_P5*4}")
            budget_check()
            a(f"s_waitcnt lgkmcnt(0)\nv_readfirstlane_b32 s5, v{h+3}\ns_cmp_ge_u32 s5, 8\ns_cbranch_scc1 L_cd_out\ns_waitcnt vmcnt(0)")
            a.label("L_cd_chk")
            a(f"v_cmp_eq_u32 vcc, s35, v{h+2}\ns_bcnt1_i32_b64 s5, vcc\ns_cmp_lt_u32 s5, {cfg.cdone}\ns_cbranch_scc1 L_cd")
            a(f"s_mov_b64 exec, 1\nds_add_u32 v{VCN}, v{h+4} offset:{C_P5*4}")
            a.label("L_cd_out")
            a("s_mov_b64 exec, -1")
            a.label("L_cd_done")
        if cfg.pmin >= 0: lds_wait(C_P7, 8, WK, VCN)
        lds_wait(C_P5, 8, WK, VCN)
    stamp(28, VST)
    gather([(FU + 4 * i, 4, A_A, OP + i * 32 * WS, None) for i in range(8)], WK, kind="byte", between=betweenA, acc=FD + 4)
    if cfg.yrel == 1: lds_signal(C_Y, VCN, VONE)
    stamp(14, VST)
    col_reduce(FD + 4)
    rnd(FD + 4, FD + 4)
    a(f"ds_write_b16_d16_hi v{A_XW}, v{FD+4}")
    xch_read(L_OV, 4, WK, VACT)
    gemv_pub([FWO, FWO + 16], 4, FD, FD + 16, YP)
    if not cfg.yrel: lds_signal(C_Y, VCN, VONE)
    stamp(15, VST)
    a(f"s_cmp_lt_u32 s{ROLE}, 224\ns_cbranch_scc1 L_ffn")
    if cfg.yrel == 2: lds_signal(C_Y, VCN, VONE)
    a("s_branch L_fin")
    a.label("L_ffn")
    a(f"s_mov_b32 s{SMY}, s{SFY}")
    if cfg.yd >= 0:
        a(f"ds_read_b32 v{WK}, v{VCN} offset:{C_LC*4}\ns_waitcnt lgkmcnt(0)\nv_readfirstlane_b32 s34, v{WK}\ns_add_u32 s34, s34, {cfg.yd}\ns_min_u32 s34, s34, {8 * (16 - cfg.nl0 - cfg.nmid)}")
    A_AT, A_M, A_GS = FD + 20, FD + 21, FD + 22
    a(f"v_and_b32 v{WK}, 3, v1\nv_mul_u32_u24 v{WK+3}, 320, v{WK}\nv_add_u32 v{A_AT}, v{WK+3}, v{VACT}")
    a(f"v_bfe_u32 v{WK+3}, v1, 2, 3\nv_mul_u32_u24 v{WK+3}, {WS}, v{WK+3}\nv_lshl_add_u32 v{A_M}, v{WK}, 4, v{WK+3}\ns_and_b32 s5, s{ROLE}, 0xf8\ns_mul_i32 s5, s5, {WS}\nv_add_u32 v{A_M}, s5, v{A_M}")
    a(f"s_lshl_b32 s36, s{WV}, 8\ns_add_u32 s36, s36, s{SMY}\ns_add_u32 s36, s36, {GUP}\nv_lshlrev_b32 v{A_GS}, 2, v1")
    a(f"s_lshl_b32 s37, s{WV}, 4\ns_add_u32 s37, s37, s{SMY}\ns_add_u32 s37, s37, {MOM}")
    a(f"s_lshl_b32 s5, s{WV}, 6\ns_add_u32 s5, s5, {L_HHV}\nv_add_u32 v{VB}, s5, v{TB}")
    def store_gl(data, vaddr, soff):
        if cfg.elocal:
            Lf = a.newlabel("L_far"); Lj = a.newlabel("L_stj")
            a(f"s_cmp_eq_u32 s15, 0\ns_cbranch_scc1 {Lf}")
            a(f"buffer_store_dwordx4 {vr(data,4)}, {vaddr}, {sr(R_WS,4)}, {soff}")
            a.label(Lj)
            def far():
                a.label(Lf); a(f"buffer_store_dwordx4 {vr(data,4)}, {vaddr}, {sr(R_WS,4)}, {soff} sc1\ns_branch {Lj}")
            deferred.append(far)
        else: a(f"buffer_store_dwordx4 {vr(data,4)}, {vaddr}, {sr(R_WS,4)}, {soff} sc1")
    if cfg.elocal and cfg.epre == 2: e_preread(FD + 23)
    def gu_frags():
        for name in ("gate", "up"):
            if name in late: ffn_frags(name, WK + 3)
    if cfg.bgate == 1: gu_frags()
    if cfg.nb: lds_wait(C_UP, cfg.nb, WK, VCN, sleep=0)
    if cfg.yd >= 0:
        lds_wait(C_LC, "s34", WK, VCN)
    if cfg.p6 >= 0: lds_wait(C_P6, 8, WK, VCN)
    if cfg.ackB: a("s_waitcnt vmcnt(0)")
    stamp(29, VST)
    gather([(FWO + 4 * i, 4, A_Y, YP + i * 64 * WS, None) for i in range(4)], WK, kind="byte", between=gu_frags if cfg.bgate == 2 else None, acc=FD)
    if cfg.yrel == 2: lds_signal(C_Y, VCN, VONE)
    stamp(16, VST)
    col_reduce(FD)
    y_ = FD
    rnd(y_, y_); a(f"v_mul_f32 v{y_}, v{y_}, v{K_GA}"); rnd(y_, y_); a(f"v_add_f32 v{K_X}, v{K_X}, v{y_}"); rnd(K_X, K_X)
    st_ = y_ + 4; mo = y_ + 8
    a(f"v_mov_b32 v{st_}, v{K_X}\nv_mul_f32 v{y_}, v{K_X}, v{K_C1}")
    a(f"v_mul_f32_dpp v{st_}, v{K_X}, v{K_X} quad_perm:[0,1,2,3] row_mask:0xf bank_mask:0xc\nv_mov_b32 v{st_+1}, v{st_}")
    rnd(y_ + 1, y_)
    a(f"s_nop 0\nv_permlane32_swap_b32 v{st_}, v{st_+1}\nv_add_f32 v{st_}, v{st_}, v{st_+1}\nv_mov_b32 v{st_+1}, v{st_}")
    a(f"v_subrev_f32_dpp v{y_}, v{y_+1}, v{y_} quad_perm:[0,1,2,3] row_mask:0xf bank_mask:0xc")
    rnd(y_, y_)
    a(f"v_permlane16_swap_b32 v{st_}, v{st_+1}\nv_add_f32 v{st_}, v{st_}, v{st_+1}")
    a(f"ds_write_b16_d16_hi v{VAW}, v{y_}")
    xreduce("v_add_f32", st_, None, ("quad_perm:[1,0,3,2]", "quad_perm:[2,3,0,1]", "row_half_mirror"))
    a(f"v_and_b32 v{mo}, v{st_}, v{BT}\nv_sub_f32 v{mo+1}, v{st_}, v{mo}")
    tagit(mo, mo, 0)
    a(f"v_mov_b32_dpp v{mo+2}, v{st_} row_ror:8 {DPPF}\nv_mov_b32_dpp v{mo+3}, v{mo+1} row_ror:8 {DPPF}")
    tagit(mo + 1, mo + 1, 1); tagit(mo + 2, mo + 2, 2); tagit(mo + 3, mo + 3, 3)
    a("s_mov_b64 exec, 1")
    store_gl(mo, "off", "s37")
    a("s_mov_b64 exec, -1")
    stamp(22, VST)
    frs = [FG, FG + 16, FU, FU + 16]; dacc = FWO; out = FWO + 16
    mg = y_ + 12
    mload = f"buffer_load_dwordx4 {vr(mg,4)}, v{A_M}, {sr(R_WS,4)}, s34 offen sc1"
    a(f"s_mov_b32 s34, {MOM}")
    if cfg.bgate == 0: gu_frags()
    xch_read(L_AT, 4, WK + 3, A_AT, two=True)
    for cg in range(5):
        if cg < 4:
            if cg > 1: a("s_mov_b64 exec, -1")
            if cg == cfg.mfirst: a(mload)
            for kk in range(4): mfma(dacc + 4 * cg, ACT + 4 * kk, frs[cg] + 4 * kk, kk == 0)
            if cg == 0:
                for k in range(4): a(f"v_mov_b32 v{out+4+k}, s{TB0+k}")
        if cg >= 1:
            d = dacc + 4 * (cg - 1)
            setexec(0xffff << (16 * (cg - 1)))
            a(f"v_add_f32 v{out}, v{d}, v{d+1}\nv_pk_mov_b32 {vr(out+2,2)}, {vr(d+2,2)}, {vr(d+2,2)} op_sel:[0,1]")
    a("s_mov_b64 exec, -1")
    if cfg.mfirst < 4: a("s_branch L_mchk")
    a.label("L_mld")
    a(mload); budget_check()
    a.label("L_mchk")
    a("s_waitcnt vmcnt(0)")
    for k in range(4): a(f"v_xor_b32 v{mg+k}, s{TB0+k}, v{mg+k}")
    a(f"v_or3_b32 v{WK}, v{mg}, v{mg+1}, v{mg+2}\nv_or_b32 v{WK}, v{WK}, v{mg+3}\nv_and_b32 v{WK}, 0xff, v{WK}\nv_cmp_ne_u32 vcc, 0, v{WK}\ns_cbranch_vccnz L_mld")
    stamp(27, VST)
    a(f"v_add_f32 v{mg}, v{mg}, v{mg+1}\ns_mov_b32 exec_lo, 0\nv_add_f32 v{mg}, v{mg+2}, v{mg+3}\ns_mov_b32 exec_lo, -1")
    xreduce("v_add_f32", mg, mg + 1, (16, 8, 4, 2, 1))
    a(f"v_mul_f32 v{mg}, {f2u(1.0/1024):#x}, v{mg}\nv_mov_b32 v{mg+1}, v{mg}\nv_permlane32_swap_b32 v{mg}, v{mg+1}")
    a(f"v_fma_f32 v{mg+1}, -v{mg}, v{mg}, v{mg+1}"); rnd(mg, mg)
    a(f"v_max_f32 v{mg+1}, 0, v{mg+1}\nv_fma_f32 v{out}, -v{mg}, v{out+2}, v{out}")
    den_from_var(mg + 1, mg + 2)
    a(f"v_fma_f32 v{out}, v{out}, v{mg+2}, v{out+3}\nv_and_b32 v{out}, v{out}, v{BT}")
    for k in range(4): a(f"v_or_b32_dpp v{out+4+k}, v{out}, v{out+4+k} quad_perm:[{k},{k},{k},{k}] {DPPF}")
    setexec(0x1111111111111111)
    store_gl(out + 4, f"v{A_GS}", "s36 offen")
    a("s_mov_b64 exec, -1")
    stamp(23, VST)
    def dnf():
        a("s_barrier")
        ffn_frags("dn", WK + 3)
    eg = [(FG + 4 * i, 4, A_E, GUP + i * 4 * WS, None) for i in range(2)]
    if not cfg.efirst: dnf()
    if cfg.ackE: a("s_waitcnt vmcnt(0)")
    stamp(17, VST)
    gather(eg, WK, kind="byte", masked=cfg.efirst == 1, between=dnf if cfg.efirst == 1 else None, acc=FU)
    if cfg.efirst == 2: dnf()
    stamp(18, VST)
    g_ = FU
    a(f"v_permlane32_swap_b32 v{g_}, v{g_+1}\nv_permlane32_swap_b32 v{g_+2}, v{g_+3}\nv_add_f32 v{g_}, v{g_}, v{g_+1}\nv_add_f32 v{g_+2}, v{g_+2}, v{g_+3}")
    a(f"v_permlane16_swap_b32 v{g_}, v{g_+2}\nv_add_f32 v{g_}, v{g_}, v{g_+2}")
    rnd(g_, g_)
    k2 = -2.0 * 0.7978845608028654 * LOG2E
    a(f"v_mul_f32 v{g_+2}, v{g_}, v{g_}\nv_mul_f32 v{g_+3}, {f2u(k2):#x}, v{g_}\nv_mul_f32 v{g_+2}, {f2u(0.044715):#x}, v{g_+2}\nv_fma_f32 v{g_+2}, v{g_+2}, v{g_+3}, v{g_+3}")
    a(f"v_exp_f32 v{g_+2}, v{g_+2}\nv_mov_b32_dpp v{g_+1}, v{g_} row_ror:8 {DPPF}\nv_add_f32 v{g_+2}, 1.0, v{g_+2}\nv_rcp_f32 v{g_+2}, v{g_+2}\nv_mul_f32 v{g_}, v{g_}, v{g_+2}")
    rnd(g_, g_); a(f"v_mul_f32 v{g_}, v{g_}, v{g_+1}")
    setexec(0x00ff00ff00ff00ff)
    rnd(g_, g_)
    a(f"ds_write_b16_d16_hi v{VB}, v{g_}\ns_mov_b64 exec, -1")
    xch_read(L_HHV, 4, WK, VACT)
    gemv_pub([FD, FD + 16], 4, FG, FG + 8, ZP)
    stamp(19, VST)
    a(f"s_lshr_b32 s5, s{ROLE}, 3\ns_cmp_lg_u32 s5, {cfg.dgrp}\ns_cbranch_scc1 L_fin")
    for i in range(4): a(f"v_mov_b32 v{FU+12+i}, 0")
    a("s_lshl_b32 s36, s32, 1")
    stamp(26, VST)
    if cfg.ackD: a("s_waitcnt vmcnt(0)")
    if cfg.dsl: a(f"s_sleep {cfg.dsl}")
    gather([(FU + 4 * i, 4, A_Z, ZP + i * 64 * WS, None if i < 3 else 0xffffffff) for i in range(4)], WK, kind="byte", masked=False, acc=FU + 16)
    stamp(24, VST)
    z_ = FU + 16
    col_reduce(z_)
    rnd(z_, z_); a(f"v_mul_f32 v{z_}, v{z_}, v{K_GB}"); rnd(z_, z_); a(f"v_add_f32 v{z_}, v{K_X}, v{z_}")
    setexec(0x00ff00ff00ff00ff)
    rnd(z_, z_)
    a(f"buffer_store_short_d16_hi v{z_}, v{TB}, {sr(R_OUT,4)}, s36 offen" + (" sc1" if cfg.outsc else "") + "\ns_mov_b64 exec, -1")
    stamp(25, VST)
    a.label("L_fin")
    if cfg.stamps:
        a(f"s_lshl_b32 s5, s2, 11\ns_lshl_b32 s6, s3, 7\ns_add_u32 s5, s5, s6\ns_add_u32 s5, s5, 0x8000000\nv_lshlrev_b32 v2, 2, v1")
        a(f"s_mov_b32 exec_hi, 0\nbuffer_store_dword v{VST}, v2, {sr(R_WS,4)}, s5 offen sc1")
    a("s_endpgm")
    for f in deferred: f()
    a.label("L_end")
    body = "\n".join(hazard.run(a.l)) + "\n"
    return wrap(body, 256, 768, LDS_BYTES, 168, extra_desc="  .amdhsa_float_denorm_mode_32 3\n")

if __name__ == "__main__":
    out = sys.argv[1]
    kw = {}
    for x in sys.argv[2:]:
        k, v = x.split("="); kw[k] = int(v) if v.lstrip("-").isdigit() else v
    open(out, "w").write(gen(Cfg(**kw)))
```

```python
import sys, os, struct
from asmgen import *
import hazard

def f2u(x): return struct.unpack("<I", struct.pack("<f", x))[0]
LOG2E = 1.4426950408889634

class Cfg:
    D1 = 3; D2 = 3; DV = 3; D3 = 3
    stamps = False
    spin_budget = 1 << 18
    pre1 = "crit,wq,mod1,mod2"
    pre2 = ""
    mid = ""
    late = "wo,gate,up,dn"
    nl0 = 3
    nl2 = 0
    p1 = 8; p2 = 23; p3 = 16
    ackB = 1; ackE = 0; ackD = 1
    bgate = 1
    outsc = 1
    npre = 0
    qm = 0
    pm = 19
    dbgh = 0
    ared = 0
    asl = 2; apm = 2
    ofirst = 1
    bmask = 1
    D4 = 63
    ot = 2
    hd = 0
    hint = 0
    yd = -1
    pv = 31
    cdone = 32
    pmin = 3
    mfirst = 2
    nq2 = 0
    nmid = 0
    D0 = 3; n0 = 0
    ktouch = 0
    dsl = 0
    dgrp = 0
    warm = 0
    nb = 0
    p5 = 8
    p6 = 12
    ysl = 1
    efirst = 0
    bal = 2
    Dmin = 2; Dmax = 5; th = -12; balk = 0; DVmax = 6; Kmin = 2; Kmax = 4; hl = 2
    yrel = 0
    zt = 3
    elocal = 1
    epre = 2
    role = 1
    p4 = 18
    touch = 0
    def __init__(self, **kw):
        for k, v in kw.items():
            assert hasattr(self, k), k
            setattr(self, k, v)

QP, HP = 0, 512
TKT = 1024
OIN = 9472
INB = 9344
BRD = 1280
MODP = 2048
YP, ZP, OP, GUP, MOM = 3072, 3584, 4096, 8192, 9216
MODF = 6 << 20
XCP = MODF + 65536
MLA = MODF + 131072
QF = MODF + 196608
EPOCH = 8 << 20
L_MOD, L_WQ, L_UP, L_DN, L_WO, L_GATE, L_MISC = 0, 0xC000, 0, 0x8000, 0x14000, 0x1C000, 0x24000
L_OS = L_DN
L_CNT = L_MISC
(C_CRIT, C_WQ, C_MOD1, C_MOD2, C_WO, C_GATE, C_UP, C_DN, C_Q, C_H, C_ML, C_MLD, C_CLR, C_P1, C_P2, C_P3, C_Y, C_OR, C_ROLE, C_P4, C_T, C_TK, C_P5, C_P6, C_P7, C_P8, C_LC, C_PM) = range(28)
L_QV = L_MISC + 0x100
L_HV = L_MISC + 0x900
L_HHV = L_MISC + 0xA00
L_OV = L_MISC + 0xB00
L_RV = L_MISC + 0x1700
L_SIL = L_MISC + 0xC00
L_MLW = L_MISC + 0xE00
L_MLF = L_MISC + 0x1000
L_AT = L_MISC + 0x1100
LDS_BYTES = 160 * 1024

def is_reducer(w): return w < 8
def vr(a, n=1): return f"v{a}" if n == 1 else f"v[{a}:{a+n-1}]"
def sr(a, n=1): return f"s{a}" if n == 1 else f"s[{a}:{a+n-1}]"

def gen(cfg):
    a = Asm()
    WS = 10112
    BUD = 4
    lst = lambda x: [t for t in x.split(",") if t]
    def srd_load(r, karg_off): a(f"s_load_dwordx2 {sr(r,2)}, s[0:1], {karg_off}")
    def srd_fin(r, nbytes): a(f"s_mov_b32 s{r+2}, {nbytes}\ns_mov_b32 s{r+3}, 0x20000")
    def rnd(d, s): a(f"v_cvt_pk_bf16_f32 v{d}, 0, v{s}")
    def setexec(m): a(f"s_mov_b32 exec_lo, {m & 0xffffffff:#x}\ns_mov_b32 exec_hi, {m >> 32:#x}")
    def stamp(idx, vreg):
        if cfg.stamps == 1 or (cfg.stamps == 2 and idx == 25): a(f"s_memrealtime s[98:99]\ns_waitcnt lgkmcnt(0)\nv_writelane_b32 v{vreg}, s98, {idx}")
    def budget_check(): a(f"s_sub_u32 s{BUD}, s{BUD}, 1\ns_cbranch_scc1 L_end")
    def lds_wait(cnt, target, vtmp, vaddr, sleep=1):
        L = a.newlabel("L_lw"); Ld = a.newlabel("L_lwd")
        a.label(L)
        a(f"ds_read_b32 v{vtmp}, v{vaddr} offset:{cnt*4}\ns_waitcnt lgkmcnt(0)\nv_readfirstlane_b32 s5, v{vtmp}")
        a(f"s_cmp_ge_u32 s5, {target}\ns_cbranch_scc1 {Ld}")
        if sleep: a(f"s_sleep {sleep}")
        budget_check()
        a(f"s_branch {L}")
        a.label(Ld)
    def lds_signal(cnt, vaddr, vone):
        a(f"s_mov_b64 exec, 1\nds_add_u32 v{vaddr}, v{vone} offset:{cnt*4}\ns_mov_b64 exec, -1")
    DPPF = "row_mask:0xf bank_mask:0xf"
    def xreduce(op, v, t, steps):
        for s in steps:
            if s in (1, 2, 4, 8): a(f"{op}_dpp v{v}, v{v}, v{v} row_ror:{s} {DPPF}")
            elif s == 16: a(f"v_mov_b32 v{t}, v{v}\nv_permlane16_swap_b32 v{v}, v{t}\n{op} v{v}, v{v}, v{t}")
            elif s == 32: a(f"v_mov_b32 v{t}, v{v}\nv_permlane32_swap_b32 v{v}, v{t}\n{op} v{v}, v{v}, v{t}")
            else: a(f"{op}_dpp v{v}, v{v}, v{v} {s} {DPPF}")

    a("s_load_dwordx16 s[68:83], s[0:1], 0\ns_load_dwordx8 s[84:91], s[0:1], 64\ns_load_dwordx4 s[92:95], s[0:1], 96")
    KA = lambda off: 68 + off // 4
    a("s_cmp_ge_u32 s2, 256\ns_cbranch_scc1 L_end")
    a("v_lshrrev_b32 v2, 6, v0\nv_and_b32 v1, 63, v0")
    a("v_readfirstlane_b32 s3, v2")
    a(f"s_mov_b32 s{BUD}, {cfg.spin_budget}")
    if cfg.stamps: a("s_memrealtime s[96:97]")
    a("s_cmp_ge_u32 s3, 8\ns_cbranch_scc1 L_cwave")

    R_MOD, R_WQ, R_WO, R_G, R_U, R_DN, R_K, R_V, R_WSS = 8, 12, 16, 20, 24, 28, 32, 36, 40
    VK, VV, VGU, VDN, VCN, VONE = 2, 3, 4, 5, 6, 7
    Q0, T0, DT, KV = 8, 16, 32, 40
    VMOD, VWQ, VST = 16, 17, 0
    SB_MOD, SB_WQ, SB_WO, SB_GU, SB_DN, SB_KV, SO, SL, SL4 = 44, 45, 46, 47, 48, 49, 50, 51, 56
    def srd(r, off, nbytes): a(f"s_mov_b64 {sr(r,2)}, {sr(KA(off),2)}\ns_mov_b32 s{r+2}, {nbytes}\ns_mov_b32 s{r+3}, 0x20000")
    a("v_and_b32 v32, 15, v1\nv_lshrrev_b32 v33, 4, v1\nv_lshlrev_b32 v34, 1, v33\nv_xor_b32 v34, v34, v32\nv_lshlrev_b32 v34, 4, v34")
    a(f"v_mul_u32_u24 v{VMOD}, 12288, v33\nv_add_u32 v{VMOD}, v{VMOD}, v34\ns_and_b32 s63, s3, 1\ns_lshl_b32 s63, s63, 7\nv_xor_b32 v{VMOD}, s63, v{VMOD}")
    a(f"v_lshl_add_u32 v{VWQ}, v33, 13, v34")
    a(f"s_lshr_b32 s5, s2, 4\ns_lshl_b32 s5, s5, 6\ns_lshl_b32 s6, s3, 3\ns_add_u32 s5, s5, s6\ns_mul_i32 s5, s5, 12288")
    a(f"s_and_b32 s6, s2, 15\ns_lshl_b32 s6, s6, 8\ns_add_u32 s{SB_MOD}, s5, s6\ns_lshl_b32 s{SL}, s3, 11\ns_lshl_b32 s{SL4}, s3, 12")
    a("s_and_b32 s52, s2, 7\ns_lshr_b32 s53, s2, 3")
    a(f"s_lshl_b32 s5, s52, 7\ns_lshl_b32 s57, s3, 4\ns_add_u32 s54, s5, s57")
    a(f"s_lshl_b32 s5, s54, 13\ns_lshl_b32 s55, s53, 8\ns_add_u32 s{SB_WQ}, s5, s55")
    a("s_waitcnt lgkmcnt(0)")
    srd(R_MOD, 80, 12582912); srd(R_WQ, 24, 8388608)
    def rest_of_setup():
        a(f"v_mul_u32_u24 v{VGU}, 7168, v33\nv_add_u32 v{VGU}, v{VGU}, v34\nv_lshl_add_u32 v{VDN}, v33, 11, v34\nv_lshlrev_b32 v{VV}, 4, v1")
        a(f"v_and_b32 v35, 2, v32\nv_lshlrev_b32 v35, 15, v35\nv_lshrrev_b32 v36, 2, v32\nv_lshl_add_u32 v35, v36, 8, v35")
        a(f"v_and_b32 v36, 1, v32\nv_lshl_add_u32 v35, v36, 6, v35\nv_lshl_add_u32 v{VK}, v33, 4, v35")
        a(f"v_mov_b32 v{VCN}, {L_CNT}\nv_mov_b32 v{VONE}, 1")
        a(f"s_lshr_b32 s5, s2, 6\ns_lshl_b32 s5, s5, 3\ns_add_u32 s5, s5, s52\ns_lshl_b32 s5, s5, 7\ns_add_u32 s5, s5, s57\ns_lshl_b32 s5, s5, 11")
        a(f"s_and_b32 s6, s53, 7\ns_lshl_b32 s6, s6, 8\ns_add_u32 s{SB_WO}, s5, s6")
        a(f"s_and_b32 s5, s2, 3\ns_lshl_b32 s5, s5, 24\ns_lshr_b32 s6, s2, 2\ns_lshl_b32 s6, s6, 18\ns_add_u32 s5, s5, s6\ns_lshl_b32 s6, s3, 10\ns_add_u32 s{SB_KV}, s5, s6")
        srd(R_WO, 32, 8388608); srd(R_K, 8, 67108864); srd(R_V, 16, 67108864)
        for r, off in ((R_G, 48), (R_U, 56), (R_DN, 64)): srd(r, off, 0)
        if cfg.stamps:
            srd(R_WSS, 104, 0x10000000); a(f"v_mov_b32 v{VST}, 0\nv_writelane_b32 v{VST}, s96, 0")
        a("s_mov_b32 s58, 0x05040100\ns_mov_b32 s59, 0x07060302")
        a("s_barrier")
    issued = []; done = [0]; tiles = {}; signalled = set(); setup = [False]
    TN = dict(crit=2, wq=4, mod1=2, mod2=2, wo=4, gate=4, up=4, dn=4)
    TC = dict(crit=C_CRIT, wq=C_WQ, mod1=C_MOD1, mod2=C_MOD2, wo=C_WO, gate=C_GATE, up=C_UP, dn=C_DN)
    def wait_n(n):
        if len(issued) - done[0] > n:
            a(f"s_waitcnt vmcnt({n})"); done[0] = len(issued) - n
            for name, ids in tiles.items():
                if name not in signalled and len(ids) == TN[name] and max(ids) < done[0]:
                    lds_signal(TC[name], VCN, VONE); signalled.add(name)
                    if name in ("wo", "up"): stamp({"wo": 20, "up": 21}[name], VST)
    def wait_id(i): wait_n(len(issued) - 1 - i)
    def dma(name, i, D):
        srd_, voff, sb, step, lbase, lsreg = {
            "crit": (R_MOD, VMOD, SB_MOD, 4 * 12288, L_MOD, SL), "mod1": (R_MOD, VMOD, SB_MOD, 4 * 12288, L_MOD + 16384, SL),
            "mod2": (R_MOD, VMOD, SB_MOD, 4 * 12288, L_MOD + 32768, SL), "wq": (R_WQ, VWQ, SB_WQ, 4 * 8192, L_WQ, SL4),
            "wo": (R_WO, VDN, SB_WO, 4 * 2048, L_WO, SL4), "gate": (R_G, VGU, SB_GU, 4 * 7168, L_GATE, SL4),
            "up": (R_U, VGU, SB_GU, 4 * 7168, L_UP, SL4), "dn": (R_DN, VDN, SB_DN, 4 * 2048, L_DN, SL4)}[name]
        extra = {"mod1": 4096, "mod2": 8192}.get(name, 0)
        if len(issued) >= min(D, 6) and not setup[0]:
            setup[0] = True; rest_of_setup()
            if cfg.ktouch:
                a(f"s_mov_b64 exec, 1\ns_mov_b32 m0, {L_MISC + 0x2000}")
                for r in (R_K, R_V): a(f"buffer_load_dword off, {sr(r,4)}, s{SB_KV} nt lds"); issued.append("t")
                a("s_mov_b64 exec, -1")
        a(f"s_add_u32 m0, s{lsreg}, {lbase + i*1024}\ns_add_u32 s{SO}, s{sb}, {i*step + extra}")
        wait_n(D - 1)
        a(f"buffer_load_dwordx4 v{voff}, {sr(srd_,4)}, s{SO} offen nt lds")
        if name in ("wq", "wo", "gate", "up", "dn") and i in (1, 3): a(f"v_xor_b32 v{voff}, 0x80, v{voff}")
        tiles.setdefault(name, []).append(len(issued)); issued.append(name)
    kid = {}; vid = {}; cur_so = [None]
    def kvload(srd_, voff, off, dst, D):
        so = off & ~0xfff
        if cur_so[0] != so:
            a(f"s_add_u32 s60, s{SB_KV}, {so}"); cur_so[0] = so
        if D: wait_n(D - 1)
        a(f"buffer_load_dwordx4 {vr(dst,4)}, v{voff}, {sr(srd_,4)}, s60 offen offset:{off & 0xfff} nt")
        issued.append("kv"); return len(issued) - 1
    def kload(n, u, D): kid[(n, u)] = kvload(R_K, VK, (16 * (n >> 3) + (n & 7)) * 8192 + u * 128, KV + 8 * n + 4 * u, D)
    def vslot(i): return KV + 4 * (i % 24)
    def vload(i, D): vid[i] = kvload(R_V, VV, i * 8192, vslot(i), D)
    def paced(cnt, k, vt, Dmin, Dmax):
        a(f"s_mov_b64 exec, 1\nds_add_rtn_u32 v{vt}, v{VCN}, v{VONE} offset:{cnt*4}\ns_mov_b64 exec, -1")
        wait_n(Dmax - 1)
        go = a.newlabel("L_go")
        a(f"s_waitcnt lgkmcnt(0)\nv_readfirstlane_b32 s5, v{vt}\ns_cmp_gt_i32 s5, {8*k + cfg.th}\ns_cselect_b64 vcc, -1, 0\ns_cbranch_scc1 {go}\ns_waitcnt vmcnt({Dmin - 1})")
        a.label(go)
    D1, D2 = cfg.D1, cfg.D2
    for name in lst(cfg.pre1):
        for i in range(TN[name]): dma(name, i, cfg.D0 if len(issued) < cfg.n0 else D1)
    stamp(11, VST)
    for n in range(16):
        for u in range(2):
            if cfg.balk:
                paced(C_T, 2 * n + u, DT, cfg.Kmin, cfg.Kmax); kload(n, u, 0)
            else: kload(n, u, cfg.D0 if len(issued) < cfg.n0 else D1)
            if 2 * n + u == cfg.p1: lds_signal(C_P1, VCN, VONE)
            if 2 * n + u == cfg.p2: lds_signal(C_P2, VCN, VONE)
            if 2 * n + u == cfg.pm and cfg.qm: lds_signal(C_PM, VCN, VONE)
    for name in lst(cfg.pre2):
        for i in range(TN[name]): dma(name, i, D1)
    for i in range(cfg.npre): dma("wo", i, D1)
    stamp(1, VST)
    a(f"v_and_b32 v{DT+1}, 7, v1\nv_lshlrev_b32 v{DT+1}, 8, v{DT+1}\nv_and_b32 v{DT+2}, 8, v1\nv_lshl_add_u32 v{DT+1}, v{DT+2}, 3, v{DT+1}")
    a(f"v_lshrrev_b32 v{DT+2}, 4, v1\nv_lshl_add_u32 v{DT+1}, v{DT+2}, 4, v{DT+1}\nv_add_u32 v{DT+1}, {L_QV}, v{DT+1}")
    a(f"s_mov_b32 s61, {f2u(128 ** -0.5):#x}\ns_mov_b32 s62, {f2u(LOG2E):#x}")
    lds_wait(C_Q, 4, DT, VCN)
    stamp(2, VST)
    a(f"ds_read_b128 {vr(Q0,4)}, v{DT+1}\nds_read_b128 {vr(Q0+4,4)}, v{DT+1} offset:128\ns_waitcnt lgkmcnt(0)")
    nv = 0
    def fold(n):
        d = DT + 4 * (n & 1)
        a(f"v_add_f32_dpp v{T0+n}, v{d+1}, v{d} row_ror:8 row_mask:0xf bank_mask:0x3")
        a(f"v_add_f32_dpp v{T0+n}, v{d+2}, v{d+3} row_ror:8 row_mask:0xf bank_mask:0xc")
    def post(n):
        rnd(T0 + n, T0 + n); a(f"v_mul_f32 v{T0+n}, s61, v{T0+n}"); rnd(T0 + n, T0 + n)
    for n in range(16):
        wait_id(kid[(n, 1)])
        d = DT + 4 * (n & 1)
        a(f"v_mfma_f32_16x16x32_bf16 {vr(d,4)}, {vr(KV+8*n,4)}, {vr(Q0,4)}, 0")
        a(f"v_mfma_f32_16x16x32_bf16 {vr(d,4)}, {vr(KV+8*n+4,4)}, {vr(Q0+4,4)}, {vr(d,4)}")
        if n >= 1 and nv < D2 and n % 2 == 1:
            vload(nv, 0); nv += 1
        if n >= 2: post(n - 2)
        if n >= 1: fold(n - 1)
    for _ in range(cfg.nq2): vload(nv, 0); nv += 1
    fold(15); post(14); post(15)
    M_, L_, X_ = DT, DT + 1, DT + 2
    a(f"v_max3_f32 v{M_}, v{T0}, v{T0+1}, v{T0+2}")
    for i in range(3, 15, 2): a(f"v_max3_f32 v{M_}, v{M_}, v{T0+i}, v{T0+i+1}")
    a(f"v_max_f32 v{M_}, v{M_}, v{T0+15}")
    xreduce("v_max_f32", M_, X_, (8, 16, 32))
    for i in range(16):
        e = DT + 4 + (i & 3)
        a(f"v_sub_f32 v{e}, v{T0+i}, v{M_}\nv_mul_f32 v{e}, s62, v{e}\nv_exp_f32 v{e}, v{e}")
        if i >= 1:
            p = DT + 4 + ((i - 1) & 3)
            a(f"v_mov_b32 v{L_}, v{p}" if i == 1 else f"v_add_f32 v{L_}, v{L_}, v{p}")
    a(f"v_add_f32 v{L_}, v{L_}, v{DT+7}")
    xreduce("v_add_f32", L_, X_, (8, 16, 32))
    a(f"s_lshl_b32 s5, s3, 6\ns_add_u32 s5, s5, {L_MLW}\nv_lshlrev_b32 v{X_}, 3, v1\nv_add_u32 v{X_}, s5, v{X_}")
    a(f"s_mov_b64 exec, 0xff\nds_write_b64 v{X_}, {vr(M_,2)}\ns_waitcnt lgkmcnt(0)")
    lds_signal(C_ML, VCN, VONE)
    stamp(3, VST)
    nv0 = nv
    while nv < 24:
        if cfg.bal:
            paced(C_T, nv - nv0 + (32 if cfg.balk else 0), DT, cfg.Dmin, cfg.Dmax); vload(nv, 0)
        else: vload(nv, D2)
        if nv == cfg.p3: lds_signal(C_P3, VCN, VONE)
        if nv == cfg.p4 and cfg.role == 2: lds_signal(C_P4, VCN, VONE)
        nv += 1
    for name in lst(cfg.mid):
        for i in range(TN[name]): dma(name, i, D2)
    for name in lst(cfg.pre1) + lst(cfg.pre2): wait_id(max(tiles[name]))
    stamp(4, VST)
    a(f"v_and_b32 v{X_}, 7, v1\nv_lshlrev_b32 v{X_}, 3, v{X_}\nv_add_u32 v{X_}, {L_MLF}, v{X_}")
    lateq = [(name, i) for name in lst(cfg.late) for i in range(TN[name])]
    lateq = lateq[cfg.npre:]
    assert lateq[-4:] == [("dn", i) for i in range(4)]
    for _ in range(cfg.nmid):
        name, i = lateq.pop(0); assert name == "wo"; dma(name, i, 63)
    lds_wait(C_MLD, 1, DT, VCN)
    stamp(5, VST)
    assert not any(t in cfg.pre1 + cfg.pre2 + cfg.mid for t in ("gate", "up", "dn"))
    a(f"ds_read_b64 {vr(M_,2)}, v{X_}\ns_waitcnt lgkmcnt(0)")
    for i in range(16):
        a(f"v_sub_f32 v{T0+i}, v{T0+i}, v{M_}\nv_mul_f32 v{T0+i}, s62, v{T0+i}\nv_exp_f32 v{T0+i}, v{T0+i}")
    for i in range(16): a(f"v_mul_f32 v{T0+i}, v{T0+i}, v{L_}")
    for i in range(8): a(f"v_cvt_pk_bf16_f32 v{Q0+i}, v{T0+2*i}, v{T0+2*i+1}")
    a("s_mov_b32 s64, 0x00ff00ff\ns_mov_b32 s65, 0x00ff00ff\ns_mov_b32 s66, 0xff00ff00\ns_mov_b32 s67, 0xff00ff00")
    ACC = KV + 96
    PL = lambda G: T0 + 4 * G
    PH = lambda G: KV + 112 + 4 * G
    for G in range(4):
        b, pi = G >> 1, G & 1
        for i in range(4): a(f"v_cndmask_b32 v{(PH if pi else PL)(G)+i}, 0, v{Q0+4*b+i}, s[{64+2*pi}:{65+2*pi}]")
        for i in range(4): a(f"v_mov_b32_dpp v{(PL if pi else PH)(G)+i}, v{(PH if pi else PL)(G)+i} row_ror:8 {DPPF}")
    stage = [DT, DT + 4, Q0, Q0 + 4]
    sidx = 0
    def perm(dst, G, p, j):
        lo = vslot(8 * G + 2 * p) + (j >> 1); hi = vslot(8 * G + 2 * p + 1) + (j >> 1)
        a(f"v_perm_b32 v{dst}, v{hi}, v{lo}, s{58 + (j & 1)}")
    def pv(G, j, st):
        c = "0" if (G == 0 and j < 4) else vr(ACC + 4 * (j & 3), 4)
        a(f"v_mfma_f32_16x16x32_bf16 {vr(ACC+4*(j&3),4)}, {vr(st,4)}, {vr((PH if j >= 4 else PL)(G),4)}, {c}")
    for G in range(3):
        wait_id(vid[8 * G + 7])
        for j in range(8):
            st = stage[sidx & 3]; sidx += 1
            for p in range(4): perm(st + p, G, p, j)
            pv(G, j, st)
            if G in (1, 2) and j % 2 == 0 and nv < 32:
                if cfg.bal:
                    sk = a.newlabel("L_dv")
                    a(f"s_cbranch_vccnz {sk}\ns_waitcnt vmcnt({cfg.DV - 1})")
                    a.label(sk)
                    vload(nv, cfg.DVmax)
                else: vload(nv, cfg.DV)
                if nv == cfg.pv: lds_signal(C_P8, VCN, VONE)
                nv += 1
    lds_wait(C_ROLE, 1, DT, VCN, sleep=0)
    a("s_sub_u32 s7, s5, 1")
    a("s_mov_b32 s5, 7340032\ns_cmp_lt_u32 s7, 224\ns_cselect_b32 s5, s5, 0")
    for r in (R_G, R_U, R_DN): a(f"s_mov_b32 s{r+2}, s5")
    a("s_and_b32 s52, s7, 7\ns_lshr_b32 s53, s7, 3")
    a(f"s_lshl_b32 s5, s52, 7\ns_add_u32 s5, s5, s57\ns_mul_i32 s5, s5, 7168\ns_lshl_b32 s6, s53, 8\ns_add_u32 s{SB_GU}, s5, s6")
    a(f"s_lshl_b32 s5, s53, 7\ns_add_u32 s5, s5, s57\ns_lshl_b32 s5, s5, 11\ns_lshl_b32 s6, s52, 8\ns_add_u32 s{SB_DN}, s5, s6")
    a(f"s_add_u32 s5, s{SL4}, {L_OS}\nv_add_u32 v{VV}, s5, v{VV}")
    SG = KV + 32
    n0 = min(cfg.nl0, len(lateq) - max(4, cfg.nl2))
    for p in range(3):
        wait_id(vid[24 + 2 * p + 1])
        if cfg.pv == 32 and p == 2: lds_signal(C_P8, VCN, VONE)
        if p >= 1:
            for _ in range((n0 + 2 - p) // 2):
                name, i = lateq.pop(0); dma(name, i, 63)
        for j in range(8): perm(SG + 4 * j + p, 3, p, j)
    wait_id(vid[31])
    if cfg.pv == 33: lds_signal(C_P8, VCN, VONE)
    order = [0, 4, 1, 5, 2, 6, 3, 7]
    for k in range(10):
        if k < 8: perm(SG + 4 * order[k] + 3, 3, 3, order[k])
        if k >= 2: pv(3, order[k - 2], SG + 4 * order[k - 2])
    stamp(6, VST)
    for e in range(4): a(f"ds_write_b128 v{VV}, {vr(ACC+4*e,4)} offset:{e*1024}")
    a("s_waitcnt lgkmcnt(0)")
    stamp(7, VST)
    a("s_barrier")
    signalled.add("dn")
    n1 = len(lateq) - cfg.nl2
    for k, (name, i) in enumerate(lateq):
        if k == n1:
            wait_n(0); lds_wait(C_Y, 4, DT, VCN, sleep=cfg.ysl)
        if ((name, i) == ("dn", 0) and k < n1 and not cfg.ofirst) or (cfg.ofirst and k == 0): lds_wait(C_OR, 4, DT, VCN, sleep=0)
        dma(name, i, cfg.D3 if k < n1 else cfg.D4)
        if k == cfg.p5: assert k < n1; lds_signal(C_P5, VCN, VONE)
        if k == cfg.p6: lds_signal(C_P6, VCN, VONE)
        if cfg.yd >= 0 or cfg.hd: lds_signal(C_LC, VCN, VONE)
        if k == cfg.pmin: lds_signal(C_P7, VCN, VONE)
    for name in ("wo", "gate", "up"):
        if name not in signalled: wait_id(max(tiles[name]))
    a("s_waitcnt vmcnt(0)")
    if cfg.stamps == 1:
        stamp(8, VST)
        a(f"s_lshl_b32 s5, s2, 11\ns_lshl_b32 s6, s3, 7\ns_add_u32 s5, s5, s6\ns_add_u32 s5, s5, 0x8000000\nv_lshlrev_b32 v2, 2, v1")
        a(f"s_mov_b32 exec_hi, 0\nbuffer_store_dword v{VST}, v2, {sr(R_WSS,4)}, s5 offen sc1")
    a("s_endpgm")

    a.label("L_cwave")
    a("s_setprio 3")
    R_WS, R_X, R_C, R_OUT = 8, 16, 20, 24
    WV, SMY = 28, 29
    a(f"s_sub_u32 s{WV}, s3, 8\nv_subrev_u32 v0, 512, v0")
    VCN, VONE, VTR, VPUB, VACT, VA, VB, K_X, K_GA, K_GB, VST, K_C1, TAG, TB = 2, 3, 4, 5, 6, 7, 8, 9, 10, 11, 12, 13, 14, 15
    WK = 16
    ACT = WK + 8
    FWO, FG, FU, FD = 40, 72, 104, 136
    a(f"v_mov_b32 v{VCN}, {L_CNT}\nv_mov_b32 v{VONE}, 1\nv_mov_b32 v{WK}, 0")
    a(f"v_lshlrev_b32 v{WK+1}, 2, v1\nv_add_u32 v{WK+1}, {L_CNT}, v{WK+1}\nds_write_b32 v{WK+1}, v{WK}")
    for i in range(4): a(f"v_mov_b32 v{WK+4+i}, -1")
    for base in (L_HHV, L_OV, L_AT, L_AT + 320): a(f"ds_write_b32 v{WK+1}, v{WK+4} offset:{base - L_CNT}")
    a(f"s_mul_i32 s{SMY}, s2, {WS}\ns_and_b32 s30, s2, 7\ns_lshr_b32 s31, s2, 3")
    a(f"v_lshlrev_b32 v{VA}, 4, v1\nv_lshlrev_b32 v{VB}, 1, v1\nv_lshlrev_b32 v{WK+1}, 5, v1")
    a(f"s_lshl_b32 s32, s30, 7\ns_lshl_b32 s35, s{WV}, 5\ns_add_u32 s32, s32, s35")
    a("s_waitcnt lgkmcnt(0)")
    srd(R_WS, 104, 0x10000000); srd(R_X, 0, 2048); srd(R_C, 72, 2048); srd(R_OUT, 88, 2048)
    XR = FU
    a(f"s_mov_b32 s5, {EPOCH}\nbuffer_load_dword v{TAG}, off, {sr(R_WS,4)}, s5 sc1")
    a(f"s_lshr_b32 s5, s2, 4\ns_lshl_b32 s5, s5, 7\nbuffer_load_ushort v{WK}, v{VB}, {sr(R_C,4)}, s5 offen")
    a(f"buffer_load_dwordx4 {vr(XR,4)}, v{WK+1}, {sr(R_X,4)}, 0 offen\nbuffer_load_dwordx4 {vr(XR+4,4)}, v{WK+1}, {sr(R_X,4)}, 0 offen offset:16")
    a(f"v_and_b32 v{K_C1}, 7, v1\nv_lshlrev_b32 v{K_C1}, 2, v{K_C1}\nv_bfe_u32 v{WK+2}, v1, 4, 1\nv_lshl_add_u32 v{K_C1}, v{WK+2}, 1, v{K_C1}\nv_lshrrev_b32 v{WK+2}, 5, v1\nv_add_lshl_u32 v{K_C1}, v{K_C1}, v{WK+2}, 1")
    a(f"s_lshl_b32 s5, s32, 1\nbuffer_load_ushort v{K_GA}, v{K_C1}, {sr(R_X,4)}, s5 offen")
    a(f"s_and_b32 s80, s2, 3\ns_lshl_b32 s80, s80, 12\ns_add_u32 s80, s80, {MLA}\ns_and_b32 s81, s2, 0xfc\ns_lshl_b32 s81, s81, 4\ns_add_u32 s81, s81, s80")
    a(f"s_cmp_gt_u32 s{WV}, 1\ns_cbranch_scc1 L_clr_done\ns_cmp_eq_u32 s{WV}, 0\ns_cselect_b32 s5, s{SMY}, s81\ns_cselect_b64 exec, -1, 15")
    a(f"buffer_store_dwordx4 {vr(WK+4,4)}, v{VA}, {sr(R_WS,4)}, s5 offen sc1")
    if cfg.hint or cfg.role == 2:
        a(f"s_mov_b64 exec, 1\nbuffer_store_dword v{WK+4}, off, {sr(R_WS,4)}, s{SMY} offset:{TKT} sc1")
    a.label("L_clr_done")
    if cfg.qm:
        a(f"s_and_b32 s82, s2, 3\ns_lshl_b32 s82, s82, 3\ns_bfe_u32 s5, s2, 0x30003\ns_add_u32 s82, s82, s5\ns_lshl_b32 s83, s82, 8\ns_add_u32 s83, s83, {QF}")
        a(f"s_cmp_lg_u32 s{WV}, 2\ns_cbranch_scc1 L_clq_done\ns_and_b32 s5, s2, 0xc4\ns_cmp_lg_u32 s5, 0xc4\ns_cbranch_scc1 L_clq_done")
        a(f"s_mov_b64 exec, 0xffff\nbuffer_store_dwordx4 {vr(WK+4,4)}, v{VA}, {sr(R_WS,4)}, s83 offen sc1")
        a.label("L_clq_done")
    a("s_mov_b64 exec, -1")
    a("s_barrier")
    if cfg.stamps: a(f"v_mov_b32 v{VST}, 0\nv_writelane_b32 v{VST}, s96, 0")
    a(f"v_lshrrev_b32 v{WK+8}, 4, v1\nv_and_b32 v{WK+9}, 15, v1")
    a(f"v_lshlrev_b32 v{VPUB}, 6, v{WK+9}\nv_lshl_add_u32 v{VPUB}, v{WK+8}, 4, v{VPUB}")
    a(f"v_lshlrev_b32 v{VACT}, 4, v{WK+8}\nv_add_u32 v{VACT}, {L_MISC}, v{VACT}")
    a(f"v_bfe_u32 v{WK+10}, v1, 2, 2\nv_lshl_add_u32 v{WK+11}, v{WK+8}, 3, v{WK+10}\nv_lshlrev_b32 v{VTR}, 8, v{WK+11}")
    a(f"v_and_b32 v{WK+12}, 3, v1\nv_lshl_add_u32 v{VTR}, v{WK+12}, 3, v{VTR}")
    a(f"v_and_b32 v{WK+12}, 1, v{WK+8}\nv_lshl_add_u32 v{WK+12}, v{WK+12}, 2, v{WK+10}\ns_lshl_b32 s5, s{WV}, 1\nv_xor_b32 v{WK+12}, s5, v{WK+12}\nv_lshl_add_u32 v{VTR}, v{WK+12}, 5, v{VTR}")
    a(f"s_mov_b32 s33, {f2u(LOG2E):#x}\ns_mov_b32 s38, 0xffff0000")
    a("s_waitcnt vmcnt(0)")
    lds_signal(C_CLR, VCN, VONE)
    TB0 = 76
    a(f"v_readfirstlane_b32 s5, v{TAG}\ns_add_u32 s6, s5, 0x7f4a7c15\ns_mul_i32 s6, s6, 0x9e3779b1\ns_lshr_b32 s7, s6, 15\ns_xor_b32 s6, s6, s7")
    a("s_mul_i32 s6, s6, 0x85ebca6b\ns_lshr_b32 s7, s6, 13\ns_xor_b32 s6, s6, s7\ns_mul_i32 s6, s6, 0xc2b2ae35\ns_lshr_b32 s7, s6, 16\ns_xor_b32 s6, s6, s7")
    for k in range(4):
        a(f"s_and_b32 s7, s6, {0xff << (8*k):#x}\ns_cselect_b32 s7, 0, {0x5b << (8*k):#x}\ns_or_b32 s6, s6, s7")
    a("s_xor_b32 s5, s5, s6")
    for k in range(4): a(f"s_bfe_u32 s{TB0+k}, s5, {(8 << 16) | (8*k):#x}")
    a(f"v_mov_b32 v{TAG}, s5")
    stamp(1, VST)
    c_ = WK
    lo2 = LOG2E - struct.unpack("<f", struct.pack("<f", LOG2E))[0]
    a(f"v_lshlrev_b32 v{c_}, 16, v{c_}")
    a(f"v_max_f32 v{WK+13}, {f2u(-87.0):#x}, v{c_}\nv_min_f32 v{WK+13}, {f2u(100.0):#x}, v{WK+13}")
    a(f"v_mul_f32 v{WK+1}, s33, v{WK+13}\nv_fma_f32 v{WK+2}, v{WK+13}, s33, -v{WK+1}\nv_mov_b32 v{WK+3}, {f2u(lo2):#x}\nv_fmac_f32 v{WK+2}, v{WK+13}, v{WK+3}")
    a(f"v_exp_f32 v{WK+1}, -v{WK+1}\nv_mul_f32 v{WK+2}, {f2u(-0.6931471805599453):#x}, v{WK+2}")
    a(f"v_fma_f32 v{WK+1}, v{WK+1}, v{WK+2}, v{WK+1}\nv_add_f32 v{WK+1}, 1.0, v{WK+1}")
    a(f"v_rcp_f32 v{WK+2}, v{WK+1}\nv_mul_f32 v{WK+3}, v{c_}, v{WK+2}\nv_fma_f32 v{WK+13}, -v{WK+3}, v{WK+1}, v{c_}\nv_fmac_f32 v{WK+3}, v{WK+13}, v{WK+2}")
    rnd(WK + 3, WK + 3)
    a(f"s_lshl_b32 s5, s{WV}, 7\ns_add_u32 s6, s5, {L_SIL}\nv_add_u32 v{WK+1}, s6, v{VB}\nds_write_b16_d16_hi v{WK+1}, v{WK+3}")
    a(f"v_add_u32 v{WK+1}, s5, v{VACT}\ns_waitcnt lgkmcnt(0)\nds_read_b128 {vr(ACT,4)}, v{WK+1} offset:{L_SIL-L_MISC}\nds_read_b128 {vr(ACT+4,4)}, v{WK+1} offset:{L_SIL-L_MISC+64}")

    def den_from_var(v, rden):
        rnd(v, v); a(f"v_add_f32 v{v}, {f2u(1e-5):#x}, v{v}"); rnd(v, v)
        a(f"v_sqrt_f32 v{v}, v{v}"); rnd(v, v)
        a(f"v_rcp_f32 v{rden}, v{v}")
    def ln_stats(X, mean_b, rden, t0):
        p1, p2, u1 = t0, t0 + 2, t0 + 4
        a(f"v_readfirstlane_b32 s36, v{X}\ns_mov_b32 s37, s36")
        for i in range(0, 16, 2): a(f"v_pk_add_f32 {vr(X+i,2)}, {vr(X+i,2)}, s[36:37] neg_lo:[0,1] neg_hi:[0,1]")
        a(f"v_pk_mul_f32 {vr(p2,2)}, {vr(X,2)}, {vr(X,2)}\nv_pk_add_f32 {vr(p1,2)}, {vr(X,2)}, {vr(X+2,2)}")
        a(f"v_pk_fma_f32 {vr(p2,2)}, {vr(X+2,2)}, {vr(X+2,2)}, {vr(p2,2)}")
        for i in range(4, 16, 2):
            a(f"v_pk_add_f32 {vr(p1,2)}, {vr(p1,2)}, {vr(X+i,2)}\nv_pk_fma_f32 {vr(p2,2)}, {vr(X+i,2)}, {vr(X+i,2)}, {vr(p2,2)}")
        a(f"v_add_f32 v{p1}, v{p1}, v{p1+1}\nv_add_f32 v{p2}, v{p2}, v{p2+1}")
        a(f"v_permlane32_swap_b32 v{p1}, v{p2}\nv_add_f32 v{p1}, v{p1}, v{p2}")
        xreduce("v_add_f32", p1, u1, (16, 8, 4, 2, 1))
        a(f"v_mul_f32 v{p1}, {f2u(1.0/1024):#x}, v{p1}\nv_mov_b32 v{p2}, v{p1}\nv_permlane32_swap_b32 v{p1}, v{p2}")
        a(f"v_fma_f32 v{p2}, -v{p1}, v{p1}, v{p2}\nv_add_f32 v{p1}, s36, v{p1}\nv_max_f32 v{p2}, 0, v{p2}")
        rnd(mean_b, p1); den_from_var(p2, rden)
    XU = XR + 8
    for i in range(8):
        a(f"v_lshlrev_b32 v{XU+2*i}, 16, v{XR+i}\nv_and_b32 v{XU+2*i+1}, 0xffff0000, v{XR+i}")
    ln_stats(XU, WK, WK + 1, WK + 2)
    LN1 = K_GA
    a(f"v_lshlrev_b32 v{LN1}, 16, v{LN1}")
    a(f"v_sub_f32 v{LN1}, v{LN1}, v{WK}"); rnd(LN1, LN1); a(f"v_mul_f32 v{LN1}, v{LN1}, v{WK+1}"); rnd(LN1, LN1)
    lds_wait(C_CLR, 4, WK + 1, VCN, sleep=0)

    if True:
        a(f"s_getreg_b32 s14, hwreg(HW_REG_XCC_ID)\ns_cmp_lg_u32 s{WV}, 1\ns_cbranch_scc1 L_xc_done")
        a(f"v_mov_b32 v{WK}, s14\nv_mov_b32 v{WK+1}, v{TAG}\ns_lshl_b32 s5, s30, 8\ns_and_b32 s6, s2, 0xf8\ns_add_u32 s5, s5, s6\ns_add_u32 s5, s5, {XCP}\ns_mov_b64 exec, 1\nbuffer_store_dwordx2 {vr(WK,2)}, off, {sr(R_WS,4)}, s5 sc1\ns_mov_b64 exec, -1")
        a.label("L_xc_done")
    def tr_read(dst, vaddr, nkk, rs, base=0):
        for kk in range(nkk):
            for q in range(2):
                a(f"ds_read_b64_tr_b16 {vr(dst + kk*4 + 2*q, 2)}, v{vaddr} offset:{base + (32 * kk + 4 * q) * rs}")
    def tr_tile(dst, base, nkk, t0):
        a(f"v_add_u32 v{t0}, {base}, v{VTR}\nv_xor_b32 v{t0+1}, 32, v{t0}")
        tr_read(dst, t0, nkk, 256); tr_read(dst + 4 * nkk, t0 + 1, nkk, 256)
    MASKC = [0x0001000100010001 << i for i in range(4)]
    def mfma(d, x, y, first): a(f"v_mfma_f32_16x16x32_bf16 {vr(d,4)}, {vr(x,4)}, {vr(y,4)}, {'0' if first else vr(d,4)}")
    BT = WK + 7
    def tagit(d, s, k): a(f"v_and_or_b32 v{d}, v{s}, v{BT}, s{TB0+k}")
    def gemv_pub(frs, nkk, dacc, out, off, tagged=True):
        n = len(frs)
        a(f"s_mul_i32 s5, s{WV}, {n*64}\ns_add_u32 s5, s5, s{SMY}\ns_add_u32 s5, s5, {off}")
        def fin(cg):
            setexec(MASKC[cg])
            for i in range(4):
                if tagged: tagit(out + i, dacc + 4 * cg + i, i)
                else: a(f"v_mov_b32 v{out+i}, v{dacc+4*cg+i}")
        lag = 2 if nkk == 2 else 1
        for cg in range(n + lag):
            if cg < n:
                if cg > lag: a("s_mov_b64 exec, -1")
                for kk in range(nkk): mfma(dacc + 4 * cg, frs[cg] + 4 * kk, ACT + 4 * kk, kk == 0)
            if cg >= lag: fin(cg - lag)
        setexec(sum(MASKC[:n]))
        a(f"buffer_store_dwordx4 {vr(out,4)}, v{VPUB}, {sr(R_WS,4)}, s5 offen sc1\ns_mov_b64 exec, -1")
    deferred = []
    def gather(loads, t0, kind="sent", tags=None, masked=True, between=None, acc=None):
        L = a.newlabel("L_g"); Ld = a.newlabel("L_gd"); Lc = a.newlabel("L_gc")
        PM = 40
        def ld(dst, wd, va, so):
            if so: a(f"s_mov_b32 s5, {so}")
            a(f"buffer_load_dword{'' if wd == 1 else 'x'+str(wd)} {vr(dst,wd)}, v{va}, {sr(R_WS,4)}, {'s5' if so else '0'} offen sc1")
        op3, op2 = ("v_max3_u32", "v_max_u32") if kind == "sent" else ("v_or3_b32", "v_or_b32")
        def tree(regs_):
            if len(regs_) == 1: return regs_[0]
            if len(regs_) == 2: a(f"{op2} v{t0}, v{regs_[0]}, v{regs_[1]}"); return t0
            a(f"{op3} v{t0}, v{regs_[0]}, v{regs_[1]}, v{regs_[2]}")
            rest = regs_[3:]
            while rest:
                if len(rest) >= 2: a(f"{op3} v{t0}, v{t0}, v{rest[0]}, v{rest[1]}"); rest = rest[2:]
                else: a(f"{op2} v{t0}, v{t0}, v{rest[0]}"); rest = []
            return t0
        def test(dst_s, r_):
            if kind == "sent": a(f"v_cmp_eq_u32 {dst_s}, -1, v{r_}")
            else: a(f"v_and_b32 v{t0}, 0xff, v{r_}\nv_cmp_ne_u32 {dst_s}, 0, v{t0}")
        def untag(dst, wd):
            for x in range(dst, dst + wd): a(f"v_xor_b32 v{x}, s{TB0 + x - dst}, v{x}")
        def accum(i):
            if acc is None or i == 0: return
            x = loads[0][0] if i == 1 else acc
            for h in (2, 0): a(f"v_pk_add_f32 {vr(acc+h,2)}, {vr(x+h,2)}, {vr(loads[i][0]+h,2)}")
        if not masked: a.label(L)
        for (dst, wd, va, so, em) in loads:
            if em is not None: setexec(em)
            ld(dst, wd, va, so)
            if em is not None: a("s_mov_b64 exec, -1")
        if between: between()
        if not masked: budget_check()
        if kind == "tag":
            a(f"s_waitcnt vmcnt(0)\ns_branch {Lc}")
        else:
            for i, (dst, wd, va, so, em) in enumerate(loads):
                a(f"s_waitcnt vmcnt({len(loads)-1-i})")
                if kind == "byte":
                    if em is not None: setexec(em)
                    untag(dst, wd)
                    if em is not None: a("s_mov_b64 exec, -1")
                r_ = tree(([t0] if i else []) + list(range(dst, dst + wd)))
                assert r_ == t0
                if i < len(loads) - 1: accum(i)
            test("vcc", t0)
            accum(len(loads) - 1)
            a(f"s_cbranch_vccnz {Lc if masked else L}")
            if not masked: return
        a.label(Ld)
        def retry():
            a.label(L)
            budget_check()
            for i, (dst, wd, va, so, em) in enumerate(loads):
                sk = a.newlabel("L_gs")
                a(f"s_mov_b64 exec, {sr(PM+2*i,2)}\ns_cbranch_execz {sk}")
                ld(dst, wd, va, so)
                a.label(sk)
            a("s_waitcnt vmcnt(0)")
            if kind == "byte":
                for i, (dst, wd, va, so, em) in enumerate(loads):
                    a(f"s_mov_b64 exec, {sr(PM+2*i,2)}"); untag(dst, wd)
            a("s_mov_b64 exec, -1")
            a.label(Lc)
            for i, (dst, wd, va, so, em) in enumerate(loads):
                if kind == "tag": a(f"v_cmp_ne_u32 {sr(PM+2*i,2)}, v{tags[i]}, v{TAG}")
                else: test(sr(PM + 2 * i, 2), tree(list(range(dst, dst + wd))))
            a(f"s_mov_b64 s[6:7], {sr(PM,2)}")
            for i in range(1, len(loads)): a(f"s_or_b64 s[6:7], s[6:7], {sr(PM+2*i,2)}")
            a(f"s_cmp_lg_u64 s[6:7], 0\ns_cbranch_scc1 {L}")
            for i in range(len(loads)): accum(i)
            a(f"s_nop 1\ns_branch {Ld}")
        deferred.append(retry)
    def tree_sum(base, n, stride=1):
        idx = [base + i * stride for i in range(n)]
        while len(idx) > 1:
            nx = []
            for i in range(0, len(idx) - 1, 2):
                a(f"v_add_f32 v{idx[i]}, v{idx[i]}, v{idx[i+1]}"); nx.append(idx[i])
            if len(idx) & 1: nx.append(idx[-1])
            idx = nx
    def pk_sum4(base, n):
        idx = [base + 4 * i for i in range(n)]
        while len(idx) > 1:
            nx = []
            for i in range(0, len(idx) - 1, 2):
                for h in (0, 2): a(f"v_pk_add_f32 {vr(idx[i]+h,2)}, {vr(idx[i]+h,2)}, {vr(idx[i+1]+h,2)}")
                nx.append(idx[i])
            if len(idx) & 1: nx.append(idx[-1])
            idx = nx
    def col_reduce(b):
        a(f"v_permlane32_swap_b32 v{b}, v{b+1}\nv_permlane32_swap_b32 v{b+2}, v{b+3}\nv_add_f32 v{b}, v{b}, v{b+1}\nv_add_f32 v{b+2}, v{b+2}, v{b+3}")
        a(f"v_permlane16_swap_b32 v{b}, v{b+2}\nv_add_f32 v{b}, v{b}, v{b+2}\nv_add_f32_dpp v{b}, v{b}, v{b} row_ror:8 {DPPF}")
    VCHK = 0
    def xch_read(lbase, nkk, t0, vact, two=False):
        L = a.newlabel("L_x"); Ld = a.newlabel("L_xd")
        a.label(L)
        a(f"ds_read_b32 v{t0}, v{VCHK} offset:{lbase - L_MISC}")
        if two: a(f"ds_read_b32 v{t0+1}, v{VCHK} offset:{lbase - L_MISC + 320}")
        for kk in range(nkk): a(f"ds_read_b128 {vr(ACT+4*kk,4)}, v{vact} offset:{lbase - L_MISC + kk*64}")
        a(f"s_waitcnt lgkmcnt({nkk})")
        if two: a(f"v_pk_max_u16 v{t0}, v{t0}, v{t0+1}")
        a(f"v_cmp_eq_u16 vcc, -1, v{t0}\nv_cmp_le_u32 s[6:7], s38, v{t0}\ns_or_b64 s[6:7], s[6:7], vcc")
        if nkk == 2: a("s_cmp_lg_u32 s6, 0")
        a(f"s_cbranch_scc0 {Ld}")
        budget_check()
        a(f"s_branch {L}")
        a.label(Ld)
        a("s_waitcnt lgkmcnt(0)")

    def bal_run(limit):
        Lb = a.newlabel("L_bal"); Le = a.newlabel("L_bale")
        a(f"s_cmp_lg_u32 s{WV}, 3\ns_cbranch_scc1 {Le}")
        h = FWO
        a(f"s_mul_i32 s36, s30, {WS}\ns_add_u32 s36, s36, {BRD}\ns_lshr_b32 s37, s2, 3\ns_lshl_b32 s37, s37, 2\ns_add_u32 s37, s37, s36")
        a(f"v_lshlrev_b32 v{h}, 2, v1\nv_lshlrev_b32 v{h+1}, 10, v{TAG}")
        a.label(Lb)
        a(f"ds_read_b32 v{h+2}, v{VCN} offset:{C_T*4}\ns_waitcnt lgkmcnt(0)\nv_readfirstlane_b32 s41, v{h+2}\ns_sub_u32 s41, s41, s39")
        a(f"v_or_b32 v{h+2}, s41, v{h+1}\ns_mov_b64 exec, 1\nbuffer_store_dword v{h+2}, off, {sr(R_WS,4)}, s37")
        a(f"s_mov_b64 exec, -1\ns_cmp_ge_u32 s41, {limit}\ns_cbranch_scc1 {Le}")
        a(f"s_mov_b32 exec_hi, 0\nbuffer_load_dword v{h+3}, v{h}, {sr(R_WS,4)}, s36 offen sc1\ns_mov_b64 exec, -1")
        budget_check()
        a(f"s_waitcnt vmcnt(0)\nv_xor_b32 v{h+3}, v{h+3}, v{h+1}\nv_cmp_gt_u32 vcc, 1024, v{h+3}\nv_cndmask_b32 v{h+3}, 0, v{h+3}, vcc")
        xreduce("v_add_u32", h + 3, h + 4, (1, 2, 4, 8, 16))
        a(f"v_readfirstlane_b32 s42, v{h+3}\ns_lshr_b32 s42, s42, 5\ns_sub_u32 s42, s42, s41\ns_sub_u32 s43, s42, s39\ns_mov_b32 s39, s42")
        a(f"v_mov_b32 v{h+2}, s43\ns_mov_b64 exec, 1\nds_add_u32 v{VCN}, v{h+2} offset:{C_T*4}\ns_mov_b64 exec, -1\ns_branch {Lb}")
        a.label(Le)
    a("s_mov_b32 s39, 0")
    def mod_tile(t, cnt):
        lds_wait(cnt, 8, WK, VCN)
        tr_tile(FU, L_MOD + t * 16384, 2, WK + 4)
        a("s_waitcnt lgkmcnt(0)")
        gemv_pub([FU, FU + 8], 2, FU + 16, FU + 24, MODP + (t - 1) * 512 if t else HP, tagged=bool(t))
    mod_tile(0, C_CRIT)
    a(f"v_mov_b32 v{BT}, 0xffffff00")
    stamp(2, VST)
    a(f"v_lshrrev_b32 v{WK}, 3, v1\nv_mul_u32_u24 v{VA}, {16*WS}, v{WK}\nv_and_b32 v{WK}, 7, v1\nv_lshl_add_u32 v{VA}, v{WK}, 4, v{VA}")
    a(f"s_mul_i32 s5, s30, {WS}\ns_lshl_b32 s7, s{WV}, 7\ns_add_u32 s5, s5, s7\nv_add_u32 v{VA}, s5, v{VA}")
    if cfg.qm:
        a(f"v_lshl_add_u32 v{TB}, v1, 3, s30\nv_and_b32 v{WK}, 7, v1\ns_and_b32 s5, s2, 3\ns_add_u32 s5, s5, 196\ns_lshl_b32 s6, s82, 3")
        a(f"s_mov_b32 exec_lo, 0\nv_lshl_add_u32 v{TB}, v{WK}, 3, s5\ns_mov_b32 exec_hi, 0xff\nv_add_u32 v{TB}, s6, v{WK}\ns_mov_b64 exec, -1")
    else:
        a(f"v_lshl_add_u32 v{TB}, v1, 3, s30\ns_and_b32 s5, s2, 3\ns_lshl_b32 s5, s5, 6\ns_lshl_b32 s6, s{WV}, 4\ns_add_u32 s5, s5, s6\nv_and_b32 v{WK}, 15, v1")
        a(f"s_mov_b32 exec_lo, 0\nv_add_u32 v{TB}, s5, v{WK}\ns_mov_b32 exec_lo, -1")
    a(f"v_and_b32 v{WK}, 7, v{TB}\nv_and_b32 v{TB}, 0xf8, v{TB}\nv_lshl_add_u32 v{TB}, v{WK}, 8, v{TB}")
    lds_wait(C_WQ, 8, WK + 4, VCN)
    tr_tile(FD, L_WQ, 4, WK + 4)
    mod_tile(1, C_MOD1)
    mod_tile(2, C_MOD2)
    stamp(3, VST)
    gather([(FG, 2, TB, XCP, None)], WK, kind="tag", tags=[FG + 1])
    a(f"v_cmp_ne_u32 vcc, s14, v{FG}\ns_cmp_eq_u32 vcc_lo, 0\ns_cselect_b32 s15, 1, 0")
    if cfg.balk: bal_run(8 * (cfg.p1 - cfg.hl))
    lds_wait(C_P1, 8, WK + 4, VCN)
    stamp(4, VST)
    gather([(FU + 4 * i, 4, VA, HP + (i >> 1) * 8 * WS + (i & 1) * 128 * WS, None) for i in range(4)], WK)
    stamp(5, VST)
    pk_sum4(FU, 2); pk_sum4(FU + 8, 2); col_reduce(FU); col_reduce(FU + 8)
    rnd(FU, FU); rnd(FU + 8, FU + 8)
    a(f"v_add_f32 v{FU+8}, 1.0, v{FU+8}"); rnd(FU + 8, FU + 8)
    a(f"v_mul_f32 v{LN1}, v{LN1}, v{FU+8}"); rnd(LN1, LN1); a(f"v_add_f32 v{LN1}, v{LN1}, v{FU}"); rnd(LN1, LN1)
    a(f"s_lshl_b32 s5, s{WV}, 6\ns_add_u32 s5, s5, {L_HV}\nv_add_u32 v{VB}, s5, v{K_C1}")
    a(f"ds_write_b16_d16_hi v{VB}, v{LN1}\ns_waitcnt lgkmcnt(0)")
    lds_signal(C_H, VCN, VONE)
    lds_wait(C_H, 4, WK, VCN, sleep=0)
    for kk in range(4): a(f"ds_read_b128 {vr(ACT+4*kk,4)}, v{VACT} offset:{L_HV - L_MISC + kk*64}")
    a("s_waitcnt lgkmcnt(0)")
    gemv_pub([FD, FD + 16], 4, FU, FU + 8, QP, tagged=False)
    stamp(6, VST)
    if cfg.qm:
        a(f"s_and_b32 s5, s2, 0xc4\ns_cmp_lg_u32 s5, 0xc4\ns_cbranch_scc1 L_qm_done")
        a(f"v_lshrrev_b32 v{WK}, 3, v1\nv_mul_u32_u24 v{VA}, {WS}, v{WK}\nv_and_b32 v{WK+1}, 7, v1\nv_lshl_add_u32 v{VA}, v{WK+1}, 4, v{VA}\nv_lshlrev_b32 v{WK+1}, 3, v{WK+1}")
        a(f"s_mul_i32 s5, s82, {8*WS}\ns_lshl_b32 s6, s{WV}, 7\ns_add_u32 s5, s5, s6\nv_add_u32 v{VA}, s5, v{VA}\ns_lshl_b32 s6, s{WV}, 6\ns_add_u32 s83, s83, s6")
        lds_wait(C_PM, 8, WK + 4, VCN)
        gather([(FG, 4, VA, QP, None)], WK)
        for e in range(4): xreduce("v_add_f32", FG + e, FG + 4 + e, (8, 16, 32))
        a(f"v_cvt_pk_bf16_f32 v{FG}, v{FG}, v{FG+1}\nv_cvt_pk_bf16_f32 v{FG+1}, v{FG+2}, v{FG+3}")
        a(f"s_mov_b64 exec, 0xff\nbuffer_store_dwordx2 {vr(FG,2)}, v{WK+1}, {sr(R_WS,4)}, s83 offen sc1\ns_mov_b64 exec, -1")
        a.label("L_qm_done")
        a(f"s_and_b32 s5, s2, 3\ns_lshl_b32 s5, s5, 11\nv_lshlrev_b32 v{WK+2}, 3, v0\nv_add_u32 v{VA}, s5, v{WK+2}\nv_add_u32 v{WK+2}, {L_QV}, v{WK+2}")
        lds_wait(C_P2, 8, WK + 4, VCN)
        stamp(20, VST)
        gather([(FG + 8, 2, VA, QF, None)], WK)
        stamp(7, VST)
        a(f"ds_write_b64 v{WK+2}, {vr(FG+8,2)}\ns_waitcnt lgkmcnt(0)")
    else:
        a(f"s_and_b32 s5, s2, 3\ns_lshl_b32 s5, s5, 3\nv_lshrrev_b32 v{WK+4}, 5, v0\nv_add_u32 v{WK+4}, s5, v{WK+4}\nv_mul_u32_u24 v{VA}, {8*WS}, v{WK+4}")
        a(f"v_and_b32 v{WK+4}, 31, v0\nv_lshl_add_u32 v{VA}, v{WK+4}, 4, v{VA}")
        a(f"v_lshlrev_b32 v{WK+2}, 3, v0\nv_add_u32 v{WK+2}, {L_QV}, v{WK+2}")
        if cfg.balk: bal_run(8 * (cfg.p2 - cfg.hl))
        lds_wait(C_P2, 8, WK + 4, VCN)
        stamp(20, VST)
        gather([(FG + 4 * i, 4, VA, QP + i * WS, None) for i in range(1 if cfg.dbgh & 2 else 8)], WK)
        if cfg.dbgh & 2:
            for i in range(4, 32): a(f"v_mov_b32 v{FG+i}, 0")
        stamp(7, VST)
        pk_sum4(FG, 8)
        a(f"v_cvt_pk_bf16_f32 v{WK}, v{FG}, v{FG+1}\nv_cvt_pk_bf16_f32 v{WK+1}, v{FG+2}, v{FG+3}")
        a(f"ds_write_b64 v{WK+2}, {vr(WK,2)}\ns_waitcnt lgkmcnt(0)")
    lds_signal(C_Q, VCN, VONE)
    a(f"s_add_u32 s5, s2, s{WV}\ns_cmp_lg_u32 s5, 0\ns_cbranch_scc1 L_ep_done")
    a(f"s_mov_b32 s5, {EPOCH}\ns_mov_b64 exec, 1\nbuffer_store_dword v{TAG}, off, {sr(R_WS,4)}, s5 sc1\ns_mov_b64 exec, -1")
    a.label("L_ep_done")
    ROLE, RBF, SFY, VAW = 31, 12, 13, WK + 6
    def role_make():
        a(f"s_cmp_lg_u32 s{WV}, 1\ns_cbranch_scc1 L_role_done")
        if cfg.role == 2:
            lds_wait(C_P4, 8, WK, VCN, sleep=2)
            a(f"s_mul_i32 s5, s30, {WS}\ns_add_u32 s5, s5, {TKT}\nv_mov_b32 v{WK}, 1\ns_mov_b64 exec, 1")
            a(f"buffer_atomic_add v{WK}, off, {sr(R_WS,4)}, s5 sc0 sc1\ns_waitcnt vmcnt(0)\nv_readfirstlane_b32 s36, v{WK}\ns_add_u32 s36, s36, 1")
        if cfg.role == 0: a("s_mov_b32 s5, s2")
        else:
            if cfg.role == 1: a("s_lshr_b32 s36, s2, 3")
            a("s_lshr_b32 s6, s36, 3\ns_mul_i32 s5, s30, 3\ns_add_u32 s5, s5, s6\ns_add_u32 s7, s30, 24\ns_cmp_lt_u32 s6, 3\ns_cselect_b32 s5, s5, s7")
            a("s_cmp_lt_u32 s6, 4\ns_cselect_b32 s5, s5, 28\ns_lshl_b32 s5, s5, 3\ns_and_b32 s6, s36, 7\ns_add_u32 s5, s5, s6")
        a(f"s_add_u32 s5, s5, 1\nv_mov_b32 v{WK}, s5\ns_mov_b64 exec, 1\nds_write_b32 v{VCN}, v{WK} offset:{C_ROLE*4}\ns_mov_b64 exec, -1")
        a.label("L_role_done")
    def rest_mod():
        lds_wait(C_ROLE, 1, WK, VCN, sleep=2)
        a(f"s_sub_u32 s{ROLE}, s5, 1")
        a(f"s_and_b32 s{RBF}, s{ROLE}, 7\ns_mul_i32 s{SFY}, s{ROLE}, {WS}\ns_lshl_b32 s32, s{RBF}, 7\ns_lshl_b32 s5, s{WV}, 5\ns_add_u32 s32, s32, s5")
        a(f"s_lshl_b32 s5, s32, 1\nbuffer_load_ushort v{K_X}, v{K_C1}, {sr(R_X,4)}, s5 offen")
        a(f"v_lshrrev_b32 v{WK}, 3, v1\nv_mul_u32_u24 v{WK+1}, {WS}, v{WK}\nv_and_b32 v{WK+2}, 7, v1\nv_lshlrev_b32 v{WK+2}, 4, v{WK+2}")
        a(f"s_mul_i32 s34, s{RBF}, {WS}\ns_lshl_b32 s6, s{WV}, 7\ns_add_u32 s34, s34, s6")
        a(f"s_lshl_b32 s5, s32, 4\nv_lshl_add_u32 v{VA}, v{K_C1}, 3, s5")
        gather([(FG, 4, VA, MODF, None)], WK, kind="byte")
        a(f"v_and_b32 v{WK+3}, 8, v1\nv_mul_u32_u24 v{WK+3}, 40, v{WK+3}\ns_lshl_b32 s5, s{WV}, 6\ns_add_u32 s5, s5, {L_AT}\nv_add3_u32 v{VAW}, v{WK+3}, v{K_C1}, s5")
        a(f"v_mov_b32 v{TB}, v{K_C1}")
        a(f"v_mov_b32 v{K_GA}, v{FG}\nv_mov_b32 v{K_GB}, v{FG+3}\nv_add_f32 v{K_C1}, 1.0, v{FG+2}"); rnd(K_C1, K_C1)
        a(f"v_mov_b32_dpp v{FG+1}, v{K_C1} quad_perm:[0,1,2,3] row_mask:0xf bank_mask:0x3")
        a(f"ds_write_b16_d16_hi v{VAW}, v{FG+1} offset:640")
        stamp(8, VST)
        a(f"v_lshlrev_b32 v{K_X}, 16, v{K_X}")
    role_make()
    a(f"s_cmp_lg_u32 s{WV}, 2\ns_cbranch_scc1 L_modf_done\ns_and_b32 s5, s2, 0xc4\ns_cmp_lg_u32 s5, 0xc4\ns_cbranch_scc1 L_modf_done")
    a(f"s_bfe_u32 s36, s2, 0x30003\ns_and_b32 s37, s2, 3\ns_mul_i32 s5, s36, {WS}\ns_lshl_b32 s6, s37, 7\ns_add_u32 s5, s5, s6")
    a(f"v_lshrrev_b32 v{WK}, 3, v1\nv_mul_u32_u24 v{VA}, {16*WS}, v{WK}\nv_and_b32 v{WK}, 7, v1\nv_lshl_add_u32 v{VA}, v{WK}, 4, v{VA}\nv_add_u32 v{VA}, s5, v{VA}")
    mv = [MODP, MODP + 8 * WS, MODP + 512, MODP + 512 + 8 * WS]
    gather([(FG + 8 * v + 4 * i, 4, VA, mv[v] + i * 128 * WS, None) for v in range(4) for i in range(2)], WK, kind="byte")
    for v in range(4):
        pk_sum4(FG + 8 * v, 2); col_reduce(FG + 8 * v); rnd(FG + 8 * v, FG + 8 * v)
    for v in range(4): tagit(FU + v, FG + 8 * v, v)
    a(f"v_lshlrev_b32 v{WK}, 3, v{K_C1}\ns_lshl_b32 s5, s36, 11\ns_lshl_b32 s6, s37, 9\ns_add_u32 s5, s5, s6\ns_add_u32 s5, s5, {MODF}")
    setexec(0x00ff00ff00ff00ff)
    a(f"buffer_store_dwordx4 {vr(FU,4)}, v{WK}, {sr(R_WS,4)}, s5 offen sc1\ns_mov_b64 exec, -1")
    a.label("L_modf_done")
    a(f"s_cmp_lg_u32 s{WV}, 0\ns_cbranch_scc1 L_ml_pub")
    lds_wait(C_ML, 8, WK, VCN, sleep=2)
    stamp(9, VST)
    a(f"v_lshlrev_b32 v{WK+2}, 3, v1\nv_add_u32 v{WK+3}, {L_MLW}, v{WK+2}\nds_read_b64 {vr(WK,2)}, v{WK+3}\ns_waitcnt lgkmcnt(0)")
    a(f"v_mov_b32 v{WK+4}, v{WK}")
    xreduce("v_max_f32", WK + 4, WK + 6, (8, 16, 32))
    a(f"v_sub_f32 v{WK}, v{WK}, v{WK+4}\nv_mul_f32 v{WK}, s33, v{WK}\nv_exp_f32 v{WK}, v{WK}\nv_mul_f32 v{WK+5}, v{WK}, v{WK+1}")
    xreduce("v_add_f32", WK + 5, WK + 6, (8, 16, 32))
    a(f"s_mov_b64 exec, 0xff\nbuffer_store_dwordx2 {vr(WK+4,2)}, v{WK+2}, {sr(R_WS,4)}, s81 offen sc1\ns_mov_b64 exec, -1")
    a.label("L_ml_pub")
    a(f"s_cmp_lg_u32 s{WV}, 0\ns_cbranch_scc1 L_ml_done")
    a(f"v_lshl_add_u32 v{VA}, v1, 3, s80")
    lds_wait(C_P3, 8, WK, VCN)
    stamp(21, VST)
    gather([(FU + 2 * i, 2, VA, i * 512, None) for i in range(8)], WK)
    m_, r_, t_ = FU + 16, FU + 17, FU + 18
    a(f"v_max3_f32 v{m_}, v{FU}, v{FU+2}, v{FU+4}\nv_max3_f32 v{m_}, v{m_}, v{FU+6}, v{FU+8}\nv_max3_f32 v{m_}, v{m_}, v{FU+10}, v{FU+12}\nv_max_f32 v{m_}, v{m_}, v{FU+14}")
    xreduce("v_max_f32", m_, t_, (8, 16, 32))
    for i in range(8):
        a(f"v_sub_f32 v{FU+2*i}, v{FU+2*i}, v{m_}\nv_mul_f32 v{FU+2*i}, s33, v{FU+2*i}\nv_exp_f32 v{FU+2*i}, v{FU+2*i}")
    for i in range(8): a(f"v_mul_f32 v{FU+2*i}, v{FU+2*i}, v{FU+2*i+1}")
    tree_sum(FU, 8, 2)
    xreduce("v_add_f32", FU, t_, (8, 16, 32))
    a(f"v_rcp_f32 v{r_}, v{FU}")
    a(f"v_lshlrev_b32 v{t_}, 3, v1\nv_add_u32 v{t_}, {L_MLF}, v{t_}\ns_mov_b64 exec, 0xff\nds_write_b64 v{t_}, {vr(m_,2)}\ns_waitcnt lgkmcnt(0)")
    lds_signal(C_MLD, VCN, VONE)
    stamp(10, VST)
    a.label("L_ml_done")
    if cfg.bal >= 2: bal_run(8 * (24 - cfg.D2 - cfg.nq2 + (32 if cfg.balk else 0)))
    lds_wait(C_P3, 8, WK, VCN, sleep=4)
    rest_mod()
    late = lst(cfg.late)
    def ffn_frags(name, t0):
        base, dst, cnt = {"wo": (L_WO, FWO, C_WO), "gate": (L_GATE, FG, C_GATE), "up": (L_UP, FU, C_UP), "dn": (L_DN, FD, None)}[name]
        if cnt is not None: lds_wait(cnt, 8, t0, VCN, sleep=0 if name in late else 2)
        tr_tile(dst, base, 4, t0)
    if "wo" not in late: ffn_frags("wo", WK + 3)
    for name in ("gate", "up"):
        if name not in late: ffn_frags(name, WK + 3)
    A_OS, A_OG, A_XW = ACT + 8, ACT + 9, ACT + 10
    A_A = WK + 5
    assert all(t in late for t in ("gate", "up"))
    if cfg.ared:
        a(f"s_and_b32 s5, s2, 3\ns_mul_i32 s5, s5, {WS}\ns_lshl_b32 s6, s{RBF}, 9\ns_add_u32 s5, s5, s6\ns_lshl_b32 s7, s{WV}, 7\ns_add_u32 s5, s5, s7")
    else:
        a(f"s_lshr_b32 s5, s2, 6\ns_mul_i32 s5, s5, {WS}\ns_lshl_b32 s6, s30, 9\ns_add_u32 s5, s5, s6\ns_lshl_b32 s7, s{WV}, 7\ns_add_u32 s5, s5, s7")
    a(f"v_lshl_add_u32 v{A_A}, v{WK+1}, 2, v{WK+2}\nv_add_u32 v{A_A}, s5, v{A_A}")
    a(f"s_mul_i32 s5, s{RBF}, {8*WS}\ns_add_u32 s5, s5, s7\nv_add3_u32 v{VA}, v{WK+1}, v{WK+2}, s5")
    a(f"v_lshl_add_u32 v{WK+1}, v{WK+1}, 3, v{WK+2}\nv_add_u32 v{WK+1}, s34, v{WK+1}")
    a(f"s_and_b32 s5, s{ROLE}, 0xf8\ns_mul_i32 s5, s5, {WS}\ns_lshl_b32 s6, s{WV}, 8\ns_add_u32 s5, s5, s6\nv_lshrrev_b32 v{WK}, 4, v1\nv_mul_u32_u24 v{WK}, {WS}, v{WK}")
    a(f"v_and_b32 v{WK+2}, 15, v1\nv_lshlrev_b32 v{WK+2}, 4, v{WK+2}\nv_add3_u32 v{WK+2}, v{WK}, v{WK+2}, s5")
    A_Y, A_Z, A_E = VA, WK + 1, WK + 2
    a(f"v_lshrrev_b32 v{WK}, 4, v1\nv_and_b32 v{WK+3}, 15, v1\nv_lshlrev_b32 v{A_OS}, 10, v{WK}\nv_lshl_add_u32 v{A_OS}, v{WK+3}, 4, v{A_OS}")
    a(f"s_lshl_b32 s5, s{WV}, 8\ns_add_u32 s5, s5, {L_OS}\nv_add_u32 v{A_OS}, s5, v{A_OS}")
    a(f"v_and_b32 v{A_OG}, 7, v1\nv_lshlrev_b32 v{A_OG}, 9, v{A_OG}\nv_lshl_add_u32 v{A_OG}, v{WK}, 4, v{A_OG}\nv_and_b32 v{WK+3}, 8, v1\nv_lshl_add_u32 v{A_OG}, v{WK+3}, 3, v{A_OG}")
    a(f"s_lshl_b32 s37, s{WV}, 7\ns_add_u32 s37, s37, s{SMY}\ns_add_u32 s37, s37, {OP}")
    a(f"v_and_b32 v{WK+3}, 7, v1\nv_bfe_u32 v{WK+4}, v1, 4, 1\nv_lshl_add_u32 v{WK+3}, v{WK+4}, 4, v{WK+3}\nv_lshrrev_b32 v{WK+4}, 5, v1\nv_lshl_add_u32 v{WK+3}, v{WK+4}, 3, v{WK+3}")
    if cfg.ared: a(f"s_lshl_b32 s5, s{WV}, 7\ns_add_u32 s5, s5, {L_RV}\nv_lshl_add_u32 v{A_XW}, v{WK+3}, 1, s5\nv_readfirstlane_b32 s33, v{TAG}")
    else: a(f"s_lshl_b32 s5, s{WV}, 6\ns_add_u32 s5, s5, {L_OV}\nv_lshl_add_u32 v{A_XW}, v{WK+3}, 1, s5")
    a(f"v_lshlrev_b32 v{VCHK}, 2, v1\nv_add_u32 v{VCHK}, {L_MISC}, v{VCHK}")
    def e_preread(t):
        a(f"v_lshlrev_b32 v{t}, 7, v1\ns_lshl_b32 s5, s{WV}, 8\ns_add_u32 s5, s5, s{SFY}\ns_add_u32 s5, s5, {GUP}\ns_mov_b64 exec, 7")
        a(f"buffer_load_dword v{t}, v{t}, {sr(R_WS,4)}, s5 offen sc1\ns_mov_b64 exec, -1")
    if cfg.warm:
        a(f"s_getpc_b64 s[6:7]\ns_lshl_b32 s5, s{WV}, 11\nv_lshlrev_b32 v{WK+4}, 7, v1\nv_add_u32 v{WK+4}, s5, v{WK+4}\ns_mov_b64 exec, 0xffff")
        a(f"global_load_dword v{WK+3}, v{WK+4}, s[6:7]\ns_mov_b64 exec, -1")
    a(f"v_readfirstlane_b32 s35, v{TAG}\ns_lshl_b32 s35, s35, 10\ns_or_b32 s35, s35, {8 * (24 - cfg.D2 - cfg.nq2 + (32 if cfg.balk else 0)) + 1}")
    if cfg.zt:
        a(f"s_lshl_b32 s5, s{WV}, 7\ns_add_u32 s5, s5, s{SFY}\ns_add_u32 s5, s5, {ZP}\ns_mov_b64 exec, 1\nbuffer_load_dword v{TAG}, off, {sr(R_WS,4)}, s5 sc1\ns_mov_b64 exec, -1")
    if cfg.ot & 1:
        a(f"v_lshlrev_b32 v{WK+4}, 7, v1\ns_lshl_b32 s5, s{WV}, 10\ns_add_u32 s5, s5, s{SMY}\ns_add_u32 s5, s5, {OP}\ns_mov_b64 exec, 0xff\nbuffer_load_dword v{TAG}, v{WK+4}, {sr(R_WS,4)}, s5 offen sc1\ns_mov_b64 exec, -1")
    if cfg.ot & 2:
        a(f"s_lshl_b32 s5, s{WV}, 7\ns_add_u32 s5, s5, s{SMY}\ns_add_u32 s5, s5, {YP}\ns_mov_b64 exec, 1\nbuffer_load_dword v{TAG}, off, {sr(R_WS,4)}, s5 sc1\ns_mov_b64 exec, -1")
    if cfg.elocal and cfg.epre == 1: e_preread(WK + 3); a("s_waitcnt vmcnt(0)")
    h = FG
    def cd_mark():
        a(f"s_mul_i32 s36, s30, {WS}\ns_add_u32 s36, s36, {BRD}\ns_lshr_b32 s5, s2, 3\ns_lshl_b32 s5, s5, 2\ns_add_u32 s5, s5, s36")
        a(f"v_lshlrev_b32 v{h}, 2, v1\nv_mov_b32 v{h+1}, s35\nv_mov_b32 v{h+4}, 8\ns_mov_b64 exec, 1\nbuffer_store_dword v{h+1}, off, {sr(R_WS,4)}, s5\ns_mov_b32 exec_lo, -1")
    def hint_mark(early):
        a(f"s_cmp_lg_u32 s{WV}, 3\ns_cbranch_scc1 L_hm_done")
        if early: lds_wait(C_P8, 8, WK, VCN)
        if cfg.hint == 3: a("s_waitcnt vmcnt(0)"); stamp(30, VST)
        a(f"s_mul_i32 s5, s30, {WS}\ns_add_u32 s5, s5, {TKT}\nv_mov_b32 v{h}, 1\nv_mul_u32_u24 v{h+1}, {WS}, v1\nv_mov_b32 v{h+2}, s35\ns_mov_b64 exec, 1")
        a(f"buffer_atomic_add v{h}, off, {sr(R_WS,4)}, s5 sc0 sc1\ns_mov_b64 exec, -1")
        a(f"s_and_b32 s36, s2, 3\ns_mul_i32 s36, s36, {64*WS}\ns_and_b32 s5, s2, 4\ns_add_u32 s36, s36, s5\ns_add_u32 s36, s36, {INB}")
        a(f"s_waitcnt vmcnt(0)\nv_readfirstlane_b32 s5, v{h}\ns_cmp_lg_u32 s5, 30\ns_cbranch_scc1 L_hm_done")
        a(f"buffer_store_dword v{h+2}, v{h+1}, {sr(R_WS,4)}, s36 offen sc1")
        a.label("L_hm_done")
    if cfg.hint:
        if cfg.hint == 1: hint_mark(True)
    elif cfg.cdone and cfg.pv >= 0:
        a(f"s_cmp_lg_u32 s{WV}, 3\ns_cbranch_scc1 L_cm_done")
        lds_wait(C_P8, 8, WK, VCN)
        cd_mark()
        a(f"buffer_load_dword v{h+2}, v{h}, {sr(R_WS,4)}, s36 offen sc1\ns_mov_b64 exec, -1")
        a.label("L_cm_done")
    a("s_waitcnt lgkmcnt(0)")
    stamp(11, VST)
    a("s_barrier")
    stamp(12, VST)
    for s in range(8): a(f"ds_read_b128 {vr(FD+4*s,4)}, v{A_OS} offset:{s*4096}")
    a("s_waitcnt lgkmcnt(4)"); pk_sum4(FD, 4)
    a("s_waitcnt lgkmcnt(0)"); pk_sum4(FD + 16, 4)
    a(f"v_pk_add_f32 {vr(FD,2)}, {vr(FD,2)}, {vr(FD+16,2)}\nv_pk_add_f32 {vr(FD+2,2)}, {vr(FD+2,2)}, {vr(FD+18,2)}")
    for i in range(4): tagit(FD + i, FD + i, i)
    a(f"buffer_store_dwordx4 {vr(FD,4)}, v{A_OG}, {sr(R_WS,4)}, s37 offen sc1")
    stamp(13, VST)
    def betweenA():
        if cfg.p5 < 0: lds_signal(C_OR, VCN, VONE)
        if "wo" in late: ffn_frags("wo", WK + 3)
    if cfg.p5 >= 0:
        lds_signal(C_OR, VCN, VONE)
        if cfg.ared: a(f"s_cmp_lt_u32 s{ROLE}, 224\ns_cbranch_scc1 L_ar_done")
        if cfg.hint:
            if cfg.hint >= 2: hint_mark(False)
            a(f"s_cmp_lg_u32 s{WV}, 2\ns_cbranch_scc1 L_hp_done")
            a(f"s_add_u32 s5, s{SMY}, {INB}\ns_add_u32 s40, s{KA(104)}, s5\ns_addc_u32 s41, s{KA(104)+1}, 0\nv_mov_b32 v{h+4}, 8")
            a.label("L_hp")
            a(f"s_load_dwordx2 s[42:43], s[40:41], 0 glc\nds_read_b32 v{h+3}, v{VCN} offset:{C_P5*4}")
            budget_check()
            a(f"s_waitcnt lgkmcnt(0)\nv_readfirstlane_b32 s5, v{h+3}\ns_cmp_ge_u32 s5, 8\ns_cbranch_scc1 L_hp_done")
            a(f"s_cmp_lg_u32 s42, s35\ns_cbranch_scc1 L_hp\ns_cmp_lg_u32 s43, s35\ns_cbranch_scc1 L_hp")
            if cfg.hd:
                a(f"ds_read_b32 v{WK}, v{VCN} offset:{C_LC*4}\ns_waitcnt lgkmcnt(0)\nv_readfirstlane_b32 s42, v{WK}\ns_add_u32 s42, s42, {cfg.hd}\ns_min_u32 s42, s42, {8 * (16 - cfg.nl0 - cfg.nmid - cfg.npre)}")
                lds_wait(C_LC, "s42", WK, VCN)
            a(f"s_mov_b64 exec, 1\nds_add_u32 v{VCN}, v{h+4} offset:{C_P5*4}\ns_mov_b64 exec, -1")
            a.label("L_hp_done")
        elif cfg.cdone:
            a(f"s_cmp_lg_u32 s{WV}, 3\ns_cbranch_scc1 L_cd_done")
            if cfg.pv < 0: cd_mark()
            else: a(f"s_mov_b32 exec_hi, 0\ns_waitcnt vmcnt(1)\ns_branch L_cd_chk")
            a.label("L_cd")
            a(f"buffer_load_dword v{h+2}, v{h}, {sr(R_WS,4)}, s36 offen sc1\nds_read_b32 v{h+3}, v{VCN} offset:{C_P5*4}")
            budget_check()
            a(f"s_waitcnt lgkmcnt(0)\nv_readfirstlane_b32 s5, v{h+3}\ns_cmp_ge_u32 s5, 8\ns_cbranch_scc1 L_cd_out\ns_waitcnt vmcnt(0)")
            a.label("L_cd_chk")
            a(f"v_cmp_eq_u32 vcc, s35, v{h+2}\ns_bcnt1_i32_b64 s5, vcc\ns_cmp_lt_u32 s5, {cfg.cdone}\ns_cbranch_scc1 L_cd")
            a(f"s_mov_b64 exec, 1\nds_add_u32 v{VCN}, v{h+4} offset:{C_P5*4}")
            a.label("L_cd_out")
            a("s_mov_b64 exec, -1")
            a.label("L_cd_done")
        if cfg.pmin >= 0: lds_wait(C_P7, 8, WK, VCN)
        lds_wait(C_P5, 8, WK, VCN)
    stamp(28, VST)
    if cfg.dbgh & 4:
        for i in range(32): a(f"v_mov_b32 v{FU+i}, 0")
    gather([(FU + 4 * i, 4, A_A, OP + i * 32 * WS, 0x0101010101010101 if cfg.dbgh & 4 else None) for i in range(8)], WK, kind="byte", between=None if cfg.ared else betweenA, acc=FD + 4)
    if cfg.yrel == 1: lds_signal(C_Y, VCN, VONE)
    stamp(30 if cfg.ared else 14, VST)
    col_reduce(FD + 4)
    rnd(FD + 4, FD + 4)
    a(f"ds_write_b16_d16_hi v{A_XW}, v{FD+4}")
    if cfg.ared:
        r_ = FD + 8
        a(f"v_mul_u32_u24 v{r_+4}, 43, v1\nv_lshrrev_b32 v{r_+4}, 8, v{r_+4}\nv_mul_u32_u24 v{r_+5}, 6, v{r_+4}\nv_sub_u32 v{r_+5}, v1, v{r_+5}")
        a(f"v_mul_u32_u24 v{r_+6}, 12, v{r_+5}\ns_lshl_b32 s5, s{WV}, 7\ns_add_u32 s6, s5, {L_RV}\nv_add_u32 v{r_+6}, s6, v{r_+6}")
        a(f"ds_read2_b32 {vr(r_,2)}, v{r_+6} offset0:0 offset1:1\nds_read_b32 v{r_+2}, v{r_+6} offset:8\nv_mov_b32 v{r_+3}, s33")
        a(f"v_mul_u32_u24 v{r_+4}, {8*WS}, v{r_+4}\nv_lshl_add_u32 v{r_+4}, v{r_+5}, 4, v{r_+4}")
        a(f"s_and_b32 s6, s2, 3\ns_lshl_b32 s6, s6, 6\ns_add_u32 s6, s6, s{RBF}\ns_mul_i32 s6, s6, {WS}\ns_add_u32 s5, s5, s6\ns_add_u32 s5, s5, {OIN}")
        a(f"s_mov_b32 exec_hi, 0xffff\ns_waitcnt lgkmcnt(0)\nbuffer_store_dwordx4 {vr(r_,4)}, v{r_+4}, {sr(R_WS,4)}, s5 offen sc1\ns_mov_b32 exec_hi, -1")
        a.label("L_ar_done")
        ffn_frags("wo", WK + 3)
        a(f"s_lshl_b32 s5, s{WV}, 7\ns_add_u32 s5, s5, s{SMY}\ns_add_u32 s5, s5, {OIN}\ns_add_u32 s40, s{KA(104)}, s5\ns_addc_u32 s41, s{KA(104)+1}, 0")
        a(f"s_lshl_b32 s5, s{WV}, 6\ns_add_u32 s5, s5, {L_OV}\nv_mov_b32 v{r_+16}, s5\ns_branch L_ap0")
        a.label("L_ap")
        if cfg.asl: a(f"s_sleep {cfg.asl}")
        a.label("L_ap0")
        a("s_load_dwordx16 s[44:59], s[40:41], 0 glc\ns_load_dwordx8 s[60:67], s[40:41], 64 glc")
        budget_check()
        a("s_waitcnt lgkmcnt(0)")
        for g in range(6): a(f"s_cmp_lg_u32 s{47+4*g}, s33\ns_cbranch_scc1 L_ap")
        a("s_mov_b64 exec, 1")
        for i in range(16):
            a(f"v_mov_b32 v{r_+i}, s{44 + 4*(i//3) + i%3}")
            if i % 4 == 3: a(f"ds_write_b128 v{r_+16}, {vr(r_+i-3,4)} offset:{(i-3)*4}")
        a("s_mov_b64 exec, -1")
        stamp(14, VST)
    xch_read(L_OV, 4, WK, VACT)
    gemv_pub([FWO, FWO + 16], 4, FD, FD + 16, YP)
    if not cfg.yrel: lds_signal(C_Y, VCN, VONE)
    stamp(15, VST)
    a(f"s_cmp_lt_u32 s{ROLE}, 224\ns_cbranch_scc1 L_ffn")
    if cfg.yrel == 2: lds_signal(C_Y, VCN, VONE)
    a("s_branch L_fin")
    a.label("L_ffn")
    a(f"s_mov_b32 s{SMY}, s{SFY}")
    if cfg.yd >= 0:
        a(f"ds_read_b32 v{WK}, v{VCN} offset:{C_LC*4}\ns_waitcnt lgkmcnt(0)\nv_readfirstlane_b32 s34, v{WK}\ns_add_u32 s34, s34, {cfg.yd}\ns_min_u32 s34, s34, {8 * (16 - cfg.nl0 - cfg.nmid - cfg.npre)}")
    A_AT, A_M, A_GS = FD + 20, FD + 21, FD + 22
    a(f"v_and_b32 v{WK}, 3, v1\nv_mul_u32_u24 v{WK+3}, 320, v{WK}\nv_add_u32 v{A_AT}, v{WK+3}, v{VACT}")
    a(f"v_bfe_u32 v{WK+3}, v1, 2, 3\nv_mul_u32_u24 v{WK+3}, {WS}, v{WK+3}\nv_lshl_add_u32 v{A_M}, v{WK}, 4, v{WK+3}\ns_and_b32 s5, s{ROLE}, 0xf8\ns_mul_i32 s5, s5, {WS}\nv_add_u32 v{A_M}, s5, v{A_M}")
    a(f"s_lshl_b32 s36, s{WV}, 8\ns_add_u32 s36, s36, s{SMY}\ns_add_u32 s36, s36, {GUP}\nv_lshlrev_b32 v{A_GS}, 2, v1")
    a(f"s_lshl_b32 s37, s{WV}, 4\ns_add_u32 s37, s37, s{SMY}\ns_add_u32 s37, s37, {MOM}")
    a(f"s_lshl_b32 s5, s{WV}, 6\ns_add_u32 s5, s5, {L_HHV}\nv_add_u32 v{VB}, s5, v{TB}")
    def store_gl(data, vaddr, soff):
        if cfg.elocal:
            Lf = a.newlabel("L_far"); Lj = a.newlabel("L_stj")
            a(f"s_cmp_eq_u32 s15, 0\ns_cbranch_scc1 {Lf}")
            a(f"buffer_store_dwordx4 {vr(data,4)}, {vaddr}, {sr(R_WS,4)}, {soff}")
            a.label(Lj)
            def far():
                a.label(Lf); a(f"buffer_store_dwordx4 {vr(data,4)}, {vaddr}, {sr(R_WS,4)}, {soff} sc1\ns_branch {Lj}")
            deferred.append(far)
        else: a(f"buffer_store_dwordx4 {vr(data,4)}, {vaddr}, {sr(R_WS,4)}, {soff} sc1")
    if cfg.elocal and cfg.epre == 2: e_preread(FD + 23)
    def gu_frags():
        for name in ("gate", "up"):
            if name in late: ffn_frags(name, WK + 3)
    if cfg.bgate == 1: gu_frags()
    if cfg.nb: lds_wait(C_UP, cfg.nb, WK, VCN, sleep=0)
    if cfg.yd >= 0:
        lds_wait(C_LC, "s34", WK, VCN)
    if cfg.p6 >= 0: lds_wait(C_P6, 8, WK, VCN)
    if cfg.ackB: a("s_waitcnt vmcnt(0)")
    stamp(29, VST)
    gather([(FWO + 4 * i, 4, A_Y, YP + i * 64 * WS, None) for i in range(4)], WK, kind="byte", between=gu_frags if cfg.bgate == 2 else None, acc=FD, masked=bool(cfg.bmask))
    if cfg.yrel == 2: lds_signal(C_Y, VCN, VONE)
    stamp(16, VST)
    col_reduce(FD)
    y_ = FD
    rnd(y_, y_); a(f"v_mul_f32 v{y_}, v{y_}, v{K_GA}"); rnd(y_, y_); a(f"v_add_f32 v{K_X}, v{K_X}, v{y_}"); rnd(K_X, K_X)
    st_ = y_ + 4; mo = y_ + 8
    a(f"v_mov_b32 v{st_}, v{K_X}\nv_mul_f32 v{y_}, v{K_X}, v{K_C1}")
    a(f"v_mul_f32_dpp v{st_}, v{K_X}, v{K_X} quad_perm:[0,1,2,3] row_mask:0xf bank_mask:0xc\nv_mov_b32 v{st_+1}, v{st_}")
    rnd(y_ + 1, y_)
    a(f"s_nop 0\nv_permlane32_swap_b32 v{st_}, v{st_+1}\nv_add_f32 v{st_}, v{st_}, v{st_+1}\nv_mov_b32 v{st_+1}, v{st_}")
    a(f"v_subrev_f32_dpp v{y_}, v{y_+1}, v{y_} quad_perm:[0,1,2,3] row_mask:0xf bank_mask:0xc")
    rnd(y_, y_)
    a(f"v_permlane16_swap_b32 v{st_}, v{st_+1}\nv_add_f32 v{st_}, v{st_}, v{st_+1}")
    a(f"ds_write_b16_d16_hi v{VAW}, v{y_}")
    xreduce("v_add_f32", st_, None, ("quad_perm:[1,0,3,2]", "quad_perm:[2,3,0,1]", "row_half_mirror"))
    a(f"v_and_b32 v{mo}, v{st_}, v{BT}\nv_sub_f32 v{mo+1}, v{st_}, v{mo}")
    tagit(mo, mo, 0)
    a(f"v_mov_b32_dpp v{mo+2}, v{st_} row_ror:8 {DPPF}\nv_mov_b32_dpp v{mo+3}, v{mo+1} row_ror:8 {DPPF}")
    tagit(mo + 1, mo + 1, 1); tagit(mo + 2, mo + 2, 2); tagit(mo + 3, mo + 3, 3)
    a("s_mov_b64 exec, 1")
    store_gl(mo, "off", "s37")
    a("s_mov_b64 exec, -1")
    stamp(22, VST)
    frs = [FG, FG + 16, FU, FU + 16]; dacc = FWO; out = FWO + 16
    mg = y_ + 12
    mload = f"buffer_load_dwordx4 {vr(mg,4)}, v{A_M}, {sr(R_WS,4)}, s34 offen sc1"
    a(f"s_mov_b32 s34, {MOM}")
    if cfg.bgate == 0: gu_frags()
    xch_read(L_AT, 4, WK + 3, A_AT, two=True)
    for cg in range(5):
        if cg < 4:
            if cg > 1: a("s_mov_b64 exec, -1")
            if cg == cfg.mfirst: a(mload)
            for kk in range(4): mfma(dacc + 4 * cg, ACT + 4 * kk, frs[cg] + 4 * kk, kk == 0)
            if cg == 0:
                for k in range(4): a(f"v_mov_b32 v{out+4+k}, s{TB0+k}")
        if cg >= 1:
            d = dacc + 4 * (cg - 1)
            setexec(0xffff << (16 * (cg - 1)))
            a(f"v_add_f32 v{out}, v{d}, v{d+1}\nv_pk_mov_b32 {vr(out+2,2)}, {vr(d+2,2)}, {vr(d+2,2)} op_sel:[0,1]")
    a("s_mov_b64 exec, -1")
    if cfg.mfirst < 4: a("s_branch L_mchk")
    a.label("L_mld")
    a(mload); budget_check()
    a.label("L_mchk")
    a("s_waitcnt vmcnt(0)")
    for k in range(4): a(f"v_xor_b32 v{mg+k}, s{TB0+k}, v{mg+k}")
    a(f"v_or3_b32 v{WK}, v{mg}, v{mg+1}, v{mg+2}\nv_or_b32 v{WK}, v{WK}, v{mg+3}\nv_and_b32 v{WK}, 0xff, v{WK}\nv_cmp_ne_u32 vcc, 0, v{WK}\ns_cbranch_vccnz L_mld")
    stamp(27, VST)
    a(f"v_add_f32 v{mg}, v{mg}, v{mg+1}\ns_mov_b32 exec_lo, 0\nv_add_f32 v{mg}, v{mg+2}, v{mg+3}\ns_mov_b32 exec_lo, -1")
    xreduce("v_add_f32", mg, mg + 1, (16, 8, 4, 2, 1))
    a(f"v_mul_f32 v{mg}, {f2u(1.0/1024):#x}, v{mg}\nv_mov_b32 v{mg+1}, v{mg}\nv_permlane32_swap_b32 v{mg}, v{mg+1}")
    a(f"v_fma_f32 v{mg+1}, -v{mg}, v{mg}, v{mg+1}"); rnd(mg, mg)
    a(f"v_max_f32 v{mg+1}, 0, v{mg+1}\nv_fma_f32 v{out}, -v{mg}, v{out+2}, v{out}")
    den_from_var(mg + 1, mg + 2)
    a(f"v_fma_f32 v{out}, v{out}, v{mg+2}, v{out+3}\nv_and_b32 v{out}, v{out}, v{BT}")
    for k in range(4): a(f"v_or_b32_dpp v{out+4+k}, v{out}, v{out+4+k} quad_perm:[{k},{k},{k},{k}] {DPPF}")
    setexec(0x1111111111111111)
    store_gl(out + 4, f"v{A_GS}", "s36 offen")
    a("s_mov_b64 exec, -1")
    stamp(23, VST)
    def dnf():
        a("s_barrier")
        ffn_frags("dn", WK + 3)
    eg = [(FG + 4 * i, 4, A_E, GUP + i * 4 * WS, None) for i in range(2)]
    if not cfg.efirst: dnf()
    if cfg.ackE: a("s_waitcnt vmcnt(0)")
    stamp(17, VST)
    gather(eg, WK, kind="byte", masked=cfg.efirst == 1, between=dnf if cfg.efirst == 1 else None, acc=FU)
    if cfg.efirst == 2: dnf()
    stamp(18, VST)
    g_ = FU
    a(f"v_permlane32_swap_b32 v{g_}, v{g_+1}\nv_permlane32_swap_b32 v{g_+2}, v{g_+3}\nv_add_f32 v{g_}, v{g_}, v{g_+1}\nv_add_f32 v{g_+2}, v{g_+2}, v{g_+3}")
    a(f"v_permlane16_swap_b32 v{g_}, v{g_+2}\nv_add_f32 v{g_}, v{g_}, v{g_+2}")
    rnd(g_, g_)
    k2 = -2.0 * 0.7978845608028654 * LOG2E
    a(f"v_mul_f32 v{g_+2}, v{g_}, v{g_}\nv_mul_f32 v{g_+3}, {f2u(k2):#x}, v{g_}\nv_mul_f32 v{g_+2}, {f2u(0.044715):#x}, v{g_+2}\nv_fma_f32 v{g_+2}, v{g_+2}, v{g_+3}, v{g_+3}")
    a(f"v_exp_f32 v{g_+2}, v{g_+2}\nv_mov_b32_dpp v{g_+1}, v{g_} row_ror:8 {DPPF}\nv_add_f32 v{g_+2}, 1.0, v{g_+2}\nv_rcp_f32 v{g_+2}, v{g_+2}\nv_mul_f32 v{g_}, v{g_}, v{g_+2}")
    rnd(g_, g_); a(f"v_mul_f32 v{g_}, v{g_}, v{g_+1}")
    setexec(0x00ff00ff00ff00ff)
    rnd(g_, g_)
    a(f"ds_write_b16_d16_hi v{VB}, v{g_}\ns_mov_b64 exec, -1")
    xch_read(L_HHV, 4, WK, VACT)
    gemv_pub([FD, FD + 16], 4, FG, FG + 8, ZP)
    stamp(19, VST)
    a(f"s_lshr_b32 s5, s{ROLE}, 3\ns_cmp_lg_u32 s5, {cfg.dgrp}\ns_cbranch_scc1 L_fin")
    for i in range(4): a(f"v_mov_b32 v{FU+12+i}, 0")
    a("s_lshl_b32 s36, s32, 1")
    stamp(26, VST)
    if cfg.ackD: a("s_waitcnt vmcnt(0)")
    if cfg.dsl: a(f"s_sleep {cfg.dsl}")
    gather([(FU + 4 * i, 4, A_Z, ZP + i * 64 * WS, None if i < 3 else 0xffffffff) for i in range(4)], WK, kind="byte", masked=False, acc=FU + 16)
    stamp(24, VST)
    z_ = FU + 16
    col_reduce(z_)
    rnd(z_, z_); a(f"v_mul_f32 v{z_}, v{z_}, v{K_GB}"); rnd(z_, z_); a(f"v_add_f32 v{z_}, v{K_X}, v{z_}")
    setexec(0x00ff00ff00ff00ff)
    rnd(z_, z_)
    a(f"buffer_store_short_d16_hi v{z_}, v{TB}, {sr(R_OUT,4)}, s36 offen" + (" sc1" if cfg.outsc else "") + "\ns_mov_b64 exec, -1")
    stamp(25, VST)
    a.label("L_fin")
    if cfg.stamps:
        a(f"s_lshl_b32 s5, s2, 11\ns_lshl_b32 s6, s3, 7\ns_add_u32 s5, s5, s6\ns_add_u32 s5, s5, 0x8000000\nv_lshlrev_b32 v2, 2, v1")
        a(f"s_mov_b32 exec_hi, 0\nbuffer_store_dword v{VST}, v2, {sr(R_WS,4)}, s5 offen sc1")
    a("s_endpgm")
    for f in deferred: f()
    a.label("L_end")
    body = "\n".join(hazard.run(a.l)) + "\n"
    return wrap(body, 256, 768, LDS_BYTES, 168, extra_desc="  .amdhsa_float_denorm_mode_32 3\n")

if __name__ == "__main__":
    out = sys.argv[1]
    kw = {}
    for x in sys.argv[2:]:
        k, v = x.split("="); kw[k] = int(v) if v.lstrip("-").isdigit() else v
    open(out, "w").write(gen(Cfg(**kw)))
```

```python
import sys, os, struct
from asmgen import *
import hazard

def f2u(x): return struct.unpack("<I", struct.pack("<f", x))[0]
LOG2E = 1.4426950408889634

class Cfg:
    D1 = 3; D2 = 3; DV = 6; D3 = 3
    stamps = False
    spin_budget = 1 << 18
    pre1 = "crit,wq,mod1,mod2"
    pre2 = ""
    mid = ""
    late = "wo,gate,up,dn"
    nl0 = 3
    nl2 = 0
    p1 = 8; p2 = 23; p3 = 21
    ackB = 1; ackE = 0; ackD = 1
    bgate = 1
    outsc = 1
    hstop = 4
    NS = 30
    steal = 0
    sa = 18; sb = 21; p9 = 8
    D3b = 3; kb = 99
    clean = 0
    lfl = ""
    npre = 0
    qm = 0
    pm = 19
    dbgh = 0
    ared = 0
    asl = 2; apm = 2
    ofirst = 1
    bmask = 1
    D4 = 63
    ot = 2
    hd = 0
    hint = 0
    yd = -1
    pv = 31
    cdone = 32
    pmin = 3
    mfirst = 2
    nq2 = 0
    nmid = 0
    D0 = 3; n0 = 0
    ktouch = 0
    dsl = 0
    dgrp = 0
    warm = 0
    nb = 0
    p5 = 8
    p6 = 12
    ysl = 1
    efirst = 0
    bal = 2
    Dmin = 2; Dmax = 5; th = -12; balk = 0; DVmax = 6; Kmin = 2; Kmax = 4; hl = 2
    yrel = 0
    zt = 3
    elocal = 1
    epre = 2
    role = 1
    p4 = 18
    touch = 0
    def __init__(self, **kw):
        for k, v in kw.items():
            assert hasattr(self, k), k
            setattr(self, k, v)

QP, HP = 0, 512
TKT = 1024
OIN = 9472
INB = 9344
CLM = 1408
BRD = 1280
MODP = 2048
YP, ZP, OP, GUP, MOM = 3072, 3584, 4096, 8192, 9216
MODF = 6 << 20
XCP = MODF + 65536
MLA = MODF + 131072
QF = MODF + 196608
EPOCH = 8 << 20
L_MOD, L_WQ, L_UP, L_DN, L_WO, L_GATE, L_MISC = 0, 0xC000, 0, 0x8000, 0x14000, 0x1C000, 0x24000
L_OS = L_DN
L_CNT = L_MISC
(C_CRIT, C_WQ, C_MOD1, C_MOD2, C_WO, C_GATE, C_UP, C_DN, C_Q, C_H, C_ML, C_MLD, C_CLR, C_P1, C_P2, C_P3, C_Y, C_OR, C_ROLE, C_P4, C_T, C_TK, C_P5, C_P6, C_P7, C_P8, C_LC, C_PM, C_PA, C_PB, C_DEC, C_MOD3, C_P9) = range(33)
L_QV = L_MISC + 0x100
L_HV = L_MISC + 0x900
L_HHV = L_MISC + 0xA00
L_OV = L_MISC + 0xB00
L_RV = L_MISC + 0x1700
L_SIL = L_MISC + 0xC00
L_MLW = L_MISC + 0xE00
L_MLF = L_MISC + 0x1000
L_AT = L_MISC + 0x1100
LDS_BYTES = 160 * 1024

def is_reducer(w): return w < 8
def vr(a, n=1): return f"v{a}" if n == 1 else f"v[{a}:{a+n-1}]"
def sr(a, n=1): return f"s{a}" if n == 1 else f"s[{a}:{a+n-1}]"

def gen(cfg):
    a = Asm()
    WS = 10112
    BUD = 4
    lst = lambda x: [t for t in x.split(",") if t]
    def srd_load(r, karg_off): a(f"s_load_dwordx2 {sr(r,2)}, s[0:1], {karg_off}")
    def srd_fin(r, nbytes): a(f"s_mov_b32 s{r+2}, {nbytes}\ns_mov_b32 s{r+3}, 0x20000")
    def rnd(d, s): a(f"v_cvt_pk_bf16_f32 v{d}, 0, v{s}")
    def setexec(m): a(f"s_mov_b32 exec_lo, {m & 0xffffffff:#x}\ns_mov_b32 exec_hi, {m >> 32:#x}")
    def stamp(idx, vreg):
        if cfg.stamps == 1 or (cfg.stamps == 2 and idx == 25): a(f"s_memrealtime s[98:99]\ns_waitcnt lgkmcnt(0)\nv_writelane_b32 v{vreg}, s98, {idx}")
    def budget_check(): a(f"s_sub_u32 s{BUD}, s{BUD}, 1\ns_cbranch_scc1 L_end")
    def lds_wait(cnt, target, vtmp, vaddr, sleep=1):
        L = a.newlabel("L_lw"); Ld = a.newlabel("L_lwd")
        a.label(L)
        a(f"ds_read_b32 v{vtmp}, v{vaddr} offset:{cnt*4}\ns_waitcnt lgkmcnt(0)\nv_readfirstlane_b32 s5, v{vtmp}")
        a(f"s_cmp_ge_u32 s5, {target}\ns_cbranch_scc1 {Ld}")
        if sleep: a(f"s_sleep {sleep}")
        budget_check()
        a(f"s_branch {L}")
        a.label(Ld)
    def lds_signal(cnt, vaddr, vone):
        a(f"s_mov_b64 exec, 1\nds_add_u32 v{vaddr}, v{vone} offset:{cnt*4}\ns_mov_b64 exec, -1")
    DPPF = "row_mask:0xf bank_mask:0xf"
    def xreduce(op, v, t, steps):
        for s in steps:
            if s in (1, 2, 4, 8): a(f"{op}_dpp v{v}, v{v}, v{v} row_ror:{s} {DPPF}")
            elif s == 16: a(f"v_mov_b32 v{t}, v{v}\nv_permlane16_swap_b32 v{v}, v{t}\n{op} v{v}, v{v}, v{t}")
            elif s == 32: a(f"v_mov_b32 v{t}, v{v}\nv_permlane32_swap_b32 v{v}, v{t}\n{op} v{v}, v{v}, v{t}")
            else: a(f"{op}_dpp v{v}, v{v}, v{v} {s} {DPPF}")

    a("s_load_dwordx16 s[68:83], s[0:1], 0\ns_load_dwordx8 s[84:91], s[0:1], 64\ns_load_dwordx4 s[92:95], s[0:1], 96")
    KA = lambda off: 68 + off // 4
    a("s_cmp_ge_u32 s2, 256\ns_cbranch_scc1 L_end")
    a("v_lshrrev_b32 v2, 6, v0\nv_and_b32 v1, 63, v0")
    a("v_readfirstlane_b32 s3, v2")
    a(f"s_mov_b32 s{BUD}, {cfg.spin_budget}")
    if cfg.stamps: a("s_memrealtime s[96:97]")
    a("s_cmp_ge_u32 s3, 8\ns_cbranch_scc1 L_cwave")

    R_MOD, R_WQ, R_WO, R_G, R_U, R_DN, R_K, R_V, R_WSS = 8, 12, 16, 20, 24, 28, 32, 36, 40
    VK, VV, VGU, VDN, VCN, VONE = 2, 3, 4, 5, 6, 7
    Q0, T0, DT, KV = 8, 16, 32, 40
    VMOD, VWQ, VST = 16, 17, 0
    SB_MOD, SB_WQ, SB_WO, SB_GU, SB_DN, SB_KV, SO, SL, SL4 = 44, 45, 46, 47, 48, 49, 50, 51, 56
    def srd(r, off, nbytes): a(f"s_mov_b64 {sr(r,2)}, {sr(KA(off),2)}\ns_mov_b32 s{r+2}, {nbytes}\ns_mov_b32 s{r+3}, 0x20000")
    a("v_and_b32 v32, 15, v1\nv_lshrrev_b32 v33, 4, v1\nv_lshlrev_b32 v34, 1, v33\nv_xor_b32 v34, v34, v32\nv_lshlrev_b32 v34, 4, v34")
    a(f"v_mul_u32_u24 v{VMOD}, 12288, v33\nv_add_u32 v{VMOD}, v{VMOD}, v34\ns_and_b32 s63, s3, 1\ns_lshl_b32 s63, s63, 7\nv_xor_b32 v{VMOD}, s63, v{VMOD}")
    a(f"v_lshl_add_u32 v{VWQ}, v33, 13, v34")
    a(f"s_lshr_b32 s5, s2, 4\ns_lshl_b32 s5, s5, 6\ns_lshl_b32 s6, s3, 3\ns_add_u32 s5, s5, s6\ns_mul_i32 s5, s5, 12288")
    a(f"s_and_b32 s6, s2, 15\ns_lshl_b32 s6, s6, 8\ns_add_u32 s{SB_MOD}, s5, s6\ns_lshl_b32 s{SL}, s3, 11\ns_lshl_b32 s{SL4}, s3, 12")
    a("s_and_b32 s52, s2, 7\ns_lshr_b32 s53, s2, 3")
    a(f"s_lshl_b32 s5, s52, 7\ns_lshl_b32 s57, s3, 4\ns_add_u32 s54, s5, s57")
    a(f"s_lshl_b32 s5, s54, 13\ns_lshl_b32 s55, s53, 8\ns_add_u32 s{SB_WQ}, s5, s55")
    a("s_waitcnt lgkmcnt(0)")
    srd(R_MOD, 80, 12582912); srd(R_WQ, 24, 8388608)
    def rest_of_setup():
        a(f"v_mul_u32_u24 v{VGU}, 7168, v33\nv_add_u32 v{VGU}, v{VGU}, v34\nv_lshl_add_u32 v{VDN}, v33, 11, v34\nv_lshlrev_b32 v{VV}, 4, v1")
        a(f"v_and_b32 v35, 2, v32\nv_lshlrev_b32 v35, 15, v35\nv_lshrrev_b32 v36, 2, v32\nv_lshl_add_u32 v35, v36, 8, v35")
        a(f"v_and_b32 v36, 1, v32\nv_lshl_add_u32 v35, v36, 6, v35\nv_lshl_add_u32 v{VK}, v33, 4, v35")
        a(f"v_mov_b32 v{VCN}, {L_CNT}\nv_mov_b32 v{VONE}, 1")
        a(f"s_lshr_b32 s5, s2, 6\ns_lshl_b32 s5, s5, 3\ns_add_u32 s5, s5, s52\ns_lshl_b32 s5, s5, 7\ns_add_u32 s5, s5, s57\ns_lshl_b32 s5, s5, 11")
        a(f"s_and_b32 s6, s53, 7\ns_lshl_b32 s6, s6, 8\ns_add_u32 s{SB_WO}, s5, s6")
        a(f"s_and_b32 s5, s2, 3\ns_lshl_b32 s5, s5, 24\ns_lshr_b32 s6, s2, 2\ns_lshl_b32 s6, s6, 18\ns_add_u32 s5, s5, s6\ns_lshl_b32 s6, s3, 10\ns_add_u32 s{SB_KV}, s5, s6")
        srd(R_WO, 32, 8388608); srd(R_K, 8, 67108864); srd(R_V, 16, 67108864)
        for r, off in ((R_G, 48), (R_U, 56), (R_DN, 64)): srd(r, off, 0)
        if cfg.stamps:
            srd(R_WSS, 104, 0x10000000); a(f"v_mov_b32 v{VST}, 0\nv_writelane_b32 v{VST}, s96, 0")
        a("s_mov_b32 s58, 0x05040100\ns_mov_b32 s59, 0x07060302")
        a("s_barrier")
    issued = []; done = [0]; tiles = {}; signalled = set(); setup = [False]
    TN = dict(crit=2, wq=4, mod1=2, mod2=2, mod3=2, wo=4, gate=4, up=4, dn=4)
    TC = dict(mod3=C_MOD3, crit=C_CRIT, wq=C_WQ, mod1=C_MOD1, mod2=C_MOD2, wo=C_WO, gate=C_GATE, up=C_UP, dn=C_DN)
    def wait_n(n):
        if len(issued) - done[0] > n:
            a(f"s_waitcnt vmcnt({n})"); done[0] = len(issued) - n
            for name, ids in tiles.items():
                if name not in signalled and len(ids) == TN[name] and max(ids) < done[0]:
                    lds_signal(TC[name], VCN, VONE); signalled.add(name)
                    if name in ("wo", "up"): stamp({"wo": 20, "up": 21}[name], VST)
    def wait_id(i): wait_n(len(issued) - 1 - i)
    def dma(name, i, D):
        srd_, voff, sb, step, lbase, lsreg = {
            "crit": (R_MOD, VMOD, SB_MOD, 4 * 12288, L_MOD, SL), "mod1": (R_MOD, VMOD, SB_MOD, 4 * 12288, L_MOD + 16384, SL),
            "mod3": (R_MOD, VMOD, SB_MOD, 4 * 12288, L_WO, SL),
            "mod2": (R_MOD, VMOD, SB_MOD, 4 * 12288, L_MOD + 32768, SL), "wq": (R_WQ, VWQ, SB_WQ, 4 * 8192, L_WQ, SL4),
            "wo": (R_WO, VDN, SB_WO, 4 * 2048, L_WO, SL4), "gate": (R_G, VGU, SB_GU, 4 * 7168, L_GATE, SL4),
            "up": (R_U, VGU, SB_GU, 4 * 7168, L_UP, SL4), "dn": (R_DN, VDN, SB_DN, 4 * 2048, L_DN, SL4)}[name]
        extra = {"mod1": 4096, "mod2": 8192, "mod3": 8192}.get(name, 0)
        if len(issued) >= min(D, 6) and not setup[0]:
            setup[0] = True; rest_of_setup()
            if cfg.ktouch:
                a(f"s_mov_b64 exec, 1\ns_mov_b32 m0, {L_MISC + 0x2000}")
                for r in (R_K, R_V): a(f"buffer_load_dword off, {sr(r,4)}, s{SB_KV} nt lds"); issued.append("t")
                a("s_mov_b64 exec, -1")
        a(f"s_add_u32 m0, s{lsreg}, {lbase + i*1024}\ns_add_u32 s{SO}, s{sb}, {i*step + extra}")
        wait_n(D - 1)
        a(f"buffer_load_dwordx4 v{voff}, {sr(srd_,4)}, s{SO} offen nt lds")
        if name in ("wq", "wo", "gate", "up", "dn") and i in (1, 3): a(f"v_xor_b32 v{voff}, 0x80, v{voff}")
        tiles.setdefault(name, []).append(len(issued)); issued.append(name)
    kid = {}; vid = {}; cur_so = [None]
    def kvload(srd_, voff, off, dst, D):
        so = off & ~0xfff
        if cur_so[0] != so:
            a(f"s_add_u32 s60, s{SB_KV}, {so}"); cur_so[0] = so
        if D: wait_n(D - 1)
        a(f"buffer_load_dwordx4 {vr(dst,4)}, v{voff}, {sr(srd_,4)}, s60 offen offset:{off & 0xfff} nt")
        issued.append("kv"); return len(issued) - 1
    def kload(n, u, D): kid[(n, u)] = kvload(R_K, VK, (16 * (n >> 3) + (n & 7)) * 8192 + u * 128, KV + 8 * n + 4 * u, D)
    def vslot(i): return KV + 4 * (i % cfg.NS)
    def vload(i, D): vid[i] = kvload(R_V, VV, i * 8192, vslot(i), D)
    def paced(cnt, k, vt, Dmin, Dmax):
        a(f"s_mov_b64 exec, 1\nds_add_rtn_u32 v{vt}, v{VCN}, v{VONE} offset:{cnt*4}\ns_mov_b64 exec, -1")
        wait_n(Dmax - 1)
        go = a.newlabel("L_go")
        a(f"s_waitcnt lgkmcnt(0)\nv_readfirstlane_b32 s5, v{vt}\ns_cmp_gt_i32 s5, {8*k + cfg.th}\ns_cselect_b64 vcc, -1, 0\ns_cbranch_scc1 {go}\ns_waitcnt vmcnt({Dmin - 1})")
        a.label(go)
    D1, D2 = cfg.D1, cfg.D2
    for name in lst(cfg.pre1):
        if cfg.steal and name == "mod2": continue
        for i in range(TN[name]): dma(name, i, cfg.D0 if len(issued) < cfg.n0 else D1)
    stamp(11, VST)
    for n in range(16):
        for u in range(2):
            if cfg.balk:
                paced(C_T, 2 * n + u, DT, cfg.Kmin, cfg.Kmax); kload(n, u, 0)
            else: kload(n, u, cfg.D0 if len(issued) < cfg.n0 else D1)
            if 2 * n + u == cfg.p1: lds_signal(C_P1, VCN, VONE)
            if 2 * n + u == cfg.p2: lds_signal(C_P2, VCN, VONE)
            if cfg.steal and 2 * n + u == cfg.sa: lds_signal(C_PA, VCN, VONE)
            if cfg.steal and 2 * n + u == cfg.sb: lds_signal(C_PB, VCN, VONE)
            if 2 * n + u == cfg.pm and cfg.qm: lds_signal(C_PM, VCN, VONE)
    for name in lst(cfg.pre2):
        for i in range(TN[name]): dma(name, i, D1)
    if cfg.steal:
        lds_wait(C_DEC, 1, DT, VCN)
        a(f"s_mov_b32 s61, s5\ns_mov_b32 s62, 12582912\ns_bitcmp1_b32 s61, 0\ns_cselect_b32 s{R_MOD+2}, s62, 0")
        for i in range(2): dma("mod2", i, D1)
        a(f"s_bitcmp1_b32 s61, 1\ns_cselect_b32 s{R_MOD+2}, s62, 0\ns_xor_b32 s{SB_MOD}, s{SB_MOD}, 1024")
        for i in range(2): dma("mod3", i, 63)
        if cfg.stamps == 1: a(f"v_writelane_b32 v{VST}, s61, 25")
    for i in range(cfg.npre): dma("wo", i, D1)
    stamp(1, VST)
    a(f"v_and_b32 v{DT+1}, 7, v1\nv_lshlrev_b32 v{DT+1}, 8, v{DT+1}\nv_and_b32 v{DT+2}, 8, v1\nv_lshl_add_u32 v{DT+1}, v{DT+2}, 3, v{DT+1}")
    a(f"v_lshrrev_b32 v{DT+2}, 4, v1\nv_lshl_add_u32 v{DT+1}, v{DT+2}, 4, v{DT+1}\nv_add_u32 v{DT+1}, {L_QV}, v{DT+1}")
    a(f"s_mov_b32 s61, {f2u(128 ** -0.5):#x}\ns_mov_b32 s62, {f2u(LOG2E):#x}")
    lds_wait(C_Q, 4, DT, VCN)
    stamp(2, VST)
    a(f"ds_read_b128 {vr(Q0,4)}, v{DT+1}\nds_read_b128 {vr(Q0+4,4)}, v{DT+1} offset:128\ns_waitcnt lgkmcnt(0)")
    nv = 0
    def fold(n):
        d = DT + 4 * (n & 1)
        a(f"v_add_f32_dpp v{T0+n}, v{d+1}, v{d} row_ror:8 row_mask:0xf bank_mask:0x3")
        a(f"v_add_f32_dpp v{T0+n}, v{d+2}, v{d+3} row_ror:8 row_mask:0xf bank_mask:0xc")
    def post(n):
        rnd(T0 + n, T0 + n); a(f"v_mul_f32 v{T0+n}, s61, v{T0+n}"); rnd(T0 + n, T0 + n)
    for n in range(16):
        wait_id(kid[(n, 1)])
        d = DT + 4 * (n & 1)
        a(f"v_mfma_f32_16x16x32_bf16 {vr(d,4)}, {vr(KV+8*n,4)}, {vr(Q0,4)}, 0")
        a(f"v_mfma_f32_16x16x32_bf16 {vr(d,4)}, {vr(KV+8*n+4,4)}, {vr(Q0+4,4)}, {vr(d,4)}")
        if n >= 1 and nv < D2 and n % 2 == 1:
            vload(nv, 0); nv += 1
        if n >= 2: post(n - 2)
        if n >= 1: fold(n - 1)
    for _ in range(cfg.nq2): vload(nv, 0); nv += 1
    fold(15); post(14); post(15)
    M_, L_, X_ = DT, DT + 1, DT + 2
    a(f"v_max3_f32 v{M_}, v{T0}, v{T0+1}, v{T0+2}")
    for i in range(3, 15, 2): a(f"v_max3_f32 v{M_}, v{M_}, v{T0+i}, v{T0+i+1}")
    a(f"v_max_f32 v{M_}, v{M_}, v{T0+15}")
    xreduce("v_max_f32", M_, X_, (8, 16, 32))
    for i in range(16):
        e = DT + 4 + (i & 3)
        a(f"v_sub_f32 v{e}, v{T0+i}, v{M_}\nv_mul_f32 v{e}, s62, v{e}\nv_exp_f32 v{e}, v{e}")
        if i >= 1:
            p = DT + 4 + ((i - 1) & 3)
            a(f"v_mov_b32 v{L_}, v{p}" if i == 1 else f"v_add_f32 v{L_}, v{L_}, v{p}")
    a(f"v_add_f32 v{L_}, v{L_}, v{DT+7}")
    xreduce("v_add_f32", L_, X_, (8, 16, 32))
    a(f"s_lshl_b32 s5, s3, 6\ns_add_u32 s5, s5, {L_MLW}\nv_lshlrev_b32 v{X_}, 3, v1\nv_add_u32 v{X_}, s5, v{X_}")
    a(f"s_mov_b64 exec, 0xff\nds_write_b64 v{X_}, {vr(M_,2)}\ns_waitcnt lgkmcnt(0)")
    lds_signal(C_ML, VCN, VONE)
    stamp(3, VST)
    nv0 = nv
    while nv < cfg.NS:
        if cfg.bal:
            paced(C_T, nv - nv0 + (32 if cfg.balk else 0), DT, cfg.Dmin, cfg.Dmax); vload(nv, 0)
        else: vload(nv, D2)
        if nv == cfg.p3: lds_signal(C_P3, VCN, VONE)
        if nv == cfg.pv: lds_signal(C_P8, VCN, VONE)
        if cfg.steal and nv == cfg.p9: lds_signal(C_P9, VCN, VONE)
        if nv == cfg.p4 and cfg.role == 2: lds_signal(C_P4, VCN, VONE)
        nv += 1
    for name in lst(cfg.mid):
        for i in range(TN[name]): dma(name, i, D2)
    for name in lst(cfg.pre1) + lst(cfg.pre2) + (["mod3"] if cfg.steal else []): wait_id(max(tiles[name]))
    stamp(4, VST)
    a(f"v_and_b32 v{X_}, 7, v1\nv_lshlrev_b32 v{X_}, 3, v{X_}\nv_add_u32 v{X_}, {L_MLF}, v{X_}")
    lateq = [(name, i) for name in lst(cfg.late) for i in range(TN[name])]
    lateq = lateq[cfg.npre:]
    assert lateq[-4:] == [("dn", i) for i in range(4)]
    for _ in range(cfg.nmid):
        name, i = lateq.pop(0); assert name == "wo"; dma(name, i, 63)
    assert cfg.role != 2
    lds_wait(C_ROLE, 1, DT, VCN, sleep=0)
    a("s_sub_u32 s7, s5, 1")
    a("s_mov_b32 s5, 7340032\ns_cmp_lt_u32 s7, 224\ns_cselect_b32 s5, s5, 0")
    for r in (R_G, R_U, R_DN): a(f"s_mov_b32 s{r+2}, s5")
    a("s_and_b32 s52, s7, 7\ns_lshr_b32 s53, s7, 3")
    a(f"s_lshl_b32 s5, s52, 7\ns_add_u32 s5, s5, s57\ns_mul_i32 s5, s5, 7168\ns_lshl_b32 s6, s53, 8\ns_add_u32 s{SB_GU}, s5, s6")
    a(f"s_lshl_b32 s5, s53, 7\ns_add_u32 s5, s5, s57\ns_lshl_b32 s5, s5, 11\ns_lshl_b32 s6, s52, 8\ns_add_u32 s{SB_DN}, s5, s6")
    lds_wait(C_MLD, 5 if cfg.steal else 1, DT, VCN)
    stamp(5, VST)
    assert not any(t in cfg.pre1 + cfg.pre2 + cfg.mid for t in ("gate", "up", "dn"))
    a(f"ds_read_b64 {vr(M_,2)}, v{X_}\ns_waitcnt lgkmcnt(0)")
    for i in range(16):
        a(f"v_sub_f32 v{T0+i}, v{T0+i}, v{M_}\nv_mul_f32 v{T0+i}, s62, v{T0+i}\nv_exp_f32 v{T0+i}, v{T0+i}")
    for i in range(16): a(f"v_mul_f32 v{T0+i}, v{T0+i}, v{L_}")
    for i in range(8): a(f"v_cvt_pk_bf16_f32 v{Q0+i}, v{T0+2*i}, v{T0+2*i+1}")
    a("s_mov_b32 s64, 0x00ff00ff\ns_mov_b32 s65, 0x00ff00ff\ns_mov_b32 s66, 0xff00ff00\ns_mov_b32 s67, 0xff00ff00")
    ACC = T0
    PL = lambda G: DT
    PH = lambda G: DT + 4
    def pbuild(G):
        b, pi = G >> 1, G & 1
        for i in range(4): a(f"v_cndmask_b32 v{(PH if pi else PL)(G)+i}, 0, v{Q0+4*b+i}, s[{64+2*pi}:{65+2*pi}]")
        for i in range(4): a(f"v_mov_b32_dpp v{(PL if pi else PH)(G)+i}, v{(PH if pi else PL)(G)+i} row_ror:8 {DPPF}")
    stage = [KV + 120, KV + 124, KV + 120, KV + 124]
    sidx = 0
    def perm(dst, G, p, j):
        lo = vslot(8 * G + 2 * p) + (j >> 1); hi = vslot(8 * G + 2 * p + 1) + (j >> 1)
        a(f"v_perm_b32 v{dst}, v{hi}, v{lo}, s{58 + (j & 1)}")
    def pv(G, j, st):
        c = "0" if (G == 0 and j < 4) else vr(ACC + 4 * (j & 3), 4)
        a(f"v_mfma_f32_16x16x32_bf16 {vr(ACC+4*(j&3),4)}, {vr(st,4)}, {vr((PH if j >= 4 else PL)(G),4)}, {c}")
    for G in range(3):
        pbuild(G)
        wait_id(vid[8 * G + 7])
        for j in range(8):
            st = stage[sidx & 3]; sidx += 1
            for p in range(4): perm(st + p, G, p, j)
            pv(G, j, st)
            if G in (1, 2) and j % 2 == 0 and nv < 32:
                if cfg.bal:
                    sk = a.newlabel("L_dv")
                    a(f"s_cbranch_vccnz {sk}\ns_waitcnt vmcnt({cfg.DV - 1})")
                    a.label(sk)
                    vload(nv, cfg.DVmax)
                else: vload(nv, cfg.DV)
                if nv == cfg.pv: lds_signal(C_P8, VCN, VONE)
                nv += 1
    a(f"s_add_u32 s5, s{SL4}, {L_OS}\nv_add_u32 v{VV}, s5, v{VV}")
    pbuild(3)
    SG = KV + 32
    n0 = min(cfg.nl0, len(lateq) - max(4, cfg.nl2))
    for p in range(3):
        wait_id(vid[24 + 2 * p + 1])
        if cfg.pv == 32 and p == 2: lds_signal(C_P8, VCN, VONE)
        if p >= 1:
            for _ in range((n0 + 2 - p) // 2):
                name, i = lateq.pop(0); dma(name, i, 63)
        for j in range(8): perm(SG + 4 * j + p, 3, p, j)
    wait_id(vid[31])
    if cfg.pv == 33: lds_signal(C_P8, VCN, VONE)
    order = [0, 4, 1, 5, 2, 6, 3, 7]
    for k in range(10):
        if k < 8: perm(SG + 4 * order[k] + 3, 3, 3, order[k])
        if k >= 2: pv(3, order[k - 2], SG + 4 * order[k - 2])
    stamp(6, VST)
    for e in range(4): a(f"ds_write_b128 v{VV}, {vr(ACC+4*e,4)} offset:{e*1024}")
    a("s_waitcnt lgkmcnt(0)")
    stamp(7, VST)
    a("s_barrier")
    signalled.add("dn")
    n1 = len(lateq) - cfg.nl2
    for k, (name, i) in enumerate(lateq):
        if k == n1:
            wait_n(0); lds_wait(C_Y, 4, DT, VCN, sleep=cfg.ysl)
        if ((name, i) == ("dn", 0) and k < n1 and not cfg.ofirst) or (cfg.ofirst and k == 0): lds_wait(C_OR, 4, DT, VCN, sleep=0)
        dma(name, i, (cfg.D3 if k < cfg.kb else cfg.D3b) if k < n1 else cfg.D4)
        if k == cfg.p5: assert k < n1; lds_signal(C_P5, VCN, VONE)
        if k == cfg.p6: lds_signal(C_P6, VCN, VONE)
        if cfg.yd >= 0 or cfg.hd: lds_signal(C_LC, VCN, VONE)
        if k == cfg.pmin: lds_signal(C_P7, VCN, VONE)
    for name in ("wo", "gate", "up"):
        if name not in signalled: wait_id(max(tiles[name]))
    a("s_waitcnt vmcnt(0)")
    if cfg.stamps == 1:
        stamp(8, VST)
        a(f"s_lshl_b32 s5, s2, 11\ns_lshl_b32 s6, s3, 7\ns_add_u32 s5, s5, s6\ns_add_u32 s5, s5, 0x8000000\nv_lshlrev_b32 v2, 2, v1")
        a(f"s_mov_b32 exec_hi, 0\nbuffer_store_dword v{VST}, v2, {sr(R_WSS,4)}, s5 offen sc1")
    a("s_endpgm")

    a.label("L_cwave")
    a("s_setprio 3")
    R_WS, R_X, R_C, R_OUT = 8, 16, 20, 24
    WV, SMY = 28, 29
    a(f"s_sub_u32 s{WV}, s3, 8\nv_subrev_u32 v0, 512, v0")
    VCN, VONE, VTR, VPUB, VACT, VA, VB, K_X, K_GA, K_GB, VST, K_C1, TAG, TB = 2, 3, 4, 5, 6, 7, 8, 9, 10, 11, 12, 13, 14, 15
    WK = 16
    ACT = WK + 8
    FWO, FG, FU, FD = 40, 72, 104, 136
    a(f"v_mov_b32 v{VCN}, {L_CNT}\nv_mov_b32 v{VONE}, 1\nv_mov_b32 v{WK}, 0")
    a(f"v_lshlrev_b32 v{WK+1}, 2, v1\nv_add_u32 v{WK+1}, {L_CNT}, v{WK+1}\nds_write_b32 v{WK+1}, v{WK}")
    for i in range(4): a(f"v_mov_b32 v{WK+4+i}, -1")
    for base in (L_HHV, L_OV, L_AT, L_AT + 320): a(f"ds_write_b32 v{WK+1}, v{WK+4} offset:{base - L_CNT}")
    a(f"s_mul_i32 s{SMY}, s2, {WS}\ns_and_b32 s30, s2, 7\ns_lshr_b32 s31, s2, 3")
    a(f"v_lshlrev_b32 v{VA}, 4, v1\nv_lshlrev_b32 v{VB}, 1, v1\nv_lshlrev_b32 v{WK+1}, 5, v1")
    a(f"s_lshl_b32 s32, s30, 7\ns_lshl_b32 s35, s{WV}, 5\ns_add_u32 s32, s32, s35")
    a("s_waitcnt lgkmcnt(0)")
    srd(R_WS, 104, 0x10000000); srd(R_X, 0, 2048); srd(R_C, 72, 2048); srd(R_OUT, 88, 2048)
    XR = FU
    a(f"s_mov_b32 s5, {EPOCH}\nbuffer_load_dword v{TAG}, off, {sr(R_WS,4)}, s5 sc1")
    a(f"s_lshr_b32 s5, s2, 4\ns_lshl_b32 s5, s5, 7\nbuffer_load_ushort v{WK}, v{VB}, {sr(R_C,4)}, s5 offen")
    a(f"buffer_load_dwordx4 {vr(XR,4)}, v{WK+1}, {sr(R_X,4)}, 0 offen\nbuffer_load_dwordx4 {vr(XR+4,4)}, v{WK+1}, {sr(R_X,4)}, 0 offen offset:16")
    a(f"v_and_b32 v{K_C1}, 7, v1\nv_lshlrev_b32 v{K_C1}, 2, v{K_C1}\nv_bfe_u32 v{WK+2}, v1, 4, 1\nv_lshl_add_u32 v{K_C1}, v{WK+2}, 1, v{K_C1}\nv_lshrrev_b32 v{WK+2}, 5, v1\nv_add_lshl_u32 v{K_C1}, v{K_C1}, v{WK+2}, 1")
    a(f"s_lshl_b32 s5, s32, 1\nbuffer_load_ushort v{K_GA}, v{K_C1}, {sr(R_X,4)}, s5 offen")
    a(f"s_and_b32 s80, s2, 3\ns_lshl_b32 s80, s80, 12\ns_add_u32 s80, s80, {MLA}\ns_and_b32 s81, s2, 0xfc\ns_lshl_b32 s81, s81, 4\ns_add_u32 s81, s81, s80")
    a(f"s_cmp_gt_u32 s{WV}, 1\ns_cbranch_scc1 L_clr_done\ns_cmp_eq_u32 s{WV}, 0\ns_cselect_b32 s5, s{SMY}, s81\ns_cselect_b64 exec, -1, 15")
    a(f"buffer_store_dwordx4 {vr(WK+4,4)}, v{VA}, {sr(R_WS,4)}, s5 offen sc1")
    if cfg.hint or cfg.role == 2:
        a(f"s_mov_b64 exec, 1\nbuffer_store_dword v{WK+4}, off, {sr(R_WS,4)}, s{SMY} offset:{TKT} sc1")
    a.label("L_clr_done")
    if cfg.qm:
        a(f"s_and_b32 s82, s2, 3\ns_lshl_b32 s82, s82, 3\ns_bfe_u32 s5, s2, 0x30003\ns_add_u32 s82, s82, s5\ns_lshl_b32 s83, s82, 8\ns_add_u32 s83, s83, {QF}")
        a(f"s_cmp_lg_u32 s{WV}, 2\ns_cbranch_scc1 L_clq_done\ns_and_b32 s5, s2, 0xc4\ns_cmp_lg_u32 s5, 0xc4\ns_cbranch_scc1 L_clq_done")
        a(f"s_mov_b64 exec, 0xffff\nbuffer_store_dwordx4 {vr(WK+4,4)}, v{VA}, {sr(R_WS,4)}, s83 offen sc1")
        a.label("L_clq_done")
    a("s_mov_b64 exec, -1")
    a("s_barrier")
    if cfg.stamps: a(f"v_mov_b32 v{VST}, 0\nv_writelane_b32 v{VST}, s96, 0")
    a(f"v_lshrrev_b32 v{WK+8}, 4, v1\nv_and_b32 v{WK+9}, 15, v1")
    a(f"v_lshlrev_b32 v{VPUB}, 6, v{WK+9}\nv_lshl_add_u32 v{VPUB}, v{WK+8}, 4, v{VPUB}")
    a(f"v_lshlrev_b32 v{VACT}, 4, v{WK+8}\nv_add_u32 v{VACT}, {L_MISC}, v{VACT}")
    a(f"v_bfe_u32 v{WK+10}, v1, 2, 2\nv_lshl_add_u32 v{WK+11}, v{WK+8}, 3, v{WK+10}\nv_lshlrev_b32 v{VTR}, 8, v{WK+11}")
    a(f"v_and_b32 v{WK+12}, 3, v1\nv_lshl_add_u32 v{VTR}, v{WK+12}, 3, v{VTR}")
    a(f"v_and_b32 v{WK+12}, 1, v{WK+8}\nv_lshl_add_u32 v{WK+12}, v{WK+12}, 2, v{WK+10}\ns_lshl_b32 s5, s{WV}, 1\nv_xor_b32 v{WK+12}, s5, v{WK+12}\nv_lshl_add_u32 v{VTR}, v{WK+12}, 5, v{VTR}")
    a(f"s_mov_b32 s33, {f2u(LOG2E):#x}\ns_mov_b32 s38, 0xffff0000")
    a("s_waitcnt vmcnt(0)")
    lds_signal(C_CLR, VCN, VONE)
    TB0 = 76
    a(f"v_readfirstlane_b32 s5, v{TAG}\ns_add_u32 s6, s5, 0x7f4a7c15\ns_mul_i32 s6, s6, 0x9e3779b1\ns_lshr_b32 s7, s6, 15\ns_xor_b32 s6, s6, s7")
    a("s_mul_i32 s6, s6, 0x85ebca6b\ns_lshr_b32 s7, s6, 13\ns_xor_b32 s6, s6, s7\ns_mul_i32 s6, s6, 0xc2b2ae35\ns_lshr_b32 s7, s6, 16\ns_xor_b32 s6, s6, s7")
    for k in range(4):
        a(f"s_and_b32 s7, s6, {0xff << (8*k):#x}\ns_cselect_b32 s7, 0, {0x5b << (8*k):#x}\ns_or_b32 s6, s6, s7")
    a("s_xor_b32 s5, s5, s6")
    for k in range(4): a(f"s_bfe_u32 s{TB0+k}, s5, {(8 << 16) | (8*k):#x}")
    a(f"v_mov_b32 v{TAG}, s5")
    stamp(1, VST)
    c_ = WK
    lo2 = LOG2E - struct.unpack("<f", struct.pack("<f", LOG2E))[0]
    a(f"v_lshlrev_b32 v{c_}, 16, v{c_}")
    a(f"v_max_f32 v{WK+13}, {f2u(-87.0):#x}, v{c_}\nv_min_f32 v{WK+13}, {f2u(100.0):#x}, v{WK+13}")
    a(f"v_mul_f32 v{WK+1}, s33, v{WK+13}\nv_fma_f32 v{WK+2}, v{WK+13}, s33, -v{WK+1}\nv_mov_b32 v{WK+3}, {f2u(lo2):#x}\nv_fmac_f32 v{WK+2}, v{WK+13}, v{WK+3}")
    a(f"v_exp_f32 v{WK+1}, -v{WK+1}\nv_mul_f32 v{WK+2}, {f2u(-0.6931471805599453):#x}, v{WK+2}")
    a(f"v_fma_f32 v{WK+1}, v{WK+1}, v{WK+2}, v{WK+1}\nv_add_f32 v{WK+1}, 1.0, v{WK+1}")
    a(f"v_rcp_f32 v{WK+2}, v{WK+1}\nv_mul_f32 v{WK+3}, v{c_}, v{WK+2}\nv_fma_f32 v{WK+13}, -v{WK+3}, v{WK+1}, v{c_}\nv_fmac_f32 v{WK+3}, v{WK+13}, v{WK+2}")
    rnd(WK + 3, WK + 3)
    a(f"s_lshl_b32 s5, s{WV}, 7\ns_add_u32 s6, s5, {L_SIL}\nv_add_u32 v{WK+1}, s6, v{VB}\nds_write_b16_d16_hi v{WK+1}, v{WK+3}")
    a(f"v_add_u32 v{WK+1}, s5, v{VACT}\ns_waitcnt lgkmcnt(0)\nds_read_b128 {vr(ACT,4)}, v{WK+1} offset:{L_SIL-L_MISC}\nds_read_b128 {vr(ACT+4,4)}, v{WK+1} offset:{L_SIL-L_MISC+64}")

    def den_from_var(v, rden):
        rnd(v, v); a(f"v_add_f32 v{v}, {f2u(1e-5):#x}, v{v}"); rnd(v, v)
        a(f"v_sqrt_f32 v{v}, v{v}"); rnd(v, v)
        a(f"v_rcp_f32 v{rden}, v{v}")
    def ln_stats(X, mean_b, rden, t0):
        p1, p2, u1 = t0, t0 + 2, t0 + 4
        a(f"v_readfirstlane_b32 s36, v{X}\ns_mov_b32 s37, s36")
        for i in range(0, 16, 2): a(f"v_pk_add_f32 {vr(X+i,2)}, {vr(X+i,2)}, s[36:37] neg_lo:[0,1] neg_hi:[0,1]")
        a(f"v_pk_mul_f32 {vr(p2,2)}, {vr(X,2)}, {vr(X,2)}\nv_pk_add_f32 {vr(p1,2)}, {vr(X,2)}, {vr(X+2,2)}")
        a(f"v_pk_fma_f32 {vr(p2,2)}, {vr(X+2,2)}, {vr(X+2,2)}, {vr(p2,2)}")
        for i in range(4, 16, 2):
            a(f"v_pk_add_f32 {vr(p1,2)}, {vr(p1,2)}, {vr(X+i,2)}\nv_pk_fma_f32 {vr(p2,2)}, {vr(X+i,2)}, {vr(X+i,2)}, {vr(p2,2)}")
        a(f"v_add_f32 v{p1}, v{p1}, v{p1+1}\nv_add_f32 v{p2}, v{p2}, v{p2+1}")
        a(f"v_permlane32_swap_b32 v{p1}, v{p2}\nv_add_f32 v{p1}, v{p1}, v{p2}")
        xreduce("v_add_f32", p1, u1, (16, 8, 4, 2, 1))
        a(f"v_mul_f32 v{p1}, {f2u(1.0/1024):#x}, v{p1}\nv_mov_b32 v{p2}, v{p1}\nv_permlane32_swap_b32 v{p1}, v{p2}")
        a(f"v_fma_f32 v{p2}, -v{p1}, v{p1}, v{p2}\nv_add_f32 v{p1}, s36, v{p1}\nv_max_f32 v{p2}, 0, v{p2}")
        rnd(mean_b, p1); den_from_var(p2, rden)
    XU = XR + 8
    for i in range(8):
        a(f"v_lshlrev_b32 v{XU+2*i}, 16, v{XR+i}\nv_and_b32 v{XU+2*i+1}, 0xffff0000, v{XR+i}")
    ln_stats(XU, WK, WK + 1, WK + 2)
    LN1 = K_GA
    a(f"v_lshlrev_b32 v{LN1}, 16, v{LN1}")
    a(f"v_sub_f32 v{LN1}, v{LN1}, v{WK}"); rnd(LN1, LN1); a(f"v_mul_f32 v{LN1}, v{LN1}, v{WK+1}"); rnd(LN1, LN1)
    lds_wait(C_CLR, 4, WK + 1, VCN, sleep=0)

    if True:
        a(f"s_getreg_b32 s14, hwreg(HW_REG_XCC_ID)\ns_cmp_lg_u32 s{WV}, 1\ns_cbranch_scc1 L_xc_done")
        a(f"v_mov_b32 v{WK}, s14\nv_mov_b32 v{WK+1}, v{TAG}\ns_lshl_b32 s5, s30, 8\ns_and_b32 s6, s2, 0xf8\ns_add_u32 s5, s5, s6\ns_add_u32 s5, s5, {XCP}\ns_mov_b64 exec, 1\nbuffer_store_dwordx2 {vr(WK,2)}, off, {sr(R_WS,4)}, s5 sc1\ns_mov_b64 exec, -1")
        a.label("L_xc_done")
    def tr_read(dst, vaddr, nkk, rs, base=0):
        for kk in range(nkk):
            for q in range(2):
                a(f"ds_read_b64_tr_b16 {vr(dst + kk*4 + 2*q, 2)}, v{vaddr} offset:{base + (32 * kk + 4 * q) * rs}")
    def tr_tile(dst, base, nkk, t0):
        a(f"v_add_u32 v{t0}, {base}, v{VTR}\nv_xor_b32 v{t0+1}, 32, v{t0}")
        tr_read(dst, t0, nkk, 256); tr_read(dst + 4 * nkk, t0 + 1, nkk, 256)
    MASKC = [0x0001000100010001 << i for i in range(4)]
    def mfma(d, x, y, first): a(f"v_mfma_f32_16x16x32_bf16 {vr(d,4)}, {vr(x,4)}, {vr(y,4)}, {'0' if first else vr(d,4)}")
    BT = WK + 7
    def tagit(d, s, k): a(f"v_and_or_b32 v{d}, v{s}, v{BT}, s{TB0+k}")
    def gemv_pub(frs, nkk, dacc, out, off, tagged=True, slot=None):
        n = len(frs)
        a(f"s_mul_i32 s5, s{WV}, {n*64}\ns_add_u32 s5, s5, s{SMY if slot is None else slot}\ns_add_u32 s5, s5, {off}")
        def fin(cg):
            setexec(MASKC[cg])
            for i in range(4):
                if tagged: tagit(out + i, dacc + 4 * cg + i, i)
                else: a(f"v_mov_b32 v{out+i}, v{dacc+4*cg+i}")
        lag = 2 if nkk == 2 else 1
        for cg in range(n + lag):
            if cg < n:
                if cg > lag: a("s_mov_b64 exec, -1")
                for kk in range(nkk): mfma(dacc + 4 * cg, frs[cg] + 4 * kk, ACT + 4 * kk, kk == 0)
            if cg >= lag: fin(cg - lag)
        setexec(sum(MASKC[:n]))
        a(f"buffer_store_dwordx4 {vr(out,4)}, v{VPUB}, {sr(R_WS,4)}, s5 offen sc1\ns_mov_b64 exec, -1")
    deferred = []
    def gather(loads, t0, kind="sent", tags=None, masked=True, between=None, acc=None):
        L = a.newlabel("L_g"); Ld = a.newlabel("L_gd"); Lc = a.newlabel("L_gc")
        PM = 40
        def ld(dst, wd, va, so):
            if so: a(f"s_mov_b32 s5, {so}")
            a(f"buffer_load_dword{'' if wd == 1 else 'x'+str(wd)} {vr(dst,wd)}, v{va}, {sr(R_WS,4)}, {'s5' if so else '0'} offen sc1")
        op3, op2 = ("v_max3_u32", "v_max_u32") if kind == "sent" else ("v_or3_b32", "v_or_b32")
        def tree(regs_):
            if len(regs_) == 1: return regs_[0]
            if len(regs_) == 2: a(f"{op2} v{t0}, v{regs_[0]}, v{regs_[1]}"); return t0
            a(f"{op3} v{t0}, v{regs_[0]}, v{regs_[1]}, v{regs_[2]}")
            rest = regs_[3:]
            while rest:
                if len(rest) >= 2: a(f"{op3} v{t0}, v{t0}, v{rest[0]}, v{rest[1]}"); rest = rest[2:]
                else: a(f"{op2} v{t0}, v{t0}, v{rest[0]}"); rest = []
            return t0
        def test(dst_s, r_):
            if kind == "sent": a(f"v_cmp_eq_u32 {dst_s}, -1, v{r_}")
            else: a(f"v_and_b32 v{t0}, 0xff, v{r_}\nv_cmp_ne_u32 {dst_s}, 0, v{t0}")
        def untag(dst, wd):
            for x in range(dst, dst + wd): a(f"v_xor_b32 v{x}, s{TB0 + x - dst}, v{x}")
        def accum(i):
            if acc is None or i == 0: return
            x = loads[0][0] if i == 1 else acc
            for h in (2, 0): a(f"v_pk_add_f32 {vr(acc+h,2)}, {vr(x+h,2)}, {vr(loads[i][0]+h,2)}")
        if not masked: a.label(L)
        for (dst, wd, va, so, em) in loads:
            if em is not None: setexec(em)
            ld(dst, wd, va, so)
            if em is not None: a("s_mov_b64 exec, -1")
        if between: between()
        if not masked: budget_check()
        if kind == "tag":
            a(f"s_waitcnt vmcnt(0)\ns_branch {Lc}")
        else:
            for i, (dst, wd, va, so, em) in enumerate(loads):
                a(f"s_waitcnt vmcnt({len(loads)-1-i})")
                if kind == "byte":
                    if em is not None: setexec(em)
                    untag(dst, wd)
                    if em is not None: a("s_mov_b64 exec, -1")
                r_ = tree(([t0] if i else []) + list(range(dst, dst + wd)))
                assert r_ == t0
                if i < len(loads) - 1: accum(i)
            test("vcc", t0)
            accum(len(loads) - 1)
            a(f"s_cbranch_vccnz {Lc if masked else L}")
            if not masked: return
        a.label(Ld)
        def retry():
            a.label(L)
            budget_check()
            for i, (dst, wd, va, so, em) in enumerate(loads):
                sk = a.newlabel("L_gs")
                a(f"s_mov_b64 exec, {sr(PM+2*i,2)}\ns_cbranch_execz {sk}")
                ld(dst, wd, va, so)
                a.label(sk)
            a("s_waitcnt vmcnt(0)")
            if kind == "byte":
                for i, (dst, wd, va, so, em) in enumerate(loads):
                    a(f"s_mov_b64 exec, {sr(PM+2*i,2)}"); untag(dst, wd)
            a("s_mov_b64 exec, -1")
            a.label(Lc)
            for i, (dst, wd, va, so, em) in enumerate(loads):
                if kind == "tag": a(f"v_cmp_ne_u32 {sr(PM+2*i,2)}, v{tags[i]}, v{TAG}")
                else: test(sr(PM + 2 * i, 2), tree(list(range(dst, dst + wd))))
            a(f"s_mov_b64 s[6:7], {sr(PM,2)}")
            for i in range(1, len(loads)): a(f"s_or_b64 s[6:7], s[6:7], {sr(PM+2*i,2)}")
            a(f"s_cmp_lg_u64 s[6:7], 0\ns_cbranch_scc1 {L}")
            for i in range(len(loads)): accum(i)
            a(f"s_nop 1\ns_branch {Ld}")
        deferred.append(retry)
    def tree_sum(base, n, stride=1):
        idx = [base + i * stride for i in range(n)]
        while len(idx) > 1:
            nx = []
            for i in range(0, len(idx) - 1, 2):
                a(f"v_add_f32 v{idx[i]}, v{idx[i]}, v{idx[i+1]}"); nx.append(idx[i])
            if len(idx) & 1: nx.append(idx[-1])
            idx = nx
    def pk_sum4(base, n):
        idx = [base + 4 * i for i in range(n)]
        while len(idx) > 1:
            nx = []
            for i in range(0, len(idx) - 1, 2):
                for h in (0, 2): a(f"v_pk_add_f32 {vr(idx[i]+h,2)}, {vr(idx[i]+h,2)}, {vr(idx[i+1]+h,2)}")
                nx.append(idx[i])
            if len(idx) & 1: nx.append(idx[-1])
            idx = nx
    def col_reduce(b):
        a(f"v_permlane32_swap_b32 v{b}, v{b+1}\nv_permlane32_swap_b32 v{b+2}, v{b+3}\nv_add_f32 v{b}, v{b}, v{b+1}\nv_add_f32 v{b+2}, v{b+2}, v{b+3}")
        a(f"v_permlane16_swap_b32 v{b}, v{b+2}\nv_add_f32 v{b}, v{b}, v{b+2}\nv_add_f32_dpp v{b}, v{b}, v{b} row_ror:8 {DPPF}")
    VCHK = 0
    def xch_read(lbase, nkk, t0, vact, two=False):
        L = a.newlabel("L_x"); Ld = a.newlabel("L_xd")
        a.label(L)
        a(f"ds_read_b32 v{t0}, v{VCHK} offset:{lbase - L_MISC}")
        if two: a(f"ds_read_b32 v{t0+1}, v{VCHK} offset:{lbase - L_MISC + 320}")
        for kk in range(nkk): a(f"ds_read_b128 {vr(ACT+4*kk,4)}, v{vact} offset:{lbase - L_MISC + kk*64}")
        a(f"s_waitcnt lgkmcnt({nkk})")
        if two: a(f"v_pk_max_u16 v{t0}, v{t0}, v{t0+1}")
        a(f"v_cmp_eq_u16 vcc, -1, v{t0}\nv_cmp_le_u32 s[6:7], s38, v{t0}\ns_or_b64 s[6:7], s[6:7], vcc")
        if nkk == 2: a("s_cmp_lg_u32 s6, 0")
        a(f"s_cbranch_scc0 {Ld}")
        budget_check()
        a(f"s_branch {L}")
        a.label(Ld)
        a("s_waitcnt lgkmcnt(0)")

    def bal_run(limit):
        Lb = a.newlabel("L_bal"); Le = a.newlabel("L_bale")
        a(f"s_cmp_lg_u32 s{WV}, 3\ns_cbranch_scc1 {Le}")
        h = FWO
        a(f"s_mul_i32 s36, s30, {WS}\ns_add_u32 s36, s36, {BRD}\ns_lshr_b32 s37, s2, 3\ns_lshl_b32 s37, s37, 2\ns_add_u32 s37, s37, s36")
        a(f"v_lshlrev_b32 v{h}, 2, v1\nv_lshlrev_b32 v{h+1}, 10, v{TAG}")
        a.label(Lb)
        a(f"ds_read_b32 v{h+2}, v{VCN} offset:{C_T*4}\ns_waitcnt lgkmcnt(0)\nv_readfirstlane_b32 s41, v{h+2}\ns_sub_u32 s41, s41, s39")
        a(f"v_or_b32 v{h+2}, s41, v{h+1}\ns_mov_b64 exec, 1\nbuffer_store_dword v{h+2}, off, {sr(R_WS,4)}, s37 {cfg.lfl}")
        a(f"s_mov_b64 exec, -1\ns_cmp_ge_u32 s41, {limit}\ns_cbranch_scc1 {Le}")
        a(f"s_mov_b32 exec_hi, 0\nbuffer_load_dword v{h+3}, v{h}, {sr(R_WS,4)}, s36 offen sc1\ns_mov_b64 exec, -1")
        budget_check()
        a(f"s_waitcnt vmcnt(0)\nv_xor_b32 v{h+3}, v{h+3}, v{h+1}\nv_cmp_gt_u32 vcc, 1024, v{h+3}\nv_cndmask_b32 v{h+3}, 0, v{h+3}, vcc")
        xreduce("v_add_u32", h + 3, h + 4, (1, 2, 4, 8, 16))
        a(f"v_readfirstlane_b32 s42, v{h+3}\ns_lshr_b32 s42, s42, 5\ns_sub_u32 s42, s42, s41\ns_sub_u32 s43, s42, s39\ns_mov_b32 s39, s42")
        a(f"v_mov_b32 v{h+2}, s43\ns_mov_b64 exec, 1\nds_add_u32 v{VCN}, v{h+2} offset:{C_T*4}\ns_mov_b64 exec, -1\ns_branch {Lb}")
        a.label(Le)
    a("s_mov_b32 s39, 0")
    def mod_tile(t, cnt):
        lds_wait(cnt, 8, WK, VCN)
        tr_tile(FU, L_MOD + t * 16384, 2, WK + 4)
        a("s_waitcnt lgkmcnt(0)")
        gemv_pub([FU, FU + 8], 2, FU + 16, FU + 24, MODP + (t - 1) * 512 if t else HP, tagged=bool(t))
    mod_tile(0, C_CRIT)
    a(f"v_mov_b32 v{BT}, 0xffffff00")
    stamp(2, VST)
    a(f"v_lshrrev_b32 v{WK}, 3, v1\nv_mul_u32_u24 v{VA}, {16*WS}, v{WK}\nv_and_b32 v{WK}, 7, v1\nv_lshl_add_u32 v{VA}, v{WK}, 4, v{VA}")
    a(f"s_mul_i32 s5, s30, {WS}\ns_lshl_b32 s7, s{WV}, 7\ns_add_u32 s5, s5, s7\nv_add_u32 v{VA}, s5, v{VA}")
    if cfg.qm:
        a(f"v_lshl_add_u32 v{TB}, v1, 3, s30\nv_and_b32 v{WK}, 7, v1\ns_and_b32 s5, s2, 3\ns_add_u32 s5, s5, 196\ns_lshl_b32 s6, s82, 3")
        a(f"s_mov_b32 exec_lo, 0\nv_lshl_add_u32 v{TB}, v{WK}, 3, s5\ns_mov_b32 exec_hi, 0xff\nv_add_u32 v{TB}, s6, v{WK}\ns_mov_b64 exec, -1")
    else:
        a(f"v_lshl_add_u32 v{TB}, v1, 3, s30\ns_and_b32 s5, s2, 3\ns_lshl_b32 s5, s5, 6\ns_lshl_b32 s6, s{WV}, 4\ns_add_u32 s5, s5, s6\nv_and_b32 v{WK}, 15, v1")
        a(f"s_mov_b32 exec_lo, 0\nv_add_u32 v{TB}, s5, v{WK}\ns_mov_b32 exec_lo, -1")
    a(f"v_and_b32 v{WK}, 7, v{TB}\nv_and_b32 v{TB}, 0xf8, v{TB}\nv_lshl_add_u32 v{TB}, v{WK}, 8, v{TB}")
    lds_wait(C_WQ, 8, WK + 4, VCN)
    tr_tile(FD, L_WQ, 4, WK + 4)
    mod_tile(1, C_MOD1)
    if not cfg.steal: mod_tile(2, C_MOD2)
    stamp(3, VST)
    gather([(FG, 2, TB, XCP, None)], WK, kind="tag", tags=[FG + 1])
    a(f"v_cmp_ne_u32 vcc, s14, v{FG}\ns_cmp_eq_u32 vcc_lo, 0\ns_cselect_b32 s15, 1, 0")
    if cfg.balk: bal_run(8 * (cfg.p1 - cfg.hl))
    lds_wait(C_P1, 8, WK + 4, VCN)
    stamp(4, VST)
    gather([(FU + 4 * i, 4, VA, HP + (i >> 1) * 8 * WS + (i & 1) * 128 * WS, None) for i in range(4)], WK)
    stamp(5, VST)
    pk_sum4(FU, 2); pk_sum4(FU + 8, 2); col_reduce(FU); col_reduce(FU + 8)
    rnd(FU, FU); rnd(FU + 8, FU + 8)
    a(f"v_add_f32 v{FU+8}, 1.0, v{FU+8}"); rnd(FU + 8, FU + 8)
    a(f"v_mul_f32 v{LN1}, v{LN1}, v{FU+8}"); rnd(LN1, LN1); a(f"v_add_f32 v{LN1}, v{LN1}, v{FU}"); rnd(LN1, LN1)
    a(f"s_lshl_b32 s5, s{WV}, 6\ns_add_u32 s5, s5, {L_HV}\nv_add_u32 v{VB}, s5, v{K_C1}")
    a(f"ds_write_b16_d16_hi v{VB}, v{LN1}\ns_waitcnt lgkmcnt(0)")
    lds_signal(C_H, VCN, VONE)
    lds_wait(C_H, 4, WK, VCN, sleep=0)
    for kk in range(4): a(f"ds_read_b128 {vr(ACT+4*kk,4)}, v{VACT} offset:{L_HV - L_MISC + kk*64}")
    a("s_waitcnt lgkmcnt(0)")
    gemv_pub([FD, FD + 16], 4, FU, FU + 8, QP, tagged=False)
    stamp(6, VST)
    if cfg.steal:
        a(f"s_xor_b32 s84, s2, 4\ns_mul_i32 s84, s84, {WS}\ns_cmp_lg_u32 s{WV}, 1\ns_cbranch_scc1 L_cl_done")
        a(f"v_mov_b32 v{FG}, v{TAG}\nv_mov_b32 v{FG+1}, v{TAG}")
        lds_wait(C_PA, 8, WK, VCN)
        a(f"s_mov_b64 exec, 1\nbuffer_atomic_swap v{FG}, off, {sr(R_WS,4)}, s{SMY} offset:{CLM} sc0 sc1\ns_mov_b64 exec, -1")
        lds_wait(C_PB, 8, WK, VCN)
        a(f"s_mov_b64 exec, 1\nbuffer_atomic_swap v{FG+1}, off, {sr(R_WS,4)}, s84 offset:{CLM} sc0 sc1\ns_waitcnt vmcnt(0)")
        a(f"v_cmp_ne_u32 vcc, v{FG}, v{TAG}\nv_cndmask_b32 v{FG}, 4, 5, vcc\nv_cmp_ne_u32 vcc, v{FG+1}, v{TAG}\nv_cndmask_b32 v{FG+1}, 0, 2, vcc\nv_add_u32 v{FG}, v{FG}, v{FG+1}")
        a(f"ds_write_b32 v{VCN}, v{FG} offset:{C_DEC*4}\ns_mov_b64 exec, -1")
        a.label("L_cl_done")
    if cfg.qm:
        a(f"s_and_b32 s5, s2, 0xc4\ns_cmp_lg_u32 s5, 0xc4\ns_cbranch_scc1 L_qm_done")
        a(f"v_lshrrev_b32 v{WK}, 3, v1\nv_mul_u32_u24 v{VA}, {WS}, v{WK}\nv_and_b32 v{WK+1}, 7, v1\nv_lshl_add_u32 v{VA}, v{WK+1}, 4, v{VA}\nv_lshlrev_b32 v{WK+1}, 3, v{WK+1}")
        a(f"s_mul_i32 s5, s82, {8*WS}\ns_lshl_b32 s6, s{WV}, 7\ns_add_u32 s5, s5, s6\nv_add_u32 v{VA}, s5, v{VA}\ns_lshl_b32 s6, s{WV}, 6\ns_add_u32 s83, s83, s6")
        lds_wait(C_PM, 8, WK + 4, VCN)
        gather([(FG, 4, VA, QP, None)], WK)
        for e in range(4): xreduce("v_add_f32", FG + e, FG + 4 + e, (8, 16, 32))
        a(f"v_cvt_pk_bf16_f32 v{FG}, v{FG}, v{FG+1}\nv_cvt_pk_bf16_f32 v{FG+1}, v{FG+2}, v{FG+3}")
        a(f"s_mov_b64 exec, 0xff\nbuffer_store_dwordx2 {vr(FG,2)}, v{WK+1}, {sr(R_WS,4)}, s83 offen sc1\ns_mov_b64 exec, -1")
        a.label("L_qm_done")
        a(f"s_and_b32 s5, s2, 3\ns_lshl_b32 s5, s5, 11\nv_lshlrev_b32 v{WK+2}, 3, v0\nv_add_u32 v{VA}, s5, v{WK+2}\nv_add_u32 v{WK+2}, {L_QV}, v{WK+2}")
        lds_wait(C_P2, 8, WK + 4, VCN)
        stamp(20, VST)
        gather([(FG + 8, 2, VA, QF, None)], WK)
        stamp(7, VST)
        a(f"ds_write_b64 v{WK+2}, {vr(FG+8,2)}\ns_waitcnt lgkmcnt(0)")
    else:
        a(f"s_and_b32 s5, s2, 3\ns_lshl_b32 s5, s5, 3\nv_lshrrev_b32 v{WK+4}, 5, v0\nv_add_u32 v{WK+4}, s5, v{WK+4}\nv_mul_u32_u24 v{VA}, {8*WS}, v{WK+4}")
        a(f"v_and_b32 v{WK+4}, 31, v0\nv_lshl_add_u32 v{VA}, v{WK+4}, 4, v{VA}")
        a(f"v_lshlrev_b32 v{WK+2}, 3, v0\nv_add_u32 v{WK+2}, {L_QV}, v{WK+2}")
        if cfg.balk: bal_run(8 * (cfg.p2 - cfg.hl))
        lds_wait(C_P2, 8, WK + 4, VCN)
        stamp(20, VST)
        gather([(FG + 4 * i, 4, VA, QP + i * WS, None) for i in range(1 if cfg.dbgh & 2 else 8)], WK)
        if cfg.dbgh & 2:
            for i in range(4, 32): a(f"v_mov_b32 v{FG+i}, 0")
        stamp(7, VST)
        pk_sum4(FG, 8)
        a(f"v_cvt_pk_bf16_f32 v{WK}, v{FG}, v{FG+1}\nv_cvt_pk_bf16_f32 v{WK+1}, v{FG+2}, v{FG+3}")
        a(f"ds_write_b64 v{WK+2}, {vr(WK,2)}\ns_waitcnt lgkmcnt(0)")
    lds_signal(C_Q, VCN, VONE)
    a(f"s_add_u32 s5, s2, s{WV}\ns_cmp_lg_u32 s5, 0\ns_cbranch_scc1 L_ep_done")
    a(f"s_mov_b32 s5, {EPOCH}\ns_mov_b64 exec, 1\nbuffer_store_dword v{TAG}, off, {sr(R_WS,4)}, s5 sc1\ns_mov_b64 exec, -1")
    a.label("L_ep_done")
    ROLE, RBF, SFY, VAW = 31, 12, 13, WK + 6
    def role_make():
        a(f"s_cmp_lg_u32 s{WV}, 1\ns_cbranch_scc1 L_role_done")
        if cfg.role == 2:
            lds_wait(C_P4, 8, WK, VCN, sleep=2)
            a(f"s_mul_i32 s5, s30, {WS}\ns_add_u32 s5, s5, {TKT}\nv_mov_b32 v{WK}, 1\ns_mov_b64 exec, 1")
            a(f"buffer_atomic_add v{WK}, off, {sr(R_WS,4)}, s5 sc0 sc1\ns_waitcnt vmcnt(0)\nv_readfirstlane_b32 s36, v{WK}\ns_add_u32 s36, s36, 1")
        if cfg.role == 0: a("s_mov_b32 s5, s2")
        else:
            if cfg.role == 1: a("s_lshr_b32 s36, s2, 3")
            a("s_lshr_b32 s6, s36, 3\ns_mul_i32 s5, s30, 3\ns_add_u32 s5, s5, s6\ns_add_u32 s7, s30, 24\ns_cmp_lt_u32 s6, 3\ns_cselect_b32 s5, s5, s7")
            a("s_cmp_lt_u32 s6, 4\ns_cselect_b32 s5, s5, 28\ns_lshl_b32 s5, s5, 3\ns_and_b32 s6, s36, 7\ns_add_u32 s5, s5, s6")
        a(f"s_add_u32 s5, s5, 1\nv_mov_b32 v{WK}, s5\ns_mov_b64 exec, 1\nds_write_b32 v{VCN}, v{WK} offset:{C_ROLE*4}\ns_mov_b64 exec, -1")
        a.label("L_role_done")
    def rest_mod():
        lds_wait(C_ROLE, 1, WK, VCN, sleep=2)
        a(f"s_sub_u32 s{ROLE}, s5, 1")
        a(f"s_and_b32 s{RBF}, s{ROLE}, 7\ns_mul_i32 s{SFY}, s{ROLE}, {WS}\ns_lshl_b32 s32, s{RBF}, 7\ns_lshl_b32 s5, s{WV}, 5\ns_add_u32 s32, s32, s5")
        a(f"s_lshl_b32 s5, s32, 1\nbuffer_load_ushort v{K_X}, v{K_C1}, {sr(R_X,4)}, s5 offen")
        a(f"v_lshrrev_b32 v{WK}, 3, v1\nv_mul_u32_u24 v{WK+1}, {WS}, v{WK}\nv_and_b32 v{WK+2}, 7, v1\nv_lshlrev_b32 v{WK+2}, 4, v{WK+2}")
        a(f"s_mul_i32 s34, s{RBF}, {WS}\ns_lshl_b32 s6, s{WV}, 7\ns_add_u32 s34, s34, s6")
        a(f"s_lshl_b32 s5, s32, 4\nv_lshl_add_u32 v{VA}, v{K_C1}, 3, s5")
        gather([(FG, 4, VA, MODF, None)], WK, kind="byte")
        a(f"v_and_b32 v{WK+3}, 8, v1\nv_mul_u32_u24 v{WK+3}, 40, v{WK+3}\ns_lshl_b32 s5, s{WV}, 6\ns_add_u32 s5, s5, {L_AT}\nv_add3_u32 v{VAW}, v{WK+3}, v{K_C1}, s5")
        a(f"v_mov_b32 v{TB}, v{K_C1}")
        a(f"v_mov_b32 v{K_GA}, v{FG}\nv_mov_b32 v{K_GB}, v{FG+3}\nv_add_f32 v{K_C1}, 1.0, v{FG+2}"); rnd(K_C1, K_C1)
        a(f"v_mov_b32_dpp v{FG+1}, v{K_C1} quad_perm:[0,1,2,3] row_mask:0xf bank_mask:0x3")
        a(f"ds_write_b16_d16_hi v{VAW}, v{FG+1} offset:640")
        stamp(8, VST)
        a(f"v_lshlrev_b32 v{K_X}, 16, v{K_X}")
    role_make()
    a(f"s_cmp_lg_u32 s{WV}, 0\ns_cbranch_scc1 L_ml_pub")
    lds_wait(C_ML, 8, WK, VCN, sleep=2)
    stamp(9, VST)
    a(f"v_lshlrev_b32 v{WK+2}, 3, v1\nv_add_u32 v{WK+3}, {L_MLW}, v{WK+2}\nds_read_b64 {vr(WK,2)}, v{WK+3}\ns_waitcnt lgkmcnt(0)")
    a(f"v_mov_b32 v{WK+4}, v{WK}")
    xreduce("v_max_f32", WK + 4, WK + 6, (8, 16, 32))
    a(f"v_sub_f32 v{WK}, v{WK}, v{WK+4}\nv_mul_f32 v{WK}, s33, v{WK}\nv_exp_f32 v{WK}, v{WK}\nv_mul_f32 v{WK+5}, v{WK}, v{WK+1}")
    xreduce("v_add_f32", WK + 5, WK + 6, (8, 16, 32))
    a(f"s_mov_b64 exec, 0xff\nbuffer_store_dwordx2 {vr(WK+4,2)}, v{WK+2}, {sr(R_WS,4)}, s81 offen sc1\ns_mov_b64 exec, -1")
    a.label("L_ml_pub")
    if cfg.steal:
        a(f"s_lshl_b32 s5, s{WV}, 7\nv_add_u32 v{WK+1}, s5, v{VACT}\nds_read_b128 {vr(ACT,4)}, v{WK+1} offset:{L_SIL-L_MISC}\nds_read_b128 {vr(ACT+4,4)}, v{WK+1} offset:{L_SIL-L_MISC+64}")
        lds_wait(C_DEC, 1, WK, VCN)
        a("s_mov_b32 s85, s5")
        for bit, cnt, base, slot in ((0, C_MOD2, L_MOD + 32768, None), (1, C_MOD3, L_WO, 84)):
            a(f"s_bitcmp1_b32 s85, {bit}\ns_cbranch_scc0 L_st_skip{bit}")
            lds_wait(cnt, 8, WK, VCN)
            tr_tile(FU, base, 2, WK + 4)
            a("s_waitcnt lgkmcnt(0)")
            gemv_pub([FU, FU + 8], 2, FU + 16, FU + 24, MODP + 512, slot=slot)
            a.label(f"L_st_skip{bit}")
        lds_signal(C_MLD, VCN, VONE)
    a(f"s_cmp_lg_u32 s{WV}, 2\ns_cbranch_scc1 L_modf_done\ns_and_b32 s5, s2, 0xc4\ns_cmp_lg_u32 s5, 0xc4\ns_cbranch_scc1 L_modf_done")
    a(f"s_bfe_u32 s36, s2, 0x30003\ns_and_b32 s37, s2, 3\ns_mul_i32 s5, s36, {WS}\ns_lshl_b32 s6, s37, 7\ns_add_u32 s5, s5, s6")
    a(f"v_lshrrev_b32 v{WK}, 3, v1\nv_mul_u32_u24 v{VA}, {16*WS}, v{WK}\nv_and_b32 v{WK}, 7, v1\nv_lshl_add_u32 v{VA}, v{WK}, 4, v{VA}\nv_add_u32 v{VA}, s5, v{VA}")
    if cfg.steal: lds_wait(C_P9, 8, WK, VCN, sleep=4)
    mv = [MODP, MODP + 8 * WS, MODP + 512, MODP + 512 + 8 * WS]
    gather([(FG + 8 * v + 4 * i, 4, VA, mv[v] + i * 128 * WS, None) for v in range(4) for i in range(2)], WK, kind="byte")
    for v in range(4):
        pk_sum4(FG + 8 * v, 2); col_reduce(FG + 8 * v); rnd(FG + 8 * v, FG + 8 * v)
    for v in range(4): tagit(FU + v, FG + 8 * v, v)
    a(f"v_lshlrev_b32 v{WK}, 3, v{K_C1}\ns_lshl_b32 s5, s36, 11\ns_lshl_b32 s6, s37, 9\ns_add_u32 s5, s5, s6\ns_add_u32 s5, s5, {MODF}")
    setexec(0x00ff00ff00ff00ff)
    a(f"buffer_store_dwordx4 {vr(FU,4)}, v{WK}, {sr(R_WS,4)}, s5 offen sc1\ns_mov_b64 exec, -1")
    a.label("L_modf_done")
    a(f"s_cmp_lg_u32 s{WV}, 0\ns_cbranch_scc1 L_ml_done")
    a(f"v_lshl_add_u32 v{VA}, v1, 3, s80")
    lds_wait(C_P3, 8, WK, VCN)
    stamp(21, VST)
    gather([(FU + 2 * i, 2, VA, i * 512, None) for i in range(8)], WK)
    m_, r_, t_ = FU + 16, FU + 17, FU + 18
    a(f"v_max3_f32 v{m_}, v{FU}, v{FU+2}, v{FU+4}\nv_max3_f32 v{m_}, v{m_}, v{FU+6}, v{FU+8}\nv_max3_f32 v{m_}, v{m_}, v{FU+10}, v{FU+12}\nv_max_f32 v{m_}, v{m_}, v{FU+14}")
    xreduce("v_max_f32", m_, t_, (8, 16, 32))
    for i in range(8):
        a(f"v_sub_f32 v{FU+2*i}, v{FU+2*i}, v{m_}\nv_mul_f32 v{FU+2*i}, s33, v{FU+2*i}\nv_exp_f32 v{FU+2*i}, v{FU+2*i}")
    for i in range(8): a(f"v_mul_f32 v{FU+2*i}, v{FU+2*i}, v{FU+2*i+1}")
    tree_sum(FU, 8, 2)
    xreduce("v_add_f32", FU, t_, (8, 16, 32))
    a(f"v_rcp_f32 v{r_}, v{FU}")
    a(f"v_lshlrev_b32 v{t_}, 3, v1\nv_add_u32 v{t_}, {L_MLF}, v{t_}\ns_mov_b64 exec, 0xff\nds_write_b64 v{t_}, {vr(m_,2)}\ns_waitcnt lgkmcnt(0)")
    lds_signal(C_MLD, VCN, VONE)
    stamp(10, VST)
    a.label("L_ml_done")
    if cfg.bal >= 2: bal_run(8 * (cfg.NS - cfg.hstop - cfg.D2 - cfg.nq2 + (32 if cfg.balk else 0)))
    lds_wait(C_P3, 8, WK, VCN, sleep=4)
    rest_mod()
    late = lst(cfg.late)
    def ffn_frags(name, t0):
        base, dst, cnt = {"wo": (L_WO, FWO, C_WO), "gate": (L_GATE, FG, C_GATE), "up": (L_UP, FU, C_UP), "dn": (L_DN, FD, None)}[name]
        if cnt is not None: lds_wait(cnt, 8, t0, VCN, sleep=0 if name in late else 2)
        tr_tile(dst, base, 4, t0)
    if "wo" not in late: ffn_frags("wo", WK + 3)
    for name in ("gate", "up"):
        if name not in late: ffn_frags(name, WK + 3)
    A_OS, A_OG, A_XW = ACT + 8, ACT + 9, ACT + 10
    A_A = WK + 5
    assert all(t in late for t in ("gate", "up"))
    if cfg.ared:
        a(f"s_and_b32 s5, s2, 3\ns_mul_i32 s5, s5, {WS}\ns_lshl_b32 s6, s{RBF}, 9\ns_add_u32 s5, s5, s6\ns_lshl_b32 s7, s{WV}, 7\ns_add_u32 s5, s5, s7")
    else:
        a(f"s_lshr_b32 s5, s2, 6\ns_mul_i32 s5, s5, {WS}\ns_lshl_b32 s6, s30, 9\ns_add_u32 s5, s5, s6\ns_lshl_b32 s7, s{WV}, 7\ns_add_u32 s5, s5, s7")
    a(f"v_lshl_add_u32 v{A_A}, v{WK+1}, 2, v{WK+2}\nv_add_u32 v{A_A}, s5, v{A_A}")
    a(f"s_mul_i32 s5, s{RBF}, {8*WS}\ns_add_u32 s5, s5, s7\nv_add3_u32 v{VA}, v{WK+1}, v{WK+2}, s5")
    a(f"v_lshl_add_u32 v{WK+1}, v{WK+1}, 3, v{WK+2}\nv_add_u32 v{WK+1}, s34, v{WK+1}")
    a(f"s_and_b32 s5, s{ROLE}, 0xf8\ns_mul_i32 s5, s5, {WS}\ns_lshl_b32 s6, s{WV}, 8\ns_add_u32 s5, s5, s6\nv_lshrrev_b32 v{WK}, 4, v1\nv_mul_u32_u24 v{WK}, {WS}, v{WK}")
    a(f"v_and_b32 v{WK+2}, 15, v1\nv_lshlrev_b32 v{WK+2}, 4, v{WK+2}\nv_add3_u32 v{WK+2}, v{WK}, v{WK+2}, s5")
    A_Y, A_Z, A_E = VA, WK + 1, WK + 2
    a(f"v_lshrrev_b32 v{WK}, 4, v1\nv_and_b32 v{WK+3}, 15, v1\nv_lshlrev_b32 v{A_OS}, 10, v{WK}\nv_lshl_add_u32 v{A_OS}, v{WK+3}, 4, v{A_OS}")
    a(f"s_lshl_b32 s5, s{WV}, 8\ns_add_u32 s5, s5, {L_OS}\nv_add_u32 v{A_OS}, s5, v{A_OS}")
    a(f"v_and_b32 v{A_OG}, 7, v1\nv_lshlrev_b32 v{A_OG}, 9, v{A_OG}\nv_lshl_add_u32 v{A_OG}, v{WK}, 4, v{A_OG}\nv_and_b32 v{WK+3}, 8, v1\nv_lshl_add_u32 v{A_OG}, v{WK+3}, 3, v{A_OG}")
    a(f"s_lshl_b32 s37, s{WV}, 7\ns_add_u32 s37, s37, s{SMY}\ns_add_u32 s37, s37, {OP}")
    a(f"v_and_b32 v{WK+3}, 7, v1\nv_bfe_u32 v{WK+4}, v1, 4, 1\nv_lshl_add_u32 v{WK+3}, v{WK+4}, 4, v{WK+3}\nv_lshrrev_b32 v{WK+4}, 5, v1\nv_lshl_add_u32 v{WK+3}, v{WK+4}, 3, v{WK+3}")
    if cfg.ared: a(f"s_lshl_b32 s5, s{WV}, 7\ns_add_u32 s5, s5, {L_RV}\nv_lshl_add_u32 v{A_XW}, v{WK+3}, 1, s5\nv_readfirstlane_b32 s33, v{TAG}")
    else: a(f"s_lshl_b32 s5, s{WV}, 6\ns_add_u32 s5, s5, {L_OV}\nv_lshl_add_u32 v{A_XW}, v{WK+3}, 1, s5")
    a(f"v_lshlrev_b32 v{VCHK}, 2, v1\nv_add_u32 v{VCHK}, {L_MISC}, v{VCHK}")
    def e_preread(t):
        a(f"v_lshlrev_b32 v{t}, 7, v1\ns_lshl_b32 s5, s{WV}, 8\ns_add_u32 s5, s5, s{SFY}\ns_add_u32 s5, s5, {GUP}\ns_mov_b64 exec, 7")
        a(f"buffer_load_dword v{t}, v{t}, {sr(R_WS,4)}, s5 offen sc1\ns_mov_b64 exec, -1")
    if cfg.warm:
        a(f"s_getpc_b64 s[6:7]\ns_lshl_b32 s5, s{WV}, 11\nv_lshlrev_b32 v{WK+4}, 7, v1\nv_add_u32 v{WK+4}, s5, v{WK+4}\ns_mov_b64 exec, 0xffff")
        a(f"global_load_dword v{WK+3}, v{WK+4}, s[6:7]\ns_mov_b64 exec, -1")
    a(f"v_readfirstlane_b32 s35, v{TAG}\ns_lshl_b32 s35, s35, 10\ns_or_b32 s35, s35, {8 * (cfg.NS - cfg.D2 - cfg.nq2 + (32 if cfg.balk else 0)) + 1}")
    if cfg.zt:
        a(f"s_lshl_b32 s5, s{WV}, 7\ns_add_u32 s5, s5, s{SFY}\ns_add_u32 s5, s5, {ZP}\ns_mov_b64 exec, 1\nbuffer_load_dword v{TAG}, off, {sr(R_WS,4)}, s5 sc1\ns_mov_b64 exec, -1")
    if cfg.ot & 1:
        a(f"v_lshlrev_b32 v{WK+4}, 7, v1\ns_lshl_b32 s5, s{WV}, 10\ns_add_u32 s5, s5, s{SMY}\ns_add_u32 s5, s5, {OP}\ns_mov_b64 exec, 0xff\nbuffer_load_dword v{TAG}, v{WK+4}, {sr(R_WS,4)}, s5 offen sc1\ns_mov_b64 exec, -1")
    if cfg.ot & 2:
        a(f"s_lshl_b32 s5, s{WV}, 7\ns_add_u32 s5, s5, s{SMY}\ns_add_u32 s5, s5, {YP}\ns_mov_b64 exec, 1\nbuffer_load_dword v{TAG}, off, {sr(R_WS,4)}, s5 sc1\ns_mov_b64 exec, -1")
    if cfg.elocal and cfg.epre == 1: e_preread(WK + 3); a("s_waitcnt vmcnt(0)")
    h = FG
    def cd_mark():
        a(f"s_mul_i32 s36, s30, {WS}\ns_add_u32 s36, s36, {BRD}\ns_lshr_b32 s5, s2, 3\ns_lshl_b32 s5, s5, 2\ns_add_u32 s5, s5, s36")
        a(f"v_lshlrev_b32 v{h}, 2, v1\nv_mov_b32 v{h+1}, s35\nv_mov_b32 v{h+4}, 8\ns_mov_b64 exec, 1\nbuffer_store_dword v{h+1}, off, {sr(R_WS,4)}, s5 {cfg.lfl}\ns_mov_b32 exec_lo, -1")
    def hint_mark(early):
        a(f"s_cmp_lg_u32 s{WV}, 3\ns_cbranch_scc1 L_hm_done")
        if early: lds_wait(C_P8, 8, WK, VCN)
        if cfg.hint == 3: a("s_waitcnt vmcnt(0)"); stamp(30, VST)
        a(f"s_mul_i32 s5, s30, {WS}\ns_add_u32 s5, s5, {TKT}\nv_mov_b32 v{h}, 1\nv_mul_u32_u24 v{h+1}, {WS}, v1\nv_mov_b32 v{h+2}, s35\ns_mov_b64 exec, 1")
        a(f"buffer_atomic_add v{h}, off, {sr(R_WS,4)}, s5 sc0 sc1\ns_mov_b64 exec, -1")
        a(f"s_and_b32 s36, s2, 3\ns_mul_i32 s36, s36, {64*WS}\ns_and_b32 s5, s2, 4\ns_add_u32 s36, s36, s5\ns_add_u32 s36, s36, {INB}")
        a(f"s_waitcnt vmcnt(0)\nv_readfirstlane_b32 s5, v{h}\ns_cmp_lg_u32 s5, 30\ns_cbranch_scc1 L_hm_done")
        a(f"buffer_store_dword v{h+2}, v{h+1}, {sr(R_WS,4)}, s36 offen sc1")
        a.label("L_hm_done")
    if cfg.hint:
        if cfg.hint == 1: hint_mark(True)
    elif cfg.cdone and cfg.pv >= 0:
        a(f"s_cmp_lg_u32 s{WV}, 3\ns_cbranch_scc1 L_cm_done")
        lds_wait(C_P8, 8, WK, VCN)
        cd_mark()
        a(f"buffer_load_dword v{h+2}, v{h}, {sr(R_WS,4)}, s36 offen sc1\ns_mov_b64 exec, -1")
        a.label("L_cm_done")
    a("s_waitcnt lgkmcnt(0)")
    stamp(11, VST)
    a("s_barrier")
    stamp(12, VST)
    for s in range(8): a(f"ds_read_b128 {vr(FD+4*s,4)}, v{A_OS} offset:{s*4096}")
    a("s_waitcnt lgkmcnt(4)"); pk_sum4(FD, 4)
    a("s_waitcnt lgkmcnt(0)"); pk_sum4(FD + 16, 4)
    a(f"v_pk_add_f32 {vr(FD,2)}, {vr(FD,2)}, {vr(FD+16,2)}\nv_pk_add_f32 {vr(FD+2,2)}, {vr(FD+2,2)}, {vr(FD+18,2)}")
    for i in range(4): tagit(FD + i, FD + i, i)
    a(f"buffer_store_dwordx4 {vr(FD,4)}, v{A_OG}, {sr(R_WS,4)}, s37 offen sc1")
    stamp(13, VST)
    def betweenA():
        if cfg.p5 < 0: lds_signal(C_OR, VCN, VONE)
        if "wo" in late: ffn_frags("wo", WK + 3)
    if cfg.p5 >= 0:
        lds_signal(C_OR, VCN, VONE)
        if cfg.ared: a(f"s_cmp_lt_u32 s{ROLE}, 224\ns_cbranch_scc1 L_ar_done")
        if cfg.hint:
            if cfg.hint >= 2: hint_mark(False)
            a(f"s_cmp_lg_u32 s{WV}, 2\ns_cbranch_scc1 L_hp_done")
            a(f"s_add_u32 s5, s{SMY}, {INB}\ns_add_u32 s40, s{KA(104)}, s5\ns_addc_u32 s41, s{KA(104)+1}, 0\nv_mov_b32 v{h+4}, 8")
            a.label("L_hp")
            a(f"s_load_dwordx2 s[42:43], s[40:41], 0 glc\nds_read_b32 v{h+3}, v{VCN} offset:{C_P5*4}")
            budget_check()
            a(f"s_waitcnt lgkmcnt(0)\nv_readfirstlane_b32 s5, v{h+3}\ns_cmp_ge_u32 s5, 8\ns_cbranch_scc1 L_hp_done")
            a(f"s_cmp_lg_u32 s42, s35\ns_cbranch_scc1 L_hp\ns_cmp_lg_u32 s43, s35\ns_cbranch_scc1 L_hp")
            if cfg.hd:
                a(f"ds_read_b32 v{WK}, v{VCN} offset:{C_LC*4}\ns_waitcnt lgkmcnt(0)\nv_readfirstlane_b32 s42, v{WK}\ns_add_u32 s42, s42, {cfg.hd}\ns_min_u32 s42, s42, {8 * (16 - cfg.nl0 - cfg.nmid - cfg.npre)}")
                lds_wait(C_LC, "s42", WK, VCN)
            a(f"s_mov_b64 exec, 1\nds_add_u32 v{VCN}, v{h+4} offset:{C_P5*4}\ns_mov_b64 exec, -1")
            a.label("L_hp_done")
        elif cfg.cdone:
            a(f"s_cmp_lg_u32 s{WV}, 3\ns_cbranch_scc1 L_cd_done")
            if cfg.pv < 0: cd_mark()
            else: a(f"s_mov_b32 exec_hi, 0\ns_waitcnt vmcnt(1)\ns_branch L_cd_chk")
            a.label("L_cd")
            a(f"buffer_load_dword v{h+2}, v{h}, {sr(R_WS,4)}, s36 offen sc1\nds_read_b32 v{h+3}, v{VCN} offset:{C_P5*4}")
            budget_check()
            a(f"s_waitcnt lgkmcnt(0)\nv_readfirstlane_b32 s5, v{h+3}\ns_cmp_ge_u32 s5, 8\ns_cbranch_scc1 L_cd_out\ns_waitcnt vmcnt(0)")
            a.label("L_cd_chk")
            a(f"v_cmp_eq_u32 vcc, s35, v{h+2}\ns_bcnt1_i32_b64 s5, vcc\ns_cmp_lt_u32 s5, {cfg.cdone}\ns_cbranch_scc1 L_cd")
            a(f"s_mov_b64 exec, 1\nds_add_u32 v{VCN}, v{h+4} offset:{C_P5*4}")
            a.label("L_cd_out")
            a("s_mov_b64 exec, -1")
            a.label("L_cd_done")
        if cfg.pmin >= 0: lds_wait(C_P7, 8, WK, VCN)
        lds_wait(C_P5, 8, WK, VCN)
    stamp(28, VST)
    if cfg.dbgh & 4:
        for i in range(32): a(f"v_mov_b32 v{FU+i}, 0")
    gather([(FU + 4 * i, 4, A_A, OP + i * 32 * WS, 0x0101010101010101 if cfg.dbgh & 4 else None) for i in range(8)], WK, kind="byte", between=None if cfg.ared else betweenA, acc=FD + 4)
    if cfg.yrel == 1: lds_signal(C_Y, VCN, VONE)
    stamp(30 if cfg.ared else 14, VST)
    col_reduce(FD + 4)
    rnd(FD + 4, FD + 4)
    a(f"ds_write_b16_d16_hi v{A_XW}, v{FD+4}")
    if cfg.ared:
        r_ = FD + 8
        a(f"v_mul_u32_u24 v{r_+4}, 43, v1\nv_lshrrev_b32 v{r_+4}, 8, v{r_+4}\nv_mul_u32_u24 v{r_+5}, 6, v{r_+4}\nv_sub_u32 v{r_+5}, v1, v{r_+5}")
        a(f"v_mul_u32_u24 v{r_+6}, 12, v{r_+5}\ns_lshl_b32 s5, s{WV}, 7\ns_add_u32 s6, s5, {L_RV}\nv_add_u32 v{r_+6}, s6, v{r_+6}")
        a(f"ds_read2_b32 {vr(r_,2)}, v{r_+6} offset0:0 offset1:1\nds_read_b32 v{r_+2}, v{r_+6} offset:8\nv_mov_b32 v{r_+3}, s33")
        a(f"v_mul_u32_u24 v{r_+4}, {8*WS}, v{r_+4}\nv_lshl_add_u32 v{r_+4}, v{r_+5}, 4, v{r_+4}")
        a(f"s_and_b32 s6, s2, 3\ns_lshl_b32 s6, s6, 6\ns_add_u32 s6, s6, s{RBF}\ns_mul_i32 s6, s6, {WS}\ns_add_u32 s5, s5, s6\ns_add_u32 s5, s5, {OIN}")
        a(f"s_mov_b32 exec_hi, 0xffff\ns_waitcnt lgkmcnt(0)\nbuffer_store_dwordx4 {vr(r_,4)}, v{r_+4}, {sr(R_WS,4)}, s5 offen sc1\ns_mov_b32 exec_hi, -1")
        a.label("L_ar_done")
        ffn_frags("wo", WK + 3)
        a(f"s_lshl_b32 s5, s{WV}, 7\ns_add_u32 s5, s5, s{SMY}\ns_add_u32 s5, s5, {OIN}\ns_add_u32 s40, s{KA(104)}, s5\ns_addc_u32 s41, s{KA(104)+1}, 0")
        a(f"s_lshl_b32 s5, s{WV}, 6\ns_add_u32 s5, s5, {L_OV}\nv_mov_b32 v{r_+16}, s5\ns_branch L_ap0")
        a.label("L_ap")
        if cfg.asl: a(f"s_sleep {cfg.asl}")
        a.label("L_ap0")
        a("s_load_dwordx16 s[44:59], s[40:41], 0 glc\ns_load_dwordx8 s[60:67], s[40:41], 64 glc")
        budget_check()
        a("s_waitcnt lgkmcnt(0)")
        for g in range(6): a(f"s_cmp_lg_u32 s{47+4*g}, s33\ns_cbranch_scc1 L_ap")
        a("s_mov_b64 exec, 1")
        for i in range(16):
            a(f"v_mov_b32 v{r_+i}, s{44 + 4*(i//3) + i%3}")
            if i % 4 == 3: a(f"ds_write_b128 v{r_+16}, {vr(r_+i-3,4)} offset:{(i-3)*4}")
        a("s_mov_b64 exec, -1")
        stamp(14, VST)
    xch_read(L_OV, 4, WK, VACT)
    gemv_pub([FWO, FWO + 16], 4, FD, FD + 16, YP)
    if not cfg.yrel: lds_signal(C_Y, VCN, VONE)
    stamp(15, VST)
    a(f"s_cmp_lt_u32 s{ROLE}, 224\ns_cbranch_scc1 L_ffn")
    if cfg.yrel == 2: lds_signal(C_Y, VCN, VONE)
    a("s_branch L_fin")
    a.label("L_ffn")
    a(f"s_mov_b32 s{SMY}, s{SFY}")
    if cfg.yd >= 0:
        a(f"ds_read_b32 v{WK}, v{VCN} offset:{C_LC*4}\ns_waitcnt lgkmcnt(0)\nv_readfirstlane_b32 s34, v{WK}\ns_add_u32 s34, s34, {cfg.yd}\ns_min_u32 s34, s34, {8 * (16 - cfg.nl0 - cfg.nmid - cfg.npre)}")
    A_AT, A_M, A_GS = FD + 20, FD + 21, FD + 22
    a(f"v_and_b32 v{WK}, 3, v1\nv_mul_u32_u24 v{WK+3}, 320, v{WK}\nv_add_u32 v{A_AT}, v{WK+3}, v{VACT}")
    a(f"v_bfe_u32 v{WK+3}, v1, 2, 3\nv_mul_u32_u24 v{WK+3}, {WS}, v{WK+3}\nv_lshl_add_u32 v{A_M}, v{WK}, 4, v{WK+3}\ns_and_b32 s5, s{ROLE}, 0xf8\ns_mul_i32 s5, s5, {WS}\nv_add_u32 v{A_M}, s5, v{A_M}")
    a(f"s_lshl_b32 s36, s{WV}, 8\ns_add_u32 s36, s36, s{SMY}\ns_add_u32 s36, s36, {GUP}\nv_lshlrev_b32 v{A_GS}, 2, v1")
    a(f"s_lshl_b32 s37, s{WV}, 4\ns_add_u32 s37, s37, s{SMY}\ns_add_u32 s37, s37, {MOM}")
    a(f"s_lshl_b32 s5, s{WV}, 6\ns_add_u32 s5, s5, {L_HHV}\nv_add_u32 v{VB}, s5, v{TB}")
    def store_gl(data, vaddr, soff):
        if cfg.elocal:
            Lf = a.newlabel("L_far"); Lj = a.newlabel("L_stj")
            a(f"s_cmp_eq_u32 s15, 0\ns_cbranch_scc1 {Lf}")
            a(f"buffer_store_dwordx4 {vr(data,4)}, {vaddr}, {sr(R_WS,4)}, {soff} {cfg.lfl}")
            a.label(Lj)
            def far():
                a.label(Lf); a(f"buffer_store_dwordx4 {vr(data,4)}, {vaddr}, {sr(R_WS,4)}, {soff} sc1\ns_branch {Lj}")
            deferred.append(far)
        else: a(f"buffer_store_dwordx4 {vr(data,4)}, {vaddr}, {sr(R_WS,4)}, {soff} sc1")
    if cfg.elocal and cfg.epre == 2: e_preread(FD + 23)
    def gu_frags():
        for name in ("gate", "up"):
            if name in late: ffn_frags(name, WK + 3)
    if cfg.bgate == 1: gu_frags()
    if cfg.nb: lds_wait(C_UP, cfg.nb, WK, VCN, sleep=0)
    if cfg.yd >= 0:
        lds_wait(C_LC, "s34", WK, VCN)
    if cfg.p6 >= 0: lds_wait(C_P6, 8, WK, VCN)
    if cfg.ackB: a("s_waitcnt vmcnt(0)")
    stamp(29, VST)
    gather([(FWO + 4 * i, 4, A_Y, YP + i * 64 * WS, None) for i in range(4)], WK, kind="byte", between=gu_frags if cfg.bgate == 2 else None, acc=FD, masked=bool(cfg.bmask))
    if cfg.yrel == 2: lds_signal(C_Y, VCN, VONE)
    stamp(16, VST)
    col_reduce(FD)
    y_ = FD
    rnd(y_, y_); a(f"v_mul_f32 v{y_}, v{y_}, v{K_GA}"); rnd(y_, y_); a(f"v_add_f32 v{K_X}, v{K_X}, v{y_}"); rnd(K_X, K_X)
    st_ = y_ + 4; mo = y_ + 8
    a(f"v_mov_b32 v{st_}, v{K_X}\nv_mul_f32 v{y_}, v{K_X}, v{K_C1}")
    a(f"v_mul_f32_dpp v{st_}, v{K_X}, v{K_X} quad_perm:[0,1,2,3] row_mask:0xf bank_mask:0xc\nv_mov_b32 v{st_+1}, v{st_}")
    rnd(y_ + 1, y_)
    a(f"s_nop 0\nv_permlane32_swap_b32 v{st_}, v{st_+1}\nv_add_f32 v{st_}, v{st_}, v{st_+1}\nv_mov_b32 v{st_+1}, v{st_}")
    a(f"v_subrev_f32_dpp v{y_}, v{y_+1}, v{y_} quad_perm:[0,1,2,3] row_mask:0xf bank_mask:0xc")
    rnd(y_, y_)
    a(f"v_permlane16_swap_b32 v{st_}, v{st_+1}\nv_add_f32 v{st_}, v{st_}, v{st_+1}")
    a(f"ds_write_b16_d16_hi v{VAW}, v{y_}")
    xreduce("v_add_f32", st_, None, ("quad_perm:[1,0,3,2]", "quad_perm:[2,3,0,1]", "row_half_mirror"))
    a(f"v_and_b32 v{mo}, v{st_}, v{BT}\nv_sub_f32 v{mo+1}, v{st_}, v{mo}")
    tagit(mo, mo, 0)
    a(f"v_mov_b32_dpp v{mo+2}, v{st_} row_ror:8 {DPPF}\nv_mov_b32_dpp v{mo+3}, v{mo+1} row_ror:8 {DPPF}")
    tagit(mo + 1, mo + 1, 1); tagit(mo + 2, mo + 2, 2); tagit(mo + 3, mo + 3, 3)
    a("s_mov_b64 exec, 1")
    store_gl(mo, "off", "s37")
    a("s_mov_b64 exec, -1")
    stamp(22, VST)
    frs = [FG, FG + 16, FU, FU + 16]; dacc = FWO; out = FWO + 16
    mg = y_ + 12
    mload = f"buffer_load_dwordx4 {vr(mg,4)}, v{A_M}, {sr(R_WS,4)}, s34 offen sc1"
    a(f"s_mov_b32 s34, {MOM}")
    if cfg.bgate == 0: gu_frags()
    xch_read(L_AT, 4, WK + 3, A_AT, two=True)
    for cg in range(5):
        if cg < 4:
            if cg > 1: a("s_mov_b64 exec, -1")
            if cg == cfg.mfirst: a(mload)
            for kk in range(4): mfma(dacc + 4 * cg, ACT + 4 * kk, frs[cg] + 4 * kk, kk == 0)
            if cg == 0:
                for k in range(4): a(f"v_mov_b32 v{out+4+k}, s{TB0+k}")
        if cg >= 1:
            d = dacc + 4 * (cg - 1)
            setexec(0xffff << (16 * (cg - 1)))
            a(f"v_add_f32 v{out}, v{d}, v{d+1}\nv_pk_mov_b32 {vr(out+2,2)}, {vr(d+2,2)}, {vr(d+2,2)} op_sel:[0,1]")
    a("s_mov_b64 exec, -1")
    if cfg.mfirst < 4: a("s_branch L_mchk")
    a.label("L_mld")
    a(mload); budget_check()
    a.label("L_mchk")
    a("s_waitcnt vmcnt(0)")
    for k in range(4): a(f"v_xor_b32 v{mg+k}, s{TB0+k}, v{mg+k}")
    a(f"v_or3_b32 v{WK}, v{mg}, v{mg+1}, v{mg+2}\nv_or_b32 v{WK}, v{WK}, v{mg+3}\nv_and_b32 v{WK}, 0xff, v{WK}\nv_cmp_ne_u32 vcc, 0, v{WK}\ns_cbranch_vccnz L_mld")
    stamp(27, VST)
    a(f"v_add_f32 v{mg}, v{mg}, v{mg+1}\ns_mov_b32 exec_lo, 0\nv_add_f32 v{mg}, v{mg+2}, v{mg+3}\ns_mov_b32 exec_lo, -1")
    xreduce("v_add_f32", mg, mg + 1, (16, 8, 4, 2, 1))
    a(f"v_mul_f32 v{mg}, {f2u(1.0/1024):#x}, v{mg}\nv_mov_b32 v{mg+1}, v{mg}\nv_permlane32_swap_b32 v{mg}, v{mg+1}")
    a(f"v_fma_f32 v{mg+1}, -v{mg}, v{mg}, v{mg+1}"); rnd(mg, mg)
    a(f"v_max_f32 v{mg+1}, 0, v{mg+1}\nv_fma_f32 v{out}, -v{mg}, v{out+2}, v{out}")
    den_from_var(mg + 1, mg + 2)
    a(f"v_fma_f32 v{out}, v{out}, v{mg+2}, v{out+3}\nv_and_b32 v{out}, v{out}, v{BT}")
    for k in range(4): a(f"v_or_b32_dpp v{out+4+k}, v{out}, v{out+4+k} quad_perm:[{k},{k},{k},{k}] {DPPF}")
    setexec(0x1111111111111111)
    store_gl(out + 4, f"v{A_GS}", "s36 offen")
    a("s_mov_b64 exec, -1")
    stamp(23, VST)
    def dnf():
        a("s_barrier")
        ffn_frags("dn", WK + 3)
    eg = [(FG + 4 * i, 4, A_E, GUP + i * 4 * WS, None) for i in range(2)]
    if not cfg.efirst: dnf()
    if cfg.ackE: a("s_waitcnt vmcnt(0)")
    stamp(17, VST)
    gather(eg, WK, kind="byte", masked=cfg.efirst == 1, between=dnf if cfg.efirst == 1 else None, acc=FU)
    if cfg.efirst == 2: dnf()
    stamp(18, VST)
    g_ = FU
    a(f"v_permlane32_swap_b32 v{g_}, v{g_+1}\nv_permlane32_swap_b32 v{g_+2}, v{g_+3}\nv_add_f32 v{g_}, v{g_}, v{g_+1}\nv_add_f32 v{g_+2}, v{g_+2}, v{g_+3}")
    a(f"v_permlane16_swap_b32 v{g_}, v{g_+2}\nv_add_f32 v{g_}, v{g_}, v{g_+2}")
    rnd(g_, g_)
    k2 = -2.0 * 0.7978845608028654 * LOG2E
    a(f"v_mul_f32 v{g_+2}, v{g_}, v{g_}\nv_mul_f32 v{g_+3}, {f2u(k2):#x}, v{g_}\nv_mul_f32 v{g_+2}, {f2u(0.044715):#x}, v{g_+2}\nv_fma_f32 v{g_+2}, v{g_+2}, v{g_+3}, v{g_+3}")
    a(f"v_exp_f32 v{g_+2}, v{g_+2}\nv_mov_b32_dpp v{g_+1}, v{g_} row_ror:8 {DPPF}\nv_add_f32 v{g_+2}, 1.0, v{g_+2}\nv_rcp_f32 v{g_+2}, v{g_+2}\nv_mul_f32 v{g_}, v{g_}, v{g_+2}")
    rnd(g_, g_); a(f"v_mul_f32 v{g_}, v{g_}, v{g_+1}")
    setexec(0x00ff00ff00ff00ff)
    rnd(g_, g_)
    a(f"ds_write_b16_d16_hi v{VB}, v{g_}\ns_mov_b64 exec, -1")
    xch_read(L_HHV, 4, WK, VACT)
    gemv_pub([FD, FD + 16], 4, FG, FG + 8, ZP)
    stamp(19, VST)
    if cfg.clean:
        a(f"v_lshlrev_b32 v{WK+3}, 2, v1")
        setexec(0x1111111111111111)
        a(f"buffer_store_dwordx4 {vr(out+4,4)}, v{WK+3}, {sr(R_WS,4)}, s36 offen sc1\ns_mov_b64 exec, 1\nbuffer_store_dwordx4 {vr(out+4,4)}, off, {sr(R_WS,4)}, s37 sc1")
        a(f"s_mul_i32 s5, s30, {WS}\ns_lshr_b32 s6, s2, 3\ns_lshl_b32 s6, s6, 2\ns_add_u32 s5, s5, s6\nbuffer_store_dword v{out+4}, off, {sr(R_WS,4)}, s5 offset:{BRD} sc1\ns_mov_b64 exec, -1")
    a(f"s_lshr_b32 s5, s{ROLE}, 3\ns_cmp_lg_u32 s5, {cfg.dgrp}\ns_cbranch_scc1 L_fin")
    for i in range(4): a(f"v_mov_b32 v{FU+12+i}, 0")
    a("s_lshl_b32 s36, s32, 1")
    stamp(26, VST)
    if cfg.ackD: a("s_waitcnt vmcnt(0)")
    if cfg.dsl: a(f"s_sleep {cfg.dsl}")
    gather([(FU + 4 * i, 4, A_Z, ZP + i * 64 * WS, None if i < 3 else 0xffffffff) for i in range(4)], WK, kind="byte", masked=False, acc=FU + 16)
    stamp(24, VST)
    z_ = FU + 16
    col_reduce(z_)
    rnd(z_, z_); a(f"v_mul_f32 v{z_}, v{z_}, v{K_GB}"); rnd(z_, z_); a(f"v_add_f32 v{z_}, v{K_X}, v{z_}")
    setexec(0x00ff00ff00ff00ff)
    rnd(z_, z_)
    a(f"buffer_store_short_d16_hi v{z_}, v{TB}, {sr(R_OUT,4)}, s36 offen" + (" sc1" if cfg.outsc else "") + "\ns_mov_b64 exec, -1")
    stamp(25, VST)
    a.label("L_fin")
    if cfg.stamps:
        a(f"s_lshl_b32 s5, s2, 11\ns_lshl_b32 s6, s3, 7\ns_add_u32 s5, s5, s6\ns_add_u32 s5, s5, 0x8000000\nv_lshlrev_b32 v2, 2, v1")
        a(f"s_mov_b32 exec_hi, 0\nbuffer_store_dword v{VST}, v2, {sr(R_WS,4)}, s5 offen sc1")
    a("s_endpgm")
    for f in deferred: f()
    a.label("L_end")
    body = "\n".join(hazard.run(a.l)) + "\n"
    return wrap(body, 256, 768, LDS_BYTES, 168, extra_desc="  .amdhsa_float_denorm_mode_32 3\n")

if __name__ == "__main__":
    out = sys.argv[1]
    kw = {}
    for x in sys.argv[2:]:
        k, v = x.split("="); kw[k] = int(v) if v.lstrip("-").isdigit() else v
    open(out, "w").write(gen(Cfg(**kw)))
```

```python
import sys, os, struct
from asmgen import *
import hazard

def f2u(x): return struct.unpack("<I", struct.pack("<f", x))[0]
LOG2E = 1.4426950408889634

class Cfg:
    D1 = 3; D2 = 3; DV = 6; D3 = 3
    stamps = False
    spin_budget = 1 << 18
    pre1 = "crit,wq,mod1,mod2"
    pre2 = ""
    mid = ""
    late = "wo,gate,up,dn"
    nl0 = 3
    nl2 = 0
    p1 = 8; p2 = 23; p3 = 21
    ackB = 1; ackE = 0; ackD = 1
    bgate = 1
    outsc = 1
    xp = ""
    rot = 0
    pb = 3
    wg = 0
    xm = 1
    kvl = "X"
    hstop = 4
    NS = 30
    steal = 0
    sa = 18; sb = 21; p9 = 8
    D3b = 3; kb = 99
    clean = 0
    lfl = ""
    npre = 0
    qm = 0
    pm = 19
    dbgh = 0
    ared = 0
    asl = 2; apm = 2
    ofirst = 1
    bmask = 1
    D4 = 63
    ot = 2
    hd = 0
    hint = 0
    yd = -1
    pv = 31
    cdone = 32
    pmin = 3
    mfirst = 2
    nq2 = 0
    nmid = 0
    D0 = 3; n0 = 0
    ktouch = 0
    dsl = 0
    dgrp = 0
    warm = 0
    nb = 0
    p5 = 8
    p6 = 12
    ysl = 1
    efirst = 0
    bal = 2
    Dmin = 2; Dmax = 5; th = -12; balk = 0; DVmax = 6; Kmin = 2; Kmax = 4; hl = 2
    yrel = 0
    zt = 3
    elocal = 1
    epre = 2
    role = 1
    p4 = 18
    touch = 0
    def __init__(self, **kw):
        for k, v in kw.items():
            assert hasattr(self, k), k
            setattr(self, k, v)

QP, HP = 0, 512
TKT = 1024
OIN = 9472
INB = 9344
CLM = 1408
BRD = 1280
MODP = 2048
YP, ZP, OP, GUP, MOM = 3072, 3584, 4096, 8192, 9216
MODF = 6 << 20
XCP = MODF + 65536
MLA = MODF + 131072
QF = MODF + 196608
EPOCH = 8 << 20
L_MOD, L_WQ, L_UP, L_DN, L_WO, L_GATE, L_MISC = 0, 0xC000, 0, 0x8000, 0x14000, 0x1C000, 0x24000
L_OS = L_DN
L_CNT = L_MISC
(C_CRIT, C_WQ, C_MOD1, C_MOD2, C_WO, C_GATE, C_UP, C_DN, C_Q, C_H, C_ML, C_MLD, C_CLR, C_P1, C_P2, C_P3, C_Y, C_OR, C_ROLE, C_P4, C_T, C_TK, C_P5, C_P6, C_P7, C_P8, C_LC, C_PM, C_PA, C_PB, C_DEC, C_MOD3, C_P9) = range(33)
L_QV = L_MISC + 0x100
L_HV = L_MISC + 0x900
L_HHV = L_MISC + 0xA00
L_OV = L_MISC + 0xB00
L_RV = L_MISC + 0x1700
L_SIL = L_MISC + 0xC00
L_MLW = L_MISC + 0xE00
L_MLF = L_MISC + 0x1000
L_AT = L_MISC + 0x1100
LDS_BYTES = 160 * 1024

DOC = """;
; One persistent launch, 256 workgroups (one per CU) x 12 waves.
;   waves 0..7  stream all big operands (nt loads): w_mod, wq tiles -> LDS, K -> registers, V -> registers, wo/gate/up/down tiles -> LDS,
;               and do QK^T, the exact two-pass softmax (true global max, exchanged between the 64 splits of a kv head) and PV with MFMA.
; Hand-offs are self-validating: 16-B granules carry this launch's tag (derived from the word the previous launch left in d_ws) in the low
; byte of every dword, or slots are cleared to a sentinel first and read only after the owner's tagged flag. Stores are write-through (sc1);
"""
def is_reducer(w): return w < 8
def vr(a, n=1): return f"v{a}" if n == 1 else f"v[{a}:{a+n-1}]"
def sr(a, n=1): return f"s{a}" if n == 1 else f"s[{a}:{a+n-1}]"

def gen(cfg):
    a = Asm()
    WS = 10112
    BUD = 4
    lst = lambda x: [t for t in x.split(",") if t]
    def srd_load(r, karg_off): a(f"s_load_dwordx2 {sr(r,2)}, s[0:1], {karg_off}")
    def srd_fin(r, nbytes): a(f"s_mov_b32 s{r+2}, {nbytes}\ns_mov_b32 s{r+3}, 0x20000")
    def rnd(d, s): a(f"v_cvt_pk_bf16_f32 v{d}, 0, v{s}")
    def setexec(m): a(f"s_mov_b32 exec_lo, {m & 0xffffffff:#x}\ns_mov_b32 exec_hi, {m >> 32:#x}")
    def stamp(idx, vreg):
        if cfg.stamps == 1 or (cfg.stamps == 2 and idx == 25): a(f"s_memrealtime s[98:99]\ns_waitcnt lgkmcnt(0)\nv_writelane_b32 v{vreg}, s98, {idx}")
    def budget_check(): a(f"s_sub_u32 s{BUD}, s{BUD}, 1\ns_cbranch_scc1 L_end")
    def lds_wait(cnt, target, vtmp, vaddr, sleep=1):
        L = a.newlabel("L_lw"); Ld = a.newlabel("L_lwd")
        a.label(L)
        a(f"ds_read_b32 v{vtmp}, v{vaddr} offset:{cnt*4}\ns_waitcnt lgkmcnt(0)\nv_readfirstlane_b32 s5, v{vtmp}")
        a(f"s_cmp_ge_u32 s5, {target}\ns_cbranch_scc1 {Ld}")
        if sleep: a(f"s_sleep {sleep}")
        budget_check()
        a(f"s_branch {L}")
        a.label(Ld)
    def lds_signal(cnt, vaddr, vone):
        a(f"s_mov_b64 exec, 1\nds_add_u32 v{vaddr}, v{vone} offset:{cnt*4}\ns_mov_b64 exec, -1")
    DPPF = "row_mask:0xf bank_mask:0xf"
    def xreduce(op, v, t, steps):
        for s in steps:
            if s in (1, 2, 4, 8): a(f"{op}_dpp v{v}, v{v}, v{v} row_ror:{s} {DPPF}")
            elif s == 16: a(f"v_mov_b32 v{t}, v{v}\nv_permlane16_swap_b32 v{v}, v{t}\n{op} v{v}, v{v}, v{t}")
            elif s == 32: a(f"v_mov_b32 v{t}, v{v}\nv_permlane32_swap_b32 v{v}, v{t}\n{op} v{v}, v{v}, v{t}")
            else: a(f"{op}_dpp v{v}, v{v}, v{v} {s} {DPPF}")

    a("s_load_dwordx16 s[68:83], s[0:1], 0\ns_load_dwordx8 s[84:91], s[0:1], 64\ns_load_dwordx4 s[92:95], s[0:1], 96")
    KA = lambda off: 68 + off // 4
    a("s_cmp_ge_u32 s2, 256\ns_cbranch_scc1 L_end")
    a("v_lshrrev_b32 v2, 6, v0\nv_and_b32 v1, 63, v0")
    a("v_readfirstlane_b32 s3, v2")
    a(f"s_mov_b32 s{BUD}, {cfg.spin_budget}")
    if cfg.stamps: a("s_memrealtime s[96:97]")
    a("s_cmp_ge_u32 s3, 8\ns_cbranch_scc1 L_cwave")

    R_MOD, R_WQ, R_WO, R_G, R_U, R_DN, R_K, R_V, R_WSS = 8, 12, 16, 20, 24, 28, 32, 36, 40
    VK, VV, VGU, VDN, VCN, VONE = 2, 3, 4, 5, 6, 7
    Q0, T0, DT, KV = 8, 16, 32, 40
    VMOD, VWQ, VST = 16, 17, 0
    SB_MOD, SB_WQ, SB_WO, SB_GU, SB_DN, SB_KV, SO, SL, SL4 = 44, 45, 46, 47, 48, 49, 50, 51, 56
    def srd(r, off, nbytes): a(f"s_mov_b64 {sr(r,2)}, {sr(KA(off),2)}\ns_mov_b32 s{r+2}, {nbytes}\ns_mov_b32 s{r+3}, 0x20000")
    a.c('================= stream waves (0..7): every large load, QK^T, softmax, PV =================')
    a.c("lane offsets and scalar bases of this wave's share of the w_mod / wq tiles (16-B chunks swizzled for the transposing LDS reads)")
    a("v_and_b32 v32, 15, v1\nv_lshrrev_b32 v33, 4, v1\nv_lshlrev_b32 v34, 1, v33\nv_xor_b32 v34, v34, v32\nv_lshlrev_b32 v34, 4, v34")
    a(f"v_mul_u32_u24 v{VMOD}, 12288, v33\nv_add_u32 v{VMOD}, v{VMOD}, v34\ns_and_b32 s63, s3, 1\ns_lshl_b32 s63, s63, 7\nv_xor_b32 v{VMOD}, s63, v{VMOD}")
    a(f"v_lshl_add_u32 v{VWQ}, v33, 13, v34")
    a(f"s_lshr_b32 s5, s2, 4\ns_lshl_b32 s5, s5, 6\ns_lshl_b32 s6, s3, 3\ns_add_u32 s5, s5, s6\ns_mul_i32 s5, s5, 12288")
    a(f"s_and_b32 s6, s2, 15\ns_lshl_b32 s6, s6, 8\ns_add_u32 s{SB_MOD}, s5, s6\ns_lshl_b32 s{SL}, s3, 11\ns_lshl_b32 s{SL4}, s3, 12")
    a("s_and_b32 s52, s2, 7\ns_lshr_b32 s53, s2, 3")
    a(f"s_lshl_b32 s5, s52, 7\ns_lshl_b32 s57, s3, 4\ns_add_u32 s54, s5, s57")
    a(f"s_lshl_b32 s5, s54, 13\ns_lshl_b32 s55, s53, 8\ns_add_u32 s{SB_WQ}, s5, s55")
    a("s_waitcnt lgkmcnt(0)")
    srd(R_MOD, 80, 12582912); srd(R_WQ, 24, 8388608)
    def rest_of_setup():
        a(f"v_mul_u32_u24 v{VGU}, 7168, v33\nv_add_u32 v{VGU}, v{VGU}, v34\nv_lshl_add_u32 v{VDN}, v33, 11, v34\nv_lshlrev_b32 v{VV}, 4, v1")
        a(f"v_and_b32 v35, 2, v32\nv_lshlrev_b32 v35, {dict(X=(12 + cfg.pb if cfg.pb >= cfg.wg else 9 + cfg.pb), W=16).get(cfg.kvl, 12)}, v35\nv_lshrrev_b32 v36, 2, v32\nv_lshl_add_u32 v35, v36, 8, v35")
        a(f"v_and_b32 v36, 1, v32\nv_lshl_add_u32 v35, v36, 6, v35\nv_lshl_add_u32 v{VK}, v33, 4, v35")
        a(f"v_mov_b32 v{VCN}, {L_CNT}\nv_mov_b32 v{VONE}, 1")
        a(f"s_lshr_b32 s5, s2, 6\ns_lshl_b32 s5, s5, 3\ns_add_u32 s5, s5, s52\ns_lshl_b32 s5, s5, 7\ns_add_u32 s5, s5, s57\ns_lshl_b32 s5, s5, 11")
        a(f"s_and_b32 s6, s53, 7\ns_lshl_b32 s6, s6, 8\ns_add_u32 s{SB_WO}, s5, s6")
        a(f"s_and_b32 s5, s2, 3\ns_lshl_b32 s5, s5, 24")
        xp = str(cfg.xp) or ("345672" if cfg.xm else "234567")
        for k, ch in enumerate(xp):
            a(f"s_bfe_u32 s6, s2, {0x10000 | int(ch):#x}\ns_lshl_b32 s6, s6, {18 + k}\ns_add_u32 s5, s5, s6")
        a(f"s_lshl_b32 s6, s3, {10 + cfg.wg}\ns_add_u32 s{SB_KV}, s5, s6")
        if cfg.rot:
            assert cfg.wg == 0
            a(f"s_mul_i32 s6, s2, {cfg.rot}\ns_lshr_b32 s6, s6, 3\ns_and_b32 s6, s6, {31 & ~(1 << cfg.pb)}\ns_lshl_b32 s6, s6, 13\ns_or_b32 s{SB_KV}, s{SB_KV}, s6")
        srd(R_WO, 32, 8388608); srd(R_K, 8, 67108864); srd(R_V, 16, 67108864)
        for r, off in ((R_G, 48), (R_U, 56), (R_DN, 64)): srd(r, off, 0)
        if cfg.stamps:
            srd(R_WSS, 104, 0x10000000); a(f"v_mov_b32 v{VST}, 0\nv_writelane_b32 v{VST}, s96, 0")
        a("s_mov_b32 s58, 0x05040100\ns_mov_b32 s59, 0x07060302")
        a("s_barrier")
    issued = []; done = [0]; tiles = {}; signalled = set(); setup = [False]
    TN = dict(crit=2, wq=4, mod1=2, mod2=2, mod3=2, wo=4, gate=4, up=4, dn=4)
    TC = dict(mod3=C_MOD3, crit=C_CRIT, wq=C_WQ, mod1=C_MOD1, mod2=C_MOD2, wo=C_WO, gate=C_GATE, up=C_UP, dn=C_DN)
    def wait_n(n):
        if len(issued) - done[0] > n:
            a(f"s_waitcnt vmcnt({n})"); done[0] = len(issued) - n
            for name, ids in tiles.items():
                if name not in signalled and len(ids) == TN[name] and max(ids) < done[0]:
                    lds_signal(TC[name], VCN, VONE); signalled.add(name)
                    if name in ("wo", "up"): stamp({"wo": 20, "up": 21}[name], VST)
    def wait_id(i): wait_n(len(issued) - 1 - i)
    def dma(name, i, D):
        srd_, voff, sb, step, lbase, lsreg = {
            "crit": (R_MOD, VMOD, SB_MOD, 4 * 12288, L_MOD, SL), "mod1": (R_MOD, VMOD, SB_MOD, 4 * 12288, L_MOD + 16384, SL),
            "mod3": (R_MOD, VMOD, SB_MOD, 4 * 12288, L_WO, SL),
            "mod2": (R_MOD, VMOD, SB_MOD, 4 * 12288, L_MOD + 32768, SL), "wq": (R_WQ, VWQ, SB_WQ, 4 * 8192, L_WQ, SL4),
            "wo": (R_WO, VDN, SB_WO, 4 * 2048, L_WO, SL4), "gate": (R_G, VGU, SB_GU, 4 * 7168, L_GATE, SL4),
            "up": (R_U, VGU, SB_GU, 4 * 7168, L_UP, SL4), "dn": (R_DN, VDN, SB_DN, 4 * 2048, L_DN, SL4)}[name]
        extra = {"mod1": 4096, "mod2": 8192, "mod3": 8192}.get(name, 0)
        if len(issued) >= min(D, 6) and not setup[0]:
            setup[0] = True; rest_of_setup()
            if cfg.ktouch:
                a(f"s_mov_b64 exec, 1\ns_mov_b32 m0, {L_MISC + 0x2000}")
                for r in (R_K, R_V): a(f"buffer_load_dword off, {sr(r,4)}, s{SB_KV} nt lds"); issued.append("t")
                a("s_mov_b64 exec, -1")
        a(f"s_add_u32 m0, s{lsreg}, {lbase + i*1024}\ns_add_u32 s{SO}, s{sb}, {i*step + extra}")
        wait_n(D - 1)
        a(f"buffer_load_dwordx4 v{voff}, {sr(srd_,4)}, s{SO} offen nt lds")
        if name in ("wq", "wo", "gate", "up", "dn") and i in (1, 3): a(f"v_xor_b32 v{voff}, 0x80, v{voff}")
        tiles.setdefault(name, []).append(len(issued)); issued.append(name)
    kid = {}; vid = {}; cur_so = [None]
    def kvload(srd_, voff, off, dst, D):
        so = off & ~0xfff
        if cur_so[0] != so:
            a(f"{'s_xor_b32' if cfg.rot else 's_add_u32'} s60, s{SB_KV}, {so}"); cur_so[0] = so
        if D: wait_n(D - 1)
        a(f"buffer_load_dwordx4 {vr(dst,4)}, v{voff}, {sr(srd_,4)}, s60 offen offset:{off & 0xfff} nt")
        issued.append("kv"); return len(issued) - 1
    CH = lambda ci: ((ci >> cfg.wg) << (13 + cfg.wg)) + ((ci & ((1 << cfg.wg) - 1)) << 10)
    INS = lambda n, pi: ((n >> cfg.pb) << (cfg.pb + 1)) | (pi << cfg.pb) | (n & ((1 << cfg.pb) - 1))
    def kload(n, u, D): kid[(n, u)] = kvload(R_K, VK, (CH(INS(n, 0)) if cfg.kvl == 'X' else CH(n) if cfg.kvl == 'W' else n * 16384) + u * 128, KV + 8 * n + 4 * u, D)
    VI = (lambda G, n: 16 * (G >> 1) + 2 * n + (G & 1)) if cfg.kvl == "S" else (lambda G, n: 8 * G + n)
    def vslot(i): return KV + 4 * (i if i < cfg.NS else VI(0, i - cfg.NS))
    def vload(i, D): vid[i] = kvload(R_V, VV, CH(INS(8 * (i >> 4) + (i & 7), (i >> 3) & 1)) if cfg.kvl == 'X' else CH(i) if cfg.kvl != 'Y' else (8 * (i >> 4) + (i & 7)) * 16384 + ((i >> 3) & 1) * 8192, vslot(i), D)
    def paced(cnt, k, vt, Dmin, Dmax):
        a(f"s_mov_b64 exec, 1\nds_add_rtn_u32 v{vt}, v{VCN}, v{VONE} offset:{cnt*4}\ns_mov_b64 exec, -1")
        wait_n(Dmax - 1)
        go = a.newlabel("L_go")
        a(f"s_waitcnt lgkmcnt(0)\nv_readfirstlane_b32 s5, v{vt}\ns_cmp_gt_i32 s5, {8*k + cfg.th}\ns_cselect_b64 vcc, -1, 0\ns_cbranch_scc1 {go}\ns_waitcnt vmcnt({Dmin - 1})")
        a.label(go)
    D1, D2 = cfg.D1, cfg.D2
    for name in lst(cfg.pre1):
        if cfg.steal and name == "mod2": continue
        for i in range(TN[name]): dma(name, i, cfg.D0 if len(issued) < cfg.n0 else D1)
    stamp(11, VST)
    a.c('K: 32 x 1 KiB per wave straight into MFMA A-operand layout (8 keys x 128 B per load), at most 3 in flight')
    for n in range(16):
        for u in range(2):
            if cfg.balk:
                paced(C_T, 2 * n + u, DT, cfg.Kmin, cfg.Kmax); kload(n, u, 0)
            else: kload(n, u, cfg.D0 if len(issued) < cfg.n0 else D1)
            if 2 * n + u == cfg.p1: lds_signal(C_P1, VCN, VONE)
            if 2 * n + u == cfg.p2: lds_signal(C_P2, VCN, VONE)
            if cfg.steal and 2 * n + u == cfg.sa: lds_signal(C_PA, VCN, VONE)
            if cfg.steal and 2 * n + u == cfg.sb: lds_signal(C_PB, VCN, VONE)
            if 2 * n + u == cfg.pm and cfg.qm: lds_signal(C_PM, VCN, VONE)
    for name in lst(cfg.pre2):
        for i in range(TN[name]): dma(name, i, D1)
    if cfg.steal:
        lds_wait(C_DEC, 1, DT, VCN)
        a(f"s_mov_b32 s61, s5\ns_mov_b32 s62, 12582912\ns_bitcmp1_b32 s61, 0\ns_cselect_b32 s{R_MOD+2}, s62, 0")
        for i in range(2): dma("mod2", i, D1)
        a(f"s_bitcmp1_b32 s61, 1\ns_cselect_b32 s{R_MOD+2}, s62, 0\ns_xor_b32 s{SB_MOD}, s{SB_MOD}, 1024")
        for i in range(2): dma("mod3", i, 63)
        if cfg.stamps == 1: a(f"v_writelane_b32 v{VST}, s61, 25")
    for i in range(cfg.npre): dma("wo", i, D1)
    stamp(1, VST)
    a.c('wait for q (bf16, LDS), then S^T = K q^T; scores rounded to bf16, scaled, rounded again (as the reference does)')
    a(f"v_and_b32 v{DT+1}, 7, v1\nv_lshlrev_b32 v{DT+1}, 8, v{DT+1}\nv_and_b32 v{DT+2}, 8, v1\nv_lshl_add_u32 v{DT+1}, v{DT+2}, 3, v{DT+1}")
    a(f"v_lshrrev_b32 v{DT+2}, 4, v1\nv_lshl_add_u32 v{DT+1}, v{DT+2}, 4, v{DT+1}\nv_add_u32 v{DT+1}, {L_QV}, v{DT+1}")
    a(f"s_mov_b32 s61, {f2u(128 ** -0.5):#x}\ns_mov_b32 s62, {f2u(LOG2E):#x}")
    lds_wait(C_Q, 4, DT, VCN)
    stamp(2, VST)
    a(f"ds_read_b128 {vr(Q0,4)}, v{DT+1}\nds_read_b128 {vr(Q0+4,4)}, v{DT+1} offset:128\ns_waitcnt lgkmcnt(0)")
    nv = 0
    def fold(n):
        d = DT + 4 * (n & 1)
        a(f"v_add_f32_dpp v{T0+n}, v{d+1}, v{d} row_ror:8 row_mask:0xf bank_mask:0x3")
        a(f"v_add_f32_dpp v{T0+n}, v{d+2}, v{d+3} row_ror:8 row_mask:0xf bank_mask:0xc")
    def post(n):
        rnd(T0 + n, T0 + n); a(f"v_mul_f32 v{T0+n}, s61, v{T0+n}"); rnd(T0 + n, T0 + n)
    for n in range(16):
        wait_id(kid[(n, 1)])
        d = DT + 4 * (n & 1)
        a(f"v_mfma_f32_16x16x32_bf16 {vr(d,4)}, {vr(KV+8*n,4)}, {vr(Q0,4)}, 0")
        a(f"v_mfma_f32_16x16x32_bf16 {vr(d,4)}, {vr(KV+8*n+4,4)}, {vr(Q0+4,4)}, {vr(d,4)}")
        if n >= 1 and nv < D2 and n % 2 == 1:
            vload(nv, 0); nv += 1
        if n >= 2: post(n - 2)
        if n >= 1: fold(n - 1)
    for _ in range(cfg.nq2): vload(nv, 0); nv += 1
    fold(15); post(14); post(15)
    a.c("running max / sum of this wave's 128 keys per head -> LDS")
    M_, L_, X_ = DT, DT + 1, DT + 2
    a(f"v_max3_f32 v{M_}, v{T0}, v{T0+1}, v{T0+2}")
    for i in range(3, 15, 2): a(f"v_max3_f32 v{M_}, v{M_}, v{T0+i}, v{T0+i+1}")
    a(f"v_max_f32 v{M_}, v{M_}, v{T0+15}")
    xreduce("v_max_f32", M_, X_, (8, 16, 32))
    for i in range(16):
        e = DT + 4 + (i & 3)
        a(f"v_sub_f32 v{e}, v{T0+i}, v{M_}\nv_mul_f32 v{e}, s62, v{e}\nv_exp_f32 v{e}, v{e}")
        if i >= 1:
            p = DT + 4 + ((i - 1) & 3)
            a(f"v_mov_b32 v{L_}, v{p}" if i == 1 else f"v_add_f32 v{L_}, v{L_}, v{p}")
    a(f"v_add_f32 v{L_}, v{L_}, v{DT+7}")
    xreduce("v_add_f32", L_, X_, (8, 16, 32))
    a(f"s_lshl_b32 s5, s3, 6\ns_add_u32 s5, s5, {L_MLW}\nv_lshlrev_b32 v{X_}, 3, v1\nv_add_u32 v{X_}, s5, v{X_}")
    a(f"s_mov_b64 exec, 0xff\nds_write_b64 v{X_}, {vr(M_,2)}\ns_waitcnt lgkmcnt(0)")
    lds_signal(C_ML, VCN, VONE)
    stamp(3, VST)
    a.c('V into the freed K registers; a wave behind the class average keeps more loads in flight, one ahead keeps fewer')
    nv0 = nv
    while nv < cfg.NS:
        if cfg.bal:
            paced(C_T, nv - nv0 + (32 if cfg.balk else 0), DT, cfg.Dmin, cfg.Dmax); vload(nv, 0)
        else: vload(nv, D2)
        if nv == cfg.p3: lds_signal(C_P3, VCN, VONE)
        if nv == cfg.pv: lds_signal(C_P8, VCN, VONE)
        if cfg.steal and nv == cfg.p9: lds_signal(C_P9, VCN, VONE)
        if nv == cfg.p4 and cfg.role == 2: lds_signal(C_P4, VCN, VONE)
        nv += 1
    for name in lst(cfg.mid):
        for i in range(TN[name]): dma(name, i, D2)
    for name in lst(cfg.pre1) + lst(cfg.pre2) + (["mod3"] if cfg.steal else []): wait_id(max(tiles[name]))
    stamp(4, VST)
    a(f"v_and_b32 v{X_}, 7, v1\nv_lshlrev_b32 v{X_}, 3, v{X_}\nv_add_u32 v{X_}, {L_MLF}, v{X_}")
    lateq = [(name, i) for name in lst(cfg.late) for i in range(TN[name])]
    lateq = lateq[cfg.npre:]
    assert lateq[-4:] == [("dn", i) for i in range(4)]
    for _ in range(cfg.nmid):
        name, i = lateq.pop(0); assert name == "wo"; dma(name, i, 63)
    a.c('FFN role of this workgroup, then the global max and 1/sum; p = bf16(exp(s - max) / sum)')
    assert cfg.role != 2
    lds_wait(C_ROLE, 1, DT, VCN, sleep=0)
    a("s_sub_u32 s7, s5, 1")
    a("s_mov_b32 s5, 7340032\ns_cmp_lt_u32 s7, 224\ns_cselect_b32 s5, s5, 0")
    for r in (R_G, R_U, R_DN): a(f"s_mov_b32 s{r+2}, s5")
    a("s_and_b32 s52, s7, 7\ns_lshr_b32 s53, s7, 3")
    a(f"s_lshl_b32 s5, s52, 7\ns_add_u32 s5, s5, s57\ns_mul_i32 s5, s5, 7168\ns_lshl_b32 s6, s53, 8\ns_add_u32 s{SB_GU}, s5, s6")
    a(f"s_lshl_b32 s5, s53, 7\ns_add_u32 s5, s5, s57\ns_lshl_b32 s5, s5, 11\ns_lshl_b32 s6, s52, 8\ns_add_u32 s{SB_DN}, s5, s6")
    lds_wait(C_MLD, 5 if cfg.steal else 1, DT, VCN)
    stamp(5, VST)
    assert not any(t in cfg.pre1 + cfg.pre2 + cfg.mid for t in ("gate", "up", "dn"))
    a(f"ds_read_b64 {vr(M_,2)}, v{X_}\ns_waitcnt lgkmcnt(0)")
    for i in range(16):
        a(f"v_sub_f32 v{T0+i}, v{T0+i}, v{M_}\nv_mul_f32 v{T0+i}, s62, v{T0+i}\nv_exp_f32 v{T0+i}, v{T0+i}")
    for i in range(16): a(f"v_mul_f32 v{T0+i}, v{T0+i}, v{L_}")
    for i in range(8): a(f"v_cvt_pk_bf16_f32 v{Q0+i}, v{T0+2*i}, v{T0+2*i+1}")
    a("s_mov_b32 s64, 0x00ff00ff\ns_mov_b32 s65, 0x00ff00ff\ns_mov_b32 s66, 0xff00ff00\ns_mov_b32 s67, 0xff00ff00")
    ACC = T0
    PL = lambda G: DT
    PH = lambda G: DT + 4
    def pbuild(G):
        b, pi = (G & 1, G >> 1) if cfg.kvl == 'W' else (G >> 1, G & 1)
        for i in range(4): a(f"v_cndmask_b32 v{(PH if pi else PL)(G)+i}, 0, v{Q0+4*b+i}, s[{64+2*pi}:{65+2*pi}]")
        for i in range(4): a(f"v_mov_b32_dpp v{(PL if pi else PH)(G)+i}, v{(PH if pi else PL)(G)+i} row_ror:8 {DPPF}")
    stage = [KV + 120, KV + 124, KV + 120, KV + 124]
    sidx = 0
    def perm(dst, G, p, j):
        lo = vslot(VI(G, 2 * p)) + (j >> 1); hi = vslot(VI(G, 2 * p + 1)) + (j >> 1)
        a(f"v_perm_b32 v{dst}, v{hi}, v{lo}, s{58 + (j & 1)}")
    def pv(G, j, st):
        c = "0" if (G == 0 and j < 4) else vr(ACC + 4 * (j & 3), 4)
        a(f"v_mfma_f32_16x16x32_bf16 {vr(ACC+4*(j&3),4)}, {vr(st,4)}, {vr((PH if j >= 4 else PL)(G),4)}, {c}")
    a.c('O^T += V^T P^T: v_perm pairs up two keys per dword, heads sit in columns 0..7 (d%8 < 4) and 8..15 (d%8 >= 4)')
    for G in range(2 if cfg.kvl == "S" else 3):
        pbuild(G)
        wait_id(vid[VI(G, 7)])
        for j in range(8):
            st = stage[sidx & 3]; sidx += 1
            for p in range(4): perm(st + p, G, p, j)
            pv(G, j, st)
            if G in (1, 2) and j % 2 == 0 and nv < 32:
                if cfg.bal:
                    sk = a.newlabel("L_dv")
                    a(f"s_cbranch_vccnz {sk}\ns_waitcnt vmcnt({cfg.DV - 1})")
                    a.label(sk)
                    vload(nv, cfg.DVmax)
                else: vload(nv, cfg.DV)
                if nv == cfg.pv: lds_signal(C_P8, VCN, VONE)
                nv += 1
    a(f"s_add_u32 s5, s{SL4}, {L_OS}\nv_add_u32 v{VV}, s5, v{VV}")
    order = [0, 4, 1, 5, 2, 6, 3, 7]
    n0 = min(cfg.nl0, len(lateq) - max(4, cfg.nl2))
    if cfg.kvl == "S":
        assert nv == 32 and cfg.NS == 30
        free = [KV + 4 * k for k in range(16) if k not in (VI(0, 0), VI(0, 1))] + [KV + 120, KV + 124]
        SGs = {2: free[:8], 3: free[8:]}
        pbuild(2)
        for p in range(3):
            wait_id(vid[VI(3, 2 * p + 1)])
            if p == 2:
                for _ in range((n0 + 1) // 2):
                    name, i = lateq.pop(0); dma(name, i, 63)
            for G in (2, 3):
                for j in range(8): perm(SGs[G][j] + p, G, p, j)
        wait_id(vid[29])
        for _ in range(n0 // 2):
            name, i = lateq.pop(0); dma(name, i, 63)
        for G in (2, 3):
            wait_id(vid[VI(G, 7)])
            if G == 3: pbuild(3)
            for k in range(10):
                if k < 8: perm(SGs[G][order[k]] + 3, G, 3, order[k])
                if k >= 2: pv(G, order[k - 2], SGs[G][order[k - 2]])
    else:
        pbuild(3)
        SG = KV + 32
        n0 = min(cfg.nl0, len(lateq) - max(4, cfg.nl2))
        for p in range(3):
            wait_id(vid[24 + 2 * p + 1])
            if cfg.pv == 32 and p == 2: lds_signal(C_P8, VCN, VONE)
            if p >= 1:
                for _ in range((n0 + 2 - p) // 2):
                    name, i = lateq.pop(0); dma(name, i, 63)
            for j in range(8): perm(SG + 4 * j + p, 3, p, j)
        wait_id(vid[31])
        if cfg.pv == 33: lds_signal(C_P8, VCN, VONE)
        order = [0, 4, 1, 5, 2, 6, 3, 7]
        for k in range(10):
            if k < 8: perm(SG + 4 * order[k] + 3, 3, 3, order[k])
            if k >= 2: pv(3, order[k - 2], SG + 4 * order[k - 2])
    stamp(6, VST)
    for e in range(4): a(f"ds_write_b128 v{VV}, {vr(ACC+4*e,4)} offset:{e*1024}")
    a("s_waitcnt lgkmcnt(0)")
    stamp(7, VST)
    a("s_barrier")
    a.c('wo, gate, up, down tiles -> LDS while the chain waves run the hand-offs')
    signalled.add("dn")
    n1 = len(lateq) - cfg.nl2
    for k, (name, i) in enumerate(lateq):
        if k == n1:
            wait_n(0); lds_wait(C_Y, 4, DT, VCN, sleep=cfg.ysl)
        if ((name, i) == ("dn", 0) and k < n1 and not cfg.ofirst) or (cfg.ofirst and k == 0): lds_wait(C_OR, 4, DT, VCN, sleep=0)
        dma(name, i, (cfg.D3 if k < cfg.kb else cfg.D3b) if k < n1 else cfg.D4)
        if k == cfg.p5: assert k < n1; lds_signal(C_P5, VCN, VONE)
        if k == cfg.p6: lds_signal(C_P6, VCN, VONE)
        if cfg.yd >= 0 or cfg.hd: lds_signal(C_LC, VCN, VONE)
        if k == cfg.pmin: lds_signal(C_P7, VCN, VONE)
    for name in ("wo", "gate", "up"):
        if name not in signalled: wait_id(max(tiles[name]))
    a("s_waitcnt vmcnt(0)")
    if cfg.stamps == 1:
        stamp(8, VST)
        a(f"s_lshl_b32 s5, s2, 11\ns_lshl_b32 s6, s3, 7\ns_add_u32 s5, s5, s6\ns_add_u32 s5, s5, 0x8000000\nv_lshlrev_b32 v2, 2, v1")
        a(f"s_mov_b32 exec_hi, 0\nbuffer_store_dword v{VST}, v2, {sr(R_WSS,4)}, s5 offen sc1")
    a("s_endpgm")

    a.label("L_cwave")
    a.c('================= chain waves (8..11): hand-offs between workgroups, GEMVs, layer norms =================')
    a("s_setprio 3")
    R_WS, R_X, R_C, R_OUT = 8, 16, 20, 24
    WV, SMY = 28, 29
    a(f"s_sub_u32 s{WV}, s3, 8\nv_subrev_u32 v0, 512, v0")
    VCN, VONE, VTR, VPUB, VACT, VA, VB, K_X, K_GA, K_GB, VST, K_C1, TAG, TB = 2, 3, 4, 5, 6, 7, 8, 9, 10, 11, 12, 13, 14, 15
    WK = 16
    ACT = WK + 8
    FWO, FG, FU, FD = 40, 72, 104, 136
    a(f"v_mov_b32 v{VCN}, {L_CNT}\nv_mov_b32 v{VONE}, 1\nv_mov_b32 v{WK}, 0")
    a(f"v_lshlrev_b32 v{WK+1}, 2, v1\nv_add_u32 v{WK+1}, {L_CNT}, v{WK+1}\nds_write_b32 v{WK+1}, v{WK}")
    for i in range(4): a(f"v_mov_b32 v{WK+4+i}, -1")
    for base in (L_HHV, L_OV, L_AT, L_AT + 320): a(f"ds_write_b32 v{WK+1}, v{WK+4} offset:{base - L_CNT}")
    a(f"s_mul_i32 s{SMY}, s2, {WS}\ns_and_b32 s30, s2, 7\ns_lshr_b32 s31, s2, 3")
    a(f"v_lshlrev_b32 v{VA}, 4, v1\nv_lshlrev_b32 v{VB}, 1, v1\nv_lshlrev_b32 v{WK+1}, 5, v1")
    a(f"s_lshl_b32 s32, s30, 7\ns_lshl_b32 s35, s{WV}, 5\ns_add_u32 s32, s32, s35")
    a("s_waitcnt lgkmcnt(0)")
    srd(R_WS, 104, 0x10000000); srd(R_X, 0, 2048); srd(R_C, 72, 2048); srd(R_OUT, 88, 2048)
    XR = FU
    a(f"s_mov_b32 s5, {EPOCH}\nbuffer_load_dword v{TAG}, off, {sr(R_WS,4)}, s5 sc1")
    a(f"s_lshr_b32 s5, s2, 4\ns_lshl_b32 s5, s5, 7\nbuffer_load_ushort v{WK}, v{VB}, {sr(R_C,4)}, s5 offen")
    a(f"buffer_load_dwordx4 {vr(XR,4)}, v{WK+1}, {sr(R_X,4)}, 0 offen\nbuffer_load_dwordx4 {vr(XR+4,4)}, v{WK+1}, {sr(R_X,4)}, 0 offen offset:16")
    a(f"v_and_b32 v{K_C1}, 7, v1\nv_lshlrev_b32 v{K_C1}, 2, v{K_C1}\nv_bfe_u32 v{WK+2}, v1, 4, 1\nv_lshl_add_u32 v{K_C1}, v{WK+2}, 1, v{K_C1}\nv_lshrrev_b32 v{WK+2}, 5, v1\nv_add_lshl_u32 v{K_C1}, v{K_C1}, v{WK+2}, 1")
    a(f"s_lshl_b32 s5, s32, 1\nbuffer_load_ushort v{K_GA}, v{K_C1}, {sr(R_X,4)}, s5 offen")
    a(f"s_and_b32 s80, s2, 3\ns_lshl_b32 s80, s80, 12\ns_add_u32 s80, s80, {MLA}\ns_and_b32 s81, s2, 0xfc\ns_lshl_b32 s81, s81, 4\ns_add_u32 s81, s81, s80")
    a(f"s_cmp_gt_u32 s{WV}, 1\ns_cbranch_scc1 L_clr_done\ns_cmp_eq_u32 s{WV}, 0\ns_cselect_b32 s5, s{SMY}, s81\ns_cselect_b64 exec, -1, 15")
    a(f"buffer_store_dwordx4 {vr(WK+4,4)}, v{VA}, {sr(R_WS,4)}, s5 offen sc1")
    if cfg.hint or cfg.role == 2:
        a(f"s_mov_b64 exec, 1\nbuffer_store_dword v{WK+4}, off, {sr(R_WS,4)}, s{SMY} offset:{TKT} sc1")
    a.label("L_clr_done")
    if cfg.qm:
        a(f"s_and_b32 s82, s2, 3\ns_lshl_b32 s82, s82, 3\ns_bfe_u32 s5, s2, 0x30003\ns_add_u32 s82, s82, s5\ns_lshl_b32 s83, s82, 8\ns_add_u32 s83, s83, {QF}")
        a(f"s_cmp_lg_u32 s{WV}, 2\ns_cbranch_scc1 L_clq_done\ns_and_b32 s5, s2, 0xc4\ns_cmp_lg_u32 s5, 0xc4\ns_cbranch_scc1 L_clq_done")
        a(f"s_mov_b64 exec, 0xffff\nbuffer_store_dwordx4 {vr(WK+4,4)}, v{VA}, {sr(R_WS,4)}, s83 offen sc1")
        a.label("L_clq_done")
    a("s_mov_b64 exec, -1")
    a("s_barrier")
    if cfg.stamps: a(f"v_mov_b32 v{VST}, 0\nv_writelane_b32 v{VST}, s96, 0")
    a(f"v_lshrrev_b32 v{WK+8}, 4, v1\nv_and_b32 v{WK+9}, 15, v1")
    a(f"v_lshlrev_b32 v{VPUB}, 6, v{WK+9}\nv_lshl_add_u32 v{VPUB}, v{WK+8}, 4, v{VPUB}")
    a(f"v_lshlrev_b32 v{VACT}, 4, v{WK+8}\nv_add_u32 v{VACT}, {L_MISC}, v{VACT}")
    a(f"v_bfe_u32 v{WK+10}, v1, 2, 2\nv_lshl_add_u32 v{WK+11}, v{WK+8}, 3, v{WK+10}\nv_lshlrev_b32 v{VTR}, 8, v{WK+11}")
    a(f"v_and_b32 v{WK+12}, 3, v1\nv_lshl_add_u32 v{VTR}, v{WK+12}, 3, v{VTR}")
    a(f"v_and_b32 v{WK+12}, 1, v{WK+8}\nv_lshl_add_u32 v{WK+12}, v{WK+12}, 2, v{WK+10}\ns_lshl_b32 s5, s{WV}, 1\nv_xor_b32 v{WK+12}, s5, v{WK+12}\nv_lshl_add_u32 v{VTR}, v{WK+12}, 5, v{VTR}")
    a(f"s_mov_b32 s33, {f2u(LOG2E):#x}\ns_mov_b32 s38, 0xffff0000")
    a("s_waitcnt vmcnt(0)")
    lds_signal(C_CLR, VCN, VONE)
    a.c('tag of this launch: T = E ^ hash(E) with every hash byte non-zero (E = tag left by the previous launch, or anything)')
    TB0 = 76
    a(f"v_readfirstlane_b32 s5, v{TAG}\ns_add_u32 s6, s5, 0x7f4a7c15\ns_mul_i32 s6, s6, 0x9e3779b1\ns_lshr_b32 s7, s6, 15\ns_xor_b32 s6, s6, s7")
    a("s_mul_i32 s6, s6, 0x85ebca6b\ns_lshr_b32 s7, s6, 13\ns_xor_b32 s6, s6, s7\ns_mul_i32 s6, s6, 0xc2b2ae35\ns_lshr_b32 s7, s6, 16\ns_xor_b32 s6, s6, s7")
    for k in range(4):
        a(f"s_and_b32 s7, s6, {0xff << (8*k):#x}\ns_cselect_b32 s7, 0, {0x5b << (8*k):#x}\ns_or_b32 s6, s6, s7")
    a("s_xor_b32 s5, s5, s6")
    for k in range(4): a(f"s_bfe_u32 s{TB0+k}, s5, {(8 << 16) | (8*k):#x}")
    a(f"v_mov_b32 v{TAG}, s5")
    stamp(1, VST)
    a.c("silu(c) for this workgroup's 64 rows of w_mod")
    c_ = WK
    lo2 = LOG2E - struct.unpack("<f", struct.pack("<f", LOG2E))[0]
    a(f"v_lshlrev_b32 v{c_}, 16, v{c_}")
    a(f"v_max_f32 v{WK+13}, {f2u(-87.0):#x}, v{c_}\nv_min_f32 v{WK+13}, {f2u(100.0):#x}, v{WK+13}")
    a(f"v_mul_f32 v{WK+1}, s33, v{WK+13}\nv_fma_f32 v{WK+2}, v{WK+13}, s33, -v{WK+1}\nv_mov_b32 v{WK+3}, {f2u(lo2):#x}\nv_fmac_f32 v{WK+2}, v{WK+13}, v{WK+3}")
    a(f"v_exp_f32 v{WK+1}, -v{WK+1}\nv_mul_f32 v{WK+2}, {f2u(-0.6931471805599453):#x}, v{WK+2}")
    a(f"v_fma_f32 v{WK+1}, v{WK+1}, v{WK+2}, v{WK+1}\nv_add_f32 v{WK+1}, 1.0, v{WK+1}")
    a(f"v_rcp_f32 v{WK+2}, v{WK+1}\nv_mul_f32 v{WK+3}, v{c_}, v{WK+2}\nv_fma_f32 v{WK+13}, -v{WK+3}, v{WK+1}, v{c_}\nv_fmac_f32 v{WK+3}, v{WK+13}, v{WK+2}")
    rnd(WK + 3, WK + 3)
    a(f"s_lshl_b32 s5, s{WV}, 7\ns_add_u32 s6, s5, {L_SIL}\nv_add_u32 v{WK+1}, s6, v{VB}\nds_write_b16_d16_hi v{WK+1}, v{WK+3}")
    a(f"v_add_u32 v{WK+1}, s5, v{VACT}\ns_waitcnt lgkmcnt(0)\nds_read_b128 {vr(ACT,4)}, v{WK+1} offset:{L_SIL-L_MISC}\nds_read_b128 {vr(ACT+4,4)}, v{WK+1} offset:{L_SIL-L_MISC+64}")

    def den_from_var(v, rden):
        rnd(v, v); a(f"v_add_f32 v{v}, {f2u(1e-5):#x}, v{v}"); rnd(v, v)
        a(f"v_sqrt_f32 v{v}, v{v}"); rnd(v, v)
        a(f"v_rcp_f32 v{rden}, v{v}")
    def ln_stats(X, mean_b, rden, t0):
        p1, p2, u1 = t0, t0 + 2, t0 + 4
        a(f"v_readfirstlane_b32 s36, v{X}\ns_mov_b32 s37, s36")
        for i in range(0, 16, 2): a(f"v_pk_add_f32 {vr(X+i,2)}, {vr(X+i,2)}, s[36:37] neg_lo:[0,1] neg_hi:[0,1]")
        a(f"v_pk_mul_f32 {vr(p2,2)}, {vr(X,2)}, {vr(X,2)}\nv_pk_add_f32 {vr(p1,2)}, {vr(X,2)}, {vr(X+2,2)}")
        a(f"v_pk_fma_f32 {vr(p2,2)}, {vr(X+2,2)}, {vr(X+2,2)}, {vr(p2,2)}")
        for i in range(4, 16, 2):
            a(f"v_pk_add_f32 {vr(p1,2)}, {vr(p1,2)}, {vr(X+i,2)}\nv_pk_fma_f32 {vr(p2,2)}, {vr(X+i,2)}, {vr(X+i,2)}, {vr(p2,2)}")
        a(f"v_add_f32 v{p1}, v{p1}, v{p1+1}\nv_add_f32 v{p2}, v{p2}, v{p2+1}")
        a(f"v_permlane32_swap_b32 v{p1}, v{p2}\nv_add_f32 v{p1}, v{p1}, v{p2}")
        xreduce("v_add_f32", p1, u1, (16, 8, 4, 2, 1))
        a(f"v_mul_f32 v{p1}, {f2u(1.0/1024):#x}, v{p1}\nv_mov_b32 v{p2}, v{p1}\nv_permlane32_swap_b32 v{p1}, v{p2}")
        a(f"v_fma_f32 v{p2}, -v{p1}, v{p1}, v{p2}\nv_add_f32 v{p1}, s36, v{p1}\nv_max_f32 v{p2}, 0, v{p2}")
        rnd(mean_b, p1); den_from_var(p2, rden)
    a.c("layer norm 1 statistics (every wave, all 1024 values) and this lane's normalised x")
    XU = XR + 8
    for i in range(8):
        a(f"v_lshlrev_b32 v{XU+2*i}, 16, v{XR+i}\nv_and_b32 v{XU+2*i+1}, 0xffff0000, v{XR+i}")
    ln_stats(XU, WK, WK + 1, WK + 2)
    LN1 = K_GA
    a(f"v_lshlrev_b32 v{LN1}, 16, v{LN1}")
    a(f"v_sub_f32 v{LN1}, v{LN1}, v{WK}"); rnd(LN1, LN1); a(f"v_mul_f32 v{LN1}, v{LN1}, v{WK+1}"); rnd(LN1, LN1)
    lds_wait(C_CLR, 4, WK + 1, VCN, sleep=0)

    if True:
        a(f"s_getreg_b32 s14, hwreg(HW_REG_XCC_ID)\ns_cmp_lg_u32 s{WV}, 1\ns_cbranch_scc1 L_xc_done")
        a(f"v_mov_b32 v{WK}, s14\nv_mov_b32 v{WK+1}, v{TAG}\ns_lshl_b32 s5, s30, 8\ns_and_b32 s6, s2, 0xf8\ns_add_u32 s5, s5, s6\ns_add_u32 s5, s5, {XCP}\ns_mov_b64 exec, 1\nbuffer_store_dwordx2 {vr(WK,2)}, off, {sr(R_WS,4)}, s5 sc1\ns_mov_b64 exec, -1")
        a.label("L_xc_done")
    def tr_read(dst, vaddr, nkk, rs, base=0):
        for kk in range(nkk):
            for q in range(2):
                a(f"ds_read_b64_tr_b16 {vr(dst + kk*4 + 2*q, 2)}, v{vaddr} offset:{base + (32 * kk + 4 * q) * rs}")
    def tr_tile(dst, base, nkk, t0):
        a(f"v_add_u32 v{t0}, {base}, v{VTR}\nv_xor_b32 v{t0+1}, 32, v{t0}")
        tr_read(dst, t0, nkk, 256); tr_read(dst + 4 * nkk, t0 + 1, nkk, 256)
    MASKC = [0x0001000100010001 << i for i in range(4)]
    def mfma(d, x, y, first): a(f"v_mfma_f32_16x16x32_bf16 {vr(d,4)}, {vr(x,4)}, {vr(y,4)}, {'0' if first else vr(d,4)}")
    BT = WK + 7
    def tagit(d, s, k): a(f"v_and_or_b32 v{d}, v{s}, v{BT}, s{TB0+k}")
    def gemv_pub(frs, nkk, dacc, out, off, tagged=True, slot=None):
        n = len(frs)
        a(f"s_mul_i32 s5, s{WV}, {n*64}\ns_add_u32 s5, s5, s{SMY if slot is None else slot}\ns_add_u32 s5, s5, {off}")
        def fin(cg):
            setexec(MASKC[cg])
            for i in range(4):
                if tagged: tagit(out + i, dacc + 4 * cg + i, i)
                else: a(f"v_mov_b32 v{out+i}, v{dacc+4*cg+i}")
        lag = 2 if nkk == 2 else 1
        for cg in range(n + lag):
            if cg < n:
                if cg > lag: a("s_mov_b64 exec, -1")
                for kk in range(nkk): mfma(dacc + 4 * cg, frs[cg] + 4 * kk, ACT + 4 * kk, kk == 0)
            if cg >= lag: fin(cg - lag)
        setexec(sum(MASKC[:n]))
        a(f"buffer_store_dwordx4 {vr(out,4)}, v{VPUB}, {sr(R_WS,4)}, s5 offen sc1\ns_mov_b64 exec, -1")
    deferred = []
    def gather(loads, t0, kind="sent", tags=None, masked=True, between=None, acc=None):
        L = a.newlabel("L_g"); Ld = a.newlabel("L_gd"); Lc = a.newlabel("L_gc")
        PM = 40
        def ld(dst, wd, va, so):
            if so: a(f"s_mov_b32 s5, {so}")
            a(f"buffer_load_dword{'' if wd == 1 else 'x'+str(wd)} {vr(dst,wd)}, v{va}, {sr(R_WS,4)}, {'s5' if so else '0'} offen sc1")
        op3, op2 = ("v_max3_u32", "v_max_u32") if kind == "sent" else ("v_or3_b32", "v_or_b32")
        def tree(regs_):
            if len(regs_) == 1: return regs_[0]
            if len(regs_) == 2: a(f"{op2} v{t0}, v{regs_[0]}, v{regs_[1]}"); return t0
            a(f"{op3} v{t0}, v{regs_[0]}, v{regs_[1]}, v{regs_[2]}")
            rest = regs_[3:]
            while rest:
                if len(rest) >= 2: a(f"{op3} v{t0}, v{t0}, v{rest[0]}, v{rest[1]}"); rest = rest[2:]
                else: a(f"{op2} v{t0}, v{t0}, v{rest[0]}"); rest = []
            return t0
        def test(dst_s, r_):
            if kind == "sent": a(f"v_cmp_eq_u32 {dst_s}, -1, v{r_}")
            else: a(f"v_and_b32 v{t0}, 0xff, v{r_}\nv_cmp_ne_u32 {dst_s}, 0, v{t0}")
        def untag(dst, wd):
            for x in range(dst, dst + wd): a(f"v_xor_b32 v{x}, s{TB0 + x - dst}, v{x}")
        def accum(i):
            if acc is None or i == 0: return
            x = loads[0][0] if i == 1 else acc
            for h in (2, 0): a(f"v_pk_add_f32 {vr(acc+h,2)}, {vr(x+h,2)}, {vr(loads[i][0]+h,2)}")
        if not masked: a.label(L)
        for (dst, wd, va, so, em) in loads:
            if em is not None: setexec(em)
            ld(dst, wd, va, so)
            if em is not None: a("s_mov_b64 exec, -1")
        if between: between()
        if not masked: budget_check()
        if kind == "tag":
            a(f"s_waitcnt vmcnt(0)\ns_branch {Lc}")
        else:
            for i, (dst, wd, va, so, em) in enumerate(loads):
                a(f"s_waitcnt vmcnt({len(loads)-1-i})")
                if kind == "byte":
                    if em is not None: setexec(em)
                    untag(dst, wd)
                    if em is not None: a("s_mov_b64 exec, -1")
                r_ = tree(([t0] if i else []) + list(range(dst, dst + wd)))
                assert r_ == t0
                if i < len(loads) - 1: accum(i)
            test("vcc", t0)
            accum(len(loads) - 1)
            a(f"s_cbranch_vccnz {Lc if masked else L}")
            if not masked: return
        a.label(Ld)
        def retry():
            a.label(L)
            budget_check()
            for i, (dst, wd, va, so, em) in enumerate(loads):
                sk = a.newlabel("L_gs")
                a(f"s_mov_b64 exec, {sr(PM+2*i,2)}\ns_cbranch_execz {sk}")
                ld(dst, wd, va, so)
                a.label(sk)
            a("s_waitcnt vmcnt(0)")
            if kind == "byte":
                for i, (dst, wd, va, so, em) in enumerate(loads):
                    a(f"s_mov_b64 exec, {sr(PM+2*i,2)}"); untag(dst, wd)
            a("s_mov_b64 exec, -1")
            a.label(Lc)
            for i, (dst, wd, va, so, em) in enumerate(loads):
                if kind == "tag": a(f"v_cmp_ne_u32 {sr(PM+2*i,2)}, v{tags[i]}, v{TAG}")
                else: test(sr(PM + 2 * i, 2), tree(list(range(dst, dst + wd))))
            a(f"s_mov_b64 s[6:7], {sr(PM,2)}")
            for i in range(1, len(loads)): a(f"s_or_b64 s[6:7], s[6:7], {sr(PM+2*i,2)}")
            a(f"s_cmp_lg_u64 s[6:7], 0\ns_cbranch_scc1 {L}")
            for i in range(len(loads)): accum(i)
            a(f"s_nop 1\ns_branch {Ld}")
        deferred.append(retry)
    def tree_sum(base, n, stride=1):
        idx = [base + i * stride for i in range(n)]
        while len(idx) > 1:
            nx = []
            for i in range(0, len(idx) - 1, 2):
                a(f"v_add_f32 v{idx[i]}, v{idx[i]}, v{idx[i+1]}"); nx.append(idx[i])
            if len(idx) & 1: nx.append(idx[-1])
            idx = nx
    def pk_sum4(base, n):
        idx = [base + 4 * i for i in range(n)]
        while len(idx) > 1:
            nx = []
            for i in range(0, len(idx) - 1, 2):
                for h in (0, 2): a(f"v_pk_add_f32 {vr(idx[i]+h,2)}, {vr(idx[i]+h,2)}, {vr(idx[i+1]+h,2)}")
                nx.append(idx[i])
            if len(idx) & 1: nx.append(idx[-1])
            idx = nx
    def col_reduce(b):
        a(f"v_permlane32_swap_b32 v{b}, v{b+1}\nv_permlane32_swap_b32 v{b+2}, v{b+3}\nv_add_f32 v{b}, v{b}, v{b+1}\nv_add_f32 v{b+2}, v{b+2}, v{b+3}")
        a(f"v_permlane16_swap_b32 v{b}, v{b+2}\nv_add_f32 v{b}, v{b}, v{b+2}\nv_add_f32_dpp v{b}, v{b}, v{b} row_ror:8 {DPPF}")
    VCHK = 0
    def xch_read(lbase, nkk, t0, vact, two=False):
        L = a.newlabel("L_x"); Ld = a.newlabel("L_xd")
        a.label(L)
        a(f"ds_read_b32 v{t0}, v{VCHK} offset:{lbase - L_MISC}")
        if two: a(f"ds_read_b32 v{t0+1}, v{VCHK} offset:{lbase - L_MISC + 320}")
        for kk in range(nkk): a(f"ds_read_b128 {vr(ACT+4*kk,4)}, v{vact} offset:{lbase - L_MISC + kk*64}")
        a(f"s_waitcnt lgkmcnt({nkk})")
        if two: a(f"v_pk_max_u16 v{t0}, v{t0}, v{t0+1}")
        a(f"v_cmp_eq_u16 vcc, -1, v{t0}\nv_cmp_le_u32 s[6:7], s38, v{t0}\ns_or_b64 s[6:7], s[6:7], vcc")
        if nkk == 2: a("s_cmp_lg_u32 s6, 0")
        a(f"s_cbranch_scc0 {Ld}")
        budget_check()
        a(f"s_branch {L}")
        a.label(Ld)
        a("s_waitcnt lgkmcnt(0)")

    def bal_run(limit):
        Lb = a.newlabel("L_bal"); Le = a.newlabel("L_bale")
        a(f"s_cmp_lg_u32 s{WV}, 3\ns_cbranch_scc1 {Le}")
        h = FWO
        a(f"s_mul_i32 s36, s30, {WS}\ns_add_u32 s36, s36, {BRD}\ns_lshr_b32 s37, s2, 3\ns_lshl_b32 s37, s37, 2\ns_add_u32 s37, s37, s36")
        a(f"v_lshlrev_b32 v{h}, 2, v1\nv_lshlrev_b32 v{h+1}, 10, v{TAG}")
        a.label(Lb)
        a(f"ds_read_b32 v{h+2}, v{VCN} offset:{C_T*4}\ns_waitcnt lgkmcnt(0)\nv_readfirstlane_b32 s41, v{h+2}\ns_sub_u32 s41, s41, s39")
        a(f"v_or_b32 v{h+2}, s41, v{h+1}\ns_mov_b64 exec, 1\nbuffer_store_dword v{h+2}, off, {sr(R_WS,4)}, s37 {cfg.lfl}")
        a(f"s_mov_b64 exec, -1\ns_cmp_ge_u32 s41, {limit}\ns_cbranch_scc1 {Le}")
        a(f"s_mov_b32 exec_hi, 0\nbuffer_load_dword v{h+3}, v{h}, {sr(R_WS,4)}, s36 offen sc1\ns_mov_b64 exec, -1")
        budget_check()
        a(f"s_waitcnt vmcnt(0)\nv_xor_b32 v{h+3}, v{h+3}, v{h+1}\nv_cmp_gt_u32 vcc, 1024, v{h+3}\nv_cndmask_b32 v{h+3}, 0, v{h+3}, vcc")
        xreduce("v_add_u32", h + 3, h + 4, (1, 2, 4, 8, 16))
        a(f"v_readfirstlane_b32 s42, v{h+3}\ns_lshr_b32 s42, s42, 5\ns_sub_u32 s42, s42, s41\ns_sub_u32 s43, s42, s39\ns_mov_b32 s39, s42")
        a(f"v_mov_b32 v{h+2}, s43\ns_mov_b64 exec, 1\nds_add_u32 v{VCN}, v{h+2} offset:{C_T*4}\ns_mov_b64 exec, -1\ns_branch {Lb}")
        a.label(Le)
    a("s_mov_b32 s39, 0")
    def mod_tile(t, cnt):
        lds_wait(cnt, 8, WK, VCN)
        tr_tile(FU, L_MOD + t * 16384, 2, WK + 4)
        a("s_waitcnt lgkmcnt(0)")
        gemv_pub([FU, FU + 8], 2, FU + 16, FU + 24, MODP + (t - 1) * 512 if t else HP, tagged=bool(t))
    a.c("partial sa/ca (then ga|sb, cb|gb) of this workgroup's w_mod tiles")
    mod_tile(0, C_CRIT)
    a(f"v_mov_b32 v{BT}, 0xffffff00")
    stamp(2, VST)
    a(f"v_lshrrev_b32 v{WK}, 3, v1\nv_mul_u32_u24 v{VA}, {16*WS}, v{WK}\nv_and_b32 v{WK}, 7, v1\nv_lshl_add_u32 v{VA}, v{WK}, 4, v{VA}")
    a(f"s_mul_i32 s5, s30, {WS}\ns_lshl_b32 s7, s{WV}, 7\ns_add_u32 s5, s5, s7\nv_add_u32 v{VA}, s5, v{VA}")
    if cfg.qm:
        a(f"v_lshl_add_u32 v{TB}, v1, 3, s30\nv_and_b32 v{WK}, 7, v1\ns_and_b32 s5, s2, 3\ns_add_u32 s5, s5, 196\ns_lshl_b32 s6, s82, 3")
        a(f"s_mov_b32 exec_lo, 0\nv_lshl_add_u32 v{TB}, v{WK}, 3, s5\ns_mov_b32 exec_hi, 0xff\nv_add_u32 v{TB}, s6, v{WK}\ns_mov_b64 exec, -1")
    else:
        a(f"v_lshl_add_u32 v{TB}, v1, 3, s30\ns_and_b32 s5, s2, 3\ns_lshl_b32 s5, s5, 6\ns_lshl_b32 s6, s{WV}, 4\ns_add_u32 s5, s5, s6\nv_and_b32 v{WK}, 15, v1")
        a(f"s_mov_b32 exec_lo, 0\nv_add_u32 v{TB}, s5, v{WK}\ns_mov_b32 exec_lo, -1")
    a(f"v_and_b32 v{WK}, 7, v{TB}\nv_and_b32 v{TB}, 0xf8, v{TB}\nv_lshl_add_u32 v{TB}, v{WK}, 8, v{TB}")
    lds_wait(C_WQ, 8, WK + 4, VCN)
    tr_tile(FD, L_WQ, 4, WK + 4)
    mod_tile(1, C_MOD1)
    if not cfg.steal: mod_tile(2, C_MOD2)
    stamp(3, VST)
    a.c('flags: producers have cleared their sentinel slots; s15 = whole class sits on this XCD')
    gather([(FG, 2, TB, XCP, None)], WK, kind="tag", tags=[FG + 1])
    a(f"v_cmp_ne_u32 vcc, s14, v{FG}\ns_cmp_eq_u32 vcc_lo, 0\ns_cselect_b32 s15, 1, 0")
    if cfg.balk: bal_run(8 * (cfg.p1 - cfg.hl))
    lds_wait(C_P1, 8, WK + 4, VCN)
    stamp(4, VST)
    a.c('hand-off 1: sum sa, ca; h = bf16(bf16(ln1 * bf16(1 + ca)) + sa); partial q = h @ wq tile')
    gather([(FU + 4 * i, 4, VA, HP + (i >> 1) * 8 * WS + (i & 1) * 128 * WS, None) for i in range(4)], WK)
    stamp(5, VST)
    pk_sum4(FU, 2); pk_sum4(FU + 8, 2); col_reduce(FU); col_reduce(FU + 8)
    rnd(FU, FU); rnd(FU + 8, FU + 8)
    a(f"v_add_f32 v{FU+8}, 1.0, v{FU+8}"); rnd(FU + 8, FU + 8)
    a(f"v_mul_f32 v{LN1}, v{LN1}, v{FU+8}"); rnd(LN1, LN1); a(f"v_add_f32 v{LN1}, v{LN1}, v{FU}"); rnd(LN1, LN1)
    a(f"s_lshl_b32 s5, s{WV}, 6\ns_add_u32 s5, s5, {L_HV}\nv_add_u32 v{VB}, s5, v{K_C1}")
    a(f"ds_write_b16_d16_hi v{VB}, v{LN1}\ns_waitcnt lgkmcnt(0)")
    lds_signal(C_H, VCN, VONE)
    lds_wait(C_H, 4, WK, VCN, sleep=0)
    for kk in range(4): a(f"ds_read_b128 {vr(ACT+4*kk,4)}, v{VACT} offset:{L_HV - L_MISC + kk*64}")
    a("s_waitcnt lgkmcnt(0)")
    gemv_pub([FD, FD + 16], 4, FU, FU + 8, QP, tagged=False)
    stamp(6, VST)
    if cfg.steal:
        a(f"s_xor_b32 s84, s2, 4\ns_mul_i32 s84, s84, {WS}\ns_cmp_lg_u32 s{WV}, 1\ns_cbranch_scc1 L_cl_done")
        a(f"v_mov_b32 v{FG}, v{TAG}\nv_mov_b32 v{FG+1}, v{TAG}")
        lds_wait(C_PA, 8, WK, VCN)
        a(f"s_mov_b64 exec, 1\nbuffer_atomic_swap v{FG}, off, {sr(R_WS,4)}, s{SMY} offset:{CLM} sc0 sc1\ns_mov_b64 exec, -1")
        lds_wait(C_PB, 8, WK, VCN)
        a(f"s_mov_b64 exec, 1\nbuffer_atomic_swap v{FG+1}, off, {sr(R_WS,4)}, s84 offset:{CLM} sc0 sc1\ns_waitcnt vmcnt(0)")
        a(f"v_cmp_ne_u32 vcc, v{FG}, v{TAG}\nv_cndmask_b32 v{FG}, 4, 5, vcc\nv_cmp_ne_u32 vcc, v{FG+1}, v{TAG}\nv_cndmask_b32 v{FG+1}, 0, 2, vcc\nv_add_u32 v{FG}, v{FG}, v{FG+1}")
        a(f"ds_write_b32 v{VCN}, v{FG} offset:{C_DEC*4}\ns_mov_b64 exec, -1")
        a.label("L_cl_done")
    a.c('hand-off 2: sum the q parts of this kv group -> LDS')
    if cfg.qm:
        a(f"s_and_b32 s5, s2, 0xc4\ns_cmp_lg_u32 s5, 0xc4\ns_cbranch_scc1 L_qm_done")
        a(f"v_lshrrev_b32 v{WK}, 3, v1\nv_mul_u32_u24 v{VA}, {WS}, v{WK}\nv_and_b32 v{WK+1}, 7, v1\nv_lshl_add_u32 v{VA}, v{WK+1}, 4, v{VA}\nv_lshlrev_b32 v{WK+1}, 3, v{WK+1}")
        a(f"s_mul_i32 s5, s82, {8*WS}\ns_lshl_b32 s6, s{WV}, 7\ns_add_u32 s5, s5, s6\nv_add_u32 v{VA}, s5, v{VA}\ns_lshl_b32 s6, s{WV}, 6\ns_add_u32 s83, s83, s6")
        lds_wait(C_PM, 8, WK + 4, VCN)
        gather([(FG, 4, VA, QP, None)], WK)
        for e in range(4): xreduce("v_add_f32", FG + e, FG + 4 + e, (8, 16, 32))
        a(f"v_cvt_pk_bf16_f32 v{FG}, v{FG}, v{FG+1}\nv_cvt_pk_bf16_f32 v{FG+1}, v{FG+2}, v{FG+3}")
        a(f"s_mov_b64 exec, 0xff\nbuffer_store_dwordx2 {vr(FG,2)}, v{WK+1}, {sr(R_WS,4)}, s83 offen sc1\ns_mov_b64 exec, -1")
        a.label("L_qm_done")
        a(f"s_and_b32 s5, s2, 3\ns_lshl_b32 s5, s5, 11\nv_lshlrev_b32 v{WK+2}, 3, v0\nv_add_u32 v{VA}, s5, v{WK+2}\nv_add_u32 v{WK+2}, {L_QV}, v{WK+2}")
        lds_wait(C_P2, 8, WK + 4, VCN)
        stamp(20, VST)
        gather([(FG + 8, 2, VA, QF, None)], WK)
        stamp(7, VST)
        a(f"ds_write_b64 v{WK+2}, {vr(FG+8,2)}\ns_waitcnt lgkmcnt(0)")
    else:
        a(f"s_and_b32 s5, s2, 3\ns_lshl_b32 s5, s5, 3\nv_lshrrev_b32 v{WK+4}, 5, v0\nv_add_u32 v{WK+4}, s5, v{WK+4}\nv_mul_u32_u24 v{VA}, {8*WS}, v{WK+4}")
        a(f"v_and_b32 v{WK+4}, 31, v0\nv_lshl_add_u32 v{VA}, v{WK+4}, 4, v{VA}")
        a(f"v_lshlrev_b32 v{WK+2}, 3, v0\nv_add_u32 v{WK+2}, {L_QV}, v{WK+2}")
        if cfg.balk: bal_run(8 * (cfg.p2 - cfg.hl))
        lds_wait(C_P2, 8, WK + 4, VCN)
        stamp(20, VST)
        gather([(FG + 4 * i, 4, VA, QP + i * WS, None) for i in range(1 if cfg.dbgh & 2 else 8)], WK)
        if cfg.dbgh & 2:
            for i in range(4, 32): a(f"v_mov_b32 v{FG+i}, 0")
        stamp(7, VST)
        pk_sum4(FG, 8)
        a(f"v_cvt_pk_bf16_f32 v{WK}, v{FG}, v{FG+1}\nv_cvt_pk_bf16_f32 v{WK+1}, v{FG+2}, v{FG+3}")
        a(f"ds_write_b64 v{WK+2}, {vr(WK,2)}\ns_waitcnt lgkmcnt(0)")
    lds_signal(C_Q, VCN, VONE)
    a(f"s_add_u32 s5, s2, s{WV}\ns_cmp_lg_u32 s5, 0\ns_cbranch_scc1 L_ep_done")
    a(f"s_mov_b32 s5, {EPOCH}\ns_mov_b64 exec, 1\nbuffer_store_dword v{TAG}, off, {sr(R_WS,4)}, s5 sc1\ns_mov_b64 exec, -1")
    a.label("L_ep_done")
    ROLE, RBF, SFY, VAW = 31, 12, 13, WK + 6
    def role_make():
        a(f"s_cmp_lg_u32 s{WV}, 1\ns_cbranch_scc1 L_role_done")
        if cfg.role == 2:
            lds_wait(C_P4, 8, WK, VCN, sleep=2)
            a(f"s_mul_i32 s5, s30, {WS}\ns_add_u32 s5, s5, {TKT}\nv_mov_b32 v{WK}, 1\ns_mov_b64 exec, 1")
            a(f"buffer_atomic_add v{WK}, off, {sr(R_WS,4)}, s5 sc0 sc1\ns_waitcnt vmcnt(0)\nv_readfirstlane_b32 s36, v{WK}\ns_add_u32 s36, s36, 1")
        if cfg.role == 0: a("s_mov_b32 s5, s2")
        else:
            if cfg.role == 1: a("s_lshr_b32 s36, s2, 3")
            a("s_lshr_b32 s6, s36, 3\ns_mul_i32 s5, s30, 3\ns_add_u32 s5, s5, s6\ns_add_u32 s7, s30, 24\ns_cmp_lt_u32 s6, 3\ns_cselect_b32 s5, s5, s7")
            a("s_cmp_lt_u32 s6, 4\ns_cselect_b32 s5, s5, 28\ns_lshl_b32 s5, s5, 3\ns_and_b32 s6, s36, 7\ns_add_u32 s5, s5, s6")
        a(f"s_add_u32 s5, s5, 1\nv_mov_b32 v{WK}, s5\ns_mov_b64 exec, 1\nds_write_b32 v{VCN}, v{WK} offset:{C_ROLE*4}\ns_mov_b64 exec, -1")
        a.label("L_role_done")
    def rest_mod():
        lds_wait(C_ROLE, 1, WK, VCN, sleep=2)
        a(f"s_sub_u32 s{ROLE}, s5, 1")
        a(f"s_and_b32 s{RBF}, s{ROLE}, 7\ns_mul_i32 s{SFY}, s{ROLE}, {WS}\ns_lshl_b32 s32, s{RBF}, 7\ns_lshl_b32 s5, s{WV}, 5\ns_add_u32 s32, s32, s5")
        a(f"s_lshl_b32 s5, s32, 1\nbuffer_load_ushort v{K_X}, v{K_C1}, {sr(R_X,4)}, s5 offen")
        a(f"v_lshrrev_b32 v{WK}, 3, v1\nv_mul_u32_u24 v{WK+1}, {WS}, v{WK}\nv_and_b32 v{WK+2}, 7, v1\nv_lshlrev_b32 v{WK+2}, 4, v{WK+2}")
        a(f"s_mul_i32 s34, s{RBF}, {WS}\ns_lshl_b32 s6, s{WV}, 7\ns_add_u32 s34, s34, s6")
        a(f"s_lshl_b32 s5, s32, 4\nv_lshl_add_u32 v{VA}, v{K_C1}, 3, s5")
        gather([(FG, 4, VA, MODF, None)], WK, kind="byte")
        a(f"v_and_b32 v{WK+3}, 8, v1\nv_mul_u32_u24 v{WK+3}, 40, v{WK+3}\ns_lshl_b32 s5, s{WV}, 6\ns_add_u32 s5, s5, {L_AT}\nv_add3_u32 v{VAW}, v{WK+3}, v{K_C1}, s5")
        a(f"v_mov_b32 v{TB}, v{K_C1}")
        a(f"v_mov_b32 v{K_GA}, v{FG}\nv_mov_b32 v{K_GB}, v{FG+3}\nv_add_f32 v{K_C1}, 1.0, v{FG+2}"); rnd(K_C1, K_C1)
        a(f"v_mov_b32_dpp v{FG+1}, v{K_C1} quad_perm:[0,1,2,3] row_mask:0xf bank_mask:0x3")
        a(f"ds_write_b16_d16_hi v{VAW}, v{FG+1} offset:640")
        stamp(8, VST)
        a(f"v_lshlrev_b32 v{K_X}, 16, v{K_X}")
    role_make()
    a.c('softmax statistics of the workgroup -> other splits of the kv group')
    a(f"s_cmp_lg_u32 s{WV}, 0\ns_cbranch_scc1 L_ml_pub")
    lds_wait(C_ML, 8, WK, VCN, sleep=2)
    stamp(9, VST)
    a(f"v_lshlrev_b32 v{WK+2}, 3, v1\nv_add_u32 v{WK+3}, {L_MLW}, v{WK+2}\nds_read_b64 {vr(WK,2)}, v{WK+3}\ns_waitcnt lgkmcnt(0)")
    a(f"v_mov_b32 v{WK+4}, v{WK}")
    xreduce("v_max_f32", WK + 4, WK + 6, (8, 16, 32))
    a(f"v_sub_f32 v{WK}, v{WK}, v{WK+4}\nv_mul_f32 v{WK}, s33, v{WK}\nv_exp_f32 v{WK}, v{WK}\nv_mul_f32 v{WK+5}, v{WK}, v{WK+1}")
    xreduce("v_add_f32", WK + 5, WK + 6, (8, 16, 32))
    a(f"s_mov_b64 exec, 0xff\nbuffer_store_dwordx2 {vr(WK+4,2)}, v{WK+2}, {sr(R_WS,4)}, s81 offen sc1\ns_mov_b64 exec, -1")
    a.label("L_ml_pub")
    if cfg.steal:
        a(f"s_lshl_b32 s5, s{WV}, 7\nv_add_u32 v{WK+1}, s5, v{VACT}\nds_read_b128 {vr(ACT,4)}, v{WK+1} offset:{L_SIL-L_MISC}\nds_read_b128 {vr(ACT+4,4)}, v{WK+1} offset:{L_SIL-L_MISC+64}")
        lds_wait(C_DEC, 1, WK, VCN)
        a("s_mov_b32 s85, s5")
        for bit, cnt, base, slot in ((0, C_MOD2, L_MOD + 32768, None), (1, C_MOD3, L_WO, 84)):
            a(f"s_bitcmp1_b32 s85, {bit}\ns_cbranch_scc0 L_st_skip{bit}")
            lds_wait(cnt, 8, WK, VCN)
            tr_tile(FU, base, 2, WK + 4)
            a("s_waitcnt lgkmcnt(0)")
            gemv_pub([FU, FU + 8], 2, FU + 16, FU + 24, MODP + 512, slot=slot)
            a.label(f"L_st_skip{bit}")
        lds_signal(C_MLD, VCN, VONE)
    a.c('32 waves finish ga, sb, cb, gb')
    a(f"s_cmp_lg_u32 s{WV}, 2\ns_cbranch_scc1 L_modf_done\ns_and_b32 s5, s2, 0xc4\ns_cmp_lg_u32 s5, 0xc4\ns_cbranch_scc1 L_modf_done")
    a(f"s_bfe_u32 s36, s2, 0x30003\ns_and_b32 s37, s2, 3\ns_mul_i32 s5, s36, {WS}\ns_lshl_b32 s6, s37, 7\ns_add_u32 s5, s5, s6")
    a(f"v_lshrrev_b32 v{WK}, 3, v1\nv_mul_u32_u24 v{VA}, {16*WS}, v{WK}\nv_and_b32 v{WK}, 7, v1\nv_lshl_add_u32 v{VA}, v{WK}, 4, v{VA}\nv_add_u32 v{VA}, s5, v{VA}")
    if cfg.steal: lds_wait(C_P9, 8, WK, VCN, sleep=4)
    mv = [MODP, MODP + 8 * WS, MODP + 512, MODP + 512 + 8 * WS]
    gather([(FG + 8 * v + 4 * i, 4, VA, mv[v] + i * 128 * WS, None) for v in range(4) for i in range(2)], WK, kind="byte")
    for v in range(4):
        pk_sum4(FG + 8 * v, 2); col_reduce(FG + 8 * v); rnd(FG + 8 * v, FG + 8 * v)
    for v in range(4): tagit(FU + v, FG + 8 * v, v)
    a(f"v_lshlrev_b32 v{WK}, 3, v{K_C1}\ns_lshl_b32 s5, s36, 11\ns_lshl_b32 s6, s37, 9\ns_add_u32 s5, s5, s6\ns_add_u32 s5, s5, {MODF}")
    setexec(0x00ff00ff00ff00ff)
    a(f"buffer_store_dwordx4 {vr(FU,4)}, v{WK}, {sr(R_WS,4)}, s5 offen sc1\ns_mov_b64 exec, -1")
    a.label("L_modf_done")
    a(f"s_cmp_lg_u32 s{WV}, 0\ns_cbranch_scc1 L_ml_done")
    a(f"v_lshl_add_u32 v{VA}, v1, 3, s80")
    lds_wait(C_P3, 8, WK, VCN)
    stamp(21, VST)
    gather([(FU + 2 * i, 2, VA, i * 512, None) for i in range(8)], WK)
    a.c('global max and sum over the 64 splits -> LDS')
    m_, r_, t_ = FU + 16, FU + 17, FU + 18
    a(f"v_max3_f32 v{m_}, v{FU}, v{FU+2}, v{FU+4}\nv_max3_f32 v{m_}, v{m_}, v{FU+6}, v{FU+8}\nv_max3_f32 v{m_}, v{m_}, v{FU+10}, v{FU+12}\nv_max_f32 v{m_}, v{m_}, v{FU+14}")
    xreduce("v_max_f32", m_, t_, (8, 16, 32))
    for i in range(8):
        a(f"v_sub_f32 v{FU+2*i}, v{FU+2*i}, v{m_}\nv_mul_f32 v{FU+2*i}, s33, v{FU+2*i}\nv_exp_f32 v{FU+2*i}, v{FU+2*i}")
    for i in range(8): a(f"v_mul_f32 v{FU+2*i}, v{FU+2*i}, v{FU+2*i+1}")
    tree_sum(FU, 8, 2)
    xreduce("v_add_f32", FU, t_, (8, 16, 32))
    a(f"v_rcp_f32 v{r_}, v{FU}")
    a(f"v_lshlrev_b32 v{t_}, 3, v1\nv_add_u32 v{t_}, {L_MLF}, v{t_}\ns_mov_b64 exec, 0xff\nds_write_b64 v{t_}, {vr(m_,2)}\ns_waitcnt lgkmcnt(0)")
    lds_signal(C_MLD, VCN, VONE)
    stamp(10, VST)
    a.label("L_ml_done")
    if cfg.bal >= 2: bal_run(8 * (cfg.NS - cfg.hstop - cfg.D2 - cfg.nq2 + (32 if cfg.balk else 0)))
    lds_wait(C_P3, 8, WK, VCN, sleep=4)
    rest_mod()
    late = lst(cfg.late)
    def ffn_frags(name, t0):
        base, dst, cnt = {"wo": (L_WO, FWO, C_WO), "gate": (L_GATE, FG, C_GATE), "up": (L_UP, FU, C_UP), "dn": (L_DN, FD, None)}[name]
        if cnt is not None: lds_wait(cnt, 8, t0, VCN, sleep=0 if name in late else 2)
        tr_tile(dst, base, 4, t0)
    if "wo" not in late: ffn_frags("wo", WK + 3)
    for name in ("gate", "up"):
        if name not in late: ffn_frags(name, WK + 3)
    a.c('addresses used by the tail')
    A_OS, A_OG, A_XW = ACT + 8, ACT + 9, ACT + 10
    A_A = WK + 5
    assert all(t in late for t in ("gate", "up"))
    if cfg.ared:
        a(f"s_and_b32 s5, s2, 3\ns_mul_i32 s5, s5, {WS}\ns_lshl_b32 s6, s{RBF}, 9\ns_add_u32 s5, s5, s6\ns_lshl_b32 s7, s{WV}, 7\ns_add_u32 s5, s5, s7")
    else:
        a(f"s_lshr_b32 s5, s2, 6\ns_mul_i32 s5, s5, {WS}\ns_lshl_b32 s6, s30, 9\ns_add_u32 s5, s5, s6\ns_lshl_b32 s7, s{WV}, 7\ns_add_u32 s5, s5, s7")
    a(f"v_lshl_add_u32 v{A_A}, v{WK+1}, 2, v{WK+2}\nv_add_u32 v{A_A}, s5, v{A_A}")
    a(f"s_mul_i32 s5, s{RBF}, {8*WS}\ns_add_u32 s5, s5, s7\nv_add3_u32 v{VA}, v{WK+1}, v{WK+2}, s5")
    a(f"v_lshl_add_u32 v{WK+1}, v{WK+1}, 3, v{WK+2}\nv_add_u32 v{WK+1}, s34, v{WK+1}")
    a(f"s_and_b32 s5, s{ROLE}, 0xf8\ns_mul_i32 s5, s5, {WS}\ns_lshl_b32 s6, s{WV}, 8\ns_add_u32 s5, s5, s6\nv_lshrrev_b32 v{WK}, 4, v1\nv_mul_u32_u24 v{WK}, {WS}, v{WK}")
    a(f"v_and_b32 v{WK+2}, 15, v1\nv_lshlrev_b32 v{WK+2}, 4, v{WK+2}\nv_add3_u32 v{WK+2}, v{WK}, v{WK+2}, s5")
    A_Y, A_Z, A_E = VA, WK + 1, WK + 2
    a(f"v_lshrrev_b32 v{WK}, 4, v1\nv_and_b32 v{WK+3}, 15, v1\nv_lshlrev_b32 v{A_OS}, 10, v{WK}\nv_lshl_add_u32 v{A_OS}, v{WK+3}, 4, v{A_OS}")
    a(f"s_lshl_b32 s5, s{WV}, 8\ns_add_u32 s5, s5, {L_OS}\nv_add_u32 v{A_OS}, s5, v{A_OS}")
    a(f"v_and_b32 v{A_OG}, 7, v1\nv_lshlrev_b32 v{A_OG}, 9, v{A_OG}\nv_lshl_add_u32 v{A_OG}, v{WK}, 4, v{A_OG}\nv_and_b32 v{WK+3}, 8, v1\nv_lshl_add_u32 v{A_OG}, v{WK+3}, 3, v{A_OG}")
    a(f"s_lshl_b32 s37, s{WV}, 7\ns_add_u32 s37, s37, s{SMY}\ns_add_u32 s37, s37, {OP}")
    a(f"v_and_b32 v{WK+3}, 7, v1\nv_bfe_u32 v{WK+4}, v1, 4, 1\nv_lshl_add_u32 v{WK+3}, v{WK+4}, 4, v{WK+3}\nv_lshrrev_b32 v{WK+4}, 5, v1\nv_lshl_add_u32 v{WK+3}, v{WK+4}, 3, v{WK+3}")
    if cfg.ared: a(f"s_lshl_b32 s5, s{WV}, 7\ns_add_u32 s5, s5, {L_RV}\nv_lshl_add_u32 v{A_XW}, v{WK+3}, 1, s5\nv_readfirstlane_b32 s33, v{TAG}")
    else: a(f"s_lshl_b32 s5, s{WV}, 6\ns_add_u32 s5, s5, {L_OV}\nv_lshl_add_u32 v{A_XW}, v{WK+3}, 1, s5")
    a(f"v_lshlrev_b32 v{VCHK}, 2, v1\nv_add_u32 v{VCHK}, {L_MISC}, v{VCHK}")
    def e_preread(t):
        a(f"v_lshlrev_b32 v{t}, 7, v1\ns_lshl_b32 s5, s{WV}, 8\ns_add_u32 s5, s5, s{SFY}\ns_add_u32 s5, s5, {GUP}\ns_mov_b64 exec, 7")
        a(f"buffer_load_dword v{t}, v{t}, {sr(R_WS,4)}, s5 offen sc1\ns_mov_b64 exec, -1")
    if cfg.warm:
        a(f"s_getpc_b64 s[6:7]\ns_lshl_b32 s5, s{WV}, 11\nv_lshlrev_b32 v{WK+4}, 7, v1\nv_add_u32 v{WK+4}, s5, v{WK+4}\ns_mov_b64 exec, 0xffff")
        a(f"global_load_dword v{WK+3}, v{WK+4}, s[6:7]\ns_mov_b64 exec, -1")
    a(f"v_readfirstlane_b32 s35, v{TAG}\ns_lshl_b32 s35, s35, 10\ns_or_b32 s35, s35, {8 * (cfg.NS - cfg.D2 - cfg.nq2 + (32 if cfg.balk else 0)) + 1}")
    if cfg.zt:
        a(f"s_lshl_b32 s5, s{WV}, 7\ns_add_u32 s5, s5, s{SFY}\ns_add_u32 s5, s5, {ZP}\ns_mov_b64 exec, 1\nbuffer_load_dword v{TAG}, off, {sr(R_WS,4)}, s5 sc1\ns_mov_b64 exec, -1")
    if cfg.ot & 1:
        a(f"v_lshlrev_b32 v{WK+4}, 7, v1\ns_lshl_b32 s5, s{WV}, 10\ns_add_u32 s5, s5, s{SMY}\ns_add_u32 s5, s5, {OP}\ns_mov_b64 exec, 0xff\nbuffer_load_dword v{TAG}, v{WK+4}, {sr(R_WS,4)}, s5 offen sc1\ns_mov_b64 exec, -1")
    if cfg.ot & 2:
        a(f"s_lshl_b32 s5, s{WV}, 7\ns_add_u32 s5, s5, s{SMY}\ns_add_u32 s5, s5, {YP}\ns_mov_b64 exec, 1\nbuffer_load_dword v{TAG}, off, {sr(R_WS,4)}, s5 sc1\ns_mov_b64 exec, -1")
    if cfg.elocal and cfg.epre == 1: e_preread(WK + 3); a("s_waitcnt vmcnt(0)")
    h = FG
    def cd_mark():
        a(f"s_mul_i32 s36, s30, {WS}\ns_add_u32 s36, s36, {BRD}\ns_lshr_b32 s5, s2, 3\ns_lshl_b32 s5, s5, 2\ns_add_u32 s5, s5, s36")
        a(f"v_lshlrev_b32 v{h}, 2, v1\nv_mov_b32 v{h+1}, s35\nv_mov_b32 v{h+4}, 8\ns_mov_b64 exec, 1\nbuffer_store_dword v{h+1}, off, {sr(R_WS,4)}, s5 {cfg.lfl}\ns_mov_b32 exec_lo, -1")
    def hint_mark(early):
        a(f"s_cmp_lg_u32 s{WV}, 3\ns_cbranch_scc1 L_hm_done")
        if early: lds_wait(C_P8, 8, WK, VCN)
        if cfg.hint == 3: a("s_waitcnt vmcnt(0)"); stamp(30, VST)
        a(f"s_mul_i32 s5, s30, {WS}\ns_add_u32 s5, s5, {TKT}\nv_mov_b32 v{h}, 1\nv_mul_u32_u24 v{h+1}, {WS}, v1\nv_mov_b32 v{h+2}, s35\ns_mov_b64 exec, 1")
        a(f"buffer_atomic_add v{h}, off, {sr(R_WS,4)}, s5 sc0 sc1\ns_mov_b64 exec, -1")
        a(f"s_and_b32 s36, s2, 3\ns_mul_i32 s36, s36, {64*WS}\ns_and_b32 s5, s2, 4\ns_add_u32 s36, s36, s5\ns_add_u32 s36, s36, {INB}")
        a(f"s_waitcnt vmcnt(0)\nv_readfirstlane_b32 s5, v{h}\ns_cmp_lg_u32 s5, 30\ns_cbranch_scc1 L_hm_done")
        a(f"buffer_store_dword v{h+2}, v{h+1}, {sr(R_WS,4)}, s36 offen sc1")
        a.label("L_hm_done")
    if cfg.hint:
        if cfg.hint == 1: hint_mark(True)
    elif cfg.cdone and cfg.pv >= 0:
        a(f"s_cmp_lg_u32 s{WV}, 3\ns_cbranch_scc1 L_cm_done")
        lds_wait(C_P8, 8, WK, VCN)
        cd_mark()
        a(f"buffer_load_dword v{h+2}, v{h}, {sr(R_WS,4)}, s36 offen sc1\ns_mov_b64 exec, -1")
        a.label("L_cm_done")
    a("s_waitcnt lgkmcnt(0)")
    stamp(11, VST)
    a("s_barrier")
    stamp(12, VST)
    a.c("sum the 8 waves' O and publish the workgroup's partial")
    for s in range(8): a(f"ds_read_b128 {vr(FD+4*s,4)}, v{A_OS} offset:{s*4096}")
    a("s_waitcnt lgkmcnt(4)"); pk_sum4(FD, 4)
    a("s_waitcnt lgkmcnt(0)"); pk_sum4(FD + 16, 4)
    a(f"v_pk_add_f32 {vr(FD,2)}, {vr(FD,2)}, {vr(FD+16,2)}\nv_pk_add_f32 {vr(FD+2,2)}, {vr(FD+2,2)}, {vr(FD+18,2)}")
    for i in range(4): tagit(FD + i, FD + i, i)
    a(f"buffer_store_dwordx4 {vr(FD,4)}, v{A_OG}, {sr(R_WS,4)}, s37 offen sc1")
    stamp(13, VST)
    def betweenA():
        if cfg.p5 < 0: lds_signal(C_OR, VCN, VONE)
        if "wo" in late: ffn_frags("wo", WK + 3)
    if cfg.p5 >= 0:
        lds_signal(C_OR, VCN, VONE)
        if cfg.ared: a(f"s_cmp_lt_u32 s{ROLE}, 224\ns_cbranch_scc1 L_ar_done")
        if cfg.hint:
            if cfg.hint >= 2: hint_mark(False)
            a(f"s_cmp_lg_u32 s{WV}, 2\ns_cbranch_scc1 L_hp_done")
            a(f"s_add_u32 s5, s{SMY}, {INB}\ns_add_u32 s40, s{KA(104)}, s5\ns_addc_u32 s41, s{KA(104)+1}, 0\nv_mov_b32 v{h+4}, 8")
            a.label("L_hp")
            a(f"s_load_dwordx2 s[42:43], s[40:41], 0 glc\nds_read_b32 v{h+3}, v{VCN} offset:{C_P5*4}")
            budget_check()
            a(f"s_waitcnt lgkmcnt(0)\nv_readfirstlane_b32 s5, v{h+3}\ns_cmp_ge_u32 s5, 8\ns_cbranch_scc1 L_hp_done")
            a(f"s_cmp_lg_u32 s42, s35\ns_cbranch_scc1 L_hp\ns_cmp_lg_u32 s43, s35\ns_cbranch_scc1 L_hp")
            if cfg.hd:
                a(f"ds_read_b32 v{WK}, v{VCN} offset:{C_LC*4}\ns_waitcnt lgkmcnt(0)\nv_readfirstlane_b32 s42, v{WK}\ns_add_u32 s42, s42, {cfg.hd}\ns_min_u32 s42, s42, {8 * (16 - cfg.nl0 - cfg.nmid - cfg.npre)}")
                lds_wait(C_LC, "s42", WK, VCN)
            a(f"s_mov_b64 exec, 1\nds_add_u32 v{VCN}, v{h+4} offset:{C_P5*4}\ns_mov_b64 exec, -1")
            a.label("L_hp_done")
        elif cfg.cdone:
            a(f"s_cmp_lg_u32 s{WV}, 3\ns_cbranch_scc1 L_cd_done")
            if cfg.pv < 0: cd_mark()
            else: a(f"s_mov_b32 exec_hi, 0\ns_waitcnt vmcnt(1)\ns_branch L_cd_chk")
            a.label("L_cd")
            a(f"buffer_load_dword v{h+2}, v{h}, {sr(R_WS,4)}, s36 offen sc1\nds_read_b32 v{h+3}, v{VCN} offset:{C_P5*4}")
            budget_check()
            a(f"s_waitcnt lgkmcnt(0)\nv_readfirstlane_b32 s5, v{h+3}\ns_cmp_ge_u32 s5, 8\ns_cbranch_scc1 L_cd_out\ns_waitcnt vmcnt(0)")
            a.label("L_cd_chk")
            a(f"v_cmp_eq_u32 vcc, s35, v{h+2}\ns_bcnt1_i32_b64 s5, vcc\ns_cmp_lt_u32 s5, {cfg.cdone}\ns_cbranch_scc1 L_cd")
            a(f"s_mov_b64 exec, 1\nds_add_u32 v{VCN}, v{h+4} offset:{C_P5*4}")
            a.label("L_cd_out")
            a("s_mov_b64 exec, -1")
            a.label("L_cd_done")
        if cfg.pmin >= 0: lds_wait(C_P7, 8, WK, VCN)
        lds_wait(C_P5, 8, WK, VCN)
    stamp(28, VST)
    a.c('hand-off 3: o of one head (64 partials), y partial = o @ wo tile')
    if cfg.dbgh & 4:
        for i in range(32): a(f"v_mov_b32 v{FU+i}, 0")
    gather([(FU + 4 * i, 4, A_A, OP + i * 32 * WS, 0x0101010101010101 if cfg.dbgh & 4 else None) for i in range(8)], WK, kind="byte", between=None if cfg.ared else betweenA, acc=FD + 4)
    if cfg.yrel == 1: lds_signal(C_Y, VCN, VONE)
    stamp(30 if cfg.ared else 14, VST)
    col_reduce(FD + 4)
    rnd(FD + 4, FD + 4)
    a(f"ds_write_b16_d16_hi v{A_XW}, v{FD+4}")
    if cfg.ared:
        r_ = FD + 8
        a(f"v_mul_u32_u24 v{r_+4}, 43, v1\nv_lshrrev_b32 v{r_+4}, 8, v{r_+4}\nv_mul_u32_u24 v{r_+5}, 6, v{r_+4}\nv_sub_u32 v{r_+5}, v1, v{r_+5}")
        a(f"v_mul_u32_u24 v{r_+6}, 12, v{r_+5}\ns_lshl_b32 s5, s{WV}, 7\ns_add_u32 s6, s5, {L_RV}\nv_add_u32 v{r_+6}, s6, v{r_+6}")
        a(f"ds_read2_b32 {vr(r_,2)}, v{r_+6} offset0:0 offset1:1\nds_read_b32 v{r_+2}, v{r_+6} offset:8\nv_mov_b32 v{r_+3}, s33")
        a(f"v_mul_u32_u24 v{r_+4}, {8*WS}, v{r_+4}\nv_lshl_add_u32 v{r_+4}, v{r_+5}, 4, v{r_+4}")
        a(f"s_and_b32 s6, s2, 3\ns_lshl_b32 s6, s6, 6\ns_add_u32 s6, s6, s{RBF}\ns_mul_i32 s6, s6, {WS}\ns_add_u32 s5, s5, s6\ns_add_u32 s5, s5, {OIN}")
        a(f"s_mov_b32 exec_hi, 0xffff\ns_waitcnt lgkmcnt(0)\nbuffer_store_dwordx4 {vr(r_,4)}, v{r_+4}, {sr(R_WS,4)}, s5 offen sc1\ns_mov_b32 exec_hi, -1")
        a.label("L_ar_done")
        ffn_frags("wo", WK + 3)
        a(f"s_lshl_b32 s5, s{WV}, 7\ns_add_u32 s5, s5, s{SMY}\ns_add_u32 s5, s5, {OIN}\ns_add_u32 s40, s{KA(104)}, s5\ns_addc_u32 s41, s{KA(104)+1}, 0")
        a(f"s_lshl_b32 s5, s{WV}, 6\ns_add_u32 s5, s5, {L_OV}\nv_mov_b32 v{r_+16}, s5\ns_branch L_ap0")
        a.label("L_ap")
        if cfg.asl: a(f"s_sleep {cfg.asl}")
        a.label("L_ap0")
        a("s_load_dwordx16 s[44:59], s[40:41], 0 glc\ns_load_dwordx8 s[60:67], s[40:41], 64 glc")
        budget_check()
        a("s_waitcnt lgkmcnt(0)")
        for g in range(6): a(f"s_cmp_lg_u32 s{47+4*g}, s33\ns_cbranch_scc1 L_ap")
        a("s_mov_b64 exec, 1")
        for i in range(16):
            a(f"v_mov_b32 v{r_+i}, s{44 + 4*(i//3) + i%3}")
            if i % 4 == 3: a(f"ds_write_b128 v{r_+16}, {vr(r_+i-3,4)} offset:{(i-3)*4}")
        a("s_mov_b64 exec, -1")
        stamp(14, VST)
    xch_read(L_OV, 4, WK, VACT)
    gemv_pub([FWO, FWO + 16], 4, FD, FD + 16, YP)
    if not cfg.yrel: lds_signal(C_Y, VCN, VONE)
    stamp(15, VST)
    a(f"s_cmp_lt_u32 s{ROLE}, 224\ns_cbranch_scc1 L_ffn")
    if cfg.yrel == 2: lds_signal(C_Y, VCN, VONE)
    a("s_branch L_fin")
    a.label("L_ffn")
    a(f"s_mov_b32 s{SMY}, s{SFY}")
    if cfg.yd >= 0:
        a(f"ds_read_b32 v{WK}, v{VCN} offset:{C_LC*4}\ns_waitcnt lgkmcnt(0)\nv_readfirstlane_b32 s34, v{WK}\ns_add_u32 s34, s34, {cfg.yd}\ns_min_u32 s34, s34, {8 * (16 - cfg.nl0 - cfg.nmid - cfg.npre)}")
    A_AT, A_M, A_GS = WK + 5, FWO + 30, FWO + 31
    a(f"v_and_b32 v{WK}, 3, v1\nv_mul_u32_u24 v{WK+3}, 320, v{WK}\nv_add_u32 v{A_AT}, v{WK+3}, v{VACT}")
    a(f"v_bfe_u32 v{WK+3}, v1, 2, 3\nv_mul_u32_u24 v{WK+3}, {WS}, v{WK+3}\nv_lshl_add_u32 v{A_M}, v{WK}, 4, v{WK+3}\ns_and_b32 s5, s{ROLE}, 0xf8\ns_mul_i32 s5, s5, {WS}\nv_add_u32 v{A_M}, s5, v{A_M}")
    a(f"s_lshl_b32 s36, s{WV}, 8\ns_add_u32 s36, s36, s{SMY}\ns_add_u32 s36, s36, {GUP}\nv_lshlrev_b32 v{A_GS}, 2, v1")
    a(f"s_lshl_b32 s37, s{WV}, 4\ns_add_u32 s37, s37, s{SMY}\ns_add_u32 s37, s37, {MOM}")
    a(f"s_lshl_b32 s5, s{WV}, 6\ns_add_u32 s5, s5, {L_HHV}\nv_add_u32 v{VB}, s5, v{TB}")
    def store_gl(data, vaddr, soff):
        if cfg.elocal:
            Lf = a.newlabel("L_far"); Lj = a.newlabel("L_stj")
            a(f"s_cmp_eq_u32 s15, 0\ns_cbranch_scc1 {Lf}")
            a(f"buffer_store_dwordx4 {vr(data,4)}, {vaddr}, {sr(R_WS,4)}, {soff} {cfg.lfl}")
            a.label(Lj)
            def far():
                a.label(Lf); a(f"buffer_store_dwordx4 {vr(data,4)}, {vaddr}, {sr(R_WS,4)}, {soff} sc1\ns_branch {Lj}")
            deferred.append(far)
        else: a(f"buffer_store_dwordx4 {vr(data,4)}, {vaddr}, {sr(R_WS,4)}, {soff} sc1")
    if cfg.elocal and cfg.epre == 2: e_preread(FWO + 29)
    def dnf():
        a("s_barrier")
        ffn_frags("dn", WK + 3)
    def gu_frags():
        for name in ("gate", "up"):
            if name in late: ffn_frags(name, WK + 3)
    if cfg.bgate == 1: gu_frags()
    if cfg.nb: lds_wait(C_UP, cfg.nb, WK, VCN, sleep=0)
    if cfg.yd >= 0:
        lds_wait(C_LC, "s34", WK, VCN)
    if cfg.p6 >= 0: lds_wait(C_P6, 8, WK, VCN)
    if cfg.ackB: a("s_waitcnt vmcnt(0)")
    stamp(29, VST)
    a.c("hand-off 4: y for this wave's 32 columns; x2 = x + ga*y; rows hi/lo(x2*(1+cb)), 1+cb, sb feed one MFMA pass")
    gather([(FWO + 4 * i, 4, A_Y, YP + i * 64 * WS, None) for i in range(4)], WK, kind="byte", between=dnf if cfg.efirst == 3 else gu_frags if cfg.bgate == 2 else None, acc=FWO + 24, masked=bool(cfg.bmask))
    if cfg.yrel == 2: lds_signal(C_Y, VCN, VONE)
    stamp(16, VST)
    col_reduce(FWO + 24)
    y_ = FWO + 24
    rnd(y_, y_); a(f"v_mul_f32 v{y_}, v{y_}, v{K_GA}"); rnd(y_, y_); a(f"v_add_f32 v{K_X}, v{K_X}, v{y_}"); rnd(K_X, K_X)
    st_ = FWO + 28; mo = FWO
    a(f"v_mov_b32 v{st_}, v{K_X}\nv_mul_f32 v{y_}, v{K_X}, v{K_C1}")
    a(f"v_mul_f32_dpp v{st_}, v{K_X}, v{K_X} quad_perm:[0,1,2,3] row_mask:0xf bank_mask:0xc\nv_mov_b32 v{st_+1}, v{st_}")
    rnd(y_ + 1, y_)
    a(f"s_nop 0\nv_permlane32_swap_b32 v{st_}, v{st_+1}\nv_add_f32 v{st_}, v{st_}, v{st_+1}\nv_mov_b32 v{st_+1}, v{st_}")
    a(f"v_subrev_f32_dpp v{y_}, v{y_+1}, v{y_} quad_perm:[0,1,2,3] row_mask:0xf bank_mask:0xc")
    rnd(y_, y_)
    a(f"v_permlane16_swap_b32 v{st_}, v{st_+1}\nv_add_f32 v{st_}, v{st_}, v{st_+1}")
    a(f"ds_write_b16_d16_hi v{VAW}, v{y_}")
    xreduce("v_add_f32", st_, None, ("quad_perm:[1,0,3,2]", "quad_perm:[2,3,0,1]", "row_half_mirror"))
    a(f"v_and_b32 v{mo}, v{st_}, v{BT}\nv_sub_f32 v{mo+1}, v{st_}, v{mo}")
    tagit(mo, mo, 0)
    a(f"v_mov_b32_dpp v{mo+2}, v{st_} row_ror:8 {DPPF}\nv_mov_b32_dpp v{mo+3}, v{mo+1} row_ror:8 {DPPF}")
    tagit(mo + 1, mo + 1, 1); tagit(mo + 2, mo + 2, 2); tagit(mo + 3, mo + 3, 3)
    a("s_mov_b64 exec, 1")
    store_gl(mo, "off", "s37")
    a("s_mov_b64 exec, -1")
    if cfg.efirst == 4: dnf()
    stamp(22, VST)
    frs = [FG, FG + 16, FU, FU + 16]; dacc = FWO; out = FWO + 16
    mg = FWO + 24
    mload = f"buffer_load_dwordx4 {vr(mg,4)}, v{A_M}, {sr(R_WS,4)}, s34 offen sc1"
    a(f"s_mov_b32 s34, {MOM}")
    if cfg.bgate == 0: gu_frags()
    xch_read(L_AT, 4, WK + 3, A_AT, two=True)
    for cg in range(5):
        if cg < 4:
            if cg > 1: a("s_mov_b64 exec, -1")
            if cg == cfg.mfirst: a(mload)
            for kk in range(4): mfma(dacc + 4 * cg, ACT + 4 * kk, frs[cg] + 4 * kk, kk == 0)
            if cg == 0:
                for k in range(4): a(f"v_mov_b32 v{out+4+k}, s{TB0+k}")
        if cg >= 1:
            d = dacc + 4 * (cg - 1)
            setexec(0xffff << (16 * (cg - 1)))
            a(f"v_add_f32 v{out}, v{d}, v{d+1}\nv_pk_mov_b32 {vr(out+2,2)}, {vr(d+2,2)}, {vr(d+2,2)} op_sel:[0,1]")
    a("s_mov_b64 exec, -1")
    if cfg.mfirst < 4: a("s_branch L_mchk")
    a.label("L_mld")
    a(mload); budget_check()
    a.label("L_mchk")
    a("s_waitcnt vmcnt(0)")
    for k in range(4): a(f"v_xor_b32 v{mg+k}, s{TB0+k}, v{mg+k}")
    a(f"v_or3_b32 v{WK}, v{mg}, v{mg+1}, v{mg+2}\nv_or_b32 v{WK}, v{WK}, v{mg+3}\nv_and_b32 v{WK}, 0xff, v{WK}\nv_cmp_ne_u32 vcc, 0, v{WK}\ns_cbranch_vccnz L_mld")
    stamp(27, VST)
    a.c('layer norm 2 applied after the GEMV: g,u partial = rstd * (A1 - mean * A2) + A3')
    a(f"v_add_f32 v{mg}, v{mg}, v{mg+1}\ns_mov_b32 exec_lo, 0\nv_add_f32 v{mg}, v{mg+2}, v{mg+3}\ns_mov_b32 exec_lo, -1")
    xreduce("v_add_f32", mg, mg + 1, (16, 8, 4, 2, 1))
    a(f"v_mul_f32 v{mg}, {f2u(1.0/1024):#x}, v{mg}\nv_mov_b32 v{mg+1}, v{mg}\nv_permlane32_swap_b32 v{mg}, v{mg+1}")
    a(f"v_fma_f32 v{mg+1}, -v{mg}, v{mg}, v{mg+1}"); rnd(mg, mg)
    a(f"v_max_f32 v{mg+1}, 0, v{mg+1}\nv_fma_f32 v{out}, -v{mg}, v{out+2}, v{out}")
    den_from_var(mg + 1, mg + 2)
    a(f"v_fma_f32 v{out}, v{out}, v{mg+2}, v{out+3}\nv_and_b32 v{out}, v{out}, v{BT}")
    for k in range(4): a(f"v_or_b32_dpp v{out+4+k}, v{out}, v{out+4+k} quad_perm:[{k},{k},{k},{k}] {DPPF}")
    setexec(0x1111111111111111)
    store_gl(out + 4, f"v{A_GS}", "s36 offen")
    a("s_mov_b64 exec, -1")
    stamp(23, VST)
    eg = [(FG + 4 * i, 4, A_E, GUP + i * 4 * WS, None) for i in range(2)]
    if not cfg.efirst: dnf()
    if cfg.ackE: a("s_waitcnt vmcnt(0)")
    stamp(17, VST)
    a.c('hand-off 5 (inside the group of 8): g, u -> gelu_tanh(g) * u -> z partial = hh @ down tile')
    gather(eg, WK, kind="byte", masked=cfg.efirst == 1, between=dnf if cfg.efirst == 1 else None, acc=FU)
    if cfg.efirst == 2: dnf()
    stamp(18, VST)
    g_ = FU
    a(f"v_permlane32_swap_b32 v{g_}, v{g_+1}\nv_permlane32_swap_b32 v{g_+2}, v{g_+3}\nv_add_f32 v{g_}, v{g_}, v{g_+1}\nv_add_f32 v{g_+2}, v{g_+2}, v{g_+3}")
    a(f"v_permlane16_swap_b32 v{g_}, v{g_+2}\nv_add_f32 v{g_}, v{g_}, v{g_+2}")
    rnd(g_, g_)
    k2 = -2.0 * 0.7978845608028654 * LOG2E
    a(f"v_mul_f32 v{g_+2}, v{g_}, v{g_}\nv_mul_f32 v{g_+3}, {f2u(k2):#x}, v{g_}\nv_mul_f32 v{g_+2}, {f2u(0.044715):#x}, v{g_+2}\nv_fma_f32 v{g_+2}, v{g_+2}, v{g_+3}, v{g_+3}")
    a(f"v_exp_f32 v{g_+2}, v{g_+2}\nv_mov_b32_dpp v{g_+1}, v{g_} row_ror:8 {DPPF}\nv_add_f32 v{g_+2}, 1.0, v{g_+2}\nv_rcp_f32 v{g_+2}, v{g_+2}\nv_mul_f32 v{g_}, v{g_}, v{g_+2}")
    rnd(g_, g_); a(f"v_mul_f32 v{g_}, v{g_}, v{g_+1}")
    setexec(0x00ff00ff00ff00ff)
    rnd(g_, g_)
    a(f"ds_write_b16_d16_hi v{VB}, v{g_}\ns_mov_b64 exec, -1")
    xch_read(L_HHV, 4, WK, VACT)
    gemv_pub([FD, FD + 16], 4, FG, FG + 8, ZP)
    stamp(19, VST)
    if cfg.clean:
        a(f"v_lshlrev_b32 v{WK+3}, 2, v1")
        setexec(0x1111111111111111)
        a(f"buffer_store_dwordx4 {vr(out+4,4)}, v{WK+3}, {sr(R_WS,4)}, s36 offen sc1\ns_mov_b64 exec, 1\nbuffer_store_dwordx4 {vr(out+4,4)}, off, {sr(R_WS,4)}, s37 sc1")
        a(f"s_mul_i32 s5, s30, {WS}\ns_lshr_b32 s6, s2, 3\ns_lshl_b32 s6, s6, 2\ns_add_u32 s5, s5, s6\nbuffer_store_dword v{out+4}, off, {sr(R_WS,4)}, s5 offset:{BRD} sc1\ns_mov_b64 exec, -1")
    a(f"s_lshr_b32 s5, s{ROLE}, 3\ns_cmp_lg_u32 s5, {cfg.dgrp}\ns_cbranch_scc1 L_fin")
    a.c('hand-off 6: z over the 28 groups; out = x2 + gb * z')
    for i in range(4): a(f"v_mov_b32 v{FU+12+i}, 0")
    a("s_lshl_b32 s36, s32, 1")
    stamp(26, VST)
    if cfg.ackD: a("s_waitcnt vmcnt(0)")
    if cfg.dsl: a(f"s_sleep {cfg.dsl}")
    gather([(FU + 4 * i, 4, A_Z, ZP + i * 64 * WS, None if i < 3 else 0xffffffff) for i in range(4)], WK, kind="byte", masked=False, acc=FU + 16)
    stamp(24, VST)
    z_ = FU + 16
    col_reduce(z_)
    rnd(z_, z_); a(f"v_mul_f32 v{z_}, v{z_}, v{K_GB}"); rnd(z_, z_); a(f"v_add_f32 v{z_}, v{K_X}, v{z_}")
    setexec(0x00ff00ff00ff00ff)
    rnd(z_, z_)
    a(f"buffer_store_short_d16_hi v{z_}, v{TB}, {sr(R_OUT,4)}, s36 offen" + (" sc1" if cfg.outsc else "") + "\ns_mov_b64 exec, -1")
    stamp(25, VST)
    a.label("L_fin")
    if cfg.stamps:
        a(f"s_lshl_b32 s5, s2, 11\ns_lshl_b32 s6, s3, 7\ns_add_u32 s5, s5, s6\ns_add_u32 s5, s5, 0x8000000\nv_lshlrev_b32 v2, 2, v1")
        a(f"s_mov_b32 exec_hi, 0\nbuffer_store_dword v{VST}, v2, {sr(R_WS,4)}, s5 offen sc1")
    a("s_endpgm")
    a.c('retry paths of the gathers (only the lanes still missing are loaded again)')
    for f in deferred: f()
    a.label("L_end")
    body = "\n".join(hazard.run(a.l)) + "\n"
    txt = wrap(body, 256, 768, LDS_BYTES, 168, extra_desc="  .amdhsa_float_denorm_mode_32 3\n")
    return txt.replace(".amdgcn_target", DOC + ".amdgcn_target", 1)

if __name__ == "__main__":
    out = sys.argv[1]
    kw = {}
    for x in sys.argv[2:]:
        k, v = x.split("="); kw[k] = int(v) if v.lstrip("-").isdigit() else v
    open(out, "w").write(gen(Cfg(**kw)))
```

```python
import sys, os, struct
from asmgen import *
import hazard

def f2u(x): return struct.unpack("<I", struct.pack("<f", x))[0]
LOG2E = 1.4426950408889634

class Cfg:
    D1 = 3; D2 = 3; DV = 6; D3 = 3
    stamps = False
    spin_budget = 1 << 18
    pre1 = "crit,wq,mod1,mod2"
    pre2 = ""
    mid = ""
    late = "wo,gate,up,dn"
    nl0 = 3
    nl2 = 0
    p1 = 8; p2 = 23; p3 = 22
    ackB = 1; ackE = 0; ackD = 1
    bgate = 1
    outsc = 1
    ereuse = 1
    warm0 = 0
    pad = 0
    lp = 0
    Lmin = 2; Lmax = 5; lth = -12; lstop = 2
    dbgm = 0
    lsl = 1
    cprio = 3
    yb = 0
    yp = -1
    xp = ""
    rot = 0
    pb = 3
    wg = 0
    xm = 1
    kvl = "X"
    hstop = 4
    NS = 32
    steal = 0
    sa = 18; sb = 21; p9 = 8
    D3b = 3; kb = 99
    clean = 0
    lfl = ""
    npre = 0
    qm = 0
    pm = 19
    dbgh = 0
    ared = 0
    asl = 2; apm = 2
    ofirst = 1
    bmask = 1
    D4 = 63
    ot = 2
    hd = 0
    hint = 0
    yd = -1
    pv = 31
    cdone = 32
    pmin = 3
    mfirst = 2
    nq2 = 0
    nmid = 0
    D0 = 3; n0 = 0
    ktouch = 0
    dsl = 0
    dgrp = 0
    warm = 0
    nb = 0
    p5 = 8
    p6 = 12
    ysl = 1
    efirst = 0
    bal = 2
    Dmin = 2; Dmax = 5; th = -12; balk = 0; DVmax = 6; Kmin = 2; Kmax = 4; hl = 2
    yrel = 0
    zt = 3
    elocal = 1
    epre = 2
    role = 1
    p4 = 18
    touch = 0
    def __init__(self, **kw):
        for k, v in kw.items():
            assert hasattr(self, k), k
            setattr(self, k, v)

QP, HP = 0, 512
TKT = 1024
OIN = 9472
INB = 9344
CLM = 1408
BRD = 1280
MODP = 2048
YP, ZP, OP, GUP, MOM = 3072, 3584, 4096, 8192, 9216
MODF = 6 << 20
XCP = MODF + 65536
MLA = MODF + 131072
QF = MODF + 196608
EPOCH = 8 << 20
L_MOD, L_WQ, L_UP, L_DN, L_WO, L_GATE, L_MISC = 0, 0xC000, 0, 0x8000, 0x14000, 0x1C000, 0x24000
L_OS = L_DN
L_CNT = L_MISC
(C_CRIT, C_WQ, C_MOD1, C_MOD2, C_WO, C_GATE, C_UP, C_DN, C_Q, C_H, C_ML, C_MLD, C_CLR, C_P1, C_P2, C_P3, C_Y, C_OR, C_ROLE, C_P4, C_T, C_TK, C_P5, C_P6, C_P7, C_P8, C_LC, C_PM, C_PA, C_PB, C_DEC, C_MOD3, C_P9, C_PAD, C_AI, C_Y2) = range(36)
L_QV = L_MISC + 0x100
L_HV = L_MISC + 0x900
L_HHV = L_MISC + 0xA00
L_OV = L_MISC + 0xB00
L_RV = L_MISC + 0x1700
L_SIL = L_MISC + 0xC00
L_MLW = L_MISC + 0xE00
L_MLF = L_MISC + 0x1000
L_AT = L_MISC + 0x1100
LDS_BYTES = 160 * 1024

DOC = """;
; One persistent launch, 256 workgroups (one per CU) x 12 waves.
;   waves 0..7  stream all big operands (nt loads): w_mod, wq tiles -> LDS, K -> registers, V -> registers, wo/gate/up/down tiles -> LDS,
;               and do QK^T, the exact two-pass softmax (true global max, exchanged between the 64 splits of a kv head) and PV with MFMA.
; Hand-offs are self-validating: 16-B granules carry this launch's tag (derived from the word the previous launch left in d_ws) in the low
; byte of every dword, or slots are cleared to a sentinel first and read only after the owner's tagged flag. Stores are write-through (sc1);
"""
def is_reducer(w): return w < 8
def vr(a, n=1): return f"v{a}" if n == 1 else f"v[{a}:{a+n-1}]"
def sr(a, n=1): return f"s{a}" if n == 1 else f"s[{a}:{a+n-1}]"

def gen(cfg):
    a = Asm()
    WS = 10112
    BUD = 4
    lst = lambda x: [t for t in x.split(",") if t]
    def srd_load(r, karg_off): a(f"s_load_dwordx2 {sr(r,2)}, s[0:1], {karg_off}")
    def srd_fin(r, nbytes): a(f"s_mov_b32 s{r+2}, {nbytes}\ns_mov_b32 s{r+3}, 0x20000")
    def rnd(d, s): a(f"v_cvt_pk_bf16_f32 v{d}, 0, v{s}")
    def setexec(m): a(f"s_mov_b32 exec_lo, {m & 0xffffffff:#x}\ns_mov_b32 exec_hi, {m >> 32:#x}")
    def stamp(idx, vreg):
        if cfg.stamps == 1 or (cfg.stamps == 2 and idx == 25): a(f"s_memrealtime s[98:99]\ns_waitcnt lgkmcnt(0)\nv_writelane_b32 v{vreg}, s98, {idx}")
    def budget_check(): a(f"s_sub_u32 s{BUD}, s{BUD}, 1\ns_cbranch_scc1 L_end")
    def lds_wait(cnt, target, vtmp, vaddr, sleep=1):
        L = a.newlabel("L_lw"); Ld = a.newlabel("L_lwd")
        a.label(L)
        a(f"ds_read_b32 v{vtmp}, v{vaddr} offset:{cnt*4}\ns_waitcnt lgkmcnt(0)\nv_readfirstlane_b32 s5, v{vtmp}")
        a(f"s_cmp_ge_u32 s5, {target}\ns_cbranch_scc1 {Ld}")
        if sleep: a(f"s_sleep {sleep}")
        budget_check()
        a(f"s_branch {L}")
        a.label(Ld)
    def lds_signal(cnt, vaddr, vone):
        a(f"s_mov_b64 exec, 1\nds_add_u32 v{vaddr}, v{vone} offset:{cnt*4}\ns_mov_b64 exec, -1")
    DPPF = "row_mask:0xf bank_mask:0xf"
    def xreduce(op, v, t, steps):
        for s in steps:
            if s in (1, 2, 4, 8): a(f"{op}_dpp v{v}, v{v}, v{v} row_ror:{s} {DPPF}")
            elif s == 16: a(f"v_mov_b32 v{t}, v{v}\nv_permlane16_swap_b32 v{v}, v{t}\n{op} v{v}, v{v}, v{t}")
            elif s == 32: a(f"v_mov_b32 v{t}, v{v}\nv_permlane32_swap_b32 v{v}, v{t}\n{op} v{v}, v{v}, v{t}")
            else: a(f"{op}_dpp v{v}, v{v}, v{v} {s} {DPPF}")

    a.label("L_start")
    a("s_load_dwordx16 s[68:83], s[0:1], 0\ns_load_dwordx8 s[84:91], s[0:1], 64\ns_load_dwordx4 s[92:95], s[0:1], 96")
    KA = lambda off: 68 + off // 4
    a("s_cmp_ge_u32 s2, 256\ns_cbranch_scc1 L_end")
    a("v_lshrrev_b32 v2, 6, v0\nv_and_b32 v1, 63, v0")
    a("v_readfirstlane_b32 s3, v2")
    a(f"s_mov_b32 s{BUD}, {cfg.spin_budget}")
    if cfg.stamps: a("s_memrealtime s[96:97]")
    a("s_cmp_ge_u32 s3, 8\ns_cbranch_scc1 L_cwave")

    R_MOD, R_WQ, R_WO, R_G, R_U, R_DN, R_K, R_V, R_WSS = 8, 12, 16, 20, 24, 28, 32, 36, 40
    VK, VV, VGU, VDN, VCN, VONE = 2, 3, 4, 5, 6, 7
    Q0, T0, DT, KV = 8, 16, 32, 40
    VMOD, VWQ, VST = 16, 17, 0
    VM = [VMOD]
    SB_MOD, SB_WQ, SB_WO, SB_GU, SB_DN, SB_KV, SO, SL, SL4 = 44, 45, 46, 47, 48, 49, 50, 51, 56
    def srd(r, off, nbytes): a(f"s_mov_b64 {sr(r,2)}, {sr(KA(off),2)}\ns_mov_b32 s{r+2}, {nbytes}\ns_mov_b32 s{r+3}, 0x20000")
    a.c('================= stream waves (0..7): every large load, QK^T, softmax, PV =================')
    a.c("lane offsets and scalar bases of this wave's share of the w_mod / wq tiles (16-B chunks swizzled for the transposing LDS reads)")
    a("v_and_b32 v32, 15, v1\nv_lshrrev_b32 v33, 4, v1\nv_lshlrev_b32 v34, 1, v33\nv_xor_b32 v34, v34, v32\nv_lshlrev_b32 v34, 4, v34")
    a(f"v_mul_u32_u24 v{VMOD}, 12288, v33\nv_add_u32 v{VMOD}, v{VMOD}, v34\ns_and_b32 s63, s3, 1\ns_lshl_b32 s63, s63, 7\nv_xor_b32 v{VMOD}, s63, v{VMOD}")
    a(f"v_lshl_add_u32 v{VWQ}, v33, 13, v34")
    a(f"s_lshr_b32 s5, s2, 4\ns_lshl_b32 s5, s5, 6\ns_lshl_b32 s6, s3, 3\ns_add_u32 s5, s5, s6\ns_mul_i32 s5, s5, 12288")
    a(f"s_and_b32 s6, s2, 15\ns_lshl_b32 s6, s6, 8\ns_add_u32 s{SB_MOD}, s5, s6\ns_lshl_b32 s{SL}, s3, 11\ns_lshl_b32 s{SL4}, s3, 12")
    a("s_and_b32 s52, s2, 7\ns_lshr_b32 s53, s2, 3")
    a(f"s_lshl_b32 s5, s52, 7\ns_lshl_b32 s57, s3, 4\ns_add_u32 s54, s5, s57")
    a(f"s_lshl_b32 s5, s54, 13\ns_lshl_b32 s55, s53, 8\ns_add_u32 s{SB_WQ}, s5, s55")
    a("s_waitcnt lgkmcnt(0)")
    srd(R_MOD, 80, 12582912); srd(R_WQ, 24, 8388608)
    def rest_of_setup():
        a(f"v_mul_u32_u24 v{VGU}, 7168, v33\nv_add_u32 v{VGU}, v{VGU}, v34\nv_lshl_add_u32 v{VDN}, v33, 11, v34\nv_lshlrev_b32 v{VV}, 4, v1")
        a(f"v_and_b32 v35, 2, v32\nv_lshlrev_b32 v35, {dict(X=(12 + cfg.pb if cfg.pb >= cfg.wg else 9 + cfg.pb), W=16).get(cfg.kvl, 12)}, v35\nv_lshrrev_b32 v36, 2, v32\nv_lshl_add_u32 v35, v36, 8, v35")
        a(f"v_and_b32 v36, 1, v32\nv_lshl_add_u32 v35, v36, 6, v35\nv_lshl_add_u32 v{VK}, v33, 4, v35")
        a(f"v_mov_b32 v{VCN}, {L_CNT}\nv_mov_b32 v{VONE}, 1")
        a(f"s_lshr_b32 s5, s2, 6\ns_lshl_b32 s5, s5, 3\ns_add_u32 s5, s5, s52\ns_lshl_b32 s5, s5, 7\ns_add_u32 s5, s5, s57\ns_lshl_b32 s5, s5, 11")
        a(f"s_and_b32 s6, s53, 7\ns_lshl_b32 s6, s6, 8\ns_add_u32 s{SB_WO}, s5, s6")
        a(f"s_and_b32 s5, s2, 3\ns_lshl_b32 s5, s5, 24")
        xp = str(cfg.xp) or ("345672" if cfg.xm else "234567")
        for k, ch in enumerate(xp):
            a(f"s_bfe_u32 s6, s2, {0x10000 | int(ch):#x}\ns_lshl_b32 s6, s6, {18 + k}\ns_add_u32 s5, s5, s6")
        a(f"s_lshl_b32 s6, s3, {10 + cfg.wg}\ns_add_u32 s{SB_KV}, s5, s6")
        if cfg.rot:
            assert cfg.wg == 0
            a(f"s_mul_i32 s6, s2, {cfg.rot}\ns_lshr_b32 s6, s6, 3\ns_and_b32 s6, s6, {31 & ~(1 << cfg.pb)}\ns_lshl_b32 s6, s6, 13\ns_or_b32 s{SB_KV}, s{SB_KV}, s6")
        srd(R_WO, 32, 8388608); srd(R_K, 8, 67108864); srd(R_V, 16, 67108864)
        for r, off in ((R_G, 48), (R_U, 56), (R_DN, 64)): srd(r, off, 0)
        if cfg.stamps:
            srd(R_WSS, 104, 0x10000000); a(f"v_mov_b32 v{VST}, 0\nv_writelane_b32 v{VST}, s96, 0")
        a("s_mov_b32 s58, 0x05040100\ns_mov_b32 s59, 0x07060302")
        a("s_barrier")
    issued = []; done = [0]; tiles = {}; signalled = set(); setup = [False]
    TN = dict(crit=2, wq=4, mod1=2, mod2=2, mod3=2, wo=4, gate=4, up=4, dn=4)
    TC = dict(mod3=C_MOD3, crit=C_CRIT, wq=C_WQ, mod1=C_MOD1, mod2=C_MOD2, wo=C_WO, gate=C_GATE, up=C_UP, dn=C_DN)
    def wait_n(n):
        if len(issued) - done[0] > n:
            a(f"s_waitcnt vmcnt({n})"); done[0] = len(issued) - n
            for name, ids in tiles.items():
                if name not in signalled and len(ids) == TN[name] and max(ids) < done[0]:
                    lds_signal(TC[name], VCN, VONE); signalled.add(name)
                    if name in ("wo", "up"): stamp({"wo": 20, "up": 21}[name], VST)
    def wait_id(i): wait_n(len(issued) - 1 - i)
    def dma(name, i, D):
        srd_, voff, sb, step, lbase, lsreg = {
            "crit": (R_MOD, VMOD, SB_MOD, 4 * 12288, L_MOD, SL), "mod1": (R_MOD, VM[0], SB_MOD, 4 * 12288, 0x10000 if cfg.dbgm else L_MOD + 16384, SL),
            "mod3": (R_MOD, VMOD, SB_MOD, 4 * 12288, L_WO, SL),
            "mod2": (R_MOD, VM[0], SB_MOD, 4 * 12288, 0x10000 if cfg.dbgm else L_MOD + 32768, SL), "wq": (R_WQ, VWQ, SB_WQ, 4 * 8192, L_WQ, SL4),
            "wo": (R_WO, VDN, SB_WO, 4 * 2048, L_WO, SL4), "gate": (R_G, VGU, SB_GU, 4 * 7168, L_GATE, SL4),
            "up": (R_U, VGU, SB_GU, 4 * 7168, L_UP, SL4), "dn": (R_DN, VDN, SB_DN, 4 * 2048, L_DN, SL4)}[name]
        extra = {"mod1": 4096, "mod2": 8192, "mod3": 8192}.get(name, 0)
        if len(issued) >= min(D, 6) and not setup[0]:
            setup[0] = True; rest_of_setup()
            if cfg.ktouch:
                a(f"s_mov_b64 exec, 1\ns_mov_b32 m0, {L_MISC + 0x2000}")
                for r in (R_K, R_V): a(f"buffer_load_dword off, {sr(r,4)}, s{SB_KV} nt lds"); issued.append("t")
                a("s_mov_b64 exec, -1")
        a(f"s_add_u32 m0, s{lsreg}, {lbase + i*1024}\ns_add_u32 s{SO}, s{sb}, {i*step + extra}")
        wait_n(D - 1)
        a(f"buffer_load_dwordx4 v{voff}, {sr(srd_,4)}, s{SO} offen nt lds")
        if name in ("wq", "wo", "gate", "up", "dn") and i in (1, 3): a(f"v_xor_b32 v{voff}, 0x80, v{voff}")
        tiles.setdefault(name, []).append(len(issued)); issued.append(name)
    kid = {}; vid = {}; cur_so = [None]
    def kvload(srd_, voff, off, dst, D):
        so = off & ~0xfff
        if cur_so[0] != so:
            a(f"{'s_xor_b32' if cfg.rot else 's_add_u32'} s60, s{SB_KV}, {so}"); cur_so[0] = so
        if D: wait_n(D - 1)
        a(f"buffer_load_dwordx4 {vr(dst,4)}, v{voff}, {sr(srd_,4)}, s60 offen offset:{off & 0xfff} nt")
        issued.append("kv"); return len(issued) - 1
    CH = lambda ci: ((ci >> cfg.wg) << (13 + cfg.wg)) + ((ci & ((1 << cfg.wg) - 1)) << 10)
    INS = lambda n, pi: ((n >> cfg.pb) << (cfg.pb + 1)) | (pi << cfg.pb) | (n & ((1 << cfg.pb) - 1))
    def kload(n, u, D): kid[(n, u)] = kvload(R_K, VK, (CH(INS(n, 0)) if cfg.kvl == 'X' else CH(n) if cfg.kvl == 'W' else n * 16384) + u * 128, KV + 8 * n + 4 * u, D)
    VI = (lambda G, n: 16 * (G >> 1) + 2 * n + (G & 1)) if cfg.kvl == "S" else (lambda G, n: 8 * G + n)
    def vslot(i): return KV + 4 * (i if i < cfg.NS else VI(0, i - cfg.NS))
    def vload(i, D): vid[i] = kvload(R_V, VV, CH(INS(8 * (i >> 4) + (i & 7), (i >> 3) & 1)) if cfg.kvl == 'X' else CH(i) if cfg.kvl != 'Y' else (8 * (i >> 4) + (i & 7)) * 16384 + ((i >> 3) & 1) * 8192, vslot(i), D)
    def paced(cnt, k, vt, Dmin, Dmax, th=None):
        th = cfg.th if th is None else th
        a(f"s_mov_b64 exec, 1\nds_add_rtn_u32 v{vt}, v{VCN}, v{VONE} offset:{cnt*4}\ns_mov_b64 exec, -1")
        wait_n(Dmax - 1)
        go = a.newlabel("L_go")
        a(f"s_waitcnt lgkmcnt(0)\nv_readfirstlane_b32 s5, v{vt}\ns_cmp_gt_i32 s5, {8*k + th}\ns_cselect_b64 vcc, -1, 0\ns_cbranch_scc1 {go}\ns_waitcnt vmcnt({Dmin - 1})")
        a.label(go)
    D1, D2 = cfg.D1, cfg.D2
    for name in lst(cfg.pre1):
        if cfg.steal and name == "mod2": continue
        for i in range(TN[name]): dma(name, i, cfg.D0 if len(issued) < cfg.n0 else D1)
    stamp(11, VST)
    a.c('K: 32 x 1 KiB per wave straight into MFMA A-operand layout (8 keys x 128 B per load), at most 3 in flight')
    for n in range(16):
        for u in range(2):
            if cfg.balk:
                paced(C_T, 2 * n + u, DT, cfg.Kmin, cfg.Kmax); kload(n, u, 0)
            else: kload(n, u, cfg.D0 if len(issued) < cfg.n0 else D1)
            if 2 * n + u == cfg.p1: lds_signal(C_P1, VCN, VONE)
            if 2 * n + u == cfg.p2: lds_signal(C_P2, VCN, VONE)
            if cfg.steal and 2 * n + u == cfg.sa: lds_signal(C_PA, VCN, VONE)
            if cfg.steal and 2 * n + u == cfg.sb: lds_signal(C_PB, VCN, VONE)
            if 2 * n + u == cfg.pm and cfg.qm: lds_signal(C_PM, VCN, VONE)
    for name in lst(cfg.pre2):
        for i in range(TN[name]): dma(name, i, D1)
    if cfg.steal:
        lds_wait(C_DEC, 1, DT, VCN)
        a(f"s_mov_b32 s61, s5\ns_mov_b32 s62, 12582912\ns_bitcmp1_b32 s61, 0\ns_cselect_b32 s{R_MOD+2}, s62, 0")
        for i in range(2): dma("mod2", i, D1)
        a(f"s_bitcmp1_b32 s61, 1\ns_cselect_b32 s{R_MOD+2}, s62, 0\ns_xor_b32 s{SB_MOD}, s{SB_MOD}, 1024")
        for i in range(2): dma("mod3", i, 63)
        if cfg.stamps == 1: a(f"v_writelane_b32 v{VST}, s61, 25")
    if cfg.dbgm: a(f"v_mov_b32 v{VK}, v{VMOD}"); VM[0] = VK
    for i in range(cfg.npre): dma("wo", i, D1)
    stamp(1, VST)
    a.c('wait for q (bf16, LDS), then S^T = K q^T; scores rounded to bf16, scaled, rounded again (as the reference does)')
    a(f"v_and_b32 v{DT+1}, 7, v1\nv_lshlrev_b32 v{DT+1}, 8, v{DT+1}\nv_and_b32 v{DT+2}, 8, v1\nv_lshl_add_u32 v{DT+1}, v{DT+2}, 3, v{DT+1}")
    a(f"v_lshrrev_b32 v{DT+2}, 4, v1\nv_lshl_add_u32 v{DT+1}, v{DT+2}, 4, v{DT+1}\nv_add_u32 v{DT+1}, {L_QV}, v{DT+1}")
    a(f"s_mov_b32 s61, {f2u(128 ** -0.5):#x}\ns_mov_b32 s62, {f2u(LOG2E):#x}")
    lds_wait(C_Q, 4, DT, VCN)
    stamp(2, VST)
    a(f"ds_read_b128 {vr(Q0,4)}, v{DT+1}\nds_read_b128 {vr(Q0+4,4)}, v{DT+1} offset:128\ns_waitcnt lgkmcnt(0)")
    nv = 0
    def fold(n):
        d = DT + 4 * (n & 1)
        a(f"v_add_f32_dpp v{T0+n}, v{d+1}, v{d} row_ror:8 row_mask:0xf bank_mask:0x3")
        a(f"v_add_f32_dpp v{T0+n}, v{d+2}, v{d+3} row_ror:8 row_mask:0xf bank_mask:0xc")
    def post(n):
        rnd(T0 + n, T0 + n); a(f"v_mul_f32 v{T0+n}, s61, v{T0+n}"); rnd(T0 + n, T0 + n)
    for n in range(16):
        wait_id(kid[(n, 1)])
        d = DT + 4 * (n & 1)
        a(f"v_mfma_f32_16x16x32_bf16 {vr(d,4)}, {vr(KV+8*n,4)}, {vr(Q0,4)}, 0")
        a(f"v_mfma_f32_16x16x32_bf16 {vr(d,4)}, {vr(KV+8*n+4,4)}, {vr(Q0+4,4)}, {vr(d,4)}")
        if n >= 1 and nv < D2 and n % 2 == 1:
            vload(nv, 0); nv += 1
        if n >= 2: post(n - 2)
        if n >= 1: fold(n - 1)
    for _ in range(cfg.nq2): vload(nv, 0); nv += 1
    fold(15); post(14); post(15)
    a.c("max of this wave's 128 keys per head, e = exp(s - max), sum -> LDS")
    M_, L_, X_ = DT, DT + 1, DT + 2
    a(f"v_max3_f32 v{M_}, v{T0}, v{T0+1}, v{T0+2}")
    for i in range(3, 15, 2): a(f"v_max3_f32 v{M_}, v{M_}, v{T0+i}, v{T0+i+1}")
    a(f"v_max_f32 v{M_}, v{M_}, v{T0+15}")
    xreduce("v_max_f32", M_, X_, (8, 16, 32))
    if cfg.ereuse:
        for i in range(16):
            a(f"v_sub_f32 v{T0+i}, v{T0+i}, v{M_}\nv_mul_f32 v{T0+i}, s62, v{T0+i}\nv_exp_f32 v{T0+i}, v{T0+i}")
            if i == 2: a(f"v_add_f32 v{L_}, v{T0}, v{T0+1}")
            if i > 2: a(f"v_add_f32 v{L_}, v{L_}, v{T0+i-1}")
        a(f"v_mov_b32 v{VK}, v{M_}\nv_add_f32 v{L_}, v{L_}, v{T0+15}")
    else:
        for i in range(16):
            e = DT + 4 + (i & 3)
            a(f"v_sub_f32 v{e}, v{T0+i}, v{M_}\nv_mul_f32 v{e}, s62, v{e}\nv_exp_f32 v{e}, v{e}")
            if i >= 1:
                p = DT + 4 + ((i - 1) & 3)
                a(f"v_mov_b32 v{L_}, v{p}" if i == 1 else f"v_add_f32 v{L_}, v{L_}, v{p}")
        a(f"v_add_f32 v{L_}, v{L_}, v{DT+7}")
    xreduce("v_add_f32", L_, X_, (8, 16, 32))
    a(f"s_lshl_b32 s5, s3, 6\ns_add_u32 s5, s5, {L_MLW}\nv_lshlrev_b32 v{X_}, 3, v1\nv_add_u32 v{X_}, s5, v{X_}")
    a(f"s_mov_b64 exec, 0xff\nds_write_b64 v{X_}, {vr(M_,2)}\ns_waitcnt lgkmcnt(0)")
    lds_signal(C_ML, VCN, VONE)
    stamp(3, VST)
    a.c('V into the freed K registers; a wave behind the class average keeps more loads in flight, one ahead keeps fewer')
    nv0 = nv
    while nv < cfg.NS:
        if cfg.bal:
            paced(C_T, nv - nv0 + (32 if cfg.balk else 0), DT, cfg.Dmin, cfg.Dmax); vload(nv, 0)
        else: vload(nv, D2)
        if nv == cfg.p3: lds_signal(C_P3, VCN, VONE)
        if nv == cfg.pv: lds_signal(C_P8, VCN, VONE)
        if cfg.steal and nv == cfg.p9: lds_signal(C_P9, VCN, VONE)
        if nv == cfg.p4 and cfg.role == 2: lds_signal(C_P4, VCN, VONE)
        nv += 1
    for name in lst(cfg.mid):
        for i in range(TN[name]): dma(name, i, D2)
    for name in lst(cfg.pre1) + lst(cfg.pre2) + (["mod3"] if cfg.steal else []): wait_id(max(tiles[name]))
    stamp(4, VST)
    a(f"v_and_b32 v{X_}, 7, v1\nv_lshlrev_b32 v{X_}, 3, v{X_}\nv_add_u32 v{X_}, {L_MLF}, v{X_}")
    lateq = [(name, i) for name in lst(cfg.late) for i in range(TN[name])]
    lateq = lateq[cfg.npre:]
    assert lateq[-4:] == [("dn", i) for i in range(4)]
    for _ in range(cfg.nmid):
        name, i = lateq.pop(0); assert name == "wo"; dma(name, i, 63)
    a.c('FFN role of this workgroup, then the global max and 1/sum; p = bf16(e * exp(wave max - global max) / global sum)')
    assert cfg.role != 2
    lds_wait(C_ROLE, 1, DT, VCN, sleep=0)
    a("s_sub_u32 s7, s5, 1")
    a("s_mov_b32 s5, 7340032\ns_cmp_lt_u32 s7, 224\ns_cselect_b32 s5, s5, 0")
    for r in (R_G, R_U, R_DN): a(f"s_mov_b32 s{r+2}, s5")
    a("s_and_b32 s52, s7, 7\ns_lshr_b32 s53, s7, 3")
    a(f"s_lshl_b32 s5, s52, 7\ns_add_u32 s5, s5, s57\ns_mul_i32 s5, s5, 7168\ns_lshl_b32 s6, s53, 8\ns_add_u32 s{SB_GU}, s5, s6")
    a(f"s_lshl_b32 s5, s53, 7\ns_add_u32 s5, s5, s57\ns_lshl_b32 s5, s5, 11\ns_lshl_b32 s6, s52, 8\ns_add_u32 s{SB_DN}, s5, s6")
    lds_wait(C_MLD, 5 if cfg.steal else 1, DT, VCN)
    stamp(5, VST)
    assert not any(t in cfg.pre1 + cfg.pre2 + cfg.mid for t in ("gate", "up", "dn"))
    a(f"ds_read_b64 {vr(M_,2)}, v{X_}\ns_waitcnt lgkmcnt(0)")
    if cfg.ereuse:
        a(f"v_sub_f32 v{M_}, v{VK}, v{M_}\nv_mul_f32 v{M_}, s62, v{M_}\nv_exp_f32 v{M_}, v{M_}\nv_mul_f32 v{M_}, v{M_}, v{L_}\nv_mov_b32 v{L_}, v{M_}")
        for i in range(0, 16, 2): a(f"v_pk_mul_f32 {vr(T0+i,2)}, {vr(T0+i,2)}, {vr(M_,2)}")
    else:
        for i in range(16):
            a(f"v_sub_f32 v{T0+i}, v{T0+i}, v{M_}\nv_mul_f32 v{T0+i}, s62, v{T0+i}\nv_exp_f32 v{T0+i}, v{T0+i}")
        for i in range(16): a(f"v_mul_f32 v{T0+i}, v{T0+i}, v{L_}")
    for i in range(8): a(f"v_cvt_pk_bf16_f32 v{Q0+i}, v{T0+2*i}, v{T0+2*i+1}")
    a("s_mov_b32 s64, 0x00ff00ff\ns_mov_b32 s65, 0x00ff00ff\ns_mov_b32 s66, 0xff00ff00\ns_mov_b32 s67, 0xff00ff00")
    ACC = T0
    PL = lambda G: DT
    PH = lambda G: DT + 4
    def pbuild(G):
        b, pi = (G & 1, G >> 1) if cfg.kvl == 'W' else (G >> 1, G & 1)
        for i in range(4): a(f"v_cndmask_b32 v{(PH if pi else PL)(G)+i}, 0, v{Q0+4*b+i}, s[{64+2*pi}:{65+2*pi}]")
        for i in range(4): a(f"v_mov_b32_dpp v{(PL if pi else PH)(G)+i}, v{(PH if pi else PL)(G)+i} row_ror:8 {DPPF}")
    stage = [KV + 120, KV + 124, KV + 120, KV + 124]
    sidx = 0
    def perm(dst, G, p, j):
        lo = vslot(VI(G, 2 * p)) + (j >> 1); hi = vslot(VI(G, 2 * p + 1)) + (j >> 1)
        a(f"v_perm_b32 v{dst}, v{hi}, v{lo}, s{58 + (j & 1)}")
    def pv(G, j, st):
        c = "0" if (G == 0 and j < 4) else vr(ACC + 4 * (j & 3), 4)
        a(f"v_mfma_f32_16x16x32_bf16 {vr(ACC+4*(j&3),4)}, {vr(st,4)}, {vr((PH if j >= 4 else PL)(G),4)}, {c}")
    a.c('O^T += V^T P^T: v_perm pairs up two keys per dword, heads sit in columns 0..7 (d%8 < 4) and 8..15 (d%8 >= 4)')
    for G in range(2 if cfg.kvl == "S" else 3):
        if cfg.NS == 32 and G == 0:
            assert cfg.kvl == "X"
            for i in range(4): a(f"v_cndmask_b32 v{DT+i}, 0, v{Q0+i}, s[64:65]")
            wait_id(vid[7])
            for j in range(8):
                if j == 4:
                    for i in range(4): a(f"v_mov_b32_dpp v{DT+i}, v{DT+i} row_ror:8 {DPPF}")
                st = (ACC + 12 if (j < 3 and j % 2 == 0) else DT + 4)
                for p in range(4): perm(st + p, G, p, j)
                c = "0" if j < 4 else vr(ACC + 4 * (j & 3), 4)
                a(f"v_mfma_f32_16x16x32_bf16 {vr(ACC+4*(j&3),4)}, {vr(st,4)}, {vr(DT,4)}, {c}")
            stage = [KV, KV + 4, KV + 8, KV + 12]
            continue
        pbuild(G)
        wait_id(vid[VI(G, 7)])
        for j in range(8):
            st = stage[sidx & 3]; sidx += 1
            for p in range(4): perm(st + p, G, p, j)
            pv(G, j, st)
            if G in (1, 2) and j % 2 == 0 and nv < 32:
                if cfg.bal:
                    sk = a.newlabel("L_dv")
                    a(f"s_cbranch_vccnz {sk}\ns_waitcnt vmcnt({cfg.DV - 1})")
                    a.label(sk)
                    vload(nv, cfg.DVmax)
                else: vload(nv, cfg.DV)
                if nv == cfg.pv:
                    lds_signal(C_P8, VCN, VONE)
                    if cfg.lp: lds_signal(C_T, VCN, VONE)
                nv += 1
    a(f"s_add_u32 s5, s{SL4}, {L_OS}\nv_add_u32 v{VV}, s5, v{VV}")
    order = [0, 4, 1, 5, 2, 6, 3, 7]
    n0 = min(cfg.nl0, len(lateq) - max(4, cfg.nl2))
    if cfg.kvl == "S":
        assert nv == 32 and cfg.NS == 30
        free = [KV + 4 * k for k in range(16) if k not in (VI(0, 0), VI(0, 1))] + [KV + 120, KV + 124]
        SGs = {2: free[:8], 3: free[8:]}
        pbuild(2)
        for p in range(3):
            wait_id(vid[VI(3, 2 * p + 1)])
            if p == 2:
                for _ in range((n0 + 1) // 2):
                    name, i = lateq.pop(0); dma(name, i, 63)
            for G in (2, 3):
                for j in range(8): perm(SGs[G][j] + p, G, p, j)
        wait_id(vid[29])
        for _ in range(n0 // 2):
            name, i = lateq.pop(0); dma(name, i, 63)
        for G in (2, 3):
            wait_id(vid[VI(G, 7)])
            if G == 3: pbuild(3)
            for k in range(10):
                if k < 8: perm(SGs[G][order[k]] + 3, G, 3, order[k])
                if k >= 2: pv(G, order[k - 2], SGs[G][order[k - 2]])
    else:
        pbuild(3)
        SG = KV + 32
        n0 = min(cfg.nl0, len(lateq) - max(4, cfg.nl2))
        for p in range(3):
            wait_id(vid[24 + 2 * p + 1])
            if cfg.pv == 32 and p == 2: lds_signal(C_P8, VCN, VONE)
            if p >= 1:
                for _ in range((n0 + 2 - p) // 2):
                    name, i = lateq.pop(0); dma(name, i, 63)
            for j in range(8): perm(SG + 4 * j + p, 3, p, j)
        wait_id(vid[31])
        if cfg.pv == 33: lds_signal(C_P8, VCN, VONE)
        order = [0, 4, 1, 5, 2, 6, 3, 7]
        for k in range(10):
            if k < 8: perm(SG + 4 * order[k] + 3, 3, 3, order[k])
            if k >= 2: pv(3, order[k - 2], SG + 4 * order[k - 2])
    stamp(6, VST)
    for e in range(4): a(f"ds_write_b128 v{VV}, {vr(ACC+4*e,4)} offset:{e*1024}")
    a("s_waitcnt lgkmcnt(0)")
    stamp(7, VST)
    a("s_barrier")
    a.c('wo, gate, up, down tiles -> LDS while the chain waves run the hand-offs')
    signalled.add("dn")
    n1 = len(lateq) - cfg.nl2
    for k, (name, i) in enumerate(lateq):
        if k == n1:
            wait_n(0); lds_wait(C_Y, 4, DT, VCN, sleep=cfg.ysl)
        if ((name, i) == ("dn", 0) and k < n1 and not cfg.ofirst) or (cfg.ofirst and k == 0): lds_wait(C_OR, 4, DT, VCN, sleep=0)
        if cfg.yp >= 0 and k >= cfg.pmin + 1:
            if k == cfg.pmin + 1: a(f"s_mov_b32 s63, {cfg.yp}")
            assert "wo" in signalled
            Ly = a.newlabel("L_yp"); Lg = a.newlabel("L_ypg")
            rd = f"ds_read_b64 {vr(DT,2)}, v{VCN} offset:{C_AI*4}\ns_waitcnt lgkmcnt(0)\nv_readfirstlane_b32 s5, v{DT}\nv_readfirstlane_b32 s6, v{DT+1}"
            if cfg.yb:
                wait_n(cfg.yb - 1)
                a(rd + f"\ns_cmp_ge_u32 s6, 4\ns_cbranch_scc1 {Lg}\ns_waitcnt vmcnt({cfg.D3 - 1})")
            else: wait_n(cfg.D3 - 1)
            a.label(Ly)
            a(rd)
            a(f"s_cmp_eq_u32 s5, 0\ns_cbranch_scc1 {Lg}\ns_cmp_ge_u32 s6, 4\ns_cbranch_scc1 {Lg}\ns_sub_u32 s63, s63, 1\ns_cbranch_scc0 {Lg}\ns_mov_b32 s63, 0\ns_sleep 1")
            budget_check()
            a(f"s_branch {Ly}")
            a.label(Lg)
            dma(name, i, 63)
        elif cfg.lp:
            paced(C_T, cfg.NS - cfg.D2 + 1 + k, DT, cfg.Lmin, cfg.Lmax, cfg.lth); dma(name, i, 63)
        else: dma(name, i, (cfg.D3 if k < cfg.kb else cfg.D3b) if k < n1 else cfg.D4)
        if k == cfg.p5: assert k < n1; lds_signal(C_P5, VCN, VONE)
        if k == cfg.p6: lds_signal(C_P6, VCN, VONE)
        if cfg.yd >= 0 or cfg.hd: lds_signal(C_LC, VCN, VONE)
        if k == cfg.pmin: lds_signal(C_P7, VCN, VONE)
    for name in ("wo", "gate", "up"):
        if name not in signalled: wait_id(max(tiles[name]))
    a("s_waitcnt vmcnt(0)")
    if cfg.stamps == 1:
        stamp(8, VST)
        a(f"s_lshl_b32 s5, s2, 11\ns_lshl_b32 s6, s3, 7\ns_add_u32 s5, s5, s6\ns_add_u32 s5, s5, 0x8000000\nv_lshlrev_b32 v2, 2, v1")
        a(f"s_mov_b32 exec_hi, 0\nbuffer_store_dword v{VST}, v2, {sr(R_WSS,4)}, s5 offen sc1")
    a("s_endpgm")

    for _ in range(cfg.pad): a("s_nop 0")
    a.label("L_cwave")
    a.c('================= chain waves (8..11): hand-offs between workgroups, GEMVs, layer norms =================')
    a(f"s_setprio {cfg.cprio}")
    R_WS, R_X, R_C, R_OUT = 8, 16, 20, 24
    WV, SMY = 28, 29
    a(f"s_sub_u32 s{WV}, s3, 8\nv_subrev_u32 v0, 512, v0")
    if cfg.warm0:
        a(f"s_cmp_lg_u32 s{WV}, 3\ns_cbranch_scc1 L_w0_done\ns_getpc_b64 s[6:7]")
        a.label("L_w0_pc")
        a(f"s_sub_u32 s6, s6, L_w0_pc - L_start\ns_subb_u32 s7, s7, 0\ns_lshr_b32 s5, s2, 3\nv_lshlrev_b32 v40, 5, v1\nv_add_lshl_u32 v40, v40, s5, 7")
        a("v_cmp_gt_u32 vcc, L_end - L_start, v40\ns_and_saveexec_b64 s[12:13], vcc\nglobal_load_dword v41, v40, s[6:7]\ns_mov_b64 exec, -1")
        a.label("L_w0_done")
    VCN, VONE, VTR, VPUB, VACT, VA, VB, K_X, K_GA, K_GB, VST, K_C1, TAG, TB = 2, 3, 4, 5, 6, 7, 8, 9, 10, 11, 12, 13, 14, 15
    WK = 16
    ACT = WK + 8
    FWO, FG, FU, FD = 40, 72, 104, 136
    a(f"v_mov_b32 v{VCN}, {L_CNT}\nv_mov_b32 v{VONE}, 1\nv_mov_b32 v{WK}, 0")
    a(f"v_lshlrev_b32 v{WK+1}, 2, v1\nv_add_u32 v{WK+1}, {L_CNT}, v{WK+1}\nds_write_b32 v{WK+1}, v{WK}")
    for i in range(4): a(f"v_mov_b32 v{WK+4+i}, -1")
    for base in (L_HHV, L_OV, L_AT, L_AT + 320): a(f"ds_write_b32 v{WK+1}, v{WK+4} offset:{base - L_CNT}")
    a(f"s_mul_i32 s{SMY}, s2, {WS}\ns_and_b32 s30, s2, 7\ns_lshr_b32 s31, s2, 3")
    a(f"v_lshlrev_b32 v{VA}, 4, v1\nv_lshlrev_b32 v{VB}, 1, v1\nv_lshlrev_b32 v{WK+1}, 5, v1")
    a(f"s_lshl_b32 s32, s30, 7\ns_lshl_b32 s35, s{WV}, 5\ns_add_u32 s32, s32, s35")
    a("s_waitcnt lgkmcnt(0)")
    srd(R_WS, 104, 0x10000000); srd(R_X, 0, 2048); srd(R_C, 72, 2048); srd(R_OUT, 88, 2048)
    XR = FU
    a(f"s_mov_b32 s5, {EPOCH}\nbuffer_load_dword v{TAG}, off, {sr(R_WS,4)}, s5 sc1")
    a(f"s_lshr_b32 s5, s2, 4\ns_lshl_b32 s5, s5, 7\nbuffer_load_ushort v{WK}, v{VB}, {sr(R_C,4)}, s5 offen")
    a(f"buffer_load_dwordx4 {vr(XR,4)}, v{WK+1}, {sr(R_X,4)}, 0 offen\nbuffer_load_dwordx4 {vr(XR+4,4)}, v{WK+1}, {sr(R_X,4)}, 0 offen offset:16")
    a(f"v_and_b32 v{K_C1}, 7, v1\nv_lshlrev_b32 v{K_C1}, 2, v{K_C1}\nv_bfe_u32 v{WK+2}, v1, 4, 1\nv_lshl_add_u32 v{K_C1}, v{WK+2}, 1, v{K_C1}\nv_lshrrev_b32 v{WK+2}, 5, v1\nv_add_lshl_u32 v{K_C1}, v{K_C1}, v{WK+2}, 1")
    a(f"s_lshl_b32 s5, s32, 1\nbuffer_load_ushort v{K_GA}, v{K_C1}, {sr(R_X,4)}, s5 offen")
    a(f"s_and_b32 s80, s2, 3\ns_lshl_b32 s80, s80, 12\ns_add_u32 s80, s80, {MLA}\ns_and_b32 s81, s2, 0xfc\ns_lshl_b32 s81, s81, 4\ns_add_u32 s81, s81, s80")
    a(f"s_cmp_gt_u32 s{WV}, 1\ns_cbranch_scc1 L_clr_done\ns_cmp_eq_u32 s{WV}, 0\ns_cselect_b32 s5, s{SMY}, s81\ns_cselect_b64 exec, -1, 15")
    a(f"buffer_store_dwordx4 {vr(WK+4,4)}, v{VA}, {sr(R_WS,4)}, s5 offen sc1")
    if cfg.hint or cfg.role == 2:
        a(f"s_mov_b64 exec, 1\nbuffer_store_dword v{WK+4}, off, {sr(R_WS,4)}, s{SMY} offset:{TKT} sc1")
    a.label("L_clr_done")
    if cfg.qm:
        a(f"s_and_b32 s82, s2, 3\ns_lshl_b32 s82, s82, 3\ns_bfe_u32 s5, s2, 0x30003\ns_add_u32 s82, s82, s5\ns_lshl_b32 s83, s82, 8\ns_add_u32 s83, s83, {QF}")
        a(f"s_cmp_lg_u32 s{WV}, 2\ns_cbranch_scc1 L_clq_done\ns_and_b32 s5, s2, 0xc4\ns_cmp_lg_u32 s5, 0xc4\ns_cbranch_scc1 L_clq_done")
        a(f"s_mov_b64 exec, 0xffff\nbuffer_store_dwordx4 {vr(WK+4,4)}, v{VA}, {sr(R_WS,4)}, s83 offen sc1")
        a.label("L_clq_done")
    a("s_mov_b64 exec, -1")
    a("s_barrier")
    if cfg.stamps: a(f"v_mov_b32 v{VST}, 0\nv_writelane_b32 v{VST}, s96, 0")
    a(f"v_lshrrev_b32 v{WK+8}, 4, v1\nv_and_b32 v{WK+9}, 15, v1")
    a(f"v_lshlrev_b32 v{VPUB}, 6, v{WK+9}\nv_lshl_add_u32 v{VPUB}, v{WK+8}, 4, v{VPUB}")
    a(f"v_lshlrev_b32 v{VACT}, 4, v{WK+8}\nv_add_u32 v{VACT}, {L_MISC}, v{VACT}")
    a(f"v_bfe_u32 v{WK+10}, v1, 2, 2\nv_lshl_add_u32 v{WK+11}, v{WK+8}, 3, v{WK+10}\nv_lshlrev_b32 v{VTR}, 8, v{WK+11}")
    a(f"v_and_b32 v{WK+12}, 3, v1\nv_lshl_add_u32 v{VTR}, v{WK+12}, 3, v{VTR}")
    a(f"v_and_b32 v{WK+12}, 1, v{WK+8}\nv_lshl_add_u32 v{WK+12}, v{WK+12}, 2, v{WK+10}\ns_lshl_b32 s5, s{WV}, 1\nv_xor_b32 v{WK+12}, s5, v{WK+12}\nv_lshl_add_u32 v{VTR}, v{WK+12}, 5, v{VTR}")
    a(f"s_mov_b32 s33, {f2u(LOG2E):#x}\ns_mov_b32 s38, 0xffff0000")
    a("s_waitcnt vmcnt(0)")
    lds_signal(C_CLR, VCN, VONE)
    a.c('tag of this launch: T = E ^ hash(E) with every hash byte non-zero (E = tag left by the previous launch, or anything)')
    TB0 = 76
    a(f"v_readfirstlane_b32 s5, v{TAG}\ns_add_u32 s6, s5, 0x7f4a7c15\ns_mul_i32 s6, s6, 0x9e3779b1\ns_lshr_b32 s7, s6, 15\ns_xor_b32 s6, s6, s7")
    a("s_mul_i32 s6, s6, 0x85ebca6b\ns_lshr_b32 s7, s6, 13\ns_xor_b32 s6, s6, s7\ns_mul_i32 s6, s6, 0xc2b2ae35\ns_lshr_b32 s7, s6, 16\ns_xor_b32 s6, s6, s7")
    for k in range(4):
        a(f"s_and_b32 s7, s6, {0xff << (8*k):#x}\ns_cselect_b32 s7, 0, {0x5b << (8*k):#x}\ns_or_b32 s6, s6, s7")
    a("s_xor_b32 s5, s5, s6")
    for k in range(4): a(f"s_bfe_u32 s{TB0+k}, s5, {(8 << 16) | (8*k):#x}")
    a(f"v_mov_b32 v{TAG}, s5")
    stamp(1, VST)
    a.c("silu(c) for this workgroup's 64 rows of w_mod")
    c_ = WK
    lo2 = LOG2E - struct.unpack("<f", struct.pack("<f", LOG2E))[0]
    a(f"v_lshlrev_b32 v{c_}, 16, v{c_}")
    a(f"v_max_f32 v{WK+13}, {f2u(-87.0):#x}, v{c_}\nv_min_f32 v{WK+13}, {f2u(100.0):#x}, v{WK+13}")
    a(f"v_mul_f32 v{WK+1}, s33, v{WK+13}\nv_fma_f32 v{WK+2}, v{WK+13}, s33, -v{WK+1}\nv_mov_b32 v{WK+3}, {f2u(lo2):#x}\nv_fmac_f32 v{WK+2}, v{WK+13}, v{WK+3}")
    a(f"v_exp_f32 v{WK+1}, -v{WK+1}\nv_mul_f32 v{WK+2}, {f2u(-0.6931471805599453):#x}, v{WK+2}")
    a(f"v_fma_f32 v{WK+1}, v{WK+1}, v{WK+2}, v{WK+1}\nv_add_f32 v{WK+1}, 1.0, v{WK+1}")
    a(f"v_rcp_f32 v{WK+2}, v{WK+1}\nv_mul_f32 v{WK+3}, v{c_}, v{WK+2}\nv_fma_f32 v{WK+13}, -v{WK+3}, v{WK+1}, v{c_}\nv_fmac_f32 v{WK+3}, v{WK+13}, v{WK+2}")
    rnd(WK + 3, WK + 3)
    a(f"s_lshl_b32 s5, s{WV}, 7\ns_add_u32 s6, s5, {L_SIL}\nv_add_u32 v{WK+1}, s6, v{VB}\nds_write_b16_d16_hi v{WK+1}, v{WK+3}")
    a(f"v_add_u32 v{WK+1}, s5, v{VACT}\ns_waitcnt lgkmcnt(0)\nds_read_b128 {vr(ACT,4)}, v{WK+1} offset:{L_SIL-L_MISC}\nds_read_b128 {vr(ACT+4,4)}, v{WK+1} offset:{L_SIL-L_MISC+64}")

    def den_from_var(v, rden):
        rnd(v, v); a(f"v_add_f32 v{v}, {f2u(1e-5):#x}, v{v}"); rnd(v, v)
        a(f"v_sqrt_f32 v{v}, v{v}"); rnd(v, v)
        a(f"v_rcp_f32 v{rden}, v{v}")
    def ln_stats(X, mean_b, rden, t0):
        p1, p2, u1 = t0, t0 + 2, t0 + 4
        a(f"v_readfirstlane_b32 s36, v{X}\ns_mov_b32 s37, s36")
        for i in range(0, 16, 2): a(f"v_pk_add_f32 {vr(X+i,2)}, {vr(X+i,2)}, s[36:37] neg_lo:[0,1] neg_hi:[0,1]")
        a(f"v_pk_mul_f32 {vr(p2,2)}, {vr(X,2)}, {vr(X,2)}\nv_pk_add_f32 {vr(p1,2)}, {vr(X,2)}, {vr(X+2,2)}")
        a(f"v_pk_fma_f32 {vr(p2,2)}, {vr(X+2,2)}, {vr(X+2,2)}, {vr(p2,2)}")
        for i in range(4, 16, 2):
            a(f"v_pk_add_f32 {vr(p1,2)}, {vr(p1,2)}, {vr(X+i,2)}\nv_pk_fma_f32 {vr(p2,2)}, {vr(X+i,2)}, {vr(X+i,2)}, {vr(p2,2)}")
        a(f"v_add_f32 v{p1}, v{p1}, v{p1+1}\nv_add_f32 v{p2}, v{p2}, v{p2+1}")
        a(f"v_permlane32_swap_b32 v{p1}, v{p2}\nv_add_f32 v{p1}, v{p1}, v{p2}")
        xreduce("v_add_f32", p1, u1, (16, 8, 4, 2, 1))
        a(f"v_mul_f32 v{p1}, {f2u(1.0/1024):#x}, v{p1}\nv_mov_b32 v{p2}, v{p1}\nv_permlane32_swap_b32 v{p1}, v{p2}")
        a(f"v_fma_f32 v{p2}, -v{p1}, v{p1}, v{p2}\nv_add_f32 v{p1}, s36, v{p1}\nv_max_f32 v{p2}, 0, v{p2}")
        rnd(mean_b, p1); den_from_var(p2, rden)
    a.c("layer norm 1 statistics (every wave, all 1024 values) and this lane's normalised x")
    XU = XR + 8
    for i in range(8):
        a(f"v_lshlrev_b32 v{XU+2*i}, 16, v{XR+i}\nv_and_b32 v{XU+2*i+1}, 0xffff0000, v{XR+i}")
    ln_stats(XU, WK, WK + 1, WK + 2)
    LN1 = K_GA
    a(f"v_lshlrev_b32 v{LN1}, 16, v{LN1}")
    a(f"v_sub_f32 v{LN1}, v{LN1}, v{WK}"); rnd(LN1, LN1); a(f"v_mul_f32 v{LN1}, v{LN1}, v{WK+1}"); rnd(LN1, LN1)
    lds_wait(C_CLR, 4, WK + 1, VCN, sleep=0)

    if True:
        a(f"s_getreg_b32 s14, hwreg(HW_REG_XCC_ID)\ns_cmp_lg_u32 s{WV}, 1\ns_cbranch_scc1 L_xc_done")
        a(f"v_mov_b32 v{WK}, s14\nv_mov_b32 v{WK+1}, v{TAG}\ns_lshl_b32 s5, s30, 8\ns_and_b32 s6, s2, 0xf8\ns_add_u32 s5, s5, s6\ns_add_u32 s5, s5, {XCP}\ns_mov_b64 exec, 1\nbuffer_store_dwordx2 {vr(WK,2)}, off, {sr(R_WS,4)}, s5 sc1\ns_mov_b64 exec, -1")
        a.label("L_xc_done")
    def tr_read(dst, vaddr, nkk, rs, base=0):
        for kk in range(nkk):
            for q in range(2):
                a(f"ds_read_b64_tr_b16 {vr(dst + kk*4 + 2*q, 2)}, v{vaddr} offset:{base + (32 * kk + 4 * q) * rs}")
    def tr_tile(dst, base, nkk, t0):
        a(f"v_add_u32 v{t0}, {base}, v{VTR}\nv_xor_b32 v{t0+1}, 32, v{t0}")
        tr_read(dst, t0, nkk, 256); tr_read(dst + 4 * nkk, t0 + 1, nkk, 256)
    MASKC = [0x0001000100010001 << i for i in range(4)]
    def mfma(d, x, y, first): a(f"v_mfma_f32_16x16x32_bf16 {vr(d,4)}, {vr(x,4)}, {vr(y,4)}, {'0' if first else vr(d,4)}")
    BT = WK + 7
    def tagit(d, s, k): a(f"v_and_or_b32 v{d}, v{s}, v{BT}, s{TB0+k}")
    def gemv_pub(frs, nkk, dacc, out, off, tagged=True, slot=None):
        n = len(frs)
        a(f"s_mul_i32 s5, s{WV}, {n*64}\ns_add_u32 s5, s5, s{SMY if slot is None else slot}\ns_add_u32 s5, s5, {off}")
        def fin(cg):
            setexec(MASKC[cg])
            for i in range(4):
                if tagged: tagit(out + i, dacc + 4 * cg + i, i)
                else: a(f"v_mov_b32 v{out+i}, v{dacc+4*cg+i}")
        lag = 2 if nkk == 2 else 1
        for cg in range(n + lag):
            if cg < n:
                if cg > lag: a("s_mov_b64 exec, -1")
                for kk in range(nkk): mfma(dacc + 4 * cg, frs[cg] + 4 * kk, ACT + 4 * kk, kk == 0)
            if cg >= lag: fin(cg - lag)
        setexec(sum(MASKC[:n]))
        a(f"buffer_store_dwordx4 {vr(out,4)}, v{VPUB}, {sr(R_WS,4)}, s5 offen sc1\ns_mov_b64 exec, -1")
    deferred = []
    def gather(loads, t0, kind="sent", tags=None, masked=True, between=None, acc=None):
        L = a.newlabel("L_g"); Ld = a.newlabel("L_gd"); Lc = a.newlabel("L_gc")
        PM = 40
        def ld(dst, wd, va, so):
            if so: a(f"s_mov_b32 s5, {so}")
            a(f"buffer_load_dword{'' if wd == 1 else 'x'+str(wd)} {vr(dst,wd)}, v{va}, {sr(R_WS,4)}, {'s5' if so else '0'} offen sc1")
        op3, op2 = ("v_max3_u32", "v_max_u32") if kind == "sent" else ("v_or3_b32", "v_or_b32")
        def tree(regs_):
            if len(regs_) == 1: return regs_[0]
            if len(regs_) == 2: a(f"{op2} v{t0}, v{regs_[0]}, v{regs_[1]}"); return t0
            a(f"{op3} v{t0}, v{regs_[0]}, v{regs_[1]}, v{regs_[2]}")
            rest = regs_[3:]
            while rest:
                if len(rest) >= 2: a(f"{op3} v{t0}, v{t0}, v{rest[0]}, v{rest[1]}"); rest = rest[2:]
                else: a(f"{op2} v{t0}, v{t0}, v{rest[0]}"); rest = []
            return t0
        def test(dst_s, r_):
            if kind == "sent": a(f"v_cmp_eq_u32 {dst_s}, -1, v{r_}")
            else: a(f"v_and_b32 v{t0}, 0xff, v{r_}\nv_cmp_ne_u32 {dst_s}, 0, v{t0}")
        def untag(dst, wd):
            for x in range(dst, dst + wd): a(f"v_xor_b32 v{x}, s{TB0 + x - dst}, v{x}")
        def accum(i):
            if acc is None or i == 0: return
            x = loads[0][0] if i == 1 else acc
            for h in (2, 0): a(f"v_pk_add_f32 {vr(acc+h,2)}, {vr(x+h,2)}, {vr(loads[i][0]+h,2)}")
        a("s_nop 0")
        if not masked: a.label(L)
        for (dst, wd, va, so, em) in loads:
            if em is not None: setexec(em)
            ld(dst, wd, va, so)
            if em is not None: a("s_mov_b64 exec, -1")
        if between: between()
        if not masked: budget_check()
        if kind == "tag":
            a(f"s_waitcnt vmcnt(0)\ns_branch {Lc}")
        else:
            for i, (dst, wd, va, so, em) in enumerate(loads):
                a(f"s_waitcnt vmcnt({len(loads)-1-i})")
                if kind == "byte":
                    if em is not None: setexec(em)
                    untag(dst, wd)
                    if em is not None: a("s_mov_b64 exec, -1")
                r_ = tree(([t0] if i else []) + list(range(dst, dst + wd)))
                assert r_ == t0
                if i < len(loads) - 1: accum(i)
            test("vcc", t0)
            accum(len(loads) - 1)
            a(f"s_cbranch_vccnz {Lc if masked else L}")
            if not masked: return
        a.label(Ld)
        def retry():
            a.label(L)
            budget_check()
            for i, (dst, wd, va, so, em) in enumerate(loads):
                sk = a.newlabel("L_gs")
                a(f"s_mov_b64 exec, {sr(PM+2*i,2)}\ns_cbranch_execz {sk}")
                ld(dst, wd, va, so)
                a.label(sk)
            a("s_waitcnt vmcnt(0)")
            if kind == "byte":
                for i, (dst, wd, va, so, em) in enumerate(loads):
                    a(f"s_mov_b64 exec, {sr(PM+2*i,2)}"); untag(dst, wd)
            a("s_mov_b64 exec, -1")
            a.label(Lc)
            for i, (dst, wd, va, so, em) in enumerate(loads):
                if kind == "tag": a(f"v_cmp_ne_u32 {sr(PM+2*i,2)}, v{tags[i]}, v{TAG}")
                else: test(sr(PM + 2 * i, 2), tree(list(range(dst, dst + wd))))
            a(f"s_mov_b64 s[6:7], {sr(PM,2)}")
            for i in range(1, len(loads)): a(f"s_or_b64 s[6:7], s[6:7], {sr(PM+2*i,2)}")
            a(f"s_cmp_lg_u64 s[6:7], 0\ns_cbranch_scc1 {L}")
            for i in range(len(loads)): accum(i)
            a(f"s_nop 1\ns_branch {Ld}")
        deferred.append(retry)
    def tree_sum(base, n, stride=1):
        idx = [base + i * stride for i in range(n)]
        while len(idx) > 1:
            nx = []
            for i in range(0, len(idx) - 1, 2):
                a(f"v_add_f32 v{idx[i]}, v{idx[i]}, v{idx[i+1]}"); nx.append(idx[i])
            if len(idx) & 1: nx.append(idx[-1])
            idx = nx
    def pk_sum4(base, n):
        idx = [base + 4 * i for i in range(n)]
        while len(idx) > 1:
            nx = []
            for i in range(0, len(idx) - 1, 2):
                for h in (0, 2): a(f"v_pk_add_f32 {vr(idx[i]+h,2)}, {vr(idx[i]+h,2)}, {vr(idx[i+1]+h,2)}")
                nx.append(idx[i])
            if len(idx) & 1: nx.append(idx[-1])
            idx = nx
    def col_reduce(b):
        a(f"v_permlane32_swap_b32 v{b}, v{b+1}\nv_permlane32_swap_b32 v{b+2}, v{b+3}\nv_add_f32 v{b}, v{b}, v{b+1}\nv_add_f32 v{b+2}, v{b+2}, v{b+3}")
        a(f"v_permlane16_swap_b32 v{b}, v{b+2}\nv_add_f32 v{b}, v{b}, v{b+2}\nv_add_f32_dpp v{b}, v{b}, v{b} row_ror:8 {DPPF}")
    VCHK = 0
    def xch_read(lbase, nkk, t0, vact, two=False):
        L = a.newlabel("L_x"); Ld = a.newlabel("L_xd")
        a.label(L)
        a(f"ds_read_b32 v{t0}, v{VCHK} offset:{lbase - L_MISC}")
        if two: a(f"ds_read_b32 v{t0+1}, v{VCHK} offset:{lbase - L_MISC + 320}")
        for kk in range(nkk): a(f"ds_read_b128 {vr(ACT+4*kk,4)}, v{vact} offset:{lbase - L_MISC + kk*64}")
        a(f"s_waitcnt lgkmcnt({nkk})")
        if two: a(f"v_pk_max_u16 v{t0}, v{t0}, v{t0+1}")
        a(f"v_cmp_eq_u16 vcc, -1, v{t0}\nv_cmp_le_u32 s[6:7], s38, v{t0}\ns_or_b64 s[6:7], s[6:7], vcc")
        if nkk == 2: a("s_cmp_lg_u32 s6, 0")
        a(f"s_cbranch_scc0 {Ld}")
        budget_check()
        a(f"s_branch {L}")
        a.label(Ld)
        a("s_waitcnt lgkmcnt(0)")

    def bal_run(limit):
        Lb = a.newlabel("L_bal"); Le = a.newlabel("L_bale")
        a(f"s_cmp_lg_u32 s{WV}, 3\ns_cbranch_scc1 {Le}")
        h = FWO
        a(f"s_mul_i32 s36, s30, {WS}\ns_add_u32 s36, s36, {BRD}\ns_lshr_b32 s37, s2, 3\ns_lshl_b32 s37, s37, 2\ns_add_u32 s37, s37, s36")
        a(f"v_lshlrev_b32 v{h}, 2, v1\nv_lshlrev_b32 v{h+1}, 10, v{TAG}")
        a.label(Lb)
        a(f"ds_read_b32 v{h+2}, v{VCN} offset:{C_T*4}\ns_waitcnt lgkmcnt(0)\nv_readfirstlane_b32 s41, v{h+2}\ns_sub_u32 s41, s41, s39")
        a(f"v_or_b32 v{h+2}, s41, v{h+1}\ns_mov_b64 exec, 1\nbuffer_store_dword v{h+2}, off, {sr(R_WS,4)}, s37 {cfg.lfl}")
        a(f"s_mov_b64 exec, -1\ns_cmp_ge_u32 s41, {limit}\ns_cbranch_scc1 {Le}")
        a(f"s_mov_b32 exec_hi, 0\nbuffer_load_dword v{h+3}, v{h}, {sr(R_WS,4)}, s36 offen sc1\ns_mov_b64 exec, -1")
        budget_check()
        a(f"s_waitcnt vmcnt(0)\nv_xor_b32 v{h+3}, v{h+3}, v{h+1}\nv_cmp_gt_u32 vcc, 1024, v{h+3}\nv_cndmask_b32 v{h+3}, 0, v{h+3}, vcc")
        xreduce("v_add_u32", h + 3, h + 4, (1, 2, 4, 8, 16))
        a(f"v_readfirstlane_b32 s42, v{h+3}\ns_lshr_b32 s42, s42, 5\ns_sub_u32 s42, s42, s41\ns_sub_u32 s43, s42, s39\ns_mov_b32 s39, s42")
        a(f"v_mov_b32 v{h+2}, s43\ns_mov_b64 exec, 1\nds_add_u32 v{VCN}, v{h+2} offset:{C_T*4}\ns_mov_b64 exec, -1\ns_branch {Lb}")
        a.label(Le)
    a("s_mov_b32 s39, 0")
    def mod_tile(t, cnt):
        if not (cfg.dbgm and t): lds_wait(cnt, 8, WK, VCN)
        tr_tile(FU, L_MOD + (0 if cfg.dbgm else t * 16384), 2, WK + 4)
        a("s_waitcnt lgkmcnt(0)")
        gemv_pub([FU, FU + 8], 2, FU + 16, FU + 24, MODP + (t - 1) * 512 if t else HP, tagged=bool(t))
    a.c("partial sa/ca (then ga|sb, cb|gb) of this workgroup's w_mod tiles")
    mod_tile(0, C_CRIT)
    a(f"v_mov_b32 v{BT}, 0xffffff00")
    stamp(2, VST)
    a(f"v_lshrrev_b32 v{WK}, 3, v1\nv_mul_u32_u24 v{VA}, {16*WS}, v{WK}\nv_and_b32 v{WK}, 7, v1\nv_lshl_add_u32 v{VA}, v{WK}, 4, v{VA}")
    a(f"s_mul_i32 s5, s30, {WS}\ns_lshl_b32 s7, s{WV}, 7\ns_add_u32 s5, s5, s7\nv_add_u32 v{VA}, s5, v{VA}")
    if cfg.qm:
        a(f"v_lshl_add_u32 v{TB}, v1, 3, s30\nv_and_b32 v{WK}, 7, v1\ns_and_b32 s5, s2, 3\ns_add_u32 s5, s5, 196\ns_lshl_b32 s6, s82, 3")
        a(f"s_mov_b32 exec_lo, 0\nv_lshl_add_u32 v{TB}, v{WK}, 3, s5\ns_mov_b32 exec_hi, 0xff\nv_add_u32 v{TB}, s6, v{WK}\ns_mov_b64 exec, -1")
    else:
        a(f"v_lshl_add_u32 v{TB}, v1, 3, s30\ns_and_b32 s5, s2, 3\ns_lshl_b32 s5, s5, 6\ns_lshl_b32 s6, s{WV}, 4\ns_add_u32 s5, s5, s6\nv_and_b32 v{WK}, 15, v1")
        a(f"s_mov_b32 exec_lo, 0\nv_add_u32 v{TB}, s5, v{WK}\ns_mov_b32 exec_lo, -1")
    a(f"v_and_b32 v{WK}, 7, v{TB}\nv_and_b32 v{TB}, 0xf8, v{TB}\nv_lshl_add_u32 v{TB}, v{WK}, 8, v{TB}")
    lds_wait(C_WQ, 8, WK + 4, VCN, sleep=cfg.lsl)
    tr_tile(FD, L_WQ, 4, WK + 4)
    mod_tile(1, C_MOD1)
    if not cfg.steal: mod_tile(2, C_MOD2)
    stamp(3, VST)
    a.c('flags: producers have cleared their sentinel slots; s15 = whole class sits on this XCD')
    gather([(FG, 2, TB, XCP, None)], WK, kind="tag", tags=[FG + 1])
    a(f"v_cmp_ne_u32 vcc, s14, v{FG}\ns_cmp_eq_u32 vcc_lo, 0\ns_cselect_b32 s15, 1, 0")
    if cfg.balk: bal_run(8 * (cfg.p1 - cfg.hl))
    lds_wait(C_P1, 8, WK + 4, VCN, sleep=cfg.lsl)
    stamp(4, VST)
    a.c('hand-off 1: sum sa, ca; h = bf16(bf16(ln1 * bf16(1 + ca)) + sa); partial q = h @ wq tile')
    gather([(FU + 4 * i, 4, VA, HP + (i >> 1) * 8 * WS + (i & 1) * 128 * WS, None) for i in range(4)], WK)
    stamp(5, VST)
    pk_sum4(FU, 2); pk_sum4(FU + 8, 2); col_reduce(FU); col_reduce(FU + 8)
    rnd(FU, FU); rnd(FU + 8, FU + 8)
    a(f"v_add_f32 v{FU+8}, 1.0, v{FU+8}"); rnd(FU + 8, FU + 8)
    a(f"v_mul_f32 v{LN1}, v{LN1}, v{FU+8}"); rnd(LN1, LN1); a(f"v_add_f32 v{LN1}, v{LN1}, v{FU}"); rnd(LN1, LN1)
    a(f"s_lshl_b32 s5, s{WV}, 6\ns_add_u32 s5, s5, {L_HV}\nv_add_u32 v{VB}, s5, v{K_C1}")
    a(f"ds_write_b16_d16_hi v{VB}, v{LN1}\ns_waitcnt lgkmcnt(0)")
    lds_signal(C_H, VCN, VONE)
    lds_wait(C_H, 4, WK, VCN, sleep=0)
    for kk in range(4): a(f"ds_read_b128 {vr(ACT+4*kk,4)}, v{VACT} offset:{L_HV - L_MISC + kk*64}")
    a("s_waitcnt lgkmcnt(0)")
    gemv_pub([FD, FD + 16], 4, FU, FU + 8, QP, tagged=False)
    stamp(6, VST)
    if cfg.steal:
        a(f"s_xor_b32 s84, s2, 4\ns_mul_i32 s84, s84, {WS}\ns_cmp_lg_u32 s{WV}, 1\ns_cbranch_scc1 L_cl_done")
        a(f"v_mov_b32 v{FG}, v{TAG}\nv_mov_b32 v{FG+1}, v{TAG}")
        lds_wait(C_PA, 8, WK, VCN)
        a(f"s_mov_b64 exec, 1\nbuffer_atomic_swap v{FG}, off, {sr(R_WS,4)}, s{SMY} offset:{CLM} sc0 sc1\ns_mov_b64 exec, -1")
        lds_wait(C_PB, 8, WK, VCN)
        a(f"s_mov_b64 exec, 1\nbuffer_atomic_swap v{FG+1}, off, {sr(R_WS,4)}, s84 offset:{CLM} sc0 sc1\ns_waitcnt vmcnt(0)")
        a(f"v_cmp_ne_u32 vcc, v{FG}, v{TAG}\nv_cndmask_b32 v{FG}, 4, 5, vcc\nv_cmp_ne_u32 vcc, v{FG+1}, v{TAG}\nv_cndmask_b32 v{FG+1}, 0, 2, vcc\nv_add_u32 v{FG}, v{FG}, v{FG+1}")
        a(f"ds_write_b32 v{VCN}, v{FG} offset:{C_DEC*4}\ns_mov_b64 exec, -1")
        a.label("L_cl_done")
    a.c('hand-off 2: sum the q parts of this kv group -> LDS')
    if cfg.qm:
        a(f"s_and_b32 s5, s2, 0xc4\ns_cmp_lg_u32 s5, 0xc4\ns_cbranch_scc1 L_qm_done")
        a(f"v_lshrrev_b32 v{WK}, 3, v1\nv_mul_u32_u24 v{VA}, {WS}, v{WK}\nv_and_b32 v{WK+1}, 7, v1\nv_lshl_add_u32 v{VA}, v{WK+1}, 4, v{VA}\nv_lshlrev_b32 v{WK+1}, 3, v{WK+1}")
        a(f"s_mul_i32 s5, s82, {8*WS}\ns_lshl_b32 s6, s{WV}, 7\ns_add_u32 s5, s5, s6\nv_add_u32 v{VA}, s5, v{VA}\ns_lshl_b32 s6, s{WV}, 6\ns_add_u32 s83, s83, s6")
        lds_wait(C_PM, 8, WK + 4, VCN)
        gather([(FG, 4, VA, QP, None)], WK)
        for e in range(4): xreduce("v_add_f32", FG + e, FG + 4 + e, (8, 16, 32))
        a(f"v_cvt_pk_bf16_f32 v{FG}, v{FG}, v{FG+1}\nv_cvt_pk_bf16_f32 v{FG+1}, v{FG+2}, v{FG+3}")
        a(f"s_mov_b64 exec, 0xff\nbuffer_store_dwordx2 {vr(FG,2)}, v{WK+1}, {sr(R_WS,4)}, s83 offen sc1\ns_mov_b64 exec, -1")
        a.label("L_qm_done")
        a(f"s_and_b32 s5, s2, 3\ns_lshl_b32 s5, s5, 11\nv_lshlrev_b32 v{WK+2}, 3, v0\nv_add_u32 v{VA}, s5, v{WK+2}\nv_add_u32 v{WK+2}, {L_QV}, v{WK+2}")
        lds_wait(C_P2, 8, WK + 4, VCN, sleep=cfg.lsl)
        stamp(20, VST)
        gather([(FG + 8, 2, VA, QF, None)], WK)
        stamp(7, VST)
        a(f"ds_write_b64 v{WK+2}, {vr(FG+8,2)}\ns_waitcnt lgkmcnt(0)")
    else:
        a(f"s_and_b32 s5, s2, 3\ns_lshl_b32 s5, s5, 3\nv_lshrrev_b32 v{WK+4}, 5, v0\nv_add_u32 v{WK+4}, s5, v{WK+4}\nv_mul_u32_u24 v{VA}, {8*WS}, v{WK+4}")
        a(f"v_and_b32 v{WK+4}, 31, v0\nv_lshl_add_u32 v{VA}, v{WK+4}, 4, v{VA}")
        a(f"v_lshlrev_b32 v{WK+2}, 3, v0\nv_add_u32 v{WK+2}, {L_QV}, v{WK+2}")
        if cfg.balk: bal_run(8 * (cfg.p2 - cfg.hl))
        lds_wait(C_P2, 8, WK + 4, VCN, sleep=cfg.lsl)
        stamp(20, VST)
        gather([(FG + 4 * i, 4, VA, QP + i * WS, None) for i in range(1 if cfg.dbgh & 2 else 8)], WK)
        if cfg.dbgh & 2:
            for i in range(4, 32): a(f"v_mov_b32 v{FG+i}, 0")
        stamp(7, VST)
        pk_sum4(FG, 8)
        a(f"v_cvt_pk_bf16_f32 v{WK}, v{FG}, v{FG+1}\nv_cvt_pk_bf16_f32 v{WK+1}, v{FG+2}, v{FG+3}")
        a(f"ds_write_b64 v{WK+2}, {vr(WK,2)}\ns_waitcnt lgkmcnt(0)")
    lds_signal(C_Q, VCN, VONE)
    a(f"s_add_u32 s5, s2, s{WV}\ns_cmp_lg_u32 s5, 0\ns_cbranch_scc1 L_ep_done")
    a(f"s_mov_b32 s5, {EPOCH}\ns_mov_b64 exec, 1\nbuffer_store_dword v{TAG}, off, {sr(R_WS,4)}, s5 sc1\ns_mov_b64 exec, -1")
    a.label("L_ep_done")
    ROLE, RBF, SFY, VAW = 31, 12, 13, WK + 6
    def role_make():
        a(f"s_cmp_lg_u32 s{WV}, 1\ns_cbranch_scc1 L_role_done")
        if cfg.role == 2:
            lds_wait(C_P4, 8, WK, VCN, sleep=2)
            a(f"s_mul_i32 s5, s30, {WS}\ns_add_u32 s5, s5, {TKT}\nv_mov_b32 v{WK}, 1\ns_mov_b64 exec, 1")
            a(f"buffer_atomic_add v{WK}, off, {sr(R_WS,4)}, s5 sc0 sc1\ns_waitcnt vmcnt(0)\nv_readfirstlane_b32 s36, v{WK}\ns_add_u32 s36, s36, 1")
        if cfg.role == 0: a("s_mov_b32 s5, s2")
        else:
            if cfg.role == 1: a("s_lshr_b32 s36, s2, 3")
            a("s_lshr_b32 s6, s36, 3\ns_mul_i32 s5, s30, 3\ns_add_u32 s5, s5, s6\ns_add_u32 s7, s30, 24\ns_cmp_lt_u32 s6, 3\ns_cselect_b32 s5, s5, s7")
            a("s_cmp_lt_u32 s6, 4\ns_cselect_b32 s5, s5, 28\ns_lshl_b32 s5, s5, 3\ns_and_b32 s6, s36, 7\ns_add_u32 s5, s5, s6")
        a(f"s_add_u32 s5, s5, 1\nv_mov_b32 v{WK}, s5\ns_mov_b64 exec, 1\nds_write_b32 v{VCN}, v{WK} offset:{C_ROLE*4}\ns_mov_b64 exec, -1")
        a.label("L_role_done")
    def rest_mod():
        lds_wait(C_ROLE, 1, WK, VCN, sleep=2)
        a(f"s_sub_u32 s{ROLE}, s5, 1")
        a(f"s_and_b32 s{RBF}, s{ROLE}, 7\ns_mul_i32 s{SFY}, s{ROLE}, {WS}\ns_lshl_b32 s32, s{RBF}, 7\ns_lshl_b32 s5, s{WV}, 5\ns_add_u32 s32, s32, s5")
        a(f"s_lshl_b32 s5, s32, 1\nbuffer_load_ushort v{K_X}, v{K_C1}, {sr(R_X,4)}, s5 offen")
        a(f"v_lshrrev_b32 v{WK}, 3, v1\nv_mul_u32_u24 v{WK+1}, {WS}, v{WK}\nv_and_b32 v{WK+2}, 7, v1\nv_lshlrev_b32 v{WK+2}, 4, v{WK+2}")
        a(f"s_mul_i32 s34, s{RBF}, {WS}\ns_lshl_b32 s6, s{WV}, 7\ns_add_u32 s34, s34, s6")
        a(f"s_lshl_b32 s5, s32, 4\nv_lshl_add_u32 v{VA}, v{K_C1}, 3, s5")
        gather([(FG, 4, VA, MODF, None)], WK, kind="byte")
        a(f"v_and_b32 v{WK+3}, 8, v1\nv_mul_u32_u24 v{WK+3}, 40, v{WK+3}\ns_lshl_b32 s5, s{WV}, 6\ns_add_u32 s5, s5, {L_AT}\nv_add3_u32 v{VAW}, v{WK+3}, v{K_C1}, s5")
        a(f"v_mov_b32 v{TB}, v{K_C1}")
        a(f"v_mov_b32 v{K_GA}, v{FG}\nv_mov_b32 v{K_GB}, v{FG+3}\nv_add_f32 v{K_C1}, 1.0, v{FG+2}"); rnd(K_C1, K_C1)
        a(f"v_mov_b32_dpp v{FG+1}, v{K_C1} quad_perm:[0,1,2,3] row_mask:0xf bank_mask:0x3")
        a(f"ds_write_b16_d16_hi v{VAW}, v{FG+1} offset:640")
        stamp(8, VST)
        a(f"v_lshlrev_b32 v{K_X}, 16, v{K_X}")
    role_make()
    a.c('softmax statistics of the workgroup -> other splits of the kv group')
    a(f"s_cmp_lg_u32 s{WV}, 0\ns_cbranch_scc1 L_ml_pub")
    lds_wait(C_ML, 8, WK, VCN, sleep=max(2, cfg.lsl))
    stamp(9, VST)
    a(f"v_lshlrev_b32 v{WK+2}, 3, v1\nv_add_u32 v{WK+3}, {L_MLW}, v{WK+2}\nds_read_b64 {vr(WK,2)}, v{WK+3}\ns_waitcnt lgkmcnt(0)")
    a(f"v_mov_b32 v{WK+4}, v{WK}")
    xreduce("v_max_f32", WK + 4, WK + 6, (8, 16, 32))
    a(f"v_sub_f32 v{WK}, v{WK}, v{WK+4}\nv_mul_f32 v{WK}, s33, v{WK}\nv_exp_f32 v{WK}, v{WK}\nv_mul_f32 v{WK+5}, v{WK}, v{WK+1}")
    xreduce("v_add_f32", WK + 5, WK + 6, (8, 16, 32))
    a(f"s_mov_b64 exec, 0xff\nbuffer_store_dwordx2 {vr(WK+4,2)}, v{WK+2}, {sr(R_WS,4)}, s81 offen sc1\ns_mov_b64 exec, -1")
    a.label("L_ml_pub")
    if cfg.steal:
        a(f"s_lshl_b32 s5, s{WV}, 7\nv_add_u32 v{WK+1}, s5, v{VACT}\nds_read_b128 {vr(ACT,4)}, v{WK+1} offset:{L_SIL-L_MISC}\nds_read_b128 {vr(ACT+4,4)}, v{WK+1} offset:{L_SIL-L_MISC+64}")
        lds_wait(C_DEC, 1, WK, VCN)
        a("s_mov_b32 s85, s5")
        for bit, cnt, base, slot in ((0, C_MOD2, L_MOD + 32768, None), (1, C_MOD3, L_WO, 84)):
            a(f"s_bitcmp1_b32 s85, {bit}\ns_cbranch_scc0 L_st_skip{bit}")
            lds_wait(cnt, 8, WK, VCN)
            tr_tile(FU, base, 2, WK + 4)
            a("s_waitcnt lgkmcnt(0)")
            gemv_pub([FU, FU + 8], 2, FU + 16, FU + 24, MODP + 512, slot=slot)
            a.label(f"L_st_skip{bit}")
        lds_signal(C_MLD, VCN, VONE)
    a.c('32 waves finish ga, sb, cb, gb')
    a(f"s_cmp_lg_u32 s{WV}, 2\ns_cbranch_scc1 L_modf_done\ns_and_b32 s5, s2, 0xc4\ns_cmp_lg_u32 s5, 0xc4\ns_cbranch_scc1 L_modf_done")
    a(f"s_bfe_u32 s36, s2, 0x30003\ns_and_b32 s37, s2, 3\ns_mul_i32 s5, s36, {WS}\ns_lshl_b32 s6, s37, 7\ns_add_u32 s5, s5, s6")
    a(f"v_lshrrev_b32 v{WK}, 3, v1\nv_mul_u32_u24 v{VA}, {16*WS}, v{WK}\nv_and_b32 v{WK}, 7, v1\nv_lshl_add_u32 v{VA}, v{WK}, 4, v{VA}\nv_add_u32 v{VA}, s5, v{VA}")
    if cfg.steal: lds_wait(C_P9, 8, WK, VCN, sleep=4)
    mv = [MODP, MODP + 8 * WS, MODP + 512, MODP + 512 + 8 * WS]
    gather([(FG + 8 * v + 4 * i, 4, VA, mv[v] + i * 128 * WS, None) for v in range(4) for i in range(2)], WK, kind="byte")
    for v in range(4):
        pk_sum4(FG + 8 * v, 2); col_reduce(FG + 8 * v); rnd(FG + 8 * v, FG + 8 * v)
    for v in range(4): tagit(FU + v, FG + 8 * v, v)
    a(f"v_lshlrev_b32 v{WK}, 3, v{K_C1}\ns_lshl_b32 s5, s36, 11\ns_lshl_b32 s6, s37, 9\ns_add_u32 s5, s5, s6\ns_add_u32 s5, s5, {MODF}")
    setexec(0x00ff00ff00ff00ff)
    a(f"buffer_store_dwordx4 {vr(FU,4)}, v{WK}, {sr(R_WS,4)}, s5 offen sc1\ns_mov_b64 exec, -1")
    a.label("L_modf_done")
    a(f"s_cmp_lg_u32 s{WV}, 0\ns_cbranch_scc1 L_ml_done")
    a(f"v_lshl_add_u32 v{VA}, v1, 3, s80")
    lds_wait(C_P3, 8, WK, VCN, sleep=cfg.lsl)
    stamp(21, VST)
    gather([(FU + 2 * i, 2, VA, i * 512, None) for i in range(8)], WK)
    a.c('global max and sum over the 64 splits -> LDS')
    m_, r_, t_ = FU + 16, FU + 17, FU + 18
    a(f"v_max3_f32 v{m_}, v{FU}, v{FU+2}, v{FU+4}\nv_max3_f32 v{m_}, v{m_}, v{FU+6}, v{FU+8}\nv_max3_f32 v{m_}, v{m_}, v{FU+10}, v{FU+12}\nv_max_f32 v{m_}, v{m_}, v{FU+14}")
    xreduce("v_max_f32", m_, t_, (8, 16, 32))
    for i in range(8):
        a(f"v_sub_f32 v{FU+2*i}, v{FU+2*i}, v{m_}\nv_mul_f32 v{FU+2*i}, s33, v{FU+2*i}\nv_exp_f32 v{FU+2*i}, v{FU+2*i}")
    for i in range(8): a(f"v_mul_f32 v{FU+2*i}, v{FU+2*i}, v{FU+2*i+1}")
    tree_sum(FU, 8, 2)
    xreduce("v_add_f32", FU, t_, (8, 16, 32))
    a(f"v_rcp_f32 v{r_}, v{FU}")
    a(f"v_lshlrev_b32 v{t_}, 3, v1\nv_add_u32 v{t_}, {L_MLF}, v{t_}\ns_mov_b64 exec, 0xff\nds_write_b64 v{t_}, {vr(m_,2)}\ns_waitcnt lgkmcnt(0)")
    lds_signal(C_MLD, VCN, VONE)
    stamp(10, VST)
    a.label("L_ml_done")
    if cfg.bal >= 2: bal_run(8 * (cfg.NS - cfg.hstop - cfg.D2 - cfg.nq2 + (32 if cfg.balk else 0)))
    lds_wait(C_P3, 8, WK, VCN, sleep=max(4, cfg.lsl))
    rest_mod()
    late = lst(cfg.late)
    def ffn_frags(name, t0):
        base, dst, cnt = {"wo": (L_WO, FWO, C_WO), "gate": (L_GATE, FG, C_GATE), "up": (L_UP, FU, C_UP), "dn": (L_DN, FD, None)}[name]
        if cnt is not None: lds_wait(cnt, 8, t0, VCN, sleep=0 if name in late else 2)
        tr_tile(dst, base, 4, t0)
    if "wo" not in late: ffn_frags("wo", WK + 3)
    for name in ("gate", "up"):
        if name not in late: ffn_frags(name, WK + 3)
    a.c('addresses used by the tail')
    A_OS, A_OG, A_XW = ACT + 8, ACT + 9, ACT + 10
    A_A = WK + 5
    assert all(t in late for t in ("gate", "up"))
    if cfg.ared:
        a(f"s_and_b32 s5, s2, 3\ns_mul_i32 s5, s5, {WS}\ns_lshl_b32 s6, s{RBF}, 9\ns_add_u32 s5, s5, s6\ns_lshl_b32 s7, s{WV}, 7\ns_add_u32 s5, s5, s7")
    else:
        a(f"s_lshr_b32 s5, s2, 6\ns_mul_i32 s5, s5, {WS}\ns_lshl_b32 s6, s30, 9\ns_add_u32 s5, s5, s6\ns_lshl_b32 s7, s{WV}, 7\ns_add_u32 s5, s5, s7")
    a(f"v_lshl_add_u32 v{A_A}, v{WK+1}, 2, v{WK+2}\nv_add_u32 v{A_A}, s5, v{A_A}")
    a(f"s_mul_i32 s5, s{RBF}, {8*WS}\ns_add_u32 s5, s5, s7\nv_add3_u32 v{VA}, v{WK+1}, v{WK+2}, s5")
    a(f"v_lshl_add_u32 v{WK+1}, v{WK+1}, 3, v{WK+2}\nv_add_u32 v{WK+1}, s34, v{WK+1}")
    a(f"s_and_b32 s5, s{ROLE}, 0xf8\ns_mul_i32 s5, s5, {WS}\ns_lshl_b32 s6, s{WV}, 8\ns_add_u32 s5, s5, s6\nv_lshrrev_b32 v{WK}, 4, v1\nv_mul_u32_u24 v{WK}, {WS}, v{WK}")
    a(f"v_and_b32 v{WK+2}, 15, v1\nv_lshlrev_b32 v{WK+2}, 4, v{WK+2}\nv_add3_u32 v{WK+2}, v{WK}, v{WK+2}, s5")
    A_Y, A_Z, A_E = VA, WK + 1, WK + 2
    a(f"v_lshrrev_b32 v{WK}, 4, v1\nv_and_b32 v{WK+3}, 15, v1\nv_lshlrev_b32 v{A_OS}, 10, v{WK}\nv_lshl_add_u32 v{A_OS}, v{WK+3}, 4, v{A_OS}")
    a(f"s_lshl_b32 s5, s{WV}, 8\ns_add_u32 s5, s5, {L_OS}\nv_add_u32 v{A_OS}, s5, v{A_OS}")
    a(f"v_and_b32 v{A_OG}, 7, v1\nv_lshlrev_b32 v{A_OG}, 9, v{A_OG}\nv_lshl_add_u32 v{A_OG}, v{WK}, 4, v{A_OG}\nv_and_b32 v{WK+3}, 8, v1\nv_lshl_add_u32 v{A_OG}, v{WK+3}, 3, v{A_OG}")
    a(f"s_lshl_b32 s37, s{WV}, 7\ns_add_u32 s37, s37, s{SMY}\ns_add_u32 s37, s37, {OP}")
    a(f"v_and_b32 v{WK+3}, 7, v1\nv_bfe_u32 v{WK+4}, v1, 4, 1\nv_lshl_add_u32 v{WK+3}, v{WK+4}, 4, v{WK+3}\nv_lshrrev_b32 v{WK+4}, 5, v1\nv_lshl_add_u32 v{WK+3}, v{WK+4}, 3, v{WK+3}")
    if cfg.ared: a(f"s_lshl_b32 s5, s{WV}, 7\ns_add_u32 s5, s5, {L_RV}\nv_lshl_add_u32 v{A_XW}, v{WK+3}, 1, s5\nv_readfirstlane_b32 s33, v{TAG}")
    else: a(f"s_lshl_b32 s5, s{WV}, 6\ns_add_u32 s5, s5, {L_OV}\nv_lshl_add_u32 v{A_XW}, v{WK+3}, 1, s5")
    a(f"v_lshlrev_b32 v{VCHK}, 2, v1\nv_add_u32 v{VCHK}, {L_MISC}, v{VCHK}")
    def e_preread(t):
        a(f"v_lshlrev_b32 v{t}, 7, v1\ns_lshl_b32 s5, s{WV}, 8\ns_add_u32 s5, s5, s{SFY}\ns_add_u32 s5, s5, {GUP}\ns_mov_b64 exec, 7")
        a(f"buffer_load_dword v{t}, v{t}, {sr(R_WS,4)}, s5 offen sc1\ns_mov_b64 exec, -1")
    if cfg.warm:
        a(f"s_getpc_b64 s[6:7]\ns_lshl_b32 s5, s{WV}, 11\nv_lshlrev_b32 v{WK+4}, 7, v1\nv_add_u32 v{WK+4}, s5, v{WK+4}\ns_mov_b64 exec, 0xffff")
        a(f"global_load_dword v{WK+3}, v{WK+4}, s[6:7]\ns_mov_b64 exec, -1")
    a(f"v_readfirstlane_b32 s35, v{TAG}\ns_lshl_b32 s35, s35, 10\ns_or_b32 s35, s35, {8 * (cfg.NS - cfg.D2 - cfg.nq2 + (32 if cfg.balk else 0)) + 1}")
    if cfg.zt:
        a(f"s_lshl_b32 s5, s{WV}, 7\ns_add_u32 s5, s5, s{SFY}\ns_add_u32 s5, s5, {ZP}\ns_mov_b64 exec, 1\nbuffer_load_dword v{TAG}, off, {sr(R_WS,4)}, s5 sc1\ns_mov_b64 exec, -1")
    if cfg.ot & 1:
        a(f"v_lshlrev_b32 v{WK+4}, 7, v1\ns_lshl_b32 s5, s{WV}, 10\ns_add_u32 s5, s5, s{SMY}\ns_add_u32 s5, s5, {OP}\ns_mov_b64 exec, 0xff\nbuffer_load_dword v{TAG}, v{WK+4}, {sr(R_WS,4)}, s5 offen sc1\ns_mov_b64 exec, -1")
    if cfg.ot & 2:
        a(f"s_lshl_b32 s5, s{WV}, 7\ns_add_u32 s5, s5, s{SMY}\ns_add_u32 s5, s5, {YP}\ns_mov_b64 exec, 1\nbuffer_load_dword v{TAG}, off, {sr(R_WS,4)}, s5 sc1\ns_mov_b64 exec, -1")
    if cfg.elocal and cfg.epre == 1: e_preread(WK + 3); a("s_waitcnt vmcnt(0)")
    P31 = 8 * (cfg.NS - cfg.D2 + 1)
    def lb_setup(h):
        a(f"s_mul_i32 s86, s30, {WS}\ns_add_u32 s86, s86, {BRD}\ns_lshr_b32 s87, s2, 3\ns_lshl_b32 s87, s87, 2\ns_add_u32 s87, s87, s86\nv_lshlrev_b32 v{h}, 2, v1")
    def lb_issue(h):
        a(f"ds_read_b32 v{h+2}, v{VCN} offset:{C_T*4}\ns_waitcnt lgkmcnt(0)\nv_readfirstlane_b32 s88, v{h+2}\ns_sub_u32 s88, s88, s39")
        a(f"s_cmp_lt_u32 s{ROLE}, 224\ns_cselect_b32 s5, s88, 1023\ns_or_b32 s5, s5, s35\nv_mov_b32 v{h+2}, s5\ns_mov_b64 exec, 1\nbuffer_store_dword v{h+2}, off, {sr(R_WS,4)}, s87")
        a(f"s_mov_b32 exec_lo, -1\nbuffer_load_dword v{h+3}, v{h}, {sr(R_WS,4)}, s86 offen sc1\ns_mov_b64 exec, -1")
    def lb_finish(h):
        a(f"v_xor_b32 v{h+3}, s35, v{h+3}\nv_cmp_gt_u32 vcc, 1024, v{h+3}\nv_cndmask_b32 v{h+3}, 0, v{h+3}, vcc\nv_cmp_le_u32 vcc, {P31}, v{h+3}\ns_bcnt1_i32_b32 s89, vcc_lo")
        a(f"v_mov_b32 v{h+4}, s88\nv_cmp_eq_u32 vcc, 1023, v{h+3}\nv_cndmask_b32 v{h+3}, v{h+3}, v{h+4}, vcc")
        xreduce("v_add_u32", h + 3, h + 4, (1, 2, 4, 8, 16))
        a(f"v_readfirstlane_b32 s42, v{h+3}\ns_lshr_b32 s42, s42, 5\ns_sub_u32 s42, s42, s88\ns_sub_u32 s43, s42, s39\ns_mov_b32 s39, s42")
        a(f"v_mov_b32 v{h+2}, s43\ns_mov_b64 exec, 1\nds_add_u32 v{VCN}, v{h+2} offset:{C_T*4}\ns_mov_b64 exec, -1")
    h = FG
    def cd_mark():
        a(f"s_mul_i32 s36, s30, {WS}\ns_add_u32 s36, s36, {BRD}\ns_lshr_b32 s5, s2, 3\ns_lshl_b32 s5, s5, 2\ns_add_u32 s5, s5, s36")
        a(f"v_lshlrev_b32 v{h}, 2, v1\nv_mov_b32 v{h+1}, s35\nv_mov_b32 v{h+4}, 8\ns_mov_b64 exec, 1\nbuffer_store_dword v{h+1}, off, {sr(R_WS,4)}, s5 {cfg.lfl}\ns_mov_b32 exec_lo, -1")
    def hint_mark(early):
        a(f"s_cmp_lg_u32 s{WV}, 3\ns_cbranch_scc1 L_hm_done")
        if early: lds_wait(C_P8, 8, WK, VCN, sleep=cfg.lsl)
        if cfg.hint == 3: a("s_waitcnt vmcnt(0)"); stamp(30, VST)
        a(f"s_mul_i32 s5, s30, {WS}\ns_add_u32 s5, s5, {TKT}\nv_mov_b32 v{h}, 1\nv_mul_u32_u24 v{h+1}, {WS}, v1\nv_mov_b32 v{h+2}, s35\ns_mov_b64 exec, 1")
        a(f"buffer_atomic_add v{h}, off, {sr(R_WS,4)}, s5 sc0 sc1\ns_mov_b64 exec, -1")
        a(f"s_and_b32 s36, s2, 3\ns_mul_i32 s36, s36, {64*WS}\ns_and_b32 s5, s2, 4\ns_add_u32 s36, s36, s5\ns_add_u32 s36, s36, {INB}")
        a(f"s_waitcnt vmcnt(0)\nv_readfirstlane_b32 s5, v{h}\ns_cmp_lg_u32 s5, 30\ns_cbranch_scc1 L_hm_done")
        a(f"buffer_store_dword v{h+2}, v{h+1}, {sr(R_WS,4)}, s36 offen sc1")
        a.label("L_hm_done")
    if cfg.hint:
        if cfg.hint == 1: hint_mark(True)
    elif cfg.lp:
        a(f"s_and_b32 s35, s35, 0xfffffc00\ns_cmp_lg_u32 s{WV}, 3\ns_cbranch_scc1 L_cm_done")
        lds_wait(C_P8, 8, WK, VCN, sleep=cfg.lsl)
        lb_setup(h); lb_issue(h)
        a.label("L_cm_done")
    elif cfg.cdone and cfg.pv >= 0:
        a(f"s_cmp_lg_u32 s{WV}, 3\ns_cbranch_scc1 L_cm_done")
        lds_wait(C_P8, 8, WK, VCN, sleep=cfg.lsl)
        cd_mark()
        a(f"buffer_load_dword v{h+2}, v{h}, {sr(R_WS,4)}, s36 offen sc1\ns_mov_b64 exec, -1")
        a.label("L_cm_done")
    a("s_waitcnt lgkmcnt(0)")
    stamp(11, VST)
    a("s_barrier")
    stamp(12, VST)
    a.c("sum the 8 waves' O and publish the workgroup's partial")
    for s in range(8): a(f"ds_read_b128 {vr(FD+4*s,4)}, v{A_OS} offset:{s*4096}")
    a("s_waitcnt lgkmcnt(4)"); pk_sum4(FD, 4)
    a("s_waitcnt lgkmcnt(0)"); pk_sum4(FD + 16, 4)
    a(f"v_pk_add_f32 {vr(FD,2)}, {vr(FD,2)}, {vr(FD+16,2)}\nv_pk_add_f32 {vr(FD+2,2)}, {vr(FD+2,2)}, {vr(FD+18,2)}")
    for i in range(4): tagit(FD + i, FD + i, i)
    a(f"buffer_store_dwordx4 {vr(FD,4)}, v{A_OG}, {sr(R_WS,4)}, s37 offen sc1")
    stamp(13, VST)
    def betweenA():
        if cfg.p5 < 0: lds_signal(C_OR, VCN, VONE)
        if "wo" in late: ffn_frags("wo", WK + 3)
    if cfg.p5 >= 0:
        lds_signal(C_OR, VCN, VONE)
        if cfg.ared: a(f"s_cmp_lt_u32 s{ROLE}, 224\ns_cbranch_scc1 L_ar_done")
        if cfg.hint:
            if cfg.hint >= 2: hint_mark(False)
            a(f"s_cmp_lg_u32 s{WV}, 2\ns_cbranch_scc1 L_hp_done")
            a(f"s_add_u32 s5, s{SMY}, {INB}\ns_add_u32 s40, s{KA(104)}, s5\ns_addc_u32 s41, s{KA(104)+1}, 0\nv_mov_b32 v{h+4}, 8")
            a.label("L_hp")
            a(f"s_load_dwordx2 s[42:43], s[40:41], 0 glc\nds_read_b32 v{h+3}, v{VCN} offset:{C_P5*4}")
            budget_check()
            a(f"s_waitcnt lgkmcnt(0)\nv_readfirstlane_b32 s5, v{h+3}\ns_cmp_ge_u32 s5, 8\ns_cbranch_scc1 L_hp_done")
            a(f"s_cmp_lg_u32 s42, s35\ns_cbranch_scc1 L_hp\ns_cmp_lg_u32 s43, s35\ns_cbranch_scc1 L_hp")
            if cfg.hd:
                a(f"ds_read_b32 v{WK}, v{VCN} offset:{C_LC*4}\ns_waitcnt lgkmcnt(0)\nv_readfirstlane_b32 s42, v{WK}\ns_add_u32 s42, s42, {cfg.hd}\ns_min_u32 s42, s42, {8 * (16 - cfg.nl0 - cfg.nmid - cfg.npre)}")
                lds_wait(C_LC, "s42", WK, VCN)
            a(f"s_mov_b64 exec, 1\nds_add_u32 v{VCN}, v{h+4} offset:{C_P5*4}\ns_mov_b64 exec, -1")
            a.label("L_hp_done")
        elif cfg.lp:
            a(f"s_cmp_lg_u32 s{WV}, 3\ns_cbranch_scc1 L_cd_done\ns_waitcnt vmcnt(1)\ns_branch L_cd_chk")
            a.label("L_cd")
            lb_issue(h)
            a(f"ds_read_b32 v{h+5}, v{VCN} offset:{C_P5*4}")
            budget_check()
            a(f"s_waitcnt lgkmcnt(0)\nv_readfirstlane_b32 s5, v{h+5}\ns_cmp_ge_u32 s5, 8\ns_cbranch_scc1 L_cd_done\ns_waitcnt vmcnt(0)")
            a.label("L_cd_chk")
            lb_finish(h)
            a(f"s_cmp_lt_u32 s89, {cfg.cdone}\ns_cbranch_scc1 L_cd")
            a(f"v_mov_b32 v{h+4}, 8\ns_mov_b64 exec, 1\nds_add_u32 v{VCN}, v{h+4} offset:{C_P5*4}\ns_mov_b64 exec, -1")
            a.label("L_cd_done")
        elif cfg.cdone:
            a(f"s_cmp_lg_u32 s{WV}, 3\ns_cbranch_scc1 L_cd_done")
            if cfg.pv < 0: cd_mark()
            else: a(f"s_mov_b32 exec_hi, 0\ns_waitcnt vmcnt(1)\ns_branch L_cd_chk")
            a.label("L_cd")
            a(f"buffer_load_dword v{h+2}, v{h}, {sr(R_WS,4)}, s36 offen sc1\nds_read_b32 v{h+3}, v{VCN} offset:{C_P5*4}")
            budget_check()
            a(f"s_waitcnt lgkmcnt(0)\nv_readfirstlane_b32 s5, v{h+3}\ns_cmp_ge_u32 s5, 8\ns_cbranch_scc1 L_cd_out\ns_waitcnt vmcnt(0)")
            a.label("L_cd_chk")
            a(f"v_cmp_eq_u32 vcc, s35, v{h+2}\ns_bcnt1_i32_b64 s5, vcc\ns_cmp_lt_u32 s5, {cfg.cdone}\ns_cbranch_scc1 L_cd")
            a(f"s_mov_b64 exec, 1\nds_add_u32 v{VCN}, v{h+4} offset:{C_P5*4}")
            a.label("L_cd_out")
            a("s_mov_b64 exec, -1")
            a.label("L_cd_done")
        if cfg.pmin >= 0: lds_wait(C_P7, 8, WK, VCN)
        lds_wait(C_P5, 8, WK, VCN)
    if cfg.yp >= 0: lds_signal(C_AI, VCN, VONE)
    stamp(28, VST)
    a.c('hand-off 3: o of one head (64 partials), y partial = o @ wo tile')
    if cfg.dbgh & 4:
        for i in range(32): a(f"v_mov_b32 v{FU+i}, 0")
    gather([(FU + 4 * i, 4, A_A, OP + i * 32 * WS, 0x0101010101010101 if cfg.dbgh & 4 else None) for i in range(8)], WK, kind="byte", between=None if cfg.ared else betweenA, acc=FD + 4)
    if cfg.yrel == 1: lds_signal(C_Y, VCN, VONE)
    stamp(30 if cfg.ared else 14, VST)
    col_reduce(FD + 4)
    rnd(FD + 4, FD + 4)
    a(f"ds_write_b16_d16_hi v{A_XW}, v{FD+4}")
    if cfg.ared:
        r_ = FD + 8
        a(f"v_mul_u32_u24 v{r_+4}, 43, v1\nv_lshrrev_b32 v{r_+4}, 8, v{r_+4}\nv_mul_u32_u24 v{r_+5}, 6, v{r_+4}\nv_sub_u32 v{r_+5}, v1, v{r_+5}")
        a(f"v_mul_u32_u24 v{r_+6}, 12, v{r_+5}\ns_lshl_b32 s5, s{WV}, 7\ns_add_u32 s6, s5, {L_RV}\nv_add_u32 v{r_+6}, s6, v{r_+6}")
        a(f"ds_read2_b32 {vr(r_,2)}, v{r_+6} offset0:0 offset1:1\nds_read_b32 v{r_+2}, v{r_+6} offset:8\nv_mov_b32 v{r_+3}, s33")
        a(f"v_mul_u32_u24 v{r_+4}, {8*WS}, v{r_+4}\nv_lshl_add_u32 v{r_+4}, v{r_+5}, 4, v{r_+4}")
        a(f"s_and_b32 s6, s2, 3\ns_lshl_b32 s6, s6, 6\ns_add_u32 s6, s6, s{RBF}\ns_mul_i32 s6, s6, {WS}\ns_add_u32 s5, s5, s6\ns_add_u32 s5, s5, {OIN}")
        a(f"s_mov_b32 exec_hi, 0xffff\ns_waitcnt lgkmcnt(0)\nbuffer_store_dwordx4 {vr(r_,4)}, v{r_+4}, {sr(R_WS,4)}, s5 offen sc1\ns_mov_b32 exec_hi, -1")
        a.label("L_ar_done")
        ffn_frags("wo", WK + 3)
        a(f"s_lshl_b32 s5, s{WV}, 7\ns_add_u32 s5, s5, s{SMY}\ns_add_u32 s5, s5, {OIN}\ns_add_u32 s40, s{KA(104)}, s5\ns_addc_u32 s41, s{KA(104)+1}, 0")
        a(f"s_lshl_b32 s5, s{WV}, 6\ns_add_u32 s5, s5, {L_OV}\nv_mov_b32 v{r_+16}, s5\ns_branch L_ap0")
        a.label("L_ap")
        if cfg.asl: a(f"s_sleep {cfg.asl}")
        a.label("L_ap0")
        a("s_load_dwordx16 s[44:59], s[40:41], 0 glc\ns_load_dwordx8 s[60:67], s[40:41], 64 glc")
        budget_check()
        a("s_waitcnt lgkmcnt(0)")
        for g in range(6): a(f"s_cmp_lg_u32 s{47+4*g}, s33\ns_cbranch_scc1 L_ap")
        a("s_mov_b64 exec, 1")
        for i in range(16):
            a(f"v_mov_b32 v{r_+i}, s{44 + 4*(i//3) + i%3}")
            if i % 4 == 3: a(f"ds_write_b128 v{r_+16}, {vr(r_+i-3,4)} offset:{(i-3)*4}")
        a("s_mov_b64 exec, -1")
        stamp(14, VST)
    xch_read(L_OV, 4, WK, VACT)
    gemv_pub([FWO, FWO + 16], 4, FD, FD + 16, YP)
    if not cfg.yrel: lds_signal(C_Y2 if cfg.yp >= 0 else C_Y, VCN, VONE)
    stamp(15, VST)
    a(f"s_cmp_lt_u32 s{ROLE}, 224\ns_cbranch_scc1 L_ffn")
    if cfg.yrel == 2: lds_signal(C_Y, VCN, VONE)
    a("s_branch L_fin")
    a.label("L_ffn")
    a(f"s_mov_b32 s{SMY}, s{SFY}")
    if cfg.yd >= 0:
        a(f"ds_read_b32 v{WK}, v{VCN} offset:{C_LC*4}\ns_waitcnt lgkmcnt(0)\nv_readfirstlane_b32 s34, v{WK}\ns_add_u32 s34, s34, {cfg.yd}\ns_min_u32 s34, s34, {8 * (16 - cfg.nl0 - cfg.nmid - cfg.npre)}")
    A_AT, A_M, A_GS = WK + 5, FWO + 30, FWO + 31
    a(f"v_and_b32 v{WK}, 3, v1\nv_mul_u32_u24 v{WK+3}, 320, v{WK}\nv_add_u32 v{A_AT}, v{WK+3}, v{VACT}")
    a(f"v_bfe_u32 v{WK+3}, v1, 2, 3\nv_mul_u32_u24 v{WK+3}, {WS}, v{WK+3}\nv_lshl_add_u32 v{A_M}, v{WK}, 4, v{WK+3}\ns_and_b32 s5, s{ROLE}, 0xf8\ns_mul_i32 s5, s5, {WS}\nv_add_u32 v{A_M}, s5, v{A_M}")
    a(f"s_lshl_b32 s36, s{WV}, 8\ns_add_u32 s36, s36, s{SMY}\ns_add_u32 s36, s36, {GUP}\nv_lshlrev_b32 v{A_GS}, 2, v1")
    a(f"s_lshl_b32 s37, s{WV}, 4\ns_add_u32 s37, s37, s{SMY}\ns_add_u32 s37, s37, {MOM}")
    a(f"s_lshl_b32 s5, s{WV}, 6\ns_add_u32 s5, s5, {L_HHV}\nv_add_u32 v{VB}, s5, v{TB}")
    def store_gl(data, vaddr, soff):
        if cfg.elocal:
            Lf = a.newlabel("L_far"); Lj = a.newlabel("L_stj")
            a(f"s_cmp_eq_u32 s15, 0\ns_cbranch_scc1 {Lf}")
            a(f"buffer_store_dwordx4 {vr(data,4)}, {vaddr}, {sr(R_WS,4)}, {soff} {cfg.lfl}")
            a.label(Lj)
            def far():
                a.label(Lf); a(f"buffer_store_dwordx4 {vr(data,4)}, {vaddr}, {sr(R_WS,4)}, {soff} sc1\ns_branch {Lj}")
            deferred.append(far)
        else: a(f"buffer_store_dwordx4 {vr(data,4)}, {vaddr}, {sr(R_WS,4)}, {soff} sc1")
    if cfg.elocal and cfg.epre == 2: e_preread(FWO + 29)
    def dnf():
        a("s_barrier")
        ffn_frags("dn", WK + 3)
    def gu_frags():
        for name in ("gate", "up"):
            if name in late: ffn_frags(name, WK + 3)
    if cfg.lp:
        h2 = FD + 24
        a(f"s_cmp_lg_u32 s{WV}, 3\ns_cbranch_scc1 L_lb_done")
        lb_setup(h2)
        a.label("L_lb")
        lb_issue(h2)
        budget_check()
        a(f"s_cmp_ge_u32 s88, {P31 + 8 * (cfg.p6 - cfg.lstop)}\ns_cbranch_scc1 L_lb_done\ns_waitcnt vmcnt(0)")
        lb_finish(h2)
        a("s_branch L_lb")
        a.label("L_lb_done")
    if cfg.bgate == 1: gu_frags()
    if cfg.nb: lds_wait(C_UP, cfg.nb, WK, VCN, sleep=0)
    if cfg.yd >= 0:
        lds_wait(C_LC, "s34", WK, VCN)
    if cfg.p6 >= 0: lds_wait(C_P6, 8, WK, VCN)
    if cfg.ackB: a("s_waitcnt vmcnt(0)")
    stamp(29, VST)
    a.c("hand-off 4: y for this wave's 32 columns; x2 = x + ga*y; rows hi/lo(x2*(1+cb)), 1+cb, sb feed one MFMA pass")
    gather([(FWO + 4 * i, 4, A_Y, YP + i * 64 * WS, None) for i in range(4)], WK, kind="byte", between=dnf if cfg.efirst == 3 else gu_frags if cfg.bgate == 2 else None, acc=FWO + 24, masked=bool(cfg.bmask))
    if cfg.yrel == 2: lds_signal(C_Y, VCN, VONE)
    stamp(16, VST)
    col_reduce(FWO + 24)
    y_ = FWO + 24
    rnd(y_, y_); a(f"v_mul_f32 v{y_}, v{y_}, v{K_GA}"); rnd(y_, y_); a(f"v_add_f32 v{K_X}, v{K_X}, v{y_}"); rnd(K_X, K_X)
    st_ = FWO + 28; mo = FWO
    a(f"v_mov_b32 v{st_}, v{K_X}\nv_mul_f32 v{y_}, v{K_X}, v{K_C1}")
    a(f"v_mul_f32_dpp v{st_}, v{K_X}, v{K_X} quad_perm:[0,1,2,3] row_mask:0xf bank_mask:0xc\nv_mov_b32 v{st_+1}, v{st_}")
    rnd(y_ + 1, y_)
    a(f"s_nop 0\nv_permlane32_swap_b32 v{st_}, v{st_+1}\nv_add_f32 v{st_}, v{st_}, v{st_+1}\nv_mov_b32 v{st_+1}, v{st_}")
    a(f"v_subrev_f32_dpp v{y_}, v{y_+1}, v{y_} quad_perm:[0,1,2,3] row_mask:0xf bank_mask:0xc")
    rnd(y_, y_)
    a(f"v_permlane16_swap_b32 v{st_}, v{st_+1}\nv_add_f32 v{st_}, v{st_}, v{st_+1}")
    a(f"ds_write_b16_d16_hi v{VAW}, v{y_}")
    xreduce("v_add_f32", st_, None, ("quad_perm:[1,0,3,2]", "quad_perm:[2,3,0,1]", "row_half_mirror"))
    a(f"v_and_b32 v{mo}, v{st_}, v{BT}\nv_sub_f32 v{mo+1}, v{st_}, v{mo}")
    tagit(mo, mo, 0)
    a(f"v_mov_b32_dpp v{mo+2}, v{st_} row_ror:8 {DPPF}\nv_mov_b32_dpp v{mo+3}, v{mo+1} row_ror:8 {DPPF}")
    tagit(mo + 1, mo + 1, 1); tagit(mo + 2, mo + 2, 2); tagit(mo + 3, mo + 3, 3)
    a("s_mov_b64 exec, 1")
    store_gl(mo, "off", "s37")
    a("s_mov_b64 exec, -1")
    if cfg.efirst == 4: dnf()
    stamp(22, VST)
    frs = [FG, FG + 16, FU, FU + 16]; dacc = FWO; out = FWO + 16
    mg = FWO + 24
    mload = f"buffer_load_dwordx4 {vr(mg,4)}, v{A_M}, {sr(R_WS,4)}, s34 offen sc1"
    a(f"s_mov_b32 s34, {MOM}")
    if cfg.bgate == 0: gu_frags()
    xch_read(L_AT, 4, WK + 3, A_AT, two=True)
    for cg in range(5):
        if cg < 4:
            if cg > 1: a("s_mov_b64 exec, -1")
            if cg == cfg.mfirst: a(mload)
            for kk in range(4): mfma(dacc + 4 * cg, ACT + 4 * kk, frs[cg] + 4 * kk, kk == 0)
            if cg == 0:
                for k in range(4): a(f"v_mov_b32 v{out+4+k}, s{TB0+k}")
        if cg >= 1:
            d = dacc + 4 * (cg - 1)
            setexec(0xffff << (16 * (cg - 1)))
            a(f"v_add_f32 v{out}, v{d}, v{d+1}\nv_pk_mov_b32 {vr(out+2,2)}, {vr(d+2,2)}, {vr(d+2,2)} op_sel:[0,1]")
    a("s_mov_b64 exec, -1")
    if cfg.mfirst < 4: a("s_branch L_mchk")
    a.label("L_mld")
    a(mload); budget_check()
    a.label("L_mchk")
    a("s_waitcnt vmcnt(0)")
    for k in range(4): a(f"v_xor_b32 v{mg+k}, s{TB0+k}, v{mg+k}")
    a(f"v_or3_b32 v{WK}, v{mg}, v{mg+1}, v{mg+2}\nv_or_b32 v{WK}, v{WK}, v{mg+3}\nv_and_b32 v{WK}, 0xff, v{WK}\nv_cmp_ne_u32 vcc, 0, v{WK}\ns_cbranch_vccnz L_mld")
    stamp(27, VST)
    a.c('layer norm 2 applied after the GEMV: g,u partial = rstd * (A1 - mean * A2) + A3')
    a(f"v_add_f32 v{mg}, v{mg}, v{mg+1}\ns_mov_b32 exec_lo, 0\nv_add_f32 v{mg}, v{mg+2}, v{mg+3}\ns_mov_b32 exec_lo, -1")
    xreduce("v_add_f32", mg, mg + 1, (16, 8, 4, 2, 1))
    a(f"v_mul_f32 v{mg}, {f2u(1.0/1024):#x}, v{mg}\nv_mov_b32 v{mg+1}, v{mg}\nv_permlane32_swap_b32 v{mg}, v{mg+1}")
    a(f"v_fma_f32 v{mg+1}, -v{mg}, v{mg}, v{mg+1}"); rnd(mg, mg)
    a(f"v_max_f32 v{mg+1}, 0, v{mg+1}\nv_fma_f32 v{out}, -v{mg}, v{out+2}, v{out}")
    den_from_var(mg + 1, mg + 2)
    a(f"v_fma_f32 v{out}, v{out}, v{mg+2}, v{out+3}\nv_and_b32 v{out}, v{out}, v{BT}")
    for k in range(4): a(f"v_or_b32_dpp v{out+4+k}, v{out}, v{out+4+k} quad_perm:[{k},{k},{k},{k}] {DPPF}")
    setexec(0x1111111111111111)
    store_gl(out + 4, f"v{A_GS}", "s36 offen")
    a("s_mov_b64 exec, -1")
    stamp(23, VST)
    eg = [(FG + 4 * i, 4, A_E, GUP + i * 4 * WS, None) for i in range(2)]
    if not cfg.efirst: dnf()
    if cfg.ackE: a("s_waitcnt vmcnt(0)")
    stamp(17, VST)
    a.c('hand-off 5 (inside the group of 8): g, u -> gelu_tanh(g) * u -> z partial = hh @ down tile')
    gather(eg, WK, kind="byte", masked=cfg.efirst == 1, between=dnf if cfg.efirst == 1 else None, acc=FU)
    if cfg.efirst == 2: dnf()
    stamp(18, VST)
    g_ = FU
    a(f"v_permlane32_swap_b32 v{g_}, v{g_+1}\nv_permlane32_swap_b32 v{g_+2}, v{g_+3}\nv_add_f32 v{g_}, v{g_}, v{g_+1}\nv_add_f32 v{g_+2}, v{g_+2}, v{g_+3}")
    a(f"v_permlane16_swap_b32 v{g_}, v{g_+2}\nv_add_f32 v{g_}, v{g_}, v{g_+2}")
    rnd(g_, g_)
    k2 = -2.0 * 0.7978845608028654 * LOG2E
    a(f"v_mul_f32 v{g_+2}, v{g_}, v{g_}\nv_mul_f32 v{g_+3}, {f2u(k2):#x}, v{g_}\nv_mul_f32 v{g_+2}, {f2u(0.044715):#x}, v{g_+2}\nv_fma_f32 v{g_+2}, v{g_+2}, v{g_+3}, v{g_+3}")
    a(f"v_exp_f32 v{g_+2}, v{g_+2}\nv_mov_b32_dpp v{g_+1}, v{g_} row_ror:8 {DPPF}\nv_add_f32 v{g_+2}, 1.0, v{g_+2}\nv_rcp_f32 v{g_+2}, v{g_+2}\nv_mul_f32 v{g_}, v{g_}, v{g_+2}")
    rnd(g_, g_); a(f"v_mul_f32 v{g_}, v{g_}, v{g_+1}")
    setexec(0x00ff00ff00ff00ff)
    rnd(g_, g_)
    a(f"ds_write_b16_d16_hi v{VB}, v{g_}\ns_mov_b64 exec, -1")
    xch_read(L_HHV, 4, WK, VACT)
    gemv_pub([FD, FD + 16], 4, FG, FG + 8, ZP)
    stamp(19, VST)
    if cfg.clean:
        a(f"v_lshlrev_b32 v{WK+3}, 2, v1")
        setexec(0x1111111111111111)
        a(f"buffer_store_dwordx4 {vr(out+4,4)}, v{WK+3}, {sr(R_WS,4)}, s36 offen sc1\ns_mov_b64 exec, 1\nbuffer_store_dwordx4 {vr(out+4,4)}, off, {sr(R_WS,4)}, s37 sc1")
        a(f"s_mul_i32 s5, s30, {WS}\ns_lshr_b32 s6, s2, 3\ns_lshl_b32 s6, s6, 2\ns_add_u32 s5, s5, s6\nbuffer_store_dword v{out+4}, off, {sr(R_WS,4)}, s5 offset:{BRD} sc1\ns_mov_b64 exec, -1")
    a(f"s_lshr_b32 s5, s{ROLE}, 3\ns_cmp_lg_u32 s5, {cfg.dgrp}\ns_cbranch_scc1 L_fin")
    a.c('hand-off 6: z over the 28 groups; out = x2 + gb * z')
    for i in range(4): a(f"v_mov_b32 v{FU+12+i}, 0")
    a("s_lshl_b32 s36, s32, 1")
    stamp(26, VST)
    if cfg.ackD: a("s_waitcnt vmcnt(0)")
    if cfg.dsl: a(f"s_sleep {cfg.dsl}")
    gather([(FU + 4 * i, 4, A_Z, ZP + i * 64 * WS, None if i < 3 else 0xffffffff) for i in range(4)], WK, kind="byte", masked=False, acc=FU + 16)
    stamp(24, VST)
    z_ = FU + 16
    col_reduce(z_)
    rnd(z_, z_); a(f"v_mul_f32 v{z_}, v{z_}, v{K_GB}"); rnd(z_, z_); a(f"v_add_f32 v{z_}, v{K_X}, v{z_}")
    setexec(0x00ff00ff00ff00ff)
    rnd(z_, z_)
    a(f"buffer_store_short_d16_hi v{z_}, v{TB}, {sr(R_OUT,4)}, s36 offen" + (" sc1" if cfg.outsc else "") + "\ns_mov_b64 exec, -1")
    stamp(25, VST)
    a.label("L_fin")
    if cfg.stamps:
        a(f"s_lshl_b32 s5, s2, 11\ns_lshl_b32 s6, s3, 7\ns_add_u32 s5, s5, s6\ns_add_u32 s5, s5, 0x8000000\nv_lshlrev_b32 v2, 2, v1")
        a(f"s_mov_b32 exec_hi, 0\nbuffer_store_dword v{VST}, v2, {sr(R_WS,4)}, s5 offen sc1")
    a("s_endpgm")
    a.c('retry paths of the gathers (only the lanes still missing are loaded again)')
    for f in deferred: f()
    a.label("L_end")
    body = "\n".join(hazard.run(a.l)) + "\n"
    txt = wrap(body, 256, 768, LDS_BYTES, 168, extra_desc="  .amdhsa_float_denorm_mode_32 3\n")
    return txt.replace(".amdgcn_target", DOC + ".amdgcn_target", 1)

if __name__ == "__main__":
    out = sys.argv[1]
    kw = {}
    for x in sys.argv[2:]:
        k, v = x.split("="); kw[k] = int(v) if v.lstrip("-").isdigit() else v
    open(out, "w").write(gen(Cfg(**kw)))
```

```python
import sys, os, struct
from asmgen import *
import hazard

def f2u(x): return struct.unpack("<I", struct.pack("<f", x))[0]
LOG2E = 1.4426950408889634

class Cfg:
    D1 = 3; D2 = 3; DV = 6; D3 = 3
    stamps = False
    spin_budget = 1 << 18
    pre1 = "crit,wq,mod1,mod2"
    pre2 = ""
    mid = ""
    late = "wo,gate,up,dn"
    nl0 = 3
    nl2 = 0
    p1 = 8; p2 = 23; p3 = 22
    ackB = 1; ackE = 0; ackD = 1
    bgate = 1
    outsc = 1
    give = 0
    gx = 1
    heavy = "1235"
    ereuse = 1
    warm0 = 0
    pad = 0
    lp = 0
    Lmin = 2; Lmax = 5; lth = -12; lstop = 2
    dbgm = 0
    lsl = 1
    cprio = 3
    yb = 0
    yp = -1
    xp = ""
    rot = 0
    pb = 3
    wg = 0
    xm = 1
    kvl = "X"
    hstop = 4
    NS = 32
    steal = 0
    sa = 18; sb = 21; p9 = 8
    D3b = 3; kb = 99
    clean = 0
    lfl = ""
    npre = 0
    qm = 0
    pm = 19
    dbgh = 0
    ared = 0
    asl = 2; apm = 2
    ofirst = 1
    bmask = 1
    D4 = 63
    ot = 2
    hd = 0
    hint = 0
    yd = -1
    pv = 31
    cdone = 32
    pmin = 3
    mfirst = 2
    nq2 = 0
    nmid = 0
    D0 = 3; n0 = 0
    ktouch = 0
    dsl = 0
    dgrp = 0
    warm = 0
    nb = 0
    p5 = 8
    p6 = 12
    ysl = 1
    efirst = 0
    bal = 2
    Dmin = 2; Dmax = 5; th = -12; balk = 0; DVmax = 6; Kmin = 2; Kmax = 4; hl = 2
    yrel = 0
    zt = 3
    elocal = 1
    epre = 2
    role = 1
    p4 = 18
    touch = 0
    def __init__(self, **kw):
        for k, v in kw.items():
            assert hasattr(self, k), k
            setattr(self, k, v)

QP, HP = 0, 512
TKT = 1024
OIN = 9472
INB = 9344
CLM = 1408
BRD = 1280
MODP = 2048
YP, ZP, OP, GUP, MOM = 3072, 3584, 4096, 8192, 9216
MODF = 6 << 20
XCP = MODF + 65536
MLA = MODF + 131072
QF = MODF + 196608
EPOCH = 8 << 20
L_MOD, L_WQ, L_UP, L_DN, L_WO, L_GATE, L_MISC = 0, 0xC000, 0, 0x8000, 0x14000, 0x1C000, 0x24000
L_OS = L_DN
L_CNT = L_MISC
(C_CRIT, C_WQ, C_MOD1, C_MOD2, C_WO, C_GATE, C_UP, C_DN, C_Q, C_H, C_ML, C_MLD, C_CLR, C_P1, C_P2, C_P3, C_Y, C_OR, C_ROLE, C_P4, C_T, C_TK, C_P5, C_P6, C_P7, C_P8, C_LC, C_PM, C_PA, C_PB, C_DEC, C_MOD3, C_P9, C_PAD, C_AI, C_Y2) = range(36)
L_QV = L_MISC + 0x100
L_HV = L_MISC + 0x900
L_HHV = L_MISC + 0xA00
L_OV = L_MISC + 0xB00
L_RV = L_MISC + 0x1700
L_SIL = L_MISC + 0xC00
L_MLW = L_MISC + 0xE00
L_MLF = L_MISC + 0x1000
L_AT = L_MISC + 0x1100
LDS_BYTES = 160 * 1024

DOC = """;
; One persistent launch, 256 workgroups (one per CU) x 12 waves.
;   waves 0..7  stream all big operands (nt loads): w_mod, wq tiles -> LDS, K -> registers, V -> registers, wo/gate/up/down tiles -> LDS,
;               and do QK^T, the exact two-pass softmax (true global max, exchanged between the 64 splits of a kv head) and PV with MFMA.
; Hand-offs are self-validating: 16-B granules carry this launch's tag (derived from the word the previous launch left in d_ws) in the low
; byte of every dword, or slots are cleared to a sentinel first and read only after the owner's tagged flag. Stores are write-through (sc1);
"""
def is_reducer(w): return w < 8
def vr(a, n=1): return f"v{a}" if n == 1 else f"v[{a}:{a+n-1}]"
def sr(a, n=1): return f"s{a}" if n == 1 else f"s[{a}:{a+n-1}]"

def gen(cfg):
    a = Asm()
    WS = 10112
    BUD = 4
    lst = lambda x: [t for t in x.split(",") if t]
    def srd_load(r, karg_off): a(f"s_load_dwordx2 {sr(r,2)}, s[0:1], {karg_off}")
    def srd_fin(r, nbytes): a(f"s_mov_b32 s{r+2}, {nbytes}\ns_mov_b32 s{r+3}, 0x20000")
    def rnd(d, s): a(f"v_cvt_pk_bf16_f32 v{d}, 0, v{s}")
    def setexec(m): a(f"s_mov_b32 exec_lo, {m & 0xffffffff:#x}\ns_mov_b32 exec_hi, {m >> 32:#x}")
    def stamp(idx, vreg):
        if cfg.stamps == 1 or (cfg.stamps == 2 and idx == 25): a(f"s_memrealtime s[98:99]\ns_waitcnt lgkmcnt(0)\nv_writelane_b32 v{vreg}, s98, {idx}")
    def budget_check(): a(f"s_sub_u32 s{BUD}, s{BUD}, 1\ns_cbranch_scc1 L_end")
    def lds_wait(cnt, target, vtmp, vaddr, sleep=1):
        L = a.newlabel("L_lw"); Ld = a.newlabel("L_lwd")
        a.label(L)
        a(f"ds_read_b32 v{vtmp}, v{vaddr} offset:{cnt*4}\ns_waitcnt lgkmcnt(0)\nv_readfirstlane_b32 s5, v{vtmp}")
        a(f"s_cmp_ge_u32 s5, {target}\ns_cbranch_scc1 {Ld}")
        if sleep: a(f"s_sleep {sleep}")
        budget_check()
        a(f"s_branch {L}")
        a.label(Ld)
    def lds_signal(cnt, vaddr, vone):
        a(f"s_mov_b64 exec, 1\nds_add_u32 v{vaddr}, v{vone} offset:{cnt*4}\ns_mov_b64 exec, -1")
    DPPF = "row_mask:0xf bank_mask:0xf"
    def xreduce(op, v, t, steps):
        for s in steps:
            if s in (1, 2, 4, 8): a(f"{op}_dpp v{v}, v{v}, v{v} row_ror:{s} {DPPF}")
            elif s == 16: a(f"v_mov_b32 v{t}, v{v}\nv_permlane16_swap_b32 v{v}, v{t}\n{op} v{v}, v{v}, v{t}")
            elif s == 32: a(f"v_mov_b32 v{t}, v{v}\nv_permlane32_swap_b32 v{v}, v{t}\n{op} v{v}, v{v}, v{t}")
            else: a(f"{op}_dpp v{v}, v{v}, v{v} {s} {DPPF}")

    a.label("L_start")
    a("s_load_dwordx16 s[68:83], s[0:1], 0\ns_load_dwordx8 s[84:91], s[0:1], 64\ns_load_dwordx4 s[92:95], s[0:1], 96")
    KA = lambda off: 68 + off // 4
    a("s_cmp_ge_u32 s2, 256\ns_cbranch_scc1 L_end")
    a("v_lshrrev_b32 v2, 6, v0\nv_and_b32 v1, 63, v0")
    a("v_readfirstlane_b32 s3, v2")
    a(f"s_mov_b32 s{BUD}, {cfg.spin_budget}")
    if cfg.stamps: a("s_memrealtime s[96:97]")
    a("s_cmp_ge_u32 s3, 8\ns_cbranch_scc1 L_cwave")

    R_MOD, R_WQ, R_WO, R_G, R_U, R_DN, R_K, R_V, R_WSS = 8, 12, 16, 20, 24, 28, 32, 36, 40
    VK, VV, VGU, VDN, VCN, VONE = 2, 3, 4, 5, 6, 7
    Q0, T0, DT, KV = 8, 16, 32, 40
    VMOD, VWQ, VST = 16, 17, 0
    VM = [VMOD]
    SB_MOD, SB_WQ, SB_WO, SB_GU, SB_DN, SB_KV, SO, SL, SL4 = 44, 45, 46, 47, 48, 49, 50, 51, 56
    def srd(r, off, nbytes): a(f"s_mov_b64 {sr(r,2)}, {sr(KA(off),2)}\ns_mov_b32 s{r+2}, {nbytes}\ns_mov_b32 s{r+3}, 0x20000")
    a.c('================= stream waves (0..7): every large load, QK^T, softmax, PV =================')
    a.c("lane offsets and scalar bases of this wave's share of the w_mod / wq tiles (16-B chunks swizzled for the transposing LDS reads)")
    a("v_and_b32 v32, 15, v1\nv_lshrrev_b32 v33, 4, v1\nv_lshlrev_b32 v34, 1, v33\nv_xor_b32 v34, v34, v32\nv_lshlrev_b32 v34, 4, v34")
    a(f"v_mul_u32_u24 v{VMOD}, 12288, v33\nv_add_u32 v{VMOD}, v{VMOD}, v34\ns_and_b32 s63, s3, 1\ns_lshl_b32 s63, s63, 7\nv_xor_b32 v{VMOD}, s63, v{VMOD}")
    a(f"v_lshl_add_u32 v{VWQ}, v33, 13, v34")
    a(f"s_lshr_b32 s5, s2, 4\ns_lshl_b32 s5, s5, 6\ns_lshl_b32 s6, s3, 3\ns_add_u32 s5, s5, s6\ns_mul_i32 s5, s5, 12288")
    a(f"s_and_b32 s6, s2, 15\ns_lshl_b32 s6, s6, 8\ns_add_u32 s{SB_MOD}, s5, s6\ns_lshl_b32 s{SL}, s3, 11\ns_lshl_b32 s{SL4}, s3, 12")
    a("s_and_b32 s52, s2, 7\ns_lshr_b32 s53, s2, 3")
    a(f"s_lshl_b32 s5, s52, 7\ns_lshl_b32 s57, s3, 4\ns_add_u32 s54, s5, s57")
    a(f"s_lshl_b32 s5, s54, 13\ns_lshl_b32 s55, s53, 8\ns_add_u32 s{SB_WQ}, s5, s55")
    a("s_waitcnt lgkmcnt(0)")
    srd(R_MOD, 80, 12582912); srd(R_WQ, 24, 8388608)
    def rest_of_setup():
        a(f"v_mul_u32_u24 v{VGU}, 7168, v33\nv_add_u32 v{VGU}, v{VGU}, v34\nv_lshl_add_u32 v{VDN}, v33, 11, v34\nv_lshlrev_b32 v{VV}, 4, v1")
        a(f"v_and_b32 v35, 2, v32\nv_lshlrev_b32 v35, {dict(X=(12 + cfg.pb if cfg.pb >= cfg.wg else 9 + cfg.pb), W=16).get(cfg.kvl, 12)}, v35\nv_lshrrev_b32 v36, 2, v32\nv_lshl_add_u32 v35, v36, 8, v35")
        a(f"v_and_b32 v36, 1, v32\nv_lshl_add_u32 v35, v36, 6, v35\nv_lshl_add_u32 v{VK}, v33, 4, v35")
        a(f"v_mov_b32 v{VCN}, {L_CNT}\nv_mov_b32 v{VONE}, 1")
        a(f"s_lshr_b32 s5, s2, 6\ns_lshl_b32 s5, s5, 3\ns_add_u32 s5, s5, s52\ns_lshl_b32 s5, s5, 7\ns_add_u32 s5, s5, s57\ns_lshl_b32 s5, s5, 11")
        a(f"s_and_b32 s6, s53, 7\ns_lshl_b32 s6, s6, 8\ns_add_u32 s{SB_WO}, s5, s6")
        a(f"s_and_b32 s5, s2, 3\ns_lshl_b32 s5, s5, 24")
        xp = str(cfg.xp) or ("345672" if cfg.xm else "234567")
        for k, ch in enumerate(xp):
            a(f"s_bfe_u32 s6, s2, {0x10000 | int(ch):#x}\ns_lshl_b32 s6, s6, {18 + k}\ns_add_u32 s5, s5, s6")
        a(f"s_lshl_b32 s6, s3, {10 + cfg.wg}\ns_add_u32 s{SB_KV}, s5, s6")
        if cfg.rot:
            assert cfg.wg == 0
            a(f"s_mul_i32 s6, s2, {cfg.rot}\ns_lshr_b32 s6, s6, 3\ns_and_b32 s6, s6, {31 & ~(1 << cfg.pb)}\ns_lshl_b32 s6, s6, 13\ns_or_b32 s{SB_KV}, s{SB_KV}, s6")
        srd(R_WO, 32, 8388608); srd(R_K, 8, 67108864); srd(R_V, 16, 67108864)
        for r, off in ((R_G, 48), (R_U, 56), (R_DN, 64)): srd(r, off, 0)
        if cfg.stamps:
            srd(R_WSS, 104, 0x10000000); a(f"v_mov_b32 v{VST}, 0\nv_writelane_b32 v{VST}, s96, 0")
        a("s_mov_b32 s58, 0x05040100\ns_mov_b32 s59, 0x07060302")
        a("s_barrier")
    issued = []; done = [0]; tiles = {}; signalled = set(); setup = [False]
    TN = dict(crit=2, wq=4, mod1=2, mod2=2, mod3=2, wo=4, gate=4, up=4, dn=4)
    TC = dict(mod3=C_MOD3, crit=C_CRIT, wq=C_WQ, mod1=C_MOD1, mod2=C_MOD2, wo=C_WO, gate=C_GATE, up=C_UP, dn=C_DN)
    def wait_n(n):
        if len(issued) - done[0] > n:
            a(f"s_waitcnt vmcnt({n})"); done[0] = len(issued) - n
            for name, ids in tiles.items():
                if name not in signalled and len(ids) == TN[name] and max(ids) < done[0]:
                    lds_signal(TC[name], VCN, VONE); signalled.add(name)
                    if name in ("wo", "up"): stamp({"wo": 20, "up": 21}[name], VST)
    def wait_id(i): wait_n(len(issued) - 1 - i)
    def dma(name, i, D):
        srd_, voff, sb, step, lbase, lsreg = {
            "crit": (R_MOD, VMOD, SB_MOD, 4 * 12288, L_MOD, SL), "mod1": (R_MOD, VM[0], SB_MOD, 4 * 12288, 0x10000 if cfg.dbgm else L_MOD + 16384, SL),
            "mod3": (R_MOD, VMOD, SB_MOD, 4 * 12288, L_WO, SL),
            "mod2": (R_MOD, VM[0], SB_MOD, 4 * 12288, 0x10000 if cfg.dbgm else L_MOD + 32768, SL), "wq": (R_WQ, VWQ, SB_WQ, 4 * 8192, L_WQ, SL4),
            "wo": (R_WO, VDN, SB_WO, 4 * 2048, L_WO, SL4), "gate": (R_G, VGU, SB_GU, 4 * 7168, L_GATE, SL4),
            "up": (R_U, VGU, SB_GU, 4 * 7168, L_UP, SL4), "dn": (R_DN, VDN, SB_DN, 4 * 2048, L_DN, SL4)}[name]
        extra = {"mod1": 4096, "mod2": 8192, "mod3": 8192}.get(name, 0)
        if len(issued) >= min(D, 6) and not setup[0]:
            setup[0] = True; rest_of_setup()
            if cfg.ktouch:
                a(f"s_mov_b64 exec, 1\ns_mov_b32 m0, {L_MISC + 0x2000}")
                for r in (R_K, R_V): a(f"buffer_load_dword off, {sr(r,4)}, s{SB_KV} nt lds"); issued.append("t")
                a("s_mov_b64 exec, -1")
        a(f"s_add_u32 m0, s{lsreg}, {lbase + i*1024}\ns_add_u32 s{SO}, s{sb}, {i*step + extra}")
        wait_n(D - 1)
        a(f"buffer_load_dwordx4 v{voff}, {sr(srd_,4)}, s{SO} offen nt lds")
        if name in ("wq", "wo", "gate", "up", "dn") and i in (1, 3): a(f"v_xor_b32 v{voff}, 0x80, v{voff}")
        tiles.setdefault(name, []).append(len(issued)); issued.append(name)
    kid = {}; vid = {}; cur_so = [None]
    def kvload(srd_, voff, off, dst, D):
        so = off & ~0xfff
        if cur_so[0] != so:
            a(f"{'s_xor_b32' if cfg.rot else 's_add_u32'} s60, s{SB_KV}, {so}"); cur_so[0] = so
        if D: wait_n(D - 1)
        a(f"buffer_load_dwordx4 {vr(dst,4)}, v{voff}, {sr(srd_,4)}, s60 offen offset:{off & 0xfff} nt")
        issued.append("kv"); return len(issued) - 1
    CH = lambda ci: ((ci >> cfg.wg) << (13 + cfg.wg)) + ((ci & ((1 << cfg.wg) - 1)) << 10)
    INS = lambda n, pi: ((n >> cfg.pb) << (cfg.pb + 1)) | (pi << cfg.pb) | (n & ((1 << cfg.pb) - 1))
    def kload(n, u, D): kid[(n, u)] = kvload(R_K, VK, (CH(INS(n, 0)) if cfg.kvl == 'X' else CH(n) if cfg.kvl == 'W' else n * 16384) + u * 128, KV + 8 * n + 4 * u, D)
    VI = (lambda G, n: 16 * (G >> 1) + 2 * n + (G & 1)) if cfg.kvl == "S" else (lambda G, n: 8 * G + n)
    def vslot(i): return KV + 4 * (i if i < cfg.NS else VI(0, i - cfg.NS))
    def vload(i, D): vid[i] = kvload(R_V, VV, CH(INS(8 * (i >> 4) + (i & 7), (i >> 3) & 1)) if cfg.kvl == 'X' else CH(i) if cfg.kvl != 'Y' else (8 * (i >> 4) + (i & 7)) * 16384 + ((i >> 3) & 1) * 8192, vslot(i), D)
    def paced(cnt, k, vt, Dmin, Dmax, th=None):
        th = cfg.th if th is None else th
        a(f"s_mov_b64 exec, 1\nds_add_rtn_u32 v{vt}, v{VCN}, v{VONE} offset:{cnt*4}\ns_mov_b64 exec, -1")
        wait_n(Dmax - 1)
        go = a.newlabel("L_go")
        a(f"s_waitcnt lgkmcnt(0)\nv_readfirstlane_b32 s5, v{vt}\ns_cmp_gt_i32 s5, {8*k + th}\ns_cselect_b64 vcc, -1, 0\ns_cbranch_scc1 {go}\ns_waitcnt vmcnt({Dmin - 1})")
        a.label(go)
    D1, D2 = cfg.D1, cfg.D2
    for name in lst(cfg.pre1):
        if cfg.steal and name == "mod2": continue
        if cfg.give and name == "mod2":
            a(f"s_and_b32 s61, s2, 15\ns_mov_b32 s62, {cfg.give}\ns_bitcmp1_b32 s62, s61\ns_cselect_b32 s{R_MOD+2}, 0, s{R_MOD+2}")
            for i in range(2): dma("mod2", i, D1)
            a(f"s_xor_b32 s61, s61, {cfg.gx}\ns_bitcmp1_b32 s62, s61\ns_cbranch_scc0 L_notake\ns_xor_b32 s{SB_MOD}, s{SB_MOD}, {cfg.gx * 256}")
            for i in range(2):
                a(f"s_add_u32 m0, s{SL}, {L_WO + i*1024}\ns_add_u32 s{SO}, s{SB_MOD}, {i*4*12288 + 8192}\ns_waitcnt vmcnt({D1-1})\nbuffer_load_dwordx4 v{VMOD}, {sr(R_MOD,4)}, s{SO} offen nt lds")
            a.label("L_notake")
            continue
        for i in range(TN[name]): dma(name, i, cfg.D0 if len(issued) < cfg.n0 else D1)
    stamp(11, VST)
    a.c('K: 32 x 1 KiB per wave straight into MFMA A-operand layout (8 keys x 128 B per load), at most 3 in flight')
    for n in range(16):
        for u in range(2):
            if cfg.balk:
                paced(C_T, 2 * n + u, DT, cfg.Kmin, cfg.Kmax); kload(n, u, 0)
            else: kload(n, u, cfg.D0 if len(issued) < cfg.n0 else D1)
            if 2 * n + u == cfg.p1: lds_signal(C_P1, VCN, VONE)
            if 2 * n + u == cfg.p2: lds_signal(C_P2, VCN, VONE)
            if cfg.steal and 2 * n + u == cfg.sa: lds_signal(C_PA, VCN, VONE)
            if cfg.steal and 2 * n + u == cfg.sb: lds_signal(C_PB, VCN, VONE)
            if 2 * n + u == cfg.pm and cfg.qm: lds_signal(C_PM, VCN, VONE)
    for name in lst(cfg.pre2):
        for i in range(TN[name]): dma(name, i, D1)
    if cfg.steal:
        lds_wait(C_DEC, 1, DT, VCN)
        a(f"s_mov_b32 s61, s5\ns_mov_b32 s62, 12582912\ns_bitcmp1_b32 s61, 0\ns_cselect_b32 s{R_MOD+2}, s62, 0")
        for i in range(2): dma("mod2", i, D1)
        a(f"s_bitcmp1_b32 s61, 1\ns_cselect_b32 s{R_MOD+2}, s62, 0\ns_xor_b32 s{SB_MOD}, s{SB_MOD}, 1024")
        for i in range(2): dma("mod3", i, 63)
        if cfg.stamps == 1: a(f"v_writelane_b32 v{VST}, s61, 25")
    if cfg.dbgm: a(f"v_mov_b32 v{VK}, v{VMOD}"); VM[0] = VK
    for i in range(cfg.npre): dma("wo", i, D1)
    stamp(1, VST)
    a.c('wait for q (bf16, LDS), then S^T = K q^T; scores rounded to bf16, scaled, rounded again (as the reference does)')
    a(f"v_and_b32 v{DT+1}, 7, v1\nv_lshlrev_b32 v{DT+1}, 8, v{DT+1}\nv_and_b32 v{DT+2}, 8, v1\nv_lshl_add_u32 v{DT+1}, v{DT+2}, 3, v{DT+1}")
    a(f"v_lshrrev_b32 v{DT+2}, 4, v1\nv_lshl_add_u32 v{DT+1}, v{DT+2}, 4, v{DT+1}\nv_add_u32 v{DT+1}, {L_QV}, v{DT+1}")
    a(f"s_mov_b32 s61, {f2u(128 ** -0.5):#x}\ns_mov_b32 s62, {f2u(LOG2E):#x}")
    lds_wait(C_Q, 4, DT, VCN)
    stamp(2, VST)
    a(f"ds_read_b128 {vr(Q0,4)}, v{DT+1}\nds_read_b128 {vr(Q0+4,4)}, v{DT+1} offset:128\ns_waitcnt lgkmcnt(0)")
    nv = 0
    def fold(n):
        d = DT + 4 * (n & 1)
        a(f"v_add_f32_dpp v{T0+n}, v{d+1}, v{d} row_ror:8 row_mask:0xf bank_mask:0x3")
        a(f"v_add_f32_dpp v{T0+n}, v{d+2}, v{d+3} row_ror:8 row_mask:0xf bank_mask:0xc")
    def post(n):
        rnd(T0 + n, T0 + n); a(f"v_mul_f32 v{T0+n}, s61, v{T0+n}"); rnd(T0 + n, T0 + n)
    for n in range(16):
        wait_id(kid[(n, 1)])
        d = DT + 4 * (n & 1)
        a(f"v_mfma_f32_16x16x32_bf16 {vr(d,4)}, {vr(KV+8*n,4)}, {vr(Q0,4)}, 0")
        a(f"v_mfma_f32_16x16x32_bf16 {vr(d,4)}, {vr(KV+8*n+4,4)}, {vr(Q0+4,4)}, {vr(d,4)}")
        if n >= 1 and nv < D2 and n % 2 == 1:
            vload(nv, 0); nv += 1
        if n >= 2: post(n - 2)
        if n >= 1: fold(n - 1)
    for _ in range(cfg.nq2): vload(nv, 0); nv += 1
    fold(15); post(14); post(15)
    a.c("max of this wave's 128 keys per head, e = exp(s - max), sum -> LDS")
    M_, L_, X_ = DT, DT + 1, DT + 2
    a(f"v_max3_f32 v{M_}, v{T0}, v{T0+1}, v{T0+2}")
    for i in range(3, 15, 2): a(f"v_max3_f32 v{M_}, v{M_}, v{T0+i}, v{T0+i+1}")
    a(f"v_max_f32 v{M_}, v{M_}, v{T0+15}")
    xreduce("v_max_f32", M_, X_, (8, 16, 32))
    if cfg.ereuse:
        for i in range(16):
            a(f"v_sub_f32 v{T0+i}, v{T0+i}, v{M_}\nv_mul_f32 v{T0+i}, s62, v{T0+i}\nv_exp_f32 v{T0+i}, v{T0+i}")
            if i == 2: a(f"v_add_f32 v{L_}, v{T0}, v{T0+1}")
            if i > 2: a(f"v_add_f32 v{L_}, v{L_}, v{T0+i-1}")
        a(f"v_mov_b32 v{VK}, v{M_}\nv_add_f32 v{L_}, v{L_}, v{T0+15}")
    else:
        for i in range(16):
            e = DT + 4 + (i & 3)
            a(f"v_sub_f32 v{e}, v{T0+i}, v{M_}\nv_mul_f32 v{e}, s62, v{e}\nv_exp_f32 v{e}, v{e}")
            if i >= 1:
                p = DT + 4 + ((i - 1) & 3)
                a(f"v_mov_b32 v{L_}, v{p}" if i == 1 else f"v_add_f32 v{L_}, v{L_}, v{p}")
        a(f"v_add_f32 v{L_}, v{L_}, v{DT+7}")
    xreduce("v_add_f32", L_, X_, (8, 16, 32))
    a(f"s_lshl_b32 s5, s3, 6\ns_add_u32 s5, s5, {L_MLW}\nv_lshlrev_b32 v{X_}, 3, v1\nv_add_u32 v{X_}, s5, v{X_}")
    a(f"s_mov_b64 exec, 0xff\nds_write_b64 v{X_}, {vr(M_,2)}\ns_waitcnt lgkmcnt(0)")
    lds_signal(C_ML, VCN, VONE)
    stamp(3, VST)
    a.c('V into the freed K registers; a wave behind the class average keeps more loads in flight, one ahead keeps fewer')
    nv0 = nv
    while nv < cfg.NS:
        if cfg.bal:
            paced(C_T, nv - nv0 + (32 if cfg.balk else 0), DT, cfg.Dmin, cfg.Dmax); vload(nv, 0)
        else: vload(nv, D2)
        if nv == cfg.p3: lds_signal(C_P3, VCN, VONE)
        if nv == cfg.pv: lds_signal(C_P8, VCN, VONE)
        if cfg.steal and nv == cfg.p9: lds_signal(C_P9, VCN, VONE)
        if nv == cfg.p4 and cfg.role == 2: lds_signal(C_P4, VCN, VONE)
        nv += 1
    for name in lst(cfg.mid):
        for i in range(TN[name]): dma(name, i, D2)
    for name in lst(cfg.pre1) + lst(cfg.pre2) + (["mod3"] if cfg.steal else []): wait_id(max(tiles[name]))
    stamp(4, VST)
    a(f"v_and_b32 v{X_}, 7, v1\nv_lshlrev_b32 v{X_}, 3, v{X_}\nv_add_u32 v{X_}, {L_MLF}, v{X_}")
    lateq = [(name, i) for name in lst(cfg.late) for i in range(TN[name])]
    lateq = lateq[cfg.npre:]
    assert lateq[-4:] == [("dn", i) for i in range(4)]
    for _ in range(cfg.nmid):
        name, i = lateq.pop(0); assert name == "wo"; dma(name, i, 63)
    a.c('FFN role of this workgroup, then the global max and 1/sum; p = bf16(e * exp(wave max - global max) / global sum)')
    assert cfg.role != 2
    lds_wait(C_ROLE, 1, DT, VCN, sleep=0)
    a("s_sub_u32 s7, s5, 1")
    a("s_mov_b32 s5, 7340032\ns_cmp_lt_u32 s7, 224\ns_cselect_b32 s5, s5, 0")
    for r in (R_G, R_U, R_DN): a(f"s_mov_b32 s{r+2}, s5")
    a("s_and_b32 s52, s7, 7\ns_lshr_b32 s53, s7, 3")
    a(f"s_lshl_b32 s5, s52, 7\ns_add_u32 s5, s5, s57\ns_mul_i32 s5, s5, 7168\ns_lshl_b32 s6, s53, 8\ns_add_u32 s{SB_GU}, s5, s6")
    a(f"s_lshl_b32 s5, s53, 7\ns_add_u32 s5, s5, s57\ns_lshl_b32 s5, s5, 11\ns_lshl_b32 s6, s52, 8\ns_add_u32 s{SB_DN}, s5, s6")
    lds_wait(C_MLD, 5 if cfg.steal else 1, DT, VCN)
    stamp(5, VST)
    assert not any(t in cfg.pre1 + cfg.pre2 + cfg.mid for t in ("gate", "up", "dn"))
    a(f"ds_read_b64 {vr(M_,2)}, v{X_}\ns_waitcnt lgkmcnt(0)")
    if cfg.ereuse:
        a(f"v_sub_f32 v{M_}, v{VK}, v{M_}\nv_mul_f32 v{M_}, s62, v{M_}\nv_exp_f32 v{M_}, v{M_}\nv_mul_f32 v{M_}, v{M_}, v{L_}\nv_mov_b32 v{L_}, v{M_}")
        for i in range(0, 16, 2): a(f"v_pk_mul_f32 {vr(T0+i,2)}, {vr(T0+i,2)}, {vr(M_,2)}")
    else:
        for i in range(16):
            a(f"v_sub_f32 v{T0+i}, v{T0+i}, v{M_}\nv_mul_f32 v{T0+i}, s62, v{T0+i}\nv_exp_f32 v{T0+i}, v{T0+i}")
        for i in range(16): a(f"v_mul_f32 v{T0+i}, v{T0+i}, v{L_}")
    for i in range(8): a(f"v_cvt_pk_bf16_f32 v{Q0+i}, v{T0+2*i}, v{T0+2*i+1}")
    a("s_mov_b32 s64, 0x00ff00ff\ns_mov_b32 s65, 0x00ff00ff\ns_mov_b32 s66, 0xff00ff00\ns_mov_b32 s67, 0xff00ff00")
    ACC = T0
    PL = lambda G: DT
    PH = lambda G: DT + 4
    def pbuild(G):
        b, pi = (G & 1, G >> 1) if cfg.kvl == 'W' else (G >> 1, G & 1)
        for i in range(4): a(f"v_cndmask_b32 v{(PH if pi else PL)(G)+i}, 0, v{Q0+4*b+i}, s[{64+2*pi}:{65+2*pi}]")
        for i in range(4): a(f"v_mov_b32_dpp v{(PL if pi else PH)(G)+i}, v{(PH if pi else PL)(G)+i} row_ror:8 {DPPF}")
    stage = [KV + 120, KV + 124, KV + 120, KV + 124]
    sidx = 0
    def perm(dst, G, p, j):
        lo = vslot(VI(G, 2 * p)) + (j >> 1); hi = vslot(VI(G, 2 * p + 1)) + (j >> 1)
        a(f"v_perm_b32 v{dst}, v{hi}, v{lo}, s{58 + (j & 1)}")
    def pv(G, j, st):
        c = "0" if (G == 0 and j < 4) else vr(ACC + 4 * (j & 3), 4)
        a(f"v_mfma_f32_16x16x32_bf16 {vr(ACC+4*(j&3),4)}, {vr(st,4)}, {vr((PH if j >= 4 else PL)(G),4)}, {c}")
    a.c('O^T += V^T P^T: v_perm pairs up two keys per dword, heads sit in columns 0..7 (d%8 < 4) and 8..15 (d%8 >= 4)')
    for G in range(2 if cfg.kvl == "S" else 3):
        if cfg.NS == 32 and G == 0:
            assert cfg.kvl == "X"
            for i in range(4): a(f"v_cndmask_b32 v{DT+i}, 0, v{Q0+i}, s[64:65]")
            wait_id(vid[7])
            for j in range(8):
                if j == 4:
                    for i in range(4): a(f"v_mov_b32_dpp v{DT+i}, v{DT+i} row_ror:8 {DPPF}")
                st = (ACC + 12 if (j < 3 and j % 2 == 0) else DT + 4)
                for p in range(4): perm(st + p, G, p, j)
                c = "0" if j < 4 else vr(ACC + 4 * (j & 3), 4)
                a(f"v_mfma_f32_16x16x32_bf16 {vr(ACC+4*(j&3),4)}, {vr(st,4)}, {vr(DT,4)}, {c}")
            stage = [KV, KV + 4, KV + 8, KV + 12]
            continue
        pbuild(G)
        wait_id(vid[VI(G, 7)])
        for j in range(8):
            st = stage[sidx & 3]; sidx += 1
            for p in range(4): perm(st + p, G, p, j)
            pv(G, j, st)
            if G in (1, 2) and j % 2 == 0 and nv < 32:
                if cfg.bal:
                    sk = a.newlabel("L_dv")
                    a(f"s_cbranch_vccnz {sk}\ns_waitcnt vmcnt({cfg.DV - 1})")
                    a.label(sk)
                    vload(nv, cfg.DVmax)
                else: vload(nv, cfg.DV)
                if nv == cfg.pv:
                    lds_signal(C_P8, VCN, VONE)
                    if cfg.lp: lds_signal(C_T, VCN, VONE)
                nv += 1
    a(f"s_add_u32 s5, s{SL4}, {L_OS}\nv_add_u32 v{VV}, s5, v{VV}")
    order = [0, 4, 1, 5, 2, 6, 3, 7]
    n0 = min(cfg.nl0, len(lateq) - max(4, cfg.nl2))
    if cfg.kvl == "S":
        assert nv == 32 and cfg.NS == 30
        free = [KV + 4 * k for k in range(16) if k not in (VI(0, 0), VI(0, 1))] + [KV + 120, KV + 124]
        SGs = {2: free[:8], 3: free[8:]}
        pbuild(2)
        for p in range(3):
            wait_id(vid[VI(3, 2 * p + 1)])
            if p == 2:
                for _ in range((n0 + 1) // 2):
                    name, i = lateq.pop(0); dma(name, i, 63)
            for G in (2, 3):
                for j in range(8): perm(SGs[G][j] + p, G, p, j)
        wait_id(vid[29])
        for _ in range(n0 // 2):
            name, i = lateq.pop(0); dma(name, i, 63)
        for G in (2, 3):
            wait_id(vid[VI(G, 7)])
            if G == 3: pbuild(3)
            for k in range(10):
                if k < 8: perm(SGs[G][order[k]] + 3, G, 3, order[k])
                if k >= 2: pv(G, order[k - 2], SGs[G][order[k - 2]])
    else:
        pbuild(3)
        SG = KV + 32
        n0 = min(cfg.nl0, len(lateq) - max(4, cfg.nl2))
        for p in range(3):
            wait_id(vid[24 + 2 * p + 1])
            if cfg.pv == 32 and p == 2: lds_signal(C_P8, VCN, VONE)
            if p >= 1:
                for _ in range((n0 + 2 - p) // 2):
                    name, i = lateq.pop(0); dma(name, i, 63)
            for j in range(8): perm(SG + 4 * j + p, 3, p, j)
        wait_id(vid[31])
        if cfg.pv == 33: lds_signal(C_P8, VCN, VONE)
        order = [0, 4, 1, 5, 2, 6, 3, 7]
        for k in range(10):
            if k < 8: perm(SG + 4 * order[k] + 3, 3, 3, order[k])
            if k >= 2: pv(3, order[k - 2], SG + 4 * order[k - 2])
    stamp(6, VST)
    for e in range(4): a(f"ds_write_b128 v{VV}, {vr(ACC+4*e,4)} offset:{e*1024}")
    a("s_waitcnt lgkmcnt(0)")
    stamp(7, VST)
    a("s_barrier")
    a.c('wo, gate, up, down tiles -> LDS while the chain waves run the hand-offs')
    signalled.add("dn")
    n1 = len(lateq) - cfg.nl2
    for k, (name, i) in enumerate(lateq):
        if k == n1:
            wait_n(0); lds_wait(C_Y, 4, DT, VCN, sleep=cfg.ysl)
        if ((name, i) == ("dn", 0) and k < n1 and not cfg.ofirst) or (cfg.ofirst and k == 0): lds_wait(C_OR, 4, DT, VCN, sleep=0)
        if cfg.yp >= 0 and k >= cfg.pmin + 1:
            if k == cfg.pmin + 1: a(f"s_mov_b32 s63, {cfg.yp}")
            assert "wo" in signalled
            Ly = a.newlabel("L_yp"); Lg = a.newlabel("L_ypg")
            rd = f"ds_read_b64 {vr(DT,2)}, v{VCN} offset:{C_AI*4}\ns_waitcnt lgkmcnt(0)\nv_readfirstlane_b32 s5, v{DT}\nv_readfirstlane_b32 s6, v{DT+1}"
            if cfg.yb:
                wait_n(cfg.yb - 1)
                a(rd + f"\ns_cmp_ge_u32 s6, 4\ns_cbranch_scc1 {Lg}\ns_waitcnt vmcnt({cfg.D3 - 1})")
            else: wait_n(cfg.D3 - 1)
            a.label(Ly)
            a(rd)
            a(f"s_cmp_eq_u32 s5, 0\ns_cbranch_scc1 {Lg}\ns_cmp_ge_u32 s6, 4\ns_cbranch_scc1 {Lg}\ns_sub_u32 s63, s63, 1\ns_cbranch_scc0 {Lg}\ns_mov_b32 s63, 0\ns_sleep 1")
            budget_check()
            a(f"s_branch {Ly}")
            a.label(Lg)
            dma(name, i, 63)
        elif cfg.lp:
            paced(C_T, cfg.NS - cfg.D2 + 1 + k, DT, cfg.Lmin, cfg.Lmax, cfg.lth); dma(name, i, 63)
        else: dma(name, i, (cfg.D3 if k < cfg.kb else cfg.D3b) if k < n1 else cfg.D4)
        if k == cfg.p5: assert k < n1; lds_signal(C_P5, VCN, VONE)
        if k == cfg.p6: lds_signal(C_P6, VCN, VONE)
        if cfg.yd >= 0 or cfg.hd: lds_signal(C_LC, VCN, VONE)
        if k == cfg.pmin: lds_signal(C_P7, VCN, VONE)
    for name in ("wo", "gate", "up"):
        if name not in signalled: wait_id(max(tiles[name]))
    a("s_waitcnt vmcnt(0)")
    if cfg.stamps == 1:
        stamp(8, VST)
        a(f"s_lshl_b32 s5, s2, 11\ns_lshl_b32 s6, s3, 7\ns_add_u32 s5, s5, s6\ns_add_u32 s5, s5, 0x8000000\nv_lshlrev_b32 v2, 2, v1")
        a(f"s_mov_b32 exec_hi, 0\nbuffer_store_dword v{VST}, v2, {sr(R_WSS,4)}, s5 offen sc1")
    a("s_endpgm")

    for _ in range(cfg.pad): a("s_nop 0")
    a.label("L_cwave")
    a.c('================= chain waves (8..11): hand-offs between workgroups, GEMVs, layer norms =================')
    a(f"s_setprio {cfg.cprio}")
    R_WS, R_X, R_C, R_OUT = 8, 16, 20, 24
    WV, SMY = 28, 29
    a(f"s_sub_u32 s{WV}, s3, 8\nv_subrev_u32 v0, 512, v0")
    if cfg.warm0:
        a(f"s_cmp_lg_u32 s{WV}, 3\ns_cbranch_scc1 L_w0_done\ns_getpc_b64 s[6:7]")
        a.label("L_w0_pc")
        a(f"s_sub_u32 s6, s6, L_w0_pc - L_start\ns_subb_u32 s7, s7, 0\ns_lshr_b32 s5, s2, 3\nv_lshlrev_b32 v40, 5, v1\nv_add_lshl_u32 v40, v40, s5, 7")
        a("v_cmp_gt_u32 vcc, L_end - L_start, v40\ns_and_saveexec_b64 s[12:13], vcc\nglobal_load_dword v41, v40, s[6:7]\ns_mov_b64 exec, -1")
        a.label("L_w0_done")
    VCN, VONE, VTR, VPUB, VACT, VA, VB, K_X, K_GA, K_GB, VST, K_C1, TAG, TB = 2, 3, 4, 5, 6, 7, 8, 9, 10, 11, 12, 13, 14, 15
    WK = 16
    ACT = WK + 8
    FWO, FG, FU, FD = 40, 72, 104, 136
    a(f"v_mov_b32 v{VCN}, {L_CNT}\nv_mov_b32 v{VONE}, 1\nv_mov_b32 v{WK}, 0")
    a(f"v_lshlrev_b32 v{WK+1}, 2, v1\nv_add_u32 v{WK+1}, {L_CNT}, v{WK+1}\nds_write_b32 v{WK+1}, v{WK}")
    for i in range(4): a(f"v_mov_b32 v{WK+4+i}, -1")
    for base in (L_HHV, L_OV, L_AT, L_AT + 320): a(f"ds_write_b32 v{WK+1}, v{WK+4} offset:{base - L_CNT}")
    a(f"s_mul_i32 s{SMY}, s2, {WS}\ns_and_b32 s30, s2, 7\ns_lshr_b32 s31, s2, 3")
    a(f"v_lshlrev_b32 v{VA}, 4, v1\nv_lshlrev_b32 v{VB}, 1, v1\nv_lshlrev_b32 v{WK+1}, 5, v1")
    a(f"s_lshl_b32 s32, s30, 7\ns_lshl_b32 s35, s{WV}, 5\ns_add_u32 s32, s32, s35")
    a("s_waitcnt lgkmcnt(0)")
    srd(R_WS, 104, 0x10000000); srd(R_X, 0, 2048); srd(R_C, 72, 2048); srd(R_OUT, 88, 2048)
    XR = FU
    a(f"s_mov_b32 s5, {EPOCH}\nbuffer_load_dword v{TAG}, off, {sr(R_WS,4)}, s5 sc1")
    a(f"s_lshr_b32 s5, s2, 4\ns_lshl_b32 s5, s5, 7\nbuffer_load_ushort v{WK}, v{VB}, {sr(R_C,4)}, s5 offen")
    a(f"buffer_load_dwordx4 {vr(XR,4)}, v{WK+1}, {sr(R_X,4)}, 0 offen\nbuffer_load_dwordx4 {vr(XR+4,4)}, v{WK+1}, {sr(R_X,4)}, 0 offen offset:16")
    a(f"v_and_b32 v{K_C1}, 7, v1\nv_lshlrev_b32 v{K_C1}, 2, v{K_C1}\nv_bfe_u32 v{WK+2}, v1, 4, 1\nv_lshl_add_u32 v{K_C1}, v{WK+2}, 1, v{K_C1}\nv_lshrrev_b32 v{WK+2}, 5, v1\nv_add_lshl_u32 v{K_C1}, v{K_C1}, v{WK+2}, 1")
    a(f"s_lshl_b32 s5, s32, 1\nbuffer_load_ushort v{K_GA}, v{K_C1}, {sr(R_X,4)}, s5 offen")
    a(f"s_and_b32 s80, s2, 3\ns_lshl_b32 s80, s80, 12\ns_add_u32 s80, s80, {MLA}\ns_and_b32 s81, s2, 0xfc\ns_lshl_b32 s81, s81, 4\ns_add_u32 s81, s81, s80")
    a(f"s_cmp_gt_u32 s{WV}, 1\ns_cbranch_scc1 L_clr_done\ns_cmp_eq_u32 s{WV}, 0\ns_cselect_b32 s5, s{SMY}, s81\ns_cselect_b64 exec, -1, 15")
    a(f"buffer_store_dwordx4 {vr(WK+4,4)}, v{VA}, {sr(R_WS,4)}, s5 offen sc1")
    if cfg.hint or cfg.role == 2:
        a(f"s_mov_b64 exec, 1\nbuffer_store_dword v{WK+4}, off, {sr(R_WS,4)}, s{SMY} offset:{TKT} sc1")
    a.label("L_clr_done")
    if cfg.qm:
        a(f"s_and_b32 s82, s2, 3\ns_lshl_b32 s82, s82, 3\ns_bfe_u32 s5, s2, 0x30003\ns_add_u32 s82, s82, s5\ns_lshl_b32 s83, s82, 8\ns_add_u32 s83, s83, {QF}")
        a(f"s_cmp_lg_u32 s{WV}, 2\ns_cbranch_scc1 L_clq_done\ns_and_b32 s5, s2, 0xc4\ns_cmp_lg_u32 s5, 0xc4\ns_cbranch_scc1 L_clq_done")
        a(f"s_mov_b64 exec, 0xffff\nbuffer_store_dwordx4 {vr(WK+4,4)}, v{VA}, {sr(R_WS,4)}, s83 offen sc1")
        a.label("L_clq_done")
    a("s_mov_b64 exec, -1")
    a("s_barrier")
    if cfg.stamps: a(f"v_mov_b32 v{VST}, 0\nv_writelane_b32 v{VST}, s96, 0")
    a(f"v_lshrrev_b32 v{WK+8}, 4, v1\nv_and_b32 v{WK+9}, 15, v1")
    a(f"v_lshlrev_b32 v{VPUB}, 6, v{WK+9}\nv_lshl_add_u32 v{VPUB}, v{WK+8}, 4, v{VPUB}")
    a(f"v_lshlrev_b32 v{VACT}, 4, v{WK+8}\nv_add_u32 v{VACT}, {L_MISC}, v{VACT}")
    a(f"v_bfe_u32 v{WK+10}, v1, 2, 2\nv_lshl_add_u32 v{WK+11}, v{WK+8}, 3, v{WK+10}\nv_lshlrev_b32 v{VTR}, 8, v{WK+11}")
    a(f"v_and_b32 v{WK+12}, 3, v1\nv_lshl_add_u32 v{VTR}, v{WK+12}, 3, v{VTR}")
    a(f"v_and_b32 v{WK+12}, 1, v{WK+8}\nv_lshl_add_u32 v{WK+12}, v{WK+12}, 2, v{WK+10}\ns_lshl_b32 s5, s{WV}, 1\nv_xor_b32 v{WK+12}, s5, v{WK+12}\nv_lshl_add_u32 v{VTR}, v{WK+12}, 5, v{VTR}")
    a(f"s_mov_b32 s33, {f2u(LOG2E):#x}\ns_mov_b32 s38, 0xffff0000")
    a("s_waitcnt vmcnt(0)")
    lds_signal(C_CLR, VCN, VONE)
    a.c('tag of this launch: T = E ^ hash(E) with every hash byte non-zero (E = tag left by the previous launch, or anything)')
    TB0 = 76
    a(f"v_readfirstlane_b32 s5, v{TAG}\ns_add_u32 s6, s5, 0x7f4a7c15\ns_mul_i32 s6, s6, 0x9e3779b1\ns_lshr_b32 s7, s6, 15\ns_xor_b32 s6, s6, s7")
    a("s_mul_i32 s6, s6, 0x85ebca6b\ns_lshr_b32 s7, s6, 13\ns_xor_b32 s6, s6, s7\ns_mul_i32 s6, s6, 0xc2b2ae35\ns_lshr_b32 s7, s6, 16\ns_xor_b32 s6, s6, s7")
    for k in range(4):
        a(f"s_and_b32 s7, s6, {0xff << (8*k):#x}\ns_cselect_b32 s7, 0, {0x5b << (8*k):#x}\ns_or_b32 s6, s6, s7")
    a("s_xor_b32 s5, s5, s6")
    for k in range(4): a(f"s_bfe_u32 s{TB0+k}, s5, {(8 << 16) | (8*k):#x}")
    a(f"v_mov_b32 v{TAG}, s5")
    stamp(1, VST)
    a.c("silu(c) for this workgroup's 64 rows of w_mod")
    c_ = WK
    lo2 = LOG2E - struct.unpack("<f", struct.pack("<f", LOG2E))[0]
    a(f"v_lshlrev_b32 v{c_}, 16, v{c_}")
    a(f"v_max_f32 v{WK+13}, {f2u(-87.0):#x}, v{c_}\nv_min_f32 v{WK+13}, {f2u(100.0):#x}, v{WK+13}")
    a(f"v_mul_f32 v{WK+1}, s33, v{WK+13}\nv_fma_f32 v{WK+2}, v{WK+13}, s33, -v{WK+1}\nv_mov_b32 v{WK+3}, {f2u(lo2):#x}\nv_fmac_f32 v{WK+2}, v{WK+13}, v{WK+3}")
    a(f"v_exp_f32 v{WK+1}, -v{WK+1}\nv_mul_f32 v{WK+2}, {f2u(-0.6931471805599453):#x}, v{WK+2}")
    a(f"v_fma_f32 v{WK+1}, v{WK+1}, v{WK+2}, v{WK+1}\nv_add_f32 v{WK+1}, 1.0, v{WK+1}")
    a(f"v_rcp_f32 v{WK+2}, v{WK+1}\nv_mul_f32 v{WK+3}, v{c_}, v{WK+2}\nv_fma_f32 v{WK+13}, -v{WK+3}, v{WK+1}, v{c_}\nv_fmac_f32 v{WK+3}, v{WK+13}, v{WK+2}")
    rnd(WK + 3, WK + 3)
    a(f"s_lshl_b32 s5, s{WV}, 7\ns_add_u32 s6, s5, {L_SIL}\nv_add_u32 v{WK+1}, s6, v{VB}\nds_write_b16_d16_hi v{WK+1}, v{WK+3}")
    a(f"v_add_u32 v{WK+1}, s5, v{VACT}\ns_waitcnt lgkmcnt(0)\nds_read_b128 {vr(ACT,4)}, v{WK+1} offset:{L_SIL-L_MISC}\nds_read_b128 {vr(ACT+4,4)}, v{WK+1} offset:{L_SIL-L_MISC+64}")

    def den_from_var(v, rden):
        rnd(v, v); a(f"v_add_f32 v{v}, {f2u(1e-5):#x}, v{v}"); rnd(v, v)
        a(f"v_sqrt_f32 v{v}, v{v}"); rnd(v, v)
        a(f"v_rcp_f32 v{rden}, v{v}")
    def ln_stats(X, mean_b, rden, t0):
        p1, p2, u1 = t0, t0 + 2, t0 + 4
        a(f"v_readfirstlane_b32 s36, v{X}\ns_mov_b32 s37, s36")
        for i in range(0, 16, 2): a(f"v_pk_add_f32 {vr(X+i,2)}, {vr(X+i,2)}, s[36:37] neg_lo:[0,1] neg_hi:[0,1]")
        a(f"v_pk_mul_f32 {vr(p2,2)}, {vr(X,2)}, {vr(X,2)}\nv_pk_add_f32 {vr(p1,2)}, {vr(X,2)}, {vr(X+2,2)}")
        a(f"v_pk_fma_f32 {vr(p2,2)}, {vr(X+2,2)}, {vr(X+2,2)}, {vr(p2,2)}")
        for i in range(4, 16, 2):
            a(f"v_pk_add_f32 {vr(p1,2)}, {vr(p1,2)}, {vr(X+i,2)}\nv_pk_fma_f32 {vr(p2,2)}, {vr(X+i,2)}, {vr(X+i,2)}, {vr(p2,2)}")
        a(f"v_add_f32 v{p1}, v{p1}, v{p1+1}\nv_add_f32 v{p2}, v{p2}, v{p2+1}")
        a(f"v_permlane32_swap_b32 v{p1}, v{p2}\nv_add_f32 v{p1}, v{p1}, v{p2}")
        xreduce("v_add_f32", p1, u1, (16, 8, 4, 2, 1))
        a(f"v_mul_f32 v{p1}, {f2u(1.0/1024):#x}, v{p1}\nv_mov_b32 v{p2}, v{p1}\nv_permlane32_swap_b32 v{p1}, v{p2}")
        a(f"v_fma_f32 v{p2}, -v{p1}, v{p1}, v{p2}\nv_add_f32 v{p1}, s36, v{p1}\nv_max_f32 v{p2}, 0, v{p2}")
        rnd(mean_b, p1); den_from_var(p2, rden)
    a.c("layer norm 1 statistics (every wave, all 1024 values) and this lane's normalised x")
    XU = XR + 8
    for i in range(8):
        a(f"v_lshlrev_b32 v{XU+2*i}, 16, v{XR+i}\nv_and_b32 v{XU+2*i+1}, 0xffff0000, v{XR+i}")
    ln_stats(XU, WK, WK + 1, WK + 2)
    LN1 = K_GA
    a(f"v_lshlrev_b32 v{LN1}, 16, v{LN1}")
    a(f"v_sub_f32 v{LN1}, v{LN1}, v{WK}"); rnd(LN1, LN1); a(f"v_mul_f32 v{LN1}, v{LN1}, v{WK+1}"); rnd(LN1, LN1)
    lds_wait(C_CLR, 4, WK + 1, VCN, sleep=0)

    if True:
        a(f"s_getreg_b32 s14, hwreg(HW_REG_XCC_ID)\ns_cmp_lg_u32 s{WV}, 1\ns_cbranch_scc1 L_xc_done")
        a(f"v_mov_b32 v{WK}, s14\nv_mov_b32 v{WK+1}, v{TAG}\ns_lshl_b32 s5, s30, 8\ns_and_b32 s6, s2, 0xf8\ns_add_u32 s5, s5, s6\ns_add_u32 s5, s5, {XCP}\ns_mov_b64 exec, 1\nbuffer_store_dwordx2 {vr(WK,2)}, off, {sr(R_WS,4)}, s5 sc1\ns_mov_b64 exec, -1")
        a.label("L_xc_done")
    def tr_read(dst, vaddr, nkk, rs, base=0):
        for kk in range(nkk):
            for q in range(2):
                a(f"ds_read_b64_tr_b16 {vr(dst + kk*4 + 2*q, 2)}, v{vaddr} offset:{base + (32 * kk + 4 * q) * rs}")
    def tr_tile(dst, base, nkk, t0):
        a(f"v_add_u32 v{t0}, {base}, v{VTR}\nv_xor_b32 v{t0+1}, 32, v{t0}")
        tr_read(dst, t0, nkk, 256); tr_read(dst + 4 * nkk, t0 + 1, nkk, 256)
    MASKC = [0x0001000100010001 << i for i in range(4)]
    def mfma(d, x, y, first): a(f"v_mfma_f32_16x16x32_bf16 {vr(d,4)}, {vr(x,4)}, {vr(y,4)}, {'0' if first else vr(d,4)}")
    BT = WK + 7
    def tagit(d, s, k): a(f"v_and_or_b32 v{d}, v{s}, v{BT}, s{TB0+k}")
    def gemv_pub(frs, nkk, dacc, out, off, tagged=True, slot=None):
        n = len(frs)
        a(f"s_mul_i32 s5, s{WV}, {n*64}\ns_add_u32 s5, s5, s{SMY if slot is None else slot}\ns_add_u32 s5, s5, {off}")
        def fin(cg):
            setexec(MASKC[cg])
            for i in range(4):
                if tagged: tagit(out + i, dacc + 4 * cg + i, i)
                else: a(f"v_mov_b32 v{out+i}, v{dacc+4*cg+i}")
        lag = 2 if nkk == 2 else 1
        for cg in range(n + lag):
            if cg < n:
                if cg > lag: a("s_mov_b64 exec, -1")
                for kk in range(nkk): mfma(dacc + 4 * cg, frs[cg] + 4 * kk, ACT + 4 * kk, kk == 0)
            if cg >= lag: fin(cg - lag)
        setexec(sum(MASKC[:n]))
        a(f"buffer_store_dwordx4 {vr(out,4)}, v{VPUB}, {sr(R_WS,4)}, s5 offen sc1\ns_mov_b64 exec, -1")
    deferred = []
    def gather(loads, t0, kind="sent", tags=None, masked=True, between=None, acc=None):
        L = a.newlabel("L_g"); Ld = a.newlabel("L_gd"); Lc = a.newlabel("L_gc")
        PM = 40
        def ld(dst, wd, va, so):
            if so: a(f"s_mov_b32 s5, {so}")
            a(f"buffer_load_dword{'' if wd == 1 else 'x'+str(wd)} {vr(dst,wd)}, v{va}, {sr(R_WS,4)}, {'s5' if so else '0'} offen sc1")
        op3, op2 = ("v_max3_u32", "v_max_u32") if kind == "sent" else ("v_or3_b32", "v_or_b32")
        def tree(regs_):
            if len(regs_) == 1: return regs_[0]
            if len(regs_) == 2: a(f"{op2} v{t0}, v{regs_[0]}, v{regs_[1]}"); return t0
            a(f"{op3} v{t0}, v{regs_[0]}, v{regs_[1]}, v{regs_[2]}")
            rest = regs_[3:]
            while rest:
                if len(rest) >= 2: a(f"{op3} v{t0}, v{t0}, v{rest[0]}, v{rest[1]}"); rest = rest[2:]
                else: a(f"{op2} v{t0}, v{t0}, v{rest[0]}"); rest = []
            return t0
        def test(dst_s, r_):
            if kind == "sent": a(f"v_cmp_eq_u32 {dst_s}, -1, v{r_}")
            else: a(f"v_and_b32 v{t0}, 0xff, v{r_}\nv_cmp_ne_u32 {dst_s}, 0, v{t0}")
        def untag(dst, wd):
            for x in range(dst, dst + wd): a(f"v_xor_b32 v{x}, s{TB0 + x - dst}, v{x}")
        def accum(i):
            if acc is None or i == 0: return
            x = loads[0][0] if i == 1 else acc
            for h in (2, 0): a(f"v_pk_add_f32 {vr(acc+h,2)}, {vr(x+h,2)}, {vr(loads[i][0]+h,2)}")
        a("s_nop 0")
        if not masked: a.label(L)
        for (dst, wd, va, so, em) in loads:
            if em is not None: setexec(em)
            ld(dst, wd, va, so)
            if em is not None: a("s_mov_b64 exec, -1")
        if between: between()
        if not masked: budget_check()
        if kind == "tag":
            a(f"s_waitcnt vmcnt(0)\ns_branch {Lc}")
        else:
            for i, (dst, wd, va, so, em) in enumerate(loads):
                a(f"s_waitcnt vmcnt({len(loads)-1-i})")
                if kind == "byte":
                    if em is not None: setexec(em)
                    untag(dst, wd)
                    if em is not None: a("s_mov_b64 exec, -1")
                r_ = tree(([t0] if i else []) + list(range(dst, dst + wd)))
                assert r_ == t0
                if i < len(loads) - 1: accum(i)
            test("vcc", t0)
            accum(len(loads) - 1)
            a(f"s_cbranch_vccnz {Lc if masked else L}")
            if not masked: return
        a.label(Ld)
        def retry():
            a.label(L)
            budget_check()
            for i, (dst, wd, va, so, em) in enumerate(loads):
                sk = a.newlabel("L_gs")
                a(f"s_mov_b64 exec, {sr(PM+2*i,2)}\ns_cbranch_execz {sk}")
                ld(dst, wd, va, so)
                a.label(sk)
            a("s_waitcnt vmcnt(0)")
            if kind == "byte":
                for i, (dst, wd, va, so, em) in enumerate(loads):
                    a(f"s_mov_b64 exec, {sr(PM+2*i,2)}"); untag(dst, wd)
            a("s_mov_b64 exec, -1")
            a.label(Lc)
            for i, (dst, wd, va, so, em) in enumerate(loads):
                if kind == "tag": a(f"v_cmp_ne_u32 {sr(PM+2*i,2)}, v{tags[i]}, v{TAG}")
                else: test(sr(PM + 2 * i, 2), tree(list(range(dst, dst + wd))))
            a(f"s_mov_b64 s[6:7], {sr(PM,2)}")
            for i in range(1, len(loads)): a(f"s_or_b64 s[6:7], s[6:7], {sr(PM+2*i,2)}")
            a(f"s_cmp_lg_u64 s[6:7], 0\ns_cbranch_scc1 {L}")
            for i in range(len(loads)): accum(i)
            a(f"s_nop 1\ns_branch {Ld}")
        deferred.append(retry)
    def tree_sum(base, n, stride=1):
        idx = [base + i * stride for i in range(n)]
        while len(idx) > 1:
            nx = []
            for i in range(0, len(idx) - 1, 2):
                a(f"v_add_f32 v{idx[i]}, v{idx[i]}, v{idx[i+1]}"); nx.append(idx[i])
            if len(idx) & 1: nx.append(idx[-1])
            idx = nx
    def pk_sum4(base, n):
        idx = [base + 4 * i for i in range(n)]
        while len(idx) > 1:
            nx = []
            for i in range(0, len(idx) - 1, 2):
                for h in (0, 2): a(f"v_pk_add_f32 {vr(idx[i]+h,2)}, {vr(idx[i]+h,2)}, {vr(idx[i+1]+h,2)}")
                nx.append(idx[i])
            if len(idx) & 1: nx.append(idx[-1])
            idx = nx
    def col_reduce(b):
        a(f"v_permlane32_swap_b32 v{b}, v{b+1}\nv_permlane32_swap_b32 v{b+2}, v{b+3}\nv_add_f32 v{b}, v{b}, v{b+1}\nv_add_f32 v{b+2}, v{b+2}, v{b+3}")
        a(f"v_permlane16_swap_b32 v{b}, v{b+2}\nv_add_f32 v{b}, v{b}, v{b+2}\nv_add_f32_dpp v{b}, v{b}, v{b} row_ror:8 {DPPF}")
    VCHK = 0
    def xch_read(lbase, nkk, t0, vact, two=False):
        L = a.newlabel("L_x"); Ld = a.newlabel("L_xd")
        a.label(L)
        a(f"ds_read_b32 v{t0}, v{VCHK} offset:{lbase - L_MISC}")
        if two: a(f"ds_read_b32 v{t0+1}, v{VCHK} offset:{lbase - L_MISC + 320}")
        for kk in range(nkk): a(f"ds_read_b128 {vr(ACT+4*kk,4)}, v{vact} offset:{lbase - L_MISC + kk*64}")
        a(f"s_waitcnt lgkmcnt({nkk})")
        if two: a(f"v_pk_max_u16 v{t0}, v{t0}, v{t0+1}")
        a(f"v_cmp_eq_u16 vcc, -1, v{t0}\nv_cmp_le_u32 s[6:7], s38, v{t0}\ns_or_b64 s[6:7], s[6:7], vcc")
        if nkk == 2: a("s_cmp_lg_u32 s6, 0")
        a(f"s_cbranch_scc0 {Ld}")
        budget_check()
        a(f"s_branch {L}")
        a.label(Ld)
        a("s_waitcnt lgkmcnt(0)")

    def bal_run(limit):
        Lb = a.newlabel("L_bal"); Le = a.newlabel("L_bale")
        a(f"s_cmp_lg_u32 s{WV}, 3\ns_cbranch_scc1 {Le}")
        h = FWO
        a(f"s_mul_i32 s36, s30, {WS}\ns_add_u32 s36, s36, {BRD}\ns_lshr_b32 s37, s2, 3\ns_lshl_b32 s37, s37, 2\ns_add_u32 s37, s37, s36")
        a(f"v_lshlrev_b32 v{h}, 2, v1\nv_lshlrev_b32 v{h+1}, 10, v{TAG}")
        a.label(Lb)
        a(f"ds_read_b32 v{h+2}, v{VCN} offset:{C_T*4}\ns_waitcnt lgkmcnt(0)\nv_readfirstlane_b32 s41, v{h+2}\ns_sub_u32 s41, s41, s39")
        a(f"v_or_b32 v{h+2}, s41, v{h+1}\ns_mov_b64 exec, 1\nbuffer_store_dword v{h+2}, off, {sr(R_WS,4)}, s37 {cfg.lfl}")
        a(f"s_mov_b64 exec, -1\ns_cmp_ge_u32 s41, {limit}\ns_cbranch_scc1 {Le}")
        a(f"s_mov_b32 exec_hi, 0\nbuffer_load_dword v{h+3}, v{h}, {sr(R_WS,4)}, s36 offen sc1\ns_mov_b64 exec, -1")
        budget_check()
        a(f"s_waitcnt vmcnt(0)\nv_xor_b32 v{h+3}, v{h+3}, v{h+1}\nv_cmp_gt_u32 vcc, 1024, v{h+3}\nv_cndmask_b32 v{h+3}, 0, v{h+3}, vcc")
        xreduce("v_add_u32", h + 3, h + 4, (1, 2, 4, 8, 16))
        a(f"v_readfirstlane_b32 s42, v{h+3}\ns_lshr_b32 s42, s42, 5\ns_sub_u32 s42, s42, s41\ns_sub_u32 s43, s42, s39\ns_mov_b32 s39, s42")
        a(f"v_mov_b32 v{h+2}, s43\ns_mov_b64 exec, 1\nds_add_u32 v{VCN}, v{h+2} offset:{C_T*4}\ns_mov_b64 exec, -1\ns_branch {Lb}")
        a.label(Le)
    a("s_mov_b32 s39, 0")
    def mod_tile(t, cnt):
        if not (cfg.dbgm and t): lds_wait(cnt, 8, WK, VCN)
        tr_tile(FU, L_MOD + (0 if cfg.dbgm else t * 16384), 2, WK + 4)
        a("s_waitcnt lgkmcnt(0)")
        gemv_pub([FU, FU + 8], 2, FU + 16, FU + 24, MODP + (t - 1) * 512 if t else HP, tagged=bool(t))
    a.c("partial sa/ca (then ga|sb, cb|gb) of this workgroup's w_mod tiles")
    mod_tile(0, C_CRIT)
    a(f"v_mov_b32 v{BT}, 0xffffff00")
    stamp(2, VST)
    a(f"v_lshrrev_b32 v{WK}, 3, v1\nv_mul_u32_u24 v{VA}, {16*WS}, v{WK}\nv_and_b32 v{WK}, 7, v1\nv_lshl_add_u32 v{VA}, v{WK}, 4, v{VA}")
    a(f"s_mul_i32 s5, s30, {WS}\ns_lshl_b32 s7, s{WV}, 7\ns_add_u32 s5, s5, s7\nv_add_u32 v{VA}, s5, v{VA}")
    if cfg.qm:
        a(f"v_lshl_add_u32 v{TB}, v1, 3, s30\nv_and_b32 v{WK}, 7, v1\ns_and_b32 s5, s2, 3\ns_add_u32 s5, s5, 196\ns_lshl_b32 s6, s82, 3")
        a(f"s_mov_b32 exec_lo, 0\nv_lshl_add_u32 v{TB}, v{WK}, 3, s5\ns_mov_b32 exec_hi, 0xff\nv_add_u32 v{TB}, s6, v{WK}\ns_mov_b64 exec, -1")
    else:
        a(f"v_lshl_add_u32 v{TB}, v1, 3, s30\ns_and_b32 s5, s2, 3\ns_lshl_b32 s5, s5, 6\ns_lshl_b32 s6, s{WV}, 4\ns_add_u32 s5, s5, s6\nv_and_b32 v{WK}, 15, v1")
        a(f"s_mov_b32 exec_lo, 0\nv_add_u32 v{TB}, s5, v{WK}\ns_mov_b32 exec_lo, -1")
    a(f"v_and_b32 v{WK}, 7, v{TB}\nv_and_b32 v{TB}, 0xf8, v{TB}\nv_lshl_add_u32 v{TB}, v{WK}, 8, v{TB}")
    lds_wait(C_WQ, 8, WK + 4, VCN, sleep=cfg.lsl)
    tr_tile(FD, L_WQ, 4, WK + 4)
    mod_tile(1, C_MOD1)
    if cfg.give:
        a(f"s_and_b32 s84, s2, 15\ns_mov_b32 s85, {cfg.give}\ns_bitcmp1_b32 s85, s84\ns_cbranch_scc1 L_gv_skip")
        mod_tile(2, C_MOD2)
        a.label("L_gv_skip")
    elif not cfg.steal: mod_tile(2, C_MOD2)
    stamp(3, VST)
    a.c('flags: producers have cleared their sentinel slots; s15 = whole class sits on this XCD')
    gather([(FG, 2, TB, XCP, None)], WK, kind="tag", tags=[FG + 1])
    a(f"v_cmp_ne_u32 vcc, s14, v{FG}\ns_cmp_eq_u32 vcc_lo, 0\ns_cselect_b32 s15, 1, 0")
    if cfg.balk: bal_run(8 * (cfg.p1 - cfg.hl))
    lds_wait(C_P1, 8, WK + 4, VCN, sleep=cfg.lsl)
    if cfg.give:
        assert cfg.p1 >= cfg.D1
        a(f"s_xor_b32 s84, s84, {cfg.gx}\ns_bitcmp1_b32 s85, s84\ns_cbranch_scc0 L_tk_skip\ns_xor_b32 s84, s2, {cfg.gx}\ns_mul_i32 s84, s84, {WS}")
        tr_tile(FU, L_WO, 2, WK + 4)
        a("s_waitcnt lgkmcnt(0)")
        gemv_pub([FU, FU + 8], 2, FU + 16, FU + 24, MODP + 512, slot=84)
        a.label("L_tk_skip")
    stamp(4, VST)
    a.c('hand-off 1: sum sa, ca; h = bf16(bf16(ln1 * bf16(1 + ca)) + sa); partial q = h @ wq tile')
    gather([(FU + 4 * i, 4, VA, HP + (i >> 1) * 8 * WS + (i & 1) * 128 * WS, None) for i in range(4)], WK)
    stamp(5, VST)
    pk_sum4(FU, 2); pk_sum4(FU + 8, 2); col_reduce(FU); col_reduce(FU + 8)
    rnd(FU, FU); rnd(FU + 8, FU + 8)
    a(f"v_add_f32 v{FU+8}, 1.0, v{FU+8}"); rnd(FU + 8, FU + 8)
    a(f"v_mul_f32 v{LN1}, v{LN1}, v{FU+8}"); rnd(LN1, LN1); a(f"v_add_f32 v{LN1}, v{LN1}, v{FU}"); rnd(LN1, LN1)
    a(f"s_lshl_b32 s5, s{WV}, 6\ns_add_u32 s5, s5, {L_HV}\nv_add_u32 v{VB}, s5, v{K_C1}")
    a(f"ds_write_b16_d16_hi v{VB}, v{LN1}\ns_waitcnt lgkmcnt(0)")
    lds_signal(C_H, VCN, VONE)
    lds_wait(C_H, 4, WK, VCN, sleep=0)
    for kk in range(4): a(f"ds_read_b128 {vr(ACT+4*kk,4)}, v{VACT} offset:{L_HV - L_MISC + kk*64}")
    a("s_waitcnt lgkmcnt(0)")
    gemv_pub([FD, FD + 16], 4, FU, FU + 8, QP, tagged=False)
    stamp(6, VST)
    if cfg.steal:
        a(f"s_xor_b32 s84, s2, 4\ns_mul_i32 s84, s84, {WS}\ns_cmp_lg_u32 s{WV}, 1\ns_cbranch_scc1 L_cl_done")
        a(f"v_mov_b32 v{FG}, v{TAG}\nv_mov_b32 v{FG+1}, v{TAG}")
        lds_wait(C_PA, 8, WK, VCN)
        a(f"s_mov_b64 exec, 1\nbuffer_atomic_swap v{FG}, off, {sr(R_WS,4)}, s{SMY} offset:{CLM} sc0 sc1\ns_mov_b64 exec, -1")
        lds_wait(C_PB, 8, WK, VCN)
        a(f"s_mov_b64 exec, 1\nbuffer_atomic_swap v{FG+1}, off, {sr(R_WS,4)}, s84 offset:{CLM} sc0 sc1\ns_waitcnt vmcnt(0)")
        a(f"v_cmp_ne_u32 vcc, v{FG}, v{TAG}\nv_cndmask_b32 v{FG}, 4, 5, vcc\nv_cmp_ne_u32 vcc, v{FG+1}, v{TAG}\nv_cndmask_b32 v{FG+1}, 0, 2, vcc\nv_add_u32 v{FG}, v{FG}, v{FG+1}")
        a(f"ds_write_b32 v{VCN}, v{FG} offset:{C_DEC*4}\ns_mov_b64 exec, -1")
        a.label("L_cl_done")
    a.c('hand-off 2: sum the q parts of this kv group -> LDS')
    if cfg.qm:
        a(f"s_and_b32 s5, s2, 0xc4\ns_cmp_lg_u32 s5, 0xc4\ns_cbranch_scc1 L_qm_done")
        a(f"v_lshrrev_b32 v{WK}, 3, v1\nv_mul_u32_u24 v{VA}, {WS}, v{WK}\nv_and_b32 v{WK+1}, 7, v1\nv_lshl_add_u32 v{VA}, v{WK+1}, 4, v{VA}\nv_lshlrev_b32 v{WK+1}, 3, v{WK+1}")
        a(f"s_mul_i32 s5, s82, {8*WS}\ns_lshl_b32 s6, s{WV}, 7\ns_add_u32 s5, s5, s6\nv_add_u32 v{VA}, s5, v{VA}\ns_lshl_b32 s6, s{WV}, 6\ns_add_u32 s83, s83, s6")
        lds_wait(C_PM, 8, WK + 4, VCN)
        gather([(FG, 4, VA, QP, None)], WK)
        for e in range(4): xreduce("v_add_f32", FG + e, FG + 4 + e, (8, 16, 32))
        a(f"v_cvt_pk_bf16_f32 v{FG}, v{FG}, v{FG+1}\nv_cvt_pk_bf16_f32 v{FG+1}, v{FG+2}, v{FG+3}")
        a(f"s_mov_b64 exec, 0xff\nbuffer_store_dwordx2 {vr(FG,2)}, v{WK+1}, {sr(R_WS,4)}, s83 offen sc1\ns_mov_b64 exec, -1")
        a.label("L_qm_done")
        a(f"s_and_b32 s5, s2, 3\ns_lshl_b32 s5, s5, 11\nv_lshlrev_b32 v{WK+2}, 3, v0\nv_add_u32 v{VA}, s5, v{WK+2}\nv_add_u32 v{WK+2}, {L_QV}, v{WK+2}")
        lds_wait(C_P2, 8, WK + 4, VCN, sleep=cfg.lsl)
        stamp(20, VST)
        gather([(FG + 8, 2, VA, QF, None)], WK)
        stamp(7, VST)
        a(f"ds_write_b64 v{WK+2}, {vr(FG+8,2)}\ns_waitcnt lgkmcnt(0)")
    else:
        a(f"s_and_b32 s5, s2, 3\ns_lshl_b32 s5, s5, 3\nv_lshrrev_b32 v{WK+4}, 5, v0\nv_add_u32 v{WK+4}, s5, v{WK+4}\nv_mul_u32_u24 v{VA}, {8*WS}, v{WK+4}")
        a(f"v_and_b32 v{WK+4}, 31, v0\nv_lshl_add_u32 v{VA}, v{WK+4}, 4, v{VA}")
        a(f"v_lshlrev_b32 v{WK+2}, 3, v0\nv_add_u32 v{WK+2}, {L_QV}, v{WK+2}")
        if cfg.balk: bal_run(8 * (cfg.p2 - cfg.hl))
        lds_wait(C_P2, 8, WK + 4, VCN, sleep=cfg.lsl)
        stamp(20, VST)
        gather([(FG + 4 * i, 4, VA, QP + i * WS, None) for i in range(1 if cfg.dbgh & 2 else 8)], WK)
        if cfg.dbgh & 2:
            for i in range(4, 32): a(f"v_mov_b32 v{FG+i}, 0")
        stamp(7, VST)
        pk_sum4(FG, 8)
        a(f"v_cvt_pk_bf16_f32 v{WK}, v{FG}, v{FG+1}\nv_cvt_pk_bf16_f32 v{WK+1}, v{FG+2}, v{FG+3}")
        a(f"ds_write_b64 v{WK+2}, {vr(WK,2)}\ns_waitcnt lgkmcnt(0)")
    lds_signal(C_Q, VCN, VONE)
    a(f"s_add_u32 s5, s2, s{WV}\ns_cmp_lg_u32 s5, 0\ns_cbranch_scc1 L_ep_done")
    a(f"s_mov_b32 s5, {EPOCH}\ns_mov_b64 exec, 1\nbuffer_store_dword v{TAG}, off, {sr(R_WS,4)}, s5 sc1\ns_mov_b64 exec, -1")
    a.label("L_ep_done")
    ROLE, RBF, SFY, VAW = 31, 12, 13, WK + 6
    def role_make():
        a(f"s_cmp_lg_u32 s{WV}, 1\ns_cbranch_scc1 L_role_done")
        if cfg.role == 2:
            lds_wait(C_P4, 8, WK, VCN, sleep=2)
            a(f"s_mul_i32 s5, s30, {WS}\ns_add_u32 s5, s5, {TKT}\nv_mov_b32 v{WK}, 1\ns_mov_b64 exec, 1")
            a(f"buffer_atomic_add v{WK}, off, {sr(R_WS,4)}, s5 sc0 sc1\ns_waitcnt vmcnt(0)\nv_readfirstlane_b32 s36, v{WK}\ns_add_u32 s36, s36, 1")
        if cfg.role == 0: a("s_mov_b32 s5, s2")
        else:
            if cfg.role == 1: a("s_lshr_b32 s36, s2, 3")
            hv = str(cfg.heavy).zfill(4)
            light = [x for x in range(8) if str(x) not in hv]
            tab = sum((hv.index(str(x)) if str(x) in hv else 4 + light.index(x)) << (4 * x) for x in range(8))
            a(f"s_lshl_b32 s7, s30, 2\ns_lshr_b32 s7, {tab:#x}, s7\ns_and_b32 s7, s7, 15\ns_add_u32 s7, s7, 24")
            a("s_lshr_b32 s6, s36, 3\ns_mul_i32 s5, s30, 3\ns_add_u32 s5, s5, s6\ns_cmp_lt_u32 s6, 3\ns_cselect_b32 s5, s5, s7")
            a("s_cmp_lt_u32 s6, 4\ns_cselect_b32 s5, s5, 28\ns_lshl_b32 s5, s5, 3\ns_and_b32 s6, s36, 7\ns_add_u32 s5, s5, s6")
        a(f"s_add_u32 s5, s5, 1\nv_mov_b32 v{WK}, s5\ns_mov_b64 exec, 1\nds_write_b32 v{VCN}, v{WK} offset:{C_ROLE*4}\ns_mov_b64 exec, -1")
        a.label("L_role_done")
    def rest_mod():
        lds_wait(C_ROLE, 1, WK, VCN, sleep=2)
        a(f"s_sub_u32 s{ROLE}, s5, 1")
        a(f"s_and_b32 s{RBF}, s{ROLE}, 7\ns_mul_i32 s{SFY}, s{ROLE}, {WS}\ns_lshl_b32 s32, s{RBF}, 7\ns_lshl_b32 s5, s{WV}, 5\ns_add_u32 s32, s32, s5")
        a(f"s_lshl_b32 s5, s32, 1\nbuffer_load_ushort v{K_X}, v{K_C1}, {sr(R_X,4)}, s5 offen")
        a(f"v_lshrrev_b32 v{WK}, 3, v1\nv_mul_u32_u24 v{WK+1}, {WS}, v{WK}\nv_and_b32 v{WK+2}, 7, v1\nv_lshlrev_b32 v{WK+2}, 4, v{WK+2}")
        a(f"s_mul_i32 s34, s{RBF}, {WS}\ns_lshl_b32 s6, s{WV}, 7\ns_add_u32 s34, s34, s6")
        a(f"s_lshl_b32 s5, s32, 4\nv_lshl_add_u32 v{VA}, v{K_C1}, 3, s5")
        gather([(FG, 4, VA, MODF, None)], WK, kind="byte")
        a(f"v_and_b32 v{WK+3}, 8, v1\nv_mul_u32_u24 v{WK+3}, 40, v{WK+3}\ns_lshl_b32 s5, s{WV}, 6\ns_add_u32 s5, s5, {L_AT}\nv_add3_u32 v{VAW}, v{WK+3}, v{K_C1}, s5")
        a(f"v_mov_b32 v{TB}, v{K_C1}")
        a(f"v_mov_b32 v{K_GA}, v{FG}\nv_mov_b32 v{K_GB}, v{FG+3}\nv_add_f32 v{K_C1}, 1.0, v{FG+2}"); rnd(K_C1, K_C1)
        a(f"v_mov_b32_dpp v{FG+1}, v{K_C1} quad_perm:[0,1,2,3] row_mask:0xf bank_mask:0x3")
        a(f"ds_write_b16_d16_hi v{VAW}, v{FG+1} offset:640")
        stamp(8, VST)
        a(f"v_lshlrev_b32 v{K_X}, 16, v{K_X}")
    role_make()
    a.c('softmax statistics of the workgroup -> other splits of the kv group')
    a(f"s_cmp_lg_u32 s{WV}, 0\ns_cbranch_scc1 L_ml_pub")
    lds_wait(C_ML, 8, WK, VCN, sleep=max(2, cfg.lsl))
    stamp(9, VST)
    a(f"v_lshlrev_b32 v{WK+2}, 3, v1\nv_add_u32 v{WK+3}, {L_MLW}, v{WK+2}\nds_read_b64 {vr(WK,2)}, v{WK+3}\ns_waitcnt lgkmcnt(0)")
    a(f"v_mov_b32 v{WK+4}, v{WK}")
    xreduce("v_max_f32", WK + 4, WK + 6, (8, 16, 32))
    a(f"v_sub_f32 v{WK}, v{WK}, v{WK+4}\nv_mul_f32 v{WK}, s33, v{WK}\nv_exp_f32 v{WK}, v{WK}\nv_mul_f32 v{WK+5}, v{WK}, v{WK+1}")
    xreduce("v_add_f32", WK + 5, WK + 6, (8, 16, 32))
    a(f"s_mov_b64 exec, 0xff\nbuffer_store_dwordx2 {vr(WK+4,2)}, v{WK+2}, {sr(R_WS,4)}, s81 offen sc1\ns_mov_b64 exec, -1")
    a.label("L_ml_pub")
    if cfg.steal:
        a(f"s_lshl_b32 s5, s{WV}, 7\nv_add_u32 v{WK+1}, s5, v{VACT}\nds_read_b128 {vr(ACT,4)}, v{WK+1} offset:{L_SIL-L_MISC}\nds_read_b128 {vr(ACT+4,4)}, v{WK+1} offset:{L_SIL-L_MISC+64}")
        lds_wait(C_DEC, 1, WK, VCN)
        a("s_mov_b32 s85, s5")
        for bit, cnt, base, slot in ((0, C_MOD2, L_MOD + 32768, None), (1, C_MOD3, L_WO, 84)):
            a(f"s_bitcmp1_b32 s85, {bit}\ns_cbranch_scc0 L_st_skip{bit}")
            lds_wait(cnt, 8, WK, VCN)
            tr_tile(FU, base, 2, WK + 4)
            a("s_waitcnt lgkmcnt(0)")
            gemv_pub([FU, FU + 8], 2, FU + 16, FU + 24, MODP + 512, slot=slot)
            a.label(f"L_st_skip{bit}")
        lds_signal(C_MLD, VCN, VONE)
    a.c('32 waves finish ga, sb, cb, gb')
    a(f"s_cmp_lg_u32 s{WV}, 2\ns_cbranch_scc1 L_modf_done\ns_and_b32 s5, s2, 0xc4\ns_cmp_lg_u32 s5, 0xc4\ns_cbranch_scc1 L_modf_done")
    a(f"s_bfe_u32 s36, s2, 0x30003\ns_and_b32 s37, s2, 3\ns_mul_i32 s5, s36, {WS}\ns_lshl_b32 s6, s37, 7\ns_add_u32 s5, s5, s6")
    a(f"v_lshrrev_b32 v{WK}, 3, v1\nv_mul_u32_u24 v{VA}, {16*WS}, v{WK}\nv_and_b32 v{WK}, 7, v1\nv_lshl_add_u32 v{VA}, v{WK}, 4, v{VA}\nv_add_u32 v{VA}, s5, v{VA}")
    if cfg.steal: lds_wait(C_P9, 8, WK, VCN, sleep=4)
    mv = [MODP, MODP + 8 * WS, MODP + 512, MODP + 512 + 8 * WS]
    gather([(FG + 8 * v + 4 * i, 4, VA, mv[v] + i * 128 * WS, None) for v in range(4) for i in range(2)], WK, kind="byte")
    for v in range(4):
        pk_sum4(FG + 8 * v, 2); col_reduce(FG + 8 * v); rnd(FG + 8 * v, FG + 8 * v)
    for v in range(4): tagit(FU + v, FG + 8 * v, v)
    a(f"v_lshlrev_b32 v{WK}, 3, v{K_C1}\ns_lshl_b32 s5, s36, 11\ns_lshl_b32 s6, s37, 9\ns_add_u32 s5, s5, s6\ns_add_u32 s5, s5, {MODF}")
    setexec(0x00ff00ff00ff00ff)
    a(f"buffer_store_dwordx4 {vr(FU,4)}, v{WK}, {sr(R_WS,4)}, s5 offen sc1\ns_mov_b64 exec, -1")
    a.label("L_modf_done")
    a(f"s_cmp_lg_u32 s{WV}, 0\ns_cbranch_scc1 L_ml_done")
    a(f"v_lshl_add_u32 v{VA}, v1, 3, s80")
    lds_wait(C_P3, 8, WK, VCN, sleep=cfg.lsl)
    stamp(21, VST)
    gather([(FU + 2 * i, 2, VA, i * 512, None) for i in range(8)], WK)
    a.c('global max and sum over the 64 splits -> LDS')
    m_, r_, t_ = FU + 16, FU + 17, FU + 18
    a(f"v_max3_f32 v{m_}, v{FU}, v{FU+2}, v{FU+4}\nv_max3_f32 v{m_}, v{m_}, v{FU+6}, v{FU+8}\nv_max3_f32 v{m_}, v{m_}, v{FU+10}, v{FU+12}\nv_max_f32 v{m_}, v{m_}, v{FU+14}")
    xreduce("v_max_f32", m_, t_, (8, 16, 32))
    for i in range(8):
        a(f"v_sub_f32 v{FU+2*i}, v{FU+2*i}, v{m_}\nv_mul_f32 v{FU+2*i}, s33, v{FU+2*i}\nv_exp_f32 v{FU+2*i}, v{FU+2*i}")
    for i in range(8): a(f"v_mul_f32 v{FU+2*i}, v{FU+2*i}, v{FU+2*i+1}")
    tree_sum(FU, 8, 2)
    xreduce("v_add_f32", FU, t_, (8, 16, 32))
    a(f"v_rcp_f32 v{r_}, v{FU}")
    a(f"v_lshlrev_b32 v{t_}, 3, v1\nv_add_u32 v{t_}, {L_MLF}, v{t_}\ns_mov_b64 exec, 0xff\nds_write_b64 v{t_}, {vr(m_,2)}\ns_waitcnt lgkmcnt(0)")
    lds_signal(C_MLD, VCN, VONE)
    stamp(10, VST)
    a.label("L_ml_done")
    if cfg.bal >= 2: bal_run(8 * (cfg.NS - cfg.hstop - cfg.D2 - cfg.nq2 + (32 if cfg.balk else 0)))
    lds_wait(C_P3, 8, WK, VCN, sleep=max(4, cfg.lsl))
    rest_mod()
    late = lst(cfg.late)
    def ffn_frags(name, t0):
        base, dst, cnt = {"wo": (L_WO, FWO, C_WO), "gate": (L_GATE, FG, C_GATE), "up": (L_UP, FU, C_UP), "dn": (L_DN, FD, None)}[name]
        if cnt is not None: lds_wait(cnt, 8, t0, VCN, sleep=0 if name in late else 2)
        tr_tile(dst, base, 4, t0)
    if "wo" not in late: ffn_frags("wo", WK + 3)
    for name in ("gate", "up"):
        if name not in late: ffn_frags(name, WK + 3)
    a.c('addresses used by the tail')
    A_OS, A_OG, A_XW = ACT + 8, ACT + 9, ACT + 10
    A_A = WK + 5
    assert all(t in late for t in ("gate", "up"))
    if cfg.ared:
        a(f"s_and_b32 s5, s2, 3\ns_mul_i32 s5, s5, {WS}\ns_lshl_b32 s6, s{RBF}, 9\ns_add_u32 s5, s5, s6\ns_lshl_b32 s7, s{WV}, 7\ns_add_u32 s5, s5, s7")
    else:
        a(f"s_lshr_b32 s5, s2, 6\ns_mul_i32 s5, s5, {WS}\ns_lshl_b32 s6, s30, 9\ns_add_u32 s5, s5, s6\ns_lshl_b32 s7, s{WV}, 7\ns_add_u32 s5, s5, s7")
    a(f"v_lshl_add_u32 v{A_A}, v{WK+1}, 2, v{WK+2}\nv_add_u32 v{A_A}, s5, v{A_A}")
    a(f"s_mul_i32 s5, s{RBF}, {8*WS}\ns_add_u32 s5, s5, s7\nv_add3_u32 v{VA}, v{WK+1}, v{WK+2}, s5")
    a(f"v_lshl_add_u32 v{WK+1}, v{WK+1}, 3, v{WK+2}\nv_add_u32 v{WK+1}, s34, v{WK+1}")
    a(f"s_and_b32 s5, s{ROLE}, 0xf8\ns_mul_i32 s5, s5, {WS}\ns_lshl_b32 s6, s{WV}, 8\ns_add_u32 s5, s5, s6\nv_lshrrev_b32 v{WK}, 4, v1\nv_mul_u32_u24 v{WK}, {WS}, v{WK}")
    a(f"v_and_b32 v{WK+2}, 15, v1\nv_lshlrev_b32 v{WK+2}, 4, v{WK+2}\nv_add3_u32 v{WK+2}, v{WK}, v{WK+2}, s5")
    A_Y, A_Z, A_E = VA, WK + 1, WK + 2
    a(f"v_lshrrev_b32 v{WK}, 4, v1\nv_and_b32 v{WK+3}, 15, v1\nv_lshlrev_b32 v{A_OS}, 10, v{WK}\nv_lshl_add_u32 v{A_OS}, v{WK+3}, 4, v{A_OS}")
    a(f"s_lshl_b32 s5, s{WV}, 8\ns_add_u32 s5, s5, {L_OS}\nv_add_u32 v{A_OS}, s5, v{A_OS}")
    a(f"v_and_b32 v{A_OG}, 7, v1\nv_lshlrev_b32 v{A_OG}, 9, v{A_OG}\nv_lshl_add_u32 v{A_OG}, v{WK}, 4, v{A_OG}\nv_and_b32 v{WK+3}, 8, v1\nv_lshl_add_u32 v{A_OG}, v{WK+3}, 3, v{A_OG}")
    a(f"s_lshl_b32 s37, s{WV}, 7\ns_add_u32 s37, s37, s{SMY}\ns_add_u32 s37, s37, {OP}")
    a(f"v_and_b32 v{WK+3}, 7, v1\nv_bfe_u32 v{WK+4}, v1, 4, 1\nv_lshl_add_u32 v{WK+3}, v{WK+4}, 4, v{WK+3}\nv_lshrrev_b32 v{WK+4}, 5, v1\nv_lshl_add_u32 v{WK+3}, v{WK+4}, 3, v{WK+3}")
    if cfg.ared: a(f"s_lshl_b32 s5, s{WV}, 7\ns_add_u32 s5, s5, {L_RV}\nv_lshl_add_u32 v{A_XW}, v{WK+3}, 1, s5\nv_readfirstlane_b32 s33, v{TAG}")
    else: a(f"s_lshl_b32 s5, s{WV}, 6\ns_add_u32 s5, s5, {L_OV}\nv_lshl_add_u32 v{A_XW}, v{WK+3}, 1, s5")
    a(f"v_lshlrev_b32 v{VCHK}, 2, v1\nv_add_u32 v{VCHK}, {L_MISC}, v{VCHK}")
    def e_preread(t):
        a(f"v_lshlrev_b32 v{t}, 7, v1\ns_lshl_b32 s5, s{WV}, 8\ns_add_u32 s5, s5, s{SFY}\ns_add_u32 s5, s5, {GUP}\ns_mov_b64 exec, 7")
        a(f"buffer_load_dword v{t}, v{t}, {sr(R_WS,4)}, s5 offen sc1\ns_mov_b64 exec, -1")
    if cfg.warm:
        a(f"s_getpc_b64 s[6:7]\ns_lshl_b32 s5, s{WV}, 11\nv_lshlrev_b32 v{WK+4}, 7, v1\nv_add_u32 v{WK+4}, s5, v{WK+4}\ns_mov_b64 exec, 0xffff")
        a(f"global_load_dword v{WK+3}, v{WK+4}, s[6:7]\ns_mov_b64 exec, -1")
    a(f"v_readfirstlane_b32 s35, v{TAG}\ns_lshl_b32 s35, s35, 10\ns_or_b32 s35, s35, {8 * (cfg.NS - cfg.D2 - cfg.nq2 + (32 if cfg.balk else 0)) + 1}")
    if cfg.zt:
        a(f"s_lshl_b32 s5, s{WV}, 7\ns_add_u32 s5, s5, s{SFY}\ns_add_u32 s5, s5, {ZP}\ns_mov_b64 exec, 1\nbuffer_load_dword v{TAG}, off, {sr(R_WS,4)}, s5 sc1\ns_mov_b64 exec, -1")
    if cfg.ot & 1:
        a(f"v_lshlrev_b32 v{WK+4}, 7, v1\ns_lshl_b32 s5, s{WV}, 10\ns_add_u32 s5, s5, s{SMY}\ns_add_u32 s5, s5, {OP}\ns_mov_b64 exec, 0xff\nbuffer_load_dword v{TAG}, v{WK+4}, {sr(R_WS,4)}, s5 offen sc1\ns_mov_b64 exec, -1")
    if cfg.ot & 2:
        a(f"s_lshl_b32 s5, s{WV}, 7\ns_add_u32 s5, s5, s{SMY}\ns_add_u32 s5, s5, {YP}\ns_mov_b64 exec, 1\nbuffer_load_dword v{TAG}, off, {sr(R_WS,4)}, s5 sc1\ns_mov_b64 exec, -1")
    if cfg.elocal and cfg.epre == 1: e_preread(WK + 3); a("s_waitcnt vmcnt(0)")
    P31 = 8 * (cfg.NS - cfg.D2 + 1)
    def lb_setup(h):
        a(f"s_mul_i32 s86, s30, {WS}\ns_add_u32 s86, s86, {BRD}\ns_lshr_b32 s87, s2, 3\ns_lshl_b32 s87, s87, 2\ns_add_u32 s87, s87, s86\nv_lshlrev_b32 v{h}, 2, v1")
    def lb_issue(h):
        a(f"ds_read_b32 v{h+2}, v{VCN} offset:{C_T*4}\ns_waitcnt lgkmcnt(0)\nv_readfirstlane_b32 s88, v{h+2}\ns_sub_u32 s88, s88, s39")
        a(f"s_cmp_lt_u32 s{ROLE}, 224\ns_cselect_b32 s5, s88, 1023\ns_or_b32 s5, s5, s35\nv_mov_b32 v{h+2}, s5\ns_mov_b64 exec, 1\nbuffer_store_dword v{h+2}, off, {sr(R_WS,4)}, s87")
        a(f"s_mov_b32 exec_lo, -1\nbuffer_load_dword v{h+3}, v{h}, {sr(R_WS,4)}, s86 offen sc1\ns_mov_b64 exec, -1")
    def lb_finish(h):
        a(f"v_xor_b32 v{h+3}, s35, v{h+3}\nv_cmp_gt_u32 vcc, 1024, v{h+3}\nv_cndmask_b32 v{h+3}, 0, v{h+3}, vcc\nv_cmp_le_u32 vcc, {P31}, v{h+3}\ns_bcnt1_i32_b32 s89, vcc_lo")
        a(f"v_mov_b32 v{h+4}, s88\nv_cmp_eq_u32 vcc, 1023, v{h+3}\nv_cndmask_b32 v{h+3}, v{h+3}, v{h+4}, vcc")
        xreduce("v_add_u32", h + 3, h + 4, (1, 2, 4, 8, 16))
        a(f"v_readfirstlane_b32 s42, v{h+3}\ns_lshr_b32 s42, s42, 5\ns_sub_u32 s42, s42, s88\ns_sub_u32 s43, s42, s39\ns_mov_b32 s39, s42")
        a(f"v_mov_b32 v{h+2}, s43\ns_mov_b64 exec, 1\nds_add_u32 v{VCN}, v{h+2} offset:{C_T*4}\ns_mov_b64 exec, -1")
    h = FG
    def cd_mark():
        a(f"s_mul_i32 s36, s30, {WS}\ns_add_u32 s36, s36, {BRD}\ns_lshr_b32 s5, s2, 3\ns_lshl_b32 s5, s5, 2\ns_add_u32 s5, s5, s36")
        a(f"v_lshlrev_b32 v{h}, 2, v1\nv_mov_b32 v{h+1}, s35\nv_mov_b32 v{h+4}, 8\ns_mov_b64 exec, 1\nbuffer_store_dword v{h+1}, off, {sr(R_WS,4)}, s5 {cfg.lfl}\ns_mov_b32 exec_lo, -1")
    def hint_mark(early):
        a(f"s_cmp_lg_u32 s{WV}, 3\ns_cbranch_scc1 L_hm_done")
        if early: lds_wait(C_P8, 8, WK, VCN, sleep=cfg.lsl)
        if cfg.hint == 3: a("s_waitcnt vmcnt(0)"); stamp(30, VST)
        a(f"s_mul_i32 s5, s30, {WS}\ns_add_u32 s5, s5, {TKT}\nv_mov_b32 v{h}, 1\nv_mul_u32_u24 v{h+1}, {WS}, v1\nv_mov_b32 v{h+2}, s35\ns_mov_b64 exec, 1")
        a(f"buffer_atomic_add v{h}, off, {sr(R_WS,4)}, s5 sc0 sc1\ns_mov_b64 exec, -1")
        a(f"s_and_b32 s36, s2, 3\ns_mul_i32 s36, s36, {64*WS}\ns_and_b32 s5, s2, 4\ns_add_u32 s36, s36, s5\ns_add_u32 s36, s36, {INB}")
        a(f"s_waitcnt vmcnt(0)\nv_readfirstlane_b32 s5, v{h}\ns_cmp_lg_u32 s5, 30\ns_cbranch_scc1 L_hm_done")
        a(f"buffer_store_dword v{h+2}, v{h+1}, {sr(R_WS,4)}, s36 offen sc1")
        a.label("L_hm_done")
    if cfg.hint:
        if cfg.hint == 1: hint_mark(True)
    elif cfg.lp:
        a(f"s_and_b32 s35, s35, 0xfffffc00\ns_cmp_lg_u32 s{WV}, 3\ns_cbranch_scc1 L_cm_done")
        lds_wait(C_P8, 8, WK, VCN, sleep=cfg.lsl)
        lb_setup(h); lb_issue(h)
        a.label("L_cm_done")
    elif cfg.cdone and cfg.pv >= 0:
        a(f"s_cmp_lg_u32 s{WV}, 3\ns_cbranch_scc1 L_cm_done")
        lds_wait(C_P8, 8, WK, VCN, sleep=cfg.lsl)
        cd_mark()
        a(f"buffer_load_dword v{h+2}, v{h}, {sr(R_WS,4)}, s36 offen sc1\ns_mov_b64 exec, -1")
        a.label("L_cm_done")
    a("s_waitcnt lgkmcnt(0)")
    stamp(11, VST)
    a("s_barrier")
    stamp(12, VST)
    a.c("sum the 8 waves' O and publish the workgroup's partial")
    for s in range(8): a(f"ds_read_b128 {vr(FD+4*s,4)}, v{A_OS} offset:{s*4096}")
    a("s_waitcnt lgkmcnt(4)"); pk_sum4(FD, 4)
    a("s_waitcnt lgkmcnt(0)"); pk_sum4(FD + 16, 4)
    a(f"v_pk_add_f32 {vr(FD,2)}, {vr(FD,2)}, {vr(FD+16,2)}\nv_pk_add_f32 {vr(FD+2,2)}, {vr(FD+2,2)}, {vr(FD+18,2)}")
    for i in range(4): tagit(FD + i, FD + i, i)
    a(f"buffer_store_dwordx4 {vr(FD,4)}, v{A_OG}, {sr(R_WS,4)}, s37 offen sc1")
    stamp(13, VST)
    def betweenA():
        if cfg.p5 < 0: lds_signal(C_OR, VCN, VONE)
        if "wo" in late: ffn_frags("wo", WK + 3)
    if cfg.p5 >= 0:
        lds_signal(C_OR, VCN, VONE)
        if cfg.ared: a(f"s_cmp_lt_u32 s{ROLE}, 224\ns_cbranch_scc1 L_ar_done")
        if cfg.hint:
            if cfg.hint >= 2: hint_mark(False)
            a(f"s_cmp_lg_u32 s{WV}, 2\ns_cbranch_scc1 L_hp_done")
            a(f"s_add_u32 s5, s{SMY}, {INB}\ns_add_u32 s40, s{KA(104)}, s5\ns_addc_u32 s41, s{KA(104)+1}, 0\nv_mov_b32 v{h+4}, 8")
            a.label("L_hp")
            a(f"s_load_dwordx2 s[42:43], s[40:41], 0 glc\nds_read_b32 v{h+3}, v{VCN} offset:{C_P5*4}")
            budget_check()
            a(f"s_waitcnt lgkmcnt(0)\nv_readfirstlane_b32 s5, v{h+3}\ns_cmp_ge_u32 s5, 8\ns_cbranch_scc1 L_hp_done")
            a(f"s_cmp_lg_u32 s42, s35\ns_cbranch_scc1 L_hp\ns_cmp_lg_u32 s43, s35\ns_cbranch_scc1 L_hp")
            if cfg.hd:
                a(f"ds_read_b32 v{WK}, v{VCN} offset:{C_LC*4}\ns_waitcnt lgkmcnt(0)\nv_readfirstlane_b32 s42, v{WK}\ns_add_u32 s42, s42, {cfg.hd}\ns_min_u32 s42, s42, {8 * (16 - cfg.nl0 - cfg.nmid - cfg.npre)}")
                lds_wait(C_LC, "s42", WK, VCN)
            a(f"s_mov_b64 exec, 1\nds_add_u32 v{VCN}, v{h+4} offset:{C_P5*4}\ns_mov_b64 exec, -1")
            a.label("L_hp_done")
        elif cfg.lp:
            a(f"s_cmp_lg_u32 s{WV}, 3\ns_cbranch_scc1 L_cd_done\ns_waitcnt vmcnt(1)\ns_branch L_cd_chk")
            a.label("L_cd")
            lb_issue(h)
            a(f"ds_read_b32 v{h+5}, v{VCN} offset:{C_P5*4}")
            budget_check()
            a(f"s_waitcnt lgkmcnt(0)\nv_readfirstlane_b32 s5, v{h+5}\ns_cmp_ge_u32 s5, 8\ns_cbranch_scc1 L_cd_done\ns_waitcnt vmcnt(0)")
            a.label("L_cd_chk")
            lb_finish(h)
            a(f"s_cmp_lt_u32 s89, {cfg.cdone}\ns_cbranch_scc1 L_cd")
            a(f"v_mov_b32 v{h+4}, 8\ns_mov_b64 exec, 1\nds_add_u32 v{VCN}, v{h+4} offset:{C_P5*4}\ns_mov_b64 exec, -1")
            a.label("L_cd_done")
        elif cfg.cdone:
            a(f"s_cmp_lg_u32 s{WV}, 3\ns_cbranch_scc1 L_cd_done")
            if cfg.pv < 0: cd_mark()
            else: a(f"s_mov_b32 exec_hi, 0\ns_waitcnt vmcnt(1)\ns_branch L_cd_chk")
            a.label("L_cd")
            a(f"buffer_load_dword v{h+2}, v{h}, {sr(R_WS,4)}, s36 offen sc1\nds_read_b32 v{h+3}, v{VCN} offset:{C_P5*4}")
            budget_check()
            a(f"s_waitcnt lgkmcnt(0)\nv_readfirstlane_b32 s5, v{h+3}\ns_cmp_ge_u32 s5, 8\ns_cbranch_scc1 L_cd_out\ns_waitcnt vmcnt(0)")
            a.label("L_cd_chk")
            a(f"v_cmp_eq_u32 vcc, s35, v{h+2}\ns_bcnt1_i32_b64 s5, vcc\ns_cmp_lt_u32 s5, {cfg.cdone}\ns_cbranch_scc1 L_cd")
            a(f"s_mov_b64 exec, 1\nds_add_u32 v{VCN}, v{h+4} offset:{C_P5*4}")
            a.label("L_cd_out")
            a("s_mov_b64 exec, -1")
            a.label("L_cd_done")
        if cfg.pmin >= 0: lds_wait(C_P7, 8, WK, VCN)
        lds_wait(C_P5, 8, WK, VCN)
    if cfg.yp >= 0: lds_signal(C_AI, VCN, VONE)
    stamp(28, VST)
    a.c('hand-off 3: o of one head (64 partials), y partial = o @ wo tile')
    if cfg.dbgh & 4:
        for i in range(32): a(f"v_mov_b32 v{FU+i}, 0")
    gather([(FU + 4 * i, 4, A_A, OP + i * 32 * WS, 0x0101010101010101 if cfg.dbgh & 4 else None) for i in range(8)], WK, kind="byte", between=None if cfg.ared else betweenA, acc=FD + 4)
    if cfg.yrel == 1: lds_signal(C_Y, VCN, VONE)
    stamp(30 if cfg.ared else 14, VST)
    col_reduce(FD + 4)
    rnd(FD + 4, FD + 4)
    a(f"ds_write_b16_d16_hi v{A_XW}, v{FD+4}")
    if cfg.ared:
        r_ = FD + 8
        a(f"v_mul_u32_u24 v{r_+4}, 43, v1\nv_lshrrev_b32 v{r_+4}, 8, v{r_+4}\nv_mul_u32_u24 v{r_+5}, 6, v{r_+4}\nv_sub_u32 v{r_+5}, v1, v{r_+5}")
        a(f"v_mul_u32_u24 v{r_+6}, 12, v{r_+5}\ns_lshl_b32 s5, s{WV}, 7\ns_add_u32 s6, s5, {L_RV}\nv_add_u32 v{r_+6}, s6, v{r_+6}")
        a(f"ds_read2_b32 {vr(r_,2)}, v{r_+6} offset0:0 offset1:1\nds_read_b32 v{r_+2}, v{r_+6} offset:8\nv_mov_b32 v{r_+3}, s33")
        a(f"v_mul_u32_u24 v{r_+4}, {8*WS}, v{r_+4}\nv_lshl_add_u32 v{r_+4}, v{r_+5}, 4, v{r_+4}")
        a(f"s_and_b32 s6, s2, 3\ns_lshl_b32 s6, s6, 6\ns_add_u32 s6, s6, s{RBF}\ns_mul_i32 s6, s6, {WS}\ns_add_u32 s5, s5, s6\ns_add_u32 s5, s5, {OIN}")
        a(f"s_mov_b32 exec_hi, 0xffff\ns_waitcnt lgkmcnt(0)\nbuffer_store_dwordx4 {vr(r_,4)}, v{r_+4}, {sr(R_WS,4)}, s5 offen sc1\ns_mov_b32 exec_hi, -1")
        a.label("L_ar_done")
        ffn_frags("wo", WK + 3)
        a(f"s_lshl_b32 s5, s{WV}, 7\ns_add_u32 s5, s5, s{SMY}\ns_add_u32 s5, s5, {OIN}\ns_add_u32 s40, s{KA(104)}, s5\ns_addc_u32 s41, s{KA(104)+1}, 0")
        a(f"s_lshl_b32 s5, s{WV}, 6\ns_add_u32 s5, s5, {L_OV}\nv_mov_b32 v{r_+16}, s5\ns_branch L_ap0")
        a.label("L_ap")
        if cfg.asl: a(f"s_sleep {cfg.asl}")
        a.label("L_ap0")
        a("s_load_dwordx16 s[44:59], s[40:41], 0 glc\ns_load_dwordx8 s[60:67], s[40:41], 64 glc")
        budget_check()
        a("s_waitcnt lgkmcnt(0)")
        for g in range(6): a(f"s_cmp_lg_u32 s{47+4*g}, s33\ns_cbranch_scc1 L_ap")
        a("s_mov_b64 exec, 1")
        for i in range(16):
            a(f"v_mov_b32 v{r_+i}, s{44 + 4*(i//3) + i%3}")
            if i % 4 == 3: a(f"ds_write_b128 v{r_+16}, {vr(r_+i-3,4)} offset:{(i-3)*4}")
        a("s_mov_b64 exec, -1")
        stamp(14, VST)
    xch_read(L_OV, 4, WK, VACT)
    gemv_pub([FWO, FWO + 16], 4, FD, FD + 16, YP)
    if not cfg.yrel: lds_signal(C_Y2 if cfg.yp >= 0 else C_Y, VCN, VONE)
    stamp(15, VST)
    a(f"s_cmp_lt_u32 s{ROLE}, 224\ns_cbranch_scc1 L_ffn")
    if cfg.yrel == 2: lds_signal(C_Y, VCN, VONE)
    a("s_branch L_fin")
    a.label("L_ffn")
    a(f"s_mov_b32 s{SMY}, s{SFY}")
    if cfg.yd >= 0:
        a(f"ds_read_b32 v{WK}, v{VCN} offset:{C_LC*4}\ns_waitcnt lgkmcnt(0)\nv_readfirstlane_b32 s34, v{WK}\ns_add_u32 s34, s34, {cfg.yd}\ns_min_u32 s34, s34, {8 * (16 - cfg.nl0 - cfg.nmid - cfg.npre)}")
    A_AT, A_M, A_GS = WK + 5, FWO + 30, FWO + 31
    a(f"v_and_b32 v{WK}, 3, v1\nv_mul_u32_u24 v{WK+3}, 320, v{WK}\nv_add_u32 v{A_AT}, v{WK+3}, v{VACT}")
    a(f"v_bfe_u32 v{WK+3}, v1, 2, 3\nv_mul_u32_u24 v{WK+3}, {WS}, v{WK+3}\nv_lshl_add_u32 v{A_M}, v{WK}, 4, v{WK+3}\ns_and_b32 s5, s{ROLE}, 0xf8\ns_mul_i32 s5, s5, {WS}\nv_add_u32 v{A_M}, s5, v{A_M}")
    a(f"s_lshl_b32 s36, s{WV}, 8\ns_add_u32 s36, s36, s{SMY}\ns_add_u32 s36, s36, {GUP}\nv_lshlrev_b32 v{A_GS}, 2, v1")
    a(f"s_lshl_b32 s37, s{WV}, 4\ns_add_u32 s37, s37, s{SMY}\ns_add_u32 s37, s37, {MOM}")
    a(f"s_lshl_b32 s5, s{WV}, 6\ns_add_u32 s5, s5, {L_HHV}\nv_add_u32 v{VB}, s5, v{TB}")
    def store_gl(data, vaddr, soff):
        if cfg.elocal:
            Lf = a.newlabel("L_far"); Lj = a.newlabel("L_stj")
            a(f"s_cmp_eq_u32 s15, 0\ns_cbranch_scc1 {Lf}")
            a(f"buffer_store_dwordx4 {vr(data,4)}, {vaddr}, {sr(R_WS,4)}, {soff} {cfg.lfl}")
            a.label(Lj)
            def far():
                a.label(Lf); a(f"buffer_store_dwordx4 {vr(data,4)}, {vaddr}, {sr(R_WS,4)}, {soff} sc1\ns_branch {Lj}")
            deferred.append(far)
        else: a(f"buffer_store_dwordx4 {vr(data,4)}, {vaddr}, {sr(R_WS,4)}, {soff} sc1")
    if cfg.elocal and cfg.epre == 2: e_preread(FWO + 29)
    def dnf():
        a("s_barrier")
        ffn_frags("dn", WK + 3)
    def gu_frags():
        for name in ("gate", "up"):
            if name in late: ffn_frags(name, WK + 3)
    if cfg.lp:
        h2 = FD + 24
        a(f"s_cmp_lg_u32 s{WV}, 3\ns_cbranch_scc1 L_lb_done")
        lb_setup(h2)
        a.label("L_lb")
        lb_issue(h2)
        budget_check()
        a(f"s_cmp_ge_u32 s88, {P31 + 8 * (cfg.p6 - cfg.lstop)}\ns_cbranch_scc1 L_lb_done\ns_waitcnt vmcnt(0)")
        lb_finish(h2)
        a("s_branch L_lb")
        a.label("L_lb_done")
    if cfg.bgate == 1: gu_frags()
    if cfg.nb: lds_wait(C_UP, cfg.nb, WK, VCN, sleep=0)
    if cfg.yd >= 0:
        lds_wait(C_LC, "s34", WK, VCN)
    if cfg.p6 >= 0: lds_wait(C_P6, 8, WK, VCN)
    if cfg.ackB: a("s_waitcnt vmcnt(0)")
    stamp(29, VST)
    a.c("hand-off 4: y for this wave's 32 columns; x2 = x + ga*y; rows hi/lo(x2*(1+cb)), 1+cb, sb feed one MFMA pass")
    gather([(FWO + 4 * i, 4, A_Y, YP + i * 64 * WS, None) for i in range(4)], WK, kind="byte", between=dnf if cfg.efirst == 3 else gu_frags if cfg.bgate == 2 else None, acc=FWO + 24, masked=bool(cfg.bmask))
    if cfg.yrel == 2: lds_signal(C_Y, VCN, VONE)
    stamp(16, VST)
    col_reduce(FWO + 24)
    y_ = FWO + 24
    rnd(y_, y_); a(f"v_mul_f32 v{y_}, v{y_}, v{K_GA}"); rnd(y_, y_); a(f"v_add_f32 v{K_X}, v{K_X}, v{y_}"); rnd(K_X, K_X)
    st_ = FWO + 28; mo = FWO
    a(f"v_mov_b32 v{st_}, v{K_X}\nv_mul_f32 v{y_}, v{K_X}, v{K_C1}")
    a(f"v_mul_f32_dpp v{st_}, v{K_X}, v{K_X} quad_perm:[0,1,2,3] row_mask:0xf bank_mask:0xc\nv_mov_b32 v{st_+1}, v{st_}")
    rnd(y_ + 1, y_)
    a(f"s_nop 0\nv_permlane32_swap_b32 v{st_}, v{st_+1}\nv_add_f32 v{st_}, v{st_}, v{st_+1}\nv_mov_b32 v{st_+1}, v{st_}")
    a(f"v_subrev_f32_dpp v{y_}, v{y_+1}, v{y_} quad_perm:[0,1,2,3] row_mask:0xf bank_mask:0xc")
    rnd(y_, y_)
    a(f"v_permlane16_swap_b32 v{st_}, v{st_+1}\nv_add_f32 v{st_}, v{st_}, v{st_+1}")
    a(f"ds_write_b16_d16_hi v{VAW}, v{y_}")
    xreduce("v_add_f32", st_, None, ("quad_perm:[1,0,3,2]", "quad_perm:[2,3,0,1]", "row_half_mirror"))
    a(f"v_and_b32 v{mo}, v{st_}, v{BT}\nv_sub_f32 v{mo+1}, v{st_}, v{mo}")
    tagit(mo, mo, 0)
    a(f"v_mov_b32_dpp v{mo+2}, v{st_} row_ror:8 {DPPF}\nv_mov_b32_dpp v{mo+3}, v{mo+1} row_ror:8 {DPPF}")
    tagit(mo + 1, mo + 1, 1); tagit(mo + 2, mo + 2, 2); tagit(mo + 3, mo + 3, 3)
    a("s_mov_b64 exec, 1")
    store_gl(mo, "off", "s37")
    a("s_mov_b64 exec, -1")
    if cfg.efirst == 4: dnf()
    stamp(22, VST)
    frs = [FG, FG + 16, FU, FU + 16]; dacc = FWO; out = FWO + 16
    mg = FWO + 24
    mload = f"buffer_load_dwordx4 {vr(mg,4)}, v{A_M}, {sr(R_WS,4)}, s34 offen sc1"
    a(f"s_mov_b32 s34, {MOM}")
    if cfg.bgate == 0: gu_frags()
    xch_read(L_AT, 4, WK + 3, A_AT, two=True)
    for cg in range(5):
        if cg < 4:
            if cg > 1: a("s_mov_b64 exec, -1")
            if cg == cfg.mfirst: a(mload)
            for kk in range(4): mfma(dacc + 4 * cg, ACT + 4 * kk, frs[cg] + 4 * kk, kk == 0)
            if cg == 0:
                for k in range(4): a(f"v_mov_b32 v{out+4+k}, s{TB0+k}")
        if cg >= 1:
            d = dacc + 4 * (cg - 1)
            setexec(0xffff << (16 * (cg - 1)))
            a(f"v_add_f32 v{out}, v{d}, v{d+1}\nv_pk_mov_b32 {vr(out+2,2)}, {vr(d+2,2)}, {vr(d+2,2)} op_sel:[0,1]")
    a("s_mov_b64 exec, -1")
    if cfg.mfirst < 4: a("s_branch L_mchk")
    a.label("L_mld")
    a(mload); budget_check()
    a.label("L_mchk")
    a("s_waitcnt vmcnt(0)")
    for k in range(4): a(f"v_xor_b32 v{mg+k}, s{TB0+k}, v{mg+k}")
    a(f"v_or3_b32 v{WK}, v{mg}, v{mg+1}, v{mg+2}\nv_or_b32 v{WK}, v{WK}, v{mg+3}\nv_and_b32 v{WK}, 0xff, v{WK}\nv_cmp_ne_u32 vcc, 0, v{WK}\ns_cbranch_vccnz L_mld")
    stamp(27, VST)
    a.c('layer norm 2 applied after the GEMV: g,u partial = rstd * (A1 - mean * A2) + A3')
    a(f"v_add_f32 v{mg}, v{mg}, v{mg+1}\ns_mov_b32 exec_lo, 0\nv_add_f32 v{mg}, v{mg+2}, v{mg+3}\ns_mov_b32 exec_lo, -1")
    xreduce("v_add_f32", mg, mg + 1, (16, 8, 4, 2, 1))
    a(f"v_mul_f32 v{mg}, {f2u(1.0/1024):#x}, v{mg}\nv_mov_b32 v{mg+1}, v{mg}\nv_permlane32_swap_b32 v{mg}, v{mg+1}")
    a(f"v_fma_f32 v{mg+1}, -v{mg}, v{mg}, v{mg+1}"); rnd(mg, mg)
    a(f"v_max_f32 v{mg+1}, 0, v{mg+1}\nv_fma_f32 v{out}, -v{mg}, v{out+2}, v{out}")
    den_from_var(mg + 1, mg + 2)
    a(f"v_fma_f32 v{out}, v{out}, v{mg+2}, v{out+3}\nv_and_b32 v{out}, v{out}, v{BT}")
    for k in range(4): a(f"v_or_b32_dpp v{out+4+k}, v{out}, v{out+4+k} quad_perm:[{k},{k},{k},{k}] {DPPF}")
    setexec(0x1111111111111111)
    store_gl(out + 4, f"v{A_GS}", "s36 offen")
    a("s_mov_b64 exec, -1")
    stamp(23, VST)
    eg = [(FG + 4 * i, 4, A_E, GUP + i * 4 * WS, None) for i in range(2)]
    if not cfg.efirst: dnf()
    if cfg.ackE: a("s_waitcnt vmcnt(0)")
    stamp(17, VST)
    a.c('hand-off 5 (inside the group of 8): g, u -> gelu_tanh(g) * u -> z partial = hh @ down tile')
    gather(eg, WK, kind="byte", masked=cfg.efirst == 1, between=dnf if cfg.efirst == 1 else None, acc=FU)
    if cfg.efirst == 2: dnf()
    stamp(18, VST)
    g_ = FU
    a(f"v_permlane32_swap_b32 v{g_}, v{g_+1}\nv_permlane32_swap_b32 v{g_+2}, v{g_+3}\nv_add_f32 v{g_}, v{g_}, v{g_+1}\nv_add_f32 v{g_+2}, v{g_+2}, v{g_+3}")
    a(f"v_permlane16_swap_b32 v{g_}, v{g_+2}\nv_add_f32 v{g_}, v{g_}, v{g_+2}")
    rnd(g_, g_)
    k2 = -2.0 * 0.7978845608028654 * LOG2E
    a(f"v_mul_f32 v{g_+2}, v{g_}, v{g_}\nv_mul_f32 v{g_+3}, {f2u(k2):#x}, v{g_}\nv_mul_f32 v{g_+2}, {f2u(0.044715):#x}, v{g_+2}\nv_fma_f32 v{g_+2}, v{g_+2}, v{g_+3}, v{g_+3}")
    a(f"v_exp_f32 v{g_+2}, v{g_+2}\nv_mov_b32_dpp v{g_+1}, v{g_} row_ror:8 {DPPF}\nv_add_f32 v{g_+2}, 1.0, v{g_+2}\nv_rcp_f32 v{g_+2}, v{g_+2}\nv_mul_f32 v{g_}, v{g_}, v{g_+2}")
    rnd(g_, g_); a(f"v_mul_f32 v{g_}, v{g_}, v{g_+1}")
    setexec(0x00ff00ff00ff00ff)
    rnd(g_, g_)
    a(f"ds_write_b16_d16_hi v{VB}, v{g_}\ns_mov_b64 exec, -1")
    xch_read(L_HHV, 4, WK, VACT)
    gemv_pub([FD, FD + 16], 4, FG, FG + 8, ZP)
    stamp(19, VST)
    if cfg.clean:
        a(f"v_lshlrev_b32 v{WK+3}, 2, v1")
        setexec(0x1111111111111111)
        a(f"buffer_store_dwordx4 {vr(out+4,4)}, v{WK+3}, {sr(R_WS,4)}, s36 offen sc1\ns_mov_b64 exec, 1\nbuffer_store_dwordx4 {vr(out+4,4)}, off, {sr(R_WS,4)}, s37 sc1")
        a(f"s_mul_i32 s5, s30, {WS}\ns_lshr_b32 s6, s2, 3\ns_lshl_b32 s6, s6, 2\ns_add_u32 s5, s5, s6\nbuffer_store_dword v{out+4}, off, {sr(R_WS,4)}, s5 offset:{BRD} sc1\ns_mov_b64 exec, -1")
    a(f"s_lshr_b32 s5, s{ROLE}, 3\ns_cmp_lg_u32 s5, {cfg.dgrp}\ns_cbranch_scc1 L_fin")
    a.c('hand-off 6: z over the 28 groups; out = x2 + gb * z')
    for i in range(4): a(f"v_mov_b32 v{FU+12+i}, 0")
    a("s_lshl_b32 s36, s32, 1")
    stamp(26, VST)
    if cfg.ackD: a("s_waitcnt vmcnt(0)")
    if cfg.dsl: a(f"s_sleep {cfg.dsl}")
    gather([(FU + 4 * i, 4, A_Z, ZP + i * 64 * WS, None if i < 3 else 0xffffffff) for i in range(4)], WK, kind="byte", masked=False, acc=FU + 16)
    stamp(24, VST)
    z_ = FU + 16
    col_reduce(z_)
    rnd(z_, z_); a(f"v_mul_f32 v{z_}, v{z_}, v{K_GB}"); rnd(z_, z_); a(f"v_add_f32 v{z_}, v{K_X}, v{z_}")
    setexec(0x00ff00ff00ff00ff)
    rnd(z_, z_)
    a(f"buffer_store_short_d16_hi v{z_}, v{TB}, {sr(R_OUT,4)}, s36 offen" + (" sc1" if cfg.outsc else "") + "\ns_mov_b64 exec, -1")
    stamp(25, VST)
    a.label("L_fin")
    if cfg.stamps:
        a(f"s_lshl_b32 s5, s2, 11\ns_lshl_b32 s6, s3, 7\ns_add_u32 s5, s5, s6\ns_add_u32 s5, s5, 0x8000000\nv_lshlrev_b32 v2, 2, v1")
        a(f"s_mov_b32 exec_hi, 0\nbuffer_store_dword v{VST}, v2, {sr(R_WS,4)}, s5 offen sc1")
    a("s_endpgm")
    a.c('retry paths of the gathers (only the lanes still missing are loaded again)')
    for f in deferred: f()
    a.label("L_end")
    body = "\n".join(hazard.run(a.l)) + "\n"
    txt = wrap(body, 256, 768, LDS_BYTES, 168, extra_desc="  .amdhsa_float_denorm_mode_32 3\n")
    return txt.replace(".amdgcn_target", DOC + ".amdgcn_target", 1)

if __name__ == "__main__":
    out = sys.argv[1]
    kw = {}
    for x in sys.argv[2:]:
        k, v = x.split("="); kw[k] = int(v) if v.lstrip("-").isdigit() else v
    open(out, "w").write(gen(Cfg(**kw)))
```

```python
import sys, os, struct
from asmgen import *
import hazard

def f2u(x): return struct.unpack("<I", struct.pack("<f", x))[0]
LOG2E = 1.4426950408889634

class Cfg:
    D1 = 3; D2 = 3; DV = 6; D3 = 3
    stamps = False
    spin_budget = 1 << 18
    pre1 = "crit,wq,mod1,mod2"
    pre2 = ""
    mid = ""
    late = "wo,gate,up,dn"
    nl0 = 3
    nl2 = 0
    p1 = 8; p2 = 23; p3 = 22
    ackB = 1; ackE = 0; ackD = 1
    bgate = 1
    outsc = 1
    rb = ""
    give = 0
    gx = 1
    heavy = "1235"
    ereuse = 1
    warm0 = 0
    pad = 0
    lp = 0
    Lmin = 2; Lmax = 5; lth = -12; lstop = 2
    dbgm = 0
    lsl = 1
    cprio = 3
    yb = 0
    yp = -1
    xp = ""
    rot = 8
    pb = 3
    wg = 0
    xm = 1
    kvl = "X"
    hstop = 4
    NS = 32
    steal = 0
    sa = 18; sb = 21; p9 = 8
    D3b = 3; kb = 99
    clean = 0
    lfl = ""
    npre = 0
    qm = 0
    pm = 19
    dbgh = 0
    ared = 0
    asl = 2; apm = 2
    ofirst = 1
    bmask = 1
    D4 = 63
    ot = 2
    hd = 0
    hint = 0
    yd = -1
    pv = 31
    cdone = 32
    pmin = 3
    mfirst = 2
    nq2 = 0
    nmid = 0
    D0 = 3; n0 = 0
    ktouch = 0
    dsl = 0
    dgrp = 0
    warm = 0
    nb = 0
    p5 = 8
    p6 = 12
    ysl = 1
    efirst = 0
    bal = 2
    Dmin = 2; Dmax = 5; th = -12; balk = 0; DVmax = 6; Kmin = 2; Kmax = 4; hl = 2
    yrel = 0
    zt = 3
    elocal = 1
    epre = 2
    role = 1
    p4 = 18
    touch = 0
    def __init__(self, **kw):
        for k, v in kw.items():
            assert hasattr(self, k), k
            setattr(self, k, v)

QP, HP = 0, 512
TKT = 1024
OIN = 9472
INB = 9344
CLM = 1408
BRD = 1280
MODP = 2048
YP, ZP, OP, GUP, MOM = 3072, 3584, 4096, 8192, 9216
MODF = 6 << 20
XCP = MODF + 65536
MLA = MODF + 131072
QF = MODF + 196608
EPOCH = 8 << 20
L_MOD, L_WQ, L_UP, L_DN, L_WO, L_GATE, L_MISC = 0, 0xC000, 0, 0x8000, 0x14000, 0x1C000, 0x24000
L_OS = L_DN
L_CNT = L_MISC
(C_CRIT, C_WQ, C_MOD1, C_MOD2, C_WO, C_GATE, C_UP, C_DN, C_Q, C_H, C_ML, C_MLD, C_CLR, C_P1, C_P2, C_P3, C_Y, C_OR, C_ROLE, C_P4, C_T, C_TK, C_P5, C_P6, C_P7, C_P8, C_LC, C_PM, C_PA, C_PB, C_DEC, C_MOD3, C_P9, C_PAD, C_AI, C_Y2) = range(36)
L_QV = L_MISC + 0x100
L_HV = L_MISC + 0x900
L_HHV = L_MISC + 0xA00
L_OV = L_MISC + 0xB00
L_RV = L_MISC + 0x1700
L_SIL = L_MISC + 0xC00
L_MLW = L_MISC + 0xE00
L_MLF = L_MISC + 0x1000
L_AT = L_MISC + 0x1100
LDS_BYTES = 160 * 1024

DOC = """;
; One persistent launch, 256 workgroups (one per CU) x 12 waves.
;   waves 0..7  stream all big operands (nt loads): w_mod, wq tiles -> LDS, K -> registers, V -> registers, wo/gate/up/down tiles -> LDS,
;               and do QK^T, the exact two-pass softmax (true global max, exchanged between the 64 splits of a kv head) and PV with MFMA.
; Hand-offs are self-validating: 16-B granules carry this launch's tag (derived from the word the previous launch left in d_ws) in the low
; byte of every dword, or slots are cleared to a sentinel first and read only after the owner's tagged flag. Stores are write-through (sc1);
"""
def is_reducer(w): return w < 8
def vr(a, n=1): return f"v{a}" if n == 1 else f"v[{a}:{a+n-1}]"
def sr(a, n=1): return f"s{a}" if n == 1 else f"s[{a}:{a+n-1}]"

def gen(cfg):
    a = Asm()
    WS = 10112
    BUD = 4
    lst = lambda x: [t for t in x.split(",") if t]
    def srd_load(r, karg_off): a(f"s_load_dwordx2 {sr(r,2)}, s[0:1], {karg_off}")
    def srd_fin(r, nbytes): a(f"s_mov_b32 s{r+2}, {nbytes}\ns_mov_b32 s{r+3}, 0x20000")
    def rnd(d, s): a(f"v_cvt_pk_bf16_f32 v{d}, 0, v{s}")
    def setexec(m): a(f"s_mov_b32 exec_lo, {m & 0xffffffff:#x}\ns_mov_b32 exec_hi, {m >> 32:#x}")
    def stamp(idx, vreg):
        if cfg.stamps == 1 or (cfg.stamps == 2 and idx == 25): a(f"s_memrealtime s[98:99]\ns_waitcnt lgkmcnt(0)\nv_writelane_b32 v{vreg}, s98, {idx}")
    def budget_check(): a(f"s_sub_u32 s{BUD}, s{BUD}, 1\ns_cbranch_scc1 L_end")
    def lds_wait(cnt, target, vtmp, vaddr, sleep=1):
        L = a.newlabel("L_lw"); Ld = a.newlabel("L_lwd")
        a.label(L)
        a(f"ds_read_b32 v{vtmp}, v{vaddr} offset:{cnt*4}\ns_waitcnt lgkmcnt(0)\nv_readfirstlane_b32 s5, v{vtmp}")
        a(f"s_cmp_ge_u32 s5, {target}\ns_cbranch_scc1 {Ld}")
        if sleep: a(f"s_sleep {sleep}")
        budget_check()
        a(f"s_branch {L}")
        a.label(Ld)
    def lds_signal(cnt, vaddr, vone):
        a(f"s_mov_b64 exec, 1\nds_add_u32 v{vaddr}, v{vone} offset:{cnt*4}\ns_mov_b64 exec, -1")
    DPPF = "row_mask:0xf bank_mask:0xf"
    def xreduce(op, v, t, steps):
        for s in steps:
            if s in (1, 2, 4, 8): a(f"{op}_dpp v{v}, v{v}, v{v} row_ror:{s} {DPPF}")
            elif s == 16: a(f"v_mov_b32 v{t}, v{v}\nv_permlane16_swap_b32 v{v}, v{t}\n{op} v{v}, v{v}, v{t}")
            elif s == 32: a(f"v_mov_b32 v{t}, v{v}\nv_permlane32_swap_b32 v{v}, v{t}\n{op} v{v}, v{v}, v{t}")
            else: a(f"{op}_dpp v{v}, v{v}, v{v} {s} {DPPF}")

    a.label("L_start")
    a("s_load_dwordx16 s[68:83], s[0:1], 0\ns_load_dwordx8 s[84:91], s[0:1], 64\ns_load_dwordx4 s[92:95], s[0:1], 96")
    KA = lambda off: 68 + off // 4
    a("s_cmp_ge_u32 s2, 256\ns_cbranch_scc1 L_end")
    a("v_lshrrev_b32 v2, 6, v0\nv_and_b32 v1, 63, v0")
    a("v_readfirstlane_b32 s3, v2")
    a(f"s_mov_b32 s{BUD}, {cfg.spin_budget}")
    if cfg.stamps: a("s_memrealtime s[96:97]")
    a("s_cmp_ge_u32 s3, 8\ns_cbranch_scc1 L_cwave")

    R_MOD, R_WQ, R_WO, R_G, R_U, R_DN, R_K, R_V, R_WSS = 8, 12, 16, 20, 24, 28, 32, 36, 40
    VK, VV, VGU, VDN, VCN, VONE = 2, 3, 4, 5, 6, 7
    Q0, T0, DT, KV = 8, 16, 32, 40
    VMOD, VWQ, VST = 16, 17, 0
    VM = [VMOD]
    SB_MOD, SB_WQ, SB_WO, SB_GU, SB_DN, SB_KV, SO, SL, SL4 = 44, 45, 46, 47, 48, 49, 50, 51, 56
    def srd(r, off, nbytes): a(f"s_mov_b64 {sr(r,2)}, {sr(KA(off),2)}\ns_mov_b32 s{r+2}, {nbytes}\ns_mov_b32 s{r+3}, 0x20000")
    a.c('================= stream waves (0..7): every large load, QK^T, softmax, PV =================')
    a.c("lane offsets and scalar bases of this wave's share of the w_mod / wq tiles (16-B chunks swizzled for the transposing LDS reads)")
    a("v_and_b32 v32, 15, v1\nv_lshrrev_b32 v33, 4, v1\nv_lshlrev_b32 v34, 1, v33\nv_xor_b32 v34, v34, v32\nv_lshlrev_b32 v34, 4, v34")
    a(f"v_mul_u32_u24 v{VMOD}, 12288, v33\nv_add_u32 v{VMOD}, v{VMOD}, v34\ns_and_b32 s63, s3, 1\ns_lshl_b32 s63, s63, 7\nv_xor_b32 v{VMOD}, s63, v{VMOD}")
    a(f"v_lshl_add_u32 v{VWQ}, v33, 13, v34")
    a(f"s_lshr_b32 s5, s2, 4\ns_lshl_b32 s5, s5, 6\ns_lshl_b32 s6, s3, 3\ns_add_u32 s5, s5, s6\ns_mul_i32 s5, s5, 12288")
    a(f"s_and_b32 s6, s2, 15\ns_lshl_b32 s6, s6, 8\ns_add_u32 s{SB_MOD}, s5, s6\ns_lshl_b32 s{SL}, s3, 11\ns_lshl_b32 s{SL4}, s3, 12")
    a("s_and_b32 s52, s2, 7\ns_lshr_b32 s53, s2, 3")
    a(f"s_lshl_b32 s5, s52, 7\ns_lshl_b32 s57, s3, 4\ns_add_u32 s54, s5, s57")
    a(f"s_lshl_b32 s5, s54, 13\ns_lshl_b32 s55, s53, 8\ns_add_u32 s{SB_WQ}, s5, s55")
    a("s_waitcnt lgkmcnt(0)")
    srd(R_MOD, 80, 12582912); srd(R_WQ, 24, 8388608)
    def rest_of_setup():
        a(f"v_mul_u32_u24 v{VGU}, 7168, v33\nv_add_u32 v{VGU}, v{VGU}, v34\nv_lshl_add_u32 v{VDN}, v33, 11, v34\nv_lshlrev_b32 v{VV}, 4, v1")
        a(f"v_and_b32 v35, 2, v32\nv_lshlrev_b32 v35, {dict(X=(12 + cfg.pb if cfg.pb >= cfg.wg else 9 + cfg.pb), W=16).get(cfg.kvl, 12)}, v35\nv_lshrrev_b32 v36, 2, v32\nv_lshl_add_u32 v35, v36, 8, v35")
        a(f"v_and_b32 v36, 1, v32\nv_lshl_add_u32 v35, v36, 6, v35\nv_lshl_add_u32 v{VK}, v33, 4, v35")
        a(f"v_mov_b32 v{VCN}, {L_CNT}\nv_mov_b32 v{VONE}, 1")
        a(f"s_lshr_b32 s5, s2, 6\ns_lshl_b32 s5, s5, 3\ns_add_u32 s5, s5, s52\ns_lshl_b32 s5, s5, 7\ns_add_u32 s5, s5, s57\ns_lshl_b32 s5, s5, 11")
        a(f"s_and_b32 s6, s53, 7\ns_lshl_b32 s6, s6, 8\ns_add_u32 s{SB_WO}, s5, s6")
        a(f"s_and_b32 s5, s2, 3\ns_lshl_b32 s5, s5, 24")
        xp = str(cfg.xp) or ("345672" if cfg.xm else "234567")
        for k, ch in enumerate(xp):
            a(f"s_bfe_u32 s6, s2, {0x10000 | int(ch):#x}\ns_lshl_b32 s6, s6, {18 + k}\ns_add_u32 s5, s5, s6")
        a(f"s_lshl_b32 s6, s3, {10 + cfg.wg}\ns_add_u32 s{SB_KV}, s5, s6")
        if cfg.rb:
            bits = [b for b in range(5) if b != cfg.pb]
            for b, ch in zip(bits, str(cfg.rb).lstrip("_")):
                if ch == "x": continue
                v = int(ch, 16)
                a(f"s_bfe_u32 s6, s{2 if v < 8 else 3}, {0x10000 | (v & 7):#x}\ns_lshl_b32 s6, s6, {13 + b}\ns_or_b32 s{SB_KV}, s{SB_KV}, s6")
        elif cfg.rot:
            assert cfg.wg == 0
            a(f"s_mul_i32 s6, s2, {cfg.rot}\ns_lshr_b32 s6, s6, 3\ns_and_b32 s6, s6, {31 & ~(1 << cfg.pb)}\ns_lshl_b32 s6, s6, 13\ns_or_b32 s{SB_KV}, s{SB_KV}, s6")
        srd(R_WO, 32, 8388608); srd(R_K, 8, 67108864); srd(R_V, 16, 67108864)
        for r, off in ((R_G, 48), (R_U, 56), (R_DN, 64)): srd(r, off, 0)
        if cfg.stamps:
            srd(R_WSS, 104, 0x10000000); a(f"v_mov_b32 v{VST}, 0\nv_writelane_b32 v{VST}, s96, 0")
        a("s_mov_b32 s58, 0x05040100\ns_mov_b32 s59, 0x07060302")
        a("s_barrier")
    issued = []; done = [0]; tiles = {}; signalled = set(); setup = [False]
    TN = dict(crit=2, wq=4, mod1=2, mod2=2, mod3=2, wo=4, gate=4, up=4, dn=4)
    TC = dict(mod3=C_MOD3, crit=C_CRIT, wq=C_WQ, mod1=C_MOD1, mod2=C_MOD2, wo=C_WO, gate=C_GATE, up=C_UP, dn=C_DN)
    def wait_n(n):
        if len(issued) - done[0] > n:
            a(f"s_waitcnt vmcnt({n})"); done[0] = len(issued) - n
            for name, ids in tiles.items():
                if name not in signalled and len(ids) == TN[name] and max(ids) < done[0]:
                    lds_signal(TC[name], VCN, VONE); signalled.add(name)
                    if name in ("wo", "up"): stamp({"wo": 20, "up": 21}[name], VST)
    def wait_id(i): wait_n(len(issued) - 1 - i)
    def dma(name, i, D):
        srd_, voff, sb, step, lbase, lsreg = {
            "crit": (R_MOD, VMOD, SB_MOD, 4 * 12288, L_MOD, SL), "mod1": (R_MOD, VM[0], SB_MOD, 4 * 12288, 0x10000 if cfg.dbgm else L_MOD + 16384, SL),
            "mod3": (R_MOD, VMOD, SB_MOD, 4 * 12288, L_WO, SL),
            "mod2": (R_MOD, VM[0], SB_MOD, 4 * 12288, 0x10000 if cfg.dbgm else L_MOD + 32768, SL), "wq": (R_WQ, VWQ, SB_WQ, 4 * 8192, L_WQ, SL4),
            "wo": (R_WO, VDN, SB_WO, 4 * 2048, L_WO, SL4), "gate": (R_G, VGU, SB_GU, 4 * 7168, L_GATE, SL4),
            "up": (R_U, VGU, SB_GU, 4 * 7168, L_UP, SL4), "dn": (R_DN, VDN, SB_DN, 4 * 2048, L_DN, SL4)}[name]
        extra = {"mod1": 4096, "mod2": 8192, "mod3": 8192}.get(name, 0)
        if len(issued) >= min(D, 6) and not setup[0]:
            setup[0] = True; rest_of_setup()
            if cfg.ktouch:
                a(f"s_mov_b64 exec, 1\ns_mov_b32 m0, {L_MISC + 0x2000}")
                for r in (R_K, R_V): a(f"buffer_load_dword off, {sr(r,4)}, s{SB_KV} nt lds"); issued.append("t")
                a("s_mov_b64 exec, -1")
        a(f"s_add_u32 m0, s{lsreg}, {lbase + i*1024}\ns_add_u32 s{SO}, s{sb}, {i*step + extra}")
        wait_n(D - 1)
        a(f"buffer_load_dwordx4 v{voff}, {sr(srd_,4)}, s{SO} offen nt lds")
        if name in ("wq", "wo", "gate", "up", "dn") and i in (1, 3): a(f"v_xor_b32 v{voff}, 0x80, v{voff}")
        tiles.setdefault(name, []).append(len(issued)); issued.append(name)
    kid = {}; vid = {}; cur_so = [None]
    def kvload(srd_, voff, off, dst, D):
        so = off & ~0xfff
        if cur_so[0] != so:
            a(f"{'s_xor_b32' if (cfg.rot or cfg.rb) else 's_add_u32'} s60, s{SB_KV}, {so}"); cur_so[0] = so
        if D: wait_n(D - 1)
        a(f"buffer_load_dwordx4 {vr(dst,4)}, v{voff}, {sr(srd_,4)}, s60 offen offset:{off & 0xfff} nt")
        issued.append("kv"); return len(issued) - 1
    CH = lambda ci: ((ci >> cfg.wg) << (13 + cfg.wg)) + ((ci & ((1 << cfg.wg) - 1)) << 10)
    INS = lambda n, pi: ((n >> cfg.pb) << (cfg.pb + 1)) | (pi << cfg.pb) | (n & ((1 << cfg.pb) - 1))
    def kload(n, u, D): kid[(n, u)] = kvload(R_K, VK, (CH(INS(n, 0)) if cfg.kvl == 'X' else CH(n) if cfg.kvl == 'W' else n * 16384) + u * 128, KV + 8 * n + 4 * u, D)
    VI = (lambda G, n: 16 * (G >> 1) + 2 * n + (G & 1)) if cfg.kvl == "S" else (lambda G, n: 8 * G + n)
    def vslot(i): return KV + 4 * (i if i < cfg.NS else VI(0, i - cfg.NS))
    def vload(i, D): vid[i] = kvload(R_V, VV, CH(INS(8 * (i >> 4) + (i & 7), (i >> 3) & 1)) if cfg.kvl == 'X' else CH(i) if cfg.kvl != 'Y' else (8 * (i >> 4) + (i & 7)) * 16384 + ((i >> 3) & 1) * 8192, vslot(i), D)
    def paced(cnt, k, vt, Dmin, Dmax, th=None):
        th = cfg.th if th is None else th
        a(f"s_mov_b64 exec, 1\nds_add_rtn_u32 v{vt}, v{VCN}, v{VONE} offset:{cnt*4}\ns_mov_b64 exec, -1")
        wait_n(Dmax - 1)
        go = a.newlabel("L_go")
        a(f"s_waitcnt lgkmcnt(0)\nv_readfirstlane_b32 s5, v{vt}\ns_cmp_gt_i32 s5, {8*k + th}\ns_cselect_b64 vcc, -1, 0\ns_cbranch_scc1 {go}\ns_waitcnt vmcnt({Dmin - 1})")
        a.label(go)
    D1, D2 = cfg.D1, cfg.D2
    for name in lst(cfg.pre1):
        if cfg.steal and name == "mod2": continue
        if cfg.give and name == "mod2":
            a(f"s_and_b32 s61, s2, 15\ns_mov_b32 s62, {cfg.give}\ns_bitcmp1_b32 s62, s61\ns_cselect_b32 s{R_MOD+2}, 0, s{R_MOD+2}")
            for i in range(2): dma("mod2", i, D1)
            a(f"s_xor_b32 s61, s61, {cfg.gx}\ns_bitcmp1_b32 s62, s61\ns_cbranch_scc0 L_notake\ns_xor_b32 s{SB_MOD}, s{SB_MOD}, {cfg.gx * 256}")
            for i in range(2):
                a(f"s_add_u32 m0, s{SL}, {L_WO + i*1024}\ns_add_u32 s{SO}, s{SB_MOD}, {i*4*12288 + 8192}\ns_waitcnt vmcnt({D1-1})\nbuffer_load_dwordx4 v{VMOD}, {sr(R_MOD,4)}, s{SO} offen nt lds")
            a.label("L_notake")
            continue
        for i in range(TN[name]): dma(name, i, cfg.D0 if len(issued) < cfg.n0 else D1)
    stamp(11, VST)
    a.c('K: 32 x 1 KiB per wave straight into MFMA A-operand layout (8 keys x 128 B per load), at most 3 in flight')
    for n in range(16):
        for u in range(2):
            if cfg.balk:
                paced(C_T, 2 * n + u, DT, cfg.Kmin, cfg.Kmax); kload(n, u, 0)
            else: kload(n, u, cfg.D0 if len(issued) < cfg.n0 else D1)
            if 2 * n + u == cfg.p1: lds_signal(C_P1, VCN, VONE)
            if 2 * n + u == cfg.p2: lds_signal(C_P2, VCN, VONE)
            if cfg.steal and 2 * n + u == cfg.sa: lds_signal(C_PA, VCN, VONE)
            if cfg.steal and 2 * n + u == cfg.sb: lds_signal(C_PB, VCN, VONE)
            if 2 * n + u == cfg.pm and cfg.qm: lds_signal(C_PM, VCN, VONE)
    for name in lst(cfg.pre2):
        for i in range(TN[name]): dma(name, i, D1)
    if cfg.steal:
        lds_wait(C_DEC, 1, DT, VCN)
        a(f"s_mov_b32 s61, s5\ns_mov_b32 s62, 12582912\ns_bitcmp1_b32 s61, 0\ns_cselect_b32 s{R_MOD+2}, s62, 0")
        for i in range(2): dma("mod2", i, D1)
        a(f"s_bitcmp1_b32 s61, 1\ns_cselect_b32 s{R_MOD+2}, s62, 0\ns_xor_b32 s{SB_MOD}, s{SB_MOD}, 1024")
        for i in range(2): dma("mod3", i, 63)
        if cfg.stamps == 1: a(f"v_writelane_b32 v{VST}, s61, 25")
    if cfg.dbgm: a(f"v_mov_b32 v{VK}, v{VMOD}"); VM[0] = VK
    for i in range(cfg.npre): dma("wo", i, D1)
    stamp(1, VST)
    a.c('wait for q (bf16, LDS), then S^T = K q^T; scores rounded to bf16, scaled, rounded again (as the reference does)')
    a(f"v_and_b32 v{DT+1}, 7, v1\nv_lshlrev_b32 v{DT+1}, 8, v{DT+1}\nv_and_b32 v{DT+2}, 8, v1\nv_lshl_add_u32 v{DT+1}, v{DT+2}, 3, v{DT+1}")
    a(f"v_lshrrev_b32 v{DT+2}, 4, v1\nv_lshl_add_u32 v{DT+1}, v{DT+2}, 4, v{DT+1}\nv_add_u32 v{DT+1}, {L_QV}, v{DT+1}")
    a(f"s_mov_b32 s61, {f2u(128 ** -0.5):#x}\ns_mov_b32 s62, {f2u(LOG2E):#x}")
    lds_wait(C_Q, 4, DT, VCN)
    stamp(2, VST)
    a(f"ds_read_b128 {vr(Q0,4)}, v{DT+1}\nds_read_b128 {vr(Q0+4,4)}, v{DT+1} offset:128\ns_waitcnt lgkmcnt(0)")
    nv = 0
    def fold(n):
        d = DT + 4 * (n & 1)
        a(f"v_add_f32_dpp v{T0+n}, v{d+1}, v{d} row_ror:8 row_mask:0xf bank_mask:0x3")
        a(f"v_add_f32_dpp v{T0+n}, v{d+2}, v{d+3} row_ror:8 row_mask:0xf bank_mask:0xc")
    def post(n):
        rnd(T0 + n, T0 + n); a(f"v_mul_f32 v{T0+n}, s61, v{T0+n}"); rnd(T0 + n, T0 + n)
    for n in range(16):
        wait_id(kid[(n, 1)])
        d = DT + 4 * (n & 1)
        a(f"v_mfma_f32_16x16x32_bf16 {vr(d,4)}, {vr(KV+8*n,4)}, {vr(Q0,4)}, 0")
        a(f"v_mfma_f32_16x16x32_bf16 {vr(d,4)}, {vr(KV+8*n+4,4)}, {vr(Q0+4,4)}, {vr(d,4)}")
        if n >= 1 and nv < D2 and n % 2 == 1:
            vload(nv, 0); nv += 1
        if n >= 2: post(n - 2)
        if n >= 1: fold(n - 1)
    for _ in range(cfg.nq2): vload(nv, 0); nv += 1
    fold(15); post(14); post(15)
    a.c("max of this wave's 128 keys per head, e = exp(s - max), sum -> LDS")
    M_, L_, X_ = DT, DT + 1, DT + 2
    a(f"v_max3_f32 v{M_}, v{T0}, v{T0+1}, v{T0+2}")
    for i in range(3, 15, 2): a(f"v_max3_f32 v{M_}, v{M_}, v{T0+i}, v{T0+i+1}")
    a(f"v_max_f32 v{M_}, v{M_}, v{T0+15}")
    xreduce("v_max_f32", M_, X_, (8, 16, 32))
    if cfg.ereuse:
        for i in range(16):
            a(f"v_sub_f32 v{T0+i}, v{T0+i}, v{M_}\nv_mul_f32 v{T0+i}, s62, v{T0+i}\nv_exp_f32 v{T0+i}, v{T0+i}")
            if i == 2: a(f"v_add_f32 v{L_}, v{T0}, v{T0+1}")
            if i > 2: a(f"v_add_f32 v{L_}, v{L_}, v{T0+i-1}")
        a(f"v_mov_b32 v{VK}, v{M_}\nv_add_f32 v{L_}, v{L_}, v{T0+15}")
    else:
        for i in range(16):
            e = DT + 4 + (i & 3)
            a(f"v_sub_f32 v{e}, v{T0+i}, v{M_}\nv_mul_f32 v{e}, s62, v{e}\nv_exp_f32 v{e}, v{e}")
            if i >= 1:
                p = DT + 4 + ((i - 1) & 3)
                a(f"v_mov_b32 v{L_}, v{p}" if i == 1 else f"v_add_f32 v{L_}, v{L_}, v{p}")
        a(f"v_add_f32 v{L_}, v{L_}, v{DT+7}")
    xreduce("v_add_f32", L_, X_, (8, 16, 32))
    a(f"s_lshl_b32 s5, s3, 6\ns_add_u32 s5, s5, {L_MLW}\nv_lshlrev_b32 v{X_}, 3, v1\nv_add_u32 v{X_}, s5, v{X_}")
    a(f"s_mov_b64 exec, 0xff\nds_write_b64 v{X_}, {vr(M_,2)}\ns_waitcnt lgkmcnt(0)")
    lds_signal(C_ML, VCN, VONE)
    stamp(3, VST)
    a.c('V into the freed K registers; a wave behind the class average keeps more loads in flight, one ahead keeps fewer')
    nv0 = nv
    while nv < cfg.NS:
        if cfg.bal:
            paced(C_T, nv - nv0 + (32 if cfg.balk else 0), DT, cfg.Dmin, cfg.Dmax); vload(nv, 0)
        else: vload(nv, D2)
        if nv == cfg.p3: lds_signal(C_P3, VCN, VONE)
        if nv == cfg.pv: lds_signal(C_P8, VCN, VONE)
        if cfg.steal and nv == cfg.p9: lds_signal(C_P9, VCN, VONE)
        if nv == cfg.p4 and cfg.role == 2: lds_signal(C_P4, VCN, VONE)
        nv += 1
    for name in lst(cfg.mid):
        for i in range(TN[name]): dma(name, i, D2)
    for name in lst(cfg.pre1) + lst(cfg.pre2) + (["mod3"] if cfg.steal else []): wait_id(max(tiles[name]))
    stamp(4, VST)
    a(f"v_and_b32 v{X_}, 7, v1\nv_lshlrev_b32 v{X_}, 3, v{X_}\nv_add_u32 v{X_}, {L_MLF}, v{X_}")
    lateq = [(name, i) for name in lst(cfg.late) for i in range(TN[name])]
    lateq = lateq[cfg.npre:]
    assert lateq[-4:] == [("dn", i) for i in range(4)]
    for _ in range(cfg.nmid):
        name, i = lateq.pop(0); assert name == "wo"; dma(name, i, 63)
    a.c('FFN role of this workgroup, then the global max and 1/sum; p = bf16(e * exp(wave max - global max) / global sum)')
    assert cfg.role != 2
    lds_wait(C_ROLE, 1, DT, VCN, sleep=0)
    a("s_sub_u32 s7, s5, 1")
    a("s_mov_b32 s5, 7340032\ns_cmp_lt_u32 s7, 224\ns_cselect_b32 s5, s5, 0")
    for r in (R_G, R_U, R_DN): a(f"s_mov_b32 s{r+2}, s5")
    a("s_and_b32 s52, s7, 7\ns_lshr_b32 s53, s7, 3")
    a(f"s_lshl_b32 s5, s52, 7\ns_add_u32 s5, s5, s57\ns_mul_i32 s5, s5, 7168\ns_lshl_b32 s6, s53, 8\ns_add_u32 s{SB_GU}, s5, s6")
    a(f"s_lshl_b32 s5, s53, 7\ns_add_u32 s5, s5, s57\ns_lshl_b32 s5, s5, 11\ns_lshl_b32 s6, s52, 8\ns_add_u32 s{SB_DN}, s5, s6")
    lds_wait(C_MLD, 5 if cfg.steal else 1, DT, VCN)
    stamp(5, VST)
    assert not any(t in cfg.pre1 + cfg.pre2 + cfg.mid for t in ("gate", "up", "dn"))
    a(f"ds_read_b64 {vr(M_,2)}, v{X_}\ns_waitcnt lgkmcnt(0)")
    if cfg.ereuse:
        a(f"v_sub_f32 v{M_}, v{VK}, v{M_}\nv_mul_f32 v{M_}, s62, v{M_}\nv_exp_f32 v{M_}, v{M_}\nv_mul_f32 v{M_}, v{M_}, v{L_}\nv_mov_b32 v{L_}, v{M_}")
        for i in range(0, 16, 2): a(f"v_pk_mul_f32 {vr(T0+i,2)}, {vr(T0+i,2)}, {vr(M_,2)}")
    else:
        for i in range(16):
            a(f"v_sub_f32 v{T0+i}, v{T0+i}, v{M_}\nv_mul_f32 v{T0+i}, s62, v{T0+i}\nv_exp_f32 v{T0+i}, v{T0+i}")
        for i in range(16): a(f"v_mul_f32 v{T0+i}, v{T0+i}, v{L_}")
    for i in range(8): a(f"v_cvt_pk_bf16_f32 v{Q0+i}, v{T0+2*i}, v{T0+2*i+1}")
    a("s_mov_b32 s64, 0x00ff00ff\ns_mov_b32 s65, 0x00ff00ff\ns_mov_b32 s66, 0xff00ff00\ns_mov_b32 s67, 0xff00ff00")
    ACC = T0
    PL = lambda G: DT
    PH = lambda G: DT + 4
    def pbuild(G):
        b, pi = (G & 1, G >> 1) if cfg.kvl == 'W' else (G >> 1, G & 1)
        for i in range(4): a(f"v_cndmask_b32 v{(PH if pi else PL)(G)+i}, 0, v{Q0+4*b+i}, s[{64+2*pi}:{65+2*pi}]")
        for i in range(4): a(f"v_mov_b32_dpp v{(PL if pi else PH)(G)+i}, v{(PH if pi else PL)(G)+i} row_ror:8 {DPPF}")
    stage = [KV + 120, KV + 124, KV + 120, KV + 124]
    sidx = 0
    def perm(dst, G, p, j):
        lo = vslot(VI(G, 2 * p)) + (j >> 1); hi = vslot(VI(G, 2 * p + 1)) + (j >> 1)
        a(f"v_perm_b32 v{dst}, v{hi}, v{lo}, s{58 + (j & 1)}")
    def pv(G, j, st):
        c = "0" if (G == 0 and j < 4) else vr(ACC + 4 * (j & 3), 4)
        a(f"v_mfma_f32_16x16x32_bf16 {vr(ACC+4*(j&3),4)}, {vr(st,4)}, {vr((PH if j >= 4 else PL)(G),4)}, {c}")
    a.c('O^T += V^T P^T: v_perm pairs up two keys per dword, heads sit in columns 0..7 (d%8 < 4) and 8..15 (d%8 >= 4)')
    for G in range(2 if cfg.kvl == "S" else 3):
        if cfg.NS == 32 and G == 0:
            assert cfg.kvl == "X"
            for i in range(4): a(f"v_cndmask_b32 v{DT+i}, 0, v{Q0+i}, s[64:65]")
            wait_id(vid[7])
            for j in range(8):
                if j == 4:
                    for i in range(4): a(f"v_mov_b32_dpp v{DT+i}, v{DT+i} row_ror:8 {DPPF}")
                st = (ACC + 12 if (j < 3 and j % 2 == 0) else DT + 4)
                for p in range(4): perm(st + p, G, p, j)
                c = "0" if j < 4 else vr(ACC + 4 * (j & 3), 4)
                a(f"v_mfma_f32_16x16x32_bf16 {vr(ACC+4*(j&3),4)}, {vr(st,4)}, {vr(DT,4)}, {c}")
            stage = [KV, KV + 4, KV + 8, KV + 12]
            continue
        pbuild(G)
        wait_id(vid[VI(G, 7)])
        for j in range(8):
            st = stage[sidx & 3]; sidx += 1
            for p in range(4): perm(st + p, G, p, j)
            pv(G, j, st)
            if G in (1, 2) and j % 2 == 0 and nv < 32:
                if cfg.bal:
                    sk = a.newlabel("L_dv")
                    a(f"s_cbranch_vccnz {sk}\ns_waitcnt vmcnt({cfg.DV - 1})")
                    a.label(sk)
                    vload(nv, cfg.DVmax)
                else: vload(nv, cfg.DV)
                if nv == cfg.pv:
                    lds_signal(C_P8, VCN, VONE)
                    if cfg.lp: lds_signal(C_T, VCN, VONE)
                nv += 1
    a(f"s_add_u32 s5, s{SL4}, {L_OS}\nv_add_u32 v{VV}, s5, v{VV}")
    order = [0, 4, 1, 5, 2, 6, 3, 7]
    n0 = min(cfg.nl0, len(lateq) - max(4, cfg.nl2))
    if cfg.kvl == "S":
        assert nv == 32 and cfg.NS == 30
        free = [KV + 4 * k for k in range(16) if k not in (VI(0, 0), VI(0, 1))] + [KV + 120, KV + 124]
        SGs = {2: free[:8], 3: free[8:]}
        pbuild(2)
        for p in range(3):
            wait_id(vid[VI(3, 2 * p + 1)])
            if p == 2:
                for _ in range((n0 + 1) // 2):
                    name, i = lateq.pop(0); dma(name, i, 63)
            for G in (2, 3):
                for j in range(8): perm(SGs[G][j] + p, G, p, j)
        wait_id(vid[29])
        for _ in range(n0 // 2):
            name, i = lateq.pop(0); dma(name, i, 63)
        for G in (2, 3):
            wait_id(vid[VI(G, 7)])
            if G == 3: pbuild(3)
            for k in range(10):
                if k < 8: perm(SGs[G][order[k]] + 3, G, 3, order[k])
                if k >= 2: pv(G, order[k - 2], SGs[G][order[k - 2]])
    else:
        pbuild(3)
        SG = KV + 32
        n0 = min(cfg.nl0, len(lateq) - max(4, cfg.nl2))
        for p in range(3):
            wait_id(vid[24 + 2 * p + 1])
            if cfg.pv == 32 and p == 2: lds_signal(C_P8, VCN, VONE)
            if p >= 1:
                for _ in range((n0 + 2 - p) // 2):
                    name, i = lateq.pop(0); dma(name, i, 63)
            for j in range(8): perm(SG + 4 * j + p, 3, p, j)
        wait_id(vid[31])
        if cfg.pv == 33: lds_signal(C_P8, VCN, VONE)
        order = [0, 4, 1, 5, 2, 6, 3, 7]
        for k in range(10):
            if k < 8: perm(SG + 4 * order[k] + 3, 3, 3, order[k])
            if k >= 2: pv(3, order[k - 2], SG + 4 * order[k - 2])
    stamp(6, VST)
    for e in range(4): a(f"ds_write_b128 v{VV}, {vr(ACC+4*e,4)} offset:{e*1024}")
    a("s_waitcnt lgkmcnt(0)")
    stamp(7, VST)
    a("s_barrier")
    a.c('wo, gate, up, down tiles -> LDS while the chain waves run the hand-offs')
    signalled.add("dn")
    n1 = len(lateq) - cfg.nl2
    for k, (name, i) in enumerate(lateq):
        if k == n1:
            wait_n(0); lds_wait(C_Y, 4, DT, VCN, sleep=cfg.ysl)
        if ((name, i) == ("dn", 0) and k < n1 and not cfg.ofirst) or (cfg.ofirst and k == 0): lds_wait(C_OR, 4, DT, VCN, sleep=0)
        if cfg.yp >= 0 and k >= cfg.pmin + 1:
            if k == cfg.pmin + 1: a(f"s_mov_b32 s63, {cfg.yp}")
            assert "wo" in signalled
            Ly = a.newlabel("L_yp"); Lg = a.newlabel("L_ypg")
            rd = f"ds_read_b64 {vr(DT,2)}, v{VCN} offset:{C_AI*4}\ns_waitcnt lgkmcnt(0)\nv_readfirstlane_b32 s5, v{DT}\nv_readfirstlane_b32 s6, v{DT+1}"
            if cfg.yb:
                wait_n(cfg.yb - 1)
                a(rd + f"\ns_cmp_ge_u32 s6, 4\ns_cbranch_scc1 {Lg}\ns_waitcnt vmcnt({cfg.D3 - 1})")
            else: wait_n(cfg.D3 - 1)
            a.label(Ly)
            a(rd)
            a(f"s_cmp_eq_u32 s5, 0\ns_cbranch_scc1 {Lg}\ns_cmp_ge_u32 s6, 4\ns_cbranch_scc1 {Lg}\ns_sub_u32 s63, s63, 1\ns_cbranch_scc0 {Lg}\ns_mov_b32 s63, 0\ns_sleep 1")
            budget_check()
            a(f"s_branch {Ly}")
            a.label(Lg)
            dma(name, i, 63)
        elif cfg.lp:
            paced(C_T, cfg.NS - cfg.D2 + 1 + k, DT, cfg.Lmin, cfg.Lmax, cfg.lth); dma(name, i, 63)
        else: dma(name, i, (cfg.D3 if k < cfg.kb else cfg.D3b) if k < n1 else cfg.D4)
        if k == cfg.p5: assert k < n1; lds_signal(C_P5, VCN, VONE)
        if k == cfg.p6: lds_signal(C_P6, VCN, VONE)
        if cfg.yd >= 0 or cfg.hd: lds_signal(C_LC, VCN, VONE)
        if k == cfg.pmin: lds_signal(C_P7, VCN, VONE)
    for name in ("wo", "gate", "up"):
        if name not in signalled: wait_id(max(tiles[name]))
    a("s_waitcnt vmcnt(0)")
    if cfg.stamps == 1:
        stamp(8, VST)
        a(f"s_lshl_b32 s5, s2, 11\ns_lshl_b32 s6, s3, 7\ns_add_u32 s5, s5, s6\ns_add_u32 s5, s5, 0x8000000\nv_lshlrev_b32 v2, 2, v1")
        a(f"s_mov_b32 exec_hi, 0\nbuffer_store_dword v{VST}, v2, {sr(R_WSS,4)}, s5 offen sc1")
    a("s_endpgm")

    for _ in range(cfg.pad): a("s_nop 0")
    a.label("L_cwave")
    a.c('================= chain waves (8..11): hand-offs between workgroups, GEMVs, layer norms =================')
    a(f"s_setprio {cfg.cprio}")
    R_WS, R_X, R_C, R_OUT = 8, 16, 20, 24
    WV, SMY = 28, 29
    a(f"s_sub_u32 s{WV}, s3, 8\nv_subrev_u32 v0, 512, v0")
    if cfg.warm0:
        a(f"s_cmp_lg_u32 s{WV}, 3\ns_cbranch_scc1 L_w0_done\ns_getpc_b64 s[6:7]")
        a.label("L_w0_pc")
        a(f"s_sub_u32 s6, s6, L_w0_pc - L_start\ns_subb_u32 s7, s7, 0\ns_lshr_b32 s5, s2, 3\nv_lshlrev_b32 v40, 5, v1\nv_add_lshl_u32 v40, v40, s5, 7")
        a("v_cmp_gt_u32 vcc, L_end - L_start, v40\ns_and_saveexec_b64 s[12:13], vcc\nglobal_load_dword v41, v40, s[6:7]\ns_mov_b64 exec, -1")
        a.label("L_w0_done")
    VCN, VONE, VTR, VPUB, VACT, VA, VB, K_X, K_GA, K_GB, VST, K_C1, TAG, TB = 2, 3, 4, 5, 6, 7, 8, 9, 10, 11, 12, 13, 14, 15
    WK = 16
    ACT = WK + 8
    FWO, FG, FU, FD = 40, 72, 104, 136
    a(f"v_mov_b32 v{VCN}, {L_CNT}\nv_mov_b32 v{VONE}, 1\nv_mov_b32 v{WK}, 0")
    a(f"v_lshlrev_b32 v{WK+1}, 2, v1\nv_add_u32 v{WK+1}, {L_CNT}, v{WK+1}\nds_write_b32 v{WK+1}, v{WK}")
    for i in range(4): a(f"v_mov_b32 v{WK+4+i}, -1")
    for base in (L_HHV, L_OV, L_AT, L_AT + 320): a(f"ds_write_b32 v{WK+1}, v{WK+4} offset:{base - L_CNT}")
    a(f"s_mul_i32 s{SMY}, s2, {WS}\ns_and_b32 s30, s2, 7\ns_lshr_b32 s31, s2, 3")
    a(f"v_lshlrev_b32 v{VA}, 4, v1\nv_lshlrev_b32 v{VB}, 1, v1\nv_lshlrev_b32 v{WK+1}, 5, v1")
    a(f"s_lshl_b32 s32, s30, 7\ns_lshl_b32 s35, s{WV}, 5\ns_add_u32 s32, s32, s35")
    a("s_waitcnt lgkmcnt(0)")
    srd(R_WS, 104, 0x10000000); srd(R_X, 0, 2048); srd(R_C, 72, 2048); srd(R_OUT, 88, 2048)
    XR = FU
    a(f"s_mov_b32 s5, {EPOCH}\nbuffer_load_dword v{TAG}, off, {sr(R_WS,4)}, s5 sc1")
    a(f"s_lshr_b32 s5, s2, 4\ns_lshl_b32 s5, s5, 7\nbuffer_load_ushort v{WK}, v{VB}, {sr(R_C,4)}, s5 offen")
    a(f"buffer_load_dwordx4 {vr(XR,4)}, v{WK+1}, {sr(R_X,4)}, 0 offen\nbuffer_load_dwordx4 {vr(XR+4,4)}, v{WK+1}, {sr(R_X,4)}, 0 offen offset:16")
    a(f"v_and_b32 v{K_C1}, 7, v1\nv_lshlrev_b32 v{K_C1}, 2, v{K_C1}\nv_bfe_u32 v{WK+2}, v1, 4, 1\nv_lshl_add_u32 v{K_C1}, v{WK+2}, 1, v{K_C1}\nv_lshrrev_b32 v{WK+2}, 5, v1\nv_add_lshl_u32 v{K_C1}, v{K_C1}, v{WK+2}, 1")
    a(f"s_lshl_b32 s5, s32, 1\nbuffer_load_ushort v{K_GA}, v{K_C1}, {sr(R_X,4)}, s5 offen")
    a(f"s_and_b32 s80, s2, 3\ns_lshl_b32 s80, s80, 12\ns_add_u32 s80, s80, {MLA}\ns_and_b32 s81, s2, 0xfc\ns_lshl_b32 s81, s81, 4\ns_add_u32 s81, s81, s80")
    a(f"s_cmp_gt_u32 s{WV}, 1\ns_cbranch_scc1 L_clr_done\ns_cmp_eq_u32 s{WV}, 0\ns_cselect_b32 s5, s{SMY}, s81\ns_cselect_b64 exec, -1, 15")
    a(f"buffer_store_dwordx4 {vr(WK+4,4)}, v{VA}, {sr(R_WS,4)}, s5 offen sc1")
    if cfg.hint or cfg.role == 2:
        a(f"s_mov_b64 exec, 1\nbuffer_store_dword v{WK+4}, off, {sr(R_WS,4)}, s{SMY} offset:{TKT} sc1")
    a.label("L_clr_done")
    if cfg.qm:
        a(f"s_and_b32 s82, s2, 3\ns_lshl_b32 s82, s82, 3\ns_bfe_u32 s5, s2, 0x30003\ns_add_u32 s82, s82, s5\ns_lshl_b32 s83, s82, 8\ns_add_u32 s83, s83, {QF}")
        a(f"s_cmp_lg_u32 s{WV}, 2\ns_cbranch_scc1 L_clq_done\ns_and_b32 s5, s2, 0xc4\ns_cmp_lg_u32 s5, 0xc4\ns_cbranch_scc1 L_clq_done")
        a(f"s_mov_b64 exec, 0xffff\nbuffer_store_dwordx4 {vr(WK+4,4)}, v{VA}, {sr(R_WS,4)}, s83 offen sc1")
        a.label("L_clq_done")
    a("s_mov_b64 exec, -1")
    a("s_barrier")
    if cfg.stamps: a(f"v_mov_b32 v{VST}, 0\nv_writelane_b32 v{VST}, s96, 0")
    a(f"v_lshrrev_b32 v{WK+8}, 4, v1\nv_and_b32 v{WK+9}, 15, v1")
    a(f"v_lshlrev_b32 v{VPUB}, 6, v{WK+9}\nv_lshl_add_u32 v{VPUB}, v{WK+8}, 4, v{VPUB}")
    a(f"v_lshlrev_b32 v{VACT}, 4, v{WK+8}\nv_add_u32 v{VACT}, {L_MISC}, v{VACT}")
    a(f"v_bfe_u32 v{WK+10}, v1, 2, 2\nv_lshl_add_u32 v{WK+11}, v{WK+8}, 3, v{WK+10}\nv_lshlrev_b32 v{VTR}, 8, v{WK+11}")
    a(f"v_and_b32 v{WK+12}, 3, v1\nv_lshl_add_u32 v{VTR}, v{WK+12}, 3, v{VTR}")
    a(f"v_and_b32 v{WK+12}, 1, v{WK+8}\nv_lshl_add_u32 v{WK+12}, v{WK+12}, 2, v{WK+10}\ns_lshl_b32 s5, s{WV}, 1\nv_xor_b32 v{WK+12}, s5, v{WK+12}\nv_lshl_add_u32 v{VTR}, v{WK+12}, 5, v{VTR}")
    a(f"s_mov_b32 s33, {f2u(LOG2E):#x}\ns_mov_b32 s38, 0xffff0000")
    a("s_waitcnt vmcnt(0)")
    lds_signal(C_CLR, VCN, VONE)
    a.c('tag of this launch: T = E ^ hash(E) with every hash byte non-zero (E = tag left by the previous launch, or anything)')
    TB0 = 76
    a(f"v_readfirstlane_b32 s5, v{TAG}\ns_add_u32 s6, s5, 0x7f4a7c15\ns_mul_i32 s6, s6, 0x9e3779b1\ns_lshr_b32 s7, s6, 15\ns_xor_b32 s6, s6, s7")
    a("s_mul_i32 s6, s6, 0x85ebca6b\ns_lshr_b32 s7, s6, 13\ns_xor_b32 s6, s6, s7\ns_mul_i32 s6, s6, 0xc2b2ae35\ns_lshr_b32 s7, s6, 16\ns_xor_b32 s6, s6, s7")
    for k in range(4):
        a(f"s_and_b32 s7, s6, {0xff << (8*k):#x}\ns_cselect_b32 s7, 0, {0x5b << (8*k):#x}\ns_or_b32 s6, s6, s7")
    a("s_xor_b32 s5, s5, s6")
    for k in range(4): a(f"s_bfe_u32 s{TB0+k}, s5, {(8 << 16) | (8*k):#x}")
    a(f"v_mov_b32 v{TAG}, s5")
    stamp(1, VST)
    a.c("silu(c) for this workgroup's 64 rows of w_mod")
    c_ = WK
    lo2 = LOG2E - struct.unpack("<f", struct.pack("<f", LOG2E))[0]
    a(f"v_lshlrev_b32 v{c_}, 16, v{c_}")
    a(f"v_max_f32 v{WK+13}, {f2u(-87.0):#x}, v{c_}\nv_min_f32 v{WK+13}, {f2u(100.0):#x}, v{WK+13}")
    a(f"v_mul_f32 v{WK+1}, s33, v{WK+13}\nv_fma_f32 v{WK+2}, v{WK+13}, s33, -v{WK+1}\nv_mov_b32 v{WK+3}, {f2u(lo2):#x}\nv_fmac_f32 v{WK+2}, v{WK+13}, v{WK+3}")
    a(f"v_exp_f32 v{WK+1}, -v{WK+1}\nv_mul_f32 v{WK+2}, {f2u(-0.6931471805599453):#x}, v{WK+2}")
    a(f"v_fma_f32 v{WK+1}, v{WK+1}, v{WK+2}, v{WK+1}\nv_add_f32 v{WK+1}, 1.0, v{WK+1}")
    a(f"v_rcp_f32 v{WK+2}, v{WK+1}\nv_mul_f32 v{WK+3}, v{c_}, v{WK+2}\nv_fma_f32 v{WK+13}, -v{WK+3}, v{WK+1}, v{c_}\nv_fmac_f32 v{WK+3}, v{WK+13}, v{WK+2}")
    rnd(WK + 3, WK + 3)
    a(f"s_lshl_b32 s5, s{WV}, 7\ns_add_u32 s6, s5, {L_SIL}\nv_add_u32 v{WK+1}, s6, v{VB}\nds_write_b16_d16_hi v{WK+1}, v{WK+3}")
    a(f"v_add_u32 v{WK+1}, s5, v{VACT}\ns_waitcnt lgkmcnt(0)\nds_read_b128 {vr(ACT,4)}, v{WK+1} offset:{L_SIL-L_MISC}\nds_read_b128 {vr(ACT+4,4)}, v{WK+1} offset:{L_SIL-L_MISC+64}")

    def den_from_var(v, rden):
        rnd(v, v); a(f"v_add_f32 v{v}, {f2u(1e-5):#x}, v{v}"); rnd(v, v)
        a(f"v_sqrt_f32 v{v}, v{v}"); rnd(v, v)
        a(f"v_rcp_f32 v{rden}, v{v}")
    def ln_stats(X, mean_b, rden, t0):
        p1, p2, u1 = t0, t0 + 2, t0 + 4
        a(f"v_readfirstlane_b32 s36, v{X}\ns_mov_b32 s37, s36")
        for i in range(0, 16, 2): a(f"v_pk_add_f32 {vr(X+i,2)}, {vr(X+i,2)}, s[36:37] neg_lo:[0,1] neg_hi:[0,1]")
        a(f"v_pk_mul_f32 {vr(p2,2)}, {vr(X,2)}, {vr(X,2)}\nv_pk_add_f32 {vr(p1,2)}, {vr(X,2)}, {vr(X+2,2)}")
        a(f"v_pk_fma_f32 {vr(p2,2)}, {vr(X+2,2)}, {vr(X+2,2)}, {vr(p2,2)}")
        for i in range(4, 16, 2):
            a(f"v_pk_add_f32 {vr(p1,2)}, {vr(p1,2)}, {vr(X+i,2)}\nv_pk_fma_f32 {vr(p2,2)}, {vr(X+i,2)}, {vr(X+i,2)}, {vr(p2,2)}")
        a(f"v_add_f32 v{p1}, v{p1}, v{p1+1}\nv_add_f32 v{p2}, v{p2}, v{p2+1}")
        a(f"v_permlane32_swap_b32 v{p1}, v{p2}\nv_add_f32 v{p1}, v{p1}, v{p2}")
        xreduce("v_add_f32", p1, u1, (16, 8, 4, 2, 1))
        a(f"v_mul_f32 v{p1}, {f2u(1.0/1024):#x}, v{p1}\nv_mov_b32 v{p2}, v{p1}\nv_permlane32_swap_b32 v{p1}, v{p2}")
        a(f"v_fma_f32 v{p2}, -v{p1}, v{p1}, v{p2}\nv_add_f32 v{p1}, s36, v{p1}\nv_max_f32 v{p2}, 0, v{p2}")
        rnd(mean_b, p1); den_from_var(p2, rden)
    a.c("layer norm 1 statistics (every wave, all 1024 values) and this lane's normalised x")
    XU = XR + 8
    for i in range(8):
        a(f"v_lshlrev_b32 v{XU+2*i}, 16, v{XR+i}\nv_and_b32 v{XU+2*i+1}, 0xffff0000, v{XR+i}")
    ln_stats(XU, WK, WK + 1, WK + 2)
    LN1 = K_GA
    a(f"v_lshlrev_b32 v{LN1}, 16, v{LN1}")
    a(f"v_sub_f32 v{LN1}, v{LN1}, v{WK}"); rnd(LN1, LN1); a(f"v_mul_f32 v{LN1}, v{LN1}, v{WK+1}"); rnd(LN1, LN1)
    lds_wait(C_CLR, 4, WK + 1, VCN, sleep=0)

    if True:
        a(f"s_getreg_b32 s14, hwreg(HW_REG_XCC_ID)\ns_cmp_lg_u32 s{WV}, 1\ns_cbranch_scc1 L_xc_done")
        a(f"v_mov_b32 v{WK}, s14\nv_mov_b32 v{WK+1}, v{TAG}\ns_lshl_b32 s5, s30, 8\ns_and_b32 s6, s2, 0xf8\ns_add_u32 s5, s5, s6\ns_add_u32 s5, s5, {XCP}\ns_mov_b64 exec, 1\nbuffer_store_dwordx2 {vr(WK,2)}, off, {sr(R_WS,4)}, s5 sc1\ns_mov_b64 exec, -1")
        a.label("L_xc_done")
    def tr_read(dst, vaddr, nkk, rs, base=0):
        for kk in range(nkk):
            for q in range(2):
                a(f"ds_read_b64_tr_b16 {vr(dst + kk*4 + 2*q, 2)}, v{vaddr} offset:{base + (32 * kk + 4 * q) * rs}")
    def tr_tile(dst, base, nkk, t0):
        a(f"v_add_u32 v{t0}, {base}, v{VTR}\nv_xor_b32 v{t0+1}, 32, v{t0}")
        tr_read(dst, t0, nkk, 256); tr_read(dst + 4 * nkk, t0 + 1, nkk, 256)
    MASKC = [0x0001000100010001 << i for i in range(4)]
    def mfma(d, x, y, first): a(f"v_mfma_f32_16x16x32_bf16 {vr(d,4)}, {vr(x,4)}, {vr(y,4)}, {'0' if first else vr(d,4)}")
    BT = WK + 7
    def tagit(d, s, k): a(f"v_and_or_b32 v{d}, v{s}, v{BT}, s{TB0+k}")
    def gemv_pub(frs, nkk, dacc, out, off, tagged=True, slot=None):
        n = len(frs)
        a(f"s_mul_i32 s5, s{WV}, {n*64}\ns_add_u32 s5, s5, s{SMY if slot is None else slot}\ns_add_u32 s5, s5, {off}")
        def fin(cg):
            setexec(MASKC[cg])
            for i in range(4):
                if tagged: tagit(out + i, dacc + 4 * cg + i, i)
                else: a(f"v_mov_b32 v{out+i}, v{dacc+4*cg+i}")
        lag = 2 if nkk == 2 else 1
        for cg in range(n + lag):
            if cg < n:
                if cg > lag: a("s_mov_b64 exec, -1")
                for kk in range(nkk): mfma(dacc + 4 * cg, frs[cg] + 4 * kk, ACT + 4 * kk, kk == 0)
            if cg >= lag: fin(cg - lag)
        setexec(sum(MASKC[:n]))
        a(f"buffer_store_dwordx4 {vr(out,4)}, v{VPUB}, {sr(R_WS,4)}, s5 offen sc1\ns_mov_b64 exec, -1")
    deferred = []
    def gather(loads, t0, kind="sent", tags=None, masked=True, between=None, acc=None):
        L = a.newlabel("L_g"); Ld = a.newlabel("L_gd"); Lc = a.newlabel("L_gc")
        PM = 40
        def ld(dst, wd, va, so):
            if so: a(f"s_mov_b32 s5, {so}")
            a(f"buffer_load_dword{'' if wd == 1 else 'x'+str(wd)} {vr(dst,wd)}, v{va}, {sr(R_WS,4)}, {'s5' if so else '0'} offen sc1")
        op3, op2 = ("v_max3_u32", "v_max_u32") if kind == "sent" else ("v_or3_b32", "v_or_b32")
        def tree(regs_):
            if len(regs_) == 1: return regs_[0]
            if len(regs_) == 2: a(f"{op2} v{t0}, v{regs_[0]}, v{regs_[1]}"); return t0
            a(f"{op3} v{t0}, v{regs_[0]}, v{regs_[1]}, v{regs_[2]}")
            rest = regs_[3:]
            while rest:
                if len(rest) >= 2: a(f"{op3} v{t0}, v{t0}, v{rest[0]}, v{rest[1]}"); rest = rest[2:]
                else: a(f"{op2} v{t0}, v{t0}, v{rest[0]}"); rest = []
            return t0
        def test(dst_s, r_):
            if kind == "sent": a(f"v_cmp_eq_u32 {dst_s}, -1, v{r_}")
            else: a(f"v_and_b32 v{t0}, 0xff, v{r_}\nv_cmp_ne_u32 {dst_s}, 0, v{t0}")
        def untag(dst, wd):
            for x in range(dst, dst + wd): a(f"v_xor_b32 v{x}, s{TB0 + x - dst}, v{x}")
        def accum(i):
            if acc is None or i == 0: return
            x = loads[0][0] if i == 1 else acc
            for h in (2, 0): a(f"v_pk_add_f32 {vr(acc+h,2)}, {vr(x+h,2)}, {vr(loads[i][0]+h,2)}")
        a("s_nop 0")
        if not masked: a.label(L)
        for (dst, wd, va, so, em) in loads:
            if em is not None: setexec(em)
            ld(dst, wd, va, so)
            if em is not None: a("s_mov_b64 exec, -1")
        if between: between()
        if not masked: budget_check()
        if kind == "tag":
            a(f"s_waitcnt vmcnt(0)\ns_branch {Lc}")
        else:
            for i, (dst, wd, va, so, em) in enumerate(loads):
                a(f"s_waitcnt vmcnt({len(loads)-1-i})")
                if kind == "byte":
                    if em is not None: setexec(em)
                    untag(dst, wd)
                    if em is not None: a("s_mov_b64 exec, -1")
                r_ = tree(([t0] if i else []) + list(range(dst, dst + wd)))
                assert r_ == t0
                if i < len(loads) - 1: accum(i)
            test("vcc", t0)
            accum(len(loads) - 1)
            a(f"s_cbranch_vccnz {Lc if masked else L}")
            if not masked: return
        a.label(Ld)
        def retry():
            a.label(L)
            budget_check()
            for i, (dst, wd, va, so, em) in enumerate(loads):
                sk = a.newlabel("L_gs")
                a(f"s_mov_b64 exec, {sr(PM+2*i,2)}\ns_cbranch_execz {sk}")
                ld(dst, wd, va, so)
                a.label(sk)
            a("s_waitcnt vmcnt(0)")
            if kind == "byte":
                for i, (dst, wd, va, so, em) in enumerate(loads):
                    a(f"s_mov_b64 exec, {sr(PM+2*i,2)}"); untag(dst, wd)
            a("s_mov_b64 exec, -1")
            a.label(Lc)
            for i, (dst, wd, va, so, em) in enumerate(loads):
                if kind == "tag": a(f"v_cmp_ne_u32 {sr(PM+2*i,2)}, v{tags[i]}, v{TAG}")
                else: test(sr(PM + 2 * i, 2), tree(list(range(dst, dst + wd))))
            a(f"s_mov_b64 s[6:7], {sr(PM,2)}")
            for i in range(1, len(loads)): a(f"s_or_b64 s[6:7], s[6:7], {sr(PM+2*i,2)}")
            a(f"s_cmp_lg_u64 s[6:7], 0\ns_cbranch_scc1 {L}")
            for i in range(len(loads)): accum(i)
            a(f"s_nop 1\ns_branch {Ld}")
        deferred.append(retry)
    def tree_sum(base, n, stride=1):
        idx = [base + i * stride for i in range(n)]
        while len(idx) > 1:
            nx = []
            for i in range(0, len(idx) - 1, 2):
                a(f"v_add_f32 v{idx[i]}, v{idx[i]}, v{idx[i+1]}"); nx.append(idx[i])
            if len(idx) & 1: nx.append(idx[-1])
            idx = nx
    def pk_sum4(base, n):
        idx = [base + 4 * i for i in range(n)]
        while len(idx) > 1:
            nx = []
            for i in range(0, len(idx) - 1, 2):
                for h in (0, 2): a(f"v_pk_add_f32 {vr(idx[i]+h,2)}, {vr(idx[i]+h,2)}, {vr(idx[i+1]+h,2)}")
                nx.append(idx[i])
            if len(idx) & 1: nx.append(idx[-1])
            idx = nx
    def col_reduce(b):
        a(f"v_permlane32_swap_b32 v{b}, v{b+1}\nv_permlane32_swap_b32 v{b+2}, v{b+3}\nv_add_f32 v{b}, v{b}, v{b+1}\nv_add_f32 v{b+2}, v{b+2}, v{b+3}")
        a(f"v_permlane16_swap_b32 v{b}, v{b+2}\nv_add_f32 v{b}, v{b}, v{b+2}\nv_add_f32_dpp v{b}, v{b}, v{b} row_ror:8 {DPPF}")
    VCHK = 0
    def xch_read(lbase, nkk, t0, vact, two=False):
        L = a.newlabel("L_x"); Ld = a.newlabel("L_xd")
        a.label(L)
        a(f"ds_read_b32 v{t0}, v{VCHK} offset:{lbase - L_MISC}")
        if two: a(f"ds_read_b32 v{t0+1}, v{VCHK} offset:{lbase - L_MISC + 320}")
        for kk in range(nkk): a(f"ds_read_b128 {vr(ACT+4*kk,4)}, v{vact} offset:{lbase - L_MISC + kk*64}")
        a(f"s_waitcnt lgkmcnt({nkk})")
        if two: a(f"v_pk_max_u16 v{t0}, v{t0}, v{t0+1}")
        a(f"v_cmp_eq_u16 vcc, -1, v{t0}\nv_cmp_le_u32 s[6:7], s38, v{t0}\ns_or_b64 s[6:7], s[6:7], vcc")
        if nkk == 2: a("s_cmp_lg_u32 s6, 0")
        a(f"s_cbranch_scc0 {Ld}")
        budget_check()
        a(f"s_branch {L}")
        a.label(Ld)
        a("s_waitcnt lgkmcnt(0)")

    def bal_run(limit):
        Lb = a.newlabel("L_bal"); Le = a.newlabel("L_bale")
        a(f"s_cmp_lg_u32 s{WV}, 3\ns_cbranch_scc1 {Le}")
        h = FWO
        a(f"s_mul_i32 s36, s30, {WS}\ns_add_u32 s36, s36, {BRD}\ns_lshr_b32 s37, s2, 3\ns_lshl_b32 s37, s37, 2\ns_add_u32 s37, s37, s36")
        a(f"v_lshlrev_b32 v{h}, 2, v1\nv_lshlrev_b32 v{h+1}, 10, v{TAG}")
        a.label(Lb)
        a(f"ds_read_b32 v{h+2}, v{VCN} offset:{C_T*4}\ns_waitcnt lgkmcnt(0)\nv_readfirstlane_b32 s41, v{h+2}\ns_sub_u32 s41, s41, s39")
        a(f"v_or_b32 v{h+2}, s41, v{h+1}\ns_mov_b64 exec, 1\nbuffer_store_dword v{h+2}, off, {sr(R_WS,4)}, s37 {cfg.lfl}")
        a(f"s_mov_b64 exec, -1\ns_cmp_ge_u32 s41, {limit}\ns_cbranch_scc1 {Le}")
        a(f"s_mov_b32 exec_hi, 0\nbuffer_load_dword v{h+3}, v{h}, {sr(R_WS,4)}, s36 offen sc1\ns_mov_b64 exec, -1")
        budget_check()
        a(f"s_waitcnt vmcnt(0)\nv_xor_b32 v{h+3}, v{h+3}, v{h+1}\nv_cmp_gt_u32 vcc, 1024, v{h+3}\nv_cndmask_b32 v{h+3}, 0, v{h+3}, vcc")
        xreduce("v_add_u32", h + 3, h + 4, (1, 2, 4, 8, 16))
        a(f"v_readfirstlane_b32 s42, v{h+3}\ns_lshr_b32 s42, s42, 5\ns_sub_u32 s42, s42, s41\ns_sub_u32 s43, s42, s39\ns_mov_b32 s39, s42")
        a(f"v_mov_b32 v{h+2}, s43\ns_mov_b64 exec, 1\nds_add_u32 v{VCN}, v{h+2} offset:{C_T*4}\ns_mov_b64 exec, -1\ns_branch {Lb}")
        a.label(Le)
    a("s_mov_b32 s39, 0")
    def mod_tile(t, cnt):
        if not (cfg.dbgm and t): lds_wait(cnt, 8, WK, VCN)
        tr_tile(FU, L_MOD + (0 if cfg.dbgm else t * 16384), 2, WK + 4)
        a("s_waitcnt lgkmcnt(0)")
        gemv_pub([FU, FU + 8], 2, FU + 16, FU + 24, MODP + (t - 1) * 512 if t else HP, tagged=bool(t))
    a.c("partial sa/ca (then ga|sb, cb|gb) of this workgroup's w_mod tiles")
    mod_tile(0, C_CRIT)
    a(f"v_mov_b32 v{BT}, 0xffffff00")
    stamp(2, VST)
    a(f"v_lshrrev_b32 v{WK}, 3, v1\nv_mul_u32_u24 v{VA}, {16*WS}, v{WK}\nv_and_b32 v{WK}, 7, v1\nv_lshl_add_u32 v{VA}, v{WK}, 4, v{VA}")
    a(f"s_mul_i32 s5, s30, {WS}\ns_lshl_b32 s7, s{WV}, 7\ns_add_u32 s5, s5, s7\nv_add_u32 v{VA}, s5, v{VA}")
    if cfg.qm:
        a(f"v_lshl_add_u32 v{TB}, v1, 3, s30\nv_and_b32 v{WK}, 7, v1\ns_and_b32 s5, s2, 3\ns_add_u32 s5, s5, 196\ns_lshl_b32 s6, s82, 3")
        a(f"s_mov_b32 exec_lo, 0\nv_lshl_add_u32 v{TB}, v{WK}, 3, s5\ns_mov_b32 exec_hi, 0xff\nv_add_u32 v{TB}, s6, v{WK}\ns_mov_b64 exec, -1")
    else:
        a(f"v_lshl_add_u32 v{TB}, v1, 3, s30\ns_and_b32 s5, s2, 3\ns_lshl_b32 s5, s5, 6\ns_lshl_b32 s6, s{WV}, 4\ns_add_u32 s5, s5, s6\nv_and_b32 v{WK}, 15, v1")
        a(f"s_mov_b32 exec_lo, 0\nv_add_u32 v{TB}, s5, v{WK}\ns_mov_b32 exec_lo, -1")
    a(f"v_and_b32 v{WK}, 7, v{TB}\nv_and_b32 v{TB}, 0xf8, v{TB}\nv_lshl_add_u32 v{TB}, v{WK}, 8, v{TB}")
    lds_wait(C_WQ, 8, WK + 4, VCN, sleep=cfg.lsl)
    tr_tile(FD, L_WQ, 4, WK + 4)
    mod_tile(1, C_MOD1)
    if cfg.give:
        a(f"s_and_b32 s84, s2, 15\ns_mov_b32 s85, {cfg.give}\ns_bitcmp1_b32 s85, s84\ns_cbranch_scc1 L_gv_skip")
        mod_tile(2, C_MOD2)
        a.label("L_gv_skip")
    elif not cfg.steal: mod_tile(2, C_MOD2)
    stamp(3, VST)
    a.c('flags: producers have cleared their sentinel slots; s15 = whole class sits on this XCD')
    gather([(FG, 2, TB, XCP, None)], WK, kind="tag", tags=[FG + 1])
    a(f"v_cmp_ne_u32 vcc, s14, v{FG}\ns_cmp_eq_u32 vcc_lo, 0\ns_cselect_b32 s15, 1, 0")
    if cfg.balk: bal_run(8 * (cfg.p1 - cfg.hl))
    lds_wait(C_P1, 8, WK + 4, VCN, sleep=cfg.lsl)
    if cfg.give:
        assert cfg.p1 >= cfg.D1
        a(f"s_xor_b32 s84, s84, {cfg.gx}\ns_bitcmp1_b32 s85, s84\ns_cbranch_scc0 L_tk_skip\ns_xor_b32 s84, s2, {cfg.gx}\ns_mul_i32 s84, s84, {WS}")
        tr_tile(FU, L_WO, 2, WK + 4)
        a("s_waitcnt lgkmcnt(0)")
        gemv_pub([FU, FU + 8], 2, FU + 16, FU + 24, MODP + 512, slot=84)
        a.label("L_tk_skip")
    stamp(4, VST)
    a.c('hand-off 1: sum sa, ca; h = bf16(bf16(ln1 * bf16(1 + ca)) + sa); partial q = h @ wq tile')
    gather([(FU + 4 * i, 4, VA, HP + (i >> 1) * 8 * WS + (i & 1) * 128 * WS, None) for i in range(4)], WK)
    stamp(5, VST)
    pk_sum4(FU, 2); pk_sum4(FU + 8, 2); col_reduce(FU); col_reduce(FU + 8)
    rnd(FU, FU); rnd(FU + 8, FU + 8)
    a(f"v_add_f32 v{FU+8}, 1.0, v{FU+8}"); rnd(FU + 8, FU + 8)
    a(f"v_mul_f32 v{LN1}, v{LN1}, v{FU+8}"); rnd(LN1, LN1); a(f"v_add_f32 v{LN1}, v{LN1}, v{FU}"); rnd(LN1, LN1)
    a(f"s_lshl_b32 s5, s{WV}, 6\ns_add_u32 s5, s5, {L_HV}\nv_add_u32 v{VB}, s5, v{K_C1}")
    a(f"ds_write_b16_d16_hi v{VB}, v{LN1}\ns_waitcnt lgkmcnt(0)")
    lds_signal(C_H, VCN, VONE)
    lds_wait(C_H, 4, WK, VCN, sleep=0)
    for kk in range(4): a(f"ds_read_b128 {vr(ACT+4*kk,4)}, v{VACT} offset:{L_HV - L_MISC + kk*64}")
    a("s_waitcnt lgkmcnt(0)")
    gemv_pub([FD, FD + 16], 4, FU, FU + 8, QP, tagged=False)
    stamp(6, VST)
    if cfg.steal:
        a(f"s_xor_b32 s84, s2, 4\ns_mul_i32 s84, s84, {WS}\ns_cmp_lg_u32 s{WV}, 1\ns_cbranch_scc1 L_cl_done")
        a(f"v_mov_b32 v{FG}, v{TAG}\nv_mov_b32 v{FG+1}, v{TAG}")
        lds_wait(C_PA, 8, WK, VCN)
        a(f"s_mov_b64 exec, 1\nbuffer_atomic_swap v{FG}, off, {sr(R_WS,4)}, s{SMY} offset:{CLM} sc0 sc1\ns_mov_b64 exec, -1")
        lds_wait(C_PB, 8, WK, VCN)
        a(f"s_mov_b64 exec, 1\nbuffer_atomic_swap v{FG+1}, off, {sr(R_WS,4)}, s84 offset:{CLM} sc0 sc1\ns_waitcnt vmcnt(0)")
        a(f"v_cmp_ne_u32 vcc, v{FG}, v{TAG}\nv_cndmask_b32 v{FG}, 4, 5, vcc\nv_cmp_ne_u32 vcc, v{FG+1}, v{TAG}\nv_cndmask_b32 v{FG+1}, 0, 2, vcc\nv_add_u32 v{FG}, v{FG}, v{FG+1}")
        a(f"ds_write_b32 v{VCN}, v{FG} offset:{C_DEC*4}\ns_mov_b64 exec, -1")
        a.label("L_cl_done")
    a.c('hand-off 2: sum the q parts of this kv group -> LDS')
    if cfg.qm:
        a(f"s_and_b32 s5, s2, 0xc4\ns_cmp_lg_u32 s5, 0xc4\ns_cbranch_scc1 L_qm_done")
        a(f"v_lshrrev_b32 v{WK}, 3, v1\nv_mul_u32_u24 v{VA}, {WS}, v{WK}\nv_and_b32 v{WK+1}, 7, v1\nv_lshl_add_u32 v{VA}, v{WK+1}, 4, v{VA}\nv_lshlrev_b32 v{WK+1}, 3, v{WK+1}")
        a(f"s_mul_i32 s5, s82, {8*WS}\ns_lshl_b32 s6, s{WV}, 7\ns_add_u32 s5, s5, s6\nv_add_u32 v{VA}, s5, v{VA}\ns_lshl_b32 s6, s{WV}, 6\ns_add_u32 s83, s83, s6")
        lds_wait(C_PM, 8, WK + 4, VCN)
        gather([(FG, 4, VA, QP, None)], WK)
        for e in range(4): xreduce("v_add_f32", FG + e, FG + 4 + e, (8, 16, 32))
        a(f"v_cvt_pk_bf16_f32 v{FG}, v{FG}, v{FG+1}\nv_cvt_pk_bf16_f32 v{FG+1}, v{FG+2}, v{FG+3}")
        a(f"s_mov_b64 exec, 0xff\nbuffer_store_dwordx2 {vr(FG,2)}, v{WK+1}, {sr(R_WS,4)}, s83 offen sc1\ns_mov_b64 exec, -1")
        a.label("L_qm_done")
        a(f"s_and_b32 s5, s2, 3\ns_lshl_b32 s5, s5, 11\nv_lshlrev_b32 v{WK+2}, 3, v0\nv_add_u32 v{VA}, s5, v{WK+2}\nv_add_u32 v{WK+2}, {L_QV}, v{WK+2}")
        lds_wait(C_P2, 8, WK + 4, VCN, sleep=cfg.lsl)
        stamp(20, VST)
        gather([(FG + 8, 2, VA, QF, None)], WK)
        stamp(7, VST)
        a(f"ds_write_b64 v{WK+2}, {vr(FG+8,2)}\ns_waitcnt lgkmcnt(0)")
    else:
        a(f"s_and_b32 s5, s2, 3\ns_lshl_b32 s5, s5, 3\nv_lshrrev_b32 v{WK+4}, 5, v0\nv_add_u32 v{WK+4}, s5, v{WK+4}\nv_mul_u32_u24 v{VA}, {8*WS}, v{WK+4}")
        a(f"v_and_b32 v{WK+4}, 31, v0\nv_lshl_add_u32 v{VA}, v{WK+4}, 4, v{VA}")
        a(f"v_lshlrev_b32 v{WK+2}, 3, v0\nv_add_u32 v{WK+2}, {L_QV}, v{WK+2}")
        if cfg.balk: bal_run(8 * (cfg.p2 - cfg.hl))
        lds_wait(C_P2, 8, WK + 4, VCN, sleep=cfg.lsl)
        stamp(20, VST)
        gather([(FG + 4 * i, 4, VA, QP + i * WS, None) for i in range(1 if cfg.dbgh & 2 else 8)], WK)
        if cfg.dbgh & 2:
            for i in range(4, 32): a(f"v_mov_b32 v{FG+i}, 0")
        stamp(7, VST)
        pk_sum4(FG, 8)
        a(f"v_cvt_pk_bf16_f32 v{WK}, v{FG}, v{FG+1}\nv_cvt_pk_bf16_f32 v{WK+1}, v{FG+2}, v{FG+3}")
        a(f"ds_write_b64 v{WK+2}, {vr(WK,2)}\ns_waitcnt lgkmcnt(0)")
    lds_signal(C_Q, VCN, VONE)
    a(f"s_add_u32 s5, s2, s{WV}\ns_cmp_lg_u32 s5, 0\ns_cbranch_scc1 L_ep_done")
    a(f"s_mov_b32 s5, {EPOCH}\ns_mov_b64 exec, 1\nbuffer_store_dword v{TAG}, off, {sr(R_WS,4)}, s5 sc1\ns_mov_b64 exec, -1")
    a.label("L_ep_done")
    ROLE, RBF, SFY, VAW = 31, 12, 13, WK + 6
    def role_make():
        a(f"s_cmp_lg_u32 s{WV}, 1\ns_cbranch_scc1 L_role_done")
        if cfg.role == 2:
            lds_wait(C_P4, 8, WK, VCN, sleep=2)
            a(f"s_mul_i32 s5, s30, {WS}\ns_add_u32 s5, s5, {TKT}\nv_mov_b32 v{WK}, 1\ns_mov_b64 exec, 1")
            a(f"buffer_atomic_add v{WK}, off, {sr(R_WS,4)}, s5 sc0 sc1\ns_waitcnt vmcnt(0)\nv_readfirstlane_b32 s36, v{WK}\ns_add_u32 s36, s36, 1")
        if cfg.role == 0: a("s_mov_b32 s5, s2")
        else:
            if cfg.role == 1: a("s_lshr_b32 s36, s2, 3")
            hv = str(cfg.heavy).zfill(4)
            light = [x for x in range(8) if str(x) not in hv]
            tab = sum((hv.index(str(x)) if str(x) in hv else 4 + light.index(x)) << (4 * x) for x in range(8))
            a(f"s_lshl_b32 s7, s30, 2\ns_lshr_b32 s7, {tab:#x}, s7\ns_and_b32 s7, s7, 15\ns_add_u32 s7, s7, 24")
            a("s_lshr_b32 s6, s36, 3\ns_mul_i32 s5, s30, 3\ns_add_u32 s5, s5, s6\ns_cmp_lt_u32 s6, 3\ns_cselect_b32 s5, s5, s7")
            a("s_cmp_lt_u32 s6, 4\ns_cselect_b32 s5, s5, 28\ns_lshl_b32 s5, s5, 3\ns_and_b32 s6, s36, 7\ns_add_u32 s5, s5, s6")
        a(f"s_add_u32 s5, s5, 1\nv_mov_b32 v{WK}, s5\ns_mov_b64 exec, 1\nds_write_b32 v{VCN}, v{WK} offset:{C_ROLE*4}\ns_mov_b64 exec, -1")
        a.label("L_role_done")
    def rest_mod():
        lds_wait(C_ROLE, 1, WK, VCN, sleep=2)
        a(f"s_sub_u32 s{ROLE}, s5, 1")
        a(f"s_and_b32 s{RBF}, s{ROLE}, 7\ns_mul_i32 s{SFY}, s{ROLE}, {WS}\ns_lshl_b32 s32, s{RBF}, 7\ns_lshl_b32 s5, s{WV}, 5\ns_add_u32 s32, s32, s5")
        a(f"s_lshl_b32 s5, s32, 1\nbuffer_load_ushort v{K_X}, v{K_C1}, {sr(R_X,4)}, s5 offen")
        a(f"v_lshrrev_b32 v{WK}, 3, v1\nv_mul_u32_u24 v{WK+1}, {WS}, v{WK}\nv_and_b32 v{WK+2}, 7, v1\nv_lshlrev_b32 v{WK+2}, 4, v{WK+2}")
        a(f"s_mul_i32 s34, s{RBF}, {WS}\ns_lshl_b32 s6, s{WV}, 7\ns_add_u32 s34, s34, s6")
        a(f"s_lshl_b32 s5, s32, 4\nv_lshl_add_u32 v{VA}, v{K_C1}, 3, s5")
        gather([(FG, 4, VA, MODF, None)], WK, kind="byte")
        a(f"v_and_b32 v{WK+3}, 8, v1\nv_mul_u32_u24 v{WK+3}, 40, v{WK+3}\ns_lshl_b32 s5, s{WV}, 6\ns_add_u32 s5, s5, {L_AT}\nv_add3_u32 v{VAW}, v{WK+3}, v{K_C1}, s5")
        a(f"v_mov_b32 v{TB}, v{K_C1}")
        a(f"v_mov_b32 v{K_GA}, v{FG}\nv_mov_b32 v{K_GB}, v{FG+3}\nv_add_f32 v{K_C1}, 1.0, v{FG+2}"); rnd(K_C1, K_C1)
        a(f"v_mov_b32_dpp v{FG+1}, v{K_C1} quad_perm:[0,1,2,3] row_mask:0xf bank_mask:0x3")
        a(f"ds_write_b16_d16_hi v{VAW}, v{FG+1} offset:640")
        stamp(8, VST)
        a(f"v_lshlrev_b32 v{K_X}, 16, v{K_X}")
    role_make()
    a.c('softmax statistics of the workgroup -> other splits of the kv group')
    a(f"s_cmp_lg_u32 s{WV}, 0\ns_cbranch_scc1 L_ml_pub")
    lds_wait(C_ML, 8, WK, VCN, sleep=max(2, cfg.lsl))
    stamp(9, VST)
    a(f"v_lshlrev_b32 v{WK+2}, 3, v1\nv_add_u32 v{WK+3}, {L_MLW}, v{WK+2}\nds_read_b64 {vr(WK,2)}, v{WK+3}\ns_waitcnt lgkmcnt(0)")
    a(f"v_mov_b32 v{WK+4}, v{WK}")
    xreduce("v_max_f32", WK + 4, WK + 6, (8, 16, 32))
    a(f"v_sub_f32 v{WK}, v{WK}, v{WK+4}\nv_mul_f32 v{WK}, s33, v{WK}\nv_exp_f32 v{WK}, v{WK}\nv_mul_f32 v{WK+5}, v{WK}, v{WK+1}")
    xreduce("v_add_f32", WK + 5, WK + 6, (8, 16, 32))
    a(f"s_mov_b64 exec, 0xff\nbuffer_store_dwordx2 {vr(WK+4,2)}, v{WK+2}, {sr(R_WS,4)}, s81 offen sc1\ns_mov_b64 exec, -1")
    a.label("L_ml_pub")
    if cfg.steal:
        a(f"s_lshl_b32 s5, s{WV}, 7\nv_add_u32 v{WK+1}, s5, v{VACT}\nds_read_b128 {vr(ACT,4)}, v{WK+1} offset:{L_SIL-L_MISC}\nds_read_b128 {vr(ACT+4,4)}, v{WK+1} offset:{L_SIL-L_MISC+64}")
        lds_wait(C_DEC, 1, WK, VCN)
        a("s_mov_b32 s85, s5")
        for bit, cnt, base, slot in ((0, C_MOD2, L_MOD + 32768, None), (1, C_MOD3, L_WO, 84)):
            a(f"s_bitcmp1_b32 s85, {bit}\ns_cbranch_scc0 L_st_skip{bit}")
            lds_wait(cnt, 8, WK, VCN)
            tr_tile(FU, base, 2, WK + 4)
            a("s_waitcnt lgkmcnt(0)")
            gemv_pub([FU, FU + 8], 2, FU + 16, FU + 24, MODP + 512, slot=slot)
            a.label(f"L_st_skip{bit}")
        lds_signal(C_MLD, VCN, VONE)
    a.c('32 waves finish ga, sb, cb, gb')
    a(f"s_cmp_lg_u32 s{WV}, 2\ns_cbranch_scc1 L_modf_done\ns_and_b32 s5, s2, 0xc4\ns_cmp_lg_u32 s5, 0xc4\ns_cbranch_scc1 L_modf_done")
    a(f"s_bfe_u32 s36, s2, 0x30003\ns_and_b32 s37, s2, 3\ns_mul_i32 s5, s36, {WS}\ns_lshl_b32 s6, s37, 7\ns_add_u32 s5, s5, s6")
    a(f"v_lshrrev_b32 v{WK}, 3, v1\nv_mul_u32_u24 v{VA}, {16*WS}, v{WK}\nv_and_b32 v{WK}, 7, v1\nv_lshl_add_u32 v{VA}, v{WK}, 4, v{VA}\nv_add_u32 v{VA}, s5, v{VA}")
    if cfg.steal: lds_wait(C_P9, 8, WK, VCN, sleep=4)
    mv = [MODP, MODP + 8 * WS, MODP + 512, MODP + 512 + 8 * WS]
    gather([(FG + 8 * v + 4 * i, 4, VA, mv[v] + i * 128 * WS, None) for v in range(4) for i in range(2)], WK, kind="byte")
    for v in range(4):
        pk_sum4(FG + 8 * v, 2); col_reduce(FG + 8 * v); rnd(FG + 8 * v, FG + 8 * v)
    for v in range(4): tagit(FU + v, FG + 8 * v, v)
    a(f"v_lshlrev_b32 v{WK}, 3, v{K_C1}\ns_lshl_b32 s5, s36, 11\ns_lshl_b32 s6, s37, 9\ns_add_u32 s5, s5, s6\ns_add_u32 s5, s5, {MODF}")
    setexec(0x00ff00ff00ff00ff)
    a(f"buffer_store_dwordx4 {vr(FU,4)}, v{WK}, {sr(R_WS,4)}, s5 offen sc1\ns_mov_b64 exec, -1")
    a.label("L_modf_done")
    a(f"s_cmp_lg_u32 s{WV}, 0\ns_cbranch_scc1 L_ml_done")
    a(f"v_lshl_add_u32 v{VA}, v1, 3, s80")
    lds_wait(C_P3, 8, WK, VCN, sleep=cfg.lsl)
    stamp(21, VST)
    gather([(FU + 2 * i, 2, VA, i * 512, None) for i in range(8)], WK)
    a.c('global max and sum over the 64 splits -> LDS')
    m_, r_, t_ = FU + 16, FU + 17, FU + 18
    a(f"v_max3_f32 v{m_}, v{FU}, v{FU+2}, v{FU+4}\nv_max3_f32 v{m_}, v{m_}, v{FU+6}, v{FU+8}\nv_max3_f32 v{m_}, v{m_}, v{FU+10}, v{FU+12}\nv_max_f32 v{m_}, v{m_}, v{FU+14}")
    xreduce("v_max_f32", m_, t_, (8, 16, 32))
    for i in range(8):
        a(f"v_sub_f32 v{FU+2*i}, v{FU+2*i}, v{m_}\nv_mul_f32 v{FU+2*i}, s33, v{FU+2*i}\nv_exp_f32 v{FU+2*i}, v{FU+2*i}")
    for i in range(8): a(f"v_mul_f32 v{FU+2*i}, v{FU+2*i}, v{FU+2*i+1}")
    tree_sum(FU, 8, 2)
    xreduce("v_add_f32", FU, t_, (8, 16, 32))
    a(f"v_rcp_f32 v{r_}, v{FU}")
    a(f"v_lshlrev_b32 v{t_}, 3, v1\nv_add_u32 v{t_}, {L_MLF}, v{t_}\ns_mov_b64 exec, 0xff\nds_write_b64 v{t_}, {vr(m_,2)}\ns_waitcnt lgkmcnt(0)")
    lds_signal(C_MLD, VCN, VONE)
    stamp(10, VST)
    a.label("L_ml_done")
    if cfg.bal >= 2: bal_run(8 * (cfg.NS - cfg.hstop - cfg.D2 - cfg.nq2 + (32 if cfg.balk else 0)))
    lds_wait(C_P3, 8, WK, VCN, sleep=max(4, cfg.lsl))
    rest_mod()
    late = lst(cfg.late)
    def ffn_frags(name, t0):
        base, dst, cnt = {"wo": (L_WO, FWO, C_WO), "gate": (L_GATE, FG, C_GATE), "up": (L_UP, FU, C_UP), "dn": (L_DN, FD, None)}[name]
        if cnt is not None: lds_wait(cnt, 8, t0, VCN, sleep=0 if name in late else 2)
        tr_tile(dst, base, 4, t0)
    if "wo" not in late: ffn_frags("wo", WK + 3)
    for name in ("gate", "up"):
        if name not in late: ffn_frags(name, WK + 3)
    a.c('addresses used by the tail')
    A_OS, A_OG, A_XW = ACT + 8, ACT + 9, ACT + 10
    A_A = WK + 5
    assert all(t in late for t in ("gate", "up"))
    if cfg.ared:
        a(f"s_and_b32 s5, s2, 3\ns_mul_i32 s5, s5, {WS}\ns_lshl_b32 s6, s{RBF}, 9\ns_add_u32 s5, s5, s6\ns_lshl_b32 s7, s{WV}, 7\ns_add_u32 s5, s5, s7")
    else:
        a(f"s_lshr_b32 s5, s2, 6\ns_mul_i32 s5, s5, {WS}\ns_lshl_b32 s6, s30, 9\ns_add_u32 s5, s5, s6\ns_lshl_b32 s7, s{WV}, 7\ns_add_u32 s5, s5, s7")
    a(f"v_lshl_add_u32 v{A_A}, v{WK+1}, 2, v{WK+2}\nv_add_u32 v{A_A}, s5, v{A_A}")
    a(f"s_mul_i32 s5, s{RBF}, {8*WS}\ns_add_u32 s5, s5, s7\nv_add3_u32 v{VA}, v{WK+1}, v{WK+2}, s5")
    a(f"v_lshl_add_u32 v{WK+1}, v{WK+1}, 3, v{WK+2}\nv_add_u32 v{WK+1}, s34, v{WK+1}")
    a(f"s_and_b32 s5, s{ROLE}, 0xf8\ns_mul_i32 s5, s5, {WS}\ns_lshl_b32 s6, s{WV}, 8\ns_add_u32 s5, s5, s6\nv_lshrrev_b32 v{WK}, 4, v1\nv_mul_u32_u24 v{WK}, {WS}, v{WK}")
    a(f"v_and_b32 v{WK+2}, 15, v1\nv_lshlrev_b32 v{WK+2}, 4, v{WK+2}\nv_add3_u32 v{WK+2}, v{WK}, v{WK+2}, s5")
    A_Y, A_Z, A_E = VA, WK + 1, WK + 2
    a(f"v_lshrrev_b32 v{WK}, 4, v1\nv_and_b32 v{WK+3}, 15, v1\nv_lshlrev_b32 v{A_OS}, 10, v{WK}\nv_lshl_add_u32 v{A_OS}, v{WK+3}, 4, v{A_OS}")
    a(f"s_lshl_b32 s5, s{WV}, 8\ns_add_u32 s5, s5, {L_OS}\nv_add_u32 v{A_OS}, s5, v{A_OS}")
    a(f"v_and_b32 v{A_OG}, 7, v1\nv_lshlrev_b32 v{A_OG}, 9, v{A_OG}\nv_lshl_add_u32 v{A_OG}, v{WK}, 4, v{A_OG}\nv_and_b32 v{WK+3}, 8, v1\nv_lshl_add_u32 v{A_OG}, v{WK+3}, 3, v{A_OG}")
    a(f"s_lshl_b32 s37, s{WV}, 7\ns_add_u32 s37, s37, s{SMY}\ns_add_u32 s37, s37, {OP}")
    a(f"v_and_b32 v{WK+3}, 7, v1\nv_bfe_u32 v{WK+4}, v1, 4, 1\nv_lshl_add_u32 v{WK+3}, v{WK+4}, 4, v{WK+3}\nv_lshrrev_b32 v{WK+4}, 5, v1\nv_lshl_add_u32 v{WK+3}, v{WK+4}, 3, v{WK+3}")
    if cfg.ared: a(f"s_lshl_b32 s5, s{WV}, 7\ns_add_u32 s5, s5, {L_RV}\nv_lshl_add_u32 v{A_XW}, v{WK+3}, 1, s5\nv_readfirstlane_b32 s33, v{TAG}")
    else: a(f"s_lshl_b32 s5, s{WV}, 6\ns_add_u32 s5, s5, {L_OV}\nv_lshl_add_u32 v{A_XW}, v{WK+3}, 1, s5")
    a(f"v_lshlrev_b32 v{VCHK}, 2, v1\nv_add_u32 v{VCHK}, {L_MISC}, v{VCHK}")
    def e_preread(t):
        a(f"v_lshlrev_b32 v{t}, 7, v1\ns_lshl_b32 s5, s{WV}, 8\ns_add_u32 s5, s5, s{SFY}\ns_add_u32 s5, s5, {GUP}\ns_mov_b64 exec, 7")
        a(f"buffer_load_dword v{t}, v{t}, {sr(R_WS,4)}, s5 offen sc1\ns_mov_b64 exec, -1")
    if cfg.warm:
        a(f"s_getpc_b64 s[6:7]\ns_lshl_b32 s5, s{WV}, 11\nv_lshlrev_b32 v{WK+4}, 7, v1\nv_add_u32 v{WK+4}, s5, v{WK+4}\ns_mov_b64 exec, 0xffff")
        a(f"global_load_dword v{WK+3}, v{WK+4}, s[6:7]\ns_mov_b64 exec, -1")
    a(f"v_readfirstlane_b32 s35, v{TAG}\ns_lshl_b32 s35, s35, 10\ns_or_b32 s35, s35, {8 * (cfg.NS - cfg.D2 - cfg.nq2 + (32 if cfg.balk else 0)) + 1}")
    if cfg.zt:
        a(f"s_lshl_b32 s5, s{WV}, 7\ns_add_u32 s5, s5, s{SFY}\ns_add_u32 s5, s5, {ZP}\ns_mov_b64 exec, 1\nbuffer_load_dword v{TAG}, off, {sr(R_WS,4)}, s5 sc1\ns_mov_b64 exec, -1")
    if cfg.ot & 1:
        a(f"v_lshlrev_b32 v{WK+4}, 7, v1\ns_lshl_b32 s5, s{WV}, 10\ns_add_u32 s5, s5, s{SMY}\ns_add_u32 s5, s5, {OP}\ns_mov_b64 exec, 0xff\nbuffer_load_dword v{TAG}, v{WK+4}, {sr(R_WS,4)}, s5 offen sc1\ns_mov_b64 exec, -1")
    if cfg.ot & 2:
        a(f"s_lshl_b32 s5, s{WV}, 7\ns_add_u32 s5, s5, s{SMY}\ns_add_u32 s5, s5, {YP}\ns_mov_b64 exec, 1\nbuffer_load_dword v{TAG}, off, {sr(R_WS,4)}, s5 sc1\ns_mov_b64 exec, -1")
    if cfg.elocal and cfg.epre == 1: e_preread(WK + 3); a("s_waitcnt vmcnt(0)")
    P31 = 8 * (cfg.NS - cfg.D2 + 1)
    def lb_setup(h):
        a(f"s_mul_i32 s86, s30, {WS}\ns_add_u32 s86, s86, {BRD}\ns_lshr_b32 s87, s2, 3\ns_lshl_b32 s87, s87, 2\ns_add_u32 s87, s87, s86\nv_lshlrev_b32 v{h}, 2, v1")
    def lb_issue(h):
        a(f"ds_read_b32 v{h+2}, v{VCN} offset:{C_T*4}\ns_waitcnt lgkmcnt(0)\nv_readfirstlane_b32 s88, v{h+2}\ns_sub_u32 s88, s88, s39")
        a(f"s_cmp_lt_u32 s{ROLE}, 224\ns_cselect_b32 s5, s88, 1023\ns_or_b32 s5, s5, s35\nv_mov_b32 v{h+2}, s5\ns_mov_b64 exec, 1\nbuffer_store_dword v{h+2}, off, {sr(R_WS,4)}, s87")
        a(f"s_mov_b32 exec_lo, -1\nbuffer_load_dword v{h+3}, v{h}, {sr(R_WS,4)}, s86 offen sc1\ns_mov_b64 exec, -1")
    def lb_finish(h):
        a(f"v_xor_b32 v{h+3}, s35, v{h+3}\nv_cmp_gt_u32 vcc, 1024, v{h+3}\nv_cndmask_b32 v{h+3}, 0, v{h+3}, vcc\nv_cmp_le_u32 vcc, {P31}, v{h+3}\ns_bcnt1_i32_b32 s89, vcc_lo")
        a(f"v_mov_b32 v{h+4}, s88\nv_cmp_eq_u32 vcc, 1023, v{h+3}\nv_cndmask_b32 v{h+3}, v{h+3}, v{h+4}, vcc")
        xreduce("v_add_u32", h + 3, h + 4, (1, 2, 4, 8, 16))
        a(f"v_readfirstlane_b32 s42, v{h+3}\ns_lshr_b32 s42, s42, 5\ns_sub_u32 s42, s42, s88\ns_sub_u32 s43, s42, s39\ns_mov_b32 s39, s42")
        a(f"v_mov_b32 v{h+2}, s43\ns_mov_b64 exec, 1\nds_add_u32 v{VCN}, v{h+2} offset:{C_T*4}\ns_mov_b64 exec, -1")
    h = FG
    def cd_mark():
        a(f"s_mul_i32 s36, s30, {WS}\ns_add_u32 s36, s36, {BRD}\ns_lshr_b32 s5, s2, 3\ns_lshl_b32 s5, s5, 2\ns_add_u32 s5, s5, s36")
        a(f"v_lshlrev_b32 v{h}, 2, v1\nv_mov_b32 v{h+1}, s35\nv_mov_b32 v{h+4}, 8\ns_mov_b64 exec, 1\nbuffer_store_dword v{h+1}, off, {sr(R_WS,4)}, s5 {cfg.lfl}\ns_mov_b32 exec_lo, -1")
    def hint_mark(early):
        a(f"s_cmp_lg_u32 s{WV}, 3\ns_cbranch_scc1 L_hm_done")
        if early: lds_wait(C_P8, 8, WK, VCN, sleep=cfg.lsl)
        if cfg.hint == 3: a("s_waitcnt vmcnt(0)"); stamp(30, VST)
        a(f"s_mul_i32 s5, s30, {WS}\ns_add_u32 s5, s5, {TKT}\nv_mov_b32 v{h}, 1\nv_mul_u32_u24 v{h+1}, {WS}, v1\nv_mov_b32 v{h+2}, s35\ns_mov_b64 exec, 1")
        a(f"buffer_atomic_add v{h}, off, {sr(R_WS,4)}, s5 sc0 sc1\ns_mov_b64 exec, -1")
        a(f"s_and_b32 s36, s2, 3\ns_mul_i32 s36, s36, {64*WS}\ns_and_b32 s5, s2, 4\ns_add_u32 s36, s36, s5\ns_add_u32 s36, s36, {INB}")
        a(f"s_waitcnt vmcnt(0)\nv_readfirstlane_b32 s5, v{h}\ns_cmp_lg_u32 s5, 30\ns_cbranch_scc1 L_hm_done")
        a(f"buffer_store_dword v{h+2}, v{h+1}, {sr(R_WS,4)}, s36 offen sc1")
        a.label("L_hm_done")
    if cfg.hint:
        if cfg.hint == 1: hint_mark(True)
    elif cfg.lp:
        a(f"s_and_b32 s35, s35, 0xfffffc00\ns_cmp_lg_u32 s{WV}, 3\ns_cbranch_scc1 L_cm_done")
        lds_wait(C_P8, 8, WK, VCN, sleep=cfg.lsl)
        lb_setup(h); lb_issue(h)
        a.label("L_cm_done")
    elif cfg.cdone and cfg.pv >= 0:
        a(f"s_cmp_lg_u32 s{WV}, 3\ns_cbranch_scc1 L_cm_done")
        lds_wait(C_P8, 8, WK, VCN, sleep=cfg.lsl)
        cd_mark()
        a(f"buffer_load_dword v{h+2}, v{h}, {sr(R_WS,4)}, s36 offen sc1\ns_mov_b64 exec, -1")
        a.label("L_cm_done")
    a("s_waitcnt lgkmcnt(0)")
    stamp(11, VST)
    a("s_barrier")
    stamp(12, VST)
    a.c("sum the 8 waves' O and publish the workgroup's partial")
    for s in range(8): a(f"ds_read_b128 {vr(FD+4*s,4)}, v{A_OS} offset:{s*4096}")
    a("s_waitcnt lgkmcnt(4)"); pk_sum4(FD, 4)
    a("s_waitcnt lgkmcnt(0)"); pk_sum4(FD + 16, 4)
    a(f"v_pk_add_f32 {vr(FD,2)}, {vr(FD,2)}, {vr(FD+16,2)}\nv_pk_add_f32 {vr(FD+2,2)}, {vr(FD+2,2)}, {vr(FD+18,2)}")
    for i in range(4): tagit(FD + i, FD + i, i)
    a(f"buffer_store_dwordx4 {vr(FD,4)}, v{A_OG}, {sr(R_WS,4)}, s37 offen sc1")
    stamp(13, VST)
    def betweenA():
        if cfg.p5 < 0: lds_signal(C_OR, VCN, VONE)
        if "wo" in late: ffn_frags("wo", WK + 3)
    if cfg.p5 >= 0:
        lds_signal(C_OR, VCN, VONE)
        if cfg.ared: a(f"s_cmp_lt_u32 s{ROLE}, 224\ns_cbranch_scc1 L_ar_done")
        if cfg.hint:
            if cfg.hint >= 2: hint_mark(False)
            a(f"s_cmp_lg_u32 s{WV}, 2\ns_cbranch_scc1 L_hp_done")
            a(f"s_add_u32 s5, s{SMY}, {INB}\ns_add_u32 s40, s{KA(104)}, s5\ns_addc_u32 s41, s{KA(104)+1}, 0\nv_mov_b32 v{h+4}, 8")
            a.label("L_hp")
            a(f"s_load_dwordx2 s[42:43], s[40:41], 0 glc\nds_read_b32 v{h+3}, v{VCN} offset:{C_P5*4}")
            budget_check()
            a(f"s_waitcnt lgkmcnt(0)\nv_readfirstlane_b32 s5, v{h+3}\ns_cmp_ge_u32 s5, 8\ns_cbranch_scc1 L_hp_done")
            a(f"s_cmp_lg_u32 s42, s35\ns_cbranch_scc1 L_hp\ns_cmp_lg_u32 s43, s35\ns_cbranch_scc1 L_hp")
            if cfg.hd:
                a(f"ds_read_b32 v{WK}, v{VCN} offset:{C_LC*4}\ns_waitcnt lgkmcnt(0)\nv_readfirstlane_b32 s42, v{WK}\ns_add_u32 s42, s42, {cfg.hd}\ns_min_u32 s42, s42, {8 * (16 - cfg.nl0 - cfg.nmid - cfg.npre)}")
                lds_wait(C_LC, "s42", WK, VCN)
            a(f"s_mov_b64 exec, 1\nds_add_u32 v{VCN}, v{h+4} offset:{C_P5*4}\ns_mov_b64 exec, -1")
            a.label("L_hp_done")
        elif cfg.lp:
            a(f"s_cmp_lg_u32 s{WV}, 3\ns_cbranch_scc1 L_cd_done\ns_waitcnt vmcnt(1)\ns_branch L_cd_chk")
            a.label("L_cd")
            lb_issue(h)
            a(f"ds_read_b32 v{h+5}, v{VCN} offset:{C_P5*4}")
            budget_check()
            a(f"s_waitcnt lgkmcnt(0)\nv_readfirstlane_b32 s5, v{h+5}\ns_cmp_ge_u32 s5, 8\ns_cbranch_scc1 L_cd_done\ns_waitcnt vmcnt(0)")
            a.label("L_cd_chk")
            lb_finish(h)
            a(f"s_cmp_lt_u32 s89, {cfg.cdone}\ns_cbranch_scc1 L_cd")
            a(f"v_mov_b32 v{h+4}, 8\ns_mov_b64 exec, 1\nds_add_u32 v{VCN}, v{h+4} offset:{C_P5*4}\ns_mov_b64 exec, -1")
            a.label("L_cd_done")
        elif cfg.cdone:
            a(f"s_cmp_lg_u32 s{WV}, 3\ns_cbranch_scc1 L_cd_done")
            if cfg.pv < 0: cd_mark()
            else: a(f"s_mov_b32 exec_hi, 0\ns_waitcnt vmcnt(1)\ns_branch L_cd_chk")
            a.label("L_cd")
            a(f"buffer_load_dword v{h+2}, v{h}, {sr(R_WS,4)}, s36 offen sc1\nds_read_b32 v{h+3}, v{VCN} offset:{C_P5*4}")
            budget_check()
            a(f"s_waitcnt lgkmcnt(0)\nv_readfirstlane_b32 s5, v{h+3}\ns_cmp_ge_u32 s5, 8\ns_cbranch_scc1 L_cd_out\ns_waitcnt vmcnt(0)")
            a.label("L_cd_chk")
            a(f"v_cmp_eq_u32 vcc, s35, v{h+2}\ns_bcnt1_i32_b64 s5, vcc\ns_cmp_lt_u32 s5, {cfg.cdone}\ns_cbranch_scc1 L_cd")
            a(f"s_mov_b64 exec, 1\nds_add_u32 v{VCN}, v{h+4} offset:{C_P5*4}")
            a.label("L_cd_out")
            a("s_mov_b64 exec, -1")
            a.label("L_cd_done")
        if cfg.pmin >= 0: lds_wait(C_P7, 8, WK, VCN)
        lds_wait(C_P5, 8, WK, VCN)
    if cfg.yp >= 0: lds_signal(C_AI, VCN, VONE)
    stamp(28, VST)
    a.c('hand-off 3: o of one head (64 partials), y partial = o @ wo tile')
    if cfg.dbgh & 4:
        for i in range(32): a(f"v_mov_b32 v{FU+i}, 0")
    gather([(FU + 4 * i, 4, A_A, OP + i * 32 * WS, 0x0101010101010101 if cfg.dbgh & 4 else None) for i in range(8)], WK, kind="byte", between=None if cfg.ared else betweenA, acc=FD + 4)
    if cfg.yrel == 1: lds_signal(C_Y, VCN, VONE)
    stamp(30 if cfg.ared else 14, VST)
    col_reduce(FD + 4)
    rnd(FD + 4, FD + 4)
    a(f"ds_write_b16_d16_hi v{A_XW}, v{FD+4}")
    if cfg.ared:
        r_ = FD + 8
        a(f"v_mul_u32_u24 v{r_+4}, 43, v1\nv_lshrrev_b32 v{r_+4}, 8, v{r_+4}\nv_mul_u32_u24 v{r_+5}, 6, v{r_+4}\nv_sub_u32 v{r_+5}, v1, v{r_+5}")
        a(f"v_mul_u32_u24 v{r_+6}, 12, v{r_+5}\ns_lshl_b32 s5, s{WV}, 7\ns_add_u32 s6, s5, {L_RV}\nv_add_u32 v{r_+6}, s6, v{r_+6}")
        a(f"ds_read2_b32 {vr(r_,2)}, v{r_+6} offset0:0 offset1:1\nds_read_b32 v{r_+2}, v{r_+6} offset:8\nv_mov_b32 v{r_+3}, s33")
        a(f"v_mul_u32_u24 v{r_+4}, {8*WS}, v{r_+4}\nv_lshl_add_u32 v{r_+4}, v{r_+5}, 4, v{r_+4}")
        a(f"s_and_b32 s6, s2, 3\ns_lshl_b32 s6, s6, 6\ns_add_u32 s6, s6, s{RBF}\ns_mul_i32 s6, s6, {WS}\ns_add_u32 s5, s5, s6\ns_add_u32 s5, s5, {OIN}")
        a(f"s_mov_b32 exec_hi, 0xffff\ns_waitcnt lgkmcnt(0)\nbuffer_store_dwordx4 {vr(r_,4)}, v{r_+4}, {sr(R_WS,4)}, s5 offen sc1\ns_mov_b32 exec_hi, -1")
        a.label("L_ar_done")
        ffn_frags("wo", WK + 3)
        a(f"s_lshl_b32 s5, s{WV}, 7\ns_add_u32 s5, s5, s{SMY}\ns_add_u32 s5, s5, {OIN}\ns_add_u32 s40, s{KA(104)}, s5\ns_addc_u32 s41, s{KA(104)+1}, 0")
        a(f"s_lshl_b32 s5, s{WV}, 6\ns_add_u32 s5, s5, {L_OV}\nv_mov_b32 v{r_+16}, s5\ns_branch L_ap0")
        a.label("L_ap")
        if cfg.asl: a(f"s_sleep {cfg.asl}")
        a.label("L_ap0")
        a("s_load_dwordx16 s[44:59], s[40:41], 0 glc\ns_load_dwordx8 s[60:67], s[40:41], 64 glc")
        budget_check()
        a("s_waitcnt lgkmcnt(0)")
        for g in range(6): a(f"s_cmp_lg_u32 s{47+4*g}, s33\ns_cbranch_scc1 L_ap")
        a("s_mov_b64 exec, 1")
        for i in range(16):
            a(f"v_mov_b32 v{r_+i}, s{44 + 4*(i//3) + i%3}")
            if i % 4 == 3: a(f"ds_write_b128 v{r_+16}, {vr(r_+i-3,4)} offset:{(i-3)*4}")
        a("s_mov_b64 exec, -1")
        stamp(14, VST)
    xch_read(L_OV, 4, WK, VACT)
    gemv_pub([FWO, FWO + 16], 4, FD, FD + 16, YP)
    if not cfg.yrel: lds_signal(C_Y2 if cfg.yp >= 0 else C_Y, VCN, VONE)
    stamp(15, VST)
    a(f"s_cmp_lt_u32 s{ROLE}, 224\ns_cbranch_scc1 L_ffn")
    if cfg.yrel == 2: lds_signal(C_Y, VCN, VONE)
    a("s_branch L_fin")
    a.label("L_ffn")
    a(f"s_mov_b32 s{SMY}, s{SFY}")
    if cfg.yd >= 0:
        a(f"ds_read_b32 v{WK}, v{VCN} offset:{C_LC*4}\ns_waitcnt lgkmcnt(0)\nv_readfirstlane_b32 s34, v{WK}\ns_add_u32 s34, s34, {cfg.yd}\ns_min_u32 s34, s34, {8 * (16 - cfg.nl0 - cfg.nmid - cfg.npre)}")
    A_AT, A_M, A_GS = WK + 5, FWO + 30, FWO + 31
    a(f"v_and_b32 v{WK}, 3, v1\nv_mul_u32_u24 v{WK+3}, 320, v{WK}\nv_add_u32 v{A_AT}, v{WK+3}, v{VACT}")
    a(f"v_bfe_u32 v{WK+3}, v1, 2, 3\nv_mul_u32_u24 v{WK+3}, {WS}, v{WK+3}\nv_lshl_add_u32 v{A_M}, v{WK}, 4, v{WK+3}\ns_and_b32 s5, s{ROLE}, 0xf8\ns_mul_i32 s5, s5, {WS}\nv_add_u32 v{A_M}, s5, v{A_M}")
    a(f"s_lshl_b32 s36, s{WV}, 8\ns_add_u32 s36, s36, s{SMY}\ns_add_u32 s36, s36, {GUP}\nv_lshlrev_b32 v{A_GS}, 2, v1")
    a(f"s_lshl_b32 s37, s{WV}, 4\ns_add_u32 s37, s37, s{SMY}\ns_add_u32 s37, s37, {MOM}")
    a(f"s_lshl_b32 s5, s{WV}, 6\ns_add_u32 s5, s5, {L_HHV}\nv_add_u32 v{VB}, s5, v{TB}")
    def store_gl(data, vaddr, soff):
        if cfg.elocal:
            Lf = a.newlabel("L_far"); Lj = a.newlabel("L_stj")
            a(f"s_cmp_eq_u32 s15, 0\ns_cbranch_scc1 {Lf}")
            a(f"buffer_store_dwordx4 {vr(data,4)}, {vaddr}, {sr(R_WS,4)}, {soff} {cfg.lfl}")
            a.label(Lj)
            def far():
                a.label(Lf); a(f"buffer_store_dwordx4 {vr(data,4)}, {vaddr}, {sr(R_WS,4)}, {soff} sc1\ns_branch {Lj}")
            deferred.append(far)
        else: a(f"buffer_store_dwordx4 {vr(data,4)}, {vaddr}, {sr(R_WS,4)}, {soff} sc1")
    if cfg.elocal and cfg.epre == 2: e_preread(FWO + 29)
    def dnf():
        a("s_barrier")
        ffn_frags("dn", WK + 3)
    def gu_frags():
        for name in ("gate", "up"):
            if name in late: ffn_frags(name, WK + 3)
    if cfg.lp:
        h2 = FD + 24
        a(f"s_cmp_lg_u32 s{WV}, 3\ns_cbranch_scc1 L_lb_done")
        lb_setup(h2)
        a.label("L_lb")
        lb_issue(h2)
        budget_check()
        a(f"s_cmp_ge_u32 s88, {P31 + 8 * (cfg.p6 - cfg.lstop)}\ns_cbranch_scc1 L_lb_done\ns_waitcnt vmcnt(0)")
        lb_finish(h2)
        a("s_branch L_lb")
        a.label("L_lb_done")
    if cfg.bgate == 1: gu_frags()
    if cfg.nb: lds_wait(C_UP, cfg.nb, WK, VCN, sleep=0)
    if cfg.yd >= 0:
        lds_wait(C_LC, "s34", WK, VCN)
    if cfg.p6 >= 0: lds_wait(C_P6, 8, WK, VCN)
    if cfg.ackB: a("s_waitcnt vmcnt(0)")
    stamp(29, VST)
    a.c("hand-off 4: y for this wave's 32 columns; x2 = x + ga*y; rows hi/lo(x2*(1+cb)), 1+cb, sb feed one MFMA pass")
    gather([(FWO + 4 * i, 4, A_Y, YP + i * 64 * WS, None) for i in range(4)], WK, kind="byte", between=dnf if cfg.efirst == 3 else gu_frags if cfg.bgate == 2 else None, acc=FWO + 24, masked=bool(cfg.bmask))
    if cfg.yrel == 2: lds_signal(C_Y, VCN, VONE)
    stamp(16, VST)
    col_reduce(FWO + 24)
    y_ = FWO + 24
    rnd(y_, y_); a(f"v_mul_f32 v{y_}, v{y_}, v{K_GA}"); rnd(y_, y_); a(f"v_add_f32 v{K_X}, v{K_X}, v{y_}"); rnd(K_X, K_X)
    st_ = FWO + 28; mo = FWO
    a(f"v_mov_b32 v{st_}, v{K_X}\nv_mul_f32 v{y_}, v{K_X}, v{K_C1}")
    a(f"v_mul_f32_dpp v{st_}, v{K_X}, v{K_X} quad_perm:[0,1,2,3] row_mask:0xf bank_mask:0xc\nv_mov_b32 v{st_+1}, v{st_}")
    rnd(y_ + 1, y_)
    a(f"s_nop 0\nv_permlane32_swap_b32 v{st_}, v{st_+1}\nv_add_f32 v{st_}, v{st_}, v{st_+1}\nv_mov_b32 v{st_+1}, v{st_}")
    a(f"v_subrev_f32_dpp v{y_}, v{y_+1}, v{y_} quad_perm:[0,1,2,3] row_mask:0xf bank_mask:0xc")
    rnd(y_, y_)
    a(f"v_permlane16_swap_b32 v{st_}, v{st_+1}\nv_add_f32 v{st_}, v{st_}, v{st_+1}")
    a(f"ds_write_b16_d16_hi v{VAW}, v{y_}")
    xreduce("v_add_f32", st_, None, ("quad_perm:[1,0,3,2]", "quad_perm:[2,3,0,1]", "row_half_mirror"))
    a(f"v_and_b32 v{mo}, v{st_}, v{BT}\nv_sub_f32 v{mo+1}, v{st_}, v{mo}")
    tagit(mo, mo, 0)
    a(f"v_mov_b32_dpp v{mo+2}, v{st_} row_ror:8 {DPPF}\nv_mov_b32_dpp v{mo+3}, v{mo+1} row_ror:8 {DPPF}")
    tagit(mo + 1, mo + 1, 1); tagit(mo + 2, mo + 2, 2); tagit(mo + 3, mo + 3, 3)
    a("s_mov_b64 exec, 1")
    store_gl(mo, "off", "s37")
    a("s_mov_b64 exec, -1")
    if cfg.efirst == 4: dnf()
    stamp(22, VST)
    frs = [FG, FG + 16, FU, FU + 16]; dacc = FWO; out = FWO + 16
    mg = FWO + 24
    mload = f"buffer_load_dwordx4 {vr(mg,4)}, v{A_M}, {sr(R_WS,4)}, s34 offen sc1"
    a(f"s_mov_b32 s34, {MOM}")
    if cfg.bgate == 0: gu_frags()
    xch_read(L_AT, 4, WK + 3, A_AT, two=True)
    for cg in range(5):
        if cg < 4:
            if cg > 1: a("s_mov_b64 exec, -1")
            if cg == cfg.mfirst: a(mload)
            for kk in range(4): mfma(dacc + 4 * cg, ACT + 4 * kk, frs[cg] + 4 * kk, kk == 0)
            if cg == 0:
                for k in range(4): a(f"v_mov_b32 v{out+4+k}, s{TB0+k}")
        if cg >= 1:
            d = dacc + 4 * (cg - 1)
            setexec(0xffff << (16 * (cg - 1)))
            a(f"v_add_f32 v{out}, v{d}, v{d+1}\nv_pk_mov_b32 {vr(out+2,2)}, {vr(d+2,2)}, {vr(d+2,2)} op_sel:[0,1]")
    a("s_mov_b64 exec, -1")
    if cfg.mfirst < 4: a("s_branch L_mchk")
    a.label("L_mld")
    a(mload); budget_check()
    a.label("L_mchk")
    a("s_waitcnt vmcnt(0)")
    for k in range(4): a(f"v_xor_b32 v{mg+k}, s{TB0+k}, v{mg+k}")
    a(f"v_or3_b32 v{WK}, v{mg}, v{mg+1}, v{mg+2}\nv_or_b32 v{WK}, v{WK}, v{mg+3}\nv_and_b32 v{WK}, 0xff, v{WK}\nv_cmp_ne_u32 vcc, 0, v{WK}\ns_cbranch_vccnz L_mld")
    stamp(27, VST)
    a.c('layer norm 2 applied after the GEMV: g,u partial = rstd * (A1 - mean * A2) + A3')
    a(f"v_add_f32 v{mg}, v{mg}, v{mg+1}\ns_mov_b32 exec_lo, 0\nv_add_f32 v{mg}, v{mg+2}, v{mg+3}\ns_mov_b32 exec_lo, -1")
    xreduce("v_add_f32", mg, mg + 1, (16, 8, 4, 2, 1))
    a(f"v_mul_f32 v{mg}, {f2u(1.0/1024):#x}, v{mg}\nv_mov_b32 v{mg+1}, v{mg}\nv_permlane32_swap_b32 v{mg}, v{mg+1}")
    a(f"v_fma_f32 v{mg+1}, -v{mg}, v{mg}, v{mg+1}"); rnd(mg, mg)
    a(f"v_max_f32 v{mg+1}, 0, v{mg+1}\nv_fma_f32 v{out}, -v{mg}, v{out+2}, v{out}")
    den_from_var(mg + 1, mg + 2)
    a(f"v_fma_f32 v{out}, v{out}, v{mg+2}, v{out+3}\nv_and_b32 v{out}, v{out}, v{BT}")
    for k in range(4): a(f"v_or_b32_dpp v{out+4+k}, v{out}, v{out+4+k} quad_perm:[{k},{k},{k},{k}] {DPPF}")
    setexec(0x1111111111111111)
    store_gl(out + 4, f"v{A_GS}", "s36 offen")
    a("s_mov_b64 exec, -1")
    stamp(23, VST)
    eg = [(FG + 4 * i, 4, A_E, GUP + i * 4 * WS, None) for i in range(2)]
    if not cfg.efirst: dnf()
    if cfg.ackE: a("s_waitcnt vmcnt(0)")
    stamp(17, VST)
    a.c('hand-off 5 (inside the group of 8): g, u -> gelu_tanh(g) * u -> z partial = hh @ down tile')
    gather(eg, WK, kind="byte", masked=cfg.efirst == 1, between=dnf if cfg.efirst == 1 else None, acc=FU)
    if cfg.efirst == 2: dnf()
    stamp(18, VST)
    g_ = FU
    a(f"v_permlane32_swap_b32 v{g_}, v{g_+1}\nv_permlane32_swap_b32 v{g_+2}, v{g_+3}\nv_add_f32 v{g_}, v{g_}, v{g_+1}\nv_add_f32 v{g_+2}, v{g_+2}, v{g_+3}")
    a(f"v_permlane16_swap_b32 v{g_}, v{g_+2}\nv_add_f32 v{g_}, v{g_}, v{g_+2}")
    rnd(g_, g_)
    k2 = -2.0 * 0.7978845608028654 * LOG2E
    a(f"v_mul_f32 v{g_+2}, v{g_}, v{g_}\nv_mul_f32 v{g_+3}, {f2u(k2):#x}, v{g_}\nv_mul_f32 v{g_+2}, {f2u(0.044715):#x}, v{g_+2}\nv_fma_f32 v{g_+2}, v{g_+2}, v{g_+3}, v{g_+3}")
    a(f"v_exp_f32 v{g_+2}, v{g_+2}\nv_mov_b32_dpp v{g_+1}, v{g_} row_ror:8 {DPPF}\nv_add_f32 v{g_+2}, 1.0, v{g_+2}\nv_rcp_f32 v{g_+2}, v{g_+2}\nv_mul_f32 v{g_}, v{g_}, v{g_+2}")
    rnd(g_, g_); a(f"v_mul_f32 v{g_}, v{g_}, v{g_+1}")
    setexec(0x00ff00ff00ff00ff)
    rnd(g_, g_)
    a(f"ds_write_b16_d16_hi v{VB}, v{g_}\ns_mov_b64 exec, -1")
    xch_read(L_HHV, 4, WK, VACT)
    gemv_pub([FD, FD + 16], 4, FG, FG + 8, ZP)
    stamp(19, VST)
    if cfg.clean:
        a(f"v_lshlrev_b32 v{WK+3}, 2, v1")
        setexec(0x1111111111111111)
        a(f"buffer_store_dwordx4 {vr(out+4,4)}, v{WK+3}, {sr(R_WS,4)}, s36 offen sc1\ns_mov_b64 exec, 1\nbuffer_store_dwordx4 {vr(out+4,4)}, off, {sr(R_WS,4)}, s37 sc1")
        a(f"s_mul_i32 s5, s30, {WS}\ns_lshr_b32 s6, s2, 3\ns_lshl_b32 s6, s6, 2\ns_add_u32 s5, s5, s6\nbuffer_store_dword v{out+4}, off, {sr(R_WS,4)}, s5 offset:{BRD} sc1\ns_mov_b64 exec, -1")
    a(f"s_lshr_b32 s5, s{ROLE}, 3\ns_cmp_lg_u32 s5, {cfg.dgrp}\ns_cbranch_scc1 L_fin")
    a.c('hand-off 6: z over the 28 groups; out = x2 + gb * z')
    for i in range(4): a(f"v_mov_b32 v{FU+12+i}, 0")
    a("s_lshl_b32 s36, s32, 1")
    stamp(26, VST)
    if cfg.ackD: a("s_waitcnt vmcnt(0)")
    if cfg.dsl: a(f"s_sleep {cfg.dsl}")
    gather([(FU + 4 * i, 4, A_Z, ZP + i * 64 * WS, None if i < 3 else 0xffffffff) for i in range(4)], WK, kind="byte", masked=False, acc=FU + 16)
    stamp(24, VST)
    z_ = FU + 16
    col_reduce(z_)
    rnd(z_, z_); a(f"v_mul_f32 v{z_}, v{z_}, v{K_GB}"); rnd(z_, z_); a(f"v_add_f32 v{z_}, v{K_X}, v{z_}")
    setexec(0x00ff00ff00ff00ff)
    rnd(z_, z_)
    a(f"buffer_store_short_d16_hi v{z_}, v{TB}, {sr(R_OUT,4)}, s36 offen" + (" sc1" if cfg.outsc else "") + "\ns_mov_b64 exec, -1")
    stamp(25, VST)
    a.label("L_fin")
    if cfg.stamps:
        a(f"s_lshl_b32 s5, s2, 11\ns_lshl_b32 s6, s3, 7\ns_add_u32 s5, s5, s6\ns_add_u32 s5, s5, 0x8000000\nv_lshlrev_b32 v2, 2, v1")
        a(f"s_mov_b32 exec_hi, 0\nbuffer_store_dword v{VST}, v2, {sr(R_WS,4)}, s5 offen sc1")
    a("s_endpgm")
    a.c('retry paths of the gathers (only the lanes still missing are loaded again)')
    for f in deferred: f()
    a.label("L_end")
    body = "\n".join(hazard.run(a.l)) + "\n"
    txt = wrap(body, 256, 768, LDS_BYTES, 168, extra_desc="  .amdhsa_float_denorm_mode_32 3\n")
    return txt.replace(".amdgcn_target", DOC + ".amdgcn_target", 1)

if __name__ == "__main__":
    out = sys.argv[1]
    kw = {}
    for x in sys.argv[2:]:
        k, v = x.split("="); kw[k] = int(v) if v.lstrip("-").isdigit() else v
    open(out, "w").write(gen(Cfg(**kw)))
```
